```python
import torch

def _softmax(x, axis=-1):
    return torch.softmax(x, dim=axis)
def _gelu(x):
    return torch.nn.functional.gelu(x, approximate="tanh")
def _silu(x):
    return torch.nn.functional.silu(x)
def _sigmoid(x):
    return torch.sigmoid(x)
def _layernorm(x, axis=-1, eps=1e-5):
    m = x.mean(dim=axis, keepdim=True)
    v = x.var(dim=axis, keepdim=True, unbiased=False)
    return (x - m) / torch.sqrt(v + eps)
def _scatter_add(tgt, idx, src, axis=0):
    return tgt.clone().index_add_(axis, idx, src)
def _segment_sum(src, seg, n):
    out = torch.zeros((n,) + src.shape[1:], dtype=src.dtype)
    return out.index_add_(0, seg, src)
def _pad(x, pw):
    flat = tuple(v for pair in reversed(pw) for v in pair)
    return torch.nn.functional.pad(x, flat)

kernel_name = 'interleave_layers__ssm_conv_h3__mixer_channel_mlp__prompt'

def setup_inputs():

    _w = (lambda a: (lambda t: t.to(torch.bfloat16) if t.is_floating_point() else t)(torch.as_tensor(a)))
    def _A_setup():
        B, S, D = 1, 2048, 512
        ks = 4
        return {
            "q": _w((lambda *s: torch.randn(*s, dtype=torch.bfloat16) * 0.05)(B, S, D)),
            "k": _w((lambda *s: torch.randn(*s, dtype=torch.bfloat16) * 0.4)(B, S, D)),
            "v": _w((lambda *s: torch.randn(*s, dtype=torch.bfloat16) * 0.4)(B, S, D)),
            "shift_k": _w((lambda *s: torch.randn(*s, dtype=torch.bfloat16) * 0.4)(D, ks) * 0.5),
            "ssm_k": _w((lambda *s: torch.randn(*s, dtype=torch.bfloat16) * 0.4)(D, S) * (1.0 / S ** 0.5)),
            "ssm_D": _w((lambda *s: torch.randn(*s, dtype=torch.bfloat16) * 0.4)(D)),
        }
    _A_in = _A_setup()

    def _B_setup():
        B, S, D, F = 1, 2048, 512, 1792
        return {
            "x": _w((lambda *s: torch.randn(*s, dtype=torch.bfloat16) * 0.05)(B, S, D)),
            "w1": _w((lambda *s: torch.randn(*s, dtype=torch.bfloat16) * 0.8)(D, F) * (D ** -0.5)),
            "b1": _w((lambda *s: torch.randn(*s, dtype=torch.bfloat16) * 0.8)(F)),
            "w2": _w((lambda *s: torch.randn(*s, dtype=torch.bfloat16) * 0.8)(F, D) * (F ** -0.5)),
            "b2": _w((lambda *s: torch.randn(*s, dtype=torch.bfloat16) * 0.2)(D)),
        }
    _B_in = _B_setup()

    return {
        "A_q": _A_in["q"],
        "A_k": _A_in["k"],
        "A_v": _A_in["v"],
        "A_shift_k": _A_in["shift_k"],
        "A_ssm_k": _A_in["ssm_k"],
        "A_ssm_D": _A_in["ssm_D"],
        "B_x": _B_in["x"],
        "B_w1": _B_in["w1"],
        "B_b1": _B_in["b1"],
        "B_w2": _B_in["w2"],
        "B_b2": _B_in["b2"],
    }

def reference(A_q, A_k, A_v, A_shift_k, A_ssm_k, A_ssm_D, B_x, B_w1, B_b1, B_w2, B_b2):
    def _A_ref(q, k, v, shift_k, ssm_k, ssm_D):
        B, S, D = q.shape
        ks = shift_k.shape[-1]
        k_pad = _pad(k, ((0, 0), (ks - 1, 0), (0, 0)))
        k_shift = torch.zeros_like(k)
        for t in range(ks):
            k_shift = k_shift + k_pad[:, t:t + S, :] * shift_k[:, ks - 1 - t][None, None, :]
        kv = k_shift * v
        L = 2 * S
        kv_pad = _pad(kv, ((0, 0), (0, S), (0, 0)))
        kf_pad = _pad(ssm_k, ((0, 0), (0, S)))
        kv_f = (lambda x, axes=(-2,-1): torch.fft.rfft2(x.float(), dim=axes))(kv_pad[:, None, :, :], axes=(1, 2))
        kf_f = (lambda x, axes=(-2,-1): torch.fft.rfft2(x.float(), dim=axes))(kf_pad[:, None, :], axes=(1, 2))
        kf_f = (lambda x, *d: x.permute(*d))(kf_f, 1, 2, 0)
        y_f = kv_f * kf_f[None, :, :, :]
        y = (lambda x, s, axes=(-2,-1): torch.fft.irfft2(x, s=s, dim=axes).to(torch.bfloat16))(y_f, (1, L), axes=(1, 2))[:, 0, :S, :]
        y = y + kv * ssm_D[None, None, :]
        return q * y

    def _B_ref(x, w1, b1, w2, b2):
        y = _layernorm(x, axis=-1)
        h = _gelu(torch.einsum("bsd,df->bsf", y, w1) + b1)
        return torch.einsum("bsf,fd->bsd", h, w2) + b2

    x = A_q
    x = x + _A_ref(_layernorm(x, axis=-1), A_k, A_v, A_shift_k, A_ssm_k, A_ssm_D)
    x = x + _B_ref(_layernorm(x, axis=-1), B_w1, B_b1, B_w2, B_b2)
    x = x + _A_ref(_layernorm(x, axis=-1), A_k, A_v, A_shift_k, A_ssm_k, A_ssm_D)
    x = x + _B_ref(_layernorm(x, axis=-1), B_w1, B_b1, B_w2, B_b2)
    return x
```

```python
import re

class Asm:
    def __init__(self):
        self.lines = []
        self._lab = 0
    def __call__(self, s):
        for l in s.split('\n'):
            l = l.strip()
            if l:
                self.lines.append(l)
    def label(self, name):
        self.lines.append(name + ':')
    def newlabel(self, base):
        self._lab += 1
        return f'L_{base}_{self._lab}'
    def comment(self, s):
        self.lines.append('; ' + s)
    def nop(self, n):
        while n > 0:
            k = min(n, 16)
            self.lines.append(f's_nop {k-1}')
            n -= k
    def text(self):
        out = []
        for l in self.lines:
            if l.endswith(':') or l.startswith(';') or l.startswith('.'):
                out.append(l)
            else:
                out.append('    ' + l)
        return '\n'.join(out) + '\n'

REG_RE = re.compile(r'\b([vas])(\d+)\b|\b([vas])\[(\d+):(\d+)\]|\b(vcc|exec|m0|scc)\b')

def regs_of(op):
    r = set()
    for m in REG_RE.finditer(op):
        if m.group(1):
            r.add(m.group(1) + m.group(2))
        elif m.group(3):
            for i in range(int(m.group(4)), int(m.group(5)) + 1):
                r.add(m.group(3) + str(i))
        else:
            r.add(m.group(6))
    return r

TRANS = ('v_exp_f32', 'v_log_f32', 'v_rcp_f32', 'v_rsq_f32', 'v_sqrt_f32', 'v_sin_f32', 'v_cos_f32')

def split_ops(s):
    ops = []; depth = 0; cur = ''
    for ch in s:
        if ch == '[': depth += 1
        if ch == ']': depth -= 1
        if ch == ',' and depth == 0:
            ops.append(cur.strip()); cur = ''
        else:
            cur += ch
    if cur.strip(): ops.append(cur.strip())
    return ops

class Ins:
    def __init__(self, line):
        self.line = line
        code = line.split(';')[0].strip()
        parts = code.split(None, 1)
        self.op = parts[0]
        rest = parts[1] if len(parts) > 1 else ''
        self.ops = split_ops(rest)
        op = self.op
        self.kind = 'other'
        self.wr = set(); self.rd = set()
        self.states = 1
        self.dpp = ('dpp' in op) or ('quad_perm' in rest) or ('row_' in rest) or ('wave_' in rest)
        o = self.ops
        def R(i): return regs_of(o[i].split(' ')[0]) if i < len(o) else set()
        if op == 's_nop':
            self.kind = 'nop'; self.states = int(o[0], 0) + 1
        elif op.startswith('v_mfma'):
            self.kind = 'mfma'
            self.wr = R(0); self.A = R(1); self.B = R(2); self.C = R(3)
            self.rd = self.A | self.B | self.C
            self.passes = 8 if '32x32' in op else 4
        elif op.startswith('v_cmp'):
            self.kind = 'valu'; self.wr = R(0); self.rd = R(1) | R(2)
            if op.startswith('v_cmpx'): self.wr |= {'exec'}
        elif op in ('v_readfirstlane_b32', 'v_readlane_b32'):
            self.kind = 'valu'; self.wr = R(0); self.rd = set().union(*[R(i) for i in range(1, len(o))])
            self.readlane = True
        elif op.startswith('v_permlane') and 'swap' in op:
            self.kind = 'valu'; self.wr = R(0) | R(1); self.rd = R(0) | R(1); self.permlane = True
        elif op.startswith('v_'):
            self.kind = 'valu'; self.wr = R(0)
            self.rd = set().union(*[R(i) for i in range(1, len(o))]) if len(o) > 1 else set()
            if op.startswith(('v_fmac', 'v_dot2c', 'v_pk_fmac')) or self.dpp or 'writelane' in op: self.rd |= R(0)
            if op.startswith(('v_add_co', 'v_sub_co', 'v_addc_co', 'v_subb_co')):
                self.wr |= R(1)
            if op.startswith('v_cndmask') and len(o) == 3: self.rd |= {'vcc'}
            self.trans = op.replace('_e32', '').replace('_e64', '') in TRANS
        elif op.startswith('ds_'):
            self.kind = 'ds'
            if op.startswith(('ds_read', 'ds_bpermute', 'ds_swizzle', 'ds_permute')):
                self.wr = R(0); self.rd = set().union(*[R(i) for i in range(1, len(o))])
            else:
                self.rd = set().union(*[R(i) for i in range(len(o))])
                self.stdata = set().union(*[R(i) for i in range(1, len(o))])
        elif op.startswith('buffer_') or op.startswith('global_'):
            self.kind = 'vmem'
            islds = bool(re.search(r'\blds\b', rest))
            if 'load' in op and not islds:
                self.wr = R(0); self.rd = set().union(*[R(i) for i in range(1, len(o))])
            elif 'atomic' in op:
                self.rd = set().union(*[R(i) for i in range(len(o))])
                if 'sc0' in rest: self.wr = R(0)
            else:
                self.rd = set().union(*[R(i) for i in range(len(o))])
                if 'store' in op:
                    self.stdata = R(0) if op.startswith('buffer_') else R(1)
                    self.wide = ('x4' in op or 'x3' in op)
                if islds: self.rd |= {'m0'}; self.ldsdma = True
        elif op.startswith('s_'):
            self.kind = 'salu'
            if op in ('s_waitcnt', 's_barrier', 's_sleep', 's_setprio', 's_endpgm', 's_branch') or op.startswith('s_cbranch') or op.startswith('s_cmp'):
                self.rd = set().union(*[R(i) for i in range(len(o))]) if op.startswith('s_cmp') else set()
            else:
                self.wr = R(0); self.rd = set().union(*[R(i) for i in range(1, len(o))]) if len(o) > 1 else set()

def check_hazards(lines, verbose=True):
    ins = []
    for l in lines:
        s = l.strip()
        if not s or s.startswith(';') or s.startswith('.') or s.endswith(':'):
            continue
        ins.append(Ins(s))
    probs = []
    n = len(ins)
    for i, c in enumerate(ins):
        dist = 0
        j = i - 1
        while j >= 0 and dist < 24:
            p = ins[j]
            need = 0; why = ''
            pv = p.kind == 'valu'
            if pv:
                vw = {r for r in p.wr if r[0] in 'va' and r not in ('vcc',)}
                sw = {r for r in p.wr if (r[0] == 's' or r == 'vcc')}
                if c.kind == 'mfma' and (vw & c.rd): need, why = 2, 'VALU->MFMA operand'
                if c.kind == 'valu' and c.dpp and (vw & c.rd): need, why = 2, 'VALU->DPP'
                if c.kind == 'valu' and getattr(c, 'readlane', False) and (vw & c.rd): need, why = max(need, 1), 'VALU->readlane'
                if c.kind == 'valu' and getattr(c, 'permlane', False) and (vw & c.rd): need, why = 2, 'VALU->permlane'
                if getattr(p, 'trans', False) and c.kind == 'valu' and not getattr(c, 'trans', False) and (vw & c.rd): need, why = max(need, 1), 'trans->VALU'
                if getattr(p, 'trans', False) and c.kind in ('mfma',) and (vw & c.rd): need, why = max(need, 2), 'trans->mfma'
                if c.kind == 'vmem' and (sw & c.rd): need, why = 5, 'VALU sgpr->VMEM'
                if c.kind == 'valu' and (sw & c.rd) and not getattr(c, 'readlane', False): need, why = max(need, 2), 'VALU sgpr->VALU const'
                if c.kind == 'valu' and getattr(c, 'readlane', False) and (sw & c.rd): need, why = max(need, 4), 'VALU sgpr->lane select'
                if 'exec' in p.wr and c.kind == 'mfma': need, why = max(need, 4), 'VALU exec->mfma'
                if 'exec' in p.wr and c.kind == 'valu' and c.dpp: need, why = max(need, 5), 'exec->dpp'
                if c.kind == 'salu' and (sw & c.rd) and p.op.startswith('v_read'): need, why = max(need, 1), 'readlane->SALU (pad)'
            if p.kind == 'mfma':
                D = p.wr
                nr = {4: 8, 8: 12}[p.passes]
                if c.kind == 'mfma':
                    if (D & (c.A | c.B)): need, why = nr, 'MFMA D->MFMA A/B'
                    elif (D & c.C):
                        if D == c.C and p.passes == c.passes: need = 0
                        else: need, why = {4: 6, 8: 10}[p.passes], 'MFMA D->MFMA C overlap'
                    elif (D & c.wr) and not (D == c.wr): need, why = nr, 'MFMA WAW'
                elif c.kind in ('valu', 'ds', 'vmem'):
                    if (D & c.rd) or (D & c.wr): need, why = nr, 'MFMA D->VALU/mem'
                if c.kind == 'valu' and (p.C & c.wr) and not (D & c.wr): need, why = max(need, {4: 3, 8: 7}[p.passes]), 'MFMA C WAR'
            if p.kind == 'vmem' and hasattr(p, 'stdata') and getattr(p, 'wide', False):
                if c.kind == 'valu' and (p.stdata & c.wr): need, why = 2, 'wide store data WAR'
                elif (p.stdata & c.wr): need, why = 1, 'wide store data WAR'
            if p.kind == 'salu' and 'm0' in p.wr and getattr(c, 'ldsdma', False): need, why = 1, 'm0->ldsdma'
            if p.kind == 'salu' and 'exec' in p.wr and c.kind == 'valu' and c.dpp: need, why = 0, ''
            if need > dist:
                probs.append(f'hazard [{why}] need {need} have {dist}:\n    {p.line}\n    {c.line}')
            dist += p.states
            j -= 1
    return probs
```

```python
from gen import *

sLAYER = 's64'; sT1 = 's65'; sJ = 's66'
L_G = 155648
L_YH = [0, 65536]
W1B = 128

def W1reg(k): return f'v[{W1B+4*k}:{W1B+4*k+3}]'
def W2reg(nt, i):
    b = (nt*28 + i)*4
    return f'a[{b}:{b+3}]'

def row_finish(g, X, layer_static, eta, stop_flag=False):
    a = g.a
    Z = X + 8
    GP = X + 16
    GU = X + 20
    T = X + 28
    P = X + 32
    a(f's_lshl_b32 s53, {sW}, 10')
    a(f's_add_u32 s53, s53, {L_G + eta*4096}')
    a(f'v_lshlrev_b32 v{T}, 4, v1')
    a(f'v_add_u32 v{T}, s53, v{T}')
    a(f'ds_read_b128 v[{GP}:{GP+3}], v{T}')
    a('s_waitcnt lgkmcnt(0)')
    g.unpack8(GP, GU)
    for i in range(8):
        a(f'v_fma_f32 v{X+i}, v{Z+i}, v{GU+i}, v{X+i}')
    g.pack8(X, P)
    g.unpack8(P, X)
    a(f's_lshl_b32 s53, {sC}, 8')
    a(f's_lshl_b32 s54, {sR}, 3')
    a('s_add_u32 s53, s53, s54')
    a(f's_add_u32 s53, s53, {sW}')
    a(f's_add_u32 s53, s53, {4*eta}')
    a('s_lshl_b32 s53, s53, 10')
    a('s_lshl_b32 s54, s67, 22')
    a('s_add_u32 s54, s54, s53')
    a(f's_add_u32 s54, s54, {X1}')
    a(f'v_lshlrev_b32 v{T+3}, 4, v1')
    a(f'buffer_store_dwordx4 v[{P}:{P+3}], v{T+3}, {WS}, s54 offen{g.sc}')
    g.ln(X, Z, T + 4 + 4, None)
    g.ln(Z, Z, T + 4 + 4, None)
    g.pack8(Z, P + 8)
    a('s_lshl_b32 s54, s67, 21')
    a('s_add_u32 s54, s54, s53')
    a(f's_add_u32 s54, s54, {Y0}')
    a(f'buffer_store_dwordx4 v[{P+8}:{P+11}], v{T+3}, {WS}, s54 offen{g.sc}')
    a('s_waitcnt vmcnt(0)')
    a('s_lshl_b32 s53, s67, 1')
    a(f's_add_u32 s53, s53, {eta}')
    a('s_lshl_b32 s53, s53, 3')
    a(f's_add_u32 s53, s53, {sC}')
    a('s_lshl_b32 s53, s53, 7')
    a(f's_lshl_b32 s54, {sR}, 2')
    a('s_add_u32 s53, s53, s54')
    a(f's_add_u32 s53, s53, {sW}')
    a('s_lshl_b32 s53, s53, 2')
    a(f's_add_u32 s53, s53, {F_Y}')
    a(f'v_mov_b32 v{T}, s53')
    g.flag_store(T, T + 1)

def emit_r1(g):
    a = g.a
    g.sc = ' sc1'
    g.mk_srd(SA, sQ, 2097152)
    a(f's_lshl_b32 s53, {sC}, 8')
    a(f's_lshl_b32 s54, {sR}, 3')
    a('s_add_u32 s53, s53, s54')
    a(f's_add_u32 s53, s53, {sW}')
    a('s_lshl_b32 s53, s53, 10')
    a('v_lshlrev_b32 v2, 4, v1')
    a(f'buffer_load_dwordx4 v[8:11], v2, {srd(SA)}, s53 offen')
    a('s_add_u32 s53, s53, 4096')
    a(f'buffer_load_dwordx4 v[12:15], v2, {srd(SA)}, s53 offen')
    a(f's_cmp_ge_u32 {sR}, 14')
    a(f's_cselect_b32 {sT1}, 1, 0')
    a(f's_mul_i32 s53, {sT1}, 14')
    a(f's_sub_u32 {sJ}, {sR}, s53')
    Lsk = a.newlabel('now1')
    a(f's_cmp_ge_u32 {sR}, 28')
    a(f's_cbranch_scc1 {Lsk}')
    a(f's_lshl_b32 s53, {sJ}, 2')
    a(f's_add_u32 s53, s53, {sW}')
    a('s_lshl_b32 s53, s53, 15')
    a(f's_add_u32 s53, s53, {W1F}')
    for k in range(32):
        a(f'buffer_load_dwordx4 {W1reg(k)}, v2, {WS}, s53 offen offset:{(k%4)*1024} sc1')
        if k % 4 == 3: a('s_add_u32 s53, s53, 4096')
    a.label(Lsk)
    a(f's_and_b32 s53, {sR}, 7')
    a('s_lshl_b32 s53, s53, 1')
    a('s_mul_i32 s53, s53, 112')
    a(f's_mul_i32 s54, {sW}, 28')
    a('s_add_u32 s53, s53, s54')
    a('s_lshl_b32 s53, s53, 10')
    a(f's_add_u32 s53, s53, {W2F}')
    for nt in range(2):
        a(f's_add_u32 s54, s53, {nt*112*1024}')
        for i in range(28):
            a(f'buffer_load_dwordx4 {W2reg(nt,i)}, v2, {WS}, s54 offen offset:{(i%4)*1024} sc1')
            if i % 4 == 3: a('s_add_u32 s54, s54, 4096')
    a('s_waitcnt vmcnt(0)')
    XA, XB_ = 16, 64
    g.unpack8(8, XA); g.unpack8(12, XB_)
    g.ln(XA, XA + 8, XA + 36, None)
    g.ln(XB_, XB_ + 8, XB_ + 36, None)
    g.stamp('lnq done')
    a('v_lshlrev_b32 v2, 4, v1')
    a(f'v_add_u32 v2, {F_CONV}, v2')
    g.poll(2, 4, x4=True)
    g.stamp('conv flags seen')
    a(f's_lshl_b32 s53, {sC}, 3')
    a(f's_lshr_b32 s54, {sR}, 2')
    a('s_add_u32 s53, s53, s54')
    a('s_lshl_b32 s53, s53, 15')
    a(f's_and_b32 s54, {sR}, 3')
    a('s_lshl_b32 s54, s54, 5')
    a('s_add_u32 s53, s53, s54')
    a(f's_add_u32 s53, s53, {GB}')
    a('v_lshlrev_b32 v2, 7, v0')
    a(f'buffer_load_dwordx4 v[112:115], v2, {WS}, s53 offen sc1')
    a(f'buffer_load_dwordx4 v[116:119], v2, {WS}, s53 offen offset:16 sc1')
    a('s_mov_b32 s53, 0x05040100')
    a('s_mov_b32 s54, 0x07060302')
    a('v_lshlrev_b32 v2, 2, v0')
    a(f'v_add_u32 v2, {L_G}, v2')
    a('s_waitcnt vmcnt(0)')
    for j in range(8):
        sel = 's53' if j % 2 == 0 else 's54'
        a(f'v_perm_b32 v{120 + (j%4)}, v{116 + j//2}, v{112 + j//2}, {sel}')
        a(f'ds_write_b32 v2, v{120 + (j%4)} offset:{j*1024}')
    a('s_waitcnt lgkmcnt(0)')
    a('s_barrier')
    a('s_mov_b32 s67, 0')
    row_finish(g, XA, 0, 0)
    row_finish(g, XB_, 0, 1)
    g.stamp('r1 done')

def emit_r2(g):
    a = g.a
    a('s_mov_b32 s67, 1')
    for eta in range(2):
        X = 16
        a(f's_lshl_b32 s53, {sC}, 1')
        a(f's_add_u32 s53, s53, {eta}')
        a('s_lshl_b32 s53, s53, 2')
        a(f's_lshr_b32 s54, {sR}, 3')
        a('s_add_u32 s53, s53, s54')
        a('s_lshl_b32 s53, s53, 2')
        a(f's_and_b32 s54, {sR}, 7')
        a('s_lshr_b32 s54, s54, 1')
        a('s_add_u32 s53, s53, s54')
        a('s_lshl_b32 s53, s53, 5')
        a(f's_add_u32 s53, s53, {F_X}')
        a('v_lshlrev_b32 v2, 2, v1')
        a('v_add_u32 v2, s53, v2')
        g.poll(2, 4, nlanes=8)
        a(f's_lshl_b32 s53, {sC}, 8')
        a(f's_lshl_b32 s54, {sR}, 3')
        a('s_add_u32 s53, s53, s54')
        a(f's_add_u32 s53, s53, {sW}')
        a(f's_add_u32 s53, s53, {4*eta}')
        a('s_lshl_b32 s53, s53, 10')
        a(f's_add_u32 s53, s53, {X2}')
        a('v_lshlrev_b32 v2, 4, v1')
        a(f'buffer_load_dwordx4 v[8:11], v2, {WS}, s53 offen sc1')
        a('s_waitcnt vmcnt(0)')
        g.unpack8(8, X)
        g.ln(X, X + 8, X + 36, None)
        row_finish(g, X, 1, eta)
    g.stamp('r2 done')

def gelu(a, x, t):
    a(f'v_mul_f32 v{t}, v{x}, v{x}')
    a(f'v_fma_f32 v{t}, v{t}, v126, v127')
    a(f'v_mul_f32 v{t}, v{t}, v{x}')
    a(f'v_exp_f32 v{t}, v{t}')
    a.nop(1)
    a(f'v_add_f32 v{t}, 1.0, v{t}')
    a(f'v_rcp_f32 v{t}, v{t}')
    a.nop(1)
    a(f'v_mul_f32 v{x}, v{x}, v{t}')

import struct
def f2u(x): return '0x%08x' % struct.unpack('<I', struct.pack('<f', x))[0]
C1 = 2*0.7978845608028654*1.4426950408889634
C2 = C1*0.044715

def emit_g1(g):
    a = g.a
    Lskip = a.newlabel('g1skip')
    a('s_barrier')
    a(f's_cmp_ge_u32 {sR}, 28')
    a(f's_cbranch_scc1 {Lskip}')
    a(f's_lshl_b32 s68, {sJ}, 2')
    a(f's_add_u32 s68, s68, {sW}')
    g.mk_srd(SA, sB1, 3584)
    a('v_lshrrev_b32 v2, 5, v1')
    a('v_lshlrev_b32 v3, 3, v2')
    a('s_lshl_b32 s53, s68, 6')
    for i in range(4):
        a(f'buffer_load_dwordx2 v[{96+2*i}:{97+2*i}], v3, {srd(SA)}, s53 offen offset:{16*i}')
    a(f'v_mov_b32 v126, {f2u(-C2)}')
    a(f'v_mov_b32 v127, {f2u(-C1)}')
    a('v_and_b32 v3, 31, v1')
    a('v_and_b32 v12, 15, v1')
    for m in range(8):
        a(f'v_add_u32 v{4+m}, {2*m}, v2')
        a(f'v_xor_b32 v{4+m}, v{4+m}, v12')
        a(f'v_lshlrev_b32 v{4+m}, 4, v{4+m}')
        a(f'v_lshl_add_u32 v{4+m}, v3, 10, v{4+m}')
    a('v_lshlrev_b32 v13, 4, v1')
    for eta in range(2):
        a(f's_lshl_b32 s53, {sLAYER}, 1')
        a(f's_add_u32 s53, s53, {eta}')
        a('s_lshl_b32 s53, s53, 3')
        a(f's_add_u32 s53, s53, {sC}')
        a('s_lshl_b32 s53, s53, 7')
        a(f's_lshl_b32 s54, {sT1}, 6')
        a('s_add_u32 s53, s53, s54')
        a(f's_lshl_b32 s54, {sW}, 4')
        a('s_add_u32 s53, s53, s54')
        a('s_lshl_b32 s53, s53, 2')
        a(f's_add_u32 s53, s53, {F_Y}')
        a('v_lshlrev_b32 v14, 2, v1')
        a('v_add_u32 v14, s53, v14')
        g.poll(14, 15, nlanes=16)
        a(f's_lshl_b32 s53, {sC}, 8')
        a(f's_lshl_b32 s54, {sT1}, 7')
        a('s_add_u32 s53, s53, s54')
        a(f's_lshl_b32 s54, {sW}, 5')
        a('s_add_u32 s53, s53, s54')
        a(f's_add_u32 s53, s53, {4*eta}')
        a('s_lshl_b32 s53, s53, 10')
        a(f's_lshl_b32 s54, {sLAYER}, 21')
        a('s_add_u32 s53, s53, s54')
        a(f's_add_u32 s53, s53, {Y0}')
        a(f's_lshl_b32 s54, {sW}, 14')
        a(f's_add_u32 s54, s54, {L_YH[eta]}')
        for i in range(16):
            if i % 4 == 0:
                a(f's_add_u32 m0, s54, {i*1024}')
                if i: a('s_add_u32 s53, s53, 8192')
            a(f'v_xor_b32 v15, {16*i}, v13')
            a(f'buffer_load_dwordx4 v15, {WS}, s53 offen offset:{(i%4)*1024} sc1 lds')
    a('s_waitcnt vmcnt(16)')
    for i in range(4):
        a(f'v_lshlrev_b32 v{48+4*i}, 16, v{96+2*i}')
        a(f'v_and_b32 v{49+4*i}, 0xffff0000, v{96+2*i}')
        a(f'v_lshlrev_b32 v{50+4*i}, 16, v{97+2*i}')
        a(f'v_and_b32 v{51+4*i}, 0xffff0000, v{97+2*i}')
    a('s_barrier')
    for eta in range(2):
        if eta == 1:
            a('s_waitcnt vmcnt(0)')
            a('s_barrier')
            for m in range(8): a(f'v_add_u32 v{4+m}, 0x10000, v{4+m}')
        for tt in range(2):
            acc = 16
            NB = 8
            def Breg(k): return f'v[{64+4*(k%NB)}:{67+4*(k%NB)}]'
            def Bload(k): a(f'ds_read_b128 {Breg(k)}, v{4+(k&7)} offset:{tt*32768 + (k>>3)*256}')
            PF = 6
            for k in range(PF): Bload(k)
            for k in range(32):
                if k + PF < 32: Bload(k + PF)
                a(f's_waitcnt lgkmcnt({min(PF, 31-k)})')
                cin = f'v[48:63]' if k == 0 else f'v[{acc}:{acc+15}]'
                a(f'v_mfma_f32_32x32x16_bf16 v[{acc}:{acc+15}], {W1reg(k)}, {Breg(k)}, {cin}')
            a.nop(12)
            for i in range(16): gelu(a, acc + i, 96 + (i % 4))
            for m in range(8): a(f'v_cvt_pk_bf16_f32 v{112+m}, v{acc+2*m}, v{acc+2*m+1}')
            a(f's_lshl_b32 s53, {sC}, 1')
            a(f's_add_u32 s53, s53, {sT1}')
            a('s_lshl_b32 s53, s53, 2')
            a(f's_add_u32 s53, s53, {2*eta+tt}')
            a('s_mul_i32 s54, s53, 112')
            a('s_lshl_b32 s55, s68, 1')
            a('s_add_u32 s54, s54, s55')
            a('s_lshl_b32 s54, s54, 10')
            a(f's_lshl_b32 s55, {sLAYER}, 23')
            a('s_add_u32 s54, s54, s55')
            a(f's_add_u32 s54, s54, {H0}')
            a(f'buffer_store_dwordx4 v[112:115], v13, {WS}, s54 offen{g.sc}')
            a(f'buffer_store_dwordx4 v[116:119], v13, {WS}, s54 offen offset:1024{g.sc}')
            a(f's_lshl_b32 s55, {sLAYER}, 6')
            a('s_add_u32 s53, s53, s55')
            a('s_lshl_b32 s53, s53, 8')
            a('s_lshl_b32 s55, s68, 2')
            a('s_add_u32 s53, s53, s55')
            a(f's_add_u32 s53, s53, {F_H}')
            a('v_mov_b32 v14, s53')
            a('s_waitcnt vmcnt(0)')
            g.flag_store(14, 15)
    a.label(Lskip)
    g.stamp('g1 done', True)

def emit_g2(g):
    a = g.a
    a('s_barrier')
    a('v_lshlrev_b32 v13, 4, v1')
    g.mk_srd(SA, sB2, 1024)
    a('v_and_b32 v2, 7, v0')
    a('v_lshlrev_b32 v3, 4, v2')
    a(f's_and_b32 s53, {sR}, 7')
    a('s_lshl_b32 s53, s53, 7')
    a(f'buffer_load_dwordx4 v[8:11], v3, {srd(SA)}, s53 offen')
    a(f's_cmp_eq_u32 {sLAYER}, 0')
    a(f's_cselect_b32 s{SD_}, s{sWSP}, s{sOUT}')
    a(f's_cselect_b32 s{SD_+1}, s{sWSP+1}, s{sOUT+1}')
    a(f's_and_b32 s{SD_+1}, s{SD_+1}, 0xffff')
    a(f's_cselect_b32 s{SD_+2}, {WS_SIZE}, 2097152') if False else None
    a(f's_cmp_eq_u32 {sLAYER}, 0')
    a(f's_mov_b32 s{SD_+2}, 2097152')
    a(f's_cselect_b32 s{SD_+2}, {WS_SIZE}, s{SD_+2}')
    a(f's_mov_b32 s{SD_+3}, 0x00020000')
    a(f's_cselect_b32 s69, {X2}, 0')
    a('v_and_b32 v14, 31, v1')
    a('v_lshrrev_b32 v15, 5, v1')
    a('v_and_b32 v12, 7, v1')
    a(f's_lshl_b32 s53, {sW}, 13')
    for i in range(4):
        a(f'v_add_u32 v{4+i}, {2*i}, v15')
        a(f'v_xor_b32 v{4+i}, v{4+i}, v12')
        a(f'v_lshlrev_b32 v{4+i}, 4, v{4+i}')
        a(f'v_lshl_add_u32 v{4+i}, v14, 8, v{4+i}')
        a(f'v_add_u32 v{4+i}, s53, v{4+i}')
    a('v_lshrrev_b32 v14, 3, v0')
    a('v_and_b32 v12, 7, v14')
    a('v_and_b32 v15, 3, v2')
    a('v_lshlrev_b32 v15, 1, v15')
    a('v_xor_b32 v16, v15, v12')
    a('v_or_b32 v15, 1, v15')
    a('v_xor_b32 v17, v15, v12')
    a('v_lshrrev_b32 v15, 2, v2')
    a('v_lshlrev_b32 v15, 7, v15')
    a('v_lshl_add_u32 v15, v14, 8, v15')
    a('v_lshl_add_u32 v16, v16, 4, v15')
    a('v_lshl_add_u32 v17, v17, 4, v15')
    a(f's_lshr_b32 s53, {sR}, 3')
    a('s_lshl_b32 s53, s53, 5')
    a('v_add_u32 v15, s53, v14')
    a('v_lshrrev_b32 v18, 2, v15')
    a('v_lshlrev_b32 v18, 3, v18')
    a('v_and_b32 v15, 3, v15')
    a('v_add_u32 v18, v18, v15')
    a(f's_lshl_b32 s53, {sC}, 8')
    a('v_add_u32 v18, s53, v18')
    a('v_lshlrev_b32 v18, 10, v18')
    a(f's_and_b32 s53, {sR}, 7')
    a('s_lshl_b32 s53, s53, 7')
    a('v_lshl_add_u32 v18, v2, 4, v18')
    a('v_add_u32 v18, s53, v18')
    a('s_waitcnt vmcnt(0)')
    g.unpack8(8, 20)
    for eta in range(2):
        a(f's_lshr_b32 s70, {sR}, 4')
        a(f's_lshl_b32 s53, {sC}, 1')
        a('s_add_u32 s53, s53, s70')
        a('s_lshl_b32 s53, s53, 2')
        a(f's_add_u32 s53, s53, {2*eta}')
        a(f's_lshr_b32 s54, {sR}, 3')
        a('s_and_b32 s54, s54, 1')
        a('s_add_u32 s70, s53, s54')
        a(f's_lshl_b32 s53, {sLAYER}, 6')
        a('s_add_u32 s53, s53, s70')
        a('s_lshl_b32 s53, s53, 8')
        a(f's_mul_i32 s54, {sW}, 56')
        a('s_add_u32 s53, s53, s54')
        a(f's_add_u32 s53, s53, {F_H}')
        a('v_lshlrev_b32 v14, 2, v1')
        a('v_add_u32 v14, s53, v14')
        g.poll(14, 15, nlanes=14)
        a(f's_lshl_b32 s53, {sLAYER}, 22')
        a(f's_add_u32 s53, s53, {X1 + eta*4096}')
        a(f'buffer_load_dwordx4 v[28:31], v18, {WS}, s53 offen sc1')
        a('s_mul_i32 s53, s70, 112')
        a(f's_mul_i32 s54, {sW}, 28')
        a('s_add_u32 s53, s53, s54')
        a('s_lshl_b32 s53, s53, 10')
        a(f's_lshl_b32 s54, {sLAYER}, 23')
        a('s_add_u32 s53, s53, s54')
        a(f's_add_u32 s53, s53, {H0}')
        NW = 16
        def Hreg(i): return f'v[{64+4*(i%NW)}:{67+4*(i%NW)}]'
        def Hload(i):
            a(f's_add_u32 s54, s53, {(i//4)*4096}')
            a(f'buffer_load_dwordx4 {Hreg(i)}, v13, {WS}, s54 offen offset:{(i%4)*1024} sc1')
        for i in range(NW): Hload(i)
        for i in range(28):
            outstanding_after = min(NW - 1, 27 - i)
            a(f's_waitcnt vmcnt({outstanding_after})')
            for nt in range(2):
                acc = f'a[{224+16*nt}:{239+16*nt}]'
                cin = '0' if i == 0 else acc
                a(f'v_mfma_f32_32x32x16_bf16 {acc}, {W2reg(nt,i)}, {Hreg(i)}, {cin}')
            if i + NW < 28: Hload(i + NW)
        a.nop(12)
        LR = eta*32768
        for nt in range(2):
            for i in range(4):
                b = 224 + 16*nt + 4*i
                a(f'ds_write_b128 v{4+i}, a[{b}:{b+3}] offset:{LR + nt*128}')
        a('s_waitcnt lgkmcnt(0)')
        a('s_barrier')
        for p in range(4):
            a(f'ds_read_b128 v[{32+8*p}:{35+8*p}], v16 offset:{LR + p*8192}')
            a(f'ds_read_b128 v[{36+8*p}:{39+8*p}], v17 offset:{LR + p*8192}')
        a('s_waitcnt lgkmcnt(0)')
        for e in range(8):
            a(f'v_add_f32 v{32+e}, v{32+e}, v{40+e}')
            a(f'v_add_f32 v{48+e}, v{48+e}, v{56+e}')
            a(f'v_add_f32 v{32+e}, v{32+e}, v{48+e}')
            a(f'v_add_f32 v{32+e}, v{32+e}, v{20+e}')
        g.pack8(32, 40); g.unpack8(40, 32)
        g.unpack8(28, 48)
        for e in range(8): a(f'v_add_f32 v{32+e}, v{32+e}, v{48+e}')
        g.pack8(32, 40)
        a(f's_add_u32 s53, s69, {eta*4096}')
        a(f'buffer_store_dwordx4 v[40:43], v18, {srd(SD_)}, s53 offen{g.sc}')
        a('s_waitcnt vmcnt(0)')
        a(f's_lshl_b32 s53, {sC}, 1')
        a(f's_add_u32 s53, s53, {eta}')
        a('s_lshl_b32 s53, s53, 2')
        a(f's_lshr_b32 s54, {sR}, 3')
        a('s_add_u32 s53, s53, s54')
        a('s_lshl_b32 s53, s53, 2')
        a(f's_add_u32 s53, s53, {sW}')
        a('s_lshl_b32 s53, s53, 3')
        a(f's_and_b32 s54, {sR}, 7')
        a('s_add_u32 s53, s53, s54')
        a('s_lshl_b32 s53, s53, 2')
        a(f's_add_u32 s53, s53, {F_X}')
        a('v_mov_b32 v14, s53')
        g.flag_store(14, 15)
    g.stamp('g2 done', True)

def emit_mlp(g):
    a = g.a
    emit_r1(g)
    if g.stop == 'r1': return
    a(f's_mov_b32 {sLAYER}, 0')
    a.label('L_layer')
    emit_g1(g)
    if g.stop == 'g1': return
    emit_g2(g)
    if g.stop == 'g2': return
    a(f's_cmp_eq_u32 {sLAYER}, 1')
    a('s_cbranch_scc1 L_fin')
    emit_r2(g)
    if g.stop == 'r2': return
    a(f's_mov_b32 {sLAYER}, 1')
    a('s_branch L_layer')
```

```python
import sys, argparse
from asmlib import Asm, check_hazards

NAME = 'interleave_layers__ssm_conv_h3__mixer_channel_mlp__prompt_kernel'

WS_EPOCH = 0x0
F_PREP = 0x1000
F_CONV = 0x2000
F_Y    = 0x4000
F_H    = 0x8000
F_X    = 0x10000
XR     = 0x100000
W1F    = 0x300000
W2F    = 0x500000
GB     = 0x700000
Y0     = 0x900000
X1     = 0xD00000
X2     = 0xF00000
H0     = 0x1400000
TS     = 0x2400000
WS_SIZE = 0x10000000

L_KVT = 0
L_W1R = 8192
L_W2R = 16384
L_GT  = 0
L_XB = 25600
XBS = 79*96
L_TOEP = 40960
CS = 4160
L_END_CONV = L_TOEP + 16*CS
LDS_SIZE = 163840

sQ, sK, sV, sSK, sSSM, sD, sBX, sW1 = 16, 18, 20, 22, 24, 26, 28, 30
sB1, sW2, sB2, sOUT, sDBG, sWSP = 32, 34, 36, 38, 40, 42
WS = 's[44:47]'
sC, sR, sW, sTAG, sABORT = 's48', 's49', 's50', 's51', 's52'
SA, SB, SC_, SD_ = 4, 8, 12, 72
def srd(n): return f's[{n}:{n+3}]'

class Gen:
    def __init__(self, stop='end', stamps=False, fast=False):
        self.a = Asm()
        self.stop = stop
        self.stamps = stamps
        self.nstamp = 0
        self.stamp_names = []
        self.sc = ' sc1'

    def mk_srd(self, n, ptr, size, add=None):
        a = self.a
        if add is None:
            a(f's_mov_b32 s{n}, s{ptr}')
            a(f's_and_b32 s{n+1}, s{ptr+1}, 0xffff')
        else:
            a(f's_add_u32 s{n}, s{ptr}, {add}')
            a(f's_addc_u32 s{n+1}, s{ptr+1}, 0')
            a(f's_and_b32 s{n+1}, s{n+1}, 0xffff')
        a(f's_mov_b32 s{n+2}, {size}')
        a(f's_mov_b32 s{n+3}, 0x00020000')

    def stamp(self, name='', inloop=False):
        if not self.stamps: return
        i = self.nstamp; self.nstamp += (2 if inloop else 1)
        assert self.nstamp <= 24
        self.stamp_names.append(name + ('[L0]' if inloop else ''))
        if inloop: self.stamp_names.append(name + '[L1]')
        a = self.a
        a(f's_waitcnt lgkmcnt(0)')
        a(f's_memrealtime s[62:63]')
        a(f's_waitcnt lgkmcnt(0)')
        if inloop:
            a('s_cmp_eq_u32 s64, 0')
            a(f's_cselect_b32 s{76+i}, s62, s{76+i}')
            a(f's_cselect_b32 s{77+i}, s{77+i}, s62')
        else:
            a(f's_mov_b32 s{76+i}, s62')

    def poll(self, vaddr, vtmp, nlanes=64, x4=False):
        a = self.a
        L = a.newlabel('poll'); D = a.newlabel('polld')
        a(f's_mov_b32 s53, 0')
        if nlanes < 64:
            a(f's_mov_b64 s[56:57], exec')
            a(f's_mov_b64 exec, {hex((1 << nlanes) - 1)}')
        a.label(L)
        a(f's_cmp_lg_u32 {sABORT}, 0')
        a(f's_cbranch_scc1 {D}')
        if x4:
            a(f'buffer_load_dwordx4 v[{vtmp}:{vtmp+3}], v{vaddr}, {WS}, 0 offen sc1')
            a(f's_waitcnt vmcnt(0)')
            a(f'v_xor_b32 v{vtmp}, {sTAG}, v{vtmp}')
            a(f'v_xor_b32 v{vtmp+1}, {sTAG}, v{vtmp+1}')
            a(f'v_xor_b32 v{vtmp+2}, {sTAG}, v{vtmp+2}')
            a(f'v_xor_b32 v{vtmp+3}, {sTAG}, v{vtmp+3}')
            a(f'v_or_b32 v{vtmp}, v{vtmp}, v{vtmp+1}')
            a(f'v_or3_b32 v{vtmp}, v{vtmp}, v{vtmp+2}, v{vtmp+3}')
            a(f'v_cmp_ne_u32 vcc, 0, v{vtmp}')
        else:
            a(f'buffer_load_dword v{vtmp}, v{vaddr}, {WS}, 0 offen sc1')
            a(f's_waitcnt vmcnt(0)')
            a(f'v_cmp_ne_u32 vcc, {sTAG}, v{vtmp}')
        a(f's_cbranch_vccz {D}')
        a(f's_add_u32 s53, s53, 1')
        a(f's_cmp_lt_u32 s53, 0x8000')
        a(f's_cbranch_scc1 {L}')
        a(f's_mov_b32 {sABORT}, 1')
        a.label(D)
        if nlanes < 64:
            a(f's_mov_b64 exec, s[56:57]')

    def flag_store(self, voff, vtag):
        a = self.a
        a(f's_mov_b64 s[56:57], exec')
        a(f's_mov_b64 exec, 1')
        a(f'v_mov_b32 v{vtag}, {sTAG}')
        a(f'buffer_store_dword v{vtag}, v{voff}, {WS}, 0 offen{self.sc}')
        a(f's_mov_b64 exec, s[56:57]')

    def wave_reduce2(self, va, vb):
        a = self.a
        steps = ['quad_perm:[1,0,3,2] row_mask:0xf bank_mask:0xf', 'quad_perm:[2,3,0,1] row_mask:0xf bank_mask:0xf',
                 'row_half_mirror row_mask:0xf bank_mask:0xf', 'row_mirror row_mask:0xf bank_mask:0xf',
                 'row_bcast:15 row_mask:0xa bank_mask:0xf', 'row_bcast:31 row_mask:0xc bank_mask:0xf']
        a.nop(2)
        for s in steps:
            a(f'v_add_f32_dpp v{va}, v{va}, v{va} {s}')
            a(f'v_add_f32_dpp v{vb}, v{vb}, v{vb} {s}')
            a.nop(1)
        a(f'v_readlane_b32 s58, v{va}, 63')
        a(f'v_readlane_b32 s59, v{vb}, 63')
        a.nop(2)

    def ln(self, x, z, t0, t1):
        a = self.a
        s1, s2 = t0, t0 + 1
        a(f'v_add_f32 v{s1}, v{x}, v{x+1}')
        a(f'v_mul_f32 v{s2}, v{x}, v{x}')
        a(f'v_fmac_f32 v{s2}, v{x+1}, v{x+1}')
        for i in range(2, 8):
            a(f'v_add_f32 v{s1}, v{s1}, v{x+i}')
            a(f'v_fmac_f32 v{s2}, v{x+i}, v{x+i}')
        self.wave_reduce2(s1, s2)
        m, r = t0 + 2, t0 + 3
        a(f'v_mov_b32 v{m}, 0x3b000000')
        a(f'v_mul_f32 v{r}, s59, v{m}')
        a(f'v_mul_f32 v{m}, s58, v{m}')
        a(f'v_fma_f32 v{r}, -v{m}, v{m}, v{r}')
        a(f'v_max_f32 v{r}, 0, v{r}')
        a(f'v_add_f32 v{r}, 0x3727c5ac, v{r}')
        a(f'v_rsq_f32 v{r}, v{r}')
        a.nop(1)
        a(f'v_mul_f32 v{m}, v{m}, v{r}')
        for i in range(8):
            a(f'v_fma_f32 v{z+i}, v{x+i}, v{r}, -v{m}')

    def unpack8(self, src, dst):
        a = self.a
        for i in range(4):
            a(f'v_lshlrev_b32 v{dst+2*i}, 16, v{src+i}')
            a(f'v_and_b32 v{dst+2*i+1}, 0xffff0000, v{src+i}')

    def pack8(self, src, dst):
        a = self.a
        for i in range(4):
            a(f'v_cvt_pk_bf16_f32 v{dst+i}, v{src+2*i}, v{src+2*i+1}')

    def prologue(self):
        a = self.a
        a('s_cmp_ge_u32 s2, 256')
        a('s_cbranch_scc1 L_end')
        a('s_load_dwordx16 s[16:31], s[0:1], 0')
        a('s_load_dwordx8 s[32:39], s[0:1], 64')
        a('s_load_dwordx4 s[40:43], s[0:1], 96')
        a(f's_and_b32 {sC}, s2, 7')
        a(f's_lshr_b32 {sR}, s2, 3')
        a(f's_mov_b32 {sABORT}, 0')
        a('v_lshrrev_b32 v2, 6, v0')
        a('v_and_b32 v1, 63, v0')
        a(f'v_readfirstlane_b32 {sW}, v2')
        a('s_waitcnt lgkmcnt(0)')
        self.mk_srd(44, sWSP, WS_SIZE)
        self.stamp('start')
        a('v_mov_b32 v4, 0')
        a(f'buffer_load_dword v3, v4, {WS}, 0 offen sc1')

    def prep(self):
        a = self.a
        a('v_lshrrev_b32 v4, 5, v0')
        a('v_and_b32 v5, 31, v0')
        a(f's_lshl_b32 s53, {sR}, 16')
        a(f's_lshl_b32 s54, {sC}, 7')
        a('s_add_u32 s53, s53, s54')
        a('v_lshlrev_b32 v6, 13, v4')
        a('v_lshl_add_u32 v6, v5, 2, v6')
        a('v_add_u32 v6, s53, v6')
        a('v_subrev_u32 v7, 3072, v6')
        a('v_add_u32 v8, 4096, v6')
        self.mk_srd(SA, sK, 2097152)
        self.mk_srd(SB, sV, 2097152)
        self.mk_srd(SC_, sSK, 4096)
        K = 10
        for i in range(3): a(f'buffer_load_dword v{K+i}, v7, {srd(SA)}, 0 offen offset:{1024*i}')
        for i in range(4): a(f'buffer_load_dword v{K+3+i}, v6, {srd(SA)}, 0 offen offset:{1024*i}')
        for i in range(4): a(f'buffer_load_dword v{K+7+i}, v8, {srd(SA)}, 0 offen offset:{1024*i}')
        V = 21
        for i in range(4): a(f'buffer_load_dword v{V+i}, v6, {srd(SB)}, 0 offen offset:{1024*i}')
        for i in range(4): a(f'buffer_load_dword v{V+4+i}, v8, {srd(SB)}, 0 offen offset:{1024*i}')
        a(f's_lshl_b32 s53, {sC}, 9')
        a('v_lshlrev_b32 v9, 4, v5')
        a('v_add_u32 v9, s53, v9')
        a(f'buffer_load_dwordx4 v[30:33], v9, {srd(SC_)}, 0 offen')
        self.mk_srd(SA, sW1, 512*1792*2)
        self.mk_srd(SB, sW2, 512*1792*2)
        a(f's_lshl_b32 s53, {sR}, 4')
        a(f's_lshl_b32 s54, {sW}, 2')
        a('s_add_u32 s53, s53, s54')
        a('s_mul_i32 s53, s53, 3584')
        a(f's_mul_i32 s54, {sC}, 448')
        a('s_add_u32 s53, s53, s54')
        a('v_lshrrev_b32 v2, 4, v1')
        a('v_and_b32 v9, 15, v1')
        a('v_mul_u32_u24 v29, 3584, v2')
        a('v_lshl_add_u32 v29, v9, 4, v29')
        a('v_add_u32 v29, s53, v29')
        a(f'buffer_load_dwordx4 v[34:37], v29, {srd(SA)}, 0 offen')
        a(f'buffer_load_dwordx4 v[38:41], v29, {srd(SA)}, 0 offen offset:256')
        a('s_lshr_b32 s53, s2, 1')
        a('s_lshl_b32 s53, s53, 14')
        a('s_and_b32 s54, s2, 1')
        a('s_lshl_b32 s54, s54, 9')
        a('s_add_u32 s53, s53, s54')
        a('v_lshrrev_b32 v2, 4, v0')
        a('v_lshlrev_b32 v50, 10, v2')
        a('v_lshl_add_u32 v50, v9, 4, v50')
        a('v_add_u32 v50, s53, v50')
        a(f'buffer_load_dwordx4 v[42:45], v50, {srd(SB)}, 0 offen')
        a(f'buffer_load_dwordx4 v[46:49], v50, {srd(SB)}, 0 offen offset:256')
        a(f's_lshl_b32 s53, {sC}, 5')
        a(f's_add_u32 s53, s53, {sR}')
        a('s_lshl_b32 s53, s53, 1')
        a(f's_lshr_b32 s54, {sW}, 1')
        a('s_add_u32 s53, s53, s54')
        a('s_lshl_b32 s53, s53, 12')
        self.mk_srd(SC_, sSSM, 4096, add='s53')
        a('v_and_b32 v2, 127, v0')
        a('v_lshlrev_b32 v51, 4, v2')
        a('v_subrev_u32 v52, 64, v51')
        a('v_subrev_u32 v53, 48, v51')
        HR = 56
        for rho in range(3):
            if rho:
                a(f'v_add_u32 v52, 2048, v52')
                a(f'v_add_u32 v53, 2048, v53')
            a(f'buffer_load_dwordx4 v[{HR+8*rho}:{HR+8*rho+3}], v52, {srd(SC_)}, 0 offen')
            a(f'buffer_load_dwordx4 v[{HR+8*rho+4}:{HR+8*rho+7}], v53, {srd(SC_)}, 0 offen')
        a(f's_lshl_b32 s53, {sC}, 5')
        a(f's_add_u32 s53, s53, {sR}')
        a('s_lshl_b32 s53, s53, 2')
        a(f's_add_u32 s54, s{sD}, s53')
        a(f's_addc_u32 s55, s{sD+1}, 0')
        a('s_load_dword s60, s[54:55], 0')
        a('v_mov_b32 v80, 0'); a('v_mov_b32 v81, 0'); a('v_mov_b32 v82, 0'); a('v_mov_b32 v83, 0')
        a('v_lshlrev_b32 v84, 4, v0')
        a('v_cmp_gt_u32 vcc, 90, v0')
        a('s_and_saveexec_b64 s[56:57], vcc')
        a(f'ds_write_b128 v84, v[80:83] offset:{L_XB + 64*96}')
        a(f'ds_write_b128 v84, v[80:83] offset:{L_XB + XBS + 64*96}')
        a('s_mov_b64 exec, s[56:57]')
        a('s_waitcnt vmcnt(10)')
        a(f'v_readfirstlane_b32 {sTAG}, v3')
        a.nop(1)
        a(f's_add_u32 {sTAG}, {sTAG}, 1')
        Wp = 90
        a(f'v_lshlrev_b32 v{Wp+0}, 16, v30'); a(f'v_lshlrev_b32 v{Wp+1}, 16, v32')
        a(f'v_and_b32 v{Wp+2}, 0xffff0000, v30'); a(f'v_and_b32 v{Wp+3}, 0xffff0000, v32')
        a(f'v_lshlrev_b32 v{Wp+4}, 16, v31'); a(f'v_lshlrev_b32 v{Wp+5}, 16, v33')
        a(f'v_and_b32 v{Wp+6}, 0xffff0000, v31'); a(f'v_and_b32 v{Wp+7}, 0xffff0000, v33')
        KU = 100
        for i in range(11):
            a(f'v_lshlrev_b32 v{KU+2*i}, 16, v{K+i}')
            a(f'v_and_b32 v{KU+2*i+1}, 0xffff0000, v{K+i}')
        VU = 122
        for i in range(8):
            a(f'v_lshlrev_b32 v{VU+2*i}, 16, v{V+i}')
            a(f'v_and_b32 v{VU+2*i+1}, 0xffff0000, v{V+i}')
        AC = 140
        def pr(b): return f'v[{b}:{b+1}]'
        for i in range(8):
            a(f'v_pk_mul_f32 {pr(AC+2*i)}, {pr(KU+2*(i+0))}, {pr(Wp+6)}')
            a(f'v_pk_fma_f32 {pr(AC+2*i)}, {pr(KU+2*(i+1))}, {pr(Wp+4)}, {pr(AC+2*i)}')
            a(f'v_pk_fma_f32 {pr(AC+2*i)}, {pr(KU+2*(i+2))}, {pr(Wp+2)}, {pr(AC+2*i)}')
            a(f'v_pk_fma_f32 {pr(AC+2*i)}, {pr(KU+2*(i+3))}, {pr(Wp+0)}, {pr(AC+2*i)}')
            a(f'v_pk_mul_f32 {pr(AC+2*i)}, {pr(AC+2*i)}, {pr(VU+2*i)}')
        for j in range(4):
            hi, lo = 7 - 2*j - 1, 7 - 2*j
            a(f'v_cvt_pk_bf16_f32 v{160+j}, v{AC+2*lo}, v{AC+2*hi}')
            a(f'v_cvt_pk_bf16_f32 v{164+j}, v{AC+2*lo+1}, v{AC+2*hi+1}')
        a('v_sub_u32 v2, 7, v4')
        a('v_and_b32 v9, 7, v5')
        a('v_xor_b32 v2, v2, v9')
        a('v_lshlrev_b32 v2, 4, v2')
        a('v_lshl_add_u32 v2, v5, 8, v2')
        a(f'ds_write_b128 v2, v[160:163] offset:{L_KVT}')
        a(f'ds_write_b128 v2, v[164:167] offset:{L_KVT+128}')
        a('s_waitcnt vmcnt(6)')
        a('v_lshrrev_b32 v2, 4, v0')
        a('v_and_b32 v9, 15, v0')
        a('v_mul_u32_u24 v29, 448, v2')
        a('v_lshl_add_u32 v29, v9, 4, v29')
        a(f'ds_write_b128 v29, v[34:37] offset:{L_W1R}')
        a('v_cmp_gt_u32 vcc, 12, v9')
        a('s_and_saveexec_b64 s[56:57], vcc')
        a(f'ds_write_b128 v29, v[38:41] offset:{L_W1R+256}')
        a('s_mov_b64 exec, s[56:57]')
        a('v_mul_u32_u24 v29, 576, v2')
        a('v_lshl_add_u32 v29, v9, 4, v29')
        a(f'ds_write_b128 v29, v[42:45] offset:{L_W2R}')
        a(f'ds_write_b128 v29, v[46:49] offset:{L_W2R+256}')
        a('s_waitcnt lgkmcnt(0)')
        a('s_barrier')
        a('v_lshrrev_b32 v2, 3, v0')
        a('v_and_b32 v9, 7, v0')
        a('v_bfe_u32 v29, v2, 1, 3')
        a('v_xor_b32 v29, v29, v9')
        a('v_lshlrev_b32 v29, 4, v29')
        a('v_lshl_add_u32 v29, v2, 7, v29')
        a(f'ds_read_b128 v[160:163], v29 offset:{L_KVT}')
        a(f'ds_read_b128 v[164:167], v29 offset:{L_KVT+4096}')
        a(f's_lshl_b32 s53, {sC}, 18')
        a(f's_lshl_b32 s54, {sR}, 7')
        a('s_sub_u32 s53, s53, s54')
        a(f's_add_u32 s53, s53, {XR + 3968}')
        a('v_lshlrev_b32 v50, 12, v2')
        a('v_lshl_add_u32 v50, v9, 4, v50')
        a('v_add_u32 v51, 0x20000, v50')
        a('v_lshrrev_b32 v2, 5, v1')
        a('v_bfe_u32 v9, v1, 2, 2')
        a('v_bfe_u32 v29, v1, 4, 1')
        a('v_and_b32 v54, 3, v1')
        a('v_lshlrev_b32 v54, 3, v54')
        a('v_lshl_add_u32 v54, v29, 5, v54')
        a('v_lshl_add_u32 v55, v2, 3, v9')
        a('v_mul_u32_u24 v55, 448, v55')
        a('v_add_u32 v55, v55, v54')
        a(f's_lshl_b32 s54, {sW}, 6')
        a('v_add_u32 v55, s54, v55')
        a(f'ds_read_b64_tr_b16 v[168:169], v55 offset:{L_W1R}')
        a(f'ds_read_b64_tr_b16 v[170:171], v55 offset:{L_W1R + 4*448}')
        a(f'ds_read_b64_tr_b16 v[172:173], v55 offset:{L_W1R + 256}')
        a(f'ds_read_b64_tr_b16 v[174:175], v55 offset:{L_W1R + 4*448 + 256}')
        a('v_lshl_add_u32 v55, v2, 2, v9')
        a('v_mul_u32_u24 v55, 576, v55')
        a('v_add_u32 v55, v55, v54')
        a('v_add_u32 v55, s54, v55')
        a(f'ds_read_b64_tr_b16 v[176:177], v55 offset:{L_W2R}')
        a(f'ds_read_b64_tr_b16 v[178:179], v55 offset:{L_W2R + 8*576}')
        a(f'ds_read_b64_tr_b16 v[180:181], v55 offset:{L_W2R + 256}')
        a(f'ds_read_b64_tr_b16 v[182:183], v55 offset:{L_W2R + 8*576 + 256}')
        a('s_waitcnt lgkmcnt(8)')
        a(f'buffer_store_dwordx4 v[160:163], v50, {WS}, s53 offen sc1')
        a(f'buffer_store_dwordx4 v[164:167], v51, {WS}, s53 offen sc1')
        a(f's_mul_i32 s53, {sC}, 7')
        a(f's_add_u32 s53, s53, {sW}')
        a('s_lshl_b32 s53, s53, 5')
        a(f's_add_u32 s53, s53, {sR}')
        a('s_lshl_b32 s53, s53, 10')
        a(f's_add_u32 s53, s53, {W1F}')
        a('v_lshlrev_b32 v50, 4, v1')
        a('s_waitcnt lgkmcnt(4)')
        a(f'buffer_store_dwordx4 v[168:171], v50, {WS}, s53 offen sc1')
        Lsk = a.newlabel('skipw1')
        a(f's_cmp_eq_u32 {sW}, 3')
        a(f's_cbranch_scc1 {Lsk}')
        a(f's_add_u32 s53, s53, {4*32*1024}')
        a(f'buffer_store_dwordx4 v[172:175], v50, {WS}, s53 offen sc1')
        a.label(Lsk)
        Lsk2 = a.newlabel('skipw2')
        a('s_waitcnt lgkmcnt(0)')
        a('s_cmp_ge_u32 s2, 224')
        a(f's_cbranch_scc1 {Lsk2}')
        a('s_and_b32 s53, s2, 1')
        a('s_lshl_b32 s53, s53, 3')
        a(f's_add_u32 s53, s53, {sW}')
        a('s_mul_i32 s53, s53, 112')
        a('s_lshr_b32 s54, s2, 1')
        a('s_add_u32 s53, s53, s54')
        a('s_lshl_b32 s53, s53, 10')
        a(f's_add_u32 s53, s53, {W2F}')
        a(f'buffer_store_dwordx4 v[176:179], v50, {WS}, s53 offen sc1')
        a(f's_add_u32 s53, s53, {4*112*1024}')
        a(f'buffer_store_dwordx4 v[180:183], v50, {WS}, s53 offen sc1')
        a.label(Lsk2)
        a('s_waitcnt vmcnt(0)')
        a('s_barrier')
        Lnf = a.newlabel('noflag')
        a(f's_cmp_lg_u32 {sW}, 0')
        a(f's_cbranch_scc1 {Lnf}')
        a('s_lshl_b32 s53, s2, 2')
        a(f's_add_u32 s53, s53, {F_PREP}')
        a('v_mov_b32 v2, s53')
        self.sc = ' sc1'
        self.flag_store(2, 9)
        a.label(Lnf)
        self.stamp('prep published')
        a('v_and_b32 v2, 127, v0')
        a('v_lshlrev_b32 v50, 4, v2')
        a(f's_lshr_b32 s53, {sW}, 1')
        a(f's_mul_i32 s53, s53, {8*CS}')
        a(f's_add_u32 s53, s53, {L_TOEP}')
        a('v_add_u32 v50, s53, v50')
        for rho in range(3):
            D = HR + 8*rho
            if rho == 2:
                a('v_cmp_gt_u32 vcc, 3, v2')
                a('s_and_saveexec_b64 s[56:57], vcc')
            O = 100
            for k in range(7):
                a(f'v_alignbit_b32 v{O+k}, v{D+k+1}, v{D+k}, 16')
            for k in range(1, 7):
                a(f'v_mov_b32 v{110+k-1}, v{O+k}')
            for k in range(1, 7):
                a(f'v_mov_b32 v{120+k-1}, v{D+k}')
            off = rho*2048
            srcs = [O+0, 120, 110, D+2, O+2, 122, 112, D+4]
            for sg in range(8):
                a(f'ds_write_b128 v50, v[{srcs[sg]}:{srcs[sg]+3}] offset:{sg*CS + off}')
            if rho < 2:
                a.nop(1)
            if rho == 2:
                a('s_mov_b64 exec, s[56:57]')
        self.stamp('toeplitz done')

    def conv(self):
        a = self.a
        a('v_lshlrev_b32 v2, 4, v1')
        a(f'v_add_u32 v2, {F_PREP}, v2')
        self.poll(2, 4, x4=True)
        self.stamp('prep flags seen')
        a(f's_lshl_b32 s53, {sC}, 5')
        a(f's_add_u32 s53, s53, {sR}')
        a('s_lshl_b32 s61, s53, 7')
        a('s_lshl_b32 s53, s53, 13')
        a(f's_add_u32 s53, s53, {XR}')
        a('v_lshlrev_b32 v2, 4, v0')
        a(f'buffer_load_dwordx4 v[8:11], v2, {WS}, s53 offen sc1')
        a('s_add_u32 s53, s53, 4096')
        a(f'buffer_load_dwordx4 v[12:15], v2, {WS}, s53 offen sc1')
        a('v_lshrrev_b32 v4, 2, v0')
        a('v_mul_u32_u24 v4, 96, v4')
        a('v_and_b32 v5, 3, v0')
        a('v_lshl_add_u32 v4, v5, 4, v4')
        a('s_waitcnt vmcnt(1)')
        a(f'ds_write_b128 v4, v[8:11] offset:{L_XB}')
        a('s_waitcnt vmcnt(0)')
        a(f'ds_write_b128 v4, v[12:15] offset:{L_XB + XBS}')
        a(f's_lshr_b32 s53, {sW}, 1')
        a(f's_and_b32 s54, {sW}, 1')
        a('v_and_b32 v4, 15, v1')
        a('v_lshrrev_b32 v5, 4, v1')
        a('v_and_b32 v6, 7, v4')
        a(f'v_mul_u32_u24 v6, {CS}, v6')
        a('v_and_b32 v7, 8, v4')
        a('v_lshl_add_u32 v7, v5, 3, v7')
        a('v_lshl_add_u32 v6, v7, 1, v6')
        a(f's_mul_i32 s55, s53, {8*CS}')
        a('s_lshl_b32 s56, s54, 5')
        a('s_add_u32 s55, s55, s56')
        a(f's_add_u32 s55, s55, {L_TOEP}')
        a('v_add_u32 v6, s55, v6')
        a('v_sub_u32 v7, 15, v4')
        a('v_mul_u32_u24 v7, 96, v7')
        a('v_lshl_add_u32 v7, v5, 4, v7')
        a(f's_mul_i32 s55, s53, {XBS}')
        a(f's_add_u32 s55, s55, {L_XB}')
        a('v_add_u32 v7, s55, v7')
        a('s_waitcnt lgkmcnt(0)')
        a('s_barrier')
        self.stamp('x in lds')
        for i in range(16): a(f'v_mov_b32 v{16+i}, 0')
        def Ereg(e):
            idx = 48 - e
            return f'a[{4*idx}:{4*idx+3}]'
        def Eload(e):
            idx = 48 - e
            a(f'ds_read_b128 {Ereg(e)}, v7 offset:{idx*96}')
        NF = 4
        def Freg(k):
            b = 32 + 4*(k % NF)
            return f'v[{b}:{b+3}]'
        def Fload(k):
            a(f'ds_read_b128 {Freg(k)}, v6 offset:{64*k}')
        def loads(k):
            n = 0
            if k < 64:
                Fload(k); n += 1
                if k < 16:
                    for c in range(4):
                        Eload(16*c - k); n += 1
            return n
        pend = []
        issued = [0]*70
        issued[0] = loads(0); issued[1] = loads(1)
        for k in range(64):
            issued[k+2] = loads(k+2)
            later = issued[k+1] + issued[k+2]
            a(f's_waitcnt lgkmcnt({min(later,15)})')
            for c in range(k >> 4, 4):
                a(f'v_mfma_f32_16x16x32_bf16 v[{16+4*c}:{19+4*c}], {Freg(k)}, {Ereg(16*c-k)}, v[{16+4*c}:{19+4*c}]')
        self.stamp('conv mfma done')
        a('v_sub_u32 v8, 15, v4')
        a('v_mul_u32_u24 v8, 96, v8')
        a('v_lshlrev_b32 v9, 3, v5')
        a('v_sub_u32 v8, v8, v9')
        a(f's_mul_i32 s55, s53, {XBS}')
        a(f's_add_u32 s55, s55, {L_XB + 56}')
        a('s_lshl_b32 s56, s54, 5')
        a('s_sub_u32 s55, s55, s56')
        a('v_add_u32 v8, s55, v8')
        for c in range(4):
            a(f'ds_read_b64 v[{48+2*c}:{49+2*c}], v8 offset:{(48-16*c)*96}')
        a('s_lshl_b32 s55, s60, 16')
        a('s_and_b32 s56, s60, 0xffff0000')
        a('s_cmp_eq_u32 s53, 0')
        a('s_cselect_b32 s55, s55, s56')
        a('v_lshrrev_b32 v9, 1, v5')
        a('v_lshlrev_b32 v9, 1, v9')
        a('s_lshl_b32 s56, s54, 2')
        a('s_add_u32 s56, s56, s53')
        a('v_add_u32 v9, s56, v9')
        a('v_and_b32 v10, 7, v4')
        a('v_xor_b32 v9, v9, v10')
        a('v_lshlrev_b32 v9, 4, v9')
        a('v_lshl_add_u32 v9, v4, 7, v9')
        a('v_and_b32 v10, 1, v5')
        a('v_lshl_add_u32 v9, v10, 3, v9')
        a('s_waitcnt lgkmcnt(0)')
        a.nop(4)
        for c in range(4):
            d0, d1 = 48+2*c, 49+2*c
            acc = 16+4*c
            a(f'v_and_b32 v60, 0xffff0000, v{d1}')
            a(f'v_lshlrev_b32 v61, 16, v{d1}')
            a(f'v_and_b32 v62, 0xffff0000, v{d0}')
            a(f'v_lshlrev_b32 v63, 16, v{d0}')
            for r in range(4):
                a(f'v_fma_f32 v{60+r}, v{60+r}, s55, v{acc+r}')
            a(f'v_cvt_pk_bf16_f32 v{64+2*c}, v60, v61')
            a(f'v_cvt_pk_bf16_f32 v{65+2*c}, v62, v63')
            a(f'ds_write_b64 v9, v[{64+2*c}:{65+2*c}] offset:{L_GT + 16*c*128}')
        a('s_waitcnt lgkmcnt(0)')
        a('s_barrier')
        a('v_lshrrev_b32 v8, 3, v0')
        a('v_and_b32 v9, 7, v0')
        a('v_and_b32 v10, 7, v8')
        a('v_xor_b32 v10, v10, v9')
        a('v_lshlrev_b32 v10, 4, v10')
        a('v_lshl_add_u32 v10, v8, 7, v10')
        a(f'ds_read_b128 v[48:51], v10 offset:{L_GT}')
        a(f'ds_read_b128 v[52:55], v10 offset:{L_GT + 4096}')
        a('v_lshlrev_b32 v11, 15, v8')
        a('v_lshl_add_u32 v11, v9, 4, v11')
        a(f's_add_u32 s53, s61, {GB}')
        a('s_waitcnt lgkmcnt(1)')
        a(f'buffer_store_dwordx4 v[48:51], v11, {WS}, s53 offen sc1')
        a(f's_add_u32 s53, s53, {32*32768}')
        a('s_waitcnt lgkmcnt(0)')
        a(f'buffer_store_dwordx4 v[52:55], v11, {WS}, s53 offen sc1')
        a('s_waitcnt vmcnt(0)')
        a('s_barrier')
        Lnf = a.newlabel('noflag')
        a(f's_cmp_lg_u32 {sW}, 0')
        a(f's_cbranch_scc1 {Lnf}')
        a('s_lshl_b32 s53, s2, 2')
        a(f's_add_u32 s53, s53, {F_CONV}')
        a('v_mov_b32 v2, s53')
        self.flag_store(2, 9)
        a.label(Lnf)
        self.stamp('conv published')

    def finish(self):
        a = self.a
        a.label('L_fin')
        Ln = a.newlabel('noep')
        a('s_cmp_lg_u32 s2, 0')
        a(f's_cbranch_scc1 {Ln}')
        a(f's_cmp_lg_u32 {sW}, 0')
        a(f's_cbranch_scc1 {Ln}')
        a('v_mov_b32 v2, 0')
        self.sc = ' sc1'
        self.flag_store(2, 9)
        a.label(Ln)
        if self.stamps:
            self.stamp('end')
            a('s_lshl_b32 s53, s2, 2')
            a(f's_add_u32 s53, s53, {sW}')
            a('s_lshl_b32 s53, s53, 7')
            a(f's_add_u32 s53, s53, {TS}')
            a('s_mov_b64 exec, 1')
            a('v_mov_b32 v2, 0')
            for i in range(self.nstamp):
                a(f'v_mov_b32 v3, s{76+i}')
                a(f'buffer_store_dword v3, v2, {WS}, s53 offen offset:{4*i}')
                a.nop(1)
            a(f'v_mov_b32 v3, {sABORT}')
            a(f'buffer_store_dword v3, v2, {WS}, s53 offen offset:124')
        a('s_waitcnt vmcnt(0)')
        a.label('L_end')
        a('s_endpgm')

    def build(self):
        self.prologue()
        self.prep()
        if self.stop != 'prep':
            self.conv()
        if self.stop not in ('prep', 'conv'):
            from gen_mlp import emit_mlp
            emit_mlp(self)
        self.finish()
        body = self.a.text()
        hdr = open('cdna_kernels/' + NAME[:-7] + '.s.ref').read().split('; @launch')[0]
        hdr = hdr.split('; Override launch')[0]
        s = hdr + f'; @launch grid=(256,1,1) block=(256,1,1) lds={LDS_SIZE}\n'
        s += f'''.amdgcn_target "amdgcn-amd-amdhsa--gfx950"
.text
.globl {NAME}
.p2align 8
.type {NAME},@function
{NAME}:
''' + body + f'''.section .rodata,"a"
.p2align 6
.amdhsa_kernel {NAME}
  .amdhsa_next_free_vgpr 512
  .amdhsa_next_free_sgpr 102
  .amdhsa_accum_offset 256
  .amdhsa_group_segment_fixed_size 0
  .amdhsa_kernarg_size 112
  .amdhsa_user_sgpr_count 2
  .amdhsa_user_sgpr_kernarg_segment_ptr 1
  .amdhsa_system_sgpr_workgroup_id_x 1
.end_amdhsa_kernel
'''
        return s

if __name__ == '__main__':
    ap = argparse.ArgumentParser()
    ap.add_argument('--stop', default='end')
    ap.add_argument('--stamps', action='store_true')
    ap.add_argument('-o', default='k.s')
    args = ap.parse_args()
    g = Gen(stop=args.stop, stamps=args.stamps)
    s = g.build()
    probs = check_hazards(g.a.lines)
    for p in probs: print(p)
    print(f'{len(g.a.lines)} lines, {len(probs)} hazards')
    open(args.o, 'w').write(s)
    open(args.o + '.stamps', 'w').write('\n'.join(g.stamp_names))
```

```python
from gen2 import *

def tok_base(a, dst, eta):
    a(f's_lshl_b32 {dst}, {sC}, 8')
    a(f's_lshl_b32 s54, {sR}, 3')
    a(f's_add_u32 {dst}, {dst}, s54')
    a(f's_add_u32 {dst}, {dst}, {sW}')
    if eta: a(f's_add_u32 {dst}, {dst}, {4*eta}')
    a(f's_lshl_b32 {dst}, {dst}, 10')

def yflag_addr(a, dst, eta):
    a(f's_lshl_b32 {dst}, s67, 1')
    if eta: a(f's_add_u32 {dst}, {dst}, {eta}')
    a(f's_lshl_b32 {dst}, {dst}, 3')
    a(f's_add_u32 {dst}, {dst}, {sC}')
    a(f's_lshl_b32 {dst}, {dst}, 7')
    a(f's_lshl_b32 s54, {sR}, 2')
    a(f's_add_u32 {dst}, {dst}, s54')
    a(f's_add_u32 {dst}, {dst}, {sW}')
    a(f's_lshl_b32 {dst}, {dst}, 2')
    a(f's_add_u32 {dst}, {dst}, {F_Y}')

def rows_finish(g, rows):
    a = g.a
    for (X, eta) in rows:
        a(f's_lshl_b32 s53, {sW}, 10')
        a(f's_add_u32 s53, s53, {L_G + eta*4096}')
        a(f'v_add_u32 v{X+28}, s53, v{vL16}')
        a(f'ds_read_b128 v[{X+16}:{X+19}], v{X+28}')
    a('s_waitcnt lgkmcnt(0)')
    def pr(b): return f'v[{b}:{b+1}]'
    for (X, eta) in rows:
        g.unpack8(X+16, X+20)
    for (X, eta) in rows:
        for i in range(4):
            a(f'v_pk_fma_f32 {pr(X+2*i)}, {pr(X+8+2*i)}, {pr(X+20+2*i)}, {pr(X+2*i)}')
    for (X, eta) in rows:
        g.pack8(X, X+32)
    for (X, eta) in rows:
        g.unpack8(X+32, X)
    for (X, eta) in rows:
        tok_base(a, 's55', eta)
        a('s_lshl_b32 s54, s67, 22' if not g.fast else 's_mov_b32 s54, 0')
        a('s_add_u32 s54, s54, s55')
        a(f's_add_u32 s54, s54, {X1}')
        g.vstore(f'v[{X+32}:{X+35}]', f'v{vL16}', WS, 's54', 0, g.sc, tag=f'rx{eta}')
    g.ln_multi([(X, X+8, X+36) for (X, eta) in rows])
    g.ln_multi([(X+8, X+8, X+36) for (X, eta) in rows])
    for (X, eta) in rows:
        g.pack8(X+8, X+16)
    for (X, eta) in rows:
        tok_base(a, 's55', eta)
        a('s_lshl_b32 s54, s67, 21' if not g.fast else 's_mov_b32 s54, 0')
        a('s_add_u32 s54, s54, s55')
        a(f's_add_u32 s54, s54, {Y0}')
        g.vstore(f'v[{X+16}:{X+19}]', f'v{vL16}', WS, 's54', 0, g.sc, tag=f'ry{eta}')

def row_flag(g, eta):
    a = g.a
    yflag_addr(a, 's53', eta)
    g.vq.wait(f'ry{eta}')
    g.flag('s53')

def emit_r1a(g):
    a = g.a; vq = g.vq; o = g.o
    XA, XB_ = 16, 64
    a(f'v_mov_b32 v{g.vinv}, 0x3b000000')
    vq.wait('q')
    g.unpack8(8, XA); g.unpack8(12, XB_)
    g.ln_multi([(XA, XA+8, XA+36), (XB_, XB_+8, XB_+36)])
    g.stamp('lnq done')
    if getattr(g, 'r1_hook', None): g.r1_hook()
    a(f's_lshl_b32 s53, {sC}, 3')
    a(f's_lshr_b32 s54, {sR}, 2')
    a('s_add_u32 s53, s53, s54')
    a('s_lshl_b32 s53, s53, 15')
    a(f's_and_b32 s54, {sR}, 3')
    a('s_lshl_b32 s54, s54, 5')
    a('s_add_u32 s53, s53, s54')
    a(f's_add_u32 s55, s53, {GB}')
    a('v_lshlrev_b32 v5, 7, v0')
    L = a.newlabel('gp'); D = a.newlabel('gpd')
    a('s_mov_b32 s53, 0')
    a.label(L)
    a(f'buffer_load_dwordx4 v[112:115], v5, {WS}, s55 offen sc1')
    a(f'buffer_load_dwordx4 v[116:119], v5, {WS}, s55 offen offset:16 sc1')
    a('s_waitcnt vmcnt(0)')
    a('v_max3_u32 v120, v112, v113, v114')
    a('v_max3_u32 v121, v115, v116, v117')
    a('v_max3_u32 v120, v120, v118, v119')
    a('v_max_u32 v120, v120, v121')
    a('v_cmp_eq_u32 vcc, -1, v120')
    a(f's_cbranch_vccz {D}')
    a('s_add_u32 s53, s53, 1')
    a(f's_cmp_lg_u32 {sABORT}, 0')
    a(f's_cbranch_scc1 {D}')
    a('s_cmp_lt_u32 s53, 0x8000')
    a(f's_cbranch_scc1 {L}')
    a(f's_mov_b32 {sABORT}, 1')
    a.label(D)
    vq.reset()
    g.stamp('G loaded')
    a('s_mov_b32 s56, 0x05040100')
    a('s_mov_b32 s57, 0x07060302')
    a('v_lshlrev_b32 v5, 2, v0')
    a(f'v_add_u32 v5, {L_G}, v5')
    for j in range(8):
        sel = 's56' if j % 2 == 0 else 's57'
        a(f'v_perm_b32 v{120 + j}, v{116 + j//2}, v{112 + j//2}, {sel}')
    for j in range(8):
        a(f'ds_write_b32 v5, v{120 + j} offset:{j*1024}')
    a('s_waitcnt lgkmcnt(0)')
    a('s_barrier')

def emit_r1b(g):
    a = g.a; vq = g.vq; o = g.o
    XA, XB_ = 16, 64
    a('s_mov_b32 s67, 0')
    rows_finish(g, [(XA, 0), (XB_, 1)])
    g.weight_batch(o.get('wb4', 0))
    row_flag(g, 0)
    row_flag(g, 1)
    g.stamp('r1 done')

def emit_r2(g):
    a = g.a; vq = g.vq
    a('s_mov_b32 s67, 1')
    a('v_mov_b32 v4, 0x3b000000')
    for eta in range(2):
        X = 16 if eta == 0 else 64
        a(f's_lshl_b32 s53, {sC}, 1')
        if eta: a(f's_add_u32 s53, s53, {eta}')
        a('s_lshl_b32 s53, s53, 2')
        a(f's_lshr_b32 s54, {sR}, 3')
        a('s_add_u32 s53, s53, s54')
        a('s_lshl_b32 s53, s53, 2')
        a(f's_and_b32 s54, {sR}, 7')
        a('s_lshr_b32 s54, s54, 1')
        a('s_add_u32 s53, s53, s54')
        a('s_lshl_b32 s53, s53, 5')
        a(f's_add_u32 s53, s53, {F_X}')
        a('v_lshlrev_b32 v5, 2, v1')
        a('v_add_u32 v5, s53, v5')
        if eta == 1:
            row_flag(g, 0)
        g.poll(5, 6, nlanes=8)
        tok_base(a, 's53', eta)
        a(f's_add_u32 s53, s53, {X2}')
        g.vload('v[8:11]', f'v{vL16}', WS, 's53', 0, ' sc1', tag='x2')
        vq.wait('x2')
        g.unpack8(8, X)
        g.ln_multi([(X, X+8, X+36)])
        rows_finish(g, [(X, eta)])
    row_flag(g, 1)
    g.stamp('r2 done', False)

def gelu_fillers(g, acc, eta, tt):
    a = g.a
    F = []
    def addr():
        a(f's_add_u32 s54, s71, {(2*eta+tt)*112*1024}')
        a(f's_add_u32 s55, s70, {(2*eta+tt)*256}')
    F.append(addr)
    for p in range(8):
        x0, x1 = acc + 2*p, acc + 2*p + 1
        t0, t1 = 96 + 2*(p % 2), 97 + 2*(p % 2)
        seq = [f'v_mul_f32 v{t0}, v{x0}, v{x0}', f'v_mul_f32 v{t1}, v{x1}, v{x1}',
               f'v_fma_f32 v{t0}, v{t0}, v126, v127', f'v_fma_f32 v{t1}, v{t1}, v126, v127',
               f'v_mul_f32 v{t0}, v{t0}, v{x0}', f'v_mul_f32 v{t1}, v{t1}, v{x1}',
               f'v_exp_f32 v{t0}, v{t0}', f'v_exp_f32 v{t1}, v{t1}',
               f'v_add_f32 v{t0}, 1.0, v{t0}', f'v_add_f32 v{t1}, 1.0, v{t1}',
               f'v_rcp_f32 v{t0}, v{t0}', f'v_rcp_f32 v{t1}, v{t1}',
               f'v_mul_f32 v{x0}, v{x0}, v{t0}', f'v_mul_f32 v{x1}, v{x1}, v{t1}',
               f'v_cvt_pk_bf16_f32 v{112+p}, v{x0}, v{x1}']
        for s in seq: F.append(lambda s=s: a(s))
        if p == 3: F.append(lambda: g.vstore('v[112:115]', f'v{vL16}', WS, 's54', 0, g.sc, tag=f'h{eta}{tt}'))
        if p == 7: F.append(lambda: g.vstore('v[116:119]', f'v{vL16}', WS, 's54', 1024, g.sc, tag=f'h{eta}{tt}'))
    return F

def emit_g1(g):
    a = g.a; vq = g.vq
    Lskip = a.newlabel('g1skip')
    a('s_barrier')
    a(f's_cmp_ge_u32 {sR}, 28')
    a(f's_cbranch_scc1 {Lskip}')
    a(f's_lshl_b32 s68, {sJ}, 2')
    a(f's_add_u32 s68, s68, {sW}')
    g.mk_srd(SA, sB1, 3584)
    a('v_lshrrev_b32 v14, 5, v1')
    a('v_lshlrev_b32 v15, 3, v14')
    a('s_lshl_b32 s53, s68, 6')
    for i in range(4):
        g.vload(f'v[{96+2*i}:{97+2*i}]', 'v15', srd(SA), 's53', 16*i, w='x2', tag='bias')
    a(f'v_mov_b32 v126, {f2u(-C2)}')
    a(f'v_mov_b32 v127, {f2u(-C1)}')
    a('v_and_b32 v15, 31, v1')
    a('v_and_b32 v12, 15, v1')
    for m in range(8):
        a(f'v_add_u32 v{4+m}, {2*m}, v14')
        a(f'v_xor_b32 v{4+m}, v{4+m}, v12')
        a(f'v_lshlrev_b32 v{4+m}, 4, v{4+m}')
        a(f'v_lshl_add_u32 v{4+m}, v15, 10, v{4+m}')
    a(f's_lshl_b32 s53, {sC}, 1')
    a(f's_add_u32 s53, s53, {sT1}')
    a('s_lshl_b32 s53, s53, 2')
    a('s_mul_i32 s71, s53, 112')
    a('s_lshl_b32 s55, s68, 1')
    a('s_add_u32 s71, s71, s55')
    a('s_lshl_b32 s71, s71, 10')
    a(f's_lshl_b32 s55, {sLAYER}, 23' if not g.fast else 's_mov_b32 s55, 0')
    a('s_add_u32 s71, s71, s55')
    a(f's_add_u32 s71, s71, {H0}')
    a(f's_lshl_b32 s55, {sLAYER}, 6')
    a('s_add_u32 s70, s53, s55')
    a('s_lshl_b32 s70, s70, 8')
    a('s_lshl_b32 s55, s68, 2')
    a('s_add_u32 s70, s70, s55')
    a(f's_add_u32 s70, s70, {F_H}')
    for eta in range(2):
        a(f's_lshl_b32 s53, {sLAYER}, 1')
        if eta: a(f's_add_u32 s53, s53, {eta}')
        a('s_lshl_b32 s53, s53, 3')
        a(f's_add_u32 s53, s53, {sC}')
        a('s_lshl_b32 s53, s53, 7')
        a(f's_lshl_b32 s54, {sT1}, 6')
        a('s_add_u32 s53, s53, s54')
        a(f's_lshl_b32 s54, {sW}, 4')
        a('s_add_u32 s53, s53, s54')
        a('s_lshl_b32 s53, s53, 2')
        a(f's_add_u32 s53, s53, {F_Y}')
        a('v_lshlrev_b32 v14, 2, v1')
        a('v_add_u32 v14, s53, v14')
        g.dstamp('g1', f'poll{eta} start')
        g.poll(14, 15, nlanes=16)
        g.dstamp('g1', f'poll{eta} done')
        if eta == 0: g.stamp('g1 yA seen', True)
        a(f's_lshl_b32 s53, {sC}, 8')
        a(f's_lshl_b32 s54, {sT1}, 7')
        a('s_add_u32 s53, s53, s54')
        a(f's_lshl_b32 s54, {sW}, 5')
        a('s_add_u32 s53, s53, s54')
        if eta: a(f's_add_u32 s53, s53, {4*eta}')
        a('s_lshl_b32 s53, s53, 10')
        a(f's_lshl_b32 s54, {sLAYER}, 21' if not g.fast else 's_mov_b32 s54, 0')
        a('s_add_u32 s53, s53, s54')
        a(f's_add_u32 s53, s53, {Y0}')
        a(f's_lshl_b32 s54, {sW}, 14')
        if eta: a(f's_add_u32 s54, s54, {L_YH[eta]}')
        for i in range(16):
            if i % 4 == 0:
                a(f's_add_u32 m0, s54, {i*1024}')
                if i: a('s_add_u32 s53, s53, 8192')
            a(f'v_xor_b32 v15, {16*i}, v{vL16}')
            off = f' offset:{(i%4)*1024}' if i % 4 else ''
            a(f'buffer_load_dwordx4 v15, {WS}, s53 offen{off} sc1 lds')
            vq.issue(f'dma{eta}')
    for i in range(4):
        a(f'v_lshlrev_b32 v{48+4*i}, 16, v{96+2*i}')
        a(f'v_and_b32 v{49+4*i}, 0xffff0000, v{96+2*i}')
        a(f'v_lshlrev_b32 v{50+4*i}, 16, v{97+2*i}')
        a(f'v_and_b32 v{51+4*i}, 0xffff0000, v{97+2*i}')
    g.dstamp('g1', 'dma issued')
    a('s_barrier')
    g.stamp('g1 yA in lds', True)
    g.dstamp('g1', 'yA in lds')
    tiles = [(0,0), (0,1), (1,0), (1,1)]
    fill = []
    pend_flags = []
    NB, PF = 8, 6
    for ti, (eta, tt) in enumerate(tiles):
        if ti == 2:
            vq.wait('dma1')
            a('s_barrier')
            for m in range(8): a(f'v_add_u32 v{4+m}, 0x10000, v{4+m}')
        acc = 16 + 16*(ti % 2)
        def Breg(k): return f'v[{64+4*(k%NB)}:{67+4*(k%NB)}]'
        def Bload(k): a(f'ds_read_b128 {Breg(k)}, v{4+(k&7)} offset:{tt*32768 + (k>>3)*256}')
        for k in range(PF): Bload(k)
        START = 3
        nf = len(fill)
        done = 0
        for k in range(32):
            if k + PF < 32: Bload(k + PF)
            a(f's_waitcnt lgkmcnt({min(PF, 31-k)})')
            cin = f'v[48:63]' if k == 0 else f'v[{acc}:{acc+15}]'
            a(f'v_mfma_f32_32x32x16_bf16 v[{acc}:{acc+15}], {W1reg(k)}, {Breg(k)}, {cin}')
            if k >= START and nf:
                END = 30
                target = min(nf, ((k - START + 1) * nf + (END - START)) // (END - START + 1))
                while done < target:
                    fill[done](); done += 1
            if k == g.o.get('g1flagslot', 28) and pend_flags and ti >= 2:
                (ptag, peta, ptt) = pend_flags.pop(0)
                vq.wait(ptag)
                a(f's_add_u32 s56, s70, {(2*peta+ptt)*256}')
                g.flag('s56')
        while done < nf:
            fill[done](); done += 1
        g.dstamp('g1', f'tile{ti} done')
        if ti > 0:
            pe, pt = tiles[ti-1]
            pend_flags.append((f'h{pe}{pt}', pe, pt))
        fill = gelu_fillers(g, acc, eta, tt)
    a.nop(12)
    half = len(fill)//2
    for f in fill[:half]: f()
    for (ptag, peta, ptt) in pend_flags:
        vq.wait(ptag)
        a(f's_add_u32 s56, s70, {(2*peta+ptt)*256}')
        g.flag('s56')
    for f in fill[half:]: f()
    g.dstamp('g1', 'tail gelu done')
    vq.wait('h11')
    a(f's_add_u32 s56, s70, {3*256}')
    g.flag('s56')
    a.label(Lskip)
    vq.reset()
    g.stamp('g1 done', True)

def emit_g2(g):
    a = g.a; vq = g.vq
    a('s_barrier')
    g.mk_srd(SA, sB2, 1024)
    a('v_and_b32 v12, 7, v0')
    a('v_lshlrev_b32 v15, 4, v12')
    a(f's_and_b32 s53, {sR}, 7')
    a('s_lshl_b32 s53, s53, 7')
    g.vload('v[8:11]', 'v15', srd(SA), 's53', 0, tag='b2')
    a(f's_cmp_eq_u32 {sLAYER}, 0')
    a(f's_cselect_b32 s{SD_}, s{sWSP}, s{sOUT}')
    a(f's_cselect_b32 s{SD_+1}, s{sWSP+1}, s{sOUT+1}')
    a(f's_mov_b32 s{SD_+2}, 2097152')
    a(f's_cselect_b32 s{SD_+2}, {WS_SIZE}, s{SD_+2}')
    a(f's_mov_b32 s{SD_+3}, 0x00020000')
    a(f's_cselect_b32 s69, {X2}, 0')
    a(f's_and_b32 s{SD_+1}, s{SD_+1}, 0xffff')
    a('v_and_b32 v14, 31, v1')
    a('v_lshrrev_b32 v15, 5, v1')
    a('v_and_b32 v13, 7, v1')
    a(f's_lshl_b32 s53, {sW}, 13')
    for i in range(4):
        a(f'v_add_u32 v{4+i}, {2*i}, v15')
        a(f'v_xor_b32 v{4+i}, v{4+i}, v13')
        a(f'v_lshlrev_b32 v{4+i}, 4, v{4+i}')
        a(f'v_lshl_add_u32 v{4+i}, v14, 8, v{4+i}')
        a(f'v_add_u32 v{4+i}, s53, v{4+i}')
    a('v_lshrrev_b32 v14, 3, v0')
    a('v_and_b32 v13, 7, v14')
    a('v_and_b32 v15, 3, v12')
    a('v_lshlrev_b32 v15, 1, v15')
    a('v_xor_b32 v16, v15, v13')
    a('v_or_b32 v15, 1, v15')
    a('v_xor_b32 v17, v15, v13')
    a('v_lshrrev_b32 v15, 2, v12')
    a('v_lshlrev_b32 v15, 7, v15')
    a('v_lshl_add_u32 v15, v14, 8, v15')
    a('v_lshl_add_u32 v16, v16, 4, v15')
    a('v_lshl_add_u32 v17, v17, 4, v15')
    a(f's_lshr_b32 s53, {sR}, 3')
    a('s_lshl_b32 s53, s53, 5')
    a('v_add_u32 v15, s53, v14')
    a('v_lshrrev_b32 v18, 2, v15')
    a('v_lshlrev_b32 v18, 3, v18')
    a('v_and_b32 v15, 3, v15')
    a('v_add_u32 v18, v18, v15')
    a(f's_lshl_b32 s53, {sC}, 8')
    a('v_add_u32 v18, s53, v18')
    a('v_lshlrev_b32 v18, 10, v18')
    a(f's_and_b32 s53, {sR}, 7')
    a('s_lshl_b32 s53, s53, 7')
    a('v_lshl_add_u32 v18, v12, 4, v18')
    a('v_add_u32 v18, s53, v18')
    a(f's_lshr_b32 s70, {sR}, 4')
    a(f's_lshl_b32 s53, {sC}, 1')
    a('s_add_u32 s53, s53, s70')
    a('s_lshl_b32 s53, s53, 2')
    a(f's_lshr_b32 s54, {sR}, 3')
    a('s_and_b32 s54, s54, 1')
    a('s_add_u32 s70, s53, s54')
    a('s_mul_i32 s71, s70, 112')
    a(f's_mul_i32 s54, {sW}, 28')
    a('s_add_u32 s71, s71, s54')
    a('s_lshl_b32 s71, s71, 10')
    a(f's_lshl_b32 s54, {sLAYER}, 23' if not g.fast else 's_mov_b32 s54, 0')
    a('s_add_u32 s71, s71, s54')
    a(f's_add_u32 s71, s71, {H0}')
    a(f's_lshl_b32 s53, {sLAYER}, 6')
    a('s_add_u32 s70, s70, s53')
    a('s_lshl_b32 s70, s70, 8')
    a(f's_mul_i32 s54, {sW}, 56')
    a('s_add_u32 s70, s70, s54')
    a(f's_add_u32 s70, s70, {F_H}')
    a(f's_lshl_b32 s68, {sC}, 3')
    a(f's_lshr_b32 s54, {sR}, 3')
    a('s_add_u32 s68, s68, s54')
    a('s_lshl_b32 s68, s68, 2')
    a(f's_add_u32 s68, s68, {sW}')
    a('s_lshl_b32 s68, s68, 3')
    a(f's_and_b32 s54, {sR}, 7')
    a('s_add_u32 s68, s68, s54')
    a('s_lshl_b32 s68, s68, 2')
    a(f's_add_u32 s68, s68, {F_X}')
    NW = 16
    def Hreg(i): return f'v[{64+4*(i%NW)}:{67+4*(i%NW)}]'
    def Hload(eta, i):
        a(f's_add_u32 s54, s71, {eta*2*112*1024 + (i//4)*4096}')
        g.vload(Hreg(i), f'v{vL16}', WS, 's54', (i%4)*1024, ' sc1', tag=f'hf{eta}_{i}')
    def start_half(eta):
        a('v_lshlrev_b32 v14, 2, v1')
        a(f's_add_u32 s53, s70, {eta*2*256}')
        a('v_add_u32 v14, s53, v14')
        g.poll(14, 15, nlanes=14)
        a(f's_lshl_b32 s53, {sLAYER}, 22' if not g.fast else 's_mov_b32 s53, 0')
        a(f's_add_u32 s53, s53, {X1 + eta*4096}')
        g.vload(f'v[{28+eta*32}:{31+eta*32}]', 'v18', WS, 's53', 0, ' sc1', tag=f'res{eta}')
        for i in range(NW): Hload(eta, i)
    def mfmas(eta, hook=None):
        for i in range(28):
            vq.wait(f'hf{eta}_{i}')
            for nt in range(2):
                acc = f'a[{224+16*nt}:{239+16*nt}]'
                cin = '0' if i == 0 else acc
                a(f'v_mfma_f32_32x32x16_bf16 {acc}, {W2reg(nt,i)}, {Hreg(i)}, {cin}')
            if i + NW < 28: Hload(eta, i + NW)
            if hook: hook(i)
    def reduce_write(eta):
        a.nop(12)
        LR = eta*32768
        for nt in range(2):
            for i in range(4):
                b = 224 + 16*nt + 4*i
                a(f'ds_write_b128 v{4+i}, a[{b}:{b+3}] offset:{LR + nt*128}')
        a('s_waitcnt lgkmcnt(0)')
        a('s_barrier')
    def reduce_finish(eta):
        LR = eta*32768
        for p in range(4):
            a(f'ds_read_b128 v[{32+8*p}:{35+8*p}], v16 offset:{LR + p*8192}') if False else None
        P = [32, 40, 48, 120]
        return
    vq.wait('b2')
    g.unpack8(8, 20)
    def finish_half(eta):
        LR = eta*32768
        res = 28 + eta*32
        for p in range(3):
            a(f'ds_read_b128 v[{32+8*p}:{35+8*p}], v16 offset:{LR + p*8192}')
            a(f'ds_read_b128 v[{36+8*p}:{39+8*p}], v17 offset:{LR + p*8192}')
        a(f'ds_read_b128 v[8:11], v16 offset:{LR + 3*8192}')
        a(f'ds_read_b128 v[56:59], v17 offset:{LR + 3*8192}')
        a('s_waitcnt lgkmcnt(2)')
        def pr(b): return f'v[{b}:{b+1}]'
        for e in range(4): a(f'v_pk_add_f32 {pr(32+2*e)}, {pr(32+2*e)}, {pr(40+2*e)}')
        for e in range(4): a(f'v_pk_add_f32 {pr(48+2*e)}, {pr(48+2*e)}, {pr(20+2*e)}')
        a('s_waitcnt lgkmcnt(0)')
        a(f'v_pk_add_f32 {pr(32)}, {pr(32)}, {pr(8)}'); a(f'v_pk_add_f32 {pr(34)}, {pr(34)}, {pr(10)}')
        a(f'v_pk_add_f32 {pr(36)}, {pr(36)}, {pr(56)}'); a(f'v_pk_add_f32 {pr(38)}, {pr(38)}, {pr(58)}')
        for e in range(4): a(f'v_pk_add_f32 {pr(32+2*e)}, {pr(32+2*e)}, {pr(48+2*e)}')
        g.pack8(32, 40); g.unpack8(40, 32)
        vq.wait(f'res{eta}')
        g.unpack8(res, 48)
        for e in range(4): a(f'v_pk_add_f32 {pr(32+2*e)}, {pr(32+2*e)}, {pr(48+2*e)}')
        g.pack8(32, 40)
        a(f's_add_u32 s53, s69, {eta*4096}')
        g.vstore('v[40:43]', 'v18', srd(SD_), 's53', 0, g.sc, tag=f'xo{eta}')
    def xflag(eta):
        vq.wait(f'xo{eta}')
        a(f's_add_u32 s53, s68, {eta*512}')
        g.flag('s53')
    g.dstamp('g2', 'g2 begin')
    start_half(0)
    g.stamp('g2 hA seen', True)
    g.dstamp('g2', 'A issued')
    def hookA(i):
        if i == 0: g.dstamp('g2', 'A first frag')
        if i == 15: g.dstamp('g2', 'A 16 frags')
    mfmas(0, hookA)
    g.dstamp('g2', 'A mfma done')
    reduce_write(0)
    g.dstamp('g2', 'A red written')
    start_half(1)
    g.dstamp('g2', 'B issued')
    finish_half(0)
    g.dstamp('g2', 'A finished')
    def hook(i):
        if i == 10: xflag(0)
        if i == 0: g.dstamp('g2', 'B first frag')
    mfmas(1, hook)
    g.dstamp('g2', 'B mfma done')
    reduce_write(1)
    finish_half(1)
    g.dstamp('g2', 'B finished')
    xflag(1)
    g.stamp('g2 done', True)

def emit_mlp_variant(g, sc, sfx):
    a = g.a
    g.sc = sc
    emit_r1b(g)
    if g.stop == 'r1': a('s_branch L_fin'); return
    a(f's_mov_b32 {sLAYER}, 0')
    a.label('L_layer' + sfx)
    emit_g1(g)
    if g.stop == 'g1': a('s_branch L_fin'); return
    emit_g2(g)
    if g.stop == 'g2': a('s_branch L_fin'); return
    a(f's_cmp_eq_u32 {sLAYER}, 1')
    a('s_cbranch_scc1 L_fin')
    emit_r2(g)
    if g.stop == 'r2': a('s_branch L_fin'); return
    a(f's_mov_b32 {sLAYER}, 1')
    a('s_branch L_layer' + sfx)

def emit_mlp(g):
    a = g.a
    emit_r1a(g)
    import copy
    ops0 = list(g.vq.ops); wl0 = list(g.wlist)
    a(f's_cmp_eq_u32 {sFAST}, 0')
    a('s_cbranch_scc1 L_slow')
    n0, names0 = g.nstamp, list(g.stamp_names)
    emit_mlp_variant(g, '', '_f')
    a.label('L_slow')
    g.vq.ops = ops0; g.wlist = wl0
    st = g.stamps; g.stamps = False
    emit_mlp_variant(g, ' sc1', '_s')
    g.stamps = st
```

```python
from gen2 import *
from gen2_mlp import tok_base, yflag_addr, rows_finish, row_flag, emit_r1a, emit_r1b
DUMMY = 0x2500000

def pr(b): return f'v[{b}:{b+1}]'

def poll_issue(g, vdst, vaddr, tag):
    g.a(f'buffer_load_dword v{vdst}, v{vaddr}, {WS}, 0 offen sc1')
    g.vq.issue(tag)

def poll_check(g, vdst, vaddr, tag):
    a = g.a
    g.vq.wait(tag)
    L = a.newlabel('pc'); D = a.newlabel('pcd')
    a(f'v_cmp_ne_u32 vcc, {sTAG}, v{vdst}')
    a(f's_cbranch_vccz {D}')
    a('s_mov_b32 s53, 0')
    a.label(L)
    a(f'buffer_load_dword v{vdst}, v{vaddr}, {WS}, 0 offen sc1')
    a('s_waitcnt vmcnt(0)')
    a(f'v_cmp_ne_u32 vcc, {sTAG}, v{vdst}')
    a(f's_cbranch_vccz {D}')
    a('s_add_u32 s53, s53, 1')
    a(f's_cmp_lg_u32 {sABORT}, 0')
    a(f's_cbranch_scc1 {D}')
    a('s_cmp_lt_u32 s53, 0x8000')
    a(f's_cbranch_scc1 {L}')
    a(f's_mov_b32 {sABORT}, 1')
    a.label(D)

def spread(a_fill, nslots, start, end):
    nf = len(a_fill)
    out = []
    for k in range(nslots):
        if k < start or nf == 0: out.append(0)
        else: out.append(min(nf, ((k - start + 1) * nf + (end - start)) // (end - start + 1)))
    return out

def gelu_fillers(g, acc, u, T, P, usepk):
    a = g.a
    F = []
    F.append(lambda: a(f's_add_u32 s74, s71, {u*112*1024}'))
    for p in range(8):
        x0, x1 = acc + 2*p, acc + 2*p + 1
        t0 = T + 2*(p % 2); t1 = t0 + 1
        if usepk:
            X = pr(x0); Tt = pr(t0)
            seq = [f'v_pk_mul_f32 {Tt}, {X}, {X}',
                   f'v_pk_fma_f32 {Tt}, {Tt}, v[12:13], v[12:13] op_sel:[0,0,1] op_sel_hi:[1,0,1]',
                   f'v_pk_mul_f32 {Tt}, {Tt}, {X}',
                   f'v_exp_f32 v{t0}, v{t0}', f'v_exp_f32 v{t1}, v{t1}',
                   None,
                   f'v_pk_add_f32 {Tt}, {Tt}, v[14:15]',
                   f'v_rcp_f32 v{t0}, v{t0}', f'v_rcp_f32 v{t1}, v{t1}',
                   None,
                   f'v_pk_mul_f32 {X}, {X}, {Tt}',
                   f'v_cvt_pk_bf16_f32 v{P+p}, v{x0}, v{x1}']
            for s in seq:
                if s is None: F.append(lambda: a.nop(1))
                else: F.append(lambda s=s: a(s))
        else:
            seq = [f'v_mul_f32 v{t0}, v{x0}, v{x0}', f'v_mul_f32 v{t1}, v{x1}, v{x1}',
                   f'v_fma_f32 v{t0}, v{t0}, v12, v13', f'v_fma_f32 v{t1}, v{t1}, v12, v13',
                   f'v_mul_f32 v{t0}, v{t0}, v{x0}', f'v_mul_f32 v{t1}, v{t1}, v{x1}',
                   f'v_exp_f32 v{t0}, v{t0}', f'v_exp_f32 v{t1}, v{t1}',
                   f'v_add_f32 v{t0}, 1.0, v{t0}', f'v_add_f32 v{t1}, 1.0, v{t1}',
                   f'v_rcp_f32 v{t0}, v{t0}', f'v_rcp_f32 v{t1}, v{t1}',
                   f'v_mul_f32 v{x0}, v{x0}, v{t0}', f'v_mul_f32 v{x1}, v{x1}, v{t1}',
                   f'v_cvt_pk_bf16_f32 v{P+p}, v{x0}, v{x1}']
            for s in seq: F.append(lambda s=s: a(s))
        if p == 3: F.append(lambda: g.vstore(f'v[{P}:{P+3}]', f'v{vL16}', WS, 's74', 0, g.sc, tag=f'h{u}'))
        if p == 7: F.append(lambda: g.vstore(f'v[{P+4}:{P+7}]', f'v{vL16}', WS, 's74', 1024, g.sc, tag=f'h{u}'))
    return F

def hflag(g, u):
    g.vq.wait(f'h{u}')
    g.a(f's_add_u32 s56, s70, {u*256}')
    g.flag('s56')

def emit_layer(g):
    a = g.a; vq = g.vq; o = g.o
    usepk = o.get('gelupk', 0)
    a(f's_lshl_b32 s53, {sLAYER}, 4')
    a(f's_add_u32 s53, s53, {sC}')
    a('s_lshl_b32 s53, s53, 7')
    a(f's_lshl_b32 s54, {sT1}, 6')
    a('s_add_u32 s53, s53, s54')
    a(f's_lshl_b32 s54, {sW}, 3')
    a('s_add_u32 s53, s53, s54')
    a('s_lshl_b32 s53, s53, 2')
    a(f's_add_u32 s53, s53, {F_Y}')
    a('v_and_b32 v100, 7, v1')
    a('v_bfe_u32 v101, v1, 3, 1')
    a('v_lshl_add_u32 v100, v101, 5, v100')
    a('v_lshlrev_b32 v100, 2, v100')
    a('v_add_u32 v100, s53, v100')
    a(f'v_add_u32 v101, {8*128*4}, v100')
    poll_issue(g, 102, 100, 'pyA')
    a('s_barrier')
    a(f's_lshl_b32 s68, {sJ}, 2')
    a(f's_add_u32 s68, s68, {sW}')
    g.mk_srd(SA, sB1, 3584)
    a('v_lshrrev_b32 v14, 5, v1')
    a('v_lshlrev_b32 v15, 3, v14')
    a('s_lshl_b32 s53, s68, 6')
    for i in range(4):
        g.vload(f'v[{104+2*i}:{105+2*i}]', 'v15', srd(SA), 's53', 16*i, w='x2', tag='bias')
    a('v_and_b32 v15, 31, v1')
    a('v_and_b32 v12, 15, v1')
    for m in range(8):
        a(f'v_add_u32 v{4+m}, {2*m}, v14')
        a(f'v_xor_b32 v{4+m}, v{4+m}, v12')
        a(f'v_lshlrev_b32 v{4+m}, 4, v{4+m}')
        a(f'v_lshl_add_u32 v{4+m}, v15, 10, v{4+m}')
    a(f'v_mov_b32 v12, {f2u(-C2)}')
    a(f'v_mov_b32 v13, {f2u(-C1)}')
    a('v_mov_b32 v14, 1.0'); a('v_mov_b32 v15, 1.0')
    a(f's_lshl_b32 s53, {sC}, 1')
    a(f's_add_u32 s53, s53, {sT1}')
    a('s_lshl_b32 s53, s53, 2')
    a('s_mul_i32 s71, s53, 112')
    a('s_lshl_b32 s55, s68, 1')
    a('s_add_u32 s71, s71, s55')
    a('s_lshl_b32 s71, s71, 10')
    a(f's_lshl_b32 s55, {sLAYER}, 23' if not g.fast else 's_mov_b32 s55, 0')
    a('s_add_u32 s71, s71, s55')
    a(f's_add_u32 s71, s71, {H0}')
    a(f's_lshl_b32 s55, {sLAYER}, 6')
    a('s_add_u32 s70, s53, s55')
    a('s_lshl_b32 s70, s70, 8')
    a('s_lshl_b32 s55, s68, 2')
    a('s_add_u32 s70, s70, s55')
    a(f's_add_u32 s70, s70, {F_H}')
    a('s_lshl_b32 s55, s2, 13')
    a(f's_add_u32 s55, s55, {DUMMY}')
    a(f's_cmp_ge_u32 {sR}, 28')
    a('s_cselect_b32 s71, s55, s71')
    a('s_cselect_b32 s70, s55, s70')
    a(f's_lshl_b32 s53, {sC}, 8')
    a(f's_lshl_b32 s54, {sT1}, 7')
    a('s_add_u32 s53, s53, s54')
    a(f's_lshl_b32 s54, {sW}, 4')
    a('s_add_u32 s53, s53, s54')
    a('s_lshl_b32 s53, s53, 10')
    a(f's_lshl_b32 s54, {sLAYER}, 21' if not g.fast else 's_mov_b32 s54, 0')
    a('s_add_u32 s53, s53, s54')
    a(f's_add_u32 s72, s53, {Y0}')
    a(f's_lshl_b32 s73, {sW}, 13')
    a(f's_and_b32 s54, {sW}, 1')
    a('s_lshl_b32 s54, s54, 7')
    a(f'v_xor_b32 v103, s54, v{vL16}')
    def dma_list(eta, tt):
        L = []
        for i in range(8):
            def f(i=i):
                if i % 4 == 0:
                    a(f's_add_u32 m0, s73, {L_YH[eta] + tt*32768 + i*1024}')
                    a(f's_add_u32 s57, s72, {(64*tt + 8*(i>>2) + 4*eta)*1024}')
                a(f'v_xor_b32 v99, {16*i}, v103')
                off = f' offset:{(i%4)*1024}' if i % 4 else ''
                a(f'buffer_load_dwordx4 v99, {WS}, s57 offen{off} sc1 lds')
                vq.issue(f'dma{eta}{tt}')
            L.append(f)
        return L
    poll_check(g, 102, 100, 'pyA')
    g.stamp('g1 yA seen', True)
    for f in dma_list(0, 0): f()
    for f in dma_list(0, 1): f()
    poll_issue(g, 102, 101, 'pyB')
    vq.wait('bias')
    for i in range(4):
        a(f'v_lshlrev_b32 v{48+4*i}, 16, v{104+2*i}')
        a(f'v_and_b32 v{49+4*i}, 0xffff0000, v{104+2*i}')
        a(f'v_lshlrev_b32 v{50+4*i}, 16, v{105+2*i}')
        a(f'v_and_b32 v{51+4*i}, 0xffff0000, v{105+2*i}')
    vq.wait('dma00')
    a('s_barrier')
    g.stamp('g1 yA in lds', True)
    fill = []
    NB, PF = 8, 7
    WG_ = o.get('g1wait', 4)
    for u in range(4):
        eta, tt = u >> 1, u & 1
        if u == 1: vq.wait('dma01'); a('s_barrier')
        if u == 2:
            vq.wait('dma10'); a('s_barrier')
            for m in range(8): a(f'v_add_u32 v{4+m}, 0x10000, v{4+m}')
        if u == 3: vq.wait('dma11'); a('s_barrier')
        g.dstamp('g1', f'tile{u} start')
        acc = 16 + 16*(u % 2)
        def Breg(k): return f'v[{64+4*(k%NB)}:{67+4*(k%NB)}]'
        def Bload(k): a(f'ds_read_b128 {Breg(k)}, v{4+(k&7)} offset:{tt*32768 + (k>>3)*256}')
        for k in range(PF): Bload(k)
        extra = {}
        if u == 0:
            dl = dma_list(1, 0) + dma_list(1, 1)
            extra[10] = [lambda: poll_check(g, 102, 101, 'pyB')]
            for i, f in enumerate(dl): extra.setdefault(11 + i, []).append(f)
        if u == 3:
            extra[o.get('fA0', 4)] = [lambda: hflag(g, 0)]
            extra[o.get('fA1', 26)] = [lambda: hflag(g, 1)]
        if g.wlist and u >= 1:
            nper = (len(g.wlist) + (3 - u)) // (4 - u)
            slots = [1 + (i * 30) // nper for i in range(nper)]
            for sl in slots: extra.setdefault(sl, []).append(lambda: g.weight_batch(1))
        sp = spread(fill, 32, 3, 30)
        done = 0
        for k in range(32):
            if k % WG_ == 0:
                need = min(k + WG_ - 1, 31)
                issued = min(k + PF - 1, 31)
                a(f's_waitcnt lgkmcnt({max(issued - need, 0)})')
            cin = f'v[48:63]' if k == 0 else f'v[{acc}:{acc+15}]'
            a(f'v_mfma_f32_32x32x16_bf16 v[{acc}:{acc+15}], {W1reg(k)}, {Breg(k)}, {cin}')
            if k + PF < 32: Bload(k + PF)
            while done < sp[k]: fill[done](); done += 1
            for f in extra.get(k, []): f()
        while done < len(fill): fill[done](); done += 1
        g.dstamp('g1', f'tile{u} done')
        if u < 3: fill = gelu_fillers(g, acc, u, 96, 104, usepk)
        else: fill = gelu_fillers(g, acc, u, 4, 48, usepk)
    g.dstamp('g1', 'tiles done')
    a(f's_lshr_b32 s54, {sR}, 4')
    a(f's_lshl_b32 s53, {sC}, 1')
    a('s_add_u32 s53, s53, s54')
    a('s_lshl_b32 s53, s53, 2')
    a(f's_lshr_b32 s54, {sR}, 3')
    a('s_and_b32 s54, s54, 1')
    a('s_add_u32 s69, s53, s54')
    a(f's_lshl_b32 s53, {sLAYER}, 6')
    a('s_add_u32 s53, s53, s69')
    a('s_lshl_b32 s53, s53, 8')
    a(f's_mul_i32 s54, {sW}, 56')
    a('s_add_u32 s53, s53, s54')
    a(f's_add_u32 s53, s53, {F_H}')
    a('v_min_u32 v60, 13, v1')
    a('v_lshlrev_b32 v60, 2, v60')
    a('v_add_u32 v60, s53, v60')
    a('v_add_u32 v61, 512, v60')
    poll_issue(g, 62, 60, 'phA')
    a('s_mul_i32 s73, s69, 112')
    a(f's_mul_i32 s54, {sW}, 28')
    a('s_add_u32 s73, s73, s54')
    a('s_lshl_b32 s73, s73, 10')
    a(f's_lshl_b32 s54, {sLAYER}, 23' if not g.fast else 's_mov_b32 s54, 0')
    a('s_add_u32 s73, s73, s54')
    a(f's_add_u32 s73, s73, {H0}')
    a('v_and_b32 v63, 7, v0')
    a('v_lshrrev_b32 v8, 3, v0')
    a('v_and_b32 v9, 7, v8')
    a('v_and_b32 v10, 3, v63')
    a('v_lshlrev_b32 v10, 1, v10')
    a('v_or_b32 v11, 1, v10')
    a('v_xor_b32 v10, v10, v9')
    a('v_xor_b32 v11, v11, v9')
    a('v_lshrrev_b32 v9, 2, v63')
    a('v_lshlrev_b32 v9, 7, v9')
    a('v_lshl_add_u32 v9, v8, 8, v9')
    a('v_lshl_add_u32 v10, v10, 4, v9')
    a('v_lshl_add_u32 v11, v11, 4, v9')
    a(f's_lshr_b32 s53, {sR}, 3')
    a('s_lshl_b32 s53, s53, 5')
    a('v_add_u32 v9, s53, v8')
    a('v_lshrrev_b32 v8, 2, v9')
    a('v_lshlrev_b32 v8, 3, v8')
    a('v_and_b32 v9, 3, v9')
    a('v_add_u32 v8, v8, v9')
    a(f's_lshl_b32 s53, {sC}, 8')
    a('v_add_u32 v8, s53, v8')
    a('v_lshlrev_b32 v8, 10, v8')
    a(f's_and_b32 s53, {sR}, 7')
    a('s_lshl_b32 s53, s53, 7')
    a('v_lshl_add_u32 v8, v63, 4, v8')
    a('v_add_u32 v8, s53, v8')
    a('v_lshlrev_b32 v9, 4, v63')
    NW = 12
    HW = 80
    def Hreg(s): return f'v[{HW+4*(s%NW)}:{HW+3+4*(s%NW)}]'
    def Hload(s):
        eta, i = divmod(s, 28)
        a(f's_add_u32 s54, s73, {eta*2*112*1024 + (i//4)*4096}')
        g.vload(Hreg(s), f'v{vL16}', WS, 's54', (i%4)*1024, ' sc1', tag=f'hf{s}')
    poll_check(g, 62, 60, 'phA')
    g.stamp('g2 hA seen', True)
    for s in range(NW): Hload(s)
    g.mk_srd(SA, sB2, 1024)
    a(f's_and_b32 s53, {sR}, 7')
    a('s_lshl_b32 s53, s53, 7')
    g.vload('v[56:59]', 'v9', srd(SA), 's53', 0, tag='b2')
    a(f's_lshl_b32 s53, {sLAYER}, 22' if not g.fast else 's_mov_b32 s53, 0')
    a(f's_add_u32 s53, s53, {X1}')
    g.vload('v[64:67]', 'v8', WS, 's53', 0, ' sc1', tag='res0')
    a('s_add_u32 s53, s53, 4096')
    g.vload('v[68:71]', 'v8', WS, 's53', 0, ' sc1', tag='res1')
    g.dstamp('g2', 'A loads issued')
    a.nop(4)
    half = len(fill)//2
    for f in fill[:half]: f()
    hflag(g, 2)
    for f in fill[half:]: f()
    g.stamp('g1 done', True)
    g.dstamp('g2', 'tail done')
    a(f's_cmp_eq_u32 {sLAYER}, 0')
    a(f's_cselect_b32 s{SB}, s{sWSP}, s{sOUT}')
    a(f's_cselect_b32 s{SB+1}, s{sWSP+1}, s{sOUT+1}')
    a(f's_mov_b32 s{SB+2}, 2097152')
    a(f's_cselect_b32 s{SB+2}, {WS_SIZE}, s{SB+2}')
    a(f's_mov_b32 s{SB+3}, 0x00020000')
    a(f's_cselect_b32 s69, {X2}, 0')
    a(f's_and_b32 s{SB+1}, s{SB+1}, 0xffff')
    a(f's_lshl_b32 s68, {sC}, 3')
    a(f's_lshr_b32 s54, {sR}, 3')
    a('s_add_u32 s68, s68, s54')
    a('s_lshl_b32 s68, s68, 2')
    a(f's_add_u32 s68, s68, {sW}')
    a('s_lshl_b32 s68, s68, 3')
    a(f's_and_b32 s54, {sR}, 7')
    a('s_add_u32 s68, s68, s54')
    a('s_lshl_b32 s68, s68, 2')
    a(f's_add_u32 s68, s68, {F_X}')
    a('v_and_b32 v72, 31, v1')
    a('v_lshrrev_b32 v73, 5, v1')
    a('v_and_b32 v74, 7, v1')
    a(f's_lshl_b32 s53, {sW}, 13')
    for i in range(4):
        a(f'v_add_u32 v{4+i}, {2*i}, v73')
        a(f'v_xor_b32 v{4+i}, v{4+i}, v74')
        a(f'v_lshlrev_b32 v{4+i}, 4, v{4+i}')
        a(f'v_lshl_add_u32 v{4+i}, v72, 8, v{4+i}')
        a(f'v_add_u32 v{4+i}, s53, v{4+i}')
    def accset(eta, nt):
        return f'a[{224+16*nt}:{239+16*nt}]' if eta == 0 else f'v[{16+16*nt}:{31+16*nt}]'
    def red_write_list(eta):
        LR = eta*32768
        L = []
        for nt in range(2):
            for i in range(4):
                src = f'a[{224+16*nt+4*i}:{224+16*nt+4*i+3}]'
                L.append(lambda src=src, i=i, nt=nt: a(f'ds_write_b128 v{4+i}, {src} offset:{LR + nt*128}'))
        return L
    def red_finish_list(eta, T0, T1):
        LR = eta*32768
        res = 64 + 4*eta
        L = []
        def rd(dst, p):
            a(f'ds_read_b128 v[{dst}:{dst+3}], v10 offset:{LR + p*8192}')
            a(f'ds_read_b128 v[{dst+4}:{dst+7}], v11 offset:{LR + p*8192}')
        def add():
            for e in range(4): a(f'v_pk_add_f32 {pr(T0+2*e)}, {pr(T0+2*e)}, {pr(T1+2*e)}')
        L.append(lambda: (rd(T0, 0), rd(T1, 1)))
        L.append(lambda: (a('s_waitcnt lgkmcnt(0)'), add(), rd(T1, 2)))
        L.append(lambda: (a('s_waitcnt lgkmcnt(0)'), add(), rd(T1, 3)))
        L.append(lambda: (a('s_waitcnt lgkmcnt(0)'), add()))
        L.append(lambda: g.unpack8(56, T1))
        L.append(add)
        L.append(lambda: g.pack8(T0, T1))
        L.append(lambda: g.unpack8(T1, T0))
        L.append(lambda: (vq.wait(f'res{eta}'), g.unpack8(res, T1)))
        L.append(add)
        L.append(lambda: g.pack8(T0, T1))
        def st():
            a(f's_add_u32 s53, s69, {eta*4096}')
            g.vstore(f'v[{T1}:{T1+3}]', 'v8', srd(SB), 's53', 0, g.sc, tag=f'xo{eta}')
        L.append(st)
        return L
    def xflag(eta):
        vq.wait(f'xo{eta}')
        a(f's_add_u32 s53, s68, {eta*512}')
        g.flag('s53')
    def mloop(s0, s1, extra):
        for s in range(s0, s1):
            eta, i = divmod(s, 28)
            vq.wait(f'hf{s}')
            for nt in range(2):
                acc = accset(0, nt)
                cin = '0' if i == 0 else acc
                a(f'v_mfma_f32_32x32x16_bf16 {acc}, {W2reg(nt,i)}, {Hreg(s)}, {cin}')
                if nt == 0 and s > s0 and (s - 1) + NW < s1: Hload(s - 1 + NW)
            for f in extra.get(s, []): f()
    exA = {o.get('fB1', 3): [lambda: hflag(g, 3)], 20: [lambda: poll_issue(g, 62, 61, 'phB')]}
    mloop(0, 28, exA)
    g.dstamp('g2', 'A mfma done')
    poll_check(g, 62, 61, 'phB')
    for s in range(28, 28 + NW): Hload(s)
    g.dstamp('g2', 'B issued')
    a.nop(4)
    for f in red_write_list(0): f()
    a('s_waitcnt lgkmcnt(0)')
    a('s_barrier')
    g.dstamp('g2', 'A red barrier')
    for f in red_finish_list(0, 72, 48): f()
    g.dstamp('g2', 'A finished')
    exB = {28 + o.get('fxA', 6): [lambda: xflag(0)]}
    mloop(28, 56, exB)
    g.dstamp('g2', 'B mfma done')
    a.nop(12)
    for f in red_write_list(1): f()
    a('s_waitcnt lgkmcnt(0)')
    a('s_barrier')
    for f in red_finish_list(1, 72, 48): f()
    g.dstamp('g2', 'B finished')
    xflag(1)
    g.dstamp('g2', 'B flagged')
    g.stamp('g2 done', True)

def emit_r2(g):
    a = g.a; vq = g.vq
    a('s_mov_b32 s67, 1')
    a('v_mov_b32 v4, 0x3b000000')
    a(f's_lshl_b32 s53, {sC}, 3')
    a(f's_lshr_b32 s54, {sR}, 3')
    a('s_add_u32 s53, s53, s54')
    a('s_lshl_b32 s53, s53, 2')
    a(f's_and_b32 s54, {sR}, 7')
    a('s_lshr_b32 s54, s54, 1')
    a('s_add_u32 s53, s53, s54')
    a('s_lshl_b32 s53, s53, 5')
    a(f's_add_u32 s53, s53, {F_X}')
    a('v_and_b32 v5, 7, v1')
    a('v_lshlrev_b32 v5, 2, v5')
    a('v_add_u32 v5, s53, v5')
    a('v_add_u32 v6, 512, v5')
    poll_issue(g, 7, 5, 'pxA')
    poll_check(g, 7, 5, 'pxA')
    for eta in range(2):
        X = 16 if eta == 0 else 64
        if eta == 1:
            poll_issue(g, 7, 6, 'pxB')
            row_flag(g, 0)
            poll_check(g, 7, 6, 'pxB')
        tok_base(a, 's53', eta)
        a(f's_add_u32 s53, s53, {X2}')
        g.vload('v[8:11]', f'v{vL16}', WS, 's53', 0, ' sc1', tag='x2')
        vq.wait('x2')
        g.unpack8(8, X)
        g.ln_multi([(X, X+8, X+36)])
        rows_finish(g, [(X, eta)])
    row_flag(g, 1)
    g.stamp('r2 done', False)

def emit_mlp_variant(g, fast):
    a = g.a
    g.fast = fast
    g.fsc = '' if fast else ' sc1'
    g.sc = ' sc1'
    emit_r1b(g)
    if g.stop == 'r1': a('s_branch L_fin'); return
    a(f's_mov_b32 {sLAYER}, 0')
    emit_layer(g)
    if g.stop == 'g2': a('s_branch L_fin'); return
    if fast and not g.o.get('l1sc1'): g.sc = ''
    emit_r2(g)
    if g.stop == 'r2': a('s_branch L_fin'); return
    a(f's_mov_b32 {sLAYER}, 1')
    emit_layer(g)
    a('s_branch L_fin')

def emit_mlp(g):
    a = g.a
    emit_r1a(g)
    ops0 = list(g.vq.ops); wl0 = list(g.wlist)
    a(f's_cmp_eq_u32 {sFAST}, 0')
    a('s_cbranch_scc1 L_slow')
    emit_mlp_variant(g, True)
    a.label('L_slow')
    g.vq.ops = ops0; g.wlist = wl0
    st = g.stamps; g.stamps = False
    emit_mlp_variant(g, False)
    g.stamps = st
```

```python
import sys, argparse, struct
from asmlib import Asm, check_hazards

NAME = 'interleave_layers__ssm_conv_h3__mixer_channel_mlp__prompt_kernel'

WS_EPOCH = 0x0
F_PREP = 0x1000
F_CONV = 0x2000
F_W = 0x3000
DUMMY2 = 0x2D00000
F_Y    = 0x4000
F_H    = 0x8000
F_X    = 0x10000
XR     = 0x100000
W1F    = 0x300000
W2F    = 0x500000
GB     = 0x700000
Y0     = 0x900000
X1     = 0xD00000
X2     = 0xF00000
H0     = 0x1400000
TS     = 0x2400000
WS_SIZE = 0x10000000

L_KVT = 0
L_W1R = 8192
L_W2R = 16384
L_GT  = 0
L_XB = 25600
XBS = 79*96
L_TOEP = 40960
CS = 4160
LDS_SIZE = 163840
L_G = 155648
L_YH = [0, 65536]

sQ, sK, sV, sSK, sSSM, sD, sBX, sW1 = 16, 18, 20, 22, 24, 26, 28, 30
sB1, sW2, sB2, sOUT, sDBG, sWSP = 32, 34, 36, 38, 40, 42
WS = 's[44:47]'
sC, sR, sW, sTAG, sABORT = 's48', 's49', 's50', 's51', 's52'
sLAYER, sT1, sJ = 's64', 's65', 's66'
sXCC, sFAST = 's101', 's3'
SA, SB, SC_, SD_ = 4, 8, 12, 72
def srd(n): return f's[{n}:{n+3}]'
W1B = 128
vL16, vTAG = 2, 3
def W1reg(k): return f'v[{W1B+4*k}:{W1B+4*k+3}]'
def W2reg(nt, i):
    b = (nt*28 + i)*4
    return f'a[{b}:{b+3}]'
def f2u(x): return '0x%08x' % struct.unpack('<I', struct.pack('<f', x))[0]
C1 = 2*0.7978845608028654*1.4426950408889634
C2 = C1*0.044715

class VQ:
    def __init__(self, a): self.a = a; self.ops = []
    def issue(self, tag): self.ops.append(tag)
    def wait(self, tag):
        idx = max(i for i, t in enumerate(self.ops) if t == tag) if tag in self.ops else None
        if idx is None: return
        n = len(self.ops) - 1 - idx
        assert n <= 63, n
        self.a(f's_waitcnt vmcnt({n})')
        self.ops = self.ops[idx+1:]
    def drain(self):
        self.a('s_waitcnt vmcnt(0)'); self.ops = []
    def reset(self): self.ops = []

class Gen:
    def __init__(self, stop='end', stamps=False, opts=None):
        self.a = Asm(); self.vq = VQ(self.a)
        self.stop = stop; self.stamps = stamps
        self.nstamp = 0; self.stamp_names = []
        self.sc = ' sc1'; self.fsc = ' sc1'; self.fast = False
        self.o = opts or {}

    def mk_srd(self, n, ptr, size, add=None):
        a = self.a
        if add is None:
            a(f's_mov_b32 s{n}, s{ptr}')
            a(f's_and_b32 s{n+1}, s{ptr+1}, 0xffff')
        else:
            a(f's_add_u32 s{n}, s{ptr}, {add}')
            a(f's_addc_u32 s{n+1}, s{ptr+1}, 0')
            a(f's_and_b32 s{n+1}, s{n+1}, 0xffff')
        a(f's_mov_b32 s{n+2}, {size}')
        a(f's_mov_b32 s{n+3}, 0x00020000')

    def dstamp(self, phase, name):
        if self.o.get('detail') == phase: self.stamp(name, False, force=True)
    def stamp(self, name='', inloop=False, force=False):
        if not self.stamps: return
        if self.o.get('detail') and not force and name not in ('start', 'end'): return
        inloop = False
        i = self.nstamp; self.nstamp += 1
        assert self.nstamp <= 24, name
        self.stamp_names.append(name)
        a = self.a
        a(f's_waitcnt lgkmcnt(0)')
        a(f's_memtime s[62:63]' if self.o.get('cyc') else f's_memrealtime s[62:63]')
        a(f's_waitcnt lgkmcnt(0)')
        if inloop:
            a('s_cmp_eq_u32 s64, 0')
            a(f's_cselect_b32 s{76+i}, s62, s{76+i}')
            a(f's_cselect_b32 s{77+i}, s{77+i}, s62')
        else:
            a(f's_mov_b32 s{76+i}, s62')

    def vload(self, dst, voff, sr, soff, imm=0, mods='', tag='ld', w='x4'):
        o = f' offset:{imm}' if imm else ''
        op = {'x4': 'buffer_load_dwordx4', 'x2': 'buffer_load_dwordx2', 'x1': 'buffer_load_dword'}[w]
        self.a(f'{op} {dst}, {voff}, {sr}, {soff} offen{o}{mods}')
        self.vq.issue(tag)
    def vstore(self, src, voff, sr, soff, imm=0, mods='', tag='st'):
        o = f' offset:{imm}' if imm else ''
        self.a(f'buffer_store_dwordx4 {src}, {voff}, {sr}, {soff} offen{o}{mods}')
        self.vq.issue(tag)

    def poll(self, vaddr, vtmp, nlanes=64, x4=False):
        a = self.a
        L = a.newlabel('poll'); D = a.newlabel('polld')
        a(f's_mov_b32 s53, 0')
        if nlanes < 64:
            a(f's_mov_b64 s[56:57], exec')
            a(f's_mov_b64 exec, {hex((1 << nlanes) - 1)}')
        a.label(L)
        if x4:
            a(f'buffer_load_dwordx4 v[{vtmp}:{vtmp+3}], v{vaddr}, {WS}, 0 offen sc1')
            a(f's_waitcnt vmcnt(0)')
            a(f'v_xor_b32 v{vtmp}, {sTAG}, v{vtmp}')
            a(f'v_xor_b32 v{vtmp+1}, {sTAG}, v{vtmp+1}')
            a(f'v_xor_b32 v{vtmp+2}, {sTAG}, v{vtmp+2}')
            a(f'v_xor_b32 v{vtmp+3}, {sTAG}, v{vtmp+3}')
            a(f'v_or_b32 v{vtmp}, v{vtmp}, v{vtmp+1}')
            a(f'v_or3_b32 v{vtmp}, v{vtmp}, v{vtmp+2}, v{vtmp+3}')
            a(f'v_cmp_ne_u32 vcc, 0, v{vtmp}')
        else:
            a(f'buffer_load_dword v{vtmp}, v{vaddr}, {WS}, 0 offen sc1')
            a(f's_waitcnt vmcnt(0)')
            a(f'v_cmp_ne_u32 vcc, {sTAG}, v{vtmp}')
        a(f's_cbranch_vccz {D}')
        a(f's_add_u32 s53, s53, 1')
        a(f's_cmp_lg_u32 {sABORT}, 0')
        a(f's_cbranch_scc1 {D}')
        a(f's_cmp_lt_u32 s53, 0x8000')
        a(f's_cbranch_scc1 {L}')
        a(f's_mov_b32 {sABORT}, 1')
        a.label(D)
        if nlanes < 64:
            a(f's_mov_b64 exec, s[56:57]')
        self.vq.reset()

    def poll_prep(self, vaddr, vt):
        a = self.a
        L = a.newlabel('poll'); D = a.newlabel('polld')
        a(f's_mov_b32 s53, 0')
        a.label(L)
        a(f'buffer_load_dwordx4 v[{vt}:{vt+3}], v{vaddr}, {WS}, 0 offen sc1')
        a(f's_waitcnt vmcnt(0)')
        for i in range(4): a(f'v_subrev_u32 v{vt+i}, {sTAG}, v{vt+i}')
        a(f'v_or_b32 v{vt+4}, v{vt}, v{vt+1}')
        a(f'v_or3_b32 v{vt+4}, v{vt+4}, v{vt+2}, v{vt+3}')
        a(f'v_cmp_lt_u32 vcc, 15, v{vt+4}')
        a(f's_cbranch_vccz {D}')
        a(f's_add_u32 s53, s53, 1')
        a(f's_cmp_lg_u32 {sABORT}, 0')
        a(f's_cbranch_scc1 {D}')
        a(f's_cmp_lt_u32 s53, 0x8000')
        a(f's_cbranch_scc1 {L}')
        a(f's_mov_b32 {sABORT}, 1')
        a.label(D)
        self.vq.reset()

    def dyn_role(self, vt):
        a = self.a
        lo, hi, t, u = vt+5, vt+6, vt+7, vt+8
        a(f'v_mov_b32 v{lo}, 0'); a(f'v_mov_b32 v{hi}, 0')
        for i in range(4):
            a(f'v_and_b32 v{t}, 3, v{vt+i}')
            a(f'v_lshlrev_b32 v{t}, 3, v{t}')
            a(f'v_lshlrev_b32 v{t}, v{t}, 1') if False else a(f'v_lshlrev_b32 v{t}, v{t}, v{vt+9}')
            a(f'v_lshrrev_b32 v{u}, 2, v{vt+i}')
            a(f'v_cmp_eq_u32 vcc, 0, v{u}')
            a.nop(2)
            a(f'v_cndmask_b32 v{vt+10}, 0, v{t}, vcc')
            a(f'v_cmp_eq_u32 vcc, 1, v{u}')
            a(f'v_add_u32 v{lo}, v{lo}, v{vt+10}')
            a.nop(1)
            a(f'v_cndmask_b32 v{vt+10}, 0, v{t}, vcc')
            a(f'v_add_u32 v{hi}, v{hi}, v{vt+10}')
        steps = ['quad_perm:[1,0,3,2] row_mask:0xf bank_mask:0xf', 'quad_perm:[2,3,0,1] row_mask:0xf bank_mask:0xf',
                 'row_half_mirror row_mask:0xf bank_mask:0xf', 'row_mirror row_mask:0xf bank_mask:0xf',
                 'row_bcast:15 row_mask:0xa bank_mask:0xf', 'row_bcast:31 row_mask:0xc bank_mask:0xf']
        a.nop(2)
        for st in steps:
            a(f'v_add_u32_dpp v{lo}, v{lo}, v{lo} {st}')
            a(f'v_add_u32_dpp v{hi}, v{hi}, v{hi} {st}')
            a.nop(1)
        a(f'v_readlane_b32 s56, v{lo}, 63')
        a(f'v_readlane_b32 s57, v{hi}, 63')
        a(f'v_lshlrev_b32 v{t}, 2, v1')
        a('s_mov_b32 s58, 0')
        for i in range(4):
            a(f'v_cmp_eq_u32 vcc, {sXCC}, v{vt+i}')
            a(f'v_add_u32 v{u}, {i}, v{t}')
            a(f'v_cmp_gt_u32 s[54:55], s2, v{u}')
            a.nop(1)
            a('s_and_b64 s[54:55], s[54:55], vcc')
            a('s_bcnt1_i32_b64 s55, s[54:55]')
            a('s_add_u32 s58, s58, s55')
        a('s_cmp_eq_u32 s56, 0x20202020')
        a(f's_cselect_b32 {sFAST}, 1, 0')
        a('s_cmp_eq_u32 s57, 0x20202020')
        a(f's_cselect_b32 {sFAST}, {sFAST}, 0')
        a(f's_cmp_eq_u32 {sABORT}, 0')
        a(f's_cselect_b32 {sFAST}, {sFAST}, 0')
        if self.o.get('force_slow'): a(f's_mov_b32 {sFAST}, 0')
        a(f's_cmp_eq_u32 {sFAST}, 1')
        a(f's_cselect_b32 {sC}, {sXCC}, {sC}')
        a(f's_cselect_b32 {sR}, s58, {sR}')

    def check_fw(self, vt, vaddr):
        a = self.a
        self.vq.wait('fw')
        L = a.newlabel('fw'); D = a.newlabel('fwd')
        a('s_mov_b32 s53, 0')
        a.label(L)
        for i in range(4): a(f'v_subrev_u32 v{vt+i}, {sTAG}, v{vt+i}')
        a(f'v_or_b32 v{vt+5}, v{vt}, v{vt+1}')
        a(f'v_or3_b32 v{vt+5}, v{vt+5}, v{vt+2}, v{vt+3}')
        a(f'v_cmp_lt_u32 vcc, 15, v{vt+5}')
        a(f's_cbranch_vccz {D}')
        a('s_add_u32 s53, s53, 1')
        a(f's_cmp_lg_u32 {sABORT}, 0')
        a(f's_cbranch_scc1 {D}')
        a('s_cmp_lt_u32 s53, 0x8000')
        a(f's_cbranch_scc0 {D}_ab')
        a(f'buffer_load_dwordx4 v[{vt}:{vt+3}], v{vaddr}, {WS}, 0 offen sc1')
        a('s_waitcnt vmcnt(0)')
        a(f's_branch {L}')
        a.label(D + '_ab')
        a(f's_mov_b32 {sABORT}, 1')
        a.label(D)
        a(f'v_mov_b32 v{vt+9}, 1')
        self.dyn_role(vt)
        self.weight_state_init()

    def flag(self, soff, sc=None):
        sc = self.fsc if sc is None else sc
        self.a(f'buffer_store_dword v{vTAG}, off, {WS}, {soff}{sc}')
        self.vq.issue('flag')

    def reduce_multi(self, regs, sdst):
        a = self.a
        steps = ['quad_perm:[1,0,3,2] row_mask:0xf bank_mask:0xf', 'quad_perm:[2,3,0,1] row_mask:0xf bank_mask:0xf',
                 'row_half_mirror row_mask:0xf bank_mask:0xf', 'row_mirror row_mask:0xf bank_mask:0xf',
                 'row_bcast:15 row_mask:0xa bank_mask:0xf', 'row_bcast:31 row_mask:0xc bank_mask:0xf']
        pad = max(0, 3 - len(regs))
        a.nop(max(0, 2 - (len(regs) - 1)) if len(regs) < 3 else 0)
        for s in steps:
            for r in regs:
                a(f'v_add_f32_dpp v{r}, v{r}, v{r} {s}')
            if pad: a.nop(pad)
        if len(regs) < 2: a.nop(1)
        for r, s in zip(regs, sdst):
            a(f'v_readlane_b32 s{s}, v{r}, 63')
        a.nop(2)

    def ln_multi(self, rows):
        a = self.a
        def pr(b): return f'v[{b}:{b+1}]'
        for (x, z, t) in rows:
            a(f'v_pk_add_f32 {pr(t)}, {pr(x)}, {pr(x+2)}')
            a(f'v_pk_mul_f32 {pr(t+2)}, {pr(x)}, {pr(x)}')
        for (x, z, t) in rows:
            a(f'v_pk_add_f32 {pr(t+4)}, {pr(x+4)}, {pr(x+6)}')
            a(f'v_pk_fma_f32 {pr(t+2)}, {pr(x+2)}, {pr(x+2)}, {pr(t+2)}')
        for (x, z, t) in rows:
            a(f'v_pk_add_f32 {pr(t)}, {pr(t)}, {pr(t+4)}')
            a(f'v_pk_fma_f32 {pr(t+2)}, {pr(x+4)}, {pr(x+4)}, {pr(t+2)}')
        for (x, z, t) in rows:
            a(f'v_add_f32 v{t}, v{t}, v{t+1}')
            a(f'v_pk_fma_f32 {pr(t+2)}, {pr(x+6)}, {pr(x+6)}, {pr(t+2)}')
        for (x, z, t) in rows:
            a(f'v_add_f32 v{t+2}, v{t+2}, v{t+3}')
        regs = []; sd = []
        for i, (x, z, t) in enumerate(rows):
            regs += [t, t+2]; sd += [58 - 2*i, 59 - 2*i]
        self.reduce_multi(regs, sd)
        for i, (x, z, t) in enumerate(rows):
            s1, s2 = sd[2*i], sd[2*i+1]
            a(f'v_mul_f32 v{t+4}, s{s1}, v4')
            a(f'v_mul_f32 v{t+2}, s{s2}, v4')
        for (x, z, t) in rows:
            a(f'v_fma_f32 v{t+2}, -v{t+4}, v{t+4}, v{t+2}')
        for (x, z, t) in rows:
            a(f'v_max_f32 v{t+2}, 0, v{t+2}')
        for (x, z, t) in rows:
            a(f'v_add_f32 v{t+2}, 0x3727c5ac, v{t+2}')
        for (x, z, t) in rows:
            a(f'v_rsq_f32 v{t+2}, v{t+2}')
        if len(rows) < 2: a.nop(1)
        for (x, z, t) in rows:
            a(f'v_mul_f32 v{t+4}, v{t+4}, v{t+2}')
        for (x, z, t) in rows:
            for i in range(4):
                a(f'v_pk_fma_f32 {pr(z+2*i)}, {pr(x+2*i)}, {pr(t+2)}, {pr(t+4)} op_sel_hi:[1,0,0] neg_lo:[0,0,1] neg_hi:[0,0,1]')

    def unpack8(self, src, dst):
        a = self.a
        for i in range(4):
            a(f'v_lshlrev_b32 v{dst+2*i}, 16, v{src+i}')
            a(f'v_and_b32 v{dst+2*i+1}, 0xffff0000, v{src+i}')
    def pack8(self, src, dst):
        a = self.a
        for i in range(4):
            a(f'v_cvt_pk_bf16_f32 v{dst+i}, v{src+2*i}, v{src+2*i+1}')

    def prologue(self):
        a = self.a
        a('s_cmp_ge_u32 s2, 256')
        a('s_cbranch_scc1 L_end')
        a('s_load_dwordx16 s[16:31], s[0:1], 0')
        a('s_load_dwordx8 s[32:39], s[0:1], 64')
        a('s_load_dwordx4 s[40:43], s[0:1], 96')
        a('s_getpc_b64 s[68:69]')
        a(f's_and_b32 {sC}, s2, 7')
        a(f's_lshr_b32 {sR}, s2, 3')
        a(f's_mov_b32 {sABORT}, 0')
        a(f's_getreg_b32 {sXCC}, hwreg(HW_REG_XCC_ID)')
        a(f's_min_u32 {sXCC}, {sXCC}, 8')
        a('v_lshrrev_b32 v4, 6, v0')
        a('v_and_b32 v1, 63, v0')
        a(f'v_readfirstlane_b32 {sW}, v4')
        a(f'v_lshlrev_b32 v{vL16}, 4, v1')
        a('s_waitcnt lgkmcnt(0)')
        self.mk_srd(44, sWSP, WS_SIZE)
        self.stamp('start')
        if self.stamps:
            a('s_memtime s[62:63]'); a('s_waitcnt lgkmcnt(0)'); a('s_mov_b32 s100, s62')
        a(f'buffer_load_dword v{vTAG}, off, {WS}, 0 sc1')
        self.vq.issue('epoch')

    def code_prefetch(self):
        a = self.a
        a('s_and_b32 s68, s68, 0xffffff00')
        a('s_and_b32 s69, s69, 0xffff')
        a(f's_mov_b32 s{SD_}, s68'); a(f's_mov_b32 s{SD_+1}, s69')
        a(f's_mov_b32 s{SD_+2}, CODE_BYTES')
        a(f's_mov_b32 s{SD_+3}, 0x00020000')
        a('v_lshlrev_b32 v87, 7, v0')
        a(f'buffer_load_dword v88, v87, {srd(SD_)}, 0 offen'); self.vq.issue('pf')
        a('v_add_u32 v87, 0x8000, v87')
        a(f'buffer_load_dword v88, v87, {srd(SD_)}, 0 offen'); self.vq.issue('pf')

    def pretouch(self):
        a = self.a
        a(f's_min_u32 s58, {sXCC}, 7')
        a('s_lshl_b32 s53, s58, 18')
        a(f's_lshl_b32 s54, {sR}, 13')
        a('s_add_u32 s53, s53, s54')
        a('v_lshlrev_b32 v88, 7, v1')
        Ls = a.newlabel('pt')
        a(f's_cmp_lg_u32 {sW}, 3')
        a(f's_cbranch_scc1 {Ls}')
        self.mk_srd(SD_, sQ, 2097152)
        a(f'buffer_load_dword v86, v88, {srd(SD_)}, s53 offen')
        self.mk_srd(SD_, sB1, 3584)
        a(f'buffer_load_dword v86, v88, {srd(SD_)}, 0 offen')
        self.mk_srd(SD_, sB2, 1024)
        a(f'buffer_load_dword v86, v88, {srd(SD_)}, 0 offen')
        self.mk_srd(SD_, sOUT, 2097152)
        a(f'buffer_load_dword v86, off, {srd(SD_)}, s53')
        a('v_lshlrev_b32 v87, 21, v1')
        a('v_min_u32 v87, 0x1c00000, v87')
        a(f'buffer_load_dword v86, v87, {WS}, 0 offen')
        a.label(Ls)

    def prep(self):
        a = self.a; vq = self.vq
        if self.o.get('prefetch', True): self.code_prefetch()
        a('v_lshrrev_b32 v8, 3, v0')
        a('v_and_b32 v9, 7, v0')
        a('v_lshlrev_b32 v8, 15, v8')
        a('v_lshl_add_u32 v8, v9, 4, v8')
        a(f's_lshl_b32 s53, {sC}, 5')
        a(f's_add_u32 s53, s53, {sR}')
        a('s_lshl_b32 s53, s53, 7')
        a(f's_add_u32 s53, s53, {GB}')
        for i in range(4): a(f'v_mov_b32 v{160+i}, -1')
        self.clear_g = True
        a('v_lshrrev_b32 v4, 5, v0')
        a('v_and_b32 v5, 31, v0')
        a(f's_lshl_b32 s53, {sR}, 16')
        a(f's_lshl_b32 s54, {sC}, 7')
        a('s_add_u32 s53, s53, s54')
        a('v_lshlrev_b32 v6, 13, v4')
        a('v_lshl_add_u32 v6, v5, 2, v6')
        a('v_add_u32 v6, s53, v6')
        a('v_subrev_u32 v7, 3072, v6')
        a('v_add_u32 v8, 4096, v6')
        self.mk_srd(SA, sK, 2097152)
        self.mk_srd(SB, sV, 2097152)
        self.mk_srd(SC_, sSK, 4096)
        K = 10
        for i in range(3): self.vload(f'v{K+i}', 'v7', srd(SA), 0, 1024*i, w='x1', tag='kv')
        for i in range(4): self.vload(f'v{K+3+i}', 'v6', srd(SA), 0, 1024*i, w='x1', tag='kv')
        for i in range(4): self.vload(f'v{K+7+i}', 'v8', srd(SA), 0, 1024*i, w='x1', tag='kv')
        V = 21
        for i in range(4): self.vload(f'v{V+i}', 'v6', srd(SB), 0, 1024*i, w='x1', tag='kv')
        for i in range(4): self.vload(f'v{V+4+i}', 'v8', srd(SB), 0, 1024*i, w='x1', tag='kv')
        a(f's_lshl_b32 s53, {sC}, 9')
        a('v_lshlrev_b32 v9, 4, v5')
        a('v_add_u32 v9, s53, v9')
        self.vload('v[30:33]', 'v9', srd(SC_), 0, tag='kv')
        self.mk_srd(SA, sW1, 512*1792*2)
        self.mk_srd(SB, sW2, 512*1792*2)
        a(f's_lshl_b32 s53, {sR}, 4')
        a(f's_lshl_b32 s54, {sW}, 2')
        a('s_add_u32 s53, s53, s54')
        a('s_mul_i32 s53, s53, 3584')
        a(f's_mul_i32 s54, {sC}, 448')
        a('s_add_u32 s53, s53, s54')
        a('v_lshrrev_b32 v34, 4, v1')
        a('v_and_b32 v9, 15, v1')
        a('v_mul_u32_u24 v29, 3584, v34')
        a('v_lshl_add_u32 v29, v9, 4, v29')
        a('v_add_u32 v29, s53, v29')
        self.vload('v[34:37]', 'v29', srd(SA), 0, tag='wr')
        self.vload('v[38:41]', 'v29', srd(SA), 0, 256, tag='wr')
        a('s_lshr_b32 s53, s2, 1')
        a('s_lshl_b32 s53, s53, 14')
        a('s_and_b32 s54, s2, 1')
        a('s_lshl_b32 s54, s54, 9')
        a('s_add_u32 s53, s53, s54')
        a('v_lshrrev_b32 v42, 4, v0')
        a('v_lshlrev_b32 v50, 10, v42')
        a('v_lshl_add_u32 v50, v9, 4, v50')
        a('v_add_u32 v50, s53, v50')
        self.vload('v[42:45]', 'v50', srd(SB), 0, tag='wr')
        self.vload('v[46:49]', 'v50', srd(SB), 0, 256, tag='wr')
        a(f's_lshl_b32 s53, {sC}, 5')
        a(f's_add_u32 s53, s53, {sR}')
        a('s_lshl_b32 s53, s53, 1')
        a(f's_lshr_b32 s54, {sW}, 1')
        a('s_add_u32 s53, s53, s54')
        a('s_lshl_b32 s53, s53, 12')
        self.mk_srd(SC_, sSSM, 4096, add='s53')
        a('v_and_b32 v54, 127, v0')
        a('v_lshlrev_b32 v51, 4, v54')
        a('v_subrev_u32 v52, 64, v51')
        a('v_subrev_u32 v53, 48, v51')
        HR = 56
        for rho in range(3):
            if rho:
                a(f'v_add_u32 v52, 2048, v52')
                a(f'v_add_u32 v53, 2048, v53')
            self.vload(f'v[{HR+8*rho}:{HR+8*rho+3}]', 'v52', srd(SC_), 0, tag='hr')
            self.vload(f'v[{HR+8*rho+4}:{HR+8*rho+7}]', 'v53', srd(SC_), 0, tag='hr')

        a(f's_lshl_b32 s53, {sC}, 5')
        a(f's_add_u32 s53, s53, {sR}')
        a('s_lshl_b32 s53, s53, 7')
        a(f's_add_u32 s53, s53, {GB}')
        a('v_lshrrev_b32 v85, 3, v0')
        a('v_and_b32 v86, 7, v0')
        a('v_lshlrev_b32 v85, 15, v85')
        a('v_lshl_add_u32 v85, v86, 4, v85')
        self.vstore('v[160:163]', 'v85', WS, 's53', 0, ' sc1', tag='clr')
        a(f's_add_u32 s53, s53, {32*32768}')
        self.vstore('v[160:163]', 'v85', WS, 's53', 0, ' sc1', tag='clr')
        a(f's_lshl_b32 s53, {sC}, 5')
        a(f's_add_u32 s53, s53, {sR}')
        a('s_lshl_b32 s53, s53, 2')
        a(f's_add_u32 s54, s{sD}, s53')
        a(f's_addc_u32 s55, s{sD+1}, 0')
        a('s_load_dword s60, s[54:55], 0')
        a('v_mov_b32 v80, 0'); a('v_mov_b32 v81, 0'); a('v_mov_b32 v82, 0'); a('v_mov_b32 v83, 0')
        a('v_lshlrev_b32 v84, 4, v0')
        a('v_cmp_gt_u32 vcc, 90, v0')
        a('s_and_saveexec_b64 s[56:57], vcc')
        a(f'ds_write_b128 v84, v[80:83] offset:{L_XB + 64*96}')
        a(f'ds_write_b128 v84, v[80:83] offset:{L_XB + XBS + 64*96}')
        a('s_mov_b64 exec, s[56:57]')
        vq.wait('kv')
        self.stamp('kv loaded')
        a(f'v_add_u32 v{vTAG}, 16, v{vTAG}')
        Wp = 90
        a(f'v_lshlrev_b32 v{Wp+0}, 16, v30'); a(f'v_lshlrev_b32 v{Wp+1}, 16, v32')
        a(f'v_readfirstlane_b32 {sTAG}, v{vTAG}')
        a(f'v_and_b32 v{Wp+2}, 0xffff0000, v30'); a(f'v_and_b32 v{Wp+3}, 0xffff0000, v32')
        a(f'v_lshlrev_b32 v{Wp+4}, 16, v31'); a(f'v_lshlrev_b32 v{Wp+5}, 16, v33')
        a(f'v_and_b32 v{Wp+6}, 0xffff0000, v31'); a(f'v_and_b32 v{Wp+7}, 0xffff0000, v33')
        KU = 100
        for i in range(11):
            a(f'v_lshlrev_b32 v{KU+2*i}, 16, v{K+i}')
            a(f'v_and_b32 v{KU+2*i+1}, 0xffff0000, v{K+i}')
        VU = 122
        for i in range(8):
            a(f'v_lshlrev_b32 v{VU+2*i}, 16, v{V+i}')
            a(f'v_and_b32 v{VU+2*i+1}, 0xffff0000, v{V+i}')
        AC = 140
        def pr(b): return f'v[{b}:{b+1}]'
        for t, wq in enumerate([6, 4, 2, 0]):
            for i in range(8):
                if t == 0: a(f'v_pk_mul_f32 {pr(AC+2*i)}, {pr(KU+2*(i+0))}, {pr(Wp+6)}')
                else: a(f'v_pk_fma_f32 {pr(AC+2*i)}, {pr(KU+2*(i+t))}, {pr(Wp+wq)}, {pr(AC+2*i)}')
        for i in range(8):
            a(f'v_pk_mul_f32 {pr(AC+2*i)}, {pr(AC+2*i)}, {pr(VU+2*i)}')
        for j in range(4):
            hi, lo = 7 - 2*j - 1, 7 - 2*j
            a(f'v_cvt_pk_bf16_f32 v{160+j}, v{AC+2*lo}, v{AC+2*hi}')
            a(f'v_cvt_pk_bf16_f32 v{164+j}, v{AC+2*lo+1}, v{AC+2*hi+1}')
        a('v_sub_u32 v85, 7, v4')
        a('v_and_b32 v9, 7, v5')
        a('v_xor_b32 v85, v85, v9')
        a('v_lshlrev_b32 v85, 4, v85')
        a('v_lshl_add_u32 v85, v5, 8, v85')
        a(f'ds_write_b128 v85, v[160:163] offset:{L_KVT}')
        a(f'ds_write_b128 v85, v[164:167] offset:{L_KVT+128}')
        a('v_lshrrev_b32 v85, 3, v0')
        a('v_and_b32 v9, 7, v0')
        a('v_bfe_u32 v29, v85, 1, 3')
        a('v_xor_b32 v29, v29, v9')
        a('v_lshlrev_b32 v29, 4, v29')
        a('v_lshl_add_u32 v29, v85, 7, v29')
        a(f's_lshl_b32 s53, {sC}, 18')
        a(f's_lshl_b32 s54, {sR}, 7')
        a('s_sub_u32 s53, s53, s54')
        a(f's_add_u32 s53, s53, {XR + 3968}')
        a('v_lshlrev_b32 v50, 12, v85')
        a('v_lshl_add_u32 v50, v9, 4, v50')
        a('v_add_u32 v51, 0x20000, v50')
        a('s_waitcnt lgkmcnt(0)')
        a('s_barrier')
        a(f'ds_read_b128 v[160:163], v29 offset:{L_KVT}')
        a(f'ds_read_b128 v[164:167], v29 offset:{L_KVT+4096}')
        a('s_waitcnt lgkmcnt(1)')
        self.vstore('v[160:163]', 'v50', WS, 's53', 0, ' sc1', tag='xr')
        a('s_waitcnt lgkmcnt(0)')
        self.vstore('v[164:167]', 'v51', WS, 's53', 0, ' sc1', tag='xr')
        self.stamp('xr stored')
        vq.wait('wr')
        a('v_lshrrev_b32 v85, 4, v0')
        a('v_and_b32 v9, 15, v0')
        a('v_mul_u32_u24 v29, 448, v85')
        a('v_lshl_add_u32 v29, v9, 4, v29')
        a(f'ds_write_b128 v29, v[34:37] offset:{L_W1R}')
        a('v_cmp_gt_u32 vcc, 12, v9')
        a('s_and_saveexec_b64 s[56:57], vcc')
        a(f'ds_write_b128 v29, v[38:41] offset:{L_W1R+256}')
        a('s_mov_b64 exec, s[56:57]')
        a('v_mul_u32_u24 v29, 576, v85')
        a('v_lshl_add_u32 v29, v9, 4, v29')
        a(f'ds_write_b128 v29, v[42:45] offset:{L_W2R}')
        a(f'ds_write_b128 v29, v[46:49] offset:{L_W2R+256}')
        a('v_lshrrev_b32 v85, 5, v1')
        a('v_bfe_u32 v9, v1, 2, 2')
        a('v_bfe_u32 v29, v1, 4, 1')
        a('v_and_b32 v86, 3, v1')
        a('v_lshlrev_b32 v86, 3, v86')
        a('v_lshl_add_u32 v86, v29, 5, v86')
        a('v_lshl_add_u32 v55, v85, 3, v9')
        a('v_mul_u32_u24 v55, 448, v55')
        a('v_add_u32 v55, v55, v86')
        a(f's_lshl_b32 s54, {sW}, 6')
        a('v_add_u32 v55, s54, v55')
        a('v_lshl_add_u32 v89, v85, 2, v9')
        a('v_mul_u32_u24 v89, 576, v89')
        a('v_add_u32 v89, v89, v86')
        a('v_add_u32 v89, s54, v89')
        a('s_waitcnt lgkmcnt(0)')
        vq.wait('xr')
        a('s_barrier')
        Lnf = a.newlabel('noflag')
        a(f's_cmp_lg_u32 {sW}, 0')
        a(f's_cbranch_scc1 {Lnf}')
        a(f's_lshl_b32 s53, {sC}, 5')
        a(f's_add_u32 s53, s53, {sR}')
        a('s_lshl_b32 s53, s53, 2')
        a(f's_add_u32 s53, s53, {F_PREP}')
        a(f'buffer_store_dword v{vTAG}, off, {WS}, s53 sc1')
        a.label(Lnf)
        self.stamp('prep published')
        a(f'ds_read_b64_tr_b16 v[168:169], v55 offset:{L_W1R}')
        a(f'ds_read_b64_tr_b16 v[170:171], v55 offset:{L_W1R + 4*448}')
        a(f'ds_read_b64_tr_b16 v[172:173], v55 offset:{L_W1R + 256}')
        a(f'ds_read_b64_tr_b16 v[174:175], v55 offset:{L_W1R + 4*448 + 256}')
        a(f'ds_read_b64_tr_b16 v[176:177], v89 offset:{L_W2R}')
        a(f'ds_read_b64_tr_b16 v[178:179], v89 offset:{L_W2R + 8*576}')
        a(f'ds_read_b64_tr_b16 v[180:181], v89 offset:{L_W2R + 256}')
        a(f'ds_read_b64_tr_b16 v[182:183], v89 offset:{L_W2R + 8*576 + 256}')
        a(f's_mul_i32 s53, {sC}, 7')
        a(f's_add_u32 s53, s53, {sW}')
        a(f's_mul_i32 s54, {sR}, 56')
        a('s_add_u32 s53, s53, s54')
        a('s_lshl_b32 s53, s53, 10')
        a(f's_add_u32 s53, s53, {W1F}')
        a(f's_add_u32 s55, s53, {4*1024}')
        a('s_lshl_b32 s57, s2, 12')
        a(f's_add_u32 s57, s57, {DUMMY2}')
        a(f's_cmp_eq_u32 {sW}, 3')
        a('s_cselect_b32 s55, s57, s55')
        a('s_waitcnt lgkmcnt(4)')
        self.vstore('v[168:171]', f'v{vL16}', WS, 's53', 0, ' sc1', tag='wf')
        self.vstore('v[172:175]', f'v{vL16}', WS, 's55', 0, ' sc1', tag='wf')
        a('s_lshr_b32 s54, s2, 1')
        a('s_mul_i32 s55, s54, 9363')
        a('s_lshr_b32 s55, s55, 18')
        a('s_mul_i32 s56, s55, 28')
        a('s_sub_u32 s54, s54, s56')
        a('s_lshl_b32 s54, s54, 2')
        a('s_add_u32 s54, s54, s55')
        a('s_lshl_b32 s54, s54, 4')
        a('s_and_b32 s53, s2, 1')
        a('s_lshl_b32 s53, s53, 3')
        a(f's_add_u32 s53, s53, {sW}')
        a('s_add_u32 s53, s53, s54')
        a('s_lshl_b32 s53, s53, 10')
        a(f's_add_u32 s53, s53, {W2F}')
        a('s_cmp_ge_u32 s2, 224')
        a('s_cselect_b32 s53, s57, s53')
        a('s_waitcnt lgkmcnt(0)')
        self.vstore('v[176:179]', f'v{vL16}', WS, 's53', 0, ' sc1', tag='wf')
        a(f's_add_u32 s54, s53, {4*1024}')
        a('s_cselect_b32 s53, s57, s54') if False else None
        a('s_cmp_ge_u32 s2, 224')
        a('s_cselect_b32 s53, s57, s54')
        self.vstore('v[180:183]', f'v{vL16}', WS, 's53', 0, ' sc1', tag='wf')
        if self.o.get('pretouch', True): self.pretouch()
        a('v_and_b32 v54, 127, v0')
        a('v_lshlrev_b32 v50, 4, v54')
        a(f's_lshr_b32 s53, {sW}, 1')
        a(f's_mul_i32 s53, s53, {8*CS}')
        a(f's_add_u32 s53, s53, {L_TOEP}')
        a('v_add_u32 v50, s53, v50')
        for rho in range(3):
            D = HR + 8*rho
            if rho == 2:
                a('v_cmp_gt_u32 vcc, 3, v54')
                a('s_and_saveexec_b64 s[56:57], vcc')
            O = 100
            for k in range(7): a(f'v_alignbit_b32 v{O+k}, v{D+k+1}, v{D+k}, 16')
            for k in range(1, 7): a(f'v_alignbit_b32 v{110+k-1}, v{D+k+1}, v{D+k}, 16')
            for k in range(1, 7): a(f'v_mov_b32 v{120+k-1}, v{D+k}')
            off = rho*2048
            srcs = [O+0, 120, 110, D+2, O+2, 122, 112, D+4]
            for sg in range(8):
                a(f'ds_write_b128 v50, v[{srcs[sg]}:{srcs[sg]+3}] offset:{sg*CS + off}')
            if rho < 2: a.nop(1)
            if rho == 2: a('s_mov_b64 exec, s[56:57]')
        vq.wait('wf')
        a('s_barrier')
        Lnf = a.newlabel('noflag')
        a(f's_cmp_lg_u32 {sW}, 0')
        a(f's_cbranch_scc1 {Lnf}')
        a('s_lshl_b32 s53, s2, 2')
        a(f's_add_u32 s53, s53, {F_W}')
        a(f'v_add_u32 v85, {sXCC}, v{vTAG}')
        a(f'buffer_store_dword v85, off, {WS}, s53 sc1')
        a.label(Lnf)
        self.stamp('w published')

    def dest_touch_addr(self):
        a = self.a
        a(f's_lshl_b32 s53, {sC}, 1')
        a(f's_add_u32 s53, s53, {sT1}')
        a('s_mul_i32 s53, s53, 448')
        a(f's_lshl_b32 s54, {sJ}, 2')
        a(f's_add_u32 s54, s54, {sW}')
        a('s_min_u32 s54, s54, 55')
        a('s_lshl_b32 s54, s54, 1')
        a('s_add_u32 s53, s53, s54')
        a('s_lshl_b32 s53, s53, 10')
        a(f's_add_u32 s53, s53, {H0}')
        a('v_lshrrev_b32 v27, 4, v1')
        a('v_mul_u32_u24 v27, 114688 & 0xffffff, v27') if False else None
        a('s_mov_b32 s54, 114688')
        a('v_mul_lo_u32 v27, v27, s54')
        a('v_and_b32 v28, 15, v1')
        a('v_lshl_add_u32 v27, v28, 7, v27')
        a('v_add_u32 v27, s53, v27')
        a(f's_lshl_b32 s53, {sC}, 8')
        a(f's_lshl_b32 s54, {sR}, 3')
        a('s_add_u32 s53, s53, s54')
        a(f's_add_u32 s53, s53, {sW}')
        a('s_lshl_b32 s53, s53, 10')
        a(f's_add_u32 s53, s53, {Y0}')
        a('v_and_b32 v28, 7, v1')
        a('v_lshlrev_b32 v28, 7, v28')
        a('v_bfe_u32 v29, v1, 3, 1')
        a('v_lshl_add_u32 v28, v29, 12, v28')
        a('v_bfe_u32 v29, v1, 4, 1')
        a(f'v_mul_u32_u24 v29, {X1 - Y0}, v29')
        a('v_add_u32 v28, v28, v29')
        a('v_add_u32 v28, s53, v28')
        a(f's_lshr_b32 s53, {sR}, 3')
        a('s_lshl_b32 s53, s53, 5')
        a(f's_lshl_b32 s54, {sW}, 3')
        a('s_add_u32 s53, s53, s54')
        a('v_and_b32 v29, 7, v1')
        a('v_add_u32 v29, s53, v29')
        a('v_lshrrev_b32 v26, 2, v29')
        a('v_lshlrev_b32 v26, 3, v26')
        a('v_and_b32 v29, 3, v29')
        a('v_add_u32 v29, v29, v26')
        a('v_bfe_u32 v26, v1, 3, 1')
        a('v_lshl_add_u32 v29, v26, 2, v29')
        a(f's_lshl_b32 s53, {sC}, 8')
        a('v_add_u32 v29, s53, v29')
        a('v_lshlrev_b32 v29, 10, v29')
        a(f's_and_b32 s53, {sR}, 7')
        a('s_lshl_b32 s53, s53, 7')
        a(f's_add_u32 s53, s53, {X2}')
        a('v_add_u32 v29, s53, v29')
    def dest_touch_issue(self):
        a = self.a
        for r in (27, 28, 29):
            a(f'buffer_load_dword v15, v{r}, {WS}, 0 offen'); self.vq.issue('touch')

    def weight_state_init(self):
        a = self.a
        a(f's_cmp_ge_u32 {sR}, 14')
        a(f's_cselect_b32 {sT1}, 1, 0')
        a(f's_mul_i32 s53, {sT1}, 14')
        a(f's_sub_u32 {sJ}, {sR}, s53')
        a(f's_lshl_b32 s14, {sJ}, 2')
        a(f's_add_u32 s14, s14, {sW}')
        a('s_min_u32 s14, s14, 55')
        a('s_lshl_b32 s14, s14, 10')
        a(f's_add_u32 s14, s14, {W1F}')
        a(f's_and_b32 s15, {sR}, 7')
        a('s_lshl_b32 s15, s15, 1')
        a(f's_lshl_b32 s53, {sW}, 4')
        a('s_add_u32 s15, s15, s53')
        a('s_lshl_b32 s15, s15, 10')
        a(f's_add_u32 s15, s15, {W2F}')
        self.wlist = [('w1', k) for k in range(32)] + [('w2', nt, i) for i in range(28) for nt in range(2)]
    def weight_batch(self, n):
        a = self.a
        for _ in range(n):
            if not self.wlist: return
            it = self.wlist.pop(0)
            if it[0] == 'w1':
                k = it[1]
                a(f's_add_u32 s13, s14, {k*56*1024}')
                self.vload(W1reg(k), f'v{vL16}', WS, 's13', 0, ' sc1', tag='w')
            else:
                _, nt, i = it
                a(f's_add_u32 s13, s15, {i*64*1024}')
                self.vload(W2reg(nt, i), f'v{vL16}', WS, 's13', nt*1024, ' sc1', tag='w')

    def conv(self):
        a = self.a; vq = self.vq; o = self.o
        a(f's_lshl_b32 s53, {sC}, 7')
        a(f's_add_u32 s53, s53, {F_PREP}')
        a('v_and_b32 v5, 31, v1')
        a('v_lshlrev_b32 v5, 2, v5')
        a('v_add_u32 v5, s53, v5')
        self.poll(5, 8)
        self.stamp('prep flags seen')
        a(f's_lshl_b32 s53, {sC}, 5')
        a(f's_add_u32 s53, s53, {sR}')
        a('s_lshl_b32 s61, s53, 7')
        a('s_lshl_b32 s53, s53, 13')
        a(f's_add_u32 s53, s53, {XR}')
        a('v_lshlrev_b32 v5, 4, v0')
        self.vload('v[8:11]', 'v5', WS, 's53', 0, ' sc1', tag='x0')
        a('s_add_u32 s53, s53, 4096')
        self.vload('v[12:15]', 'v5', WS, 's53', 0, ' sc1', tag='x1')
        a(f'v_add_u32 v132, {F_W}, v{vL16}')
        a(f'buffer_load_dwordx4 v[128:131], v132, {WS}, 0 offen sc1'); vq.issue('fw')
        a('v_lshrrev_b32 v4, 2, v0')
        a('v_mul_u32_u24 v4, 96, v4')
        a('v_and_b32 v5, 3, v0')
        a('v_lshl_add_u32 v4, v5, 4, v4')
        vq.wait('x0')
        a(f'ds_write_b128 v4, v[8:11] offset:{L_XB}')
        vq.wait('x1')
        a(f'ds_write_b128 v4, v[12:15] offset:{L_XB + XBS}')
        a(f's_lshr_b32 s67, {sW}, 1')
        a(f's_and_b32 s59, {sW}, 1')
        a('v_and_b32 v4, 15, v1')
        a('v_lshrrev_b32 v5, 4, v1')
        a('v_and_b32 v6, 7, v4')
        a(f'v_mul_u32_u24 v6, {CS}, v6')
        a('v_and_b32 v7, 8, v4')
        a('v_lshl_add_u32 v7, v5, 3, v7')
        a('v_lshl_add_u32 v6, v7, 1, v6')
        a(f's_mul_i32 s55, s67, {8*CS}')
        a('s_lshl_b32 s56, s59, 5')
        a('s_add_u32 s55, s55, s56')
        a(f's_add_u32 s55, s55, {L_TOEP}')
        a('v_add_u32 v6, s55, v6')
        a('v_sub_u32 v7, 15, v4')
        a('v_mul_u32_u24 v7, 96, v7')
        a('v_lshl_add_u32 v7, v5, 4, v7')
        a(f's_mul_i32 s55, s67, {XBS}')
        a(f's_add_u32 s55, s55, {L_XB}')
        a('v_add_u32 v7, s55, v7')
        a('s_waitcnt lgkmcnt(0)')
        a('s_barrier')
        for i in range(16): a(f'v_mov_b32 v{16+i}, 0')
        a.nop(1)
        self.stamp('x in lds')
        wb1 = o.get('wb1', 18)
        def Er(m, j): b = 32 + 32*(m % 3) + 4*j; return f'v[{b}:{b+3}]'
        def Fr(m, j): b = 32 + 32*(m % 3) + 16 + 4*j; return f'v[{b}:{b+3}]'
        def gloads(m):
            l = []
            for j in range(4):
                e = 16*j - m
                l.append(f'ds_read_b128 {Fr(m,j)}, v6 offset:{64*(m+16*j)}')
                l.append(f'ds_read_b128 {Er(m,j)}, v7 offset:{(48-e)*96}')
            return l
        for l in gloads(0): a(l)
        for l in gloads(1)[:7]: a(l)
        first_extra = gloads(1)[7:]
        for m in range(16):
            nxt = (first_extra if m == 0 else []) + (gloads(m+2) if m + 2 < 16 else [])
            if m == 0: a('s_waitcnt lgkmcnt(7)')
            elif m < 15: a('s_waitcnt lgkmcnt(8)')
            else: a('s_waitcnt lgkmcnt(0)')
            mf = []
            for j in range(4):
                for c in range(j, 4):
                    mf.append(f'v_mfma_f32_16x16x32_bf16 v[{16+4*c}:{19+4*c}], {Fr(m,j)}, {Er(m,c-j)}, v[{16+4*c}:{19+4*c}]')
            if m == o.get('fwslot', 3): self.check_fw(128, 132)
            for i, ins in enumerate(mf):
                a(ins)
                if nxt: a(nxt.pop(0))
                if m >= o.get('fwslot', 3) and m <= o.get('wb1last', 12) and i in (3, 8) and wb1 > 0:
                    self.weight_batch(1); wb1 -= 1
            assert not nxt
        self.weight_batch(wb1)
        self.stamp('conv mfma done')
        a('v_sub_u32 v8, 15, v4')
        a('v_mul_u32_u24 v8, 96, v8')
        a('v_lshlrev_b32 v9, 3, v5')
        a('v_sub_u32 v8, v8, v9')
        a(f's_mul_i32 s55, s67, {XBS}')
        a(f's_add_u32 s55, s55, {L_XB + 56}')
        a('s_lshl_b32 s56, s59, 5')
        a('s_sub_u32 s55, s55, s56')
        a('v_add_u32 v8, s55, v8')
        for c in range(4):
            a(f'ds_read_b64 v[{48+2*c}:{49+2*c}], v8 offset:{(48-16*c)*96}')
        a('s_lshl_b32 s55, s60, 16')
        a('s_and_b32 s56, s60, 0xffff0000')
        a('s_cmp_eq_u32 s67, 0')
        a('s_cselect_b32 s55, s55, s56')
        a('v_lshrrev_b32 v9, 1, v5')
        a('v_lshlrev_b32 v9, 1, v9')
        a('s_lshl_b32 s56, s59, 2')
        a('s_add_u32 s56, s56, s67')
        a('v_add_u32 v9, s56, v9')
        a('v_and_b32 v10, 7, v4')
        a('v_xor_b32 v9, v9, v10')
        a('v_lshlrev_b32 v9, 4, v9')
        a('v_lshl_add_u32 v9, v4, 7, v9')
        a('v_and_b32 v10, 1, v5')
        a('v_lshl_add_u32 v9, v10, 3, v9')
        a('s_waitcnt lgkmcnt(0)')
        for c in range(4):
            d0, d1 = 48+2*c, 49+2*c
            acc = 16+4*c
            a(f'v_and_b32 v60, 0xffff0000, v{d1}')
            a(f'v_lshlrev_b32 v61, 16, v{d1}')
            a(f'v_and_b32 v62, 0xffff0000, v{d0}')
            a(f'v_lshlrev_b32 v63, 16, v{d0}')
            for r in range(4):
                a(f'v_fma_f32 v{60+r}, v{60+r}, s55, v{acc+r}')
            a(f'v_cvt_pk_bf16_f32 v{64+2*c}, v60, v61')
            a(f'v_cvt_pk_bf16_f32 v{65+2*c}, v62, v63')
            a(f'ds_write_b64 v9, v[{64+2*c}:{65+2*c}] offset:{L_GT + 16*c*128}')
        a('v_lshrrev_b32 v8, 3, v0')
        a('v_and_b32 v9, 7, v0')
        a('v_and_b32 v10, 7, v8')
        a('v_xor_b32 v10, v10, v9')
        a('v_lshlrev_b32 v10, 4, v10')
        a('v_lshl_add_u32 v10, v8, 7, v10')
        a('v_lshlrev_b32 v11, 15, v8')
        a('v_lshl_add_u32 v11, v9, 4, v11')
        a('s_waitcnt lgkmcnt(0)')
        a('s_barrier')
        a(f'ds_read_b128 v[48:51], v10 offset:{L_GT}')
        a(f'ds_read_b128 v[52:55], v10 offset:{L_GT + 4096}')
        a(f's_add_u32 s53, s61, {GB}')
        a('s_waitcnt lgkmcnt(1)')
        self.vstore('v[48:51]', 'v11', WS, 's53', 0, ' sc1', tag='g')
        a(f's_add_u32 s53, s53, {32*32768}')
        a('s_waitcnt lgkmcnt(0)')
        self.vstore('v[52:55]', 'v11', WS, 's53', 0, ' sc1', tag='g')
        self.mk_srd(SA, sQ, 2097152)
        a(f's_lshl_b32 s53, {sC}, 8')
        a(f's_lshl_b32 s54, {sR}, 3')
        a('s_add_u32 s53, s53, s54')
        a(f's_add_u32 s53, s53, {sW}')
        a('s_lshl_b32 s53, s53, 10')
        self.vload('v[8:11]', f'v{vL16}', srd(SA), 's53', 0, tag='q')
        a('s_add_u32 s53, s53, 4096')
        self.vload('v[12:15]', f'v{vL16}', srd(SA), 's53', 0, tag='q')
        a('s_barrier')
        self.weight_batch(o.get('wb2', 14))
        self.stamp('conv published')

    def finish(self):
        a = self.a
        a.label('L_fin')
        Ln = a.newlabel('noep')
        a('s_cmp_lg_u32 s2, 0')
        a(f's_cbranch_scc1 {Ln}')
        a(f's_cmp_lg_u32 {sW}, 0')
        a(f's_cbranch_scc1 {Ln}')
        a(f'buffer_store_dword v{vTAG}, off, {WS}, 0 sc1')
        a.label(Ln)
        if self.stamps:
            self.stamp('end')
            a('s_memtime s[62:63]'); a('s_waitcnt lgkmcnt(0)'); a('s_sub_u32 s100, s62, s100')
            a('s_lshl_b32 s53, s2, 2')
            a(f's_add_u32 s53, s53, {sW}')
            a('s_lshl_b32 s53, s53, 7')
            a(f's_add_u32 s53, s53, {TS}')
            a('s_mov_b64 exec, 1')
            a('v_mov_b32 v4, 0')
            for i in range(self.nstamp):
                a(f'v_mov_b32 v5, s{76+i}')
                a(f'buffer_store_dword v5, v4, {WS}, s53 offen offset:{4*i}')
                a.nop(1)
            a(f'v_mov_b32 v5, {sFAST}')
            a(f'buffer_store_dword v5, v4, {WS}, s53 offen offset:116')
            a.nop(1)
            a(f'v_mov_b32 v5, s100')
            a(f'buffer_store_dword v5, v4, {WS}, s53 offen offset:120')
            a.nop(1)
            a(f'v_mov_b32 v5, {sABORT}')
            a(f'buffer_store_dword v5, v4, {WS}, s53 offen offset:124')
        a('s_waitcnt vmcnt(0)')
        a.label('L_end')
        a('s_endpgm')
        a.label('L_code_end')

    def build(self):
        self.prologue()
        self.prep()
        if self.stop != 'prep': self.conv()
        if self.stop not in ('prep', 'conv'):
            from gen3_mlp import emit_mlp
            emit_mlp(self)
        self.finish()
        body = self.a.text()
        hdr = open('cdna_kernels/' + NAME[:-7] + '.s.ref').read().split('; Override launch')[0]
        s = hdr + f'; @launch grid=(256,1,1) block=(256,1,1) lds={LDS_SIZE}\n'
        s += f'''.amdgcn_target "amdgcn-amd-amdhsa--gfx950"
.text
.globl {NAME}
.p2align 8
.type {NAME},@function
{NAME}:
.set CODE_BYTES, {'L_slow' if 'L_slow:' in body else 'L_code_end'} - {NAME}
''' + body + f'''.section .rodata,"a"
.p2align 6
.amdhsa_kernel {NAME}
  .amdhsa_next_free_vgpr 512
  .amdhsa_next_free_sgpr 102
  .amdhsa_accum_offset 256
  .amdhsa_group_segment_fixed_size 0
  .amdhsa_kernarg_size 112
  .amdhsa_user_sgpr_count 2
  .amdhsa_user_sgpr_kernarg_segment_ptr 1
  .amdhsa_system_sgpr_workgroup_id_x 1
.end_amdhsa_kernel
'''
        return s

def main():
    ap = argparse.ArgumentParser()
    ap.add_argument('--stop', default='end')
    ap.add_argument('--stamps', action='store_true')
    ap.add_argument('-o', default='k.s')
    ap.add_argument('--opt', action='append', default=[])
    args = ap.parse_args()
    opts = {}
    for kv in args.opt:
        k, v = kv.split('='); opts[k] = int(v) if v.lstrip('-').isdigit() else v
    g = Gen(stop=args.stop, stamps=args.stamps, opts=opts)
    s = g.build()
    probs = check_hazards(g.a.lines)
    for p in probs: print(p)
    print(f'{len(g.a.lines)} lines, {len(probs)} hazards')
    open(args.o, 'w').write(s)
    open(args.o + '.stamps', 'w').write('\n'.join(g.stamp_names))

if __name__ == '__main__':
    main()
```

```python
import sys, argparse, struct
from asmlib import Asm, check_hazards

NAME = 'interleave_layers__ssm_conv_h3__mixer_channel_mlp__prompt_kernel'

WS_EPOCH = 0x0
F_PREP = 0x1000
F_CONV = 0x2000
F_W = 0x3000
DUMMY2 = 0x2D00000
F_Y    = 0x4000
F_H    = 0x8000
F_X    = 0x10000
XR     = 0x100000
W1F    = 0x300000
W2F    = 0x500000
GB     = 0x700000
Y0     = 0x900000
X1     = 0xD00000
X2     = 0xF00000
H0     = 0x1400000
TS     = 0x2400000
WS_SIZE = 0x10000000

L_KVT = 0
L_W1R = 8192
L_W2R = 16384
L_GT  = 0
L_XB = 25600
XBS = 79*96
L_TOEP = 40960
CS = 4160
LDS_SIZE = 163840
L_G = 155648
L_YH = [0, 65536]

sQ, sK, sV, sSK, sSSM, sD, sBX, sW1 = 16, 18, 20, 22, 24, 26, 28, 30
sB1, sW2, sB2, sOUT, sDBG, sWSP = 32, 34, 36, 38, 40, 42
WS = 's[44:47]'
sC, sR, sW, sTAG, sABORT = 's48', 's49', 's50', 's51', 's52'
sLAYER, sT1, sJ = 's64', 's65', 's66'
sXCC, sFAST = 's101', 's3'
SA, SB, SC_, SD_ = 4, 8, 12, 72
def srd(n): return f's[{n}:{n+3}]'
W1B = 128
vL16, vTAG = 2, 3
def W1reg(k): return f'v[{W1B+4*k}:{W1B+4*k+3}]'
def W2reg(nt, i):
    b = (nt*28 + i)*4
    return f'a[{b}:{b+3}]'
def f2u(x): return '0x%08x' % struct.unpack('<I', struct.pack('<f', x))[0]
C1 = 2*0.7978845608028654*1.4426950408889634
C2 = C1*0.044715

class VQ:
    def __init__(self, a): self.a = a; self.ops = []
    def issue(self, tag): self.ops.append(tag)
    def wait(self, tag):
        idx = max(i for i, t in enumerate(self.ops) if t == tag) if tag in self.ops else None
        if idx is None: return
        n = len(self.ops) - 1 - idx
        assert n <= 63, n
        self.a(f's_waitcnt vmcnt({n})')
        self.ops = self.ops[idx+1:]
    def drain(self):
        self.a('s_waitcnt vmcnt(0)'); self.ops = []
    def reset(self): self.ops = []

class Gen:
    def __init__(self, stop='end', stamps=False, opts=None):
        self.a = Asm(); self.vq = VQ(self.a)
        self.stop = stop; self.stamps = stamps
        self.nstamp = 0; self.stamp_names = []
        self.sc = ' sc1'; self.fsc = ' sc1'; self.fast = False
        self.o = opts or {}

    def mk_srd(self, n, ptr, size, add=None):
        a = self.a
        if add is None:
            a(f's_mov_b32 s{n}, s{ptr}')
            a(f's_and_b32 s{n+1}, s{ptr+1}, 0xffff')
        else:
            a(f's_add_u32 s{n}, s{ptr}, {add}')
            a(f's_addc_u32 s{n+1}, s{ptr+1}, 0')
            a(f's_and_b32 s{n+1}, s{n+1}, 0xffff')
        a(f's_mov_b32 s{n+2}, {size}')
        a(f's_mov_b32 s{n+3}, 0x00020000')

    def dstamp(self, phase, name):
        if self.o.get('detail') == phase: self.stamp(name, False, force=True)
    def stamp(self, name='', inloop=False, force=False):
        if not self.stamps: return
        if self.o.get('detail') and not force and name not in ('start', 'end'): return
        inloop = False
        i = self.nstamp; self.nstamp += 1
        assert self.nstamp <= 24, name
        self.stamp_names.append(name)
        a = self.a
        a(f's_waitcnt lgkmcnt(0)')
        a(f's_memtime s[62:63]' if self.o.get('cyc') else f's_memrealtime s[62:63]')
        a(f's_waitcnt lgkmcnt(0)')
        if inloop:
            a('s_cmp_eq_u32 s64, 0')
            a(f's_cselect_b32 s{76+i}, s62, s{76+i}')
            a(f's_cselect_b32 s{77+i}, s{77+i}, s62')
        else:
            a(f's_mov_b32 s{76+i}, s62')

    def vload(self, dst, voff, sr, soff, imm=0, mods='', tag='ld', w='x4'):
        o = f' offset:{imm}' if imm else ''
        op = {'x4': 'buffer_load_dwordx4', 'x2': 'buffer_load_dwordx2', 'x1': 'buffer_load_dword'}[w]
        self.a(f'{op} {dst}, {voff}, {sr}, {soff} offen{o}{mods}')
        self.vq.issue(tag)
    def vstore(self, src, voff, sr, soff, imm=0, mods='', tag='st'):
        o = f' offset:{imm}' if imm else ''
        self.a(f'buffer_store_dwordx4 {src}, {voff}, {sr}, {soff} offen{o}{mods}')
        self.vq.issue(tag)

    def poll(self, vaddr, vtmp, nlanes=64, x4=False):
        a = self.a
        L = a.newlabel('poll'); D = a.newlabel('polld')
        a(f's_mov_b32 s53, 0')
        if nlanes < 64:
            a(f's_mov_b64 s[56:57], exec')
            a(f's_mov_b64 exec, {hex((1 << nlanes) - 1)}')
        a.label(L)
        if x4:
            a(f'buffer_load_dwordx4 v[{vtmp}:{vtmp+3}], v{vaddr}, {WS}, 0 offen sc1')
            a(f's_waitcnt vmcnt(0)')
            a(f'v_xor_b32 v{vtmp}, {sTAG}, v{vtmp}')
            a(f'v_xor_b32 v{vtmp+1}, {sTAG}, v{vtmp+1}')
            a(f'v_xor_b32 v{vtmp+2}, {sTAG}, v{vtmp+2}')
            a(f'v_xor_b32 v{vtmp+3}, {sTAG}, v{vtmp+3}')
            a(f'v_or_b32 v{vtmp}, v{vtmp}, v{vtmp+1}')
            a(f'v_or3_b32 v{vtmp}, v{vtmp}, v{vtmp+2}, v{vtmp+3}')
            a(f'v_cmp_ne_u32 vcc, 0, v{vtmp}')
        else:
            a(f'buffer_load_dword v{vtmp}, v{vaddr}, {WS}, 0 offen sc1')
            a(f's_waitcnt vmcnt(0)')
            a(f'v_cmp_ne_u32 vcc, {sTAG}, v{vtmp}')
        a(f's_cbranch_vccz {D}')
        a(f's_add_u32 s53, s53, 1')
        a(f's_cmp_lg_u32 {sABORT}, 0')
        a(f's_cbranch_scc1 {D}')
        a(f's_cmp_lt_u32 s53, 0x8000')
        a(f's_cbranch_scc1 {L}')
        a(f's_mov_b32 {sABORT}, 1')
        a.label(D)
        if nlanes < 64:
            a(f's_mov_b64 exec, s[56:57]')
        self.vq.reset()

    def poll_prep(self, vaddr, vt):
        a = self.a
        L = a.newlabel('poll'); D = a.newlabel('polld')
        a(f's_mov_b32 s53, 0')
        a.label(L)
        a(f'buffer_load_dwordx4 v[{vt}:{vt+3}], v{vaddr}, {WS}, 0 offen sc1')
        a(f's_waitcnt vmcnt(0)')
        for i in range(4): a(f'v_subrev_u32 v{vt+i}, {sTAG}, v{vt+i}')
        a(f'v_or_b32 v{vt+4}, v{vt}, v{vt+1}')
        a(f'v_or3_b32 v{vt+4}, v{vt+4}, v{vt+2}, v{vt+3}')
        a(f'v_cmp_lt_u32 vcc, 15, v{vt+4}')
        a(f's_cbranch_vccz {D}')
        a(f's_add_u32 s53, s53, 1')
        a(f's_cmp_lg_u32 {sABORT}, 0')
        a(f's_cbranch_scc1 {D}')
        a(f's_cmp_lt_u32 s53, 0x8000')
        a(f's_cbranch_scc1 {L}')
        a(f's_mov_b32 {sABORT}, 1')
        a.label(D)
        self.vq.reset()

    def dyn_role(self, vt):
        a = self.a
        lo, hi, t, u = vt+5, vt+6, vt+7, vt+8
        a(f'v_mov_b32 v{lo}, 0'); a(f'v_mov_b32 v{hi}, 0')
        for i in range(4):
            a(f'v_and_b32 v{t}, 3, v{vt+i}')
            a(f'v_lshlrev_b32 v{t}, 3, v{t}')
            a(f'v_lshlrev_b32 v{t}, v{t}, 1') if False else a(f'v_lshlrev_b32 v{t}, v{t}, v{vt+9}')
            a(f'v_lshrrev_b32 v{u}, 2, v{vt+i}')
            a(f'v_cmp_eq_u32 vcc, 0, v{u}')
            a.nop(2)
            a(f'v_cndmask_b32 v{vt+10}, 0, v{t}, vcc')
            a(f'v_cmp_eq_u32 vcc, 1, v{u}')
            a(f'v_add_u32 v{lo}, v{lo}, v{vt+10}')
            a.nop(1)
            a(f'v_cndmask_b32 v{vt+10}, 0, v{t}, vcc')
            a(f'v_add_u32 v{hi}, v{hi}, v{vt+10}')
        steps = ['quad_perm:[1,0,3,2] row_mask:0xf bank_mask:0xf', 'quad_perm:[2,3,0,1] row_mask:0xf bank_mask:0xf',
                 'row_half_mirror row_mask:0xf bank_mask:0xf', 'row_mirror row_mask:0xf bank_mask:0xf',
                 'row_bcast:15 row_mask:0xa bank_mask:0xf', 'row_bcast:31 row_mask:0xc bank_mask:0xf']
        a.nop(2)
        for st in steps:
            a(f'v_add_u32_dpp v{lo}, v{lo}, v{lo} {st}')
            a(f'v_add_u32_dpp v{hi}, v{hi}, v{hi} {st}')
            a.nop(1)
        a(f'v_readlane_b32 s56, v{lo}, 63')
        a(f'v_readlane_b32 s57, v{hi}, 63')
        a(f'v_lshlrev_b32 v{t}, 2, v1')
        a('s_mov_b32 s58, 0')
        for i in range(4):
            a(f'v_cmp_eq_u32 vcc, {sXCC}, v{vt+i}')
            a(f'v_add_u32 v{u}, {i}, v{t}')
            a(f'v_cmp_gt_u32 s[54:55], s2, v{u}')
            a.nop(1)
            a('s_and_b64 s[54:55], s[54:55], vcc')
            a('s_bcnt1_i32_b64 s55, s[54:55]')
            a('s_add_u32 s58, s58, s55')
        a('s_cmp_eq_u32 s56, 0x20202020')
        a(f's_cselect_b32 {sFAST}, 1, 0')
        a('s_cmp_eq_u32 s57, 0x20202020')
        a(f's_cselect_b32 {sFAST}, {sFAST}, 0')
        a(f's_cmp_eq_u32 {sABORT}, 0')
        a(f's_cselect_b32 {sFAST}, {sFAST}, 0')
        if self.o.get('force_slow'): a(f's_mov_b32 {sFAST}, 0')
        a(f's_cmp_eq_u32 {sFAST}, 1')
        a(f's_cselect_b32 {sC}, {sXCC}, {sC}')
        a(f's_cselect_b32 {sR}, s58, {sR}')

    def check_fw(self, vt, vaddr):
        a = self.a
        self.vq.wait('fw')
        L = a.newlabel('fw'); D = a.newlabel('fwd')
        a('s_mov_b32 s53, 0')
        a.label(L)
        for i in range(4): a(f'v_subrev_u32 v{vt+i}, {sTAG}, v{vt+i}')
        a(f'v_or_b32 v{vt+5}, v{vt}, v{vt+1}')
        a(f'v_or3_b32 v{vt+5}, v{vt+5}, v{vt+2}, v{vt+3}')
        a(f'v_cmp_lt_u32 vcc, 15, v{vt+5}')
        a(f's_cbranch_vccz {D}')
        a('s_add_u32 s53, s53, 1')
        a(f's_cmp_lg_u32 {sABORT}, 0')
        a(f's_cbranch_scc1 {D}')
        a('s_cmp_lt_u32 s53, 0x8000')
        a(f's_cbranch_scc0 {D}_ab')
        a(f'buffer_load_dwordx4 v[{vt}:{vt+3}], v{vaddr}, {WS}, 0 offen sc1')
        a('s_waitcnt vmcnt(0)')
        a(f's_branch {L}')
        a.label(D + '_ab')
        a(f's_mov_b32 {sABORT}, 1')
        a.label(D)
        a(f'v_mov_b32 v{vt+9}, 1')
        self.dyn_role(vt)
        self.weight_state_init()

    def flag(self, soff, sc=None):
        sc = self.fsc if sc is None else sc
        self.a(f'buffer_store_dword v{vTAG}, off, {WS}, {soff}{sc}')
        self.vq.issue('flag')

    def reduce_multi(self, regs, sdst):
        a = self.a
        steps = ['quad_perm:[1,0,3,2] row_mask:0xf bank_mask:0xf', 'quad_perm:[2,3,0,1] row_mask:0xf bank_mask:0xf',
                 'row_half_mirror row_mask:0xf bank_mask:0xf', 'row_mirror row_mask:0xf bank_mask:0xf',
                 'row_bcast:15 row_mask:0xa bank_mask:0xf', 'row_bcast:31 row_mask:0xc bank_mask:0xf']
        pad = max(0, 3 - len(regs))
        a.nop(max(0, 2 - (len(regs) - 1)) if len(regs) < 3 else 0)
        for s in steps:
            for r in regs:
                a(f'v_add_f32_dpp v{r}, v{r}, v{r} {s}')
            if pad: a.nop(pad)
        if len(regs) < 2: a.nop(1)
        for r, s in zip(regs, sdst):
            a(f'v_readlane_b32 s{s}, v{r}, 63')
        a.nop(2)

    def ln_multi(self, rows):
        a = self.a
        def pr(b): return f'v[{b}:{b+1}]'
        for (x, z, t) in rows:
            a(f'v_pk_add_f32 {pr(t)}, {pr(x)}, {pr(x+2)}')
            a(f'v_pk_mul_f32 {pr(t+2)}, {pr(x)}, {pr(x)}')
        for (x, z, t) in rows:
            a(f'v_pk_add_f32 {pr(t+4)}, {pr(x+4)}, {pr(x+6)}')
            a(f'v_pk_fma_f32 {pr(t+2)}, {pr(x+2)}, {pr(x+2)}, {pr(t+2)}')
        for (x, z, t) in rows:
            a(f'v_pk_add_f32 {pr(t)}, {pr(t)}, {pr(t+4)}')
            a(f'v_pk_fma_f32 {pr(t+2)}, {pr(x+4)}, {pr(x+4)}, {pr(t+2)}')
        for (x, z, t) in rows:
            a(f'v_add_f32 v{t}, v{t}, v{t+1}')
            a(f'v_pk_fma_f32 {pr(t+2)}, {pr(x+6)}, {pr(x+6)}, {pr(t+2)}')
        for (x, z, t) in rows:
            a(f'v_add_f32 v{t+2}, v{t+2}, v{t+3}')
        regs = []; sd = []
        for i, (x, z, t) in enumerate(rows):
            regs += [t, t+2]; sd += [58 - 2*i, 59 - 2*i]
        self.reduce_multi(regs, sd)
        for i, (x, z, t) in enumerate(rows):
            s1, s2 = sd[2*i], sd[2*i+1]
            a(f'v_mul_f32 v{t+4}, s{s1}, v4')
            a(f'v_mul_f32 v{t+2}, s{s2}, v4')
        for (x, z, t) in rows:
            a(f'v_fma_f32 v{t+2}, -v{t+4}, v{t+4}, v{t+2}')
        for (x, z, t) in rows:
            a(f'v_max_f32 v{t+2}, 0, v{t+2}')
        for (x, z, t) in rows:
            a(f'v_add_f32 v{t+2}, 0x3727c5ac, v{t+2}')
        for (x, z, t) in rows:
            a(f'v_rsq_f32 v{t+2}, v{t+2}')
        if len(rows) < 2: a.nop(1)
        for (x, z, t) in rows:
            a(f'v_mul_f32 v{t+4}, v{t+4}, v{t+2}')
        for (x, z, t) in rows:
            for i in range(4):
                a(f'v_pk_fma_f32 {pr(z+2*i)}, {pr(x+2*i)}, {pr(t+2)}, {pr(t+4)} op_sel_hi:[1,0,0] neg_lo:[0,0,1] neg_hi:[0,0,1]')

    def unpack8(self, src, dst):
        a = self.a
        for i in range(4):
            a(f'v_lshlrev_b32 v{dst+2*i}, 16, v{src+i}')
            a(f'v_and_b32 v{dst+2*i+1}, 0xffff0000, v{src+i}')
    def pack8(self, src, dst):
        a = self.a
        for i in range(4):
            a(f'v_cvt_pk_bf16_f32 v{dst+i}, v{src+2*i}, v{src+2*i+1}')

    def prologue(self):
        a = self.a
        a('s_cmp_ge_u32 s2, 256')
        a('s_cbranch_scc1 L_end')
        a('s_load_dwordx16 s[16:31], s[0:1], 0')
        a('s_load_dwordx8 s[32:39], s[0:1], 64')
        a('s_load_dwordx4 s[40:43], s[0:1], 96')
        a('s_getpc_b64 s[68:69]')
        a(f's_and_b32 {sC}, s2, 7')
        a(f's_lshr_b32 {sR}, s2, 3')
        a(f's_mov_b32 {sABORT}, 0')
        a(f's_getreg_b32 {sXCC}, hwreg(HW_REG_XCC_ID)')
        a(f's_min_u32 {sXCC}, {sXCC}, 8')
        a('v_lshrrev_b32 v4, 6, v0')
        a('v_and_b32 v1, 63, v0')
        a(f'v_readfirstlane_b32 {sW}, v4')
        a(f'v_lshlrev_b32 v{vL16}, 4, v1')
        a('s_waitcnt lgkmcnt(0)')
        self.mk_srd(44, sWSP, WS_SIZE)
        self.stamp('start')
        if self.stamps:
            a('s_memtime s[62:63]'); a('s_waitcnt lgkmcnt(0)'); a('s_mov_b32 s100, s62')
        a(f'buffer_load_dword v{vTAG}, off, {WS}, 0 sc1')
        self.vq.issue('epoch')

    def code_prefetch(self):
        a = self.a
        a('s_and_b32 s68, s68, 0xffffff00')
        a('s_and_b32 s69, s69, 0xffff')
        a(f's_mov_b32 s{SD_}, s68'); a(f's_mov_b32 s{SD_+1}, s69')
        a(f's_mov_b32 s{SD_+2}, CODE_BYTES')
        a(f's_mov_b32 s{SD_+3}, 0x00020000')
        a('v_lshlrev_b32 v87, 7, v0')
        a(f'buffer_load_dword v88, v87, {srd(SD_)}, 0 offen'); self.vq.issue('pf')
        a('v_add_u32 v87, 0x8000, v87')
        a(f'buffer_load_dword v88, v87, {srd(SD_)}, 0 offen'); self.vq.issue('pf')

    def pretouch(self):
        a = self.a
        a(f's_min_u32 s58, {sXCC}, 7')
        a('s_lshl_b32 s53, s58, 18')
        a(f's_lshl_b32 s54, {sR}, 13')
        a('s_add_u32 s53, s53, s54')
        a('v_lshlrev_b32 v88, 7, v1')
        Ls = a.newlabel('pt')
        a(f's_cmp_lg_u32 {sW}, 3')
        a(f's_cbranch_scc1 {Ls}')
        self.mk_srd(SD_, sQ, 2097152)
        a(f'buffer_load_dword v86, v88, {srd(SD_)}, s53 offen')
        self.mk_srd(SD_, sB1, 3584)
        a(f'buffer_load_dword v86, v88, {srd(SD_)}, 0 offen')
        self.mk_srd(SD_, sB2, 1024)
        a(f'buffer_load_dword v86, v88, {srd(SD_)}, 0 offen')
        self.mk_srd(SD_, sOUT, 2097152)
        a(f'buffer_load_dword v86, off, {srd(SD_)}, s53')
        a('v_lshlrev_b32 v87, 21, v1')
        a('v_min_u32 v87, 0x1c00000, v87')
        a(f'buffer_load_dword v86, v87, {WS}, 0 offen')
        a.label(Ls)

    def prep(self):
        a = self.a; vq = self.vq
        if self.o.get('prefetch', True): self.code_prefetch()
        a('v_lshrrev_b32 v8, 3, v0')
        a('v_and_b32 v9, 7, v0')
        a('v_lshlrev_b32 v8, 15, v8')
        a('v_lshl_add_u32 v8, v9, 4, v8')
        a(f's_lshl_b32 s53, {sC}, 5')
        a(f's_add_u32 s53, s53, {sR}')
        a('s_lshl_b32 s53, s53, 7')
        a(f's_add_u32 s53, s53, {GB}')
        for i in range(4): a(f'v_mov_b32 v{160+i}, -1')
        self.clear_g = True
        a('v_lshrrev_b32 v4, 5, v0')
        a('v_and_b32 v5, 31, v0')
        a(f's_lshl_b32 s53, {sR}, 16')
        a(f's_lshl_b32 s54, {sC}, 7')
        a('s_add_u32 s53, s53, s54')
        a('v_lshlrev_b32 v6, 13, v4')
        a('v_lshl_add_u32 v6, v5, 2, v6')
        a('v_add_u32 v6, s53, v6')
        a('v_subrev_u32 v7, 3072, v6')
        a('v_add_u32 v8, 4096, v6')
        self.mk_srd(SA, sK, 2097152)
        self.mk_srd(SB, sV, 2097152)
        self.mk_srd(SC_, sSK, 4096)
        K = 10
        for i in range(3): self.vload(f'v{K+i}', 'v7', srd(SA), 0, 1024*i, w='x1', tag='kv')
        for i in range(4): self.vload(f'v{K+3+i}', 'v6', srd(SA), 0, 1024*i, w='x1', tag='kv')
        for i in range(4): self.vload(f'v{K+7+i}', 'v8', srd(SA), 0, 1024*i, w='x1', tag='kv')
        V = 21
        for i in range(4): self.vload(f'v{V+i}', 'v6', srd(SB), 0, 1024*i, w='x1', tag='kv')
        for i in range(4): self.vload(f'v{V+4+i}', 'v8', srd(SB), 0, 1024*i, w='x1', tag='kv')
        a(f's_lshl_b32 s53, {sC}, 9')
        a('v_lshlrev_b32 v9, 4, v5')
        a('v_add_u32 v9, s53, v9')
        self.vload('v[30:33]', 'v9', srd(SC_), 0, tag='kv')
        self.mk_srd(SA, sW1, 512*1792*2)
        self.mk_srd(SB, sW2, 512*1792*2)
        a(f's_lshl_b32 s53, {sR}, 4')
        a(f's_lshl_b32 s54, {sW}, 2')
        a('s_add_u32 s53, s53, s54')
        a('s_mul_i32 s53, s53, 3584')
        a(f's_mul_i32 s54, {sC}, 448')
        a('s_add_u32 s53, s53, s54')
        a('v_lshrrev_b32 v34, 4, v1')
        a('v_and_b32 v9, 15, v1')
        a('v_mul_u32_u24 v29, 3584, v34')
        a('v_lshl_add_u32 v29, v9, 4, v29')
        a('v_add_u32 v29, s53, v29')
        self.vload('v[34:37]', 'v29', srd(SA), 0, tag='wr')
        self.vload('v[38:41]', 'v29', srd(SA), 0, 256, tag='wr')
        a('s_lshr_b32 s53, s2, 1')
        a('s_lshl_b32 s53, s53, 14')
        a('s_and_b32 s54, s2, 1')
        a('s_lshl_b32 s54, s54, 9')
        a('s_add_u32 s53, s53, s54')
        a('v_lshrrev_b32 v42, 4, v0')
        a('v_lshlrev_b32 v50, 10, v42')
        a('v_lshl_add_u32 v50, v9, 4, v50')
        a('v_add_u32 v50, s53, v50')
        self.vload('v[42:45]', 'v50', srd(SB), 0, tag='wr')
        self.vload('v[46:49]', 'v50', srd(SB), 0, 256, tag='wr')
        a(f's_lshl_b32 s53, {sC}, 5')
        a(f's_add_u32 s53, s53, {sR}')
        a('s_lshl_b32 s53, s53, 1')
        a(f's_lshr_b32 s54, {sW}, 1')
        a('s_add_u32 s53, s53, s54')
        a('s_lshl_b32 s53, s53, 12')
        self.mk_srd(SC_, sSSM, 4096, add='s53')
        a('v_and_b32 v54, 127, v0')
        a('v_lshlrev_b32 v51, 4, v54')
        a('v_subrev_u32 v52, 64, v51')
        a('v_subrev_u32 v53, 48, v51')
        HR = 56
        for rho in range(3):
            if rho:
                a(f'v_add_u32 v52, 2048, v52')
                a(f'v_add_u32 v53, 2048, v53')
            self.vload(f'v[{HR+8*rho}:{HR+8*rho+3}]', 'v52', srd(SC_), 0, tag='hr')
            self.vload(f'v[{HR+8*rho+4}:{HR+8*rho+7}]', 'v53', srd(SC_), 0, tag='hr')

        a(f's_lshl_b32 s53, {sC}, 5')
        a(f's_add_u32 s53, s53, {sR}')
        a('s_lshl_b32 s53, s53, 7')
        a(f's_add_u32 s53, s53, {GB}')
        a('v_lshrrev_b32 v85, 3, v0')
        a('v_and_b32 v86, 7, v0')
        a('v_lshlrev_b32 v85, 15, v85')
        a('v_lshl_add_u32 v85, v86, 4, v85')
        self.vstore('v[160:163]', 'v85', WS, 's53', 0, ' sc1', tag='clr')
        a(f's_add_u32 s53, s53, {32*32768}')
        self.vstore('v[160:163]', 'v85', WS, 's53', 0, ' sc1', tag='clr')
        a(f's_lshl_b32 s53, {sC}, 5')
        a(f's_add_u32 s53, s53, {sR}')
        a('s_lshl_b32 s53, s53, 2')
        a(f's_add_u32 s54, s{sD}, s53')
        a(f's_addc_u32 s55, s{sD+1}, 0')
        a('s_load_dword s60, s[54:55], 0')
        a('v_mov_b32 v80, 0'); a('v_mov_b32 v81, 0'); a('v_mov_b32 v82, 0'); a('v_mov_b32 v83, 0')
        a('v_lshlrev_b32 v84, 4, v0')
        a('v_cmp_gt_u32 vcc, 90, v0')
        a('s_and_saveexec_b64 s[56:57], vcc')
        a(f'ds_write_b128 v84, v[80:83] offset:{L_XB + 64*96}')
        a(f'ds_write_b128 v84, v[80:83] offset:{L_XB + XBS + 64*96}')
        a('s_mov_b64 exec, s[56:57]')
        vq.wait('kv')
        self.stamp('kv loaded')
        a(f'v_add_u32 v{vTAG}, 16, v{vTAG}')
        Wp = 90
        a(f'v_lshlrev_b32 v{Wp+0}, 16, v30'); a(f'v_lshlrev_b32 v{Wp+1}, 16, v32')
        a(f'v_readfirstlane_b32 {sTAG}, v{vTAG}')
        a(f'v_and_b32 v{Wp+2}, 0xffff0000, v30'); a(f'v_and_b32 v{Wp+3}, 0xffff0000, v32')
        a(f'v_lshlrev_b32 v{Wp+4}, 16, v31'); a(f'v_lshlrev_b32 v{Wp+5}, 16, v33')
        a(f'v_and_b32 v{Wp+6}, 0xffff0000, v31'); a(f'v_and_b32 v{Wp+7}, 0xffff0000, v33')
        KU = 100
        for i in range(11):
            a(f'v_lshlrev_b32 v{KU+2*i}, 16, v{K+i}')
            a(f'v_and_b32 v{KU+2*i+1}, 0xffff0000, v{K+i}')
        VU = 122
        for i in range(8):
            a(f'v_lshlrev_b32 v{VU+2*i}, 16, v{V+i}')
            a(f'v_and_b32 v{VU+2*i+1}, 0xffff0000, v{V+i}')
        AC = 140
        def pr(b): return f'v[{b}:{b+1}]'
        for t, wq in enumerate([6, 4, 2, 0]):
            for i in range(8):
                if t == 0: a(f'v_pk_mul_f32 {pr(AC+2*i)}, {pr(KU+2*(i+0))}, {pr(Wp+6)}')
                else: a(f'v_pk_fma_f32 {pr(AC+2*i)}, {pr(KU+2*(i+t))}, {pr(Wp+wq)}, {pr(AC+2*i)}')
        for i in range(8):
            a(f'v_pk_mul_f32 {pr(AC+2*i)}, {pr(AC+2*i)}, {pr(VU+2*i)}')
        for j in range(4):
            hi, lo = 7 - 2*j - 1, 7 - 2*j
            a(f'v_cvt_pk_bf16_f32 v{160+j}, v{AC+2*lo}, v{AC+2*hi}')
            a(f'v_cvt_pk_bf16_f32 v{164+j}, v{AC+2*lo+1}, v{AC+2*hi+1}')
        a('v_sub_u32 v85, 7, v4')
        a('v_and_b32 v9, 7, v5')
        a('v_xor_b32 v85, v85, v9')
        a('v_lshlrev_b32 v85, 4, v85')
        a('v_lshl_add_u32 v85, v5, 8, v85')
        a(f'ds_write_b128 v85, v[160:163] offset:{L_KVT}')
        a(f'ds_write_b128 v85, v[164:167] offset:{L_KVT+128}')
        a('v_lshrrev_b32 v85, 3, v0')
        a('v_and_b32 v9, 7, v0')
        a('v_bfe_u32 v29, v85, 1, 3')
        a('v_xor_b32 v29, v29, v9')
        a('v_lshlrev_b32 v29, 4, v29')
        a('v_lshl_add_u32 v29, v85, 7, v29')
        a(f's_lshl_b32 s53, {sC}, 18')
        a(f's_lshl_b32 s54, {sR}, 7')
        a('s_sub_u32 s53, s53, s54')
        a(f's_add_u32 s53, s53, {XR + 3968}')
        a('v_lshlrev_b32 v50, 12, v85')
        a('v_lshl_add_u32 v50, v9, 4, v50')
        a('v_add_u32 v51, 0x20000, v50')
        a('s_waitcnt lgkmcnt(0)')
        a('s_barrier')
        a(f'ds_read_b128 v[160:163], v29 offset:{L_KVT}')
        a(f'ds_read_b128 v[164:167], v29 offset:{L_KVT+4096}')
        a('s_waitcnt lgkmcnt(1)')
        self.vstore('v[160:163]', 'v50', WS, 's53', 0, ' sc1', tag='xr')
        a('s_waitcnt lgkmcnt(0)')
        self.vstore('v[164:167]', 'v51', WS, 's53', 0, ' sc1', tag='xr')
        self.stamp('xr stored')
        vq.wait('wr')
        a('v_lshrrev_b32 v85, 4, v0')
        a('v_and_b32 v9, 15, v0')
        a('v_mul_u32_u24 v29, 448, v85')
        a('v_lshl_add_u32 v29, v9, 4, v29')
        a(f'ds_write_b128 v29, v[34:37] offset:{L_W1R}')
        a('v_cmp_gt_u32 vcc, 12, v9')
        a('s_and_saveexec_b64 s[56:57], vcc')
        a(f'ds_write_b128 v29, v[38:41] offset:{L_W1R+256}')
        a('s_mov_b64 exec, s[56:57]')
        a('v_mul_u32_u24 v29, 576, v85')
        a('v_lshl_add_u32 v29, v9, 4, v29')
        a(f'ds_write_b128 v29, v[42:45] offset:{L_W2R}')
        a(f'ds_write_b128 v29, v[46:49] offset:{L_W2R+256}')
        a('v_lshrrev_b32 v85, 5, v1')
        a('v_bfe_u32 v9, v1, 2, 2')
        a('v_bfe_u32 v29, v1, 4, 1')
        a('v_and_b32 v86, 3, v1')
        a('v_lshlrev_b32 v86, 3, v86')
        a('v_lshl_add_u32 v86, v29, 5, v86')
        a('v_lshl_add_u32 v55, v85, 3, v9')
        a('v_mul_u32_u24 v55, 448, v55')
        a('v_add_u32 v55, v55, v86')
        a(f's_lshl_b32 s54, {sW}, 6')
        a('v_add_u32 v55, s54, v55')
        a('v_lshl_add_u32 v89, v85, 2, v9')
        a('v_mul_u32_u24 v89, 576, v89')
        a('v_add_u32 v89, v89, v86')
        a('v_add_u32 v89, s54, v89')
        a('s_waitcnt lgkmcnt(0)')
        vq.wait('xr')
        a('s_barrier')
        Lnf = a.newlabel('noflag')
        a(f's_cmp_lg_u32 {sW}, 0')
        a(f's_cbranch_scc1 {Lnf}')
        a(f's_lshl_b32 s53, {sC}, 5')
        a(f's_add_u32 s53, s53, {sR}')
        a('s_lshl_b32 s53, s53, 2')
        a(f's_add_u32 s53, s53, {F_PREP}')
        a(f'buffer_store_dword v{vTAG}, off, {WS}, s53 sc1')
        a.label(Lnf)
        self.stamp('prep published')
        a(f'ds_read_b64_tr_b16 v[168:169], v55 offset:{L_W1R}')
        a(f'ds_read_b64_tr_b16 v[170:171], v55 offset:{L_W1R + 4*448}')
        a(f'ds_read_b64_tr_b16 v[172:173], v55 offset:{L_W1R + 256}')
        a(f'ds_read_b64_tr_b16 v[174:175], v55 offset:{L_W1R + 4*448 + 256}')
        a(f'ds_read_b64_tr_b16 v[176:177], v89 offset:{L_W2R}')
        a(f'ds_read_b64_tr_b16 v[178:179], v89 offset:{L_W2R + 8*576}')
        a(f'ds_read_b64_tr_b16 v[180:181], v89 offset:{L_W2R + 256}')
        a(f'ds_read_b64_tr_b16 v[182:183], v89 offset:{L_W2R + 8*576 + 256}')
        a(f's_mul_i32 s53, {sC}, 7')
        a(f's_add_u32 s53, s53, {sW}')
        a(f's_mul_i32 s54, {sR}, 56')
        a('s_add_u32 s53, s53, s54')
        a('s_lshl_b32 s53, s53, 10')
        a(f's_add_u32 s53, s53, {W1F}')
        a(f's_add_u32 s55, s53, {4*1024}')
        a('s_lshl_b32 s57, s2, 12')
        a(f's_add_u32 s57, s57, {DUMMY2}')
        a(f's_cmp_eq_u32 {sW}, 3')
        a('s_cselect_b32 s55, s57, s55')
        a('s_waitcnt lgkmcnt(4)')
        self.vstore('v[168:171]', f'v{vL16}', WS, 's53', 0, ' sc1', tag='wf')
        self.vstore('v[172:175]', f'v{vL16}', WS, 's55', 0, ' sc1', tag='wf')
        a('s_lshr_b32 s54, s2, 1')
        a('s_mul_i32 s55, s54, 9363')
        a('s_lshr_b32 s55, s55, 18')
        a('s_mul_i32 s56, s55, 28')
        a('s_sub_u32 s54, s54, s56')
        a('s_lshl_b32 s54, s54, 2')
        a('s_add_u32 s54, s54, s55')
        a('s_lshl_b32 s54, s54, 4')
        a('s_and_b32 s53, s2, 1')
        a('s_lshl_b32 s53, s53, 3')
        a(f's_add_u32 s53, s53, {sW}')
        a('s_add_u32 s53, s53, s54')
        a('s_lshl_b32 s53, s53, 10')
        a(f's_add_u32 s53, s53, {W2F}')
        a('s_cmp_ge_u32 s2, 224')
        a('s_cselect_b32 s53, s57, s53')
        a('s_waitcnt lgkmcnt(0)')
        self.vstore('v[176:179]', f'v{vL16}', WS, 's53', 0, ' sc1', tag='wf')
        a(f's_add_u32 s54, s53, {4*1024}')
        a('s_cselect_b32 s53, s57, s54') if False else None
        a('s_cmp_ge_u32 s2, 224')
        a('s_cselect_b32 s53, s57, s54')
        self.vstore('v[180:183]', f'v{vL16}', WS, 's53', 0, ' sc1', tag='wf')
        if self.o.get('pretouch', True): self.pretouch()
        a('v_and_b32 v54, 127, v0')
        a('v_lshlrev_b32 v50, 4, v54')
        a(f's_lshr_b32 s53, {sW}, 1')
        a(f's_mul_i32 s53, s53, {8*CS}')
        a(f's_add_u32 s53, s53, {L_TOEP}')
        a('v_add_u32 v50, s53, v50')
        for rho in range(3):
            D = HR + 8*rho
            if rho == 2:
                a('v_cmp_gt_u32 vcc, 3, v54')
                a('s_and_saveexec_b64 s[56:57], vcc')
            O = 100
            for k in range(7): a(f'v_alignbit_b32 v{O+k}, v{D+k+1}, v{D+k}, 16')
            for k in range(1, 7): a(f'v_alignbit_b32 v{110+k-1}, v{D+k+1}, v{D+k}, 16')
            for k in range(1, 7): a(f'v_mov_b32 v{120+k-1}, v{D+k}')
            off = rho*2048
            srcs = [O+0, 120, 110, D+2, O+2, 122, 112, D+4]
            for sg in range(8):
                a(f'ds_write_b128 v50, v[{srcs[sg]}:{srcs[sg]+3}] offset:{sg*CS + off}')
            if rho < 2: a.nop(1)
            if rho == 2: a('s_mov_b64 exec, s[56:57]')
        vq.wait('wf')
        a('s_barrier')
        Lnf = a.newlabel('noflag')
        a(f's_cmp_lg_u32 {sW}, 0')
        a(f's_cbranch_scc1 {Lnf}')
        a('s_lshl_b32 s53, s2, 2')
        a(f's_add_u32 s53, s53, {F_W}')
        a(f'v_add_u32 v85, {sXCC}, v{vTAG}')
        a(f'buffer_store_dword v85, off, {WS}, s53 sc1')
        a.label(Lnf)
        self.stamp('w published')

    def dest_touch_addr(self):
        a = self.a
        a(f's_lshl_b32 s53, {sC}, 1')
        a(f's_add_u32 s53, s53, {sT1}')
        a('s_mul_i32 s53, s53, 448')
        a(f's_lshl_b32 s54, {sJ}, 2')
        a(f's_add_u32 s54, s54, {sW}')
        a('s_min_u32 s54, s54, 55')
        a('s_lshl_b32 s54, s54, 1')
        a('s_add_u32 s53, s53, s54')
        a('s_lshl_b32 s53, s53, 10')
        a(f's_add_u32 s53, s53, {H0}')
        a('v_lshrrev_b32 v27, 4, v1')
        a('v_mul_u32_u24 v27, 114688 & 0xffffff, v27') if False else None
        a('s_mov_b32 s54, 114688')
        a('v_mul_lo_u32 v27, v27, s54')
        a('v_and_b32 v28, 15, v1')
        a('v_lshl_add_u32 v27, v28, 7, v27')
        a('v_add_u32 v27, s53, v27')
        a(f's_lshl_b32 s53, {sC}, 8')
        a(f's_lshl_b32 s54, {sR}, 3')
        a('s_add_u32 s53, s53, s54')
        a(f's_add_u32 s53, s53, {sW}')
        a('s_lshl_b32 s53, s53, 10')
        a(f's_add_u32 s53, s53, {Y0}')
        a('v_and_b32 v28, 7, v1')
        a('v_lshlrev_b32 v28, 7, v28')
        a('v_bfe_u32 v29, v1, 3, 1')
        a('v_lshl_add_u32 v28, v29, 12, v28')
        a('v_bfe_u32 v29, v1, 4, 1')
        a(f'v_mul_u32_u24 v29, {X1 - Y0}, v29')
        a('v_add_u32 v28, v28, v29')
        a('v_add_u32 v28, s53, v28')
        a(f's_lshr_b32 s53, {sR}, 3')
        a('s_lshl_b32 s53, s53, 5')
        a(f's_lshl_b32 s54, {sW}, 3')
        a('s_add_u32 s53, s53, s54')
        a('v_and_b32 v29, 7, v1')
        a('v_add_u32 v29, s53, v29')
        a('v_lshrrev_b32 v26, 2, v29')
        a('v_lshlrev_b32 v26, 3, v26')
        a('v_and_b32 v29, 3, v29')
        a('v_add_u32 v29, v29, v26')
        a('v_bfe_u32 v26, v1, 3, 1')
        a('v_lshl_add_u32 v29, v26, 2, v29')
        a(f's_lshl_b32 s53, {sC}, 8')
        a('v_add_u32 v29, s53, v29')
        a('v_lshlrev_b32 v29, 10, v29')
        a(f's_and_b32 s53, {sR}, 7')
        a('s_lshl_b32 s53, s53, 7')
        a(f's_add_u32 s53, s53, {X2}')
        a('v_add_u32 v29, s53, v29')
    def dest_touch_issue(self):
        a = self.a
        for r in (27, 28, 29):
            a(f'buffer_load_dword v15, v{r}, {WS}, 0 offen'); self.vq.issue('touch')

    def weight_state_init(self):
        a = self.a
        a(f's_cmp_ge_u32 {sR}, 14')
        a(f's_cselect_b32 {sT1}, 1, 0')
        a(f's_mul_i32 s53, {sT1}, 14')
        a(f's_sub_u32 {sJ}, {sR}, s53')
        a(f's_lshl_b32 s14, {sJ}, 2')
        a(f's_add_u32 s14, s14, {sW}')
        a('s_min_u32 s14, s14, 55')
        a('s_lshl_b32 s14, s14, 10')
        a(f's_add_u32 s14, s14, {W1F}')
        a(f's_and_b32 s15, {sR}, 7')
        a('s_lshl_b32 s15, s15, 1')
        a(f's_lshl_b32 s53, {sW}, 4')
        a('s_add_u32 s15, s15, s53')
        a('s_lshl_b32 s15, s15, 10')
        a(f's_add_u32 s15, s15, {W2F}')
        self.wlist = [('w1', k) for k in range(32)] + [('w2', nt, i) for i in range(28) for nt in range(2)]
    def weight_batch(self, n):
        a = self.a
        for _ in range(n):
            if not self.wlist: return
            it = self.wlist.pop(0)
            if it[0] == 'w1':
                k = it[1]
                a(f's_add_u32 s13, s14, {k*56*1024}')
                self.vload(W1reg(k), f'v{vL16}', WS, 's13', 0, ' sc1', tag='w')
            else:
                _, nt, i = it
                a(f's_add_u32 s13, s15, {i*64*1024}')
                self.vload(W2reg(nt, i), f'v{vL16}', WS, 's13', nt*1024, ' sc1', tag='w')

    def conv(self):
        a = self.a; vq = self.vq; o = self.o
        a(f's_lshl_b32 s53, {sC}, 7')
        a(f's_add_u32 s53, s53, {F_PREP}')
        a('v_and_b32 v5, 31, v1')
        a('v_lshlrev_b32 v5, 2, v5')
        a('v_add_u32 v5, s53, v5')
        self.poll(5, 8)
        self.stamp('prep flags seen')
        a(f's_lshl_b32 s53, {sC}, 5')
        a(f's_add_u32 s53, s53, {sR}')
        a('s_lshl_b32 s61, s53, 7')
        a('s_lshl_b32 s53, s53, 13')
        a(f's_add_u32 s53, s53, {XR}')
        a('v_lshlrev_b32 v5, 4, v0')
        self.vload('v[8:11]', 'v5', WS, 's53', 0, ' sc1', tag='x0')
        a('s_add_u32 s53, s53, 4096')
        self.vload('v[12:15]', 'v5', WS, 's53', 0, ' sc1', tag='x1')
        a(f'v_add_u32 v132, {F_W}, v{vL16}')
        a(f'buffer_load_dwordx4 v[128:131], v132, {WS}, 0 offen sc1'); vq.issue('fw')
        a('v_lshrrev_b32 v4, 2, v0')
        a('v_mul_u32_u24 v4, 96, v4')
        a('v_and_b32 v5, 3, v0')
        a('v_lshl_add_u32 v4, v5, 4, v4')
        vq.wait('x0')
        a(f'ds_write_b128 v4, v[8:11] offset:{L_XB}')
        vq.wait('x1')
        a(f'ds_write_b128 v4, v[12:15] offset:{L_XB + XBS}')
        a(f's_lshr_b32 s67, {sW}, 1')
        a(f's_and_b32 s59, {sW}, 1')
        a('v_and_b32 v4, 15, v1')
        a('v_lshrrev_b32 v5, 4, v1')
        a('v_and_b32 v6, 7, v4')
        a(f'v_mul_u32_u24 v6, {CS}, v6')
        a('v_and_b32 v7, 8, v4')
        a('v_lshl_add_u32 v7, v5, 3, v7')
        a('v_lshl_add_u32 v6, v7, 1, v6')
        a(f's_mul_i32 s55, s67, {8*CS}')
        a('s_lshl_b32 s56, s59, 5')
        a('s_add_u32 s55, s55, s56')
        a(f's_add_u32 s55, s55, {L_TOEP}')
        a('v_add_u32 v6, s55, v6')
        a('v_sub_u32 v7, 15, v4')
        a('v_mul_u32_u24 v7, 96, v7')
        a('v_lshl_add_u32 v7, v5, 4, v7')
        a(f's_mul_i32 s55, s67, {XBS}')
        a(f's_add_u32 s55, s55, {L_XB}')
        a('v_add_u32 v7, s55, v7')
        a('s_waitcnt lgkmcnt(0)')
        a('s_barrier')
        for i in range(16): a(f'v_mov_b32 v{16+i}, 0')
        a.nop(1)
        self.stamp('x in lds')
        wb1 = o.get('wb1', 18)
        def Er(m, j): b = 32 + 32*(m % 3) + 4*j; return f'v[{b}:{b+3}]'
        def Fr(m, j): b = 32 + 32*(m % 3) + 16 + 4*j; return f'v[{b}:{b+3}]'
        def gloads(m):
            l = []
            for j in range(4):
                e = 16*j - m
                l.append(f'ds_read_b128 {Fr(m,j)}, v6 offset:{64*(m+16*j)}')
                l.append(f'ds_read_b128 {Er(m,j)}, v7 offset:{(48-e)*96}')
            return l
        for l in gloads(0): a(l)
        for l in gloads(1)[:7]: a(l)
        first_extra = gloads(1)[7:]
        for m in range(16):
            nxt = (first_extra if m == 0 else []) + (gloads(m+2) if m + 2 < 16 else [])
            if m == 0: a('s_waitcnt lgkmcnt(7)')
            elif m < 15: a('s_waitcnt lgkmcnt(8)')
            else: a('s_waitcnt lgkmcnt(0)')
            mf = []
            for j in range(4):
                for c in range(j, 4):
                    mf.append(f'v_mfma_f32_16x16x32_bf16 v[{16+4*c}:{19+4*c}], {Fr(m,j)}, {Er(m,c-j)}, v[{16+4*c}:{19+4*c}]')
            if m == o.get('fwslot', 3): self.check_fw(128, 132)
            for i, ins in enumerate(mf):
                a(ins)
                if nxt: a(nxt.pop(0))
                if m >= o.get('fwslot', 3) and m <= o.get('wb1last', 12) and i in (3, 8) and wb1 > 0:
                    self.weight_batch(1); wb1 -= 1
            assert not nxt
        self.weight_batch(wb1)
        self.stamp('conv mfma done')
        a('v_sub_u32 v8, 15, v4')
        a('v_mul_u32_u24 v8, 96, v8')
        a('v_lshlrev_b32 v9, 3, v5')
        a('v_sub_u32 v8, v8, v9')
        a(f's_mul_i32 s55, s67, {XBS}')
        a(f's_add_u32 s55, s55, {L_XB + 56}')
        a('s_lshl_b32 s56, s59, 5')
        a('s_sub_u32 s55, s55, s56')
        a('v_add_u32 v8, s55, v8')
        for c in range(4):
            a(f'ds_read_b64 v[{48+2*c}:{49+2*c}], v8 offset:{(48-16*c)*96}')
        a('s_lshl_b32 s55, s60, 16')
        a('s_and_b32 s56, s60, 0xffff0000')
        a('s_cmp_eq_u32 s67, 0')
        a('s_cselect_b32 s55, s55, s56')
        a('v_lshrrev_b32 v9, 1, v5')
        a('v_lshlrev_b32 v9, 1, v9')
        a('s_lshl_b32 s56, s59, 2')
        a('s_add_u32 s56, s56, s67')
        a('v_add_u32 v9, s56, v9')
        a('v_and_b32 v10, 7, v4')
        a('v_xor_b32 v9, v9, v10')
        a('v_lshlrev_b32 v9, 4, v9')
        a('v_lshl_add_u32 v9, v4, 7, v9')
        a('v_and_b32 v10, 1, v5')
        a('v_lshl_add_u32 v9, v10, 3, v9')
        a('s_waitcnt lgkmcnt(0)')
        for c in range(4):
            d0, d1 = 48+2*c, 49+2*c
            acc = 16+4*c
            a(f'v_and_b32 v60, 0xffff0000, v{d1}')
            a(f'v_lshlrev_b32 v61, 16, v{d1}')
            a(f'v_and_b32 v62, 0xffff0000, v{d0}')
            a(f'v_lshlrev_b32 v63, 16, v{d0}')
            for r in range(4):
                a(f'v_fma_f32 v{60+r}, v{60+r}, s55, v{acc+r}')
            a(f'v_cvt_pk_bf16_f32 v{64+2*c}, v60, v61')
            a(f'v_cvt_pk_bf16_f32 v{65+2*c}, v62, v63')
            a(f'ds_write_b64 v9, v[{64+2*c}:{65+2*c}] offset:{L_GT + 16*c*128}')
        a('v_lshrrev_b32 v8, 3, v0')
        a('v_and_b32 v9, 7, v0')
        a('v_and_b32 v10, 7, v8')
        a('v_xor_b32 v10, v10, v9')
        a('v_lshlrev_b32 v10, 4, v10')
        a('v_lshl_add_u32 v10, v8, 7, v10')
        a('v_lshlrev_b32 v11, 15, v8')
        a('v_lshl_add_u32 v11, v9, 4, v11')
        a('s_waitcnt lgkmcnt(0)')
        a('s_barrier')
        a(f'ds_read_b128 v[48:51], v10 offset:{L_GT}')
        a(f'ds_read_b128 v[52:55], v10 offset:{L_GT + 4096}')
        a(f's_add_u32 s53, s61, {GB}')
        a('s_waitcnt lgkmcnt(1)')
        self.vstore('v[48:51]', 'v11', WS, 's53', 0, ' sc1', tag='g')
        a(f's_add_u32 s53, s53, {32*32768}')
        a('s_waitcnt lgkmcnt(0)')
        self.vstore('v[52:55]', 'v11', WS, 's53', 0, ' sc1', tag='g')
        self.mk_srd(SA, sQ, 2097152)
        a(f's_lshl_b32 s53, {sC}, 8')
        a(f's_lshl_b32 s54, {sR}, 3')
        a('s_add_u32 s53, s53, s54')
        a(f's_add_u32 s53, s53, {sW}')
        a('s_lshl_b32 s53, s53, 10')
        self.vload('v[8:11]', f'v{vL16}', srd(SA), 's53', 0, tag='q')
        a('s_add_u32 s53, s53, 4096')
        self.vload('v[12:15]', f'v{vL16}', srd(SA), 's53', 0, tag='q')
        a('s_barrier')
        self.weight_batch(o.get('wb2', 14))
        self.stamp('conv published')

    def finish(self):
        a = self.a
        a.label('L_fin')
        Ln = a.newlabel('noep')
        a('s_cmp_lg_u32 s2, 0')
        a(f's_cbranch_scc1 {Ln}')
        a(f's_cmp_lg_u32 {sW}, 0')
        a(f's_cbranch_scc1 {Ln}')
        a(f'buffer_store_dword v{vTAG}, off, {WS}, 0 sc1')
        a.label(Ln)
        if self.stamps:
            self.stamp('end')
            a('s_memtime s[62:63]'); a('s_waitcnt lgkmcnt(0)'); a('s_sub_u32 s100, s62, s100')
            a('s_lshl_b32 s53, s2, 2')
            a(f's_add_u32 s53, s53, {sW}')
            a('s_lshl_b32 s53, s53, 7')
            a(f's_add_u32 s53, s53, {TS}')
            a('s_mov_b64 exec, 1')
            a('v_mov_b32 v4, 0')
            for i in range(self.nstamp):
                a(f'v_mov_b32 v5, s{76+i}')
                a(f'buffer_store_dword v5, v4, {WS}, s53 offen offset:{4*i}')
                a.nop(1)
            if self.o.get('dbgstamps'):
                Ld = a.newlabel('nodbg')
                a(f's_cmp_lg_u32 s2, {self.o.get("dbgstamps")}')
                a(f's_cbranch_scc1 {Ld}')
                a(f's_cmp_lg_u32 {sW}, 0')
                a(f's_cbranch_scc1 {Ld}')
                self.mk_srd(SA, sDBG, 256)
                sel = [1, 3, 5, 6, 7, 8, 10, 11, 13, 14, 16, 17, 19, 20, 22, 23]
                for j, i in enumerate(sel):
                    a(f's_sub_u32 s54, s{76+i}, s76')
                    a(f'v_mov_b32 v5, s54')
                    a(f'buffer_store_dword v5, v4, {srd(SA)}, 0 offen offset:{4*j}')
                    a.nop(1)
                a.label(Ld)
            a(f'v_mov_b32 v5, {sFAST}')
            a(f'buffer_store_dword v5, v4, {WS}, s53 offen offset:116')
            a.nop(1)
            a(f'v_mov_b32 v5, s100')
            a(f'buffer_store_dword v5, v4, {WS}, s53 offen offset:120')
            a.nop(1)
            a(f'v_mov_b32 v5, {sABORT}')
            a(f'buffer_store_dword v5, v4, {WS}, s53 offen offset:124')
        a('s_waitcnt vmcnt(0)')
        a.label('L_end')
        a('s_endpgm')
        a.label('L_code_end')

    def build(self):
        self.prologue()
        self.prep()
        if self.stop != 'prep': self.conv()
        if self.stop not in ('prep', 'conv'):
            from gen3_mlp import emit_mlp
            emit_mlp(self)
        self.finish()
        body = self.a.text()
        hdr = open('cdna_kernels/' + NAME[:-7] + '.s.ref').read().split('; Override launch')[0]
        s = hdr + f'; @launch grid=(256,1,1) block=(256,1,1) lds={LDS_SIZE}\n'
        s += f'''.amdgcn_target "amdgcn-amd-amdhsa--gfx950"
.text
.globl {NAME}
.p2align 8
.type {NAME},@function
{NAME}:
.set CODE_BYTES, {'L_slow' if 'L_slow:' in body else 'L_code_end'} - {NAME}
''' + body + f'''.section .rodata,"a"
.p2align 6
.amdhsa_kernel {NAME}
  .amdhsa_next_free_vgpr 512
  .amdhsa_next_free_sgpr 102
  .amdhsa_accum_offset 256
  .amdhsa_group_segment_fixed_size 0
  .amdhsa_kernarg_size 112
  .amdhsa_user_sgpr_count 2
  .amdhsa_user_sgpr_kernarg_segment_ptr 1
  .amdhsa_system_sgpr_workgroup_id_x 1
.end_amdhsa_kernel
'''
        return s

def main():
    ap = argparse.ArgumentParser()
    ap.add_argument('--stop', default='end')
    ap.add_argument('--stamps', action='store_true')
    ap.add_argument('-o', default='k.s')
    ap.add_argument('--opt', action='append', default=[])
    args = ap.parse_args()
    opts = {}
    for kv in args.opt:
        k, v = kv.split('='); opts[k] = int(v) if v.lstrip('-').isdigit() else v
    g = Gen(stop=args.stop, stamps=args.stamps, opts=opts)
    s = g.build()
    probs = check_hazards(g.a.lines)
    for p in probs: print(p)
    print(f'{len(g.a.lines)} lines, {len(probs)} hazards')
    open(args.o, 'w').write(s)
    open(args.o + '.stamps', 'w').write('\n'.join(g.stamp_names))

if __name__ == '__main__':
    main()
```

```python
import re

class Asm:
    def __init__(self):
        self.lines = []
        self._lab = 0
    def __call__(self, s):
        for l in s.split('\n'):
            l = l.strip()
            if l:
                self.lines.append(l)
    def label(self, name):
        self.lines.append(name + ':')
    def newlabel(self, base):
        self._lab += 1
        return f'L_{base}_{self._lab}'
    def comment(self, s):
        self.lines.append('; ' + s)
    def nop(self, n):
        while n > 0:
            k = min(n, 16)
            self.lines.append(f's_nop {k-1}')
            n -= k
    def text(self):
        out = []
        for l in self.lines:
            if l.endswith(':') or l.startswith(';') or l.startswith('.'):
                out.append(l)
            else:
                out.append('    ' + l)
        return '\n'.join(out) + '\n'

REG_RE = re.compile(r'\b([vas])(\d+)\b|\b([vas])\[(\d+):(\d+)\]|\b(vcc|exec|m0|scc)\b')

def regs_of(op):
    r = set()
    for m in REG_RE.finditer(op):
        if m.group(1):
            r.add(m.group(1) + m.group(2))
        elif m.group(3):
            for i in range(int(m.group(4)), int(m.group(5)) + 1):
                r.add(m.group(3) + str(i))
        else:
            r.add(m.group(6))
    return r

TRANS = ('v_exp_f32', 'v_log_f32', 'v_rcp_f32', 'v_rsq_f32', 'v_sqrt_f32', 'v_sin_f32', 'v_cos_f32')

def split_ops(s):
    ops = []; depth = 0; cur = ''
    for ch in s:
        if ch == '[': depth += 1
        if ch == ']': depth -= 1
        if ch == ',' and depth == 0:
            ops.append(cur.strip()); cur = ''
        else:
            cur += ch
    if cur.strip(): ops.append(cur.strip())
    return ops

class Ins:
    def __init__(self, line):
        self.line = line
        code = line.split(';')[0].strip()
        parts = code.split(None, 1)
        self.op = parts[0]
        rest = parts[1] if len(parts) > 1 else ''
        self.ops = split_ops(rest)
        op = self.op
        self.kind = 'other'
        self.wr = set(); self.rd = set()
        self.states = 1
        self.dpp = ('dpp' in op) or ('quad_perm' in rest) or ('row_' in rest) or ('wave_' in rest)
        o = self.ops
        def R(i): return regs_of(o[i].split(' ')[0]) if i < len(o) else set()
        if op == 's_nop':
            self.kind = 'nop'; self.states = int(o[0], 0) + 1
        elif op.startswith('v_mfma'):
            self.kind = 'mfma'
            self.wr = R(0); self.A = R(1); self.B = R(2); self.C = R(3)
            self.rd = self.A | self.B | self.C
            self.passes = 8 if '32x32' in op else 4
        elif op.startswith('v_cmp'):
            self.kind = 'valu'; self.wr = R(0); self.rd = R(1) | R(2)
            if op.startswith('v_cmpx'): self.wr |= {'exec'}
        elif op in ('v_readfirstlane_b32', 'v_readlane_b32'):
            self.kind = 'valu'; self.wr = R(0); self.rd = set().union(*[R(i) for i in range(1, len(o))])
            self.readlane = True
        elif op.startswith('v_permlane') and 'swap' in op:
            self.kind = 'valu'; self.wr = R(0) | R(1); self.rd = R(0) | R(1); self.permlane = True
        elif op.startswith('v_'):
            self.kind = 'valu'; self.wr = R(0)
            self.rd = set().union(*[R(i) for i in range(1, len(o))]) if len(o) > 1 else set()
            if op.startswith(('v_fmac', 'v_dot2c', 'v_pk_fmac')) or self.dpp or 'writelane' in op: self.rd |= R(0)
            if op.startswith(('v_add_co', 'v_sub_co', 'v_addc_co', 'v_subb_co')):
                self.wr |= R(1)
            if op.startswith('v_cndmask') and len(o) == 3: self.rd |= {'vcc'}
            self.trans = op.replace('_e32', '').replace('_e64', '') in TRANS
        elif op.startswith('ds_'):
            self.kind = 'ds'
            if op.startswith(('ds_read', 'ds_bpermute', 'ds_swizzle', 'ds_permute')):
                self.wr = R(0); self.rd = set().union(*[R(i) for i in range(1, len(o))])
            else:
                self.rd = set().union(*[R(i) for i in range(len(o))])
                self.stdata = set().union(*[R(i) for i in range(1, len(o))])
        elif op.startswith('buffer_') or op.startswith('global_'):
            self.kind = 'vmem'
            islds = bool(re.search(r'\blds\b', rest))
            if 'load' in op and not islds:
                self.wr = R(0); self.rd = set().union(*[R(i) for i in range(1, len(o))])
            elif 'atomic' in op:
                self.rd = set().union(*[R(i) for i in range(len(o))])
                if 'sc0' in rest: self.wr = R(0)
            else:
                self.rd = set().union(*[R(i) for i in range(len(o))])
                if 'store' in op:
                    self.stdata = R(0) if op.startswith('buffer_') else R(1)
                    self.wide = ('x4' in op or 'x3' in op)
                if islds: self.rd |= {'m0'}; self.ldsdma = True
        elif op.startswith('s_'):
            self.kind = 'salu'
            if op in ('s_waitcnt', 's_barrier', 's_sleep', 's_setprio', 's_endpgm', 's_branch') or op.startswith('s_cbranch') or op.startswith('s_cmp'):
                self.rd = set().union(*[R(i) for i in range(len(o))]) if op.startswith('s_cmp') else set()
            else:
                self.wr = R(0); self.rd = set().union(*[R(i) for i in range(1, len(o))]) if len(o) > 1 else set()

def check_hazards(lines, verbose=True):
    ins = []
    for l in lines:
        s = l.strip()
        if not s or s.startswith(';') or s.startswith('.') or s.endswith(':'):
            continue
        ins.append(Ins(s))
    probs = []
    n = len(ins)
    for i, c in enumerate(ins):
        dist = 0
        j = i - 1
        while j >= 0 and dist < 24:
            p = ins[j]
            if p.op in ('s_branch', 's_endpgm'): break
            need = 0; why = ''
            pv = p.kind == 'valu'
            if pv:
                vw = {r for r in p.wr if r[0] in 'va' and r not in ('vcc',)}
                sw = {r for r in p.wr if (r[0] == 's' or r == 'vcc')}
                if c.kind == 'mfma' and (vw & c.rd): need, why = 2, 'VALU->MFMA operand'
                if c.kind == 'valu' and c.dpp and (vw & c.rd): need, why = 2, 'VALU->DPP'
                if c.kind == 'valu' and getattr(c, 'readlane', False) and (vw & c.rd): need, why = max(need, 1), 'VALU->readlane'
                if c.kind == 'valu' and getattr(c, 'permlane', False) and (vw & c.rd): need, why = 2, 'VALU->permlane'
                if getattr(p, 'trans', False) and c.kind == 'valu' and not getattr(c, 'trans', False) and (vw & c.rd): need, why = max(need, 1), 'trans->VALU'
                if getattr(p, 'trans', False) and c.kind in ('mfma',) and (vw & c.rd): need, why = max(need, 2), 'trans->mfma'
                if c.kind == 'vmem' and (sw & c.rd): need, why = 5, 'VALU sgpr->VMEM'
                if c.kind == 'valu' and (sw & c.rd) and not getattr(c, 'readlane', False): need, why = max(need, 2), 'VALU sgpr->VALU const'
                if c.kind == 'valu' and getattr(c, 'readlane', False) and (sw & c.rd): need, why = max(need, 4), 'VALU sgpr->lane select'
                if 'exec' in p.wr and c.kind == 'mfma': need, why = max(need, 4), 'VALU exec->mfma'
                if 'exec' in p.wr and c.kind == 'valu' and c.dpp: need, why = max(need, 5), 'exec->dpp'
                if c.kind == 'salu' and (sw & c.rd) and p.op.startswith('v_read'): need, why = max(need, 1), 'readlane->SALU (pad)'
            if p.kind == 'mfma':
                D = p.wr
                nr = {4: 8, 8: 12}[p.passes]
                if c.kind == 'mfma':
                    if (D & (c.A | c.B)): need, why = nr, 'MFMA D->MFMA A/B'
                    elif (D & c.C):
                        if D == c.C and p.passes == c.passes: need = 0
                        else: need, why = {4: 6, 8: 10}[p.passes], 'MFMA D->MFMA C overlap'
                    elif (D & c.wr) and not (D == c.wr): need, why = nr, 'MFMA WAW'
                elif c.kind in ('valu', 'ds', 'vmem'):
                    if (D & c.rd) or (D & c.wr): need, why = nr, 'MFMA D->VALU/mem'
                if c.kind == 'valu' and (p.C & c.wr) and not (D & c.wr): need, why = max(need, {4: 3, 8: 7}[p.passes]), 'MFMA C WAR'
            if p.kind == 'vmem' and hasattr(p, 'stdata') and getattr(p, 'wide', False):
                if c.kind == 'valu' and (p.stdata & c.wr): need, why = 2, 'wide store data WAR'
                elif (p.stdata & c.wr): need, why = 1, 'wide store data WAR'
            if p.kind == 'salu' and 'm0' in p.wr and getattr(c, 'ldsdma', False): need, why = 1, 'm0->ldsdma'
            if p.kind == 'salu' and 'exec' in p.wr and c.kind == 'valu' and c.dpp: need, why = 0, ''
            if need > dist:
                probs.append(f'hazard [{why}] need {need} have {dist}:\n    {p.line}\n    {c.line}')
            dist += p.states
            j -= 1
    return probs

def check_waits(lines, ignore=('v253', 'v254', 'v255')):
    vq = []; lq = []
    probs = []
    skip = 0; cond = 0
    for l in lines:
        s = l.strip()
        if s.startswith('; SPIN_BEGIN'): skip += 1; continue
        if s.startswith('; SPIN_END'): skip -= 1; continue
        if s.startswith('; COND_BEGIN'): cond += 1; continue
        if s.startswith('; COND_END'): cond -= 1; continue
        if s.startswith('; RESET_WAITS'): vq = []; lq = []; continue
        if s.startswith('; IDLE_BEGIN'): saved = (list(vq), list(lq)); vq = []; lq = []; continue
        if s.startswith('; IDLE_END'): vq, lq = saved; continue
        if skip or not s or s.startswith(';') or s.startswith('.') or s.endswith(':'): continue
        i = Ins(s)
        if i.op == 's_waitcnt':
            m = re.search(r'vmcnt\((\d+)\)', s)
            if m:
                n = int(m.group(1))
                while len(vq) > n: vq.pop(0)
            m = re.search(r'lgkmcnt\((\d+)\)', s)
            if m:
                n = int(m.group(1))
                if any(e[1] for e in lq) and n > 0: pass
                else:
                    while len(lq) > n: lq.pop(0)
            continue
        touched = (i.rd | i.wr) - set(ignore)
        for q, nm in ((vq, 'vm'), (lq, 'lgkm')):
            for e in q:
                hit = e[0] & touched
                if hit:
                    if i.kind == ('vmem' if nm == 'vm' else 'ds') and not (e[0] & i.rd): continue
                    probs.append(f'pending {nm} load dest {sorted(hit)} (from: {e[2]}) touched by: {s}')
        if cond: continue
        if i.kind == 'vmem': vq.append((set(r for r in i.wr if r[0] in 'va'), False, s))
        elif i.kind == 'ds': lq.append((set(r for r in i.wr if r[0] in 'va'), False, s))
        elif i.op.startswith(('s_load', 's_memtime', 's_memrealtime', 's_buffer_load')): lq.append((set(i.wr), True, s))
    return probs
```

```python
from gen2 import *
from gen2_mlp import tok_base, yflag_addr, rows_finish, row_flag, emit_r1a, emit_r1b
DUMMY = 0x2500000

def pr(b): return f'v[{b}:{b+1}]'

def poll_issue(g, vdst, vaddr, tag):
    g.a(f'buffer_load_dword v{vdst}, v{vaddr}, {WS}, 0 offen sc1')
    g.vq.issue(tag)

def poll_check(g, vdst, vaddr, tag):
    a = g.a
    g.vq.wait(tag)
    L = a.newlabel('pc'); D = a.newlabel('pcd')
    a(f'v_cmp_ne_u32 vcc, {sTAG}, v{vdst}')
    a(f's_cbranch_vccz {D}')
    a('s_mov_b32 s53, 0')
    a.label(L)
    a(f'buffer_load_dword v{vdst}, v{vaddr}, {WS}, 0 offen sc1')
    a('s_waitcnt vmcnt(0)')
    a(f'v_cmp_ne_u32 vcc, {sTAG}, v{vdst}')
    a(f's_cbranch_vccz {D}')
    a('s_add_u32 s53, s53, 1')
    a(f's_cmp_lg_u32 {sABORT}, 0')
    a(f's_cbranch_scc1 {D}')
    a('s_cmp_lt_u32 s53, 0x8000')
    a(f's_cbranch_scc1 {L}')
    a(f's_mov_b32 {sABORT}, 1')
    a.label(D)

def spread(a_fill, nslots, start, end):
    nf = len(a_fill)
    out = []
    for k in range(nslots):
        if k < start or nf == 0: out.append(0)
        else: out.append(min(nf, ((k - start + 1) * nf + (end - start)) // (end - start + 1)))
    return out

def gelu_fillers(g, acc, u, T, P, usepk):
    a = g.a
    F = []
    F.append(lambda: a(f's_add_u32 s74, s71, {u*112*1024}'))
    for p in range(8):
        x0, x1 = acc + 2*p, acc + 2*p + 1
        t0 = T + 2*(p % 2); t1 = t0 + 1
        if usepk:
            X = pr(x0); Tt = pr(t0)
            seq = [f'v_pk_mul_f32 {Tt}, {X}, {X}',
                   f'v_pk_fma_f32 {Tt}, {Tt}, v[12:13], v[12:13] op_sel:[0,0,1] op_sel_hi:[1,0,1]',
                   f'v_pk_mul_f32 {Tt}, {Tt}, {X}',
                   f'v_exp_f32 v{t0}, v{t0}', f'v_exp_f32 v{t1}, v{t1}',
                   None,
                   f'v_pk_add_f32 {Tt}, {Tt}, v[14:15]',
                   f'v_rcp_f32 v{t0}, v{t0}', f'v_rcp_f32 v{t1}, v{t1}',
                   None,
                   f'v_pk_mul_f32 {X}, {X}, {Tt}',
                   f'v_cvt_pk_bf16_f32 v{P+p}, v{x0}, v{x1}']
            for s in seq:
                if s is None: F.append(lambda: a.nop(1))
                else: F.append(lambda s=s: a(s))
        else:
            seq = [f'v_mul_f32 v{t0}, v{x0}, v{x0}', f'v_mul_f32 v{t1}, v{x1}, v{x1}',
                   f'v_fma_f32 v{t0}, v{t0}, v12, v13', f'v_fma_f32 v{t1}, v{t1}, v12, v13',
                   f'v_mul_f32 v{t0}, v{t0}, v{x0}', f'v_mul_f32 v{t1}, v{t1}, v{x1}',
                   f'v_exp_f32 v{t0}, v{t0}', f'v_exp_f32 v{t1}, v{t1}',
                   f'v_add_f32 v{t0}, 1.0, v{t0}', f'v_add_f32 v{t1}, 1.0, v{t1}',
                   f'v_rcp_f32 v{t0}, v{t0}', f'v_rcp_f32 v{t1}, v{t1}',
                   f'v_mul_f32 v{x0}, v{x0}, v{t0}', f'v_mul_f32 v{x1}, v{x1}, v{t1}',
                   f'v_cvt_pk_bf16_f32 v{P+p}, v{x0}, v{x1}']
            for s in seq: F.append(lambda s=s: a(s))
        if p == 3: F.append(lambda: g.vstore(f'v[{P}:{P+3}]', f'v{vL16}', WS, 's74', 0, g.sc, tag=f'h{u}'))
        if p == 7: F.append(lambda: g.vstore(f'v[{P+4}:{P+7}]', f'v{vL16}', WS, 's74', 1024, g.sc, tag=f'h{u}'))
    return F

def hflag(g, u):
    g.vq.wait(f'h{u}')
    g.a(f's_add_u32 s56, s70, {u*256}')
    g.flag('s56')

def emit_layer(g):
    a = g.a; vq = g.vq; o = g.o
    usepk = o.get('gelupk', 0)
    a(f's_lshl_b32 s53, {sLAYER}, 4')
    a(f's_add_u32 s53, s53, {sC}')
    a('s_lshl_b32 s53, s53, 7')
    a(f's_lshl_b32 s54, {sT1}, 6')
    a('s_add_u32 s53, s53, s54')
    a(f's_lshl_b32 s54, {sW}, 3')
    a('s_add_u32 s53, s53, s54')
    a('s_lshl_b32 s53, s53, 2')
    a(f's_add_u32 s53, s53, {F_Y}')
    a('v_and_b32 v100, 7, v1')
    a('v_bfe_u32 v101, v1, 3, 1')
    a('v_lshl_add_u32 v100, v101, 5, v100')
    a('v_lshlrev_b32 v100, 2, v100')
    a('v_add_u32 v100, s53, v100')
    a(f'v_add_u32 v101, {8*128*4}, v100')
    g.dstamp('g1', 'g1 begin')
    poll_issue(g, 102, 100, 'pyA')
    a('s_barrier')
    a(f's_lshl_b32 s68, {sJ}, 2')
    a(f's_add_u32 s68, s68, {sW}')
    g.mk_srd(SA, sB1, 3584)
    a('v_lshrrev_b32 v14, 5, v1')
    a('v_lshlrev_b32 v15, 3, v14')
    a('s_lshl_b32 s53, s68, 6')
    for i in range(4):
        g.vload(f'v[{104+2*i}:{105+2*i}]', 'v15', srd(SA), 's53', 16*i, w='x2', tag='bias')
    a('v_and_b32 v15, 31, v1')
    a('v_and_b32 v12, 15, v1')
    for m in range(8):
        a(f'v_add_u32 v{4+m}, {2*m}, v14')
        a(f'v_xor_b32 v{4+m}, v{4+m}, v12')
        a(f'v_lshlrev_b32 v{4+m}, 4, v{4+m}')
        a(f'v_lshl_add_u32 v{4+m}, v15, 10, v{4+m}')
    a(f'v_mov_b32 v12, {f2u(-C2)}')
    a(f'v_mov_b32 v13, {f2u(-C1)}')
    a('v_mov_b32 v14, 1.0'); a('v_mov_b32 v15, 1.0')
    a(f's_lshl_b32 s53, {sC}, 1')
    a(f's_add_u32 s53, s53, {sT1}')
    a('s_lshl_b32 s53, s53, 2')
    a('s_mul_i32 s71, s53, 112')
    a('s_lshl_b32 s55, s68, 1')
    a('s_add_u32 s71, s71, s55')
    a('s_lshl_b32 s71, s71, 10')
    a(f's_lshl_b32 s55, {sLAYER}, 23' if not g.fast else 's_mov_b32 s55, 0')
    a('s_add_u32 s71, s71, s55')
    a(f's_add_u32 s71, s71, {H0}')
    a(f's_lshl_b32 s55, {sLAYER}, 6')
    a('s_add_u32 s70, s53, s55')
    a('s_lshl_b32 s70, s70, 8')
    a('s_lshl_b32 s55, s68, 2')
    a('s_add_u32 s70, s70, s55')
    a(f's_add_u32 s70, s70, {F_H}')
    a('s_lshl_b32 s55, s2, 13')
    a(f's_add_u32 s55, s55, {DUMMY}')
    a(f's_cmp_ge_u32 {sR}, 28')
    a('s_cselect_b32 s71, s55, s71')
    a('s_cselect_b32 s70, s55, s70')
    a(f's_lshl_b32 s53, {sC}, 8')
    a(f's_lshl_b32 s54, {sT1}, 7')
    a('s_add_u32 s53, s53, s54')
    a(f's_lshl_b32 s54, {sW}, 4')
    a('s_add_u32 s53, s53, s54')
    a('s_lshl_b32 s53, s53, 10')
    a(f's_lshl_b32 s54, {sLAYER}, 21' if not g.fast else 's_mov_b32 s54, 0')
    a('s_add_u32 s53, s53, s54')
    a(f's_add_u32 s72, s53, {Y0}')
    a(f's_lshl_b32 s73, {sW}, 13')
    a(f's_and_b32 s54, {sW}, 1')
    a('s_lshl_b32 s54, s54, 7')
    a(f'v_xor_b32 v103, s54, v{vL16}')
    def dma_list(eta, tt):
        L = []
        for i in range(8):
            def f(i=i):
                if i % 4 == 0:
                    a(f's_add_u32 m0, s73, {L_YH[eta] + tt*32768 + i*1024}')
                    a(f's_add_u32 s57, s72, {(64*tt + 8*(i>>2) + 4*eta)*1024}')
                a(f'v_xor_b32 v99, {16*i}, v103')
                off = f' offset:{(i%4)*1024}' if i % 4 else ''
                a(f'buffer_load_dwordx4 v99, {WS}, s57 offen{off} sc1 lds')
                vq.issue(f'dma{eta}{tt}')
            L.append(f)
        return L
    g.dstamp('g1', 'setup done')
    poll_check(g, 102, 100, 'pyA')
    g.stamp('g1 yA seen', True)
    g.dstamp('g1', 'yA seen')
    for f in dma_list(0, 0): f()
    for f in dma_list(0, 1): f()
    poll_issue(g, 102, 101, 'pyB')
    vq.wait('bias')
    for i in range(4):
        a(f'v_lshlrev_b32 v{48+4*i}, 16, v{104+2*i}')
        a(f'v_and_b32 v{49+4*i}, 0xffff0000, v{104+2*i}')
        a(f'v_lshlrev_b32 v{50+4*i}, 16, v{105+2*i}')
        a(f'v_and_b32 v{51+4*i}, 0xffff0000, v{105+2*i}')
    vq.wait('dma00')
    a('s_barrier')
    g.stamp('g1 yA in lds', True)
    fill = []
    NB, PF = 8, 7
    WG_ = o.get('g1wait', 4)
    for u in range(4):
        eta, tt = u >> 1, u & 1
        if u == 1: vq.wait('dma01'); a('s_barrier')
        if u == 2:
            vq.wait('dma10'); a('s_barrier')
            for m in range(8): a(f'v_add_u32 v{4+m}, 0x10000, v{4+m}')
        if u == 3: vq.wait('dma11'); a('s_barrier')
        g.dstamp('g1', f'tile{u} start')
        acc = 16 + 16*(u % 2)
        def Breg(k): return f'v[{64+4*(k%NB)}:{67+4*(k%NB)}]'
        def Bload(k): a(f'ds_read_b128 {Breg(k)}, v{4+(k&7)} offset:{tt*32768 + (k>>3)*256}')
        for k in range(PF): Bload(k)
        extra = {}
        if u == 0:
            dl = dma_list(1, 0) + dma_list(1, 1)
            extra[10] = [lambda: poll_check(g, 102, 101, 'pyB')]
            for i, f in enumerate(dl): extra.setdefault(11 + i, []).append(f)
        if u == 3:
            extra[o.get('fA0', 4)] = [lambda: hflag(g, 0)]
            extra[o.get('fA1', 26)] = [lambda: hflag(g, 1)]
        if g.wlist and u >= 1:
            nper = (len(g.wlist) + (3 - u)) // (4 - u)
            slots = [1 + (i * 30) // nper for i in range(nper)]
            for sl in slots: extra.setdefault(sl, []).append(lambda: g.weight_batch(1))
        sp = spread(fill, 32, 3, 30)
        done = 0
        for k in range(32):
            if k % WG_ == 0:
                need = min(k + WG_ - 1, 31)
                issued = min(k + PF - 1, 31)
                a(f's_waitcnt lgkmcnt({max(issued - need, 0)})')
            cin = f'v[48:63]' if k == 0 else f'v[{acc}:{acc+15}]'
            a(f'v_mfma_f32_32x32x16_bf16 v[{acc}:{acc+15}], {W1reg(k)}, {Breg(k)}, {cin}')
            if k + PF < 32: Bload(k + PF)
            while done < sp[k]: fill[done](); done += 1
            for f in extra.get(k, []): f()
        while done < len(fill): fill[done](); done += 1
        g.dstamp('g1', f'tile{u} done')
        if u < 3: fill = gelu_fillers(g, acc, u, 96, 104, usepk)
        else: fill = gelu_fillers(g, acc, u, 4, 48, usepk)
    g.dstamp('g1', 'tiles done')
    a(f's_lshr_b32 s54, {sR}, 4')
    a(f's_lshl_b32 s53, {sC}, 1')
    a('s_add_u32 s53, s53, s54')
    a('s_lshl_b32 s53, s53, 2')
    a(f's_lshr_b32 s54, {sR}, 3')
    a('s_and_b32 s54, s54, 1')
    a('s_add_u32 s69, s53, s54')
    a(f's_lshl_b32 s53, {sLAYER}, 6')
    a('s_add_u32 s53, s53, s69')
    a('s_lshl_b32 s53, s53, 8')
    a(f's_mul_i32 s54, {sW}, 56')
    a('s_add_u32 s53, s53, s54')
    a(f's_add_u32 s53, s53, {F_H}')
    a('v_min_u32 v60, 13, v1')
    a('v_lshlrev_b32 v60, 2, v60')
    a('v_add_u32 v60, s53, v60')
    a('v_add_u32 v61, 512, v60')
    poll_issue(g, 62, 60, 'phA')
    a('s_mul_i32 s73, s69, 112')
    a(f's_mul_i32 s54, {sW}, 28')
    a('s_add_u32 s73, s73, s54')
    a('s_lshl_b32 s73, s73, 10')
    a(f's_lshl_b32 s54, {sLAYER}, 23' if not g.fast else 's_mov_b32 s54, 0')
    a('s_add_u32 s73, s73, s54')
    a(f's_add_u32 s73, s73, {H0}')
    a('v_and_b32 v63, 7, v0')
    a('v_lshrrev_b32 v8, 3, v0')
    a('v_and_b32 v9, 7, v8')
    a('v_and_b32 v10, 3, v63')
    a('v_lshlrev_b32 v10, 1, v10')
    a('v_or_b32 v11, 1, v10')
    a('v_xor_b32 v10, v10, v9')
    a('v_xor_b32 v11, v11, v9')
    a('v_lshrrev_b32 v9, 2, v63')
    a('v_lshlrev_b32 v9, 7, v9')
    a('v_lshl_add_u32 v9, v8, 8, v9')
    a('v_lshl_add_u32 v10, v10, 4, v9')
    a('v_lshl_add_u32 v11, v11, 4, v9')
    a(f's_lshr_b32 s53, {sR}, 3')
    a('s_lshl_b32 s53, s53, 5')
    a('v_add_u32 v9, s53, v8')
    a('v_lshrrev_b32 v8, 2, v9')
    a('v_lshlrev_b32 v8, 3, v8')
    a('v_and_b32 v9, 3, v9')
    a('v_add_u32 v8, v8, v9')
    a(f's_lshl_b32 s53, {sC}, 8')
    a('v_add_u32 v8, s53, v8')
    a('v_lshlrev_b32 v8, 10, v8')
    a(f's_and_b32 s53, {sR}, 7')
    a('s_lshl_b32 s53, s53, 7')
    a('v_lshl_add_u32 v8, v63, 4, v8')
    a('v_add_u32 v8, s53, v8')
    a('v_lshlrev_b32 v9, 4, v63')
    NW = 12
    HW = 80
    def Hreg(s): return f'v[{HW+4*(s%NW)}:{HW+3+4*(s%NW)}]'
    def Hload(s):
        eta, i = divmod(s, 28)
        a(f's_add_u32 s54, s73, {eta*2*112*1024 + (i//4)*4096}')
        g.vload(Hreg(s), f'v{vL16}', WS, 's54', (i%4)*1024, ' sc1', tag=f'hf{s}')
    poll_check(g, 62, 60, 'phA')
    g.stamp('g2 hA seen', True)
    for s in range(NW): Hload(s)
    g.mk_srd(SA, sB2, 1024)
    a(f's_and_b32 s53, {sR}, 7')
    a('s_lshl_b32 s53, s53, 7')
    g.vload('v[56:59]', 'v9', srd(SA), 's53', 0, tag='b2')
    a(f's_lshl_b32 s53, {sLAYER}, 22' if not g.fast else 's_mov_b32 s53, 0')
    a(f's_add_u32 s53, s53, {X1}')
    g.vload('v[64:67]', 'v8', WS, 's53', 0, ' sc1', tag='res0')
    a('s_add_u32 s53, s53, 4096')
    g.vload('v[68:71]', 'v8', WS, 's53', 0, ' sc1', tag='res1')
    g.dstamp('g2', 'A loads issued')
    a.nop(4)
    half = len(fill)//2
    for f in fill[:half]: f()
    hflag(g, 2)
    for f in fill[half:]: f()
    g.stamp('g1 done', True)
    g.dstamp('g2', 'tail done')
    a(f's_cmp_eq_u32 {sLAYER}, 0')
    a(f's_cselect_b32 s{SB}, s{sWSP}, s{sOUT}')
    a(f's_cselect_b32 s{SB+1}, s{sWSP+1}, s{sOUT+1}')
    a(f's_mov_b32 s{SB+2}, 2097152')
    a(f's_cselect_b32 s{SB+2}, {WS_SIZE}, s{SB+2}')
    a(f's_mov_b32 s{SB+3}, 0x00020000')
    a(f's_cselect_b32 s69, {X2}, 0')
    a(f's_and_b32 s{SB+1}, s{SB+1}, 0xffff')
    a(f's_lshl_b32 s68, {sC}, 3')
    a(f's_lshr_b32 s54, {sR}, 3')
    a('s_add_u32 s68, s68, s54')
    a('s_lshl_b32 s68, s68, 2')
    a(f's_add_u32 s68, s68, {sW}')
    a('s_lshl_b32 s68, s68, 3')
    a(f's_and_b32 s54, {sR}, 7')
    a('s_add_u32 s68, s68, s54')
    a('s_lshl_b32 s68, s68, 2')
    a(f's_add_u32 s68, s68, {F_X}')
    a('v_and_b32 v72, 31, v1')
    a('v_lshrrev_b32 v73, 5, v1')
    a('v_and_b32 v74, 7, v1')
    a(f's_lshl_b32 s53, {sW}, 13')
    for i in range(4):
        a(f'v_add_u32 v{4+i}, {2*i}, v73')
        a(f'v_xor_b32 v{4+i}, v{4+i}, v74')
        a(f'v_lshlrev_b32 v{4+i}, 4, v{4+i}')
        a(f'v_lshl_add_u32 v{4+i}, v72, 8, v{4+i}')
        a(f'v_add_u32 v{4+i}, s53, v{4+i}')
    def accset(eta, nt):
        return f'a[{224+16*nt}:{239+16*nt}]' if eta == 0 else f'v[{16+16*nt}:{31+16*nt}]'
    def red_write_list(eta):
        LR = eta*32768
        L = []
        for nt in range(2):
            for i in range(4):
                src = f'a[{224+16*nt+4*i}:{224+16*nt+4*i+3}]'
                L.append(lambda src=src, i=i, nt=nt: a(f'ds_write_b128 v{4+i}, {src} offset:{LR + nt*128}'))
        return L
    def red_finish_list(eta, T0, T1):
        LR = eta*32768
        res = 64 + 4*eta
        L = []
        def rd(dst, p):
            a(f'ds_read_b128 v[{dst}:{dst+3}], v10 offset:{LR + p*8192}')
            a(f'ds_read_b128 v[{dst+4}:{dst+7}], v11 offset:{LR + p*8192}')
        def add():
            for e in range(4): a(f'v_pk_add_f32 {pr(T0+2*e)}, {pr(T0+2*e)}, {pr(T1+2*e)}')
        L.append(lambda: (rd(T0, 0), rd(T1, 1)))
        L.append(lambda: (a('s_waitcnt lgkmcnt(0)'), add(), rd(T1, 2)))
        L.append(lambda: (a('s_waitcnt lgkmcnt(0)'), add(), rd(T1, 3)))
        L.append(lambda: (a('s_waitcnt lgkmcnt(0)'), add()))
        L.append(lambda: g.unpack8(56, T1))
        L.append(add)
        L.append(lambda: g.pack8(T0, T1))
        L.append(lambda: g.unpack8(T1, T0))
        L.append(lambda: (vq.wait(f'res{eta}'), g.unpack8(res, T1)))
        L.append(add)
        L.append(lambda: g.pack8(T0, T1))
        def st():
            a(f's_add_u32 s53, s69, {eta*4096}')
            g.vstore(f'v[{T1}:{T1+3}]', 'v8', srd(SB), 's53', 0, g.sc, tag=f'xo{eta}')
        L.append(st)
        return L
    def xflag(eta):
        vq.wait(f'xo{eta}')
        a(f's_add_u32 s53, s68, {eta*512}')
        g.flag('s53')
    def mloop(s0, s1, extra):
        for s in range(s0, s1):
            eta, i = divmod(s, 28)
            vq.wait(f'hf{s}')
            for nt in range(2):
                acc = accset(0, nt)
                cin = '0' if i == 0 else acc
                a(f'v_mfma_f32_32x32x16_bf16 {acc}, {W2reg(nt,i)}, {Hreg(s)}, {cin}')
                if nt == 0 and s > s0 and (s - 1) + NW < s1: Hload(s - 1 + NW)
            for f in extra.get(s, []): f()
    exA = {o.get('fB1', 3): [lambda: hflag(g, 3)], 20: [lambda: poll_issue(g, 62, 61, 'phB')]}
    mloop(0, 28, exA)
    g.dstamp('g2', 'A mfma done')
    poll_check(g, 62, 61, 'phB')
    for s in range(28, 28 + NW): Hload(s)
    g.dstamp('g2', 'B issued')
    a.nop(4)
    for f in red_write_list(0): f()
    a('s_waitcnt lgkmcnt(0)')
    a('s_barrier')
    g.dstamp('g2', 'A red barrier')
    for f in red_finish_list(0, 72, 48): f()
    g.dstamp('g2', 'A finished')
    exB = {28 + o.get('fxA', 6): [lambda: xflag(0)]}
    mloop(28, 56, exB)
    g.dstamp('g2', 'B mfma done')
    a.nop(12)
    for f in red_write_list(1): f()
    a('s_waitcnt lgkmcnt(0)')
    a('s_barrier')
    for f in red_finish_list(1, 72, 48): f()
    g.dstamp('g2', 'B finished')
    xflag(1)
    g.dstamp('g2', 'B flagged')
    g.stamp('g2 done', True)

def emit_r2(g):
    a = g.a; vq = g.vq
    a('s_mov_b32 s67, 1')
    a('v_mov_b32 v4, 0x3b000000')
    a(f's_lshl_b32 s53, {sC}, 3')
    a(f's_lshr_b32 s54, {sR}, 3')
    a('s_add_u32 s53, s53, s54')
    a('s_lshl_b32 s53, s53, 2')
    a(f's_and_b32 s54, {sR}, 7')
    a('s_lshr_b32 s54, s54, 1')
    a('s_add_u32 s53, s53, s54')
    a('s_lshl_b32 s53, s53, 5')
    a(f's_add_u32 s53, s53, {F_X}')
    a('v_and_b32 v5, 7, v1')
    a('v_lshlrev_b32 v5, 2, v5')
    a('v_add_u32 v5, s53, v5')
    a('v_add_u32 v6, 512, v5')
    g.dstamp('r2', 'r2 begin')
    poll_issue(g, 7, 5, 'pxA')
    poll_check(g, 7, 5, 'pxA')
    g.dstamp('r2', 'xA seen')
    for eta in range(2):
        X = 16 if eta == 0 else 64
        if eta == 1:
            poll_issue(g, 7, 6, 'pxB')
            row_flag(g, 0)
            g.dstamp('r2', 'A flagged')
            poll_check(g, 7, 6, 'pxB')
            g.dstamp('r2', 'xB seen')
        tok_base(a, 's53', eta)
        a(f's_add_u32 s53, s53, {X2}')
        g.vload('v[8:11]', f'v{vL16}', WS, 's53', 0, ' sc1', tag='x2')
        vq.wait('x2')
        g.dstamp('r2', f'x{eta} loaded')
        g.unpack8(8, X)
        g.ln_multi([(X, X+8, X+36)])
        g.dstamp('r2', f'ln{eta} done')
        rows_finish(g, [(X, eta)])
        g.dstamp('r2', f'row{eta} stored')
    row_flag(g, 1)
    g.stamp('r2 done', False)

def emit_mlp_variant(g, fast):
    a = g.a
    g.fast = fast
    g.fsc = '' if fast else ' sc1'
    g.sc = ' sc1'
    emit_r1b(g)
    if g.stop == 'r1': a('s_branch L_fin'); return
    a(f's_mov_b32 {sLAYER}, 0')
    g.cur_layer = 0
    emit_layer(g)
    if g.stop == 'g2': a('s_branch L_fin'); return
    if fast and not g.o.get('l1sc1', 1): g.sc = ''
    g.cur_layer = 1
    emit_r2(g)
    if g.stop == 'r2': a('s_branch L_fin'); return
    a(f's_mov_b32 {sLAYER}, 1')
    g.cur_layer = 1
    emit_layer(g)
    a('s_branch L_fin')

def emit_mlp(g):
    a = g.a
    emit_r1a(g)
    ops0 = list(g.vq.ops); wl0 = list(g.wlist)
    a(f's_cmp_eq_u32 {sFAST}, 0')
    a('s_cbranch_scc1 L_slow')
    emit_mlp_variant(g, True)
    a.label('L_slow')
    g.vq.ops = ops0; g.wlist = wl0
    st = g.stamps; g.stamps = False
    emit_mlp_variant(g, False)
    g.stamps = st
```

```python
from gen2 import *
from gen2_mlp import tok_base, yflag_addr, emit_r1a
from gen3_mlp import poll_issue, poll_check, spread, DUMMY

def pr(b): return f'v[{b}:{b+1}]'
VINV = 108

def rows_finish(g, rows, scx, scy):
    a = g.a
    for (X, eta) in rows:
        a(f's_lshl_b32 s53, {sW}, 10')
        a(f's_add_u32 s53, s53, {L_G + eta*4096}')
        a(f'v_add_u32 v{X+28}, s53, v{vL16}')
        a(f'ds_read_b128 v[{X+16}:{X+19}], v{X+28}')
    a('s_waitcnt lgkmcnt(0)')
    for (X, eta) in rows: g.unpack8(X+16, X+20)
    for (X, eta) in rows:
        for i in range(4):
            a(f'v_pk_fma_f32 {pr(X+2*i)}, {pr(X+8+2*i)}, {pr(X+20+2*i)}, {pr(X+2*i)}')
    for (X, eta) in rows: g.pack8(X, X+32)
    for (X, eta) in rows: g.unpack8(X+32, X)
    for (X, eta) in rows:
        a(f's_add_u32 s54, s75, {X1 + eta*4096 + (0 if g.fast else g.rl*0x400000)}')
        g.vstore(f'v[{X+32}:{X+35}]', f'v{vL16}', WS, 's54', 0, scx, tag=f'rx{eta}')
    g.ln_multi([(X, X+8, X+36) for (X, eta) in rows])
    g.ln_multi([(X+8, X+8, X+36) for (X, eta) in rows])
    for (X, eta) in rows: g.pack8(X+8, X+16)
    for (X, eta) in rows:
        a(f's_add_u32 s54, s75, {Y0 + eta*4096 + (0 if g.fast else g.rl*0x200000)}')
        g.vstore(f'v[{X+16}:{X+19}]', f'v{vL16}', WS, 's54', 0, scy, tag=f'ry{eta}')

def row_flag(g, eta):
    a = g.a
    g.vq.wait(f'ry{eta}')
    a(f's_add_u32 s53, s61, {(g.rl*2 + eta)*8*128*4}')
    g.flag('s53')

def mlp_setup0(g):
    a = g.a
    tok_base(a, 's75', 0)
    a(f's_lshl_b32 s61, {sC}, 7')
    a(f's_lshl_b32 s54, {sR}, 2')
    a('s_add_u32 s61, s61, s54')
    a(f's_add_u32 s61, s61, {sW}')
    a('s_lshl_b32 s61, s61, 2')
    a(f's_add_u32 s61, s61, {F_Y}')

def mlp_setup(g, part=1):
    a = g.a
    if part == 0:
        mlp_setup0(g); return
    a(f's_lshl_b32 s53, {sC}, 7')
    a(f's_lshl_b32 s54, {sT1}, 6')
    a('s_add_u32 s53, s53, s54')
    a(f's_lshl_b32 s54, {sW}, 3')
    a('s_add_u32 s53, s53, s54')
    a('s_lshl_b32 s53, s53, 2')
    a(f's_add_u32 s53, s53, {F_Y}')
    a('v_and_b32 v120, 7, v1')
    a('v_bfe_u32 v12, v1, 3, 1')
    a('v_lshl_add_u32 v120, v12, 5, v120')
    a('v_lshlrev_b32 v120, 2, v120')
    a('v_add_u32 v120, s53, v120')
    a('v_lshrrev_b32 v14, 5, v1')
    a('v_and_b32 v15, 31, v1')
    a('v_and_b32 v12, 15, v1')
    for m in range(8):
        a(f'v_add_u32 v{4+m}, {2*m}, v14')
        a(f'v_xor_b32 v{4+m}, v{4+m}, v12')
        a(f'v_lshlrev_b32 v{4+m}, 4, v{4+m}')
        a(f'v_lshl_add_u32 v{4+m}, v15, 10, v{4+m}')
    a(f's_and_b32 s54, {sW}, 1')
    a('s_lshl_b32 s54, s54, 7')
    a(f'v_xor_b32 v121, s54, v{vL16}')
    a(f's_lshl_b32 s68, {sJ}, 2')
    a(f's_add_u32 s68, s68, {sW}')
    a(f's_lshl_b32 s53, {sC}, 1')
    a(f's_add_u32 s53, s53, {sT1}')
    a('s_lshl_b32 s53, s53, 2')
    a('s_mul_i32 s71, s53, 112')
    a('s_lshl_b32 s55, s68, 1')
    a('s_add_u32 s71, s71, s55')
    a('s_lshl_b32 s71, s71, 10')
    a(f's_add_u32 s71, s71, {H0}')
    a('s_lshl_b32 s70, s53, 8')
    a('s_lshl_b32 s55, s68, 2')
    a('s_add_u32 s70, s70, s55')
    a(f's_add_u32 s70, s70, {F_H}')
    a('s_lshl_b32 s55, s2, 13')
    a(f's_add_u32 s55, s55, {DUMMY}')
    a(f's_cmp_ge_u32 {sR}, 28')
    a('s_cselect_b32 s71, s55, s71')
    a('s_cselect_b32 s70, s55, s70')
    a(f's_lshl_b32 s53, {sC}, 8')
    a(f's_lshl_b32 s54, {sT1}, 7')
    a('s_add_u32 s53, s53, s54')
    a(f's_lshl_b32 s54, {sW}, 4')
    a('s_add_u32 s53, s53, s54')
    a('s_lshl_b32 s53, s53, 10')
    a(f's_add_u32 s72, s53, {Y0}')
    a(f's_lshl_b32 s73, {sW}, 13')
    a(f's_lshr_b32 s54, {sR}, 4')
    a(f's_lshl_b32 s53, {sC}, 1')
    a('s_add_u32 s53, s53, s54')
    a('s_lshl_b32 s53, s53, 2')
    a(f's_lshr_b32 s54, {sR}, 3')
    a('s_and_b32 s54, s54, 1')
    a('s_add_u32 s55, s53, s54')
    a('s_lshl_b32 s53, s55, 8')
    a(f's_mul_i32 s54, {sW}, 56')
    a('s_add_u32 s53, s53, s54')
    a(f's_add_u32 s53, s53, {F_H}')
    a('v_min_u32 v119, 13, v1')
    a('v_lshlrev_b32 v119, 2, v119')
    a('v_add_u32 v119, s53, v119')
    a('s_mul_i32 s69, s55, 112')
    a(f's_mul_i32 s54, {sW}, 28')
    a('s_add_u32 s69, s69, s54')
    a('s_lshl_b32 s69, s69, 10')
    a(f's_add_u32 s69, s69, {H0}')
    a('v_and_b32 v15, 7, v0')
    a('v_lshrrev_b32 v112, 3, v0')
    a('v_and_b32 v12, 7, v112')
    a('v_and_b32 v113, 3, v15')
    a('v_lshlrev_b32 v113, 1, v113')
    a('v_or_b32 v114, 1, v113')
    a('v_xor_b32 v113, v113, v12')
    a('v_xor_b32 v114, v114, v12')
    a('v_lshrrev_b32 v12, 2, v15')
    a('v_lshlrev_b32 v12, 7, v12')
    a('v_lshl_add_u32 v12, v112, 8, v12')
    a('v_lshl_add_u32 v113, v113, 4, v12')
    a('v_lshl_add_u32 v114, v114, 4, v12')
    a(f's_lshr_b32 s53, {sR}, 3')
    a('s_lshl_b32 s53, s53, 5')
    a('v_add_u32 v12, s53, v112')
    a('v_lshrrev_b32 v112, 2, v12')
    a('v_lshlrev_b32 v112, 3, v112')
    a('v_and_b32 v12, 3, v12')
    a('v_add_u32 v112, v112, v12')
    a(f's_lshl_b32 s53, {sC}, 8')
    a('v_add_u32 v112, s53, v112')
    a('v_lshlrev_b32 v112, 10, v112')
    a(f's_and_b32 s53, {sR}, 7')
    a('s_lshl_b32 s53, s53, 7')
    a('v_lshl_add_u32 v112, v15, 4, v112')
    a('v_add_u32 v112, s53, v112')
    a('v_lshlrev_b32 v123, 4, v15')
    a('v_add_u32 v123, s53, v123')
    a('v_and_b32 v12, 31, v1')
    a('v_lshrrev_b32 v13, 5, v1')
    a('v_and_b32 v14, 7, v1')
    a(f's_lshl_b32 s53, {sW}, 13')
    for i in range(4):
        a(f'v_add_u32 v{115+i}, {2*i}, v13')
        a(f'v_xor_b32 v{115+i}, v{115+i}, v14')
        a(f'v_lshlrev_b32 v{115+i}, 4, v{115+i}')
        a(f'v_lshl_add_u32 v{115+i}, v12, 8, v{115+i}')
        a(f'v_add_u32 v{115+i}, s53, v{115+i}')
    a(f's_lshl_b32 s67, {sC}, 3')
    a(f's_lshr_b32 s54, {sR}, 3')
    a('s_add_u32 s67, s67, s54')
    a('s_lshl_b32 s67, s67, 2')
    a(f's_add_u32 s67, s67, {sW}')
    a('s_lshl_b32 s67, s67, 3')
    a(f's_and_b32 s54, {sR}, 7')
    a('s_add_u32 s67, s67, s54')
    a('s_lshl_b32 s67, s67, 2')
    a(f's_add_u32 s67, s67, {F_X}')
    a(f's_lshl_b32 s53, {sC}, 3')
    a(f's_lshr_b32 s54, {sR}, 3')
    a('s_add_u32 s53, s53, s54')
    a('s_lshl_b32 s53, s53, 2')
    a(f's_and_b32 s54, {sR}, 7')
    a('s_lshr_b32 s54, s54, 1')
    a('s_add_u32 s53, s53, s54')
    a('s_lshl_b32 s53, s53, 5')
    a(f's_add_u32 s53, s53, {F_X}')
    a('v_and_b32 v122, 7, v1')
    a('v_lshlrev_b32 v122, 2, v122')
    a('v_add_u32 v122, s53, v122')

def gelu_fillers(g, acc, u, T, P, usepk, sc):
    a = g.a
    lay = g.cur_layer
    F = []
    F.append(lambda: a(f's_add_u32 s74, s71, {u*112*1024 + (0 if g.fast else lay*0x800000)}'))
    if usepk:
        seqs = []
        for p in range(8):
            x0 = acc + 2*p; t0 = T + 2*(p % 2); t1 = t0 + 1
            X = pr(x0); Tt = pr(t0)
            seqs.append([f'v_pk_mul_f32 {Tt}, {X}, {X}',
                   f'v_pk_fma_f32 {Tt}, {Tt}, v[12:13], v[12:13] op_sel:[0,0,1] op_sel_hi:[1,0,1]',
                   f'v_pk_mul_f32 {Tt}, {Tt}, {X}',
                   f'v_exp_f32 v{t0}, v{t0}', f'v_exp_f32 v{t1}, v{t1}',
                   f'v_pk_add_f32 {Tt}, {Tt}, v[14:15]',
                   f'v_rcp_f32 v{t0}, v{t0}', f'v_rcp_f32 v{t1}, v{t1}',
                   f'v_pk_mul_f32 {X}, {X}, {Tt}',
                   f'v_cvt_pk_bf16_f32 v{P+p}, v{x0}, v{x0+1}'])
        for p in range(0, 8, 2):
            for s0, s1 in zip(seqs[p], seqs[p+1]):
                F.append(lambda s=s0: a(s)); F.append(lambda s=s1: a(s))
            if p == 2: F.append(lambda: g.vstore(f'v[{P}:{P+3}]', f'v{vL16}', WS, 's74', 0, sc, tag=f'h{u}'))
            if p == 6: F.append(lambda: g.vstore(f'v[{P+4}:{P+7}]', f'v{vL16}', WS, 's74', 1024, sc, tag=f'h{u}'))
        return F
    for p in range(8):
        x0, x1 = acc + 2*p, acc + 2*p + 1
        t0 = T + 2*(p % 2); t1 = t0 + 1
        seq = [f'v_mul_f32 v{t0}, v{x0}, v{x0}', f'v_mul_f32 v{t1}, v{x1}, v{x1}',
               f'v_fma_f32 v{t0}, v{t0}, v12, v13', f'v_fma_f32 v{t1}, v{t1}, v12, v13',
               f'v_mul_f32 v{t0}, v{t0}, v{x0}', f'v_mul_f32 v{t1}, v{t1}, v{x1}',
               f'v_exp_f32 v{t0}, v{t0}', f'v_exp_f32 v{t1}, v{t1}',
               f'v_add_f32 v{t0}, 1.0, v{t0}', f'v_add_f32 v{t1}, 1.0, v{t1}',
               f'v_rcp_f32 v{t0}, v{t0}', f'v_rcp_f32 v{t1}, v{t1}',
               f'v_mul_f32 v{x0}, v{x0}, v{t0}', f'v_mul_f32 v{x1}, v{x1}, v{t1}',
               f'v_cvt_pk_bf16_f32 v{P+p}, v{x0}, v{x1}']
        for s in seq: F.append(lambda s=s: a(s))
        if p == 3: F.append(lambda: g.vstore(f'v[{P}:{P+3}]', f'v{vL16}', WS, 's74', 0, sc, tag=f'h{u}'))
        if p == 7: F.append(lambda: g.vstore(f'v[{P+4}:{P+7}]', f'v{vL16}', WS, 's74', 1024, sc, tag=f'h{u}'))
    return F

def hflag(g, u):
    g.vq.wait(f'h{u}')
    g.a(f's_add_u32 s56, s70, {u*256 + g.cur_layer*64*256}')
    g.flag('s56')

def emit_layer(g):
    a = g.a; vq = g.vq; o = g.o
    lay = g.cur_layer
    sch = g.sc_h
    yoff = 0 if g.fast else lay*0x200000
    hoff = 0 if g.fast else lay*0x800000
    xoff = 0 if g.fast else lay*0x400000
    g.dstamp('g1', 'g1 begin')
    a(f'v_add_u32 v100, {lay*2*8*128*4}, v120')
    a(f'v_add_u32 v101, {(lay*2+1)*8*128*4}, v120')
    poll_issue(g, 102, 100, 'pyA')
    a('s_barrier')
    g.mk_srd(SA, sB1, 3584)
    a('v_lshrrev_b32 v14, 5, v1')
    a('v_lshlrev_b32 v15, 3, v14')
    a('s_lshl_b32 s53, s68, 6')
    for i in range(4):
        g.vload(f'v[{104+2*i}:{105+2*i}]', 'v15', srd(SA), 's53', 16*i, w='x2', tag='bias')
    a(f'v_mov_b32 v12, {f2u(-C2)}')
    a(f'v_mov_b32 v13, {f2u(-C1)}')
    a('v_mov_b32 v14, 1.0'); a('v_mov_b32 v15, 1.0')
    def dma_list(eta, tt):
        L = []
        for i in range(8):
            def f(i=i):
                if i % 4 == 0:
                    a(f's_add_u32 m0, s73, {L_YH[eta] + tt*32768 + i*1024}')
                    a(f's_add_u32 s57, s72, {(64*tt + 8*(i>>2) + 4*eta)*1024 + yoff}')
                a(f'v_xor_b32 v99, {16*i}, v121')
                off = f' offset:{(i%4)*1024}' if i % 4 else ''
                a(f'buffer_load_dwordx4 v99, {WS}, s57 offen{off} sc1 lds')
                vq.issue(f'dma{eta}{tt}')
            L.append(f)
        return L
    g.dstamp('g1', 'setup done')
    poll_check(g, 102, 100, 'pyA')
    g.stamp('g1 yA seen')
    for f in dma_list(0, 0): f()
    for f in dma_list(0, 1)[:4]: f()
    poll_issue(g, 102, 101, 'pyB')
    vq.wait('bias')
    for i in range(4):
        a(f'v_lshlrev_b32 v{48+4*i}, 16, v{104+2*i}')
        a(f'v_and_b32 v{49+4*i}, 0xffff0000, v{104+2*i}')
        a(f'v_lshlrev_b32 v{50+4*i}, 16, v{105+2*i}')
        a(f'v_and_b32 v{51+4*i}, 0xffff0000, v{105+2*i}')
    vq.wait('dma00')
    a('s_barrier')
    g.stamp('g1 yA in lds')
    fill = []
    NB, PF = 8, 7
    WG_ = o.get('g1wait', 4)
    for u in range(4):
        eta, tt = u >> 1, u & 1
        if u == 1: vq.wait('dma01'); a('s_barrier')
        if u == 2:
            vq.wait('dma10'); a('s_barrier')
            for m in range(8): a(f'v_add_u32 v{4+m}, 0x10000, v{4+m}')
        if u == 3: vq.wait('dma11'); a('s_barrier')
        g.dstamp('g1', f'tile{u} start')
        acc = 16 + 16*(u % 2)
        def Breg(k): return f'v[{64+4*(k%NB)}:{67+4*(k%NB)}]'
        def Bload(k): a(f'ds_read_b128 {Breg(k)}, v{4+(k&7)} offset:{tt*32768 + (k>>3)*256}')
        for k in range(PF): Bload(k)
        extra = {}
        if u == 0:
            for i, f in enumerate(dma_list(0, 1)[4:]): extra.setdefault(i, []).append(f)
            extra.setdefault(8, []).append(lambda: poll_check(g, 102, 101, 'pyB'))
            for i, f in enumerate(dma_list(1, 0) + dma_list(1, 1)): extra.setdefault(9 + i + i//3, []).append(f)
        if u == 3:
            extra.setdefault(o.get('fA0', 2), []).append(lambda: hflag(g, 0))
            extra.setdefault(o.get('fA1', 28), []).append(lambda: hflag(g, 1))
            extra.setdefault(29, []).append(lambda: (a(f'v_add_u32 v100, {lay*64*256}, v119'), a('v_add_u32 v101, 512, v100'), poll_issue(g, 102, 100, 'phA')))
        if g.wlist and u >= 1:
            nper = (len(g.wlist) + (3 - u)) // (4 - u)
            for sl in [1 + (i * 27) // nper for i in range(nper)]:
                extra.setdefault(sl, []).append(lambda: g.weight_batch(1))
        sp = spread(fill, 32, 3, 30)
        done = 0
        for k in range(32):
            if k % WG_ == 0:
                need = min(k + WG_ - 1, 31)
                issued = min(k + PF - 1, 31)
                a(f's_waitcnt lgkmcnt({max(issued - need, 0)})')
            cin = f'v[48:63]' if k == 0 else f'v[{acc}:{acc+15}]'
            a(f'v_mfma_f32_32x32x16_bf16 v[{acc}:{acc+15}], {W1reg(k)}, {Breg(k)}, {cin}')
            if k + PF < 32: Bload(k + PF)
            while done < sp[k]: fill[done](); done += 1
            for f in extra.get(k, []): f()
        while done < len(fill): fill[done](); done += 1
        g.dstamp('g1', f'tile{u} done')
        if u < 3: fill = gelu_fillers(g, acc, u, 96, 104, False, sch)
        else: fill = gelu_fillers(g, acc, u, 96, 48, True, sch)
    g.dstamp('g1', 'tiles done')
    for m in range(8): a(f'v_subrev_u32 v{4+m}, 0x10000, v{4+m}')
    NW = 12
    HW = 64
    def Hreg(s): return f'v[{HW+4*(s%NW)}:{HW+3+4*(s%NW)}]'
    def Hload(s):
        eta, i = divmod(s, 28)
        a(f's_add_u32 s54, s69, {eta*2*112*1024 + (i//4)*4096 + hoff}')
        g.vload(Hreg(s), f'v{vL16}', WS, 's54', (i%4)*1024, ' sc1', tag=f'hf{s}')
    a('v_mov_b32 v124, v100'); a('v_mov_b32 v125, v101')
    poll_check(g, 102, 100, 'phA')
    g.stamp('g2 hA seen')
    fill = gelu_fillers(g, 32, 3, 60, 48, True, sch)
    for s in range(NW): Hload(s)
    g.dstamp('g2', 'A loads issued')
    a.nop(2)
    half = len(fill)//2
    for f in fill[:half]: f()
    hflag(g, 2)
    for f in fill[half:]: f()
    g.stamp('g1 done')
    g.dstamp('g2', 'tail done')
    g.mk_srd(SA, sB2, 1024)
    g.vload('v[56:59]', 'v123', srd(SA), 0, 0, tag='b2')
    a(f's_mov_b32 s53, {X1 + xoff}')
    g.vload('v[60:63]', 'v112', WS, 's53', 0, ' sc1', tag='res0')
    if lay == 0:
        OUT = WS; obase = X2
    else:
        g.mk_srd(SB, sOUT, 2097152); OUT = srd(SB); obase = 0
    sco = g.sc_x if lay == 0 else ''
    def accset(eta, nt):
        return f'a[{224+16*nt}:{239+16*nt}]' if eta == 0 else f'v[{16+16*nt}:{31+16*nt}]'
    def red_write_list(eta):
        LR = eta*32768
        L = []
        for nt in range(2):
            for i in range(4):
                src = f'a[{224+16*nt+4*i}:{224+16*nt+4*i+3}]' if eta == 0 else f'v[{16+16*nt+4*i}:{16+16*nt+4*i+3}]'
                L.append(lambda src=src, i=i, nt=nt: a(f'ds_write_b128 v{115+i}, {src} offset:{LR + nt*128}'))
        return L
    def xflag(eta):
        vq.wait(f'xo{eta}')
        a(f's_add_u32 s53, s67, {eta*512}')
        g.flag('s53')
    def red_small(eta, res):
        LR = eta*32768
        L = []
        for h in range(2):
            ad = 113 + h
            T0, T1 = 48, 52
            b2 = 56 + 2*h; rs = res + 2*h
            L.append(lambda ad=ad: (a(f'ds_read_b128 v[48:51], v{ad} offset:{LR}'), a(f'ds_read_b128 v[52:55], v{ad} offset:{LR + 8192}')))
            def add(): a(f'v_pk_add_f32 {pr(48)}, {pr(48)}, {pr(52)}'); a(f'v_pk_add_f32 {pr(50)}, {pr(50)}, {pr(54)}')
            def sadd():
                for e in range(4): a(f'v_add_f32 v{48+e}, v{48+e}, v{52+e}')
            L.append(lambda ad=ad: (a('s_waitcnt lgkmcnt(0)'), sadd(), a(f'ds_read_b128 v[52:55], v{ad} offset:{LR + 2*8192}')))
            L.append(lambda ad=ad: (a('s_waitcnt lgkmcnt(0)'), sadd(), a(f'ds_read_b128 v[52:55], v{ad} offset:{LR + 3*8192}')))
            L.append(lambda: (a('s_waitcnt lgkmcnt(0)'), sadd()))
            def ub(src):
                a(f'v_lshlrev_b32 v52, 16, v{src}'); a(f'v_and_b32 v53, 0xffff0000, v{src}')
                a(f'v_lshlrev_b32 v54, 16, v{src+1}'); a(f'v_and_b32 v55, 0xffff0000, v{src+1}')
            L.append(lambda b2=b2: (ub(b2), sadd()))
            def rnd():
                a('v_cvt_pk_bf16_f32 v52, v48, v49'); a('v_cvt_pk_bf16_f32 v53, v50, v51')
                a('v_lshlrev_b32 v48, 16, v52'); a('v_and_b32 v49, 0xffff0000, v52')
                a('v_lshlrev_b32 v50, 16, v53'); a('v_and_b32 v51, 0xffff0000, v53')
            L.append(rnd)
            L.append(lambda rs=rs: (vq.wait(f'res{eta}'), ub(rs), sadd()))
            L.append(lambda h=h: (a(f'v_cvt_pk_bf16_f32 v{12+2*h}, v48, v49'), a(f'v_cvt_pk_bf16_f32 v{13+2*h}, v50, v51')))
        def st():
            a(f's_mov_b32 s53, {obase + eta*4096}')
            g.vstore('v[12:15]', 'v112', OUT, 's53', 0, sco, tag=f'xo{eta}')
        L.append(st)
        return L
    def red_big(eta, res):
        LR = eta*32768
        T = 64
        for p in range(4):
            a(f'ds_read_b128 v[{T+8*p}:{T+8*p+3}], v113 offset:{LR + p*8192}')
            a(f'ds_read_b128 v[{T+8*p+4}:{T+8*p+7}], v114 offset:{LR + p*8192}')
        g.unpack8(56, T+32)
        a('s_waitcnt lgkmcnt(4)')
        for e in range(4): a(f'v_pk_add_f32 {pr(T+2*e)}, {pr(T+2*e)}, {pr(T+8+2*e)}')
        for e in range(4): a(f'v_pk_add_f32 {pr(T+2*e)}, {pr(T+2*e)}, {pr(T+32+2*e)}')
        a('s_waitcnt lgkmcnt(0)')
        for e in range(4): a(f'v_pk_add_f32 {pr(T+16+2*e)}, {pr(T+16+2*e)}, {pr(T+24+2*e)}')
        for e in range(4): a(f'v_pk_add_f32 {pr(T+2*e)}, {pr(T+2*e)}, {pr(T+16+2*e)}')
        g.pack8(T, T+8); g.unpack8(T+8, T)
        vq.wait(f'res{eta}')
        g.unpack8(res, T+16)
        for e in range(4): a(f'v_pk_add_f32 {pr(T+2*e)}, {pr(T+2*e)}, {pr(T+16+2*e)}')
        g.pack8(T, T+8)
        a(f's_mov_b32 s53, {obase + eta*4096}')
        g.vstore(f'v[{T+8}:{T+11}]', 'v112', OUT, 's53', 0, sco, tag=f'xo{eta}')
    extra = {}
    extra.setdefault(o.get('fB1', 3), []).append(lambda: hflag(g, 3))
    extra.setdefault(10, []).append(lambda: poll_issue(g, 126, 125, 'phB'))
    extra.setdefault(15, []).append(lambda: poll_check(g, 126, 125, 'phB'))
    for i, f in enumerate(red_write_list(0)): extra.setdefault(30 + i//2, []).append(f)
    extra.setdefault(35, []).append(lambda: (a('s_waitcnt lgkmcnt(0)'), a('s_barrier')))
    for i, f in enumerate(red_small(0, 60)): extra.setdefault(36 + i, []).append(f)
    def resB():
        a(f's_mov_b32 s53, {X1 + xoff + 4096}')
        g.vload('v[60:63]', 'v112', WS, 's53', 0, ' sc1', tag='res1')
    extra.setdefault(53, []).append(resB)
    for s in range(56):
        eta, i = divmod(s, 28)
        vq.wait(f'hf{s}')
        for nt in range(2):
            acc = accset(eta, nt)
            cin = '0' if i == 0 else acc
            a(f'v_mfma_f32_32x32x16_bf16 {acc}, {W2reg(nt,i)}, {Hreg(s)}, {cin}')
            if nt == 0 and s >= 1 and (s - 1) + NW < 56: Hload(s - 1 + NW)
        if s == 27: g.dstamp('g2', 'A mfma done')
        for f in extra.get(s, []): f()
    g.dstamp('g2', 'B mfma done')
    if lay == 0: xflag(0)
    a.nop(12)
    for f in red_write_list(1): f()
    a('s_waitcnt lgkmcnt(0)')
    a('s_barrier')
    red_big(1, 60)
    g.dstamp('g2', 'B finished')
    if lay == 0: xflag(1)
    g.stamp('g2 done')

def emit_r2(g):
    a = g.a; vq = g.vq
    g.rl = 1
    a(f'v_mov_b32 v{VINV}, 0x3b000000')
    a('v_add_u32 v109, 512, v122')
    g.dstamp('r2', 'r2 begin')
    poll_issue(g, 110, 122, 'pxA')
    poll_check(g, 110, 122, 'pxA')
    g.dstamp('r2', 'xA seen')
    a(f's_add_u32 s53, s75, {X2}')
    g.vload('v[60:63]', f'v{vL16}', WS, 's53', 0, ' sc1', tag='x2a')
    poll_issue(g, 110, 109, 'pxB')
    vq.wait('x2a')
    g.unpack8(60, 16)
    g.ln_multi([(16, 24, 52)])
    rows_finish(g, [(16, 0)], g.sc_x3, g.sc_y1)
    g.dstamp('r2', 'row0 stored')
    poll_check(g, 110, 109, 'pxB')
    a(f's_add_u32 s53, s75, {X2 + 4096}')
    g.vload('v[60:63]', f'v{vL16}', WS, 's53', 0, ' sc1', tag='x2b')
    row_flag(g, 0)
    g.dstamp('r2', 'A flagged')
    vq.wait('x2b')
    g.unpack8(60, 64)
    g.ln_multi([(64, 72, 100)])
    rows_finish(g, [(64, 1)], g.sc_x3, g.sc_y1)
    g.dstamp('r2', 'row1 stored')
    row_flag(g, 1)
    g.stamp('r2 done')

def emit_r1b(g):
    a = g.a
    g.rl = 0
    mlp_setup_done = False
    rows_finish(g, [(16, 0), (64, 1)], ' sc1', ' sc1')
    mlp_setup_rest(g)
    row_flag(g, 0)
    row_flag(g, 1)
    g.stamp('r1 done')

def mlp_setup_rest(g): mlp_setup(g, 1)

def emit_variant(g, fast):
    a = g.a; o = g.o
    g.fast = fast
    g.fsc = '' if fast else ' sc1'
    g.sc_h = ' sc1'; g.sc_x = ' sc1'
    g.sc_x3 = ' sc1'; g.sc_y1 = ('' if (fast and o.get('y1plain', 1)) else ' sc1')
    emit_r1b(g)
    if g.stop == 'r1': a('s_branch L_fin'); return
    a(f's_mov_b32 {sLAYER}, 0')
    g.cur_layer = 0
    emit_layer(g)
    if g.stop == 'g2': a('s_branch L_fin'); return
    g.cur_layer = 1
    emit_r2(g)
    if g.stop == 'r2': a('s_branch L_fin'); return
    a(f's_mov_b32 {sLAYER}, 1')
    if fast and o.get('h1plain', 0): g.sc_h = ''
    emit_layer(g)
    a('s_branch L_fin')

def emit_mlp(g):
    a = g.a
    g.vinv = VINV
    g.r1_hook = lambda: mlp_setup(g, 0)
    emit_r1a(g)
    ops0 = list(g.vq.ops); wl0 = list(g.wlist)
    a(f's_cmp_eq_u32 {sFAST}, 0')
    a('s_cbranch_scc1 L_slow')
    emit_variant(g, True)
    a.label('L_slow')
    g.vq.ops = ops0; g.wlist = wl0
    st = g.stamps; g.stamps = False
    emit_variant(g, False)
    g.stamps = st
```

```python
import sys, argparse, struct
from asmlib import Asm, check_hazards, check_waits

NAME = 'interleave_layers__ssm_conv_h3__mixer_channel_mlp__prompt_kernel'

WS_EPOCH = 0x0
F_PREP = 0x1000
F_CONV = 0x2000
F_W = 0x3000
F_XC = 0x3800
DUMMY2 = 0x2D00000
F_Y    = 0x4000
F_H    = 0x8000
F_X    = 0x10000
XR     = 0x100000
W1F    = 0x300000
W2F    = 0x500000
GB     = 0x700000
Y0     = 0x900000
X1     = 0xD00000
X2     = 0xF00000
H0     = 0x1400000
TS     = 0x2400000
WS_SIZE = 0x10000000

L_KVT = 0
L_W1R = 8192
L_W2R = 16384
L_GT  = 0
L_XB = 25600
XBS = 79*96
L_TOEP = 40960
CS = 4160
LDS_SIZE = 163840
L_G = 155648
L_YH = [0, 65536]

sQ, sK, sV, sSK, sSSM, sD, sBX, sW1 = 16, 18, 20, 22, 24, 26, 28, 30
sB1, sW2, sB2, sOUT, sDBG, sWSP = 32, 34, 36, 38, 40, 42
WS = 's[44:47]'
sC, sR, sW, sTAG, sABORT = 's48', 's49', 's50', 's51', 's52'
sLAYER, sT1, sJ = 's64', 's65', 's66'
sXCC, sFAST = 's101', 's3'
SA, SB, SC_, SD_ = 4, 8, 12, 72
def srd(n): return f's[{n}:{n+3}]'
W1B = 128
vL16, vTAG = 2, 3
def W1reg(k): return f'v[{W1B+4*k}:{W1B+4*k+3}]'
def W2reg(nt, i):
    b = (nt*28 + i)*4
    return f'a[{b}:{b+3}]'
def f2u(x): return '0x%08x' % struct.unpack('<I', struct.pack('<f', x))[0]
C1 = 2*0.7978845608028654*1.4426950408889634
C2 = C1*0.044715

class VQ:
    def __init__(self, a): self.a = a; self.ops = []
    def issue(self, tag): self.ops.append(tag)
    def wait(self, tag):
        idx = max(i for i, t in enumerate(self.ops) if t == tag) if tag in self.ops else None
        if idx is None: return
        n = len(self.ops) - 1 - idx
        assert n <= 63, n
        self.a(f's_waitcnt vmcnt({n})')
        self.ops = self.ops[idx+1:]
    def drain(self):
        self.a('s_waitcnt vmcnt(0)'); self.ops = []
    def reset(self): self.ops = []

class Gen:
    def __init__(self, stop='end', stamps=False, opts=None):
        self.a = Asm(); self.vq = VQ(self.a)
        self.stop = stop; self.stamps = stamps
        self.nstamp = 0; self.stamp_names = []
        self.sc = ' sc1'; self.fsc = ' sc1'; self.fast = False; self.vinv = 4
        self.o = opts or {}

    def mk_srd(self, n, ptr, size, add=None):
        a = self.a
        if add is None:
            a(f's_mov_b32 s{n}, s{ptr}')
            a(f's_and_b32 s{n+1}, s{ptr+1}, 0xffff')
        else:
            a(f's_add_u32 s{n}, s{ptr}, {add}')
            a(f's_addc_u32 s{n+1}, s{ptr+1}, 0')
            a(f's_and_b32 s{n+1}, s{n+1}, 0xffff')
        a(f's_mov_b32 s{n+2}, {size}')
        a(f's_mov_b32 s{n+3}, 0x00020000')

    def dstamp(self, phase, name):
        if self.o.get('detail') == phase and getattr(self, 'cur_layer', 0) == self.o.get('dlayer', 1): self.stamp(name, False, force=True)
    def stamp(self, name='', inloop=False, force=False):
        if not self.stamps: return
        if self.o.get('detail') and not force and name not in ('start', 'end'): return
        inloop = False
        i = self.nstamp; self.nstamp += 1
        assert self.nstamp <= 24, name
        self.stamp_names.append(name)
        a = self.a
        a(f's_waitcnt lgkmcnt(0)')
        a(f's_memtime s[62:63]' if self.o.get('cyc') else f's_memrealtime s[62:63]')
        a(f's_waitcnt lgkmcnt(0)')
        if inloop:
            a('s_cmp_eq_u32 s64, 0')
            a(f's_cselect_b32 s{76+i}, s62, s{76+i}')
            a(f's_cselect_b32 s{77+i}, s{77+i}, s62')
        else:
            a(f's_mov_b32 s{76+i}, s62')

    def vload(self, dst, voff, sr, soff, imm=0, mods='', tag='ld', w='x4'):
        o = f' offset:{imm}' if imm else ''
        op = {'x4': 'buffer_load_dwordx4', 'x2': 'buffer_load_dwordx2', 'x1': 'buffer_load_dword'}[w]
        self.a(f'{op} {dst}, {voff}, {sr}, {soff} offen{o}{mods}')
        self.vq.issue(tag)
    def vstore(self, src, voff, sr, soff, imm=0, mods='', tag='st'):
        o = f' offset:{imm}' if imm else ''
        self.a(f'buffer_store_dwordx4 {src}, {voff}, {sr}, {soff} offen{o}{mods}')
        self.vq.issue(tag)

    def poll(self, vaddr, vtmp, nlanes=64, x4=False):
        a = self.a
        L = a.newlabel('poll'); D = a.newlabel('polld')
        a(f's_mov_b32 s53, 0')
        if nlanes < 64:
            a(f's_mov_b64 s[56:57], exec')
            a(f's_mov_b64 exec, {hex((1 << nlanes) - 1)}')
        a.label(L)
        if x4:
            a(f'buffer_load_dwordx4 v[{vtmp}:{vtmp+3}], v{vaddr}, {WS}, 0 offen sc1')
            a(f's_waitcnt vmcnt(0)')
            a(f'v_xor_b32 v{vtmp}, {sTAG}, v{vtmp}')
            a(f'v_xor_b32 v{vtmp+1}, {sTAG}, v{vtmp+1}')
            a(f'v_xor_b32 v{vtmp+2}, {sTAG}, v{vtmp+2}')
            a(f'v_xor_b32 v{vtmp+3}, {sTAG}, v{vtmp+3}')
            a(f'v_or_b32 v{vtmp}, v{vtmp}, v{vtmp+1}')
            a(f'v_or3_b32 v{vtmp}, v{vtmp}, v{vtmp+2}, v{vtmp+3}')
            a(f'v_cmp_ne_u32 vcc, 0, v{vtmp}')
        else:
            a(f'buffer_load_dword v{vtmp}, v{vaddr}, {WS}, 0 offen sc1')
            a(f's_waitcnt vmcnt(0)')
            a(f'v_cmp_ne_u32 vcc, {sTAG}, v{vtmp}')
        a(f's_cbranch_vccz {D}')
        a(f's_add_u32 s53, s53, 1')
        a(f's_cmp_lg_u32 {sABORT}, 0')
        a(f's_cbranch_scc1 {D}')
        a(f's_cmp_lt_u32 s53, 0x8000')
        a(f's_cbranch_scc1 {L}')
        a(f's_mov_b32 {sABORT}, 1')
        a.label(D)
        if nlanes < 64:
            a(f's_mov_b64 exec, s[56:57]')
        self.vq.reset()

    def poll_prep(self, vaddr, vt):
        a = self.a
        L = a.newlabel('poll'); D = a.newlabel('polld')
        a(f's_mov_b32 s53, 0')
        a.label(L)
        a(f'buffer_load_dwordx4 v[{vt}:{vt+3}], v{vaddr}, {WS}, 0 offen sc1')
        a(f's_waitcnt vmcnt(0)')
        for i in range(4): a(f'v_subrev_u32 v{vt+i}, {sTAG}, v{vt+i}')
        a(f'v_or_b32 v{vt+4}, v{vt}, v{vt+1}')
        a(f'v_or3_b32 v{vt+4}, v{vt+4}, v{vt+2}, v{vt+3}')
        a(f'v_cmp_lt_u32 vcc, 15, v{vt+4}')
        a(f's_cbranch_vccz {D}')
        a(f's_add_u32 s53, s53, 1')
        a(f's_cmp_lg_u32 {sABORT}, 0')
        a(f's_cbranch_scc1 {D}')
        a(f's_cmp_lt_u32 s53, 0x8000')
        a(f's_cbranch_scc1 {L}')
        a(f's_mov_b32 {sABORT}, 1')
        a.label(D)
        self.vq.reset()

    def dyn_role(self, vt):
        a = self.a
        lo, hi, t, u = vt+5, vt+6, vt+7, vt+8
        a(f'v_mov_b32 v{lo}, 0'); a(f'v_mov_b32 v{hi}, 0')
        for i in range(4):
            a(f'v_and_b32 v{t}, 3, v{vt+i}')
            a(f'v_lshlrev_b32 v{t}, 3, v{t}')
            a(f'v_lshlrev_b32 v{t}, v{t}, 1') if False else a(f'v_lshlrev_b32 v{t}, v{t}, v{vt+9}')
            a(f'v_lshrrev_b32 v{u}, 2, v{vt+i}')
            a(f'v_cmp_eq_u32 vcc, 0, v{u}')
            a.nop(2)
            a(f'v_cndmask_b32 v{vt+10}, 0, v{t}, vcc')
            a(f'v_cmp_eq_u32 vcc, 1, v{u}')
            a(f'v_add_u32 v{lo}, v{lo}, v{vt+10}')
            a.nop(1)
            a(f'v_cndmask_b32 v{vt+10}, 0, v{t}, vcc')
            a(f'v_add_u32 v{hi}, v{hi}, v{vt+10}')
        steps = ['quad_perm:[1,0,3,2] row_mask:0xf bank_mask:0xf', 'quad_perm:[2,3,0,1] row_mask:0xf bank_mask:0xf',
                 'row_half_mirror row_mask:0xf bank_mask:0xf', 'row_mirror row_mask:0xf bank_mask:0xf',
                 'row_bcast:15 row_mask:0xa bank_mask:0xf', 'row_bcast:31 row_mask:0xc bank_mask:0xf']
        a.nop(2)
        for st in steps:
            a(f'v_add_u32_dpp v{lo}, v{lo}, v{lo} {st}')
            a(f'v_add_u32_dpp v{hi}, v{hi}, v{hi} {st}')
            a.nop(1)
        a(f'v_readlane_b32 s56, v{lo}, 63')
        a(f'v_readlane_b32 s57, v{hi}, 63')
        a(f'v_lshlrev_b32 v{t}, 2, v1')
        a('s_mov_b32 s58, 0')
        for i in range(4):
            a(f'v_cmp_eq_u32 vcc, {sXCC}, v{vt+i}')
            a(f'v_add_u32 v{u}, {i}, v{t}')
            a(f'v_cmp_gt_u32 s[54:55], s2, v{u}')
            a.nop(1)
            a('s_and_b64 s[54:55], s[54:55], vcc')
            a('s_bcnt1_i32_b64 s55, s[54:55]')
            a('s_add_u32 s58, s58, s55')
        a('s_cmp_eq_u32 s56, 0x20202020')
        a(f's_cselect_b32 {sFAST}, 1, 0')
        a('s_cmp_eq_u32 s57, 0x20202020')
        a(f's_cselect_b32 {sFAST}, {sFAST}, 0')
        a(f's_cmp_eq_u32 {sABORT}, 0')
        a(f's_cselect_b32 {sFAST}, {sFAST}, 0')
        if self.o.get('force_slow'): a(f's_mov_b32 {sFAST}, 0')
        a(f's_cmp_eq_u32 {sFAST}, 1')
        a(f's_cselect_b32 {sC}, {sXCC}, {sC}')
        a(f's_cselect_b32 {sR}, s58, {sR}')

    def check_xc(self, vt, vaddr):
        a = self.a
        self.vq.wait('fw')
        L = a.newlabel('fw'); D = a.newlabel('fwd')
        a('s_mov_b32 s53, 0')
        a.label(L)
        for i in range(4): a(f'v_subrev_u32 v{vt+i}, {sTAG}, v{vt+i}')
        a(f'v_or_b32 v{vt+5}, v{vt}, v{vt+1}')
        a(f'v_or3_b32 v{vt+5}, v{vt+5}, v{vt+2}, v{vt+3}')
        a(f'v_cmp_lt_u32 vcc, 15, v{vt+5}')
        a(f's_cbranch_vccz {D}')
        a('s_add_u32 s53, s53, 1')
        a(f's_cmp_lg_u32 {sABORT}, 0')
        a(f's_cbranch_scc1 {D}')
        a('s_cmp_lt_u32 s53, 0x8000')
        a(f's_cbranch_scc0 {D}_ab')
        a(f'buffer_load_dwordx4 v[{vt}:{vt+3}], v{vaddr}, {WS}, 0 offen sc1')
        a('s_waitcnt vmcnt(0)')
        a(f's_branch {L}')
        a.label(D + '_ab')
        a(f's_mov_b32 {sABORT}, 1')
        a.label(D)
        a(f'v_mov_b32 v{vt+9}, 1')
        self.dyn_role(vt)
        self.weight_state_init()

    def check_fw(self, vt, vaddr):
        a = self.a
        self.vq.wait('fw2')
        L = a.newlabel('fw'); D = a.newlabel('fwd')
        a('s_mov_b32 s53, 0')
        a.label(L)
        for i in range(4): a(f'v_xor_b32 v{vt+i}, {sTAG}, v{vt+i}')
        a(f'v_or_b32 v{vt}, v{vt}, v{vt+1}')
        a(f'v_or3_b32 v{vt}, v{vt}, v{vt+2}, v{vt+3}')
        a(f'v_cmp_ne_u32 vcc, 0, v{vt}')
        a(f's_cbranch_vccz {D}')
        a('s_add_u32 s53, s53, 1')
        a(f's_cmp_lg_u32 {sABORT}, 0')
        a(f's_cbranch_scc1 {D}')
        a('s_cmp_lt_u32 s53, 0x8000')
        a(f's_cbranch_scc0 {D}_ab')
        a(f'buffer_load_dwordx4 v[{vt}:{vt+3}], v{vaddr}, {WS}, 0 offen sc1')
        a('s_waitcnt vmcnt(0)')
        a(f's_branch {L}')
        a.label(D + '_ab')
        a(f's_mov_b32 {sABORT}, 1')
        a.label(D)

    def flag(self, soff, sc=None):
        sc = self.fsc if sc is None else sc
        self.a(f'buffer_store_dword v{vTAG}, off, {WS}, {soff}{sc}')
        self.vq.issue('flag')

    def reduce_multi(self, regs, sdst):
        a = self.a
        steps = ['quad_perm:[1,0,3,2] row_mask:0xf bank_mask:0xf', 'quad_perm:[2,3,0,1] row_mask:0xf bank_mask:0xf',
                 'row_half_mirror row_mask:0xf bank_mask:0xf', 'row_mirror row_mask:0xf bank_mask:0xf',
                 'row_bcast:15 row_mask:0xa bank_mask:0xf', 'row_bcast:31 row_mask:0xc bank_mask:0xf']
        pad = max(0, 3 - len(regs))
        a.nop(max(0, 2 - (len(regs) - 1)) if len(regs) < 3 else 0)
        for s in steps:
            for r in regs:
                a(f'v_add_f32_dpp v{r}, v{r}, v{r} {s}')
            if pad: a.nop(pad)
        if len(regs) < 2: a.nop(1)
        for r, s in zip(regs, sdst):
            a(f'v_readlane_b32 s{s}, v{r}, 63')
        a.nop(2)

    def ln_multi(self, rows):
        a = self.a
        def pr(b): return f'v[{b}:{b+1}]'
        for (x, z, t) in rows:
            a(f'v_pk_add_f32 {pr(t)}, {pr(x)}, {pr(x+2)}')
            a(f'v_pk_mul_f32 {pr(t+2)}, {pr(x)}, {pr(x)}')
        for (x, z, t) in rows:
            a(f'v_pk_add_f32 {pr(t+4)}, {pr(x+4)}, {pr(x+6)}')
            a(f'v_pk_fma_f32 {pr(t+2)}, {pr(x+2)}, {pr(x+2)}, {pr(t+2)}')
        for (x, z, t) in rows:
            a(f'v_pk_add_f32 {pr(t)}, {pr(t)}, {pr(t+4)}')
            a(f'v_pk_fma_f32 {pr(t+2)}, {pr(x+4)}, {pr(x+4)}, {pr(t+2)}')
        for (x, z, t) in rows:
            a(f'v_add_f32 v{t}, v{t}, v{t+1}')
            a(f'v_pk_fma_f32 {pr(t+2)}, {pr(x+6)}, {pr(x+6)}, {pr(t+2)}')
        for (x, z, t) in rows:
            a(f'v_add_f32 v{t+2}, v{t+2}, v{t+3}')
        regs = []; sd = []
        for i, (x, z, t) in enumerate(rows):
            regs += [t, t+2]; sd += [58 - 2*i, 59 - 2*i]
        self.reduce_multi(regs, sd)
        for i, (x, z, t) in enumerate(rows):
            s1, s2 = sd[2*i], sd[2*i+1]
            a(f'v_mul_f32 v{t+4}, s{s1}, v{self.vinv}')
            a(f'v_mul_f32 v{t+2}, s{s2}, v{self.vinv}')
        for (x, z, t) in rows:
            a(f'v_fma_f32 v{t+2}, -v{t+4}, v{t+4}, v{t+2}')
        for (x, z, t) in rows:
            a(f'v_max_f32 v{t+2}, 0, v{t+2}')
        for (x, z, t) in rows:
            a(f'v_add_f32 v{t+2}, 0x3727c5ac, v{t+2}')
        for (x, z, t) in rows:
            a(f'v_rsq_f32 v{t+2}, v{t+2}')
        if len(rows) < 2: a.nop(1)
        for (x, z, t) in rows:
            a(f'v_mul_f32 v{t+4}, v{t+4}, v{t+2}')
        for (x, z, t) in rows:
            for i in range(4):
                a(f'v_pk_fma_f32 {pr(z+2*i)}, {pr(x+2*i)}, {pr(t+2)}, {pr(t+4)} op_sel_hi:[1,0,0] neg_lo:[0,0,1] neg_hi:[0,0,1]')

    def unpack8(self, src, dst):
        a = self.a
        for i in range(4):
            a(f'v_lshlrev_b32 v{dst+2*i}, 16, v{src+i}')
            a(f'v_and_b32 v{dst+2*i+1}, 0xffff0000, v{src+i}')
    def pack8(self, src, dst):
        a = self.a
        for i in range(4):
            a(f'v_cvt_pk_bf16_f32 v{dst+i}, v{src+2*i}, v{src+2*i+1}')

    def prologue(self):
        a = self.a
        a('s_cmp_ge_u32 s2, 256')
        a('s_cbranch_scc1 L_end')
        a('s_load_dwordx16 s[16:31], s[0:1], 0')
        a('s_load_dwordx8 s[32:39], s[0:1], 64')
        a('s_load_dwordx4 s[40:43], s[0:1], 96')
        a('s_getpc_b64 s[68:69]')
        a(f's_and_b32 {sC}, s2, 7')
        a(f's_lshr_b32 {sR}, s2, 3')
        a(f's_mov_b32 {sABORT}, 0')
        a(f's_getreg_b32 {sXCC}, hwreg(HW_REG_XCC_ID)')
        a(f's_min_u32 {sXCC}, {sXCC}, 8')
        a('v_lshrrev_b32 v4, 6, v0')
        a('v_and_b32 v1, 63, v0')
        a(f'v_readfirstlane_b32 {sW}, v4')
        a(f'v_lshlrev_b32 v{vL16}, 4, v1')
        a('s_waitcnt lgkmcnt(0)')
        self.mk_srd(44, sWSP, WS_SIZE)
        self.stamp('start')
        if self.stamps:
            a('s_memtime s[62:63]'); a('s_waitcnt lgkmcnt(0)'); a('s_mov_b32 s100, s62')
        a(f'buffer_load_dword v{vTAG}, off, {WS}, 0 sc1')
        self.vq.issue('epoch')

    def code_prefetch(self):
        a = self.a
        a('s_and_b32 s68, s68, 0xffffff00')
        a('s_and_b32 s69, s69, 0xffff')
        a(f's_mov_b32 s{SD_}, s68'); a(f's_mov_b32 s{SD_+1}, s69')
        a(f's_mov_b32 s{SD_+2}, CODE_BYTES')
        a(f's_mov_b32 s{SD_+3}, 0x00020000')
        a('v_lshlrev_b32 v87, 7, v0')
        a(f'buffer_load_dword v254, v87, {srd(SD_)}, 0 offen'); self.vq.issue('pf')
        a('v_add_u32 v87, 0x8000, v87')
        a(f'buffer_load_dword v254, v87, {srd(SD_)}, 0 offen'); self.vq.issue('pf')

    def pretouch(self):
        a = self.a
        a(f's_min_u32 s58, {sXCC}, 7')
        a('s_lshl_b32 s53, s58, 18')
        a(f's_lshl_b32 s54, {sR}, 13')
        a('s_add_u32 s53, s53, s54')
        a('v_lshlrev_b32 v88, 7, v1')
        Ls = a.newlabel('pt')
        a(f's_cmp_lg_u32 {sW}, 3')
        a(f's_cbranch_scc1 {Ls}'); a.comment('COND_BEGIN')
        self.mk_srd(SD_, sQ, 2097152)
        a(f'buffer_load_dword v255, v88, {srd(SD_)}, s53 offen')
        self.mk_srd(SD_, sB1, 3584)
        a(f'buffer_load_dword v255, v88, {srd(SD_)}, 0 offen')
        self.mk_srd(SD_, sB2, 1024)
        a(f'buffer_load_dword v255, v88, {srd(SD_)}, 0 offen')
        self.mk_srd(SD_, sOUT, 2097152)
        a(f'buffer_load_dword v255, off, {srd(SD_)}, s53')
        a('v_lshlrev_b32 v87, 21, v1')
        a('v_min_u32 v87, 0x1c00000, v87')
        a(f'buffer_load_dword v255, v87, {WS}, 0 offen')
        a.label(Ls); a.comment('COND_END')

    def prep(self):
        a = self.a; vq = self.vq
        if self.o.get('prefetch', True): self.code_prefetch()
        a('v_lshrrev_b32 v8, 3, v0')
        a('v_and_b32 v9, 7, v0')
        a('v_lshlrev_b32 v8, 15, v8')
        a('v_lshl_add_u32 v8, v9, 4, v8')
        a(f's_lshl_b32 s53, {sC}, 5')
        a(f's_add_u32 s53, s53, {sR}')
        a('s_lshl_b32 s53, s53, 7')
        a(f's_add_u32 s53, s53, {GB}')
        for i in range(4): a(f'v_mov_b32 v{160+i}, -1')
        self.clear_g = True
        a('v_lshrrev_b32 v4, 5, v0')
        a('v_and_b32 v5, 31, v0')
        a(f's_lshl_b32 s53, {sR}, 16')
        a(f's_lshl_b32 s54, {sC}, 7')
        a('s_add_u32 s53, s53, s54')
        a('v_lshlrev_b32 v6, 13, v4')
        a('v_lshl_add_u32 v6, v5, 2, v6')
        a('v_add_u32 v6, s53, v6')
        a('v_subrev_u32 v7, 3072, v6')
        a('v_add_u32 v8, 4096, v6')
        self.mk_srd(SA, sK, 2097152)
        self.mk_srd(SB, sV, 2097152)
        self.mk_srd(SC_, sSK, 4096)
        K = 10
        for i in range(3): self.vload(f'v{K+i}', 'v7', srd(SA), 0, 1024*i, w='x1', tag='kv')
        for i in range(4): self.vload(f'v{K+3+i}', 'v6', srd(SA), 0, 1024*i, w='x1', tag='kv')
        for i in range(4): self.vload(f'v{K+7+i}', 'v8', srd(SA), 0, 1024*i, w='x1', tag='kv')
        V = 21
        for i in range(4): self.vload(f'v{V+i}', 'v6', srd(SB), 0, 1024*i, w='x1', tag='kv')
        for i in range(4): self.vload(f'v{V+4+i}', 'v8', srd(SB), 0, 1024*i, w='x1', tag='kv')
        a(f's_lshl_b32 s53, {sC}, 9')
        a('v_lshlrev_b32 v9, 4, v5')
        a('v_add_u32 v9, s53, v9')
        self.vload('v[30:33]', 'v9', srd(SC_), 0, tag='kv')
        self.mk_srd(SA, sW1, 512*1792*2)
        self.mk_srd(SB, sW2, 512*1792*2)
        a(f's_lshl_b32 s53, {sR}, 4')
        a(f's_lshl_b32 s54, {sW}, 2')
        a('s_add_u32 s53, s53, s54')
        a('s_mul_i32 s53, s53, 3584')
        a(f's_mul_i32 s54, {sC}, 448')
        a('s_add_u32 s53, s53, s54')
        a('v_lshrrev_b32 v34, 4, v1')
        a('v_and_b32 v9, 15, v1')
        a('v_mul_u32_u24 v29, 3584, v34')
        a('v_lshl_add_u32 v29, v9, 4, v29')
        a('v_add_u32 v29, s53, v29')
        self.vload('v[34:37]', 'v29', srd(SA), 0, tag='wr')
        self.vload('v[38:41]', 'v29', srd(SA), 0, 256, tag='wr')
        a('s_lshr_b32 s53, s2, 1')
        a('s_lshl_b32 s53, s53, 14')
        a('s_and_b32 s54, s2, 1')
        a('s_lshl_b32 s54, s54, 9')
        a('s_add_u32 s53, s53, s54')
        a('v_lshrrev_b32 v42, 4, v0')
        a('v_lshlrev_b32 v50, 10, v42')
        a('v_lshl_add_u32 v50, v9, 4, v50')
        a('v_add_u32 v50, s53, v50')
        self.vload('v[42:45]', 'v50', srd(SB), 0, tag='wr')
        self.vload('v[46:49]', 'v50', srd(SB), 0, 256, tag='wr')
        a(f's_lshl_b32 s53, {sC}, 5')
        a(f's_add_u32 s53, s53, {sR}')
        a('s_lshl_b32 s53, s53, 1')
        a(f's_lshr_b32 s54, {sW}, 1')
        a('s_add_u32 s53, s53, s54')
        a('s_lshl_b32 s53, s53, 12')
        self.mk_srd(SC_, sSSM, 4096, add='s53')
        a('v_and_b32 v54, 127, v0')
        a('v_lshlrev_b32 v51, 4, v54')
        a('v_subrev_u32 v52, 64, v51')
        a('v_subrev_u32 v53, 48, v51')
        HR = 56
        for rho in range(3):
            if rho:
                a(f'v_add_u32 v52, 2048, v52')
                a(f'v_add_u32 v53, 2048, v53')
            self.vload(f'v[{HR+8*rho}:{HR+8*rho+3}]', 'v52', srd(SC_), 0, tag='hr')
            self.vload(f'v[{HR+8*rho+4}:{HR+8*rho+7}]', 'v53', srd(SC_), 0, tag='hr')

        a(f's_lshl_b32 s53, {sC}, 5')
        a(f's_add_u32 s53, s53, {sR}')
        a('s_lshl_b32 s53, s53, 7')
        a(f's_add_u32 s53, s53, {GB}')
        a('v_lshrrev_b32 v85, 3, v0')
        a('v_and_b32 v86, 7, v0')
        a('v_lshlrev_b32 v85, 15, v85')
        a('v_lshl_add_u32 v85, v86, 4, v85')
        self.vstore('v[160:163]', 'v85', WS, 's53', 0, ' sc1', tag='clr')
        a(f's_add_u32 s53, s53, {32*32768}')
        self.vstore('v[160:163]', 'v85', WS, 's53', 0, ' sc1', tag='clr')
        a(f's_lshl_b32 s53, {sC}, 5')
        a(f's_add_u32 s53, s53, {sR}')
        a('s_lshl_b32 s53, s53, 2')
        a(f's_add_u32 s54, s{sD}, s53')
        a(f's_addc_u32 s55, s{sD+1}, 0')
        a('s_load_dword s60, s[54:55], 0')
        if self.o.get('pretouch', True): self.pretouch()
        a('v_mov_b32 v80, 0'); a('v_mov_b32 v81, 0'); a('v_mov_b32 v82, 0'); a('v_mov_b32 v83, 0')
        a('v_lshlrev_b32 v84, 4, v0')
        a('v_cmp_gt_u32 vcc, 90, v0')
        a('s_and_saveexec_b64 s[56:57], vcc')
        a(f'ds_write_b128 v84, v[80:83] offset:{L_XB + 64*96}')
        a(f'ds_write_b128 v84, v[80:83] offset:{L_XB + XBS + 64*96}')
        a('s_mov_b64 exec, s[56:57]')
        vq.wait('kv')
        self.stamp('kv loaded')
        a(f'v_add_u32 v{vTAG}, 16, v{vTAG}')
        Wp = 90
        a(f'v_lshlrev_b32 v{Wp+0}, 16, v30'); a(f'v_lshlrev_b32 v{Wp+1}, 16, v32')
        a(f'v_readfirstlane_b32 {sTAG}, v{vTAG}')
        a(f'v_and_b32 v{Wp+2}, 0xffff0000, v30'); a(f'v_and_b32 v{Wp+3}, 0xffff0000, v32')
        a(f'v_lshlrev_b32 v{Wp+4}, 16, v31'); a(f'v_lshlrev_b32 v{Wp+5}, 16, v33')
        a(f'v_and_b32 v{Wp+6}, 0xffff0000, v31'); a(f'v_and_b32 v{Wp+7}, 0xffff0000, v33')
        Lx = a.newlabel('noxc')
        a(f's_cmp_lg_u32 {sW}, 0')
        a(f's_cbranch_scc1 {Lx}'); a.comment('COND_BEGIN')
        a('s_lshl_b32 s53, s2, 2')
        a(f's_add_u32 s53, s53, {F_XC}')
        a(f'v_add_u32 v85, {sXCC}, v{vTAG}')
        a(f'buffer_store_dword v85, off, {WS}, s53 sc1')
        a.label(Lx); a.comment('COND_END')
        KU = 100
        for i in range(11):
            a(f'v_lshlrev_b32 v{KU+2*i}, 16, v{K+i}')
            a(f'v_and_b32 v{KU+2*i+1}, 0xffff0000, v{K+i}')
        VU = 122
        for i in range(8):
            a(f'v_lshlrev_b32 v{VU+2*i}, 16, v{V+i}')
            a(f'v_and_b32 v{VU+2*i+1}, 0xffff0000, v{V+i}')
        AC = 140
        def pr(b): return f'v[{b}:{b+1}]'
        for t, wq in enumerate([6, 4, 2, 0]):
            for i in range(8):
                if t == 0: a(f'v_pk_mul_f32 {pr(AC+2*i)}, {pr(KU+2*(i+0))}, {pr(Wp+6)}')
                else: a(f'v_pk_fma_f32 {pr(AC+2*i)}, {pr(KU+2*(i+t))}, {pr(Wp+wq)}, {pr(AC+2*i)}')
        for i in range(8):
            a(f'v_pk_mul_f32 {pr(AC+2*i)}, {pr(AC+2*i)}, {pr(VU+2*i)}')
        for j in range(4):
            hi, lo = 7 - 2*j - 1, 7 - 2*j
            a(f'v_cvt_pk_bf16_f32 v{160+j}, v{AC+2*lo}, v{AC+2*hi}')
            a(f'v_cvt_pk_bf16_f32 v{164+j}, v{AC+2*lo+1}, v{AC+2*hi+1}')
        a('v_sub_u32 v85, 7, v4')
        a('v_and_b32 v9, 7, v5')
        a('v_xor_b32 v85, v85, v9')
        a('v_lshlrev_b32 v85, 4, v85')
        a('v_lshl_add_u32 v85, v5, 8, v85')
        a(f'ds_write_b128 v85, v[160:163] offset:{L_KVT}')
        a(f'ds_write_b128 v85, v[164:167] offset:{L_KVT+128}')
        a('v_lshrrev_b32 v85, 3, v0')
        a('v_and_b32 v9, 7, v0')
        a('v_bfe_u32 v29, v85, 1, 3')
        a('v_xor_b32 v29, v29, v9')
        a('v_lshlrev_b32 v29, 4, v29')
        a('v_lshl_add_u32 v29, v85, 7, v29')
        a(f's_lshl_b32 s53, {sC}, 18')
        a(f's_lshl_b32 s54, {sR}, 7')
        a('s_sub_u32 s53, s53, s54')
        a(f's_add_u32 s53, s53, {XR + 3968}')
        a('v_lshlrev_b32 v50, 12, v85')
        a('v_lshl_add_u32 v50, v9, 4, v50')
        a('v_add_u32 v51, 0x20000, v50')
        a('s_waitcnt lgkmcnt(0)')
        a('s_barrier')
        a(f'ds_read_b128 v[160:163], v29 offset:{L_KVT}')
        a(f'ds_read_b128 v[164:167], v29 offset:{L_KVT+4096}')
        a('s_waitcnt lgkmcnt(1)')
        self.vstore('v[160:163]', 'v50', WS, 's53', 0, ' sc1', tag='xr')
        a('s_waitcnt lgkmcnt(0)')
        self.vstore('v[164:167]', 'v51', WS, 's53', 0, ' sc1', tag='xr')
        self.stamp('xr stored')
        vq.wait('wr')
        a('v_lshrrev_b32 v85, 4, v0')
        a('v_and_b32 v9, 15, v0')
        a('v_mul_u32_u24 v29, 448, v85')
        a('v_lshl_add_u32 v29, v9, 4, v29')
        a(f'ds_write_b128 v29, v[34:37] offset:{L_W1R}')
        a('v_cmp_gt_u32 vcc, 12, v9')
        a('s_and_saveexec_b64 s[56:57], vcc')
        a(f'ds_write_b128 v29, v[38:41] offset:{L_W1R+256}')
        a('s_mov_b64 exec, s[56:57]')
        a('v_mul_u32_u24 v29, 576, v85')
        a('v_lshl_add_u32 v29, v9, 4, v29')
        a(f'ds_write_b128 v29, v[42:45] offset:{L_W2R}')
        a(f'ds_write_b128 v29, v[46:49] offset:{L_W2R+256}')
        a('v_lshrrev_b32 v85, 5, v1')
        a('v_bfe_u32 v9, v1, 2, 2')
        a('v_bfe_u32 v29, v1, 4, 1')
        a('v_and_b32 v86, 3, v1')
        a('v_lshlrev_b32 v86, 3, v86')
        a('v_lshl_add_u32 v86, v29, 5, v86')
        a('v_lshl_add_u32 v55, v85, 3, v9')
        a('v_mul_u32_u24 v55, 448, v55')
        a('v_add_u32 v55, v55, v86')
        a(f's_lshl_b32 s54, {sW}, 6')
        a('v_add_u32 v55, s54, v55')
        a('v_lshl_add_u32 v89, v85, 2, v9')
        a('v_mul_u32_u24 v89, 576, v89')
        a('v_add_u32 v89, v89, v86')
        a('v_add_u32 v89, s54, v89')
        a('s_waitcnt lgkmcnt(0)')
        vq.wait('xr')
        a('s_barrier')
        Lnf = a.newlabel('noflag')
        a(f's_cmp_lg_u32 {sW}, 0')
        a(f's_cbranch_scc1 {Lnf}'); a.comment('COND_BEGIN')
        a(f's_lshl_b32 s53, {sC}, 5')
        a(f's_add_u32 s53, s53, {sR}')
        a('s_lshl_b32 s53, s53, 2')
        a(f's_add_u32 s53, s53, {F_PREP}')
        a(f'buffer_store_dword v{vTAG}, off, {WS}, s53 sc1')
        a.label(Lnf); a.comment('COND_END')
        self.stamp('prep published')
        a(f'ds_read_b64_tr_b16 v[168:169], v55 offset:{L_W1R}')
        a(f'ds_read_b64_tr_b16 v[170:171], v55 offset:{L_W1R + 4*448}')
        a(f'ds_read_b64_tr_b16 v[172:173], v55 offset:{L_W1R + 256}')
        a(f'ds_read_b64_tr_b16 v[174:175], v55 offset:{L_W1R + 4*448 + 256}')
        a(f'ds_read_b64_tr_b16 v[176:177], v89 offset:{L_W2R}')
        a(f'ds_read_b64_tr_b16 v[178:179], v89 offset:{L_W2R + 8*576}')
        a(f'ds_read_b64_tr_b16 v[180:181], v89 offset:{L_W2R + 256}')
        a(f'ds_read_b64_tr_b16 v[182:183], v89 offset:{L_W2R + 8*576 + 256}')
        a(f's_mul_i32 s53, {sC}, 7')
        a(f's_add_u32 s53, s53, {sW}')
        a(f's_mul_i32 s54, {sR}, 56')
        a('s_add_u32 s53, s53, s54')
        a('s_lshl_b32 s53, s53, 10')
        a(f's_add_u32 s53, s53, {W1F}')
        a(f's_add_u32 s55, s53, {4*1024}')
        a('s_lshl_b32 s57, s2, 12')
        a(f's_add_u32 s57, s57, {DUMMY2}')
        a(f's_cmp_eq_u32 {sW}, 3')
        a('s_cselect_b32 s55, s57, s55')
        a('s_waitcnt lgkmcnt(4)')
        self.vstore('v[168:171]', f'v{vL16}', WS, 's53', 0, ' sc1', tag='wf')
        self.vstore('v[172:175]', f'v{vL16}', WS, 's55', 0, ' sc1', tag='wf')
        a('s_lshr_b32 s54, s2, 1')
        a('s_mul_i32 s55, s54, 9363')
        a('s_lshr_b32 s55, s55, 18')
        a('s_mul_i32 s56, s55, 28')
        a('s_sub_u32 s54, s54, s56')
        a('s_lshl_b32 s54, s54, 2')
        a('s_add_u32 s54, s54, s55')
        a('s_lshl_b32 s54, s54, 4')
        a('s_and_b32 s53, s2, 1')
        a('s_lshl_b32 s53, s53, 3')
        a(f's_add_u32 s53, s53, {sW}')
        a('s_add_u32 s53, s53, s54')
        a('s_lshl_b32 s53, s53, 10')
        a(f's_add_u32 s53, s53, {W2F}')
        a('s_cmp_ge_u32 s2, 224')
        a('s_cselect_b32 s53, s57, s53')
        a('s_waitcnt lgkmcnt(0)')
        self.vstore('v[176:179]', f'v{vL16}', WS, 's53', 0, ' sc1', tag='wf')
        a(f's_add_u32 s54, s53, {4*1024}')
        a('s_cselect_b32 s53, s57, s54') if False else None
        a('s_cmp_ge_u32 s2, 224')
        a('s_cselect_b32 s53, s57, s54')
        self.vstore('v[180:183]', f'v{vL16}', WS, 's53', 0, ' sc1', tag='wf')
        a('v_and_b32 v54, 127, v0')
        a('v_lshlrev_b32 v50, 4, v54')
        a(f's_lshr_b32 s53, {sW}, 1')
        a(f's_mul_i32 s53, s53, {8*CS}')
        a(f's_add_u32 s53, s53, {L_TOEP}')
        a('v_add_u32 v50, s53, v50')
        for rho in range(3):
            D = HR + 8*rho
            if rho == 2:
                a('v_cmp_gt_u32 vcc, 3, v54')
                a('s_and_saveexec_b64 s[56:57], vcc')
            O = 100
            for k in range(7): a(f'v_alignbit_b32 v{O+k}, v{D+k+1}, v{D+k}, 16')
            for k in range(1, 7): a(f'v_alignbit_b32 v{110+k-1}, v{D+k+1}, v{D+k}, 16')
            for k in range(1, 7): a(f'v_mov_b32 v{120+k-1}, v{D+k}')
            off = rho*2048
            srcs = [O+0, 120, 110, D+2, O+2, 122, 112, D+4]
            for sg in range(8):
                a(f'ds_write_b128 v50, v[{srcs[sg]}:{srcs[sg]+3}] offset:{sg*CS + off}')
            if rho < 2: a.nop(1)
            if rho == 2: a('s_mov_b64 exec, s[56:57]')
        vq.wait('wf')
        a('s_barrier')
        Lnf = a.newlabel('noflag')
        a(f's_cmp_lg_u32 {sW}, 0')
        a(f's_cbranch_scc1 {Lnf}'); a.comment('COND_BEGIN')
        a('s_lshl_b32 s53, s2, 2')
        a(f's_add_u32 s53, s53, {F_W}')
        a(f'buffer_store_dword v{vTAG}, off, {WS}, s53 sc1')
        a.label(Lnf); a.comment('COND_END')
        self.stamp('w published')

    def dest_touch_addr(self):
        a = self.a
        a(f's_lshl_b32 s53, {sC}, 1')
        a(f's_add_u32 s53, s53, {sT1}')
        a('s_mul_i32 s53, s53, 448')
        a(f's_lshl_b32 s54, {sJ}, 2')
        a(f's_add_u32 s54, s54, {sW}')
        a('s_min_u32 s54, s54, 55')
        a('s_lshl_b32 s54, s54, 1')
        a('s_add_u32 s53, s53, s54')
        a('s_lshl_b32 s53, s53, 10')
        a(f's_add_u32 s53, s53, {H0}')
        a('v_lshrrev_b32 v27, 4, v1')
        a('v_mul_u32_u24 v27, 114688 & 0xffffff, v27') if False else None
        a('s_mov_b32 s54, 114688')
        a('v_mul_lo_u32 v27, v27, s54')
        a('v_and_b32 v28, 15, v1')
        a('v_lshl_add_u32 v27, v28, 7, v27')
        a('v_add_u32 v27, s53, v27')
        a(f's_lshl_b32 s53, {sC}, 8')
        a(f's_lshl_b32 s54, {sR}, 3')
        a('s_add_u32 s53, s53, s54')
        a(f's_add_u32 s53, s53, {sW}')
        a('s_lshl_b32 s53, s53, 10')
        a(f's_add_u32 s53, s53, {Y0}')
        a('v_and_b32 v28, 7, v1')
        a('v_lshlrev_b32 v28, 7, v28')
        a('v_bfe_u32 v29, v1, 3, 1')
        a('v_lshl_add_u32 v28, v29, 12, v28')
        a('v_bfe_u32 v29, v1, 4, 1')
        a(f'v_mul_u32_u24 v29, {X1 - Y0}, v29')
        a('v_add_u32 v28, v28, v29')
        a('v_add_u32 v28, s53, v28')
        a(f's_lshr_b32 s53, {sR}, 3')
        a('s_lshl_b32 s53, s53, 5')
        a(f's_lshl_b32 s54, {sW}, 3')
        a('s_add_u32 s53, s53, s54')
        a('v_and_b32 v29, 7, v1')
        a('v_add_u32 v29, s53, v29')
        a('v_lshrrev_b32 v26, 2, v29')
        a('v_lshlrev_b32 v26, 3, v26')
        a('v_and_b32 v29, 3, v29')
        a('v_add_u32 v29, v29, v26')
        a('v_bfe_u32 v26, v1, 3, 1')
        a('v_lshl_add_u32 v29, v26, 2, v29')
        a(f's_lshl_b32 s53, {sC}, 8')
        a('v_add_u32 v29, s53, v29')
        a('v_lshlrev_b32 v29, 10, v29')
        a(f's_and_b32 s53, {sR}, 7')
        a('s_lshl_b32 s53, s53, 7')
        a(f's_add_u32 s53, s53, {X2}')
        a('v_add_u32 v29, s53, v29')
    def dest_touch_issue(self):
        a = self.a
        for r in (27, 28, 29):
            a(f'buffer_load_dword v15, v{r}, {WS}, 0 offen'); self.vq.issue('touch')

    def weight_state_init(self):
        a = self.a
        a(f's_cmp_ge_u32 {sR}, 14')
        a(f's_cselect_b32 {sT1}, 1, 0')
        a(f's_mul_i32 s53, {sT1}, 14')
        a(f's_sub_u32 {sJ}, {sR}, s53')
        a(f's_lshl_b32 s14, {sJ}, 2')
        a(f's_add_u32 s14, s14, {sW}')
        a('s_min_u32 s14, s14, 55')
        a('s_lshl_b32 s14, s14, 10')
        a(f's_add_u32 s14, s14, {W1F}')
        a(f's_and_b32 s15, {sR}, 7')
        a('s_lshl_b32 s15, s15, 1')
        a(f's_lshl_b32 s53, {sW}, 4')
        a('s_add_u32 s15, s15, s53')
        a('s_lshl_b32 s15, s15, 10')
        a(f's_add_u32 s15, s15, {W2F}')
        self.wlist = [('w1', k) for k in range(32)] + [('w2', nt, i) for i in range(28) for nt in range(2)]
    def weight_batch(self, n):
        a = self.a
        for _ in range(n):
            if not self.wlist: return
            it = self.wlist.pop(0)
            if it[0] == 'w1':
                k = it[1]
                a(f's_add_u32 s13, s14, {k*56*1024}')
                self.vload(W1reg(k), f'v{vL16}', WS, 's13', 0, ' sc1', tag='w')
            else:
                _, nt, i = it
                a(f's_add_u32 s13, s15, {i*64*1024}')
                self.vload(W2reg(nt, i), f'v{vL16}', WS, 's13', nt*1024, ' sc1', tag='w')

    def conv(self):
        a = self.a; vq = self.vq; o = self.o
        a(f's_lshl_b32 s53, {sC}, 7')
        a(f's_add_u32 s53, s53, {F_PREP}')
        a('v_and_b32 v5, 31, v1')
        a('v_lshlrev_b32 v5, 2, v5')
        a('v_add_u32 v5, s53, v5')
        self.poll(5, 8)
        self.stamp('prep flags seen')
        a(f's_lshl_b32 s53, {sC}, 5')
        a(f's_add_u32 s53, s53, {sR}')
        a('s_lshl_b32 s61, s53, 7')
        a('s_lshl_b32 s53, s53, 13')
        a(f's_add_u32 s53, s53, {XR}')
        a('v_lshlrev_b32 v5, 4, v0')
        self.vload('v[8:11]', 'v5', WS, 's53', 0, ' sc1', tag='x0')
        a('s_add_u32 s53, s53, 4096')
        self.vload('v[12:15]', 'v5', WS, 's53', 0, ' sc1', tag='x1')
        a(f'v_add_u32 v132, {F_XC}, v{vL16}')
        a(f'buffer_load_dwordx4 v[128:131], v132, {WS}, 0 offen sc1'); vq.issue('fw')
        self.check_xc(128, 132)
        a('v_lshrrev_b32 v4, 2, v0')
        a('v_mul_u32_u24 v4, 96, v4')
        a('v_and_b32 v5, 3, v0')
        a('v_lshl_add_u32 v4, v5, 4, v4')
        vq.wait('x0')
        a(f'ds_write_b128 v4, v[8:11] offset:{L_XB}')
        vq.wait('x1')
        a(f'ds_write_b128 v4, v[12:15] offset:{L_XB + XBS}')
        a(f's_lshr_b32 s67, {sW}, 1')
        a(f's_and_b32 s59, {sW}, 1')
        a('v_and_b32 v4, 15, v1')
        a('v_lshrrev_b32 v5, 4, v1')
        a('v_and_b32 v6, 7, v4')
        a(f'v_mul_u32_u24 v6, {CS}, v6')
        a('v_and_b32 v7, 8, v4')
        a('v_lshl_add_u32 v7, v5, 3, v7')
        a('v_lshl_add_u32 v6, v7, 1, v6')
        a(f's_mul_i32 s55, s67, {8*CS}')
        a('s_lshl_b32 s56, s59, 5')
        a('s_add_u32 s55, s55, s56')
        a(f's_add_u32 s55, s55, {L_TOEP}')
        a('v_add_u32 v6, s55, v6')
        a('v_sub_u32 v7, 15, v4')
        a('v_mul_u32_u24 v7, 96, v7')
        a('v_lshl_add_u32 v7, v5, 4, v7')
        a(f's_mul_i32 s55, s67, {XBS}')
        a(f's_add_u32 s55, s55, {L_XB}')
        a('v_add_u32 v7, s55, v7')
        a('s_waitcnt lgkmcnt(0)')
        a('s_barrier')
        for i in range(16): a(f'v_mov_b32 v{16+i}, 0')
        self.stamp('x in lds')
        wb1 = o.get('wb1', 18)
        def Er(m, j): b = 32 + 32*(m % 3) + 4*j; return f'v[{b}:{b+3}]'
        def Fr(m, j): b = 32 + 32*(m % 3) + 16 + 4*j; return f'v[{b}:{b+3}]'
        def gloads(m):
            l = []
            for j in range(4):
                e = 16*j - m
                l.append(f'ds_read_b128 {Fr(m,j)}, v6 offset:{64*(m+16*j)}')
                l.append(f'ds_read_b128 {Er(m,j)}, v7 offset:{(48-e)*96}')
            return l
        for l in gloads(0): a(l)
        for l in gloads(1)[:7]: a(l)
        first_extra = gloads(1)[7:]
        for m in range(16):
            nxt = (first_extra if m == 0 else []) + (gloads(m+2) if m + 2 < 16 else [])
            if m == 0: a('s_waitcnt lgkmcnt(7)')
            elif m < 15: a('s_waitcnt lgkmcnt(8)')
            else: a('s_waitcnt lgkmcnt(0)')
            mf = []
            for j in range(4):
                for c in range(j, 4):
                    mf.append(f'v_mfma_f32_16x16x32_bf16 v[{16+4*c}:{19+4*c}], {Fr(m,j)}, {Er(m,c-j)}, v[{16+4*c}:{19+4*c}]')
            if m == o.get('fwslot', 4) - 2:
                a(f'v_add_u32 v132, {F_W}, v{vL16}')
                a(f'buffer_load_dwordx4 v[128:131], v132, {WS}, 0 offen sc1'); vq.issue('fw2')
            if m == o.get('fwslot', 4): self.check_fw(128, 132)
            for i, ins in enumerate(mf):
                a(ins)
                if nxt: a(nxt.pop(0))
                if m >= o.get('fwslot', 4) and m <= o.get('wb1last', 13) and i in (3, 8) and wb1 > 0:
                    self.weight_batch(1); wb1 -= 1
            assert not nxt
        self.weight_batch(wb1)
        self.stamp('conv mfma done')
        a('v_sub_u32 v8, 15, v4')
        a('v_mul_u32_u24 v8, 96, v8')
        a('v_lshlrev_b32 v9, 3, v5')
        a('v_sub_u32 v8, v8, v9')
        a(f's_mul_i32 s55, s67, {XBS}')
        a(f's_add_u32 s55, s55, {L_XB + 56}')
        a('s_lshl_b32 s56, s59, 5')
        a('s_sub_u32 s55, s55, s56')
        a('v_add_u32 v8, s55, v8')
        for c in range(4):
            a(f'ds_read_b64 v[{48+2*c}:{49+2*c}], v8 offset:{(48-16*c)*96}')
        a('s_lshl_b32 s55, s60, 16')
        a('s_and_b32 s56, s60, 0xffff0000')
        a('s_cmp_eq_u32 s67, 0')
        a('s_cselect_b32 s55, s55, s56')
        a('v_lshrrev_b32 v9, 1, v5')
        a('v_lshlrev_b32 v9, 1, v9')
        a('s_lshl_b32 s56, s59, 2')
        a('s_add_u32 s56, s56, s67')
        a('v_add_u32 v9, s56, v9')
        a('v_and_b32 v10, 7, v4')
        a('v_xor_b32 v9, v9, v10')
        a('v_lshlrev_b32 v9, 4, v9')
        a('v_lshl_add_u32 v9, v4, 7, v9')
        a('v_and_b32 v10, 1, v5')
        a('v_lshl_add_u32 v9, v10, 3, v9')
        a('s_waitcnt lgkmcnt(0)')
        for c in range(4):
            d0, d1 = 48+2*c, 49+2*c
            acc = 16+4*c
            a(f'v_and_b32 v60, 0xffff0000, v{d1}')
            a(f'v_lshlrev_b32 v61, 16, v{d1}')
            a(f'v_and_b32 v62, 0xffff0000, v{d0}')
            a(f'v_lshlrev_b32 v63, 16, v{d0}')
            for r in range(4):
                a(f'v_fma_f32 v{60+r}, v{60+r}, s55, v{acc+r}')
            a(f'v_cvt_pk_bf16_f32 v{64+2*c}, v60, v61')
            a(f'v_cvt_pk_bf16_f32 v{65+2*c}, v62, v63')
            a(f'ds_write_b64 v9, v[{64+2*c}:{65+2*c}] offset:{L_GT + 16*c*128}')
        a('v_lshrrev_b32 v8, 3, v0')
        a('v_and_b32 v9, 7, v0')
        a('v_and_b32 v10, 7, v8')
        a('v_xor_b32 v10, v10, v9')
        a('v_lshlrev_b32 v10, 4, v10')
        a('v_lshl_add_u32 v10, v8, 7, v10')
        a('v_lshlrev_b32 v11, 15, v8')
        a('v_lshl_add_u32 v11, v9, 4, v11')
        a('s_waitcnt lgkmcnt(0)')
        a('s_barrier')
        a(f'ds_read_b128 v[48:51], v10 offset:{L_GT}')
        a(f'ds_read_b128 v[52:55], v10 offset:{L_GT + 4096}')
        a(f's_add_u32 s53, s61, {GB}')
        a('s_waitcnt lgkmcnt(1)')
        self.vstore('v[48:51]', 'v11', WS, 's53', 0, ' sc1', tag='g')
        a(f's_add_u32 s53, s53, {32*32768}')
        a('s_waitcnt lgkmcnt(0)')
        self.vstore('v[52:55]', 'v11', WS, 's53', 0, ' sc1', tag='g')
        self.mk_srd(SA, sQ, 2097152)
        a(f's_lshl_b32 s53, {sC}, 8')
        a(f's_lshl_b32 s54, {sR}, 3')
        a('s_add_u32 s53, s53, s54')
        a(f's_add_u32 s53, s53, {sW}')
        a('s_lshl_b32 s53, s53, 10')
        self.vload('v[8:11]', f'v{vL16}', srd(SA), 's53', 0, tag='q')
        a('s_add_u32 s53, s53, 4096')
        self.vload('v[12:15]', f'v{vL16}', srd(SA), 's53', 0, tag='q')
        a('s_barrier')
        self.weight_batch(o.get('wb2', 14))
        self.stamp('conv published')

    def finish(self):
        a = self.a
        a.label('L_fin')
        Ln = a.newlabel('noep')
        a('s_cmp_lg_u32 s2, 0')
        a(f's_cbranch_scc1 {Ln}'); a.comment('COND_BEGIN')
        a(f's_cmp_lg_u32 {sW}, 0')
        a(f's_cbranch_scc1 {Ln}'); a.comment('COND_BEGIN')
        a(f'buffer_store_dword v{vTAG}, off, {WS}, 0 sc1')
        a.label(Ln)
        if self.stamps:
            self.stamp('end')
            a('s_memtime s[62:63]'); a('s_waitcnt lgkmcnt(0)'); a('s_sub_u32 s100, s62, s100')
            a('s_lshl_b32 s53, s2, 2')
            a(f's_add_u32 s53, s53, {sW}')
            a('s_lshl_b32 s53, s53, 7')
            a(f's_add_u32 s53, s53, {TS}')
            a('s_mov_b64 exec, 1')
            a('v_mov_b32 v4, 0')
            for i in range(self.nstamp):
                a(f'v_mov_b32 v5, s{76+i}')
                a(f'buffer_store_dword v5, v4, {WS}, s53 offen offset:{4*i}')
                a.nop(1)
            if self.o.get('dbgstamps'):
                Ld = a.newlabel('nodbg')
                a(f's_cmp_lg_u32 s2, {self.o.get("dbgstamps")}')
                a(f's_cbranch_scc1 {Ld}')
                a(f's_cmp_lg_u32 {sW}, 0')
                a(f's_cbranch_scc1 {Ld}')
                self.mk_srd(SA, sDBG, 256)
                sel = [1, 3, 5, 6, 7, 8, 10, 11, 13, 14, 16, 17, 19, 20, 22, 23]
                for j, i in enumerate(sel):
                    a(f's_sub_u32 s54, s{76+i}, s76')
                    a(f'v_mov_b32 v5, s54')
                    a(f'buffer_store_dword v5, v4, {srd(SA)}, 0 offen offset:{4*j}')
                    a.nop(1)
                a.label(Ld)
            a(f'v_mov_b32 v5, {sFAST}')
            a(f'buffer_store_dword v5, v4, {WS}, s53 offen offset:116')
            a.nop(1)
            a(f'v_mov_b32 v5, s100')
            a(f'buffer_store_dword v5, v4, {WS}, s53 offen offset:120')
            a.nop(1)
            a(f'v_mov_b32 v5, {sABORT}')
            a(f'buffer_store_dword v5, v4, {WS}, s53 offen offset:124')
        a('s_waitcnt vmcnt(0)')
        a.label('L_end')
        a('s_endpgm')
        a.label('L_code_end')

    def build(self):
        self.prologue()
        self.prep()
        if self.stop != 'prep': self.conv()
        if self.stop not in ('prep', 'conv'):
            if self.o.get('mlp', 4) == 3:
                from gen3_mlp import emit_mlp
            else:
                from gen4_mlp import emit_mlp
            emit_mlp(self)
        self.finish()
        body = self.a.text()
        hdr = open('cdna_kernels/' + NAME[:-7] + '.s.ref').read().split('; Override launch')[0]
        s = hdr + f'; @launch grid=(256,1,1) block=(256,1,1) lds={LDS_SIZE}\n'
        s += f'''.amdgcn_target "amdgcn-amd-amdhsa--gfx950"
.text
.globl {NAME}
.p2align 8
.type {NAME},@function
{NAME}:
.set CODE_BYTES, {'L_slow' if 'L_slow:' in body else 'L_code_end'} - {NAME}
''' + body + f'''.section .rodata,"a"
.p2align 6
.amdhsa_kernel {NAME}
  .amdhsa_next_free_vgpr 512
  .amdhsa_next_free_sgpr 102
  .amdhsa_accum_offset 256
  .amdhsa_group_segment_fixed_size 0
  .amdhsa_kernarg_size 112
  .amdhsa_user_sgpr_count 2
  .amdhsa_user_sgpr_kernarg_segment_ptr 1
  .amdhsa_system_sgpr_workgroup_id_x 1
.end_amdhsa_kernel
'''
        return s

def main():
    ap = argparse.ArgumentParser()
    ap.add_argument('--stop', default='end')
    ap.add_argument('--stamps', action='store_true')
    ap.add_argument('-o', default='k.s')
    ap.add_argument('--opt', action='append', default=[])
    args = ap.parse_args()
    opts = {}
    for kv in args.opt:
        k, v = kv.split('='); opts[k] = int(v) if v.lstrip('-').isdigit() else v
    g = Gen(stop=args.stop, stamps=args.stamps, opts=opts)
    s = g.build()
    probs = check_hazards(g.a.lines)
    for p in probs: print(p)
    wp = check_waits(g.a.lines)
    for p in wp[:30]: print(p)
    print(len(wp), 'wait problems')
    print(f'{len(g.a.lines)} lines, {len(probs)} hazards')
    open(args.o, 'w').write(s)
    open(args.o + '.stamps', 'w').write('\n'.join(g.stamp_names))

if __name__ == '__main__':
    main()
```

```python
from gen2 import *
from gen2_mlp import tok_base, yflag_addr, emit_r1a
from gen3_mlp import poll_issue, poll_check, spread, DUMMY

def pr(b): return f'v[{b}:{b+1}]'
VINV = 108

def rows_finish(g, rows, scx, scy):
    a = g.a
    for (X, eta) in rows:
        a(f's_lshl_b32 s53, {sW}, 10')
        a(f's_add_u32 s53, s53, {L_G + eta*4096}')
        a(f'v_add_u32 v{X+28}, s53, v{vL16}')
        a(f'ds_read_b128 v[{X+16}:{X+19}], v{X+28}')
    a('s_waitcnt lgkmcnt(0)')
    for (X, eta) in rows: g.unpack8(X+16, X+20)
    for (X, eta) in rows:
        for i in range(4):
            a(f'v_pk_fma_f32 {pr(X+2*i)}, {pr(X+8+2*i)}, {pr(X+20+2*i)}, {pr(X+2*i)}')
    for (X, eta) in rows: g.pack8(X, X+32)
    for (X, eta) in rows: g.unpack8(X+32, X)
    for (X, eta) in rows:
        a(f's_add_u32 s54, s75, {X1 + eta*4096 + (0 if g.fast else g.rl*0x400000)}')
        g.vstore(f'v[{X+32}:{X+35}]', f'v{vL16}', WS, 's54', 0, scx, tag=f'rx{eta}')
    g.ln_multi([(X, X+8, X+36) for (X, eta) in rows])
    g.ln_multi([(X+8, X+8, X+36) for (X, eta) in rows])
    for (X, eta) in rows: g.pack8(X+8, X+16)
    for (X, eta) in rows:
        a(f's_add_u32 s54, s75, {Y0 + eta*4096 + (0 if g.fast else g.rl*0x200000)}')
        g.vstore(f'v[{X+16}:{X+19}]', f'v{vL16}', WS, 's54', 0, scy, tag=f'ry{eta}')

def row_flag(g, eta):
    a = g.a
    g.vq.wait(f'ry{eta}')
    a(f's_add_u32 s53, s61, {(g.rl*2 + eta)*8*128*4}')
    g.flag('s53')

def mlp_setup0(g):
    a = g.a
    tok_base(a, 's75', 0)
    a(f's_lshl_b32 s61, {sC}, 7')
    a(f's_lshl_b32 s54, {sR}, 2')
    a('s_add_u32 s61, s61, s54')
    a(f's_add_u32 s61, s61, {sW}')
    a('s_lshl_b32 s61, s61, 2')
    a(f's_add_u32 s61, s61, {F_Y}')

def mlp_setup(g, part=1):
    a = g.a
    if part == 0:
        mlp_setup0(g); return
    a(f's_lshl_b32 s53, {sC}, 7')
    a(f's_lshl_b32 s54, {sT1}, 6')
    a('s_add_u32 s53, s53, s54')
    a(f's_lshl_b32 s54, {sW}, 3')
    a('s_add_u32 s53, s53, s54')
    a('s_lshl_b32 s53, s53, 2')
    a(f's_add_u32 s53, s53, {F_Y}')
    a('v_and_b32 v120, 7, v1')
    a('v_bfe_u32 v12, v1, 3, 1')
    a('v_lshl_add_u32 v120, v12, 5, v120')
    a('v_lshlrev_b32 v120, 2, v120')
    a('v_add_u32 v120, s53, v120')
    a('v_lshrrev_b32 v14, 5, v1')
    a('v_and_b32 v15, 31, v1')
    a('v_and_b32 v12, 15, v1')
    for m in range(8):
        a(f'v_add_u32 v{4+m}, {2*m}, v14')
        a(f'v_xor_b32 v{4+m}, v{4+m}, v12')
        a(f'v_lshlrev_b32 v{4+m}, 4, v{4+m}')
        a(f'v_lshl_add_u32 v{4+m}, v15, 10, v{4+m}')
    a(f's_and_b32 s54, {sW}, 1')
    a('s_lshl_b32 s54, s54, 7')
    a(f'v_xor_b32 v121, s54, v{vL16}')
    a(f's_lshl_b32 s68, {sJ}, 2')
    a(f's_add_u32 s68, s68, {sW}')
    a(f's_lshl_b32 s53, {sC}, 1')
    a(f's_add_u32 s53, s53, {sT1}')
    a('s_lshl_b32 s53, s53, 2')
    a('s_mul_i32 s71, s53, 112')
    a('s_lshl_b32 s55, s68, 1')
    a('s_add_u32 s71, s71, s55')
    a('s_lshl_b32 s71, s71, 10')
    a(f's_add_u32 s71, s71, {H0}')
    a('s_lshl_b32 s70, s53, 8')
    a('s_lshl_b32 s55, s68, 2')
    a('s_add_u32 s70, s70, s55')
    a(f's_add_u32 s70, s70, {F_H}')
    a('s_lshl_b32 s55, s2, 13')
    a(f's_add_u32 s55, s55, {DUMMY}')
    a(f's_cmp_ge_u32 {sR}, 28')
    a('s_cselect_b32 s71, s55, s71')
    a('s_cselect_b32 s70, s55, s70')
    a(f's_lshl_b32 s53, {sC}, 8')
    a(f's_lshl_b32 s54, {sT1}, 7')
    a('s_add_u32 s53, s53, s54')
    a(f's_lshl_b32 s54, {sW}, 4')
    a('s_add_u32 s53, s53, s54')
    a('s_lshl_b32 s53, s53, 10')
    a(f's_add_u32 s72, s53, {Y0}')
    a(f's_lshl_b32 s73, {sW}, 13')
    a(f's_lshr_b32 s54, {sR}, 4')
    a(f's_lshl_b32 s53, {sC}, 1')
    a('s_add_u32 s53, s53, s54')
    a('s_lshl_b32 s53, s53, 2')
    a(f's_lshr_b32 s54, {sR}, 3')
    a('s_and_b32 s54, s54, 1')
    a('s_add_u32 s55, s53, s54')
    a('s_lshl_b32 s53, s55, 8')
    a(f's_mul_i32 s54, {sW}, 56')
    a('s_add_u32 s53, s53, s54')
    a(f's_add_u32 s53, s53, {F_H}')
    a('v_min_u32 v119, 13, v1')
    a('v_lshlrev_b32 v119, 2, v119')
    a('v_add_u32 v119, s53, v119')
    a('s_mul_i32 s69, s55, 112')
    a(f's_mul_i32 s54, {sW}, 28')
    a('s_add_u32 s69, s69, s54')
    a('s_lshl_b32 s69, s69, 10')
    a(f's_add_u32 s69, s69, {H0}')
    a('v_and_b32 v15, 7, v0')
    a('v_lshrrev_b32 v112, 3, v0')
    a('v_and_b32 v12, 7, v112')
    a('v_and_b32 v113, 3, v15')
    a('v_lshlrev_b32 v113, 1, v113')
    a('v_or_b32 v114, 1, v113')
    a('v_xor_b32 v113, v113, v12')
    a('v_xor_b32 v114, v114, v12')
    a('v_lshrrev_b32 v12, 2, v15')
    a('v_lshlrev_b32 v12, 7, v12')
    a('v_lshl_add_u32 v12, v112, 8, v12')
    a('v_lshl_add_u32 v113, v113, 4, v12')
    a('v_lshl_add_u32 v114, v114, 4, v12')
    a(f's_lshr_b32 s53, {sR}, 3')
    a('s_lshl_b32 s53, s53, 5')
    a('v_add_u32 v12, s53, v112')
    a('v_lshrrev_b32 v112, 2, v12')
    a('v_lshlrev_b32 v112, 3, v112')
    a('v_and_b32 v12, 3, v12')
    a('v_add_u32 v112, v112, v12')
    a(f's_lshl_b32 s53, {sC}, 8')
    a('v_add_u32 v112, s53, v112')
    a('v_lshlrev_b32 v112, 10, v112')
    a(f's_and_b32 s53, {sR}, 7')
    a('s_lshl_b32 s53, s53, 7')
    a('v_lshl_add_u32 v112, v15, 4, v112')
    a('v_add_u32 v112, s53, v112')
    a('v_lshlrev_b32 v123, 4, v15')
    a('v_add_u32 v123, s53, v123')
    a('v_and_b32 v12, 31, v1')
    a('v_lshrrev_b32 v13, 5, v1')
    a('v_and_b32 v14, 7, v1')
    a(f's_lshl_b32 s53, {sW}, 13')
    for i in range(4):
        a(f'v_add_u32 v{115+i}, {2*i}, v13')
        a(f'v_xor_b32 v{115+i}, v{115+i}, v14')
        a(f'v_lshlrev_b32 v{115+i}, 4, v{115+i}')
        a(f'v_lshl_add_u32 v{115+i}, v12, 8, v{115+i}')
        a(f'v_add_u32 v{115+i}, s53, v{115+i}')
    a(f's_lshl_b32 s67, {sC}, 3')
    a(f's_lshr_b32 s54, {sR}, 3')
    a('s_add_u32 s67, s67, s54')
    a('s_lshl_b32 s67, s67, 2')
    a(f's_add_u32 s67, s67, {sW}')
    a('s_lshl_b32 s67, s67, 3')
    a(f's_and_b32 s54, {sR}, 7')
    a('s_add_u32 s67, s67, s54')
    a('s_lshl_b32 s67, s67, 2')
    a(f's_add_u32 s67, s67, {F_X}')
    a(f's_lshl_b32 s53, {sC}, 3')
    a(f's_lshr_b32 s54, {sR}, 3')
    a('s_add_u32 s53, s53, s54')
    a('s_lshl_b32 s53, s53, 2')
    a(f's_and_b32 s54, {sR}, 7')
    a('s_lshr_b32 s54, s54, 1')
    a('s_add_u32 s53, s53, s54')
    a('s_lshl_b32 s53, s53, 5')
    a(f's_add_u32 s53, s53, {F_X}')
    a('v_and_b32 v122, 7, v1')
    a('v_lshlrev_b32 v122, 2, v122')
    a('v_add_u32 v122, s53, v122')

def gelu_fillers(g, acc, u, T, P, usepk, sc):
    a = g.a
    lay = g.cur_layer
    F = []
    F.append(lambda: a(f's_add_u32 s74, s71, {u*112*1024 + (0 if g.fast else lay*0x800000)}'))
    if usepk:
        seqs = []
        for p in range(8):
            x0 = acc + 2*p; t0 = T + 2*(p % 2); t1 = t0 + 1
            X = pr(x0); Tt = pr(t0)
            seqs.append([f'v_pk_mul_f32 {Tt}, {X}, {X}',
                   f'v_pk_fma_f32 {Tt}, {Tt}, v[12:13], v[12:13] op_sel:[0,0,1] op_sel_hi:[1,0,1]',
                   f'v_pk_mul_f32 {Tt}, {Tt}, {X}',
                   f'v_exp_f32 v{t0}, v{t0}', f'v_exp_f32 v{t1}, v{t1}',
                   f'v_pk_add_f32 {Tt}, {Tt}, v[14:15]',
                   f'v_rcp_f32 v{t0}, v{t0}', f'v_rcp_f32 v{t1}, v{t1}',
                   f'v_pk_mul_f32 {X}, {X}, {Tt}',
                   f'v_cvt_pk_bf16_f32 v{P+p}, v{x0}, v{x0+1}'])
        for p in range(0, 8, 2):
            for s0, s1 in zip(seqs[p], seqs[p+1]):
                F.append(lambda s=s0: a(s)); F.append(lambda s=s1: a(s))
            if p == 2: F.append(lambda: g.vstore(f'v[{P}:{P+3}]', f'v{vL16}', WS, 's74', 0, sc, tag=f'h{u}'))
            if p == 6: F.append(lambda: g.vstore(f'v[{P+4}:{P+7}]', f'v{vL16}', WS, 's74', 1024, sc, tag=f'h{u}'))
        return F
    for p in range(8):
        x0, x1 = acc + 2*p, acc + 2*p + 1
        t0 = T + 2*(p % 2); t1 = t0 + 1
        seq = [f'v_mul_f32 v{t0}, v{x0}, v{x0}', f'v_mul_f32 v{t1}, v{x1}, v{x1}',
               f'v_fma_f32 v{t0}, v{t0}, v12, v13', f'v_fma_f32 v{t1}, v{t1}, v12, v13',
               f'v_mul_f32 v{t0}, v{t0}, v{x0}', f'v_mul_f32 v{t1}, v{t1}, v{x1}',
               f'v_exp_f32 v{t0}, v{t0}', f'v_exp_f32 v{t1}, v{t1}',
               f'v_add_f32 v{t0}, 1.0, v{t0}', f'v_add_f32 v{t1}, 1.0, v{t1}',
               f'v_rcp_f32 v{t0}, v{t0}', f'v_rcp_f32 v{t1}, v{t1}',
               f'v_mul_f32 v{x0}, v{x0}, v{t0}', f'v_mul_f32 v{x1}, v{x1}, v{t1}',
               f'v_cvt_pk_bf16_f32 v{P+p}, v{x0}, v{x1}']
        for s in seq: F.append(lambda s=s: a(s))
        if p == 3: F.append(lambda: g.vstore(f'v[{P}:{P+3}]', f'v{vL16}', WS, 's74', 0, sc, tag=f'h{u}'))
        if p == 7: F.append(lambda: g.vstore(f'v[{P+4}:{P+7}]', f'v{vL16}', WS, 's74', 1024, sc, tag=f'h{u}'))
    return F

def hflag(g, u):
    g.vq.wait(f'h{u}')
    g.a(f's_add_u32 s56, s70, {u*256 + g.cur_layer*64*256}')
    g.flag('s56')

def emit_layer(g, idle=False):
    a = g.a; vq = g.vq; o = g.o
    lay = g.cur_layer
    sch = g.sc_h
    yoff = 0 if g.fast else lay*0x200000
    hoff = 0 if g.fast else lay*0x800000
    xoff = 0 if g.fast else lay*0x400000
    if idle:
        a('s_barrier')
        g.weight_batch(100)
        a(f'v_add_u32 v100, {lay*64*256}, v119'); a('v_add_u32 v101, 512, v100')
        poll_issue(g, 102, 100, 'phA')
    else:
        a.comment(f'=== G1 layer {lay} ===')
        g.dstamp('g1', 'g1 begin')
        a(f'v_add_u32 v100, {lay*2*8*128*4}, v120')
        a(f'v_add_u32 v101, {(lay*2+1)*8*128*4}, v120')
        poll_issue(g, 102, 100, 'pyA')
        a('s_barrier')
        g.mk_srd(SA, sB1, 3584)
        a('v_lshrrev_b32 v14, 5, v1')
        a('v_lshlrev_b32 v15, 3, v14')
        a('s_lshl_b32 s53, s68, 6')
        for i in range(4):
            g.vload(f'v[{104+2*i}:{105+2*i}]', 'v15', srd(SA), 's53', 16*i, w='x2', tag='bias')
        a(f'v_mov_b32 v12, {f2u(-C2)}')
        a(f'v_mov_b32 v13, {f2u(-C1)}')
        a('v_mov_b32 v14, 1.0'); a('v_mov_b32 v15, 1.0')
        def dma_list(eta, tt):
            L = []
            for i in range(8):
                def f(i=i):
                    if i % 4 == 0:
                        a(f's_add_u32 m0, s73, {L_YH[eta] + tt*32768 + i*1024}')
                        a(f's_add_u32 s57, s72, {(64*tt + 8*(i>>2) + 4*eta)*1024 + yoff}')
                    a(f'v_xor_b32 v99, {16*i}, v121')
                    off = f' offset:{(i%4)*1024}' if i % 4 else ''
                    a(f'buffer_load_dwordx4 v99, {WS}, s57 offen{off} sc1 lds')
                    vq.issue(f'dma{eta}{tt}')
                L.append(f)
            return L
        g.dstamp('g1', 'setup done')
        poll_check(g, 102, 100, 'pyA')
        g.stamp('g1 yA seen')
        for f in dma_list(0, 0): f()
        for f in dma_list(0, 1)[:4]: f()
        poll_issue(g, 102, 101, 'pyB')
        vq.wait('bias')
        for i in range(4):
            a(f'v_lshlrev_b32 v{48+4*i}, 16, v{104+2*i}')
            a(f'v_and_b32 v{49+4*i}, 0xffff0000, v{104+2*i}')
            a(f'v_lshlrev_b32 v{50+4*i}, 16, v{105+2*i}')
            a(f'v_and_b32 v{51+4*i}, 0xffff0000, v{105+2*i}')
        vq.wait('dma00')
        a('s_barrier')
        g.stamp('g1 yA in lds')
        fill = []
        NB, PF = 8, 7
        WG_ = o.get('g1wait', 4)
        for u in range(4):
            eta, tt = u >> 1, u & 1
            if u == 1: vq.wait('dma01'); a('s_barrier')
            if u == 2:
                vq.wait('dma10'); a('s_barrier')
                for m in range(8): a(f'v_add_u32 v{4+m}, 0x10000, v{4+m}')
            if u == 3: vq.wait('dma11'); a('s_barrier')
            g.dstamp('g1', f'tile{u} start')
            acc = 16 + 16*(u % 2)
            def Breg(k): return f'v[{64+4*(k%NB)}:{67+4*(k%NB)}]'
            def Bload(k): a(f'ds_read_b128 {Breg(k)}, v{4+(k&7)} offset:{tt*32768 + (k>>3)*256}')
            for k in range(PF): Bload(k)
            extra = {}
            if u == 0:
                for i, f in enumerate(dma_list(0, 1)[4:]): extra.setdefault(i, []).append(f)
                extra.setdefault(8, []).append(lambda: poll_check(g, 102, 101, 'pyB'))
                for i, f in enumerate(dma_list(1, 0) + dma_list(1, 1)): extra.setdefault(9 + i + i//3, []).append(f)
            if u == 3:
                extra.setdefault(o.get('fA0', 2), []).append(lambda: hflag(g, 0))
                extra.setdefault(o.get('fA1', 28), []).append(lambda: hflag(g, 1))
                extra.setdefault(29, []).append(lambda: (a(f'v_add_u32 v100, {lay*64*256}, v119'), a('v_add_u32 v101, 512, v100'), poll_issue(g, 102, 100, 'phA')))
            if g.wlist and u >= 1:
                nper = (len(g.wlist) + (3 - u)) // (4 - u)
                for sl in [1 + (i * 27) // nper for i in range(nper)]:
                    extra.setdefault(sl, []).append(lambda: g.weight_batch(1))
            sp = spread(fill, 32, 3, 30)
            done = 0
            for k in range(32):
                if k % WG_ == 0:
                    need = min(k + WG_ - 1, 31)
                    issued = min(k + PF - 1, 31)
                    a(f's_waitcnt lgkmcnt({max(issued - need, 0)})')
                cin = f'v[48:63]' if k == 0 else f'v[{acc}:{acc+15}]'
                a(f'v_mfma_f32_32x32x16_bf16 v[{acc}:{acc+15}], {W1reg(k)}, {Breg(k)}, {cin}')
                if k + PF < 32: Bload(k + PF)
                while done < sp[k]: fill[done](); done += 1
                for f in extra.get(k, []): f()
            while done < len(fill): fill[done](); done += 1
            g.dstamp('g1', f'tile{u} done')
            if u < 3: fill = gelu_fillers(g, acc, u, 96, 104, False, sch)
            else: fill = gelu_fillers(g, acc, u, 96, 48, True, sch)
        g.dstamp('g1', 'tiles done')
    if not idle:
        for m in range(8): a(f'v_subrev_u32 v{4+m}, 0x10000, v{4+m}')
    NW = 12
    HW = 64
    def Hreg(s): return f'v[{HW+4*(s%NW)}:{HW+3+4*(s%NW)}]'
    def Hload(s):
        eta, i = divmod(s, 28)
        a(f's_add_u32 s54, s69, {eta*2*112*1024 + (i//4)*4096 + hoff}')
        g.vload(Hreg(s), f'v{vL16}', WS, 's54', (i%4)*1024, ' sc1', tag=f'hf{s}')
    a('v_mov_b32 v124, v100'); a('v_mov_b32 v125, v101')
    poll_check(g, 102, 100, 'phA')
    g.stamp('g2 hA seen')
    fill = gelu_fillers(g, 32, 3, 60, 48, True, sch)
    for s in range(NW): Hload(s)
    g.dstamp('g2', 'A loads issued')
    if not idle:
        a.nop(2)
        half = len(fill)//2
        for f in fill[:half]: f()
        hflag(g, 2)
        for f in fill[half:]: f()
    g.stamp('g1 done')
    g.dstamp('g2', 'tail done')
    g.mk_srd(SA, sB2, 1024)
    g.vload('v[56:59]', 'v123', srd(SA), 0, 0, tag='b2')
    a(f's_mov_b32 s53, {X1 + xoff}')
    g.vload('v[60:63]', 'v112', WS, 's53', 0, ' sc1', tag='res0')
    if lay == 0:
        OUT = WS; obase = X2
    else:
        g.mk_srd(SB, sOUT, 2097152); OUT = srd(SB); obase = 0
    sco = g.sc_x if lay == 0 else ''
    def accset(eta, nt):
        return f'a[{224+16*nt}:{239+16*nt}]' if eta == 0 else f'v[{16+16*nt}:{31+16*nt}]'
    def red_write_list(eta):
        LR = eta*32768
        L = []
        for nt in range(2):
            for i in range(4):
                src = f'a[{224+16*nt+4*i}:{224+16*nt+4*i+3}]' if eta == 0 else f'v[{16+16*nt+4*i}:{16+16*nt+4*i+3}]'
                L.append(lambda src=src, i=i, nt=nt: a(f'ds_write_b128 v{115+i}, {src} offset:{LR + nt*128}'))
        return L
    def xflag(eta):
        vq.wait(f'xo{eta}')
        a(f's_add_u32 s53, s67, {eta*512}')
        g.flag('s53')
    def red_small(eta, res):
        LR = eta*32768
        L = []
        for h in range(2):
            ad = 113 + h
            T0, T1 = 48, 52
            b2 = 56 + 2*h; rs = res + 2*h
            L.append(lambda ad=ad: (a(f'ds_read_b128 v[48:51], v{ad} offset:{LR}'), a(f'ds_read_b128 v[52:55], v{ad} offset:{LR + 8192}')))
            def add(): a(f'v_pk_add_f32 {pr(48)}, {pr(48)}, {pr(52)}'); a(f'v_pk_add_f32 {pr(50)}, {pr(50)}, {pr(54)}')
            def sadd():
                for e in range(4): a(f'v_add_f32 v{48+e}, v{48+e}, v{52+e}')
            L.append(lambda ad=ad: (a('s_waitcnt lgkmcnt(0)'), sadd(), a(f'ds_read_b128 v[52:55], v{ad} offset:{LR + 2*8192}')))
            L.append(lambda ad=ad: (a('s_waitcnt lgkmcnt(0)'), sadd(), a(f'ds_read_b128 v[52:55], v{ad} offset:{LR + 3*8192}')))
            L.append(lambda: (a('s_waitcnt lgkmcnt(0)'), sadd()))
            def ub(src):
                a(f'v_lshlrev_b32 v52, 16, v{src}'); a(f'v_and_b32 v53, 0xffff0000, v{src}')
                a(f'v_lshlrev_b32 v54, 16, v{src+1}'); a(f'v_and_b32 v55, 0xffff0000, v{src+1}')
            L.append(lambda b2=b2: (ub(b2), sadd()))
            def rnd():
                a('v_cvt_pk_bf16_f32 v52, v48, v49'); a('v_cvt_pk_bf16_f32 v53, v50, v51')
                a('v_lshlrev_b32 v48, 16, v52'); a('v_and_b32 v49, 0xffff0000, v52')
                a('v_lshlrev_b32 v50, 16, v53'); a('v_and_b32 v51, 0xffff0000, v53')
            L.append(rnd)
            L.append(lambda rs=rs: (vq.wait(f'res{eta}'), ub(rs), sadd()))
            L.append(lambda h=h: (a(f'v_cvt_pk_bf16_f32 v{12+2*h}, v48, v49'), a(f'v_cvt_pk_bf16_f32 v{13+2*h}, v50, v51')))
        def st():
            a(f's_mov_b32 s53, {obase + eta*4096}')
            g.vstore('v[12:15]', 'v112', OUT, 's53', 0, sco, tag=f'xo{eta}')
        L.append(st)
        return L
    def red_big(eta, res):
        LR = eta*32768
        T = 64
        for p in range(4):
            a(f'ds_read_b128 v[{T+8*p}:{T+8*p+3}], v113 offset:{LR + p*8192}')
            a(f'ds_read_b128 v[{T+8*p+4}:{T+8*p+7}], v114 offset:{LR + p*8192}')
        g.unpack8(56, T+32)
        a('s_waitcnt lgkmcnt(4)')
        for e in range(4): a(f'v_pk_add_f32 {pr(T+2*e)}, {pr(T+2*e)}, {pr(T+8+2*e)}')
        for e in range(4): a(f'v_pk_add_f32 {pr(T+2*e)}, {pr(T+2*e)}, {pr(T+32+2*e)}')
        a('s_waitcnt lgkmcnt(0)')
        for e in range(4): a(f'v_pk_add_f32 {pr(T+16+2*e)}, {pr(T+16+2*e)}, {pr(T+24+2*e)}')
        for e in range(4): a(f'v_pk_add_f32 {pr(T+2*e)}, {pr(T+2*e)}, {pr(T+16+2*e)}')
        g.pack8(T, T+8); g.unpack8(T+8, T)
        vq.wait(f'res{eta}')
        g.unpack8(res, T+16)
        for e in range(4): a(f'v_pk_add_f32 {pr(T+2*e)}, {pr(T+2*e)}, {pr(T+16+2*e)}')
        g.pack8(T, T+8)
        a(f's_mov_b32 s53, {obase + eta*4096}')
        g.vstore(f'v[{T+8}:{T+11}]', 'v112', OUT, 's53', 0, sco, tag=f'xo{eta}')
    extra = {}
    if not idle: extra.setdefault(o.get('fB1', 3), []).append(lambda: hflag(g, 3))
    extra.setdefault(10, []).append(lambda: poll_issue(g, 126, 125, 'phB'))
    extra.setdefault(15, []).append(lambda: poll_check(g, 126, 125, 'phB'))
    for i, f in enumerate(red_write_list(0)): extra.setdefault(30 + i//2, []).append(f)
    extra.setdefault(35, []).append(lambda: (a('s_waitcnt lgkmcnt(0)'), a('s_barrier')))
    for i, f in enumerate(red_small(0, 60)): extra.setdefault(36 + i, []).append(f)
    def resB():
        a(f's_mov_b32 s53, {X1 + xoff + 4096}')
        g.vload('v[60:63]', 'v112', WS, 's53', 0, ' sc1', tag='res1')
    extra.setdefault(53, []).append(resB)
    for s in range(56):
        eta, i = divmod(s, 28)
        vq.wait(f'hf{s}')
        for nt in range(2):
            acc = accset(eta, nt)
            cin = '0' if i == 0 else acc
            a(f'v_mfma_f32_32x32x16_bf16 {acc}, {W2reg(nt,i)}, {Hreg(s)}, {cin}')
            if nt == 0 and s >= 1 and (s - 1) + NW < 56: Hload(s - 1 + NW)
        if s == 27: g.dstamp('g2', 'A mfma done')
        for f in extra.get(s, []): f()
    g.dstamp('g2', 'B mfma done')
    if lay == 0: xflag(0)
    a.nop(12)
    for f in red_write_list(1): f()
    a('s_waitcnt lgkmcnt(0)')
    a('s_barrier')
    red_big(1, 60)
    g.dstamp('g2', 'B finished')
    if lay == 0: xflag(1)
    g.stamp('g2 done')

def emit_layer_both(g):
    a = g.a
    if not g.o.get('idleskip', 1):
        emit_layer(g); return
    Li = a.newlabel('idle'); Ld = a.newlabel('ldone')
    ops0 = list(g.vq.ops); wl0 = list(g.wlist)
    a(f's_cmp_ge_u32 {sR}, 28')
    a(f's_cbranch_scc1 {Li}')
    emit_layer(g)
    a(f's_branch {Ld}')
    a.label(Li)
    g.vq.ops = ops0; g.wlist = wl0
    st = g.stamps
    nst, names = g.nstamp, list(g.stamp_names)
    g.stamps = False
    emit_layer(g, idle=True)
    g.stamps = st
    a.label(Ld)
    g.vq.reset()

def emit_r2(g):
    a = g.a; vq = g.vq
    g.rl = 1
    a(f'v_mov_b32 v{VINV}, 0x3b000000')
    a('v_add_u32 v109, 512, v122')
    g.dstamp('r2', 'r2 begin')
    poll_issue(g, 110, 122, 'pxA')
    poll_check(g, 110, 122, 'pxA')
    g.dstamp('r2', 'xA seen')
    a(f's_add_u32 s53, s75, {X2}')
    g.vload('v[60:63]', f'v{vL16}', WS, 's53', 0, ' sc1', tag='x2a')
    poll_issue(g, 110, 109, 'pxB')
    vq.wait('x2a')
    g.unpack8(60, 16)
    g.ln_multi([(16, 24, 52)])
    rows_finish(g, [(16, 0)], g.sc_x3, g.sc_y1)
    g.dstamp('r2', 'row0 stored')
    poll_check(g, 110, 109, 'pxB')
    a(f's_add_u32 s53, s75, {X2 + 4096}')
    g.vload('v[60:63]', f'v{vL16}', WS, 's53', 0, ' sc1', tag='x2b')
    row_flag(g, 0)
    g.dstamp('r2', 'A flagged')
    vq.wait('x2b')
    g.unpack8(60, 64)
    g.ln_multi([(64, 72, 100)])
    rows_finish(g, [(64, 1)], g.sc_x3, g.sc_y1)
    g.dstamp('r2', 'row1 stored')
    row_flag(g, 1)
    g.stamp('r2 done')

def emit_r1b(g):
    a = g.a
    g.rl = 0
    mlp_setup_done = False
    rows_finish(g, [(16, 0), (64, 1)], ' sc1', g.sc_y0)
    g.weight_batch(g.o.get('wb3', 16))
    mlp_setup_rest(g)
    row_flag(g, 0)
    row_flag(g, 1)
    g.stamp('r1 done')

def mlp_setup_rest(g): mlp_setup(g, 1)

def emit_variant(g, fast):
    a = g.a; o = g.o
    g.fast = fast
    g.fsc = '' if fast else ' sc1'
    yt = fast and o.get('ytouch', 0)
    g.sc_h = ' sc1'; g.sc_x = ('' if yt else ' sc1'); g.sc_y0 = ('' if yt else ' sc1')
    g.sc_x3 = ' sc1'; g.sc_y1 = ('' if (fast and o.get('y1plain', 1)) else ' sc1')
    emit_r1b(g)
    if g.stop == 'r1': a('s_branch L_fin'); return
    a(f's_mov_b32 {sLAYER}, 0')
    g.cur_layer = 0
    emit_layer_both(g)
    if g.stop == 'g2': a('s_branch L_fin'); return
    g.cur_layer = 1
    emit_r2(g)
    if g.stop == 'r2': a('s_branch L_fin'); return
    a(f's_mov_b32 {sLAYER}, 1')
    if fast and o.get('h1plain', 0): g.sc_h = ''
    emit_layer_both(g)
    a('s_branch L_fin')

def emit_mlp(g):
    a = g.a
    g.vinv = VINV
    g.r1_hook = lambda: mlp_setup(g, 0)
    emit_r1a(g)
    ops0 = list(g.vq.ops); wl0 = list(g.wlist)
    a(f's_cmp_eq_u32 {sFAST}, 0')
    a('s_cbranch_scc1 L_slow')
    emit_variant(g, True)
    g.more_code = True
    g.finish()
    a.label('L_slow')
    g.vq.ops = ops0; g.wlist = wl0
    st = g.stamps; g.stamps = False
    emit_variant(g, False)
    g.stamps = st
```

```python
import sys, argparse, struct
from asmlib import Asm, check_hazards, check_waits

NAME = 'interleave_layers__ssm_conv_h3__mixer_channel_mlp__prompt_kernel'

WS_EPOCH = 0x0
F_PREP = 0x1000
F_CONV = 0x2000
F_W = 0x3000
F_XC = 0x3800
DUMMY2 = 0x2D00000
F_Y    = 0x4000
F_H    = 0x8000
F_X    = 0x10000
XR     = 0x100000
W1F    = 0x300000
W2F    = 0x500000
GB     = 0x700000
Y0     = 0x900000
X1     = 0xD00000
X2     = 0xF00000
H0     = 0x1400000
TS     = 0x2400000
WS_SIZE = 0x10000000

L_KVT = 0
L_W1R = 8192
L_W2R = 16384
L_GT  = 0
L_XB = 25600
XBS = 79*96
L_TOEP = 40960
CS = 4160
LDS_SIZE = 163840
L_G = 155648
L_YH = [0, 65536]

sQ, sK, sV, sSK, sSSM, sD, sBX, sW1 = 16, 18, 20, 22, 24, 26, 28, 30
sB1, sW2, sB2, sOUT, sDBG, sWSP = 32, 34, 36, 38, 40, 42
WS = 's[44:47]'
sC, sR, sW, sTAG, sABORT = 's48', 's49', 's50', 's51', 's52'
sLAYER, sT1, sJ = 's64', 's65', 's66'
sXCC, sFAST = 's101', 's3'
SA, SB, SC_, SD_ = 4, 8, 12, 72
def srd(n): return f's[{n}:{n+3}]'
W1B = 128
vL16, vTAG = 2, 3
def W1reg(k): return f'v[{W1B+4*k}:{W1B+4*k+3}]'
def W2reg(nt, i):
    b = (nt*28 + i)*4
    return f'a[{b}:{b+3}]'
def f2u(x): return '0x%08x' % struct.unpack('<I', struct.pack('<f', x))[0]
C1 = 2*0.7978845608028654*1.4426950408889634
C2 = C1*0.044715

class VQ:
    def __init__(self, a): self.a = a; self.ops = []
    def issue(self, tag): self.ops.append(tag)
    def wait(self, tag):
        idx = max(i for i, t in enumerate(self.ops) if t == tag) if tag in self.ops else None
        if idx is None: return
        n = len(self.ops) - 1 - idx
        assert n <= 63, n
        self.a(f's_waitcnt vmcnt({n})')
        self.ops = self.ops[idx+1:]
    def drain(self):
        self.a('s_waitcnt vmcnt(0)'); self.ops = []
    def reset(self): self.ops = []

class Gen:
    def __init__(self, stop='end', stamps=False, opts=None):
        self.a = Asm(); self.vq = VQ(self.a)
        self.stop = stop; self.stamps = stamps
        self.nstamp = 0; self.stamp_names = []
        self.sc = ' sc1'; self.fsc = ' sc1'; self.fast = False; self.vinv = 4
        self.o = opts or {}

    def mk_srd(self, n, ptr, size, add=None):
        a = self.a
        if add is None:
            a(f's_mov_b32 s{n}, s{ptr}')
            a(f's_and_b32 s{n+1}, s{ptr+1}, 0xffff')
        else:
            a(f's_add_u32 s{n}, s{ptr}, {add}')
            a(f's_addc_u32 s{n+1}, s{ptr+1}, 0')
            a(f's_and_b32 s{n+1}, s{n+1}, 0xffff')
        a(f's_mov_b32 s{n+2}, {size}')
        a(f's_mov_b32 s{n+3}, 0x00020000')

    def dstamp(self, phase, name):
        if self.o.get('detail') == phase and getattr(self, 'cur_layer', 0) == self.o.get('dlayer', 1): self.stamp(name, False, force=True)
    def stamp(self, name='', inloop=False, force=False):
        if not self.stamps: return
        if self.o.get('detail') and not force and name not in ('start', 'end'): return
        inloop = False
        i = self.nstamp; self.nstamp += 1
        assert self.nstamp <= 24, name
        self.stamp_names.append(name)
        a = self.a
        a(f's_waitcnt lgkmcnt(0)')
        a(f's_memtime s[62:63]' if self.o.get('cyc') else f's_memrealtime s[62:63]')
        a(f's_waitcnt lgkmcnt(0)')
        if inloop:
            a('s_cmp_eq_u32 s64, 0')
            a(f's_cselect_b32 s{76+i}, s62, s{76+i}')
            a(f's_cselect_b32 s{77+i}, s{77+i}, s62')
        else:
            a(f's_mov_b32 s{76+i}, s62')

    def vload(self, dst, voff, sr, soff, imm=0, mods='', tag='ld', w='x4'):
        o = f' offset:{imm}' if imm else ''
        op = {'x4': 'buffer_load_dwordx4', 'x2': 'buffer_load_dwordx2', 'x1': 'buffer_load_dword'}[w]
        self.a(f'{op} {dst}, {voff}, {sr}, {soff} offen{o}{mods}')
        self.vq.issue(tag)
    def vstore(self, src, voff, sr, soff, imm=0, mods='', tag='st'):
        o = f' offset:{imm}' if imm else ''
        self.a(f'buffer_store_dwordx4 {src}, {voff}, {sr}, {soff} offen{o}{mods}')
        self.vq.issue(tag)

    def poll(self, vaddr, vtmp, nlanes=64, x4=False):
        a = self.a
        L = a.newlabel('poll'); D = a.newlabel('polld')
        a(f's_mov_b32 s53, 0')
        if nlanes < 64:
            a(f's_mov_b64 s[56:57], exec')
            a(f's_mov_b64 exec, {hex((1 << nlanes) - 1)}')
        a.label(L)
        if x4:
            a(f'buffer_load_dwordx4 v[{vtmp}:{vtmp+3}], v{vaddr}, {WS}, 0 offen sc1')
            a(f's_waitcnt vmcnt(0)')
            a(f'v_xor_b32 v{vtmp}, {sTAG}, v{vtmp}')
            a(f'v_xor_b32 v{vtmp+1}, {sTAG}, v{vtmp+1}')
            a(f'v_xor_b32 v{vtmp+2}, {sTAG}, v{vtmp+2}')
            a(f'v_xor_b32 v{vtmp+3}, {sTAG}, v{vtmp+3}')
            a(f'v_or_b32 v{vtmp}, v{vtmp}, v{vtmp+1}')
            a(f'v_or3_b32 v{vtmp}, v{vtmp}, v{vtmp+2}, v{vtmp+3}')
            a(f'v_cmp_ne_u32 vcc, 0, v{vtmp}')
        else:
            a(f'buffer_load_dword v{vtmp}, v{vaddr}, {WS}, 0 offen sc1')
            a(f's_waitcnt vmcnt(0)')
            a(f'v_cmp_ne_u32 vcc, {sTAG}, v{vtmp}')
        a(f's_cbranch_vccz {D}')
        a(f's_add_u32 s53, s53, 1')
        a(f's_cmp_lg_u32 {sABORT}, 0')
        a(f's_cbranch_scc1 {D}')
        a(f's_cmp_lt_u32 s53, 0x8000')
        a(f's_cbranch_scc1 {L}')
        a(f's_mov_b32 {sABORT}, 1')
        a.label(D)
        if nlanes < 64:
            a(f's_mov_b64 exec, s[56:57]')
        self.vq.reset()

    def poll_prep(self, vaddr, vt):
        a = self.a
        L = a.newlabel('poll'); D = a.newlabel('polld')
        a(f's_mov_b32 s53, 0')
        a.label(L)
        a(f'buffer_load_dwordx4 v[{vt}:{vt+3}], v{vaddr}, {WS}, 0 offen sc1')
        a(f's_waitcnt vmcnt(0)')
        for i in range(4): a(f'v_subrev_u32 v{vt+i}, {sTAG}, v{vt+i}')
        a(f'v_or_b32 v{vt+4}, v{vt}, v{vt+1}')
        a(f'v_or3_b32 v{vt+4}, v{vt+4}, v{vt+2}, v{vt+3}')
        a(f'v_cmp_lt_u32 vcc, 15, v{vt+4}')
        a(f's_cbranch_vccz {D}')
        a(f's_add_u32 s53, s53, 1')
        a(f's_cmp_lg_u32 {sABORT}, 0')
        a(f's_cbranch_scc1 {D}')
        a(f's_cmp_lt_u32 s53, 0x8000')
        a(f's_cbranch_scc1 {L}')
        a(f's_mov_b32 {sABORT}, 1')
        a.label(D)
        self.vq.reset()

    def dyn_role(self, vt):
        a = self.a
        lo, hi, t, u = vt+5, vt+6, vt+7, vt+8
        a(f'v_mov_b32 v{lo}, 0'); a(f'v_mov_b32 v{hi}, 0')
        for i in range(4):
            a(f'v_and_b32 v{t}, 3, v{vt+i}')
            a(f'v_lshlrev_b32 v{t}, 3, v{t}')
            a(f'v_lshlrev_b32 v{t}, v{t}, 1') if False else a(f'v_lshlrev_b32 v{t}, v{t}, v{vt+9}')
            a(f'v_lshrrev_b32 v{u}, 2, v{vt+i}')
            a(f'v_cmp_eq_u32 vcc, 0, v{u}')
            a.nop(2)
            a(f'v_cndmask_b32 v{vt+10}, 0, v{t}, vcc')
            a(f'v_cmp_eq_u32 vcc, 1, v{u}')
            a(f'v_add_u32 v{lo}, v{lo}, v{vt+10}')
            a.nop(1)
            a(f'v_cndmask_b32 v{vt+10}, 0, v{t}, vcc')
            a(f'v_add_u32 v{hi}, v{hi}, v{vt+10}')
        steps = ['quad_perm:[1,0,3,2] row_mask:0xf bank_mask:0xf', 'quad_perm:[2,3,0,1] row_mask:0xf bank_mask:0xf',
                 'row_half_mirror row_mask:0xf bank_mask:0xf', 'row_mirror row_mask:0xf bank_mask:0xf',
                 'row_bcast:15 row_mask:0xa bank_mask:0xf', 'row_bcast:31 row_mask:0xc bank_mask:0xf']
        a.nop(2)
        for st in steps:
            a(f'v_add_u32_dpp v{lo}, v{lo}, v{lo} {st}')
            a(f'v_add_u32_dpp v{hi}, v{hi}, v{hi} {st}')
            a.nop(1)
        a(f'v_readlane_b32 s56, v{lo}, 63')
        a(f'v_readlane_b32 s57, v{hi}, 63')
        a(f'v_lshlrev_b32 v{t}, 2, v1')
        a('s_mov_b32 s58, 0')
        for i in range(4):
            a(f'v_cmp_eq_u32 vcc, {sXCC}, v{vt+i}')
            a(f'v_add_u32 v{u}, {i}, v{t}')
            a(f'v_cmp_gt_u32 s[54:55], s2, v{u}')
            a.nop(1)
            a('s_and_b64 s[54:55], s[54:55], vcc')
            a('s_bcnt1_i32_b64 s55, s[54:55]')
            a('s_add_u32 s58, s58, s55')
        a('s_cmp_eq_u32 s56, 0x20202020')
        a(f's_cselect_b32 {sFAST}, 1, 0')
        a('s_cmp_eq_u32 s57, 0x20202020')
        a(f's_cselect_b32 {sFAST}, {sFAST}, 0')
        a(f's_cmp_eq_u32 {sABORT}, 0')
        a(f's_cselect_b32 {sFAST}, {sFAST}, 0')
        if self.o.get('force_slow'): a(f's_mov_b32 {sFAST}, 0')
        a(f's_cmp_eq_u32 {sFAST}, 1')
        a(f's_cselect_b32 {sC}, {sXCC}, {sC}')
        a(f's_cselect_b32 {sR}, s58, {sR}')

    def check_xc(self, vt, vaddr):
        a = self.a
        self.vq.wait('fw')
        L = a.newlabel('fw'); D = a.newlabel('fwd')
        a('s_mov_b32 s53, 0')
        a.label(L)
        for i in range(4): a(f'v_subrev_u32 v{vt+i}, {sTAG}, v{vt+i}')
        a(f'v_or_b32 v{vt+5}, v{vt}, v{vt+1}')
        a(f'v_or3_b32 v{vt+5}, v{vt+5}, v{vt+2}, v{vt+3}')
        a(f'v_cmp_lt_u32 vcc, 15, v{vt+5}')
        a(f's_cbranch_vccz {D}')
        a('s_add_u32 s53, s53, 1')
        a(f's_cmp_lg_u32 {sABORT}, 0')
        a(f's_cbranch_scc1 {D}')
        a('s_cmp_lt_u32 s53, 0x8000')
        a(f's_cbranch_scc0 {D}_ab')
        a(f'buffer_load_dwordx4 v[{vt}:{vt+3}], v{vaddr}, {WS}, 0 offen sc1')
        a('s_waitcnt vmcnt(0)')
        a(f's_branch {L}')
        a.label(D + '_ab')
        a(f's_mov_b32 {sABORT}, 1')
        a.label(D)
        a(f'v_mov_b32 v{vt+9}, 1')
        self.dyn_role(vt)
        self.weight_state_init()

    def check_fw(self, vt, vaddr):
        a = self.a
        self.vq.wait('fw2')
        L = a.newlabel('fw'); D = a.newlabel('fwd')
        a('s_mov_b32 s53, 0')
        a.label(L)
        for i in range(4): a(f'v_xor_b32 v{vt+i}, {sTAG}, v{vt+i}')
        a(f'v_or_b32 v{vt}, v{vt}, v{vt+1}')
        a(f'v_or3_b32 v{vt}, v{vt}, v{vt+2}, v{vt+3}')
        a(f'v_cmp_ne_u32 vcc, 0, v{vt}')
        a(f's_cbranch_vccz {D}')
        a('s_add_u32 s53, s53, 1')
        a(f's_cmp_lg_u32 {sABORT}, 0')
        a(f's_cbranch_scc1 {D}')
        a('s_cmp_lt_u32 s53, 0x8000')
        a(f's_cbranch_scc0 {D}_ab')
        a(f'buffer_load_dwordx4 v[{vt}:{vt+3}], v{vaddr}, {WS}, 0 offen sc1')
        a('s_waitcnt vmcnt(0)')
        a(f's_branch {L}')
        a.label(D + '_ab')
        a(f's_mov_b32 {sABORT}, 1')
        a.label(D)

    def flag(self, soff, sc=None):
        sc = self.fsc if sc is None else sc
        self.a(f'buffer_store_dword v{vTAG}, off, {WS}, {soff}{sc}')
        self.vq.issue('flag')

    def reduce_multi(self, regs, sdst):
        a = self.a
        steps = ['quad_perm:[1,0,3,2] row_mask:0xf bank_mask:0xf', 'quad_perm:[2,3,0,1] row_mask:0xf bank_mask:0xf',
                 'row_half_mirror row_mask:0xf bank_mask:0xf', 'row_mirror row_mask:0xf bank_mask:0xf',
                 'row_bcast:15 row_mask:0xa bank_mask:0xf', 'row_bcast:31 row_mask:0xc bank_mask:0xf']
        pad = max(0, 3 - len(regs))
        a.nop(max(0, 2 - (len(regs) - 1)) if len(regs) < 3 else 0)
        for s in steps:
            for r in regs:
                a(f'v_add_f32_dpp v{r}, v{r}, v{r} {s}')
            if pad: a.nop(pad)
        if len(regs) < 2: a.nop(1)
        for r, s in zip(regs, sdst):
            a(f'v_readlane_b32 s{s}, v{r}, 63')
        a.nop(2)

    def ln_multi(self, rows):
        a = self.a
        def pr(b): return f'v[{b}:{b+1}]'
        for (x, z, t) in rows:
            a(f'v_pk_add_f32 {pr(t)}, {pr(x)}, {pr(x+2)}')
            a(f'v_pk_mul_f32 {pr(t+2)}, {pr(x)}, {pr(x)}')
        for (x, z, t) in rows:
            a(f'v_pk_add_f32 {pr(t+4)}, {pr(x+4)}, {pr(x+6)}')
            a(f'v_pk_fma_f32 {pr(t+2)}, {pr(x+2)}, {pr(x+2)}, {pr(t+2)}')
        for (x, z, t) in rows:
            a(f'v_pk_add_f32 {pr(t)}, {pr(t)}, {pr(t+4)}')
            a(f'v_pk_fma_f32 {pr(t+2)}, {pr(x+4)}, {pr(x+4)}, {pr(t+2)}')
        for (x, z, t) in rows:
            a(f'v_add_f32 v{t}, v{t}, v{t+1}')
            a(f'v_pk_fma_f32 {pr(t+2)}, {pr(x+6)}, {pr(x+6)}, {pr(t+2)}')
        for (x, z, t) in rows:
            a(f'v_add_f32 v{t+2}, v{t+2}, v{t+3}')
        regs = []; sd = []
        for i, (x, z, t) in enumerate(rows):
            regs += [t, t+2]; sd += [58 - 2*i, 59 - 2*i]
        self.reduce_multi(regs, sd)
        for i, (x, z, t) in enumerate(rows):
            s1, s2 = sd[2*i], sd[2*i+1]
            a(f'v_mul_f32 v{t+4}, s{s1}, v{self.vinv}')
            a(f'v_mul_f32 v{t+2}, s{s2}, v{self.vinv}')
        for (x, z, t) in rows:
            a(f'v_fma_f32 v{t+2}, -v{t+4}, v{t+4}, v{t+2}')
        for (x, z, t) in rows:
            a(f'v_max_f32 v{t+2}, 0, v{t+2}')
        for (x, z, t) in rows:
            a(f'v_add_f32 v{t+2}, 0x3727c5ac, v{t+2}')
        for (x, z, t) in rows:
            a(f'v_rsq_f32 v{t+2}, v{t+2}')
        if len(rows) < 2: a.nop(1)
        for (x, z, t) in rows:
            a(f'v_mul_f32 v{t+4}, v{t+4}, v{t+2}')
        for (x, z, t) in rows:
            for i in range(4):
                a(f'v_pk_fma_f32 {pr(z+2*i)}, {pr(x+2*i)}, {pr(t+2)}, {pr(t+4)} op_sel_hi:[1,0,0] neg_lo:[0,0,1] neg_hi:[0,0,1]')

    def unpack8(self, src, dst):
        a = self.a
        for i in range(4):
            a(f'v_lshlrev_b32 v{dst+2*i}, 16, v{src+i}')
            a(f'v_and_b32 v{dst+2*i+1}, 0xffff0000, v{src+i}')
    def pack8(self, src, dst):
        a = self.a
        for i in range(4):
            a(f'v_cvt_pk_bf16_f32 v{dst+i}, v{src+2*i}, v{src+2*i+1}')

    def prologue(self):
        a = self.a
        a('s_cmp_ge_u32 s2, 256')
        a('s_cbranch_scc1 L_end')
        a('s_load_dwordx16 s[16:31], s[0:1], 0')
        a('s_load_dwordx8 s[32:39], s[0:1], 64')
        a('s_load_dwordx4 s[40:43], s[0:1], 96')
        a('s_getpc_b64 s[68:69]')
        a(f's_and_b32 {sC}, s2, 7')
        a(f's_lshr_b32 {sR}, s2, 3')
        a(f's_mov_b32 {sABORT}, 0')
        a(f's_getreg_b32 {sXCC}, hwreg(HW_REG_XCC_ID)')
        a(f's_min_u32 {sXCC}, {sXCC}, 8')
        a('v_lshrrev_b32 v4, 6, v0')
        a('v_and_b32 v1, 63, v0')
        a(f'v_readfirstlane_b32 {sW}, v4')
        a(f'v_lshlrev_b32 v{vL16}, 4, v1')
        a('s_waitcnt lgkmcnt(0)')
        self.mk_srd(44, sWSP, WS_SIZE)
        self.stamp('start')
        if self.stamps:
            a('s_memtime s[62:63]'); a('s_waitcnt lgkmcnt(0)'); a('s_mov_b32 s100, s62')
        a(f'buffer_load_dword v{vTAG}, off, {WS}, 0 sc1')
        self.vq.issue('epoch')

    def code_prefetch(self):
        a = self.a
        a('s_and_b32 s68, s68, 0xffffff00')
        a('s_and_b32 s69, s69, 0xffff')
        a(f's_mov_b32 s{SD_}, s68'); a(f's_mov_b32 s{SD_+1}, s69')
        a(f's_mov_b32 s{SD_+2}, CODE_BYTES')
        a(f's_mov_b32 s{SD_+3}, 0x00020000')
        a('v_lshlrev_b32 v87, 7, v0')
        a(f'buffer_load_dword v254, v87, {srd(SD_)}, 0 offen'); self.vq.issue('pf')
        a('v_add_u32 v87, 0x8000, v87')
        a(f'buffer_load_dword v254, v87, {srd(SD_)}, 0 offen'); self.vq.issue('pf')

    def pretouch(self):
        a = self.a
        a(f's_min_u32 s58, {sXCC}, 7')
        a('s_lshl_b32 s53, s58, 18')
        a(f's_lshl_b32 s54, {sR}, 13')
        a('s_add_u32 s53, s53, s54')
        a('v_lshlrev_b32 v88, 7, v1')
        Ls = a.newlabel('pt')
        a(f's_cmp_lg_u32 {sW}, 3')
        a(f's_cbranch_scc1 {Ls}'); a.comment('COND_BEGIN')
        self.mk_srd(SD_, sQ, 2097152)
        a(f'buffer_load_dword v255, v88, {srd(SD_)}, s53 offen')
        self.mk_srd(SD_, sB1, 3584)
        a(f'buffer_load_dword v255, v88, {srd(SD_)}, 0 offen')
        self.mk_srd(SD_, sB2, 1024)
        a(f'buffer_load_dword v255, v88, {srd(SD_)}, 0 offen')
        self.mk_srd(SD_, sOUT, 2097152)
        a(f'buffer_load_dword v255, off, {srd(SD_)}, s53')
        a('v_lshlrev_b32 v87, 21, v1')
        a('v_min_u32 v87, 0x1c00000, v87')
        a(f'buffer_load_dword v255, v87, {WS}, 0 offen')
        a.label(Ls); a.comment('COND_END')

    def pretouch_late(self):
        a = self.a
        a(f's_lshl_b32 s53, {sC}, 18')
        a(f's_lshl_b32 s54, {sR}, 13')
        a('s_add_u32 s53, s53, s54')
        a('v_lshlrev_b32 v8, 7, v1')
        Ls = a.newlabel('pt')
        a(f's_cmp_lg_u32 {sW}, 3')
        a(f's_cbranch_scc1 {Ls}'); a.comment('COND_BEGIN')
        self.mk_srd(SD_, sQ, 2097152)
        a(f'buffer_load_dword v255, v8, {srd(SD_)}, s53 offen')
        self.mk_srd(SD_, sB1, 3584)
        a(f'buffer_load_dword v255, v8, {srd(SD_)}, 0 offen')
        self.mk_srd(SD_, sB2, 1024)
        a(f'buffer_load_dword v255, v8, {srd(SD_)}, 0 offen')
        self.mk_srd(SD_, sOUT, 2097152)
        a(f'buffer_load_dword v255, off, {srd(SD_)}, s53')
        a('v_lshlrev_b32 v9, 21, v1')
        a('v_min_u32 v9, 0x1c00000, v9')
        a(f'buffer_load_dword v255, v9, {WS}, 0 offen')
        a.label(Ls); a.comment('COND_END')

    def prep(self):
        a = self.a; vq = self.vq
        a('v_lshrrev_b32 v8, 3, v0')
        a('v_and_b32 v9, 7, v0')
        a('v_lshlrev_b32 v8, 15, v8')
        a('v_lshl_add_u32 v8, v9, 4, v8')
        a(f's_lshl_b32 s53, {sC}, 5')
        a(f's_add_u32 s53, s53, {sR}')
        a('s_lshl_b32 s53, s53, 7')
        a(f's_add_u32 s53, s53, {GB}')
        for i in range(4): a(f'v_mov_b32 v{160+i}, -1')
        self.clear_g = True
        a('v_lshrrev_b32 v4, 5, v0')
        a('v_and_b32 v5, 31, v0')
        a(f's_lshl_b32 s53, {sR}, 16')
        a(f's_lshl_b32 s54, {sC}, 7')
        a('s_add_u32 s53, s53, s54')
        a('v_lshlrev_b32 v6, 13, v4')
        a('v_lshl_add_u32 v6, v5, 2, v6')
        a('v_add_u32 v6, s53, v6')
        a('v_subrev_u32 v7, 3072, v6')
        a('v_add_u32 v8, 4096, v6')
        self.mk_srd(SA, sK, 2097152)
        self.mk_srd(SB, sV, 2097152)
        self.mk_srd(SC_, sSK, 4096)
        K = 10
        for i in range(3): self.vload(f'v{K+i}', 'v7', srd(SA), 0, 1024*i, w='x1', tag='kv')
        for i in range(4): self.vload(f'v{K+3+i}', 'v6', srd(SA), 0, 1024*i, w='x1', tag='kv')
        for i in range(4): self.vload(f'v{K+7+i}', 'v8', srd(SA), 0, 1024*i, w='x1', tag='kv')
        V = 21
        for i in range(4): self.vload(f'v{V+i}', 'v6', srd(SB), 0, 1024*i, w='x1', tag='kv')
        for i in range(4): self.vload(f'v{V+4+i}', 'v8', srd(SB), 0, 1024*i, w='x1', tag='kv')
        a(f's_lshl_b32 s53, {sC}, 9')
        a('v_lshlrev_b32 v9, 4, v5')
        a('v_add_u32 v9, s53, v9')
        self.vload('v[30:33]', 'v9', srd(SC_), 0, tag='kv')
        if self.o.get('kvbar', 0): a('s_barrier')
        if self.o.get('prefetch', True): self.code_prefetch()
        a(f's_lshl_b32 s53, {sC}, 5')
        a(f's_add_u32 s53, s53, {sR}')
        a('s_lshl_b32 s53, s53, 1')
        a(f's_lshr_b32 s54, {sW}, 1')
        a('s_add_u32 s53, s53, s54')
        a('s_lshl_b32 s53, s53, 12')
        self.mk_srd(SC_, sSSM, 4096, add='s53')
        a('v_and_b32 v54, 127, v0')
        a('v_lshlrev_b32 v51, 4, v54')
        a('v_subrev_u32 v52, 64, v51')
        a('v_subrev_u32 v53, 48, v51')
        HR = 56
        for rho in range(3):
            if rho:
                a(f'v_add_u32 v52, 2048, v52')
                a(f'v_add_u32 v53, 2048, v53')
            self.vload(f'v[{HR+8*rho}:{HR+8*rho+3}]', 'v52', srd(SC_), 0, tag='hr')
            self.vload(f'v[{HR+8*rho+4}:{HR+8*rho+7}]', 'v53', srd(SC_), 0, tag='hr')

        a(f's_lshl_b32 s53, {sC}, 5')
        a(f's_add_u32 s53, s53, {sR}')
        a('s_lshl_b32 s53, s53, 7')
        a(f's_add_u32 s53, s53, {GB}')
        a('v_lshrrev_b32 v85, 3, v0')
        a('v_and_b32 v86, 7, v0')
        a('v_lshlrev_b32 v85, 15, v85')
        a('v_lshl_add_u32 v85, v86, 4, v85')
        self.vstore('v[160:163]', 'v85', WS, 's53', 0, ' sc1', tag='clr')
        a(f's_add_u32 s53, s53, {32*32768}')
        self.vstore('v[160:163]', 'v85', WS, 's53', 0, ' sc1', tag='clr')
        a(f's_lshl_b32 s53, {sC}, 5')
        a(f's_add_u32 s53, s53, {sR}')
        a('s_lshl_b32 s53, s53, 2')
        a(f's_add_u32 s54, s{sD}, s53')
        a(f's_addc_u32 s55, s{sD+1}, 0')
        a('s_load_dword s60, s[54:55], 0')

        a('v_mov_b32 v80, 0'); a('v_mov_b32 v81, 0'); a('v_mov_b32 v82, 0'); a('v_mov_b32 v83, 0')
        a('v_lshlrev_b32 v84, 4, v0')
        a('v_cmp_gt_u32 vcc, 90, v0')
        a('s_and_saveexec_b64 s[56:57], vcc')
        a(f'ds_write_b128 v84, v[80:83] offset:{L_XB + 64*96}')
        a(f'ds_write_b128 v84, v[80:83] offset:{L_XB + XBS + 64*96}')
        a('s_mov_b64 exec, s[56:57]')
        vq.wait('kv')
        self.stamp('kv loaded')
        a(f'v_add_u32 v{vTAG}, 16, v{vTAG}')
        Wp = 90
        a(f'v_lshlrev_b32 v{Wp+0}, 16, v30'); a(f'v_lshlrev_b32 v{Wp+1}, 16, v32')
        a(f'v_readfirstlane_b32 {sTAG}, v{vTAG}')
        a(f'v_and_b32 v{Wp+2}, 0xffff0000, v30'); a(f'v_and_b32 v{Wp+3}, 0xffff0000, v32')
        a(f'v_lshlrev_b32 v{Wp+4}, 16, v31'); a(f'v_lshlrev_b32 v{Wp+5}, 16, v33')
        a(f'v_and_b32 v{Wp+6}, 0xffff0000, v31'); a(f'v_and_b32 v{Wp+7}, 0xffff0000, v33')
        Lx = a.newlabel('noxc')
        a(f's_cmp_lg_u32 {sW}, 0')
        a(f's_cbranch_scc1 {Lx}'); a.comment('COND_BEGIN')
        a('s_lshl_b32 s53, s2, 2')
        a(f's_add_u32 s53, s53, {F_XC}')
        a(f'v_add_u32 v85, {sXCC}, v{vTAG}')
        a(f'buffer_store_dword v85, off, {WS}, s53 sc1')
        a.label(Lx); a.comment('COND_END')
        KU = 100
        for i in range(11):
            a(f'v_lshlrev_b32 v{KU+2*i}, 16, v{K+i}')
            a(f'v_and_b32 v{KU+2*i+1}, 0xffff0000, v{K+i}')
        VU = 122
        for i in range(8):
            a(f'v_lshlrev_b32 v{VU+2*i}, 16, v{V+i}')
            a(f'v_and_b32 v{VU+2*i+1}, 0xffff0000, v{V+i}')
        AC = 140
        def pr(b): return f'v[{b}:{b+1}]'
        for t, wq in enumerate([6, 4, 2, 0]):
            for i in range(8):
                if t == 0: a(f'v_pk_mul_f32 {pr(AC+2*i)}, {pr(KU+2*(i+0))}, {pr(Wp+6)}')
                else: a(f'v_pk_fma_f32 {pr(AC+2*i)}, {pr(KU+2*(i+t))}, {pr(Wp+wq)}, {pr(AC+2*i)}')
        for i in range(8):
            a(f'v_pk_mul_f32 {pr(AC+2*i)}, {pr(AC+2*i)}, {pr(VU+2*i)}')
        for j in range(4):
            hi, lo = 7 - 2*j - 1, 7 - 2*j
            a(f'v_cvt_pk_bf16_f32 v{160+j}, v{AC+2*lo}, v{AC+2*hi}')
            a(f'v_cvt_pk_bf16_f32 v{164+j}, v{AC+2*lo+1}, v{AC+2*hi+1}')
        a('v_sub_u32 v85, 7, v4')
        a('v_and_b32 v9, 7, v5')
        a('v_xor_b32 v85, v85, v9')
        a('v_lshlrev_b32 v85, 4, v85')
        a('v_lshl_add_u32 v85, v5, 8, v85')
        a(f'ds_write_b128 v85, v[160:163] offset:{L_KVT}')
        a(f'ds_write_b128 v85, v[164:167] offset:{L_KVT+128}')
        a('v_lshrrev_b32 v85, 3, v0')
        a('v_and_b32 v9, 7, v0')
        a('v_bfe_u32 v29, v85, 1, 3')
        a('v_xor_b32 v29, v29, v9')
        a('v_lshlrev_b32 v29, 4, v29')
        a('v_lshl_add_u32 v29, v85, 7, v29')
        a(f's_lshl_b32 s53, {sC}, 18')
        a(f's_lshl_b32 s54, {sR}, 7')
        a('s_sub_u32 s53, s53, s54')
        a(f's_add_u32 s53, s53, {XR + 3968}')
        a('v_lshlrev_b32 v50, 12, v85')
        a('v_lshl_add_u32 v50, v9, 4, v50')
        a('v_add_u32 v51, 0x20000, v50')
        a('s_waitcnt lgkmcnt(0)')
        a('s_barrier')
        a(f'ds_read_b128 v[160:163], v29 offset:{L_KVT}')
        a(f'ds_read_b128 v[164:167], v29 offset:{L_KVT+4096}')
        a('s_waitcnt lgkmcnt(1)')
        self.vstore('v[160:163]', 'v50', WS, 's53', 0, ' sc1', tag='xr')
        a('s_waitcnt lgkmcnt(0)')
        self.vstore('v[164:167]', 'v51', WS, 's53', 0, ' sc1', tag='xr')
        self.stamp('xr stored')
        self.mk_srd(SA, sW1, 512*1792*2)
        self.mk_srd(SB, sW2, 512*1792*2)
        a(f's_lshl_b32 s53, {sR}, 4')
        a(f's_lshl_b32 s54, {sW}, 2')
        a('s_add_u32 s53, s53, s54')
        a('s_mul_i32 s53, s53, 3584')
        a(f's_mul_i32 s54, {sC}, 448')
        a('s_add_u32 s53, s53, s54')
        a('v_lshrrev_b32 v34, 4, v1')
        a('v_and_b32 v9, 15, v1')
        a('v_mul_u32_u24 v29, 3584, v34')
        a('v_lshl_add_u32 v29, v9, 4, v29')
        a('v_add_u32 v29, s53, v29')
        self.vload('v[34:37]', 'v29', srd(SA), 0, tag='wr')
        self.vload('v[38:41]', 'v29', srd(SA), 0, 256, tag='wr')
        a('s_lshr_b32 s53, s2, 1')
        a('s_lshl_b32 s53, s53, 14')
        a('s_and_b32 s54, s2, 1')
        a('s_lshl_b32 s54, s54, 9')
        a('s_add_u32 s53, s53, s54')
        a('v_lshrrev_b32 v42, 4, v0')
        a('v_lshlrev_b32 v50, 10, v42')
        a('v_lshl_add_u32 v50, v9, 4, v50')
        a('v_add_u32 v50, s53, v50')
        self.vload('v[42:45]', 'v50', srd(SB), 0, tag='wr')
        self.vload('v[46:49]', 'v50', srd(SB), 0, 256, tag='wr')
        vq.wait('xr')
        a('s_barrier')
        Lnf = a.newlabel('noflag')
        a(f's_cmp_lg_u32 {sW}, 0')
        a(f's_cbranch_scc1 {Lnf}'); a.comment('COND_BEGIN')
        a(f's_lshl_b32 s53, {sC}, 5')
        a(f's_add_u32 s53, s53, {sR}')
        a('s_lshl_b32 s53, s53, 2')
        a(f's_add_u32 s53, s53, {F_PREP}')
        a(f'buffer_store_dword v{vTAG}, off, {WS}, s53 sc1')
        a.label(Lnf); a.comment('COND_END')
        self.stamp('prep published')
        a('v_and_b32 v54, 127, v0')
        a('v_lshlrev_b32 v50, 4, v54')
        a(f's_lshr_b32 s53, {sW}, 1')
        a(f's_mul_i32 s53, s53, {8*CS}')
        a(f's_add_u32 s53, s53, {L_TOEP}')
        a('v_add_u32 v50, s53, v50')
        for rho in range(3):
            D = HR + 8*rho
            if rho == 2:
                a('v_cmp_gt_u32 vcc, 3, v54')
                a('s_and_saveexec_b64 s[56:57], vcc')
            O = 100
            for k in range(7): a(f'v_alignbit_b32 v{O+k}, v{D+k+1}, v{D+k}, 16')
            for k in range(1, 7): a(f'v_alignbit_b32 v{110+k-1}, v{D+k+1}, v{D+k}, 16')
            for k in range(1, 7): a(f'v_mov_b32 v{120+k-1}, v{D+k}')
            off = rho*2048
            srcs = [O+0, 120, 110, D+2, O+2, 122, 112, D+4]
            for sg in range(8):
                a(f'ds_write_b128 v50, v[{srcs[sg]}:{srcs[sg]+3}] offset:{sg*CS + off}')
            if rho < 2: a.nop(1)
            if rho == 2: a('s_mov_b64 exec, s[56:57]')
        self.stamp('toeplitz done')

    def w_transpose(self):
        a = self.a; vq = self.vq
        vq.wait('wr')
        a('v_lshrrev_b32 v85, 4, v0')
        a('v_and_b32 v9, 15, v0')
        a('v_mul_u32_u24 v29, 448, v85')
        a('v_lshl_add_u32 v29, v9, 4, v29')
        a(f'ds_write_b128 v29, v[34:37] offset:{L_W1R}')
        a('v_cmp_gt_u32 vcc, 12, v9')
        a('s_and_saveexec_b64 s[56:57], vcc')
        a(f'ds_write_b128 v29, v[38:41] offset:{L_W1R+256}')
        a('s_mov_b64 exec, s[56:57]')
        a('v_mul_u32_u24 v29, 576, v85')
        a('v_lshl_add_u32 v29, v9, 4, v29')
        a(f'ds_write_b128 v29, v[42:45] offset:{L_W2R}')
        a(f'ds_write_b128 v29, v[46:49] offset:{L_W2R+256}')
        a('v_lshrrev_b32 v85, 5, v1')
        a('v_bfe_u32 v9, v1, 2, 2')
        a('v_bfe_u32 v29, v1, 4, 1')
        a('v_and_b32 v86, 3, v1')
        a('v_lshlrev_b32 v86, 3, v86')
        a('v_lshl_add_u32 v86, v29, 5, v86')
        a('v_lshl_add_u32 v55, v85, 3, v9')
        a('v_mul_u32_u24 v55, 448, v55')
        a('v_add_u32 v55, v55, v86')
        a(f's_lshl_b32 s54, {sW}, 6')
        a('v_add_u32 v55, s54, v55')
        a('v_lshl_add_u32 v89, v85, 2, v9')
        a('v_mul_u32_u24 v89, 576, v89')
        a('v_add_u32 v89, v89, v86')
        a('v_add_u32 v89, s54, v89')
        a('s_waitcnt lgkmcnt(0)')
        a('s_barrier')
        a(f'ds_read_b64_tr_b16 v[168:169], v55 offset:{L_W1R}')
        a(f'ds_read_b64_tr_b16 v[170:171], v55 offset:{L_W1R + 4*448}')
        a(f'ds_read_b64_tr_b16 v[172:173], v55 offset:{L_W1R + 256}')
        a(f'ds_read_b64_tr_b16 v[174:175], v55 offset:{L_W1R + 4*448 + 256}')
        a(f'ds_read_b64_tr_b16 v[176:177], v89 offset:{L_W2R}')
        a(f'ds_read_b64_tr_b16 v[178:179], v89 offset:{L_W2R + 8*576}')
        a(f'ds_read_b64_tr_b16 v[180:181], v89 offset:{L_W2R + 256}')
        a(f'ds_read_b64_tr_b16 v[182:183], v89 offset:{L_W2R + 8*576 + 256}')
        a(f's_mul_i32 s53, {sC}, 7')
        a(f's_add_u32 s53, s53, {sW}')
        a(f's_mul_i32 s54, {sR}, 56')
        a('s_add_u32 s53, s53, s54')
        a('s_lshl_b32 s53, s53, 10')
        a(f's_add_u32 s53, s53, {W1F}')
        a(f's_add_u32 s55, s53, {4*1024}')
        a('s_lshl_b32 s57, s2, 12')
        a(f's_add_u32 s57, s57, {DUMMY2}')
        a(f's_cmp_eq_u32 {sW}, 3')
        a('s_cselect_b32 s55, s57, s55')
        a('s_waitcnt lgkmcnt(4)')
        self.vstore('v[168:171]', f'v{vL16}', WS, 's53', 0, ' sc1', tag='wf')
        self.vstore('v[172:175]', f'v{vL16}', WS, 's55', 0, ' sc1', tag='wf')
        a('s_lshr_b32 s54, s2, 1')
        a('s_mul_i32 s55, s54, 9363')
        a('s_lshr_b32 s55, s55, 18')
        a('s_mul_i32 s56, s55, 28')
        a('s_sub_u32 s54, s54, s56')
        a('s_lshl_b32 s54, s54, 2')
        a('s_add_u32 s54, s54, s55')
        a('s_lshl_b32 s54, s54, 4')
        a('s_and_b32 s53, s2, 1')
        a('s_lshl_b32 s53, s53, 3')
        a(f's_add_u32 s53, s53, {sW}')
        a('s_add_u32 s53, s53, s54')
        a('s_lshl_b32 s53, s53, 10')
        a(f's_add_u32 s53, s53, {W2F}')
        a('s_cmp_ge_u32 s2, 224')
        a('s_cselect_b32 s53, s57, s53')
        a('s_waitcnt lgkmcnt(0)')
        self.vstore('v[176:179]', f'v{vL16}', WS, 's53', 0, ' sc1', tag='wf')
        a(f's_add_u32 s54, s53, {4*1024}')
        a('s_cselect_b32 s53, s57, s54') if False else None
        a('s_cmp_ge_u32 s2, 224')
        a('s_cselect_b32 s53, s57, s54')
        self.vstore('v[180:183]', f'v{vL16}', WS, 's53', 0, ' sc1', tag='wf')

    def weight_state_init(self):
        a = self.a
        a(f's_cmp_ge_u32 {sR}, 14')
        a(f's_cselect_b32 {sT1}, 1, 0')
        a(f's_mul_i32 s53, {sT1}, 14')
        a(f's_sub_u32 {sJ}, {sR}, s53')
        a(f's_lshl_b32 s14, {sJ}, 2')
        a(f's_add_u32 s14, s14, {sW}')
        a('s_min_u32 s14, s14, 55')
        a('s_lshl_b32 s14, s14, 10')
        a(f's_add_u32 s14, s14, {W1F}')
        a(f's_and_b32 s15, {sR}, 7')
        a('s_lshl_b32 s15, s15, 1')
        a(f's_lshl_b32 s53, {sW}, 4')
        a('s_add_u32 s15, s15, s53')
        a('s_lshl_b32 s15, s15, 10')
        a(f's_add_u32 s15, s15, {W2F}')
        self.wlist = [('w1', k) for k in range(32)] + [('w2', nt, i) for i in range(28) for nt in range(2)]
    def weight_batch(self, n):
        a = self.a
        for _ in range(n):
            if not self.wlist: return
            it = self.wlist.pop(0)
            if it[0] == 'w1':
                k = it[1]
                a(f's_add_u32 s13, s14, {k*56*1024}')
                self.vload(W1reg(k), f'v{vL16}', WS, 's13', 0, ' sc1', tag='w')
            else:
                _, nt, i = it
                a(f's_add_u32 s13, s15, {i*64*1024}')
                self.vload(W2reg(nt, i), f'v{vL16}', WS, 's13', nt*1024, ' sc1', tag='w')

    def conv(self):
        a = self.a; vq = self.vq; o = self.o
        a(f's_lshl_b32 s53, {sC}, 7')
        a(f's_add_u32 s53, s53, {F_PREP}')
        a('v_and_b32 v5, 31, v1')
        a('v_lshlrev_b32 v5, 2, v5')
        a('v_add_u32 v5, s53, v5')
        self.poll(5, 8)
        self.stamp('prep flags seen')
        a(f's_lshl_b32 s53, {sC}, 5')
        a(f's_add_u32 s53, s53, {sR}')
        a('s_lshl_b32 s61, s53, 7')
        a('s_lshl_b32 s53, s53, 13')
        a(f's_add_u32 s53, s53, {XR}')
        a('v_lshlrev_b32 v5, 4, v0')
        self.vload('v[184:187]', 'v5', WS, 's53', 0, ' sc1', tag='x0')
        a('s_add_u32 s53, s53, 4096')
        self.vload('v[188:191]', 'v5', WS, 's53', 0, ' sc1', tag='x1')
        a(f'v_add_u32 v132, {F_XC}, v{vL16}')
        a(f'buffer_load_dwordx4 v[128:131], v132, {WS}, 0 offen sc1'); vq.issue('fw')
        self.w_transpose()
        self.check_xc(128, 132)
        a('v_lshrrev_b32 v4, 2, v0')
        a('v_mul_u32_u24 v4, 96, v4')
        a('v_and_b32 v5, 3, v0')
        a('v_lshl_add_u32 v4, v5, 4, v4')
        vq.wait('x0')
        a(f'ds_write_b128 v4, v[184:187] offset:{L_XB}')
        vq.wait('x1')
        a(f'ds_write_b128 v4, v[188:191] offset:{L_XB + XBS}')
        a(f's_lshr_b32 s67, {sW}, 1')
        a(f's_and_b32 s59, {sW}, 1')
        a('v_and_b32 v4, 15, v1')
        a('v_lshrrev_b32 v5, 4, v1')
        a('v_and_b32 v6, 7, v4')
        a(f'v_mul_u32_u24 v6, {CS}, v6')
        a('v_and_b32 v7, 8, v4')
        a('v_lshl_add_u32 v7, v5, 3, v7')
        a('v_lshl_add_u32 v6, v7, 1, v6')
        a(f's_mul_i32 s55, s67, {8*CS}')
        a('s_lshl_b32 s56, s59, 5')
        a('s_add_u32 s55, s55, s56')
        a(f's_add_u32 s55, s55, {L_TOEP}')
        a('v_add_u32 v6, s55, v6')
        a('v_sub_u32 v7, 15, v4')
        a('v_mul_u32_u24 v7, 96, v7')
        a('v_lshl_add_u32 v7, v5, 4, v7')
        a(f's_mul_i32 s55, s67, {XBS}')
        a(f's_add_u32 s55, s55, {L_XB}')
        a('v_add_u32 v7, s55, v7')
        a('s_waitcnt lgkmcnt(0)')
        a('s_barrier')
        if self.o.get('pretouch', True): self.pretouch_late()
        for i in range(16): a(f'v_mov_b32 v{16+i}, 0')
        self.stamp('x in lds')
        wb1 = o.get('wb1', 12)
        def Er(m, j): b = 32 + 32*(m % 3) + 4*j; return f'v[{b}:{b+3}]'
        def Fr(m, j): b = 32 + 32*(m % 3) + 16 + 4*j; return f'v[{b}:{b+3}]'
        def gloads(m):
            l = []
            for j in range(4):
                e = 16*j - m
                l.append(f'ds_read_b128 {Fr(m,j)}, v6 offset:{64*(m+16*j)}')
                l.append(f'ds_read_b128 {Er(m,j)}, v7 offset:{(48-e)*96}')
            return l
        for l in gloads(0): a(l)
        for l in gloads(1)[:7]: a(l)
        first_extra = gloads(1)[7:]
        for m in range(16):
            nxt = (first_extra if m == 0 else []) + (gloads(m+2) if m + 2 < 16 else [])
            if m == 0: a('s_waitcnt lgkmcnt(7)')
            elif m < 15: a('s_waitcnt lgkmcnt(8)')
            else: a('s_waitcnt lgkmcnt(0)')
            mf = []
            for j in range(4):
                for c in range(j, 4):
                    mf.append(f'v_mfma_f32_16x16x32_bf16 v[{16+4*c}:{19+4*c}], {Fr(m,j)}, {Er(m,c-j)}, v[{16+4*c}:{19+4*c}]')
            if m == o.get('fwpub', 5):
                vq.wait('wf')
                a('s_barrier')
                Lnf = a.newlabel('noflag')
                a(f's_cmp_lg_u32 {sW}, 0')
                a(f's_cbranch_scc1 {Lnf}'); a.comment('COND_BEGIN')
                a('s_lshl_b32 s53, s2, 2')
                a(f's_add_u32 s53, s53, {F_W}')
                a(f'buffer_store_dword v{vTAG}, off, {WS}, s53 sc1')
                a.label(Lnf); a.comment('COND_END')
            if m == o.get('fwld', 13):
                a(f'v_add_u32 v132, {F_W}, v{vL16}')
                a(f'buffer_load_dwordx4 v[128:131], v132, {WS}, 0 offen sc1'); vq.issue('fw2')
            for i, ins in enumerate(mf):
                a(ins)
                if nxt: a(nxt.pop(0))
                pass
            assert not nxt
        self.stamp('conv mfma done')
        a('v_sub_u32 v8, 15, v4')
        a('v_mul_u32_u24 v8, 96, v8')
        a('v_lshlrev_b32 v9, 3, v5')
        a('v_sub_u32 v8, v8, v9')
        a(f's_mul_i32 s55, s67, {XBS}')
        a(f's_add_u32 s55, s55, {L_XB + 56}')
        a('s_lshl_b32 s56, s59, 5')
        a('s_sub_u32 s55, s55, s56')
        a('v_add_u32 v8, s55, v8')
        for c in range(4):
            a(f'ds_read_b64 v[{48+2*c}:{49+2*c}], v8 offset:{(48-16*c)*96}')
        a('s_lshl_b32 s55, s60, 16')
        a('s_and_b32 s56, s60, 0xffff0000')
        a('s_cmp_eq_u32 s67, 0')
        a('s_cselect_b32 s55, s55, s56')
        a('v_lshrrev_b32 v9, 1, v5')
        a('v_lshlrev_b32 v9, 1, v9')
        a('s_lshl_b32 s56, s59, 2')
        a('s_add_u32 s56, s56, s67')
        a('v_add_u32 v9, s56, v9')
        a('v_and_b32 v10, 7, v4')
        a('v_xor_b32 v9, v9, v10')
        a('v_lshlrev_b32 v9, 4, v9')
        a('v_lshl_add_u32 v9, v4, 7, v9')
        a('v_and_b32 v10, 1, v5')
        a('v_lshl_add_u32 v9, v10, 3, v9')
        a('s_waitcnt lgkmcnt(0)')
        for c in range(4):
            d0, d1 = 48+2*c, 49+2*c
            acc = 16+4*c
            a(f'v_and_b32 v60, 0xffff0000, v{d1}')
            a(f'v_lshlrev_b32 v61, 16, v{d1}')
            a(f'v_and_b32 v62, 0xffff0000, v{d0}')
            a(f'v_lshlrev_b32 v63, 16, v{d0}')
            for r in range(4):
                a(f'v_fma_f32 v{60+r}, v{60+r}, s55, v{acc+r}')
            a(f'v_cvt_pk_bf16_f32 v{64+2*c}, v60, v61')
            a(f'v_cvt_pk_bf16_f32 v{65+2*c}, v62, v63')
            a(f'ds_write_b64 v9, v[{64+2*c}:{65+2*c}] offset:{L_GT + 16*c*128}')
        a('v_lshrrev_b32 v8, 3, v0')
        a('v_and_b32 v9, 7, v0')
        a('v_and_b32 v10, 7, v8')
        a('v_xor_b32 v10, v10, v9')
        a('v_lshlrev_b32 v10, 4, v10')
        a('v_lshl_add_u32 v10, v8, 7, v10')
        a('v_lshlrev_b32 v11, 15, v8')
        a('v_lshl_add_u32 v11, v9, 4, v11')
        a('s_waitcnt lgkmcnt(0)')
        a('s_barrier')
        a(f'ds_read_b128 v[48:51], v10 offset:{L_GT}')
        a(f'ds_read_b128 v[52:55], v10 offset:{L_GT + 4096}')
        a(f's_add_u32 s53, s61, {GB}')
        a('s_waitcnt lgkmcnt(1)')
        self.vstore('v[48:51]', 'v11', WS, 's53', 0, ' sc1', tag='g')
        a(f's_add_u32 s53, s53, {32*32768}')
        a('s_waitcnt lgkmcnt(0)')
        self.vstore('v[52:55]', 'v11', WS, 's53', 0, ' sc1', tag='g')
        self.mk_srd(SA, sQ, 2097152)
        a(f's_lshl_b32 s53, {sC}, 8')
        a(f's_lshl_b32 s54, {sR}, 3')
        a('s_add_u32 s53, s53, s54')
        a(f's_add_u32 s53, s53, {sW}')
        a('s_lshl_b32 s53, s53, 10')
        self.vload('v[8:11]', f'v{vL16}', srd(SA), 's53', 0, tag='q')
        a('s_add_u32 s53, s53, 4096')
        self.vload('v[12:15]', f'v{vL16}', srd(SA), 's53', 0, tag='q')
        self.check_fw(128, 132)
        a('s_barrier')
        self.weight_batch(o.get('wb2', 16))
        self.stamp('conv published')

    def finish(self):
        a = self.a
        a.label('L_fin')
        Ln = a.newlabel('noep')
        a('s_cmp_lg_u32 s2, 0')
        a(f's_cbranch_scc1 {Ln}'); a.comment('COND_BEGIN')
        a(f's_cmp_lg_u32 {sW}, 0')
        a(f's_cbranch_scc1 {Ln}'); a.comment('COND_BEGIN')
        a(f'buffer_store_dword v{vTAG}, off, {WS}, 0 sc1')
        a.label(Ln)
        if self.stamps:
            self.stamp('end')
            a('s_memtime s[62:63]'); a('s_waitcnt lgkmcnt(0)'); a('s_sub_u32 s100, s62, s100')
            a('s_lshl_b32 s53, s2, 2')
            a(f's_add_u32 s53, s53, {sW}')
            a('s_lshl_b32 s53, s53, 7')
            a(f's_add_u32 s53, s53, {TS}')
            a('s_mov_b64 exec, 1')
            a('v_mov_b32 v4, 0')
            for i in range(self.nstamp):
                a(f'v_mov_b32 v5, s{76+i}')
                a(f'buffer_store_dword v5, v4, {WS}, s53 offen offset:{4*i}')
                a.nop(1)
            if self.o.get('dbgstamps'):
                Ld = a.newlabel('nodbg')
                a(f's_cmp_lg_u32 s2, {self.o.get("dbgstamps")}')
                a(f's_cbranch_scc1 {Ld}')
                a(f's_cmp_lg_u32 {sW}, 0')
                a(f's_cbranch_scc1 {Ld}')
                self.mk_srd(SA, sDBG, 256)
                sel = [1, 3, 5, 6, 7, 8, 10, 11, 13, 14, 16, 17, 19, 20, 22, 23]
                for j, i in enumerate(sel):
                    a(f's_sub_u32 s54, s{76+i}, s76')
                    a(f'v_mov_b32 v5, s54')
                    a(f'buffer_store_dword v5, v4, {srd(SA)}, 0 offen offset:{4*j}')
                    a.nop(1)
                a.label(Ld)
            a(f'v_mov_b32 v5, {sFAST}')
            a(f'buffer_store_dword v5, v4, {WS}, s53 offen offset:116')
            a.nop(1)
            a(f'v_mov_b32 v5, s100')
            a(f'buffer_store_dword v5, v4, {WS}, s53 offen offset:120')
            a.nop(1)
            a(f'v_mov_b32 v5, {sABORT}')
            a(f'buffer_store_dword v5, v4, {WS}, s53 offen offset:124')
        a('s_waitcnt vmcnt(0)')
        a.label('L_end')
        a('s_endpgm')
        a.label('L_code_end')

    def build(self):
        self.prologue()
        self.prep()
        if self.stop != 'prep': self.conv()
        if self.stop not in ('prep', 'conv'):
            if self.o.get('mlp', 4) == 3:
                from gen3_mlp import emit_mlp
            else:
                from gen4_mlp import emit_mlp
            emit_mlp(self)
        self.finish()
        body = self.a.text()
        hdr = open('cdna_kernels/' + NAME[:-7] + '.s.ref').read().split('; Override launch')[0]
        s = hdr + f'; @launch grid=(256,1,1) block=(256,1,1) lds={LDS_SIZE}\n'
        s += f'''.amdgcn_target "amdgcn-amd-amdhsa--gfx950"
.text
.globl {NAME}
.p2align 8
.type {NAME},@function
{NAME}:
.set CODE_BYTES, {'L_slow' if 'L_slow:' in body else 'L_code_end'} - {NAME}
''' + body + f'''.section .rodata,"a"
.p2align 6
.amdhsa_kernel {NAME}
  .amdhsa_next_free_vgpr 512
  .amdhsa_next_free_sgpr 102
  .amdhsa_accum_offset 256
  .amdhsa_group_segment_fixed_size 0
  .amdhsa_kernarg_size 112
  .amdhsa_user_sgpr_count 2
  .amdhsa_user_sgpr_kernarg_segment_ptr 1
  .amdhsa_system_sgpr_workgroup_id_x 1
.end_amdhsa_kernel
'''
        return s

def main():
    ap = argparse.ArgumentParser()
    ap.add_argument('--stop', default='end')
    ap.add_argument('--stamps', action='store_true')
    ap.add_argument('-o', default='k.s')
    ap.add_argument('--opt', action='append', default=[])
    args = ap.parse_args()
    opts = {}
    for kv in args.opt:
        k, v = kv.split('='); opts[k] = int(v) if v.lstrip('-').isdigit() else v
    g = Gen(stop=args.stop, stamps=args.stamps, opts=opts)
    s = g.build()
    probs = check_hazards(g.a.lines)
    for p in probs: print(p)
    wp = check_waits(g.a.lines)
    for p in wp[:30]: print(p)
    print(len(wp), 'wait problems')
    print(f'{len(g.a.lines)} lines, {len(probs)} hazards')
    open(args.o, 'w').write(s)
    open(args.o + '.stamps', 'w').write('\n'.join(g.stamp_names))

if __name__ == '__main__':
    main()
```

```python
from gen2 import *

def tok_base(a, dst, eta):
    a(f's_lshl_b32 {dst}, {sC}, 8')
    a(f's_lshl_b32 s54, {sR}, 3')
    a(f's_add_u32 {dst}, {dst}, s54')
    a(f's_add_u32 {dst}, {dst}, {sW}')
    if eta: a(f's_add_u32 {dst}, {dst}, {4*eta}')
    a(f's_lshl_b32 {dst}, {dst}, 10')

def yflag_addr(a, dst, eta):
    a(f's_lshl_b32 {dst}, s67, 1')
    if eta: a(f's_add_u32 {dst}, {dst}, {eta}')
    a(f's_lshl_b32 {dst}, {dst}, 3')
    a(f's_add_u32 {dst}, {dst}, {sC}')
    a(f's_lshl_b32 {dst}, {dst}, 7')
    a(f's_lshl_b32 s54, {sR}, 2')
    a(f's_add_u32 {dst}, {dst}, s54')
    a(f's_add_u32 {dst}, {dst}, {sW}')
    a(f's_lshl_b32 {dst}, {dst}, 2')
    a(f's_add_u32 {dst}, {dst}, {F_Y}')

def rows_finish(g, rows):
    a = g.a
    for (X, eta) in rows:
        a(f's_lshl_b32 s53, {sW}, 10')
        a(f's_add_u32 s53, s53, {L_G + eta*4096}')
        a(f'v_add_u32 v{X+28}, s53, v{vL16}')
        a(f'ds_read_b128 v[{X+16}:{X+19}], v{X+28}')
    a('s_waitcnt lgkmcnt(0)')
    def pr(b): return f'v[{b}:{b+1}]'
    for (X, eta) in rows:
        g.unpack8(X+16, X+20)
    for (X, eta) in rows:
        for i in range(4):
            a(f'v_pk_fma_f32 {pr(X+2*i)}, {pr(X+8+2*i)}, {pr(X+20+2*i)}, {pr(X+2*i)}')
    for (X, eta) in rows:
        g.pack8(X, X+32)
    for (X, eta) in rows:
        g.unpack8(X+32, X)
    for (X, eta) in rows:
        tok_base(a, 's55', eta)
        a('s_lshl_b32 s54, s67, 22' if not g.fast else 's_mov_b32 s54, 0')
        a('s_add_u32 s54, s54, s55')
        a(f's_add_u32 s54, s54, {X1}')
        g.vstore(f'v[{X+32}:{X+35}]', f'v{vL16}', WS, 's54', 0, g.sc, tag=f'rx{eta}')
    g.ln_multi([(X, X+8, X+36) for (X, eta) in rows])
    g.ln_multi([(X+8, X+8, X+36) for (X, eta) in rows])
    for (X, eta) in rows:
        g.pack8(X+8, X+16)
    for (X, eta) in rows:
        tok_base(a, 's55', eta)
        a('s_lshl_b32 s54, s67, 21' if not g.fast else 's_mov_b32 s54, 0')
        a('s_add_u32 s54, s54, s55')
        a(f's_add_u32 s54, s54, {Y0}')
        g.vstore(f'v[{X+16}:{X+19}]', f'v{vL16}', WS, 's54', 0, g.sc, tag=f'ry{eta}')

def row_flag(g, eta):
    a = g.a
    yflag_addr(a, 's53', eta)
    g.vq.wait(f'ry{eta}')
    g.flag('s53')

def emit_r1a(g):
    a = g.a; vq = g.vq; o = g.o
    XA, XB_ = 16, 64
    a(f'v_mov_b32 v{g.vinv}, 0x3b000000')
    vq.wait('q')
    g.unpack8(8, XA); g.unpack8(12, XB_)
    g.ln_multi([(XA, XA+8, XA+36), (XB_, XB_+8, XB_+36)])
    g.stamp('lnq done')
    if getattr(g, 'r1_hook', None): g.r1_hook()
    a(f's_lshl_b32 s53, {sC}, 3')
    a(f's_lshr_b32 s54, {sR}, 2')
    a('s_add_u32 s53, s53, s54')
    a('s_lshl_b32 s53, s53, 15')
    a(f's_and_b32 s54, {sR}, 3')
    a('s_lshl_b32 s54, s54, 5')
    a('s_add_u32 s53, s53, s54')
    a(f's_add_u32 s55, s53, {GB}')
    a('v_lshlrev_b32 v5, 7, v0')
    L = a.newlabel('gp'); D = a.newlabel('gpd')
    a('s_mov_b32 s53, 0')
    a.label(L)
    a(f'buffer_load_dwordx4 v[112:115], v5, {WS}, s55 offen sc1')
    a(f'buffer_load_dwordx4 v[116:119], v5, {WS}, s55 offen offset:16 sc1')
    a('s_waitcnt vmcnt(0)')
    a('v_max3_u32 v120, v112, v113, v114')
    a('v_max3_u32 v121, v115, v116, v117')
    a('v_max3_u32 v120, v120, v118, v119')
    a('v_max_u32 v120, v120, v121')
    a('v_cmp_eq_u32 vcc, -1, v120')
    a(f's_cbranch_vccz {D}')
    a('s_add_u32 s53, s53, 1')
    a(f's_cmp_lg_u32 {sABORT}, 0')
    a(f's_cbranch_scc1 {D}')
    a('s_cmp_lt_u32 s53, 0x8000')
    a(f's_cbranch_scc1 {L}')
    a(f's_mov_b32 {sABORT}, 1')
    a.label(D)
    vq.reset()
    g.stamp('G loaded')
    g.weight_batch(o.get('wb3', 16))
    a('s_mov_b32 s56, 0x05040100')
    a('s_mov_b32 s57, 0x07060302')
    a('v_lshlrev_b32 v5, 2, v0')
    a(f'v_add_u32 v5, {L_G}, v5')
    for j in range(8):
        sel = 's56' if j % 2 == 0 else 's57'
        a(f'v_perm_b32 v{120 + j}, v{116 + j//2}, v{112 + j//2}, {sel}')
    for j in range(8):
        a(f'ds_write_b32 v5, v{120 + j} offset:{j*1024}')
    a('s_waitcnt lgkmcnt(0)')
    a('s_barrier')

def emit_r1b(g):
    a = g.a; vq = g.vq; o = g.o
    XA, XB_ = 16, 64
    a('s_mov_b32 s67, 0')
    rows_finish(g, [(XA, 0), (XB_, 1)])
    g.weight_batch(o.get('wb4', 0))
    row_flag(g, 0)
    row_flag(g, 1)
    g.stamp('r1 done')

def emit_r2(g):
    a = g.a; vq = g.vq
    a('s_mov_b32 s67, 1')
    a('v_mov_b32 v4, 0x3b000000')
    for eta in range(2):
        X = 16 if eta == 0 else 64
        a(f's_lshl_b32 s53, {sC}, 1')
        if eta: a(f's_add_u32 s53, s53, {eta}')
        a('s_lshl_b32 s53, s53, 2')
        a(f's_lshr_b32 s54, {sR}, 3')
        a('s_add_u32 s53, s53, s54')
        a('s_lshl_b32 s53, s53, 2')
        a(f's_and_b32 s54, {sR}, 7')
        a('s_lshr_b32 s54, s54, 1')
        a('s_add_u32 s53, s53, s54')
        a('s_lshl_b32 s53, s53, 5')
        a(f's_add_u32 s53, s53, {F_X}')
        a('v_lshlrev_b32 v5, 2, v1')
        a('v_add_u32 v5, s53, v5')
        if eta == 1:
            row_flag(g, 0)
        g.poll(5, 6, nlanes=8)
        tok_base(a, 's53', eta)
        a(f's_add_u32 s53, s53, {X2}')
        g.vload('v[8:11]', f'v{vL16}', WS, 's53', 0, ' sc1', tag='x2')
        vq.wait('x2')
        g.unpack8(8, X)
        g.ln_multi([(X, X+8, X+36)])
        rows_finish(g, [(X, eta)])
    row_flag(g, 1)
    g.stamp('r2 done', False)

def gelu_fillers(g, acc, eta, tt):
    a = g.a
    F = []
    def addr():
        a(f's_add_u32 s54, s71, {(2*eta+tt)*112*1024}')
        a(f's_add_u32 s55, s70, {(2*eta+tt)*256}')
    F.append(addr)
    for p in range(8):
        x0, x1 = acc + 2*p, acc + 2*p + 1
        t0, t1 = 96 + 2*(p % 2), 97 + 2*(p % 2)
        seq = [f'v_mul_f32 v{t0}, v{x0}, v{x0}', f'v_mul_f32 v{t1}, v{x1}, v{x1}',
               f'v_fma_f32 v{t0}, v{t0}, v126, v127', f'v_fma_f32 v{t1}, v{t1}, v126, v127',
               f'v_mul_f32 v{t0}, v{t0}, v{x0}', f'v_mul_f32 v{t1}, v{t1}, v{x1}',
               f'v_exp_f32 v{t0}, v{t0}', f'v_exp_f32 v{t1}, v{t1}',
               f'v_add_f32 v{t0}, 1.0, v{t0}', f'v_add_f32 v{t1}, 1.0, v{t1}',
               f'v_rcp_f32 v{t0}, v{t0}', f'v_rcp_f32 v{t1}, v{t1}',
               f'v_mul_f32 v{x0}, v{x0}, v{t0}', f'v_mul_f32 v{x1}, v{x1}, v{t1}',
               f'v_cvt_pk_bf16_f32 v{112+p}, v{x0}, v{x1}']
        for s in seq: F.append(lambda s=s: a(s))
        if p == 3: F.append(lambda: g.vstore('v[112:115]', f'v{vL16}', WS, 's54', 0, g.sc, tag=f'h{eta}{tt}'))
        if p == 7: F.append(lambda: g.vstore('v[116:119]', f'v{vL16}', WS, 's54', 1024, g.sc, tag=f'h{eta}{tt}'))
    return F

def emit_g1(g):
    a = g.a; vq = g.vq
    Lskip = a.newlabel('g1skip')
    a('s_barrier')
    a(f's_cmp_ge_u32 {sR}, 28')
    a(f's_cbranch_scc1 {Lskip}')
    a(f's_lshl_b32 s68, {sJ}, 2')
    a(f's_add_u32 s68, s68, {sW}')
    g.mk_srd(SA, sB1, 3584)
    a('v_lshrrev_b32 v14, 5, v1')
    a('v_lshlrev_b32 v15, 3, v14')
    a('s_lshl_b32 s53, s68, 6')
    for i in range(4):
        g.vload(f'v[{96+2*i}:{97+2*i}]', 'v15', srd(SA), 's53', 16*i, w='x2', tag='bias')
    a(f'v_mov_b32 v126, {f2u(-C2)}')
    a(f'v_mov_b32 v127, {f2u(-C1)}')
    a('v_and_b32 v15, 31, v1')
    a('v_and_b32 v12, 15, v1')
    for m in range(8):
        a(f'v_add_u32 v{4+m}, {2*m}, v14')
        a(f'v_xor_b32 v{4+m}, v{4+m}, v12')
        a(f'v_lshlrev_b32 v{4+m}, 4, v{4+m}')
        a(f'v_lshl_add_u32 v{4+m}, v15, 10, v{4+m}')
    a(f's_lshl_b32 s53, {sC}, 1')
    a(f's_add_u32 s53, s53, {sT1}')
    a('s_lshl_b32 s53, s53, 2')
    a('s_mul_i32 s71, s53, 112')
    a('s_lshl_b32 s55, s68, 1')
    a('s_add_u32 s71, s71, s55')
    a('s_lshl_b32 s71, s71, 10')
    a(f's_lshl_b32 s55, {sLAYER}, 23' if not g.fast else 's_mov_b32 s55, 0')
    a('s_add_u32 s71, s71, s55')
    a(f's_add_u32 s71, s71, {H0}')
    a(f's_lshl_b32 s55, {sLAYER}, 6')
    a('s_add_u32 s70, s53, s55')
    a('s_lshl_b32 s70, s70, 8')
    a('s_lshl_b32 s55, s68, 2')
    a('s_add_u32 s70, s70, s55')
    a(f's_add_u32 s70, s70, {F_H}')
    for eta in range(2):
        a(f's_lshl_b32 s53, {sLAYER}, 1')
        if eta: a(f's_add_u32 s53, s53, {eta}')
        a('s_lshl_b32 s53, s53, 3')
        a(f's_add_u32 s53, s53, {sC}')
        a('s_lshl_b32 s53, s53, 7')
        a(f's_lshl_b32 s54, {sT1}, 6')
        a('s_add_u32 s53, s53, s54')
        a(f's_lshl_b32 s54, {sW}, 4')
        a('s_add_u32 s53, s53, s54')
        a('s_lshl_b32 s53, s53, 2')
        a(f's_add_u32 s53, s53, {F_Y}')
        a('v_lshlrev_b32 v14, 2, v1')
        a('v_add_u32 v14, s53, v14')
        g.dstamp('g1', f'poll{eta} start')
        g.poll(14, 15, nlanes=16)
        g.dstamp('g1', f'poll{eta} done')
        if eta == 0: g.stamp('g1 yA seen', True)
        a(f's_lshl_b32 s53, {sC}, 8')
        a(f's_lshl_b32 s54, {sT1}, 7')
        a('s_add_u32 s53, s53, s54')
        a(f's_lshl_b32 s54, {sW}, 5')
        a('s_add_u32 s53, s53, s54')
        if eta: a(f's_add_u32 s53, s53, {4*eta}')
        a('s_lshl_b32 s53, s53, 10')
        a(f's_lshl_b32 s54, {sLAYER}, 21' if not g.fast else 's_mov_b32 s54, 0')
        a('s_add_u32 s53, s53, s54')
        a(f's_add_u32 s53, s53, {Y0}')
        a(f's_lshl_b32 s54, {sW}, 14')
        if eta: a(f's_add_u32 s54, s54, {L_YH[eta]}')
        for i in range(16):
            if i % 4 == 0:
                a(f's_add_u32 m0, s54, {i*1024}')
                if i: a('s_add_u32 s53, s53, 8192')
            a(f'v_xor_b32 v15, {16*i}, v{vL16}')
            off = f' offset:{(i%4)*1024}' if i % 4 else ''
            a(f'buffer_load_dwordx4 v15, {WS}, s53 offen{off} sc1 lds')
            vq.issue(f'dma{eta}')
    for i in range(4):
        a(f'v_lshlrev_b32 v{48+4*i}, 16, v{96+2*i}')
        a(f'v_and_b32 v{49+4*i}, 0xffff0000, v{96+2*i}')
        a(f'v_lshlrev_b32 v{50+4*i}, 16, v{97+2*i}')
        a(f'v_and_b32 v{51+4*i}, 0xffff0000, v{97+2*i}')
    g.dstamp('g1', 'dma issued')
    a('s_barrier')
    g.stamp('g1 yA in lds', True)
    g.dstamp('g1', 'yA in lds')
    tiles = [(0,0), (0,1), (1,0), (1,1)]
    fill = []
    pend_flags = []
    NB, PF = 8, 6
    for ti, (eta, tt) in enumerate(tiles):
        if ti == 2:
            vq.wait('dma1')
            a('s_barrier')
            for m in range(8): a(f'v_add_u32 v{4+m}, 0x10000, v{4+m}')
        acc = 16 + 16*(ti % 2)
        def Breg(k): return f'v[{64+4*(k%NB)}:{67+4*(k%NB)}]'
        def Bload(k): a(f'ds_read_b128 {Breg(k)}, v{4+(k&7)} offset:{tt*32768 + (k>>3)*256}')
        for k in range(PF): Bload(k)
        START = 3
        nf = len(fill)
        done = 0
        for k in range(32):
            if k + PF < 32: Bload(k + PF)
            a(f's_waitcnt lgkmcnt({min(PF, 31-k)})')
            cin = f'v[48:63]' if k == 0 else f'v[{acc}:{acc+15}]'
            a(f'v_mfma_f32_32x32x16_bf16 v[{acc}:{acc+15}], {W1reg(k)}, {Breg(k)}, {cin}')
            if k >= START and nf:
                END = 30
                target = min(nf, ((k - START + 1) * nf + (END - START)) // (END - START + 1))
                while done < target:
                    fill[done](); done += 1
            if k == g.o.get('g1flagslot', 28) and pend_flags and ti >= 2:
                (ptag, peta, ptt) = pend_flags.pop(0)
                vq.wait(ptag)
                a(f's_add_u32 s56, s70, {(2*peta+ptt)*256}')
                g.flag('s56')
        while done < nf:
            fill[done](); done += 1
        g.dstamp('g1', f'tile{ti} done')
        if ti > 0:
            pe, pt = tiles[ti-1]
            pend_flags.append((f'h{pe}{pt}', pe, pt))
        fill = gelu_fillers(g, acc, eta, tt)
    a.nop(12)
    half = len(fill)//2
    for f in fill[:half]: f()
    for (ptag, peta, ptt) in pend_flags:
        vq.wait(ptag)
        a(f's_add_u32 s56, s70, {(2*peta+ptt)*256}')
        g.flag('s56')
    for f in fill[half:]: f()
    g.dstamp('g1', 'tail gelu done')
    vq.wait('h11')
    a(f's_add_u32 s56, s70, {3*256}')
    g.flag('s56')
    a.label(Lskip)
    vq.reset()
    g.stamp('g1 done', True)

def emit_g2(g):
    a = g.a; vq = g.vq
    a('s_barrier')
    g.mk_srd(SA, sB2, 1024)
    a('v_and_b32 v12, 7, v0')
    a('v_lshlrev_b32 v15, 4, v12')
    a(f's_and_b32 s53, {sR}, 7')
    a('s_lshl_b32 s53, s53, 7')
    g.vload('v[8:11]', 'v15', srd(SA), 's53', 0, tag='b2')
    a(f's_cmp_eq_u32 {sLAYER}, 0')
    a(f's_cselect_b32 s{SD_}, s{sWSP}, s{sOUT}')
    a(f's_cselect_b32 s{SD_+1}, s{sWSP+1}, s{sOUT+1}')
    a(f's_mov_b32 s{SD_+2}, 2097152')
    a(f's_cselect_b32 s{SD_+2}, {WS_SIZE}, s{SD_+2}')
    a(f's_mov_b32 s{SD_+3}, 0x00020000')
    a(f's_cselect_b32 s69, {X2}, 0')
    a(f's_and_b32 s{SD_+1}, s{SD_+1}, 0xffff')
    a('v_and_b32 v14, 31, v1')
    a('v_lshrrev_b32 v15, 5, v1')
    a('v_and_b32 v13, 7, v1')
    a(f's_lshl_b32 s53, {sW}, 13')
    for i in range(4):
        a(f'v_add_u32 v{4+i}, {2*i}, v15')
        a(f'v_xor_b32 v{4+i}, v{4+i}, v13')
        a(f'v_lshlrev_b32 v{4+i}, 4, v{4+i}')
        a(f'v_lshl_add_u32 v{4+i}, v14, 8, v{4+i}')
        a(f'v_add_u32 v{4+i}, s53, v{4+i}')
    a('v_lshrrev_b32 v14, 3, v0')
    a('v_and_b32 v13, 7, v14')
    a('v_and_b32 v15, 3, v12')
    a('v_lshlrev_b32 v15, 1, v15')
    a('v_xor_b32 v16, v15, v13')
    a('v_or_b32 v15, 1, v15')
    a('v_xor_b32 v17, v15, v13')
    a('v_lshrrev_b32 v15, 2, v12')
    a('v_lshlrev_b32 v15, 7, v15')
    a('v_lshl_add_u32 v15, v14, 8, v15')
    a('v_lshl_add_u32 v16, v16, 4, v15')
    a('v_lshl_add_u32 v17, v17, 4, v15')
    a(f's_lshr_b32 s53, {sR}, 3')
    a('s_lshl_b32 s53, s53, 5')
    a('v_add_u32 v15, s53, v14')
    a('v_lshrrev_b32 v18, 2, v15')
    a('v_lshlrev_b32 v18, 3, v18')
    a('v_and_b32 v15, 3, v15')
    a('v_add_u32 v18, v18, v15')
    a(f's_lshl_b32 s53, {sC}, 8')
    a('v_add_u32 v18, s53, v18')
    a('v_lshlrev_b32 v18, 10, v18')
    a(f's_and_b32 s53, {sR}, 7')
    a('s_lshl_b32 s53, s53, 7')
    a('v_lshl_add_u32 v18, v12, 4, v18')
    a('v_add_u32 v18, s53, v18')
    a(f's_lshr_b32 s70, {sR}, 4')
    a(f's_lshl_b32 s53, {sC}, 1')
    a('s_add_u32 s53, s53, s70')
    a('s_lshl_b32 s53, s53, 2')
    a(f's_lshr_b32 s54, {sR}, 3')
    a('s_and_b32 s54, s54, 1')
    a('s_add_u32 s70, s53, s54')
    a('s_mul_i32 s71, s70, 112')
    a(f's_mul_i32 s54, {sW}, 28')
    a('s_add_u32 s71, s71, s54')
    a('s_lshl_b32 s71, s71, 10')
    a(f's_lshl_b32 s54, {sLAYER}, 23' if not g.fast else 's_mov_b32 s54, 0')
    a('s_add_u32 s71, s71, s54')
    a(f's_add_u32 s71, s71, {H0}')
    a(f's_lshl_b32 s53, {sLAYER}, 6')
    a('s_add_u32 s70, s70, s53')
    a('s_lshl_b32 s70, s70, 8')
    a(f's_mul_i32 s54, {sW}, 56')
    a('s_add_u32 s70, s70, s54')
    a(f's_add_u32 s70, s70, {F_H}')
    a(f's_lshl_b32 s68, {sC}, 3')
    a(f's_lshr_b32 s54, {sR}, 3')
    a('s_add_u32 s68, s68, s54')
    a('s_lshl_b32 s68, s68, 2')
    a(f's_add_u32 s68, s68, {sW}')
    a('s_lshl_b32 s68, s68, 3')
    a(f's_and_b32 s54, {sR}, 7')
    a('s_add_u32 s68, s68, s54')
    a('s_lshl_b32 s68, s68, 2')
    a(f's_add_u32 s68, s68, {F_X}')
    NW = 16
    def Hreg(i): return f'v[{64+4*(i%NW)}:{67+4*(i%NW)}]'
    def Hload(eta, i):
        a(f's_add_u32 s54, s71, {eta*2*112*1024 + (i//4)*4096}')
        g.vload(Hreg(i), f'v{vL16}', WS, 's54', (i%4)*1024, ' sc1', tag=f'hf{eta}_{i}')
    def start_half(eta):
        a('v_lshlrev_b32 v14, 2, v1')
        a(f's_add_u32 s53, s70, {eta*2*256}')
        a('v_add_u32 v14, s53, v14')
        g.poll(14, 15, nlanes=14)
        a(f's_lshl_b32 s53, {sLAYER}, 22' if not g.fast else 's_mov_b32 s53, 0')
        a(f's_add_u32 s53, s53, {X1 + eta*4096}')
        g.vload(f'v[{28+eta*32}:{31+eta*32}]', 'v18', WS, 's53', 0, ' sc1', tag=f'res{eta}')
        for i in range(NW): Hload(eta, i)
    def mfmas(eta, hook=None):
        for i in range(28):
            vq.wait(f'hf{eta}_{i}')
            for nt in range(2):
                acc = f'a[{224+16*nt}:{239+16*nt}]'
                cin = '0' if i == 0 else acc
                a(f'v_mfma_f32_32x32x16_bf16 {acc}, {W2reg(nt,i)}, {Hreg(i)}, {cin}')
            if i + NW < 28: Hload(eta, i + NW)
            if hook: hook(i)
    def reduce_write(eta):
        a.nop(12)
        LR = eta*32768
        for nt in range(2):
            for i in range(4):
                b = 224 + 16*nt + 4*i
                a(f'ds_write_b128 v{4+i}, a[{b}:{b+3}] offset:{LR + nt*128}')
        a('s_waitcnt lgkmcnt(0)')
        a('s_barrier')
    def reduce_finish(eta):
        LR = eta*32768
        for p in range(4):
            a(f'ds_read_b128 v[{32+8*p}:{35+8*p}], v16 offset:{LR + p*8192}') if False else None
        P = [32, 40, 48, 120]
        return
    vq.wait('b2')
    g.unpack8(8, 20)
    def finish_half(eta):
        LR = eta*32768
        res = 28 + eta*32
        for p in range(3):
            a(f'ds_read_b128 v[{32+8*p}:{35+8*p}], v16 offset:{LR + p*8192}')
            a(f'ds_read_b128 v[{36+8*p}:{39+8*p}], v17 offset:{LR + p*8192}')
        a(f'ds_read_b128 v[8:11], v16 offset:{LR + 3*8192}')
        a(f'ds_read_b128 v[56:59], v17 offset:{LR + 3*8192}')
        a('s_waitcnt lgkmcnt(2)')
        def pr(b): return f'v[{b}:{b+1}]'
        for e in range(4): a(f'v_pk_add_f32 {pr(32+2*e)}, {pr(32+2*e)}, {pr(40+2*e)}')
        for e in range(4): a(f'v_pk_add_f32 {pr(48+2*e)}, {pr(48+2*e)}, {pr(20+2*e)}')
        a('s_waitcnt lgkmcnt(0)')
        a(f'v_pk_add_f32 {pr(32)}, {pr(32)}, {pr(8)}'); a(f'v_pk_add_f32 {pr(34)}, {pr(34)}, {pr(10)}')
        a(f'v_pk_add_f32 {pr(36)}, {pr(36)}, {pr(56)}'); a(f'v_pk_add_f32 {pr(38)}, {pr(38)}, {pr(58)}')
        for e in range(4): a(f'v_pk_add_f32 {pr(32+2*e)}, {pr(32+2*e)}, {pr(48+2*e)}')
        g.pack8(32, 40); g.unpack8(40, 32)
        vq.wait(f'res{eta}')
        g.unpack8(res, 48)
        for e in range(4): a(f'v_pk_add_f32 {pr(32+2*e)}, {pr(32+2*e)}, {pr(48+2*e)}')
        g.pack8(32, 40)
        a(f's_add_u32 s53, s69, {eta*4096}')
        g.vstore('v[40:43]', 'v18', srd(SD_), 's53', 0, g.sc, tag=f'xo{eta}')
    def xflag(eta):
        vq.wait(f'xo{eta}')
        a(f's_add_u32 s53, s68, {eta*512}')
        g.flag('s53')
    g.dstamp('g2', 'g2 begin')
    start_half(0)
    g.stamp('g2 hA seen', True)
    g.dstamp('g2', 'A issued')
    def hookA(i):
        if i == 0: g.dstamp('g2', 'A first frag')
        if i == 15: g.dstamp('g2', 'A 16 frags')
    mfmas(0, hookA)
    g.dstamp('g2', 'A mfma done')
    reduce_write(0)
    g.dstamp('g2', 'A red written')
    start_half(1)
    g.dstamp('g2', 'B issued')
    finish_half(0)
    g.dstamp('g2', 'A finished')
    def hook(i):
        if i == 10: xflag(0)
        if i == 0: g.dstamp('g2', 'B first frag')
    mfmas(1, hook)
    g.dstamp('g2', 'B mfma done')
    reduce_write(1)
    finish_half(1)
    g.dstamp('g2', 'B finished')
    xflag(1)
    g.stamp('g2 done', True)

def emit_mlp_variant(g, sc, sfx):
    a = g.a
    g.sc = sc
    emit_r1b(g)
    if g.stop == 'r1': a('s_branch L_fin'); return
    a(f's_mov_b32 {sLAYER}, 0')
    a.label('L_layer' + sfx)
    emit_g1(g)
    if g.stop == 'g1': a('s_branch L_fin'); return
    emit_g2(g)
    if g.stop == 'g2': a('s_branch L_fin'); return
    a(f's_cmp_eq_u32 {sLAYER}, 1')
    a('s_cbranch_scc1 L_fin')
    emit_r2(g)
    if g.stop == 'r2': a('s_branch L_fin'); return
    a(f's_mov_b32 {sLAYER}, 1')
    a('s_branch L_layer' + sfx)

def emit_mlp(g):
    a = g.a
    emit_r1a(g)
    import copy
    ops0 = list(g.vq.ops); wl0 = list(g.wlist)
    a(f's_cmp_eq_u32 {sFAST}, 0')
    a('s_cbranch_scc1 L_slow')
    n0, names0 = g.nstamp, list(g.stamp_names)
    emit_mlp_variant(g, '', '_f')
    a.label('L_slow')
    g.vq.ops = ops0; g.wlist = wl0
    st = g.stamps; g.stamps = False
    emit_mlp_variant(g, ' sc1', '_s')
    g.stamps = st
```

```python
import sys, argparse, struct
from asmlib import Asm, check_hazards, check_waits

NAME = 'interleave_layers__ssm_conv_h3__mixer_channel_mlp__prompt_kernel'

WS_EPOCH = 0x0
F_PREP = 0x1000
F_CONV = 0x2000
F_W = 0x3000
F_XC = 0x3800
DUMMY2 = 0x2D00000
F_Y    = 0x4000
F_H    = 0x8000
F_X    = 0x10000
XR     = 0x100000
W1F    = 0x300000
W2F    = 0x500000
GB     = 0x700000
Y0     = 0x900000
X1     = 0xD00000
X2     = 0xF00000
H0     = 0x1400000
TS     = 0x2400000
WS_SIZE = 0x10000000

L_KVT = 0
L_W1R = 8192
L_W2R = 16384
L_GT  = 0
L_XB = 25600
XBS = 79*96
L_TOEP = 40960
CS = 4160
LDS_SIZE = 163840
L_G = 155648
L_YH = [0, 65536]

sQ, sK, sV, sSK, sSSM, sD, sBX, sW1 = 16, 18, 20, 22, 24, 26, 28, 30
sB1, sW2, sB2, sOUT, sDBG, sWSP = 32, 34, 36, 38, 40, 42
WS = 's[44:47]'
sC, sR, sW, sTAG, sABORT = 's48', 's49', 's50', 's51', 's52'
sLAYER, sT1, sJ = 's64', 's65', 's66'
sXCC, sFAST = 's101', 's3'
SA, SB, SC_, SD_ = 4, 8, 12, 72
def srd(n): return f's[{n}:{n+3}]'
W1B = 128
vL16, vTAG = 2, 3
def W1reg(k): return f'v[{W1B+4*k}:{W1B+4*k+3}]'
def W2reg(nt, i):
    b = (nt*28 + i)*4
    return f'a[{b}:{b+3}]'
def f2u(x): return '0x%08x' % struct.unpack('<I', struct.pack('<f', x))[0]
C1 = 2*0.7978845608028654*1.4426950408889634
C2 = C1*0.044715

class VQ:
    def __init__(self, a): self.a = a; self.ops = []
    def issue(self, tag): self.ops.append(tag)
    def wait(self, tag):
        idx = max(i for i, t in enumerate(self.ops) if t == tag) if tag in self.ops else None
        if idx is None: return
        n = len(self.ops) - 1 - idx
        assert n <= 63, n
        self.a(f's_waitcnt vmcnt({n})')
        self.ops = self.ops[idx+1:]
    def drain(self):
        self.a('s_waitcnt vmcnt(0)'); self.ops = []
    def reset(self): self.ops = []

class Gen:
    def __init__(self, stop='end', stamps=False, opts=None):
        self.a = Asm(); self.vq = VQ(self.a)
        self.stop = stop; self.stamps = stamps
        self.nstamp = 0; self.stamp_names = []
        self.sc = ' sc1'; self.fsc = ' sc1'; self.fast = False; self.vinv = 4
        self.o = opts or {}

    def mk_srd(self, n, ptr, size, add=None):
        a = self.a
        if add is None:
            a(f's_mov_b32 s{n}, s{ptr}')
            a(f's_and_b32 s{n+1}, s{ptr+1}, 0xffff')
        else:
            a(f's_add_u32 s{n}, s{ptr}, {add}')
            a(f's_addc_u32 s{n+1}, s{ptr+1}, 0')
            a(f's_and_b32 s{n+1}, s{n+1}, 0xffff')
        a(f's_mov_b32 s{n+2}, {size}')
        a(f's_mov_b32 s{n+3}, 0x00020000')

    def dstamp(self, phase, name):
        if self.o.get('detail') == phase and getattr(self, 'cur_layer', 0) == self.o.get('dlayer', 1): self.stamp(name, False, force=True)
    def stamp(self, name='', inloop=False, force=False):
        if not self.stamps: return
        if self.o.get('detail') and not force and name not in ('start', 'end'): return
        inloop = False
        i = self.nstamp; self.nstamp += 1
        assert self.nstamp <= 24, name
        self.stamp_names.append(name)
        a = self.a
        a(f's_waitcnt lgkmcnt(0)')
        a(f's_memtime s[62:63]' if self.o.get('cyc') else f's_memrealtime s[62:63]')
        a(f's_waitcnt lgkmcnt(0)')
        if inloop:
            a('s_cmp_eq_u32 s64, 0')
            a(f's_cselect_b32 s{76+i}, s62, s{76+i}')
            a(f's_cselect_b32 s{77+i}, s{77+i}, s62')
        else:
            a(f's_mov_b32 s{76+i}, s62')

    def vload(self, dst, voff, sr, soff, imm=0, mods='', tag='ld', w='x4'):
        o = f' offset:{imm}' if imm else ''
        op = {'x4': 'buffer_load_dwordx4', 'x2': 'buffer_load_dwordx2', 'x1': 'buffer_load_dword'}[w]
        self.a(f'{op} {dst}, {voff}, {sr}, {soff} offen{o}{mods}')
        self.vq.issue(tag)
    def vstore(self, src, voff, sr, soff, imm=0, mods='', tag='st'):
        o = f' offset:{imm}' if imm else ''
        self.a(f'buffer_store_dwordx4 {src}, {voff}, {sr}, {soff} offen{o}{mods}')
        self.vq.issue(tag)

    def poll(self, vaddr, vtmp, nlanes=64, x4=False):
        a = self.a
        L = a.newlabel('poll'); D = a.newlabel('polld')
        a(f's_mov_b32 s53, 0')
        if nlanes < 64:
            a(f's_mov_b64 s[56:57], exec')
            a(f's_mov_b64 exec, {hex((1 << nlanes) - 1)}')
        a.label(L)
        if x4:
            a(f'buffer_load_dwordx4 v[{vtmp}:{vtmp+3}], v{vaddr}, {WS}, 0 offen sc1')
            a(f's_waitcnt vmcnt(0)')
            a(f'v_xor_b32 v{vtmp}, {sTAG}, v{vtmp}')
            a(f'v_xor_b32 v{vtmp+1}, {sTAG}, v{vtmp+1}')
            a(f'v_xor_b32 v{vtmp+2}, {sTAG}, v{vtmp+2}')
            a(f'v_xor_b32 v{vtmp+3}, {sTAG}, v{vtmp+3}')
            a(f'v_or_b32 v{vtmp}, v{vtmp}, v{vtmp+1}')
            a(f'v_or3_b32 v{vtmp}, v{vtmp}, v{vtmp+2}, v{vtmp+3}')
            a(f'v_cmp_ne_u32 vcc, 0, v{vtmp}')
        else:
            a(f'buffer_load_dword v{vtmp}, v{vaddr}, {WS}, 0 offen sc1')
            a(f's_waitcnt vmcnt(0)')
            a(f'v_cmp_ne_u32 vcc, {sTAG}, v{vtmp}')
        a(f's_cbranch_vccz {D}')
        a(f's_add_u32 s53, s53, 1')
        a(f's_cmp_lg_u32 {sABORT}, 0')
        a(f's_cbranch_scc1 {D}')
        a(f's_cmp_lt_u32 s53, 0x8000')
        a(f's_cbranch_scc1 {L}')
        a(f's_mov_b32 {sABORT}, 1')
        a.label(D)
        if nlanes < 64:
            a(f's_mov_b64 exec, s[56:57]')
        self.vq.reset()

    def poll_prep(self, vaddr, vt):
        a = self.a
        L = a.newlabel('poll'); D = a.newlabel('polld')
        a(f's_mov_b32 s53, 0')
        a.label(L)
        a(f'buffer_load_dwordx4 v[{vt}:{vt+3}], v{vaddr}, {WS}, 0 offen sc1')
        a(f's_waitcnt vmcnt(0)')
        for i in range(4): a(f'v_subrev_u32 v{vt+i}, {sTAG}, v{vt+i}')
        a(f'v_or_b32 v{vt+4}, v{vt}, v{vt+1}')
        a(f'v_or3_b32 v{vt+4}, v{vt+4}, v{vt+2}, v{vt+3}')
        a(f'v_cmp_lt_u32 vcc, 15, v{vt+4}')
        a(f's_cbranch_vccz {D}')
        a(f's_add_u32 s53, s53, 1')
        a(f's_cmp_lg_u32 {sABORT}, 0')
        a(f's_cbranch_scc1 {D}')
        a(f's_cmp_lt_u32 s53, 0x8000')
        a(f's_cbranch_scc1 {L}')
        a(f's_mov_b32 {sABORT}, 1')
        a.label(D)
        self.vq.reset()

    def dyn_role(self, vt):
        a = self.a
        lo, hi, t, u = vt+5, vt+6, vt+7, vt+8
        a(f'v_mov_b32 v{lo}, 0'); a(f'v_mov_b32 v{hi}, 0')
        for i in range(4):
            a(f'v_and_b32 v{t}, 3, v{vt+i}')
            a(f'v_lshlrev_b32 v{t}, 3, v{t}')
            a(f'v_lshlrev_b32 v{t}, v{t}, 1') if False else a(f'v_lshlrev_b32 v{t}, v{t}, v{vt+9}')
            a(f'v_lshrrev_b32 v{u}, 2, v{vt+i}')
            a(f'v_cmp_eq_u32 vcc, 0, v{u}')
            a.nop(2)
            a(f'v_cndmask_b32 v{vt+10}, 0, v{t}, vcc')
            a(f'v_cmp_eq_u32 vcc, 1, v{u}')
            a(f'v_add_u32 v{lo}, v{lo}, v{vt+10}')
            a.nop(1)
            a(f'v_cndmask_b32 v{vt+10}, 0, v{t}, vcc')
            a(f'v_add_u32 v{hi}, v{hi}, v{vt+10}')
        steps = ['quad_perm:[1,0,3,2] row_mask:0xf bank_mask:0xf', 'quad_perm:[2,3,0,1] row_mask:0xf bank_mask:0xf',
                 'row_half_mirror row_mask:0xf bank_mask:0xf', 'row_mirror row_mask:0xf bank_mask:0xf',
                 'row_bcast:15 row_mask:0xa bank_mask:0xf', 'row_bcast:31 row_mask:0xc bank_mask:0xf']
        a.nop(2)
        for st in steps:
            a(f'v_add_u32_dpp v{lo}, v{lo}, v{lo} {st}')
            a(f'v_add_u32_dpp v{hi}, v{hi}, v{hi} {st}')
            a.nop(1)
        a(f'v_readlane_b32 s56, v{lo}, 63')
        a(f'v_readlane_b32 s57, v{hi}, 63')
        a(f'v_lshlrev_b32 v{t}, 2, v1')
        a('s_mov_b32 s58, 0')
        for i in range(4):
            a(f'v_cmp_eq_u32 vcc, {sXCC}, v{vt+i}')
            a(f'v_add_u32 v{u}, {i}, v{t}')
            a(f'v_cmp_gt_u32 s[54:55], s2, v{u}')
            a.nop(1)
            a('s_and_b64 s[54:55], s[54:55], vcc')
            a('s_bcnt1_i32_b64 s55, s[54:55]')
            a('s_add_u32 s58, s58, s55')
        a('s_cmp_eq_u32 s56, 0x20202020')
        a(f's_cselect_b32 {sFAST}, 1, 0')
        a('s_cmp_eq_u32 s57, 0x20202020')
        a(f's_cselect_b32 {sFAST}, {sFAST}, 0')
        a(f's_cmp_eq_u32 {sABORT}, 0')
        a(f's_cselect_b32 {sFAST}, {sFAST}, 0')
        if self.o.get('force_slow'): a(f's_mov_b32 {sFAST}, 0')
        a(f's_cmp_eq_u32 {sFAST}, 1')
        a(f's_cselect_b32 {sC}, {sXCC}, {sC}')
        a(f's_cselect_b32 {sR}, s58, {sR}')

    def check_xc(self, vt, vaddr):
        a = self.a
        self.vq.wait('fw')
        L = a.newlabel('fw'); D = a.newlabel('fwd')
        a('s_mov_b32 s53, 0')
        a.label(L)
        for i in range(4): a(f'v_subrev_u32 v{vt+i}, {sTAG}, v{vt+i}')
        a(f'v_or_b32 v{vt+5}, v{vt}, v{vt+1}')
        a(f'v_or3_b32 v{vt+5}, v{vt+5}, v{vt+2}, v{vt+3}')
        a(f'v_cmp_lt_u32 vcc, 15, v{vt+5}')
        a(f's_cbranch_vccz {D}')
        a('s_add_u32 s53, s53, 1')
        a(f's_cmp_lg_u32 {sABORT}, 0')
        a(f's_cbranch_scc1 {D}')
        a('s_cmp_lt_u32 s53, 0x8000')
        a(f's_cbranch_scc0 {D}_ab')
        a(f'buffer_load_dwordx4 v[{vt}:{vt+3}], v{vaddr}, {WS}, 0 offen sc1')
        a('s_waitcnt vmcnt(0)')
        a(f's_branch {L}')
        a.label(D + '_ab')
        a(f's_mov_b32 {sABORT}, 1')
        a.label(D)
        a(f'v_mov_b32 v{vt+9}, 1')
        self.dyn_role(vt)
        self.weight_state_init()

    def check_fw(self, vt, vaddr):
        a = self.a
        self.vq.wait('fw2')
        L = a.newlabel('fw'); D = a.newlabel('fwd')
        a('s_mov_b32 s53, 0')
        a.label(L)
        for i in range(4): a(f'v_xor_b32 v{vt+i}, {sTAG}, v{vt+i}')
        a(f'v_or_b32 v{vt}, v{vt}, v{vt+1}')
        a(f'v_or3_b32 v{vt}, v{vt}, v{vt+2}, v{vt+3}')
        a(f'v_cmp_ne_u32 vcc, 0, v{vt}')
        a(f's_cbranch_vccz {D}')
        a('s_add_u32 s53, s53, 1')
        a(f's_cmp_lg_u32 {sABORT}, 0')
        a(f's_cbranch_scc1 {D}')
        a('s_cmp_lt_u32 s53, 0x8000')
        a(f's_cbranch_scc0 {D}_ab')
        a(f'buffer_load_dwordx4 v[{vt}:{vt+3}], v{vaddr}, {WS}, 0 offen sc1')
        a('s_waitcnt vmcnt(0)')
        a(f's_branch {L}')
        a.label(D + '_ab')
        a(f's_mov_b32 {sABORT}, 1')
        a.label(D)

    def flag(self, soff, sc=None):
        sc = self.fsc if sc is None else sc
        self.a(f'buffer_store_dword v{vTAG}, off, {WS}, {soff}{sc}')
        self.vq.issue('flag')

    def reduce_multi(self, regs, sdst):
        a = self.a
        steps = ['quad_perm:[1,0,3,2] row_mask:0xf bank_mask:0xf', 'quad_perm:[2,3,0,1] row_mask:0xf bank_mask:0xf',
                 'row_half_mirror row_mask:0xf bank_mask:0xf', 'row_mirror row_mask:0xf bank_mask:0xf',
                 'row_bcast:15 row_mask:0xa bank_mask:0xf', 'row_bcast:31 row_mask:0xc bank_mask:0xf']
        pad = max(0, 3 - len(regs))
        a.nop(max(0, 2 - (len(regs) - 1)) if len(regs) < 3 else 0)
        for s in steps:
            for r in regs:
                a(f'v_add_f32_dpp v{r}, v{r}, v{r} {s}')
            if pad: a.nop(pad)
        if len(regs) < 2: a.nop(1)
        for r, s in zip(regs, sdst):
            a(f'v_readlane_b32 s{s}, v{r}, 63')
        a.nop(2)

    def ln_multi(self, rows):
        a = self.a
        def pr(b): return f'v[{b}:{b+1}]'
        for (x, z, t) in rows:
            a(f'v_pk_add_f32 {pr(t)}, {pr(x)}, {pr(x+2)}')
            a(f'v_pk_mul_f32 {pr(t+2)}, {pr(x)}, {pr(x)}')
        for (x, z, t) in rows:
            a(f'v_pk_add_f32 {pr(t+4)}, {pr(x+4)}, {pr(x+6)}')
            a(f'v_pk_fma_f32 {pr(t+2)}, {pr(x+2)}, {pr(x+2)}, {pr(t+2)}')
        for (x, z, t) in rows:
            a(f'v_pk_add_f32 {pr(t)}, {pr(t)}, {pr(t+4)}')
            a(f'v_pk_fma_f32 {pr(t+2)}, {pr(x+4)}, {pr(x+4)}, {pr(t+2)}')
        for (x, z, t) in rows:
            a(f'v_add_f32 v{t}, v{t}, v{t+1}')
            a(f'v_pk_fma_f32 {pr(t+2)}, {pr(x+6)}, {pr(x+6)}, {pr(t+2)}')
        for (x, z, t) in rows:
            a(f'v_add_f32 v{t+2}, v{t+2}, v{t+3}')
        regs = []; sd = []
        for i, (x, z, t) in enumerate(rows):
            regs += [t, t+2]; sd += [58 - 2*i, 59 - 2*i]
        self.reduce_multi(regs, sd)
        for i, (x, z, t) in enumerate(rows):
            s1, s2 = sd[2*i], sd[2*i+1]
            a(f'v_mul_f32 v{t+4}, s{s1}, v{self.vinv}')
            a(f'v_mul_f32 v{t+2}, s{s2}, v{self.vinv}')
        for (x, z, t) in rows:
            a(f'v_fma_f32 v{t+2}, -v{t+4}, v{t+4}, v{t+2}')
        for (x, z, t) in rows:
            a(f'v_max_f32 v{t+2}, 0, v{t+2}')
        for (x, z, t) in rows:
            a(f'v_add_f32 v{t+2}, 0x3727c5ac, v{t+2}')
        for (x, z, t) in rows:
            a(f'v_rsq_f32 v{t+2}, v{t+2}')
        if len(rows) < 2: a.nop(1)
        for (x, z, t) in rows:
            a(f'v_mul_f32 v{t+4}, v{t+4}, v{t+2}')
        for (x, z, t) in rows:
            for i in range(4):
                a(f'v_pk_fma_f32 {pr(z+2*i)}, {pr(x+2*i)}, {pr(t+2)}, {pr(t+4)} op_sel_hi:[1,0,0] neg_lo:[0,0,1] neg_hi:[0,0,1]')

    def unpack8(self, src, dst):
        a = self.a
        for i in range(4):
            a(f'v_lshlrev_b32 v{dst+2*i}, 16, v{src+i}')
            a(f'v_and_b32 v{dst+2*i+1}, 0xffff0000, v{src+i}')
    def pack8(self, src, dst):
        a = self.a
        for i in range(4):
            a(f'v_cvt_pk_bf16_f32 v{dst+i}, v{src+2*i}, v{src+2*i+1}')

    def prologue(self):
        a = self.a
        a('s_cmp_ge_u32 s2, 256')
        a('s_cbranch_scc1 L_end')
        a('s_load_dwordx16 s[16:31], s[0:1], 0')
        a('s_load_dwordx8 s[32:39], s[0:1], 64')
        a('s_load_dwordx4 s[40:43], s[0:1], 96')
        a('s_getpc_b64 s[68:69]')
        a(f's_and_b32 {sC}, s2, 7')
        a(f's_lshr_b32 {sR}, s2, 3')
        a(f's_mov_b32 {sABORT}, 0')
        a(f's_getreg_b32 {sXCC}, hwreg(HW_REG_XCC_ID)')
        a(f's_min_u32 {sXCC}, {sXCC}, 8')
        a('v_lshrrev_b32 v4, 6, v0')
        a('v_and_b32 v1, 63, v0')
        a(f'v_readfirstlane_b32 {sW}, v4')
        a(f'v_lshlrev_b32 v{vL16}, 4, v1')
        a('s_waitcnt lgkmcnt(0)')
        self.mk_srd(44, sWSP, WS_SIZE)
        self.stamp('start')
        if self.stamps:
            a('s_memtime s[62:63]'); a('s_waitcnt lgkmcnt(0)'); a('s_mov_b32 s100, s62')
        a(f'buffer_load_dword v{vTAG}, off, {WS}, 0 sc1')
        self.vq.issue('epoch')

    def code_prefetch(self):
        a = self.a
        a('s_and_b32 s68, s68, 0xffffff00')
        a('s_and_b32 s69, s69, 0xffff')
        a(f's_mov_b32 s{SD_}, s68'); a(f's_mov_b32 s{SD_+1}, s69')
        a(f's_mov_b32 s{SD_+2}, CODE_BYTES')
        a(f's_mov_b32 s{SD_+3}, 0x00020000')
        a('v_lshlrev_b32 v87, 7, v0')
        a(f'buffer_load_dword v254, v87, {srd(SD_)}, 0 offen'); self.vq.issue('pf')
        a('v_add_u32 v87, 0x8000, v87')
        a(f'buffer_load_dword v254, v87, {srd(SD_)}, 0 offen'); self.vq.issue('pf')

    def pretouch(self):
        a = self.a
        a(f's_min_u32 s58, {sXCC}, 7')
        a('s_lshl_b32 s53, s58, 18')
        a(f's_lshl_b32 s54, {sR}, 13')
        a('s_add_u32 s53, s53, s54')
        a('v_lshlrev_b32 v88, 7, v1')
        Ls = a.newlabel('pt')
        a(f's_cmp_lg_u32 {sW}, 3')
        a(f's_cbranch_scc1 {Ls}'); a.comment('COND_BEGIN')
        self.mk_srd(SD_, sQ, 2097152)
        a(f'buffer_load_dword v255, v88, {srd(SD_)}, s53 offen')
        self.mk_srd(SD_, sB1, 3584)
        a(f'buffer_load_dword v255, v88, {srd(SD_)}, 0 offen')
        self.mk_srd(SD_, sB2, 1024)
        a(f'buffer_load_dword v255, v88, {srd(SD_)}, 0 offen')
        self.mk_srd(SD_, sOUT, 2097152)
        a(f'buffer_load_dword v255, off, {srd(SD_)}, s53')
        a('v_lshlrev_b32 v87, 21, v1')
        a('v_min_u32 v87, 0x1c00000, v87')
        a(f'buffer_load_dword v255, v87, {WS}, 0 offen')
        a.label(Ls); a.comment('COND_END')
        if self.o.get('ytouch', 0):
            Ls = a.newlabel('pt2')
            a(f's_cmp_lg_u32 {sW}, 2')
            a(f's_cbranch_scc1 {Ls}'); a.comment('COND_BEGIN')
            a(f's_add_u32 s53, s53, {Y0}')
            a(f'buffer_load_dword v255, v88, {WS}, s53 offen')
            a.label(Ls); a.comment('COND_END')
            Ls = a.newlabel('pt3')
            a(f's_cmp_lg_u32 {sW}, 1')
            a(f's_cbranch_scc1 {Ls}'); a.comment('COND_BEGIN')
            a(f's_lshr_b32 s53, {sR}, 3')
            a('s_lshl_b32 s53, s53, 5')
            a('v_and_b32 v87, 31, v1')
            a('v_add_u32 v87, s53, v87')
            a('v_lshrrev_b32 v88, 2, v87')
            a('v_lshlrev_b32 v88, 3, v88')
            a('v_and_b32 v87, 3, v87')
            a('v_add_u32 v87, v87, v88')
            a('v_lshrrev_b32 v88, 5, v1')
            a('v_lshl_add_u32 v87, v88, 2, v87')
            a('s_lshl_b32 s53, s58, 8')
            a('v_add_u32 v87, s53, v87')
            a('v_lshlrev_b32 v87, 10, v87')
            a(f's_and_b32 s53, {sR}, 7')
            a('s_lshl_b32 s53, s53, 7')
            a(f's_add_u32 s53, s53, {X2}')
            a(f'buffer_load_dword v255, v87, {WS}, s53 offen')
            a.label(Ls); a.comment('COND_END')

    def pretouch_late(self):
        a = self.a
        a(f's_lshl_b32 s53, {sC}, 18')
        a(f's_lshl_b32 s54, {sR}, 13')
        a('s_add_u32 s53, s53, s54')
        a('v_lshlrev_b32 v8, 7, v1')
        Ls = a.newlabel('pt')
        a(f's_cmp_lg_u32 {sW}, 3')
        a(f's_cbranch_scc1 {Ls}'); a.comment('COND_BEGIN')
        self.mk_srd(SD_, sQ, 2097152)
        a(f'buffer_load_dword v255, v8, {srd(SD_)}, s53 offen')
        self.mk_srd(SD_, sB1, 3584)
        a(f'buffer_load_dword v255, v8, {srd(SD_)}, 0 offen')
        self.mk_srd(SD_, sB2, 1024)
        a(f'buffer_load_dword v255, v8, {srd(SD_)}, 0 offen')
        self.mk_srd(SD_, sOUT, 2097152)
        a(f'buffer_load_dword v255, off, {srd(SD_)}, s53')
        a('v_lshlrev_b32 v9, 21, v1')
        a('v_min_u32 v9, 0x1c00000, v9')
        a(f'buffer_load_dword v255, v9, {WS}, 0 offen')
        a.label(Ls); a.comment('COND_END')
        if self.o.get('ytouch', 0):
            Ls = a.newlabel('pt2')
            a(f's_cmp_lg_u32 {sW}, 2')
            a(f's_cbranch_scc1 {Ls}'); a.comment('COND_BEGIN')
            a(f's_add_u32 s53, s53, {Y0}')
            a(f'buffer_load_dword v255, v8, {WS}, s53 offen')
            a.label(Ls); a.comment('COND_END')
            Ls = a.newlabel('pt3')
            a(f's_cmp_lg_u32 {sW}, 1')
            a(f's_cbranch_scc1 {Ls}'); a.comment('COND_BEGIN')
            a(f's_lshr_b32 s53, {sR}, 3')
            a('s_lshl_b32 s53, s53, 5')
            a('v_and_b32 v9, 31, v1')
            a('v_add_u32 v9, s53, v9')
            a('v_lshrrev_b32 v10, 2, v9')
            a('v_lshlrev_b32 v10, 3, v10')
            a('v_and_b32 v9, 3, v9')
            a('v_add_u32 v9, v9, v10')
            a('v_lshrrev_b32 v10, 5, v1')
            a('v_lshl_add_u32 v9, v10, 2, v9')
            a(f's_lshl_b32 s53, {sC}, 8')
            a('v_add_u32 v9, s53, v9')
            a('v_lshlrev_b32 v9, 10, v9')
            a(f's_and_b32 s53, {sR}, 7')
            a('s_lshl_b32 s53, s53, 7')
            a(f's_add_u32 s53, s53, {X2}')
            a(f'buffer_load_dword v255, v9, {WS}, s53 offen')
            a.label(Ls); a.comment('COND_END')

    def prep(self):
        a = self.a; vq = self.vq
        a('v_lshrrev_b32 v8, 3, v0')
        a('v_and_b32 v9, 7, v0')
        a('v_lshlrev_b32 v8, 15, v8')
        a('v_lshl_add_u32 v8, v9, 4, v8')
        a(f's_lshl_b32 s53, {sC}, 5')
        a(f's_add_u32 s53, s53, {sR}')
        a('s_lshl_b32 s53, s53, 7')
        a(f's_add_u32 s53, s53, {GB}')
        for i in range(4): a(f'v_mov_b32 v{160+i}, -1')
        self.clear_g = True
        a('v_lshrrev_b32 v4, 5, v0')
        a('v_and_b32 v5, 31, v0')
        a(f's_lshl_b32 s53, {sR}, 16')
        a(f's_lshl_b32 s54, {sC}, 7')
        a('s_add_u32 s53, s53, s54')
        a('v_lshlrev_b32 v6, 13, v4')
        a('v_lshl_add_u32 v6, v5, 2, v6')
        a('v_add_u32 v6, s53, v6')
        a('v_subrev_u32 v7, 3072, v6')
        a('v_add_u32 v8, 4096, v6')
        self.mk_srd(SA, sK, 2097152)
        self.mk_srd(SB, sV, 2097152)
        self.mk_srd(SC_, sSK, 4096)
        K = 10
        for i in range(3): self.vload(f'v{K+i}', 'v7', srd(SA), 0, 1024*i, w='x1', tag='kv')
        for i in range(4): self.vload(f'v{K+3+i}', 'v6', srd(SA), 0, 1024*i, w='x1', tag='kv')
        for i in range(4): self.vload(f'v{K+7+i}', 'v8', srd(SA), 0, 1024*i, w='x1', tag='kv')
        V = 21
        for i in range(4): self.vload(f'v{V+i}', 'v6', srd(SB), 0, 1024*i, w='x1', tag='kv')
        for i in range(4): self.vload(f'v{V+4+i}', 'v8', srd(SB), 0, 1024*i, w='x1', tag='kv')
        a(f's_lshl_b32 s53, {sC}, 9')
        a('v_lshlrev_b32 v9, 4, v5')
        a('v_add_u32 v9, s53, v9')
        self.vload('v[30:33]', 'v9', srd(SC_), 0, tag='kv')
        if self.o.get('kvbar', 0): a('s_barrier')
        if self.o.get('prefetch', True): self.code_prefetch()
        a(f's_lshl_b32 s53, {sC}, 5')
        a(f's_add_u32 s53, s53, {sR}')
        a('s_lshl_b32 s53, s53, 1')
        a(f's_lshr_b32 s54, {sW}, 1')
        a('s_add_u32 s53, s53, s54')
        a('s_lshl_b32 s53, s53, 12')
        self.mk_srd(SC_, sSSM, 4096, add='s53')
        a('v_and_b32 v54, 127, v0')
        a('v_lshlrev_b32 v51, 4, v54')
        a('v_subrev_u32 v52, 64, v51')
        a('v_subrev_u32 v53, 48, v51')
        HR = 56
        for rho in range(3):
            if rho:
                a(f'v_add_u32 v52, 2048, v52')
                a(f'v_add_u32 v53, 2048, v53')
            self.vload(f'v[{HR+8*rho}:{HR+8*rho+3}]', 'v52', srd(SC_), 0, tag='hr')
            self.vload(f'v[{HR+8*rho+4}:{HR+8*rho+7}]', 'v53', srd(SC_), 0, tag='hr')

        a(f's_lshl_b32 s53, {sC}, 5')
        a(f's_add_u32 s53, s53, {sR}')
        a('s_lshl_b32 s53, s53, 7')
        a(f's_add_u32 s53, s53, {GB}')
        a('v_lshrrev_b32 v85, 3, v0')
        a('v_and_b32 v86, 7, v0')
        a('v_lshlrev_b32 v85, 15, v85')
        a('v_lshl_add_u32 v85, v86, 4, v85')
        self.vstore('v[160:163]', 'v85', WS, 's53', 0, ' sc1', tag='clr')
        a(f's_add_u32 s53, s53, {32*32768}')
        self.vstore('v[160:163]', 'v85', WS, 's53', 0, ' sc1', tag='clr')
        a(f's_lshl_b32 s53, {sC}, 5')
        a(f's_add_u32 s53, s53, {sR}')
        a('s_lshl_b32 s53, s53, 2')
        a(f's_add_u32 s54, s{sD}, s53')
        a(f's_addc_u32 s55, s{sD+1}, 0')
        a('s_load_dword s60, s[54:55], 0')
        if self.o.get('pretouch', 2) == 2: self.pretouch()

        a('v_mov_b32 v80, 0'); a('v_mov_b32 v81, 0'); a('v_mov_b32 v82, 0'); a('v_mov_b32 v83, 0')
        a('v_lshlrev_b32 v84, 4, v0')
        a('v_cmp_gt_u32 vcc, 90, v0')
        a('s_and_saveexec_b64 s[56:57], vcc')
        a(f'ds_write_b128 v84, v[80:83] offset:{L_XB + 64*96}')
        a(f'ds_write_b128 v84, v[80:83] offset:{L_XB + XBS + 64*96}')
        a('s_mov_b64 exec, s[56:57]')
        vq.wait('kv')
        self.stamp('kv loaded')
        a(f'v_add_u32 v{vTAG}, 16, v{vTAG}')
        Wp = 90
        a(f'v_lshlrev_b32 v{Wp+0}, 16, v30'); a(f'v_lshlrev_b32 v{Wp+1}, 16, v32')
        a(f'v_readfirstlane_b32 {sTAG}, v{vTAG}')
        a(f'v_and_b32 v{Wp+2}, 0xffff0000, v30'); a(f'v_and_b32 v{Wp+3}, 0xffff0000, v32')
        a(f'v_lshlrev_b32 v{Wp+4}, 16, v31'); a(f'v_lshlrev_b32 v{Wp+5}, 16, v33')
        a(f'v_and_b32 v{Wp+6}, 0xffff0000, v31'); a(f'v_and_b32 v{Wp+7}, 0xffff0000, v33')
        Lx = a.newlabel('noxc')
        a(f's_cmp_lg_u32 {sW}, 0')
        a(f's_cbranch_scc1 {Lx}'); a.comment('COND_BEGIN')
        a('s_lshl_b32 s53, s2, 2')
        a(f's_add_u32 s53, s53, {F_XC}')
        a(f'v_add_u32 v85, {sXCC}, v{vTAG}')
        a(f'buffer_store_dword v85, off, {WS}, s53 sc1')
        a.label(Lx); a.comment('COND_END')
        KU = 100
        for i in range(11):
            a(f'v_lshlrev_b32 v{KU+2*i}, 16, v{K+i}')
            a(f'v_and_b32 v{KU+2*i+1}, 0xffff0000, v{K+i}')
        VU = 122
        for i in range(8):
            a(f'v_lshlrev_b32 v{VU+2*i}, 16, v{V+i}')
            a(f'v_and_b32 v{VU+2*i+1}, 0xffff0000, v{V+i}')
        AC = 140
        def pr(b): return f'v[{b}:{b+1}]'
        for t, wq in enumerate([6, 4, 2, 0]):
            for i in range(8):
                if t == 0: a(f'v_pk_mul_f32 {pr(AC+2*i)}, {pr(KU+2*(i+0))}, {pr(Wp+6)}')
                else: a(f'v_pk_fma_f32 {pr(AC+2*i)}, {pr(KU+2*(i+t))}, {pr(Wp+wq)}, {pr(AC+2*i)}')
        for i in range(8):
            a(f'v_pk_mul_f32 {pr(AC+2*i)}, {pr(AC+2*i)}, {pr(VU+2*i)}')
        for j in range(4):
            hi, lo = 7 - 2*j - 1, 7 - 2*j
            a(f'v_cvt_pk_bf16_f32 v{160+j}, v{AC+2*lo}, v{AC+2*hi}')
            a(f'v_cvt_pk_bf16_f32 v{164+j}, v{AC+2*lo+1}, v{AC+2*hi+1}')
        a('v_sub_u32 v85, 7, v4')
        a('v_and_b32 v9, 7, v5')
        a('v_xor_b32 v85, v85, v9')
        a('v_lshlrev_b32 v85, 4, v85')
        a('v_lshl_add_u32 v85, v5, 8, v85')
        a(f'ds_write_b128 v85, v[160:163] offset:{L_KVT}')
        a(f'ds_write_b128 v85, v[164:167] offset:{L_KVT+128}')
        a('v_lshrrev_b32 v85, 3, v0')
        a('v_and_b32 v9, 7, v0')
        a('v_bfe_u32 v29, v85, 1, 3')
        a('v_xor_b32 v29, v29, v9')
        a('v_lshlrev_b32 v29, 4, v29')
        a('v_lshl_add_u32 v29, v85, 7, v29')
        a(f's_lshl_b32 s53, {sC}, 18')
        a(f's_lshl_b32 s54, {sR}, 7')
        a('s_sub_u32 s53, s53, s54')
        a(f's_add_u32 s53, s53, {XR + 3968}')
        a('v_lshlrev_b32 v50, 12, v85')
        a('v_lshl_add_u32 v50, v9, 4, v50')
        a('v_add_u32 v51, 0x20000, v50')
        a('s_waitcnt lgkmcnt(0)')
        a('s_barrier')
        a(f'ds_read_b128 v[160:163], v29 offset:{L_KVT}')
        a(f'ds_read_b128 v[164:167], v29 offset:{L_KVT+4096}')
        a('s_waitcnt lgkmcnt(1)')
        self.vstore('v[160:163]', 'v50', WS, 's53', 0, ' sc1', tag='xr')
        a('s_waitcnt lgkmcnt(0)')
        self.vstore('v[164:167]', 'v51', WS, 's53', 0, ' sc1', tag='xr')
        self.stamp('xr stored')
        self.mk_srd(SA, sW1, 512*1792*2)
        self.mk_srd(SB, sW2, 512*1792*2)
        a(f's_lshl_b32 s53, {sR}, 4')
        a(f's_lshl_b32 s54, {sW}, 2')
        a('s_add_u32 s53, s53, s54')
        a('s_mul_i32 s53, s53, 3584')
        a(f's_mul_i32 s54, {sC}, 448')
        a('s_add_u32 s53, s53, s54')
        a('v_lshrrev_b32 v34, 4, v1')
        a('v_and_b32 v9, 15, v1')
        a('v_mul_u32_u24 v29, 3584, v34')
        a('v_lshl_add_u32 v29, v9, 4, v29')
        a('v_add_u32 v29, s53, v29')
        self.vload('v[34:37]', 'v29', srd(SA), 0, tag='wr')
        self.vload('v[38:41]', 'v29', srd(SA), 0, 256, tag='wr')
        a('s_lshr_b32 s53, s2, 1')
        a('s_lshl_b32 s53, s53, 14')
        a('s_and_b32 s54, s2, 1')
        a('s_lshl_b32 s54, s54, 9')
        a('s_add_u32 s53, s53, s54')
        a('v_lshrrev_b32 v42, 4, v0')
        a('v_lshlrev_b32 v50, 10, v42')
        a('v_lshl_add_u32 v50, v9, 4, v50')
        a('v_add_u32 v50, s53, v50')
        self.vload('v[42:45]', 'v50', srd(SB), 0, tag='wr')
        self.vload('v[46:49]', 'v50', srd(SB), 0, 256, tag='wr')
        vq.wait('xr')
        a('s_barrier')
        Lnf = a.newlabel('noflag')
        a(f's_cmp_lg_u32 {sW}, 0')
        a(f's_cbranch_scc1 {Lnf}'); a.comment('COND_BEGIN')
        a(f's_lshl_b32 s53, {sC}, 5')
        a(f's_add_u32 s53, s53, {sR}')
        a('s_lshl_b32 s53, s53, 2')
        a(f's_add_u32 s53, s53, {F_PREP}')
        a(f'buffer_store_dword v{vTAG}, off, {WS}, s53 sc1')
        a.label(Lnf); a.comment('COND_END')
        self.stamp('prep published')
        a('v_and_b32 v54, 127, v0')
        a('v_lshlrev_b32 v50, 4, v54')
        a(f's_lshr_b32 s53, {sW}, 1')
        a(f's_mul_i32 s53, s53, {8*CS}')
        a(f's_add_u32 s53, s53, {L_TOEP}')
        a('v_add_u32 v50, s53, v50')
        for rho in range(3):
            D = HR + 8*rho
            if rho == 2:
                a('v_cmp_gt_u32 vcc, 3, v54')
                a('s_and_saveexec_b64 s[56:57], vcc')
            O = 100
            for k in range(7): a(f'v_alignbit_b32 v{O+k}, v{D+k+1}, v{D+k}, 16')
            for k in range(1, 7): a(f'v_alignbit_b32 v{110+k-1}, v{D+k+1}, v{D+k}, 16')
            for k in range(1, 7): a(f'v_mov_b32 v{120+k-1}, v{D+k}')
            off = rho*2048
            srcs = [O+0, 120, 110, D+2, O+2, 122, 112, D+4]
            for sg in range(8):
                a(f'ds_write_b128 v50, v[{srcs[sg]}:{srcs[sg]+3}] offset:{sg*CS + off}')
            if rho < 2: a.nop(1)
            if rho == 2: a('s_mov_b64 exec, s[56:57]')
        self.stamp('toeplitz done')

    def w_transpose(self):
        a = self.a; vq = self.vq
        vq.wait('wr')
        a('v_lshrrev_b32 v85, 4, v0')
        a('v_and_b32 v9, 15, v0')
        a('v_mul_u32_u24 v29, 448, v85')
        a('v_lshl_add_u32 v29, v9, 4, v29')
        a(f'ds_write_b128 v29, v[34:37] offset:{L_W1R}')
        a('v_cmp_gt_u32 vcc, 12, v9')
        a('s_and_saveexec_b64 s[56:57], vcc')
        a(f'ds_write_b128 v29, v[38:41] offset:{L_W1R+256}')
        a('s_mov_b64 exec, s[56:57]')
        a('v_mul_u32_u24 v29, 576, v85')
        a('v_lshl_add_u32 v29, v9, 4, v29')
        a(f'ds_write_b128 v29, v[42:45] offset:{L_W2R}')
        a(f'ds_write_b128 v29, v[46:49] offset:{L_W2R+256}')
        a('v_lshrrev_b32 v85, 5, v1')
        a('v_bfe_u32 v9, v1, 2, 2')
        a('v_bfe_u32 v29, v1, 4, 1')
        a('v_and_b32 v86, 3, v1')
        a('v_lshlrev_b32 v86, 3, v86')
        a('v_lshl_add_u32 v86, v29, 5, v86')
        a('v_lshl_add_u32 v55, v85, 3, v9')
        a('v_mul_u32_u24 v55, 448, v55')
        a('v_add_u32 v55, v55, v86')
        a(f's_lshl_b32 s54, {sW}, 6')
        a('v_add_u32 v55, s54, v55')
        a('v_lshl_add_u32 v89, v85, 2, v9')
        a('v_mul_u32_u24 v89, 576, v89')
        a('v_add_u32 v89, v89, v86')
        a('v_add_u32 v89, s54, v89')
        a('s_waitcnt lgkmcnt(0)')
        a('s_barrier')
        a(f'ds_read_b64_tr_b16 v[168:169], v55 offset:{L_W1R}')
        a(f'ds_read_b64_tr_b16 v[170:171], v55 offset:{L_W1R + 4*448}')
        a(f'ds_read_b64_tr_b16 v[172:173], v55 offset:{L_W1R + 256}')
        a(f'ds_read_b64_tr_b16 v[174:175], v55 offset:{L_W1R + 4*448 + 256}')
        a(f'ds_read_b64_tr_b16 v[176:177], v89 offset:{L_W2R}')
        a(f'ds_read_b64_tr_b16 v[178:179], v89 offset:{L_W2R + 8*576}')
        a(f'ds_read_b64_tr_b16 v[180:181], v89 offset:{L_W2R + 256}')
        a(f'ds_read_b64_tr_b16 v[182:183], v89 offset:{L_W2R + 8*576 + 256}')
        a(f's_mul_i32 s53, {sC}, 7')
        a(f's_add_u32 s53, s53, {sW}')
        a(f's_mul_i32 s54, {sR}, 56')
        a('s_add_u32 s53, s53, s54')
        a('s_lshl_b32 s53, s53, 10')
        a(f's_add_u32 s53, s53, {W1F}')
        a(f's_add_u32 s55, s53, {4*1024}')
        a('s_lshl_b32 s57, s2, 12')
        a(f's_add_u32 s57, s57, {DUMMY2}')
        a(f's_cmp_eq_u32 {sW}, 3')
        a('s_cselect_b32 s55, s57, s55')
        a('s_waitcnt lgkmcnt(4)')
        self.vstore('v[168:171]', f'v{vL16}', WS, 's53', 0, ' sc1', tag='wf')
        self.vstore('v[172:175]', f'v{vL16}', WS, 's55', 0, ' sc1', tag='wf')
        a('s_lshr_b32 s54, s2, 1')
        a('s_mul_i32 s55, s54, 9363')
        a('s_lshr_b32 s55, s55, 18')
        a('s_mul_i32 s56, s55, 28')
        a('s_sub_u32 s54, s54, s56')
        a('s_lshl_b32 s54, s54, 2')
        a('s_add_u32 s54, s54, s55')
        a('s_lshl_b32 s54, s54, 4')
        a('s_and_b32 s53, s2, 1')
        a('s_lshl_b32 s53, s53, 3')
        a(f's_add_u32 s53, s53, {sW}')
        a('s_add_u32 s53, s53, s54')
        a('s_lshl_b32 s53, s53, 10')
        a(f's_add_u32 s53, s53, {W2F}')
        a('s_cmp_ge_u32 s2, 224')
        a('s_cselect_b32 s53, s57, s53')
        a('s_waitcnt lgkmcnt(0)')
        self.vstore('v[176:179]', f'v{vL16}', WS, 's53', 0, ' sc1', tag='wf')
        a(f's_add_u32 s54, s53, {4*1024}')
        a('s_cselect_b32 s53, s57, s54') if False else None
        a('s_cmp_ge_u32 s2, 224')
        a('s_cselect_b32 s53, s57, s54')
        self.vstore('v[180:183]', f'v{vL16}', WS, 's53', 0, ' sc1', tag='wf')

    def weight_state_init(self):
        a = self.a
        a(f's_cmp_ge_u32 {sR}, 14')
        a(f's_cselect_b32 {sT1}, 1, 0')
        a(f's_mul_i32 s53, {sT1}, 14')
        a(f's_sub_u32 {sJ}, {sR}, s53')
        a(f's_lshl_b32 s14, {sJ}, 2')
        a(f's_add_u32 s14, s14, {sW}')
        a('s_min_u32 s14, s14, 55')
        a('s_lshl_b32 s14, s14, 10')
        a(f's_add_u32 s14, s14, {W1F}')
        a(f's_and_b32 s15, {sR}, 7')
        a('s_lshl_b32 s15, s15, 1')
        a(f's_lshl_b32 s53, {sW}, 4')
        a('s_add_u32 s15, s15, s53')
        a('s_lshl_b32 s15, s15, 10')
        a(f's_add_u32 s15, s15, {W2F}')
        self.wlist = [('w1', k) for k in range(32)] + [('w2', nt, i) for i in range(28) for nt in range(2)]
    def weight_batch(self, n):
        a = self.a
        for _ in range(n):
            if not self.wlist: return
            it = self.wlist.pop(0)
            if it[0] == 'w1':
                k = it[1]
                a(f's_add_u32 s13, s14, {k*56*1024}')
                self.vload(W1reg(k), f'v{vL16}', WS, 's13', 0, ' sc1', tag='w')
            else:
                _, nt, i = it
                a(f's_add_u32 s13, s15, {i*64*1024}')
                self.vload(W2reg(nt, i), f'v{vL16}', WS, 's13', nt*1024, ' sc1', tag='w')

    def conv(self):
        a = self.a; vq = self.vq; o = self.o
        a(f's_lshl_b32 s53, {sC}, 7')
        a(f's_add_u32 s53, s53, {F_PREP}')
        a('v_and_b32 v5, 31, v1')
        a('v_lshlrev_b32 v5, 2, v5')
        a('v_add_u32 v5, s53, v5')
        self.poll(5, 8)
        self.stamp('prep flags seen')
        a(f's_lshl_b32 s53, {sC}, 5')
        a(f's_add_u32 s53, s53, {sR}')
        a('s_lshl_b32 s61, s53, 7')
        a('s_lshl_b32 s53, s53, 13')
        a(f's_add_u32 s53, s53, {XR}')
        a('v_lshlrev_b32 v5, 4, v0')
        self.vload('v[184:187]', 'v5', WS, 's53', 0, ' sc1', tag='x0')
        a('s_add_u32 s53, s53, 4096')
        self.vload('v[188:191]', 'v5', WS, 's53', 0, ' sc1', tag='x1')
        a(f'v_add_u32 v132, {F_XC}, v{vL16}')
        a(f'buffer_load_dwordx4 v[128:131], v132, {WS}, 0 offen sc1'); vq.issue('fw')
        self.w_transpose()
        self.check_xc(128, 132)
        a('v_lshrrev_b32 v4, 2, v0')
        a('v_mul_u32_u24 v4, 96, v4')
        a('v_and_b32 v5, 3, v0')
        a('v_lshl_add_u32 v4, v5, 4, v4')
        vq.wait('x0')
        a(f'ds_write_b128 v4, v[184:187] offset:{L_XB}')
        vq.wait('x1')
        a(f'ds_write_b128 v4, v[188:191] offset:{L_XB + XBS}')
        a(f's_lshr_b32 s67, {sW}, 1')
        a(f's_and_b32 s59, {sW}, 1')
        a('v_and_b32 v4, 15, v1')
        a('v_lshrrev_b32 v5, 4, v1')
        a('v_and_b32 v6, 7, v4')
        a(f'v_mul_u32_u24 v6, {CS}, v6')
        a('v_and_b32 v7, 8, v4')
        a('v_lshl_add_u32 v7, v5, 3, v7')
        a('v_lshl_add_u32 v6, v7, 1, v6')
        a(f's_mul_i32 s55, s67, {8*CS}')
        a('s_lshl_b32 s56, s59, 5')
        a('s_add_u32 s55, s55, s56')
        a(f's_add_u32 s55, s55, {L_TOEP}')
        a('v_add_u32 v6, s55, v6')
        a('v_sub_u32 v7, 15, v4')
        a('v_mul_u32_u24 v7, 96, v7')
        a('v_lshl_add_u32 v7, v5, 4, v7')
        a(f's_mul_i32 s55, s67, {XBS}')
        a(f's_add_u32 s55, s55, {L_XB}')
        a('v_add_u32 v7, s55, v7')
        a('s_waitcnt lgkmcnt(0)')
        a('s_barrier')
        if self.o.get('pretouch', 2) == 1: self.pretouch_late()
        for i in range(16): a(f'v_mov_b32 v{16+i}, 0')
        self.stamp('x in lds')
        wb1 = o.get('wb1', 12)
        def Er(m, j): b = 32 + 32*(m % 3) + 4*j; return f'v[{b}:{b+3}]'
        def Fr(m, j): b = 32 + 32*(m % 3) + 16 + 4*j; return f'v[{b}:{b+3}]'
        def gloads(m):
            l = []
            for j in range(4):
                e = 16*j - m
                l.append(f'ds_read_b128 {Fr(m,j)}, v6 offset:{64*(m+16*j)}')
                l.append(f'ds_read_b128 {Er(m,j)}, v7 offset:{(48-e)*96}')
            return l
        for l in gloads(0): a(l)
        for l in gloads(1)[:7]: a(l)
        first_extra = gloads(1)[7:]
        for m in range(16):
            nxt = (first_extra if m == 0 else []) + (gloads(m+2) if m + 2 < 16 else [])
            if m == 0: a('s_waitcnt lgkmcnt(7)')
            elif m < 15: a('s_waitcnt lgkmcnt(8)')
            else: a('s_waitcnt lgkmcnt(0)')
            mf = []
            for j in range(4):
                for c in range(j, 4):
                    mf.append(f'v_mfma_f32_16x16x32_bf16 v[{16+4*c}:{19+4*c}], {Fr(m,j)}, {Er(m,c-j)}, v[{16+4*c}:{19+4*c}]')
            if m == o.get('fwpub', 5):
                vq.wait('wf')
                a('s_barrier')
                Lnf = a.newlabel('noflag')
                a(f's_cmp_lg_u32 {sW}, 0')
                a(f's_cbranch_scc1 {Lnf}'); a.comment('COND_BEGIN')
                a('s_lshl_b32 s53, s2, 2')
                a(f's_add_u32 s53, s53, {F_W}')
                a(f'buffer_store_dword v{vTAG}, off, {WS}, s53 sc1')
                a.label(Lnf); a.comment('COND_END')
            if m == o.get('fwld', 13):
                a(f'v_add_u32 v132, {F_W}, v{vL16}')
                a(f'buffer_load_dwordx4 v[128:131], v132, {WS}, 0 offen sc1'); vq.issue('fw2')
            for i, ins in enumerate(mf):
                a(ins)
                if nxt: a(nxt.pop(0))
                pass
            assert not nxt
        self.stamp('conv mfma done')
        a('v_sub_u32 v8, 15, v4')
        a('v_mul_u32_u24 v8, 96, v8')
        a('v_lshlrev_b32 v9, 3, v5')
        a('v_sub_u32 v8, v8, v9')
        a(f's_mul_i32 s55, s67, {XBS}')
        a(f's_add_u32 s55, s55, {L_XB + 56}')
        a('s_lshl_b32 s56, s59, 5')
        a('s_sub_u32 s55, s55, s56')
        a('v_add_u32 v8, s55, v8')
        for c in range(4):
            a(f'ds_read_b64 v[{48+2*c}:{49+2*c}], v8 offset:{(48-16*c)*96}')
        a('s_lshl_b32 s55, s60, 16')
        a('s_and_b32 s56, s60, 0xffff0000')
        a('s_cmp_eq_u32 s67, 0')
        a('s_cselect_b32 s55, s55, s56')
        a('v_lshrrev_b32 v9, 1, v5')
        a('v_lshlrev_b32 v9, 1, v9')
        a('s_lshl_b32 s56, s59, 2')
        a('s_add_u32 s56, s56, s67')
        a('v_add_u32 v9, s56, v9')
        a('v_and_b32 v10, 7, v4')
        a('v_xor_b32 v9, v9, v10')
        a('v_lshlrev_b32 v9, 4, v9')
        a('v_lshl_add_u32 v9, v4, 7, v9')
        a('v_and_b32 v10, 1, v5')
        a('v_lshl_add_u32 v9, v10, 3, v9')
        a('s_waitcnt lgkmcnt(0)')
        for c in range(4):
            d0, d1 = 48+2*c, 49+2*c
            acc = 16+4*c
            a(f'v_and_b32 v60, 0xffff0000, v{d1}')
            a(f'v_lshlrev_b32 v61, 16, v{d1}')
            a(f'v_and_b32 v62, 0xffff0000, v{d0}')
            a(f'v_lshlrev_b32 v63, 16, v{d0}')
            for r in range(4):
                a(f'v_fma_f32 v{60+r}, v{60+r}, s55, v{acc+r}')
            a(f'v_cvt_pk_bf16_f32 v{64+2*c}, v60, v61')
            a(f'v_cvt_pk_bf16_f32 v{65+2*c}, v62, v63')
            a(f'ds_write_b64 v9, v[{64+2*c}:{65+2*c}] offset:{L_GT + 16*c*128}')
        a('v_lshrrev_b32 v8, 3, v0')
        a('v_and_b32 v9, 7, v0')
        a('v_and_b32 v10, 7, v8')
        a('v_xor_b32 v10, v10, v9')
        a('v_lshlrev_b32 v10, 4, v10')
        a('v_lshl_add_u32 v10, v8, 7, v10')
        a('v_lshlrev_b32 v11, 15, v8')
        a('v_lshl_add_u32 v11, v9, 4, v11')
        a('s_waitcnt lgkmcnt(0)')
        a('s_barrier')
        a(f'ds_read_b128 v[48:51], v10 offset:{L_GT}')
        a(f'ds_read_b128 v[52:55], v10 offset:{L_GT + 4096}')
        a(f's_add_u32 s53, s61, {GB}')
        a('s_waitcnt lgkmcnt(1)')
        self.vstore('v[48:51]', 'v11', WS, 's53', 0, ' sc1', tag='g')
        a(f's_add_u32 s53, s53, {32*32768}')
        a('s_waitcnt lgkmcnt(0)')
        self.vstore('v[52:55]', 'v11', WS, 's53', 0, ' sc1', tag='g')
        self.mk_srd(SA, sQ, 2097152)
        a(f's_lshl_b32 s53, {sC}, 8')
        a(f's_lshl_b32 s54, {sR}, 3')
        a('s_add_u32 s53, s53, s54')
        a(f's_add_u32 s53, s53, {sW}')
        a('s_lshl_b32 s53, s53, 10')
        self.vload('v[8:11]', f'v{vL16}', srd(SA), 's53', 0, tag='q')
        a('s_add_u32 s53, s53, 4096')
        self.vload('v[12:15]', f'v{vL16}', srd(SA), 's53', 0, tag='q')
        self.check_fw(128, 132)
        a('s_barrier')
        self.weight_batch(o.get('wb2', 16))
        self.stamp('conv published')

    def finish(self):
        a = self.a
        a.label('L_fin')
        Ln = a.newlabel('noep')
        a('s_cmp_lg_u32 s2, 0')
        a(f's_cbranch_scc1 {Ln}'); a.comment('COND_BEGIN')
        a(f's_cmp_lg_u32 {sW}, 0')
        a(f's_cbranch_scc1 {Ln}'); a.comment('COND_BEGIN')
        a(f'buffer_store_dword v{vTAG}, off, {WS}, 0 sc1')
        a.label(Ln)
        if self.stamps:
            self.stamp('end')
            a('s_memtime s[62:63]'); a('s_waitcnt lgkmcnt(0)'); a('s_sub_u32 s100, s62, s100')
            a('s_lshl_b32 s53, s2, 2')
            a(f's_add_u32 s53, s53, {sW}')
            a('s_lshl_b32 s53, s53, 7')
            a(f's_add_u32 s53, s53, {TS}')
            a('s_mov_b64 exec, 1')
            a('v_mov_b32 v4, 0')
            for i in range(self.nstamp):
                a(f'v_mov_b32 v5, s{76+i}')
                a(f'buffer_store_dword v5, v4, {WS}, s53 offen offset:{4*i}')
                a.nop(1)
            if self.o.get('dbgstamps'):
                Ld = a.newlabel('nodbg')
                a(f's_cmp_lg_u32 s2, {self.o.get("dbgstamps")}')
                a(f's_cbranch_scc1 {Ld}')
                a(f's_cmp_lg_u32 {sW}, 0')
                a(f's_cbranch_scc1 {Ld}')
                self.mk_srd(SA, sDBG, 256)
                sel = [1, 3, 5, 6, 7, 8, 10, 11, 13, 14, 16, 17, 19, 20, 22, 23]
                for j, i in enumerate(sel):
                    a(f's_sub_u32 s54, s{76+i}, s76')
                    a(f'v_mov_b32 v5, s54')
                    a(f'buffer_store_dword v5, v4, {srd(SA)}, 0 offen offset:{4*j}')
                    a.nop(1)
                a.label(Ld)
            a(f'v_mov_b32 v5, {sFAST}')
            a(f'buffer_store_dword v5, v4, {WS}, s53 offen offset:116')
            a.nop(1)
            a(f'v_mov_b32 v5, s100')
            a(f'buffer_store_dword v5, v4, {WS}, s53 offen offset:120')
            a.nop(1)
            a(f'v_mov_b32 v5, {sABORT}')
            a(f'buffer_store_dword v5, v4, {WS}, s53 offen offset:124')
        a('s_waitcnt vmcnt(0)')
        a.label('L_end')
        a('s_endpgm')
        self.finished = True
        if not getattr(self, 'more_code', False): a.label('L_code_end')

    def build(self):
        self.prologue()
        self.prep()
        if self.stop != 'prep': self.conv()
        if self.stop not in ('prep', 'conv'):
            if self.o.get('mlp', 4) == 3:
                from gen3_mlp import emit_mlp
            else:
                from gen4_mlp import emit_mlp
            emit_mlp(self)
        if not getattr(self, 'finished', False): self.finish()
        else: self.a.label('L_code_end')
        body = self.a.text()
        hdr = open('cdna_kernels/' + NAME[:-7] + '.s.ref').read().split('; Override launch')[0]
        s = hdr + f'; @launch grid=(256,1,1) block=(256,1,1) lds={LDS_SIZE}\n'
        s += f'''.amdgcn_target "amdgcn-amd-amdhsa--gfx950"
.text
.globl {NAME}
.p2align 8
.type {NAME},@function
{NAME}:
.set CODE_BYTES, {'L_slow' if 'L_slow:' in body else 'L_code_end'} - {NAME}
''' + body + f'''.section .rodata,"a"
.p2align 6
.amdhsa_kernel {NAME}
  .amdhsa_next_free_vgpr 512
  .amdhsa_next_free_sgpr 102
  .amdhsa_accum_offset 256
  .amdhsa_group_segment_fixed_size 0
  .amdhsa_kernarg_size 112
  .amdhsa_user_sgpr_count 2
  .amdhsa_user_sgpr_kernarg_segment_ptr 1
  .amdhsa_system_sgpr_workgroup_id_x 1
.end_amdhsa_kernel
'''
        return s

def main():
    ap = argparse.ArgumentParser()
    ap.add_argument('--stop', default='end')
    ap.add_argument('--stamps', action='store_true')
    ap.add_argument('-o', default='k.s')
    ap.add_argument('--opt', action='append', default=[])
    args = ap.parse_args()
    opts = {}
    for kv in args.opt:
        k, v = kv.split('='); opts[k] = int(v) if v.lstrip('-').isdigit() else v
    g = Gen(stop=args.stop, stamps=args.stamps, opts=opts)
    s = g.build()
    probs = check_hazards(g.a.lines)
    for p in probs: print(p)
    wp = check_waits(g.a.lines)
    for p in wp[:30]: print(p)
    print(len(wp), 'wait problems')
    print(f'{len(g.a.lines)} lines, {len(probs)} hazards')
    open(args.o, 'w').write(s)
    open(args.o + '.stamps', 'w').write('\n'.join(g.stamp_names))

if __name__ == '__main__':
    main()
```

```python
from gen2 import *
from gen2_mlp import tok_base, yflag_addr, emit_r1a
from gen3_mlp import poll_issue, poll_check, spread, DUMMY

def pr(b): return f'v[{b}:{b+1}]'
VINV = 108

def rows_finish(g, rows, scx, scy):
    a = g.a
    for (X, eta) in rows:
        a(f's_lshl_b32 s53, {sW}, 10')
        a(f's_add_u32 s53, s53, {L_G + eta*4096}')
        a(f'v_add_u32 v{X+28}, s53, v{vL16}')
        a(f'ds_read_b128 v[{X+16}:{X+19}], v{X+28}')
    a('s_waitcnt lgkmcnt(0)')
    for (X, eta) in rows: g.unpack8(X+16, X+20)
    for (X, eta) in rows:
        for i in range(4):
            a(f'v_pk_fma_f32 {pr(X+2*i)}, {pr(X+8+2*i)}, {pr(X+20+2*i)}, {pr(X+2*i)}')
    for (X, eta) in rows: g.pack8(X, X+32)
    for (X, eta) in rows: g.unpack8(X+32, X)
    for (X, eta) in rows:
        a(f's_add_u32 s54, s75, {X1 + eta*4096 + (0 if g.fast else g.rl*0x400000)}')
        g.vstore(f'v[{X+32}:{X+35}]', f'v{vL16}', WS, 's54', 0, scx, tag=f'rx{eta}')
    if g.o.get('ln2an', 1):
        g.ln_multi([(X, X+8, X+36) for (X, eta) in rows], double=True)
    else:
        g.ln_multi([(X, X+8, X+36) for (X, eta) in rows])
        g.ln_multi([(X+8, X+8, X+36) for (X, eta) in rows])
    for (X, eta) in rows: g.pack8(X+8, X+16)
    for (X, eta) in rows:
        a(f's_add_u32 s54, s75, {Y0 + eta*4096 + (0 if g.fast else g.rl*0x200000)}')
        g.vstore(f'v[{X+16}:{X+19}]', f'v{vL16}', WS, 's54', 0, scy, tag=f'ry{eta}')

def row_flag(g, eta):
    a = g.a
    g.vq.wait(f'ry{eta}')
    a(f's_add_u32 s53, s61, {(g.rl*2 + eta)*8*128*4}')
    g.flag('s53')

def mlp_setup0(g):
    a = g.a
    tok_base(a, 's75', 0)
    a(f's_lshl_b32 s61, {sC}, 7')
    a(f's_lshl_b32 s54, {sR}, 2')
    a('s_add_u32 s61, s61, s54')
    a(f's_add_u32 s61, s61, {sW}')
    a('s_lshl_b32 s61, s61, 2')
    a(f's_add_u32 s61, s61, {F_Y}')

def mlp_setup(g, part=1):
    a = g.a
    if part == 0:
        mlp_setup0(g); return
    a(f's_lshl_b32 s53, {sC}, 7')
    a(f's_lshl_b32 s54, {sT1}, 6')
    a('s_add_u32 s53, s53, s54')
    a(f's_lshl_b32 s54, {sW}, 3')
    a('s_add_u32 s53, s53, s54')
    a('s_lshl_b32 s53, s53, 2')
    a(f's_add_u32 s53, s53, {F_Y}')
    a('v_and_b32 v120, 7, v1')
    a('v_bfe_u32 v12, v1, 3, 1')
    a('v_lshl_add_u32 v120, v12, 5, v120')
    a('v_lshlrev_b32 v120, 2, v120')
    a('v_add_u32 v120, s53, v120')
    a('v_lshrrev_b32 v14, 5, v1')
    a('v_and_b32 v15, 31, v1')
    a('v_and_b32 v12, 15, v1')
    for m in range(8):
        a(f'v_add_u32 v{4+m}, {2*m}, v14')
        a(f'v_xor_b32 v{4+m}, v{4+m}, v12')
        a(f'v_lshlrev_b32 v{4+m}, 4, v{4+m}')
        a(f'v_lshl_add_u32 v{4+m}, v15, 10, v{4+m}')
    a(f's_and_b32 s54, {sW}, 1')
    a('s_lshl_b32 s54, s54, 7')
    a(f'v_xor_b32 v121, s54, v{vL16}')
    a(f's_lshl_b32 s68, {sJ}, 2')
    a(f's_add_u32 s68, s68, {sW}')
    a(f's_lshl_b32 s53, {sC}, 1')
    a(f's_add_u32 s53, s53, {sT1}')
    a('s_lshl_b32 s53, s53, 2')
    a('s_mul_i32 s71, s53, 112')
    a('s_lshl_b32 s55, s68, 1')
    a('s_add_u32 s71, s71, s55')
    a('s_lshl_b32 s71, s71, 10')
    a(f's_add_u32 s71, s71, {H0}')
    a('s_lshl_b32 s70, s53, 8')
    a('s_lshl_b32 s55, s68, 2')
    a('s_add_u32 s70, s70, s55')
    a(f's_add_u32 s70, s70, {F_H}')
    a('s_lshl_b32 s55, s2, 13')
    a(f's_add_u32 s55, s55, {DUMMY}')
    a(f's_cmp_ge_u32 {sR}, 28')
    a('s_cselect_b32 s71, s55, s71')
    a('s_cselect_b32 s70, s55, s70')
    a(f's_lshl_b32 s53, {sC}, 8')
    a(f's_lshl_b32 s54, {sT1}, 7')
    a('s_add_u32 s53, s53, s54')
    a(f's_lshl_b32 s54, {sW}, 4')
    a('s_add_u32 s53, s53, s54')
    a('s_lshl_b32 s53, s53, 10')
    a(f's_add_u32 s72, s53, {Y0}')
    a(f's_lshl_b32 s73, {sW}, 13')
    a(f's_lshr_b32 s54, {sR}, 4')
    a(f's_lshl_b32 s53, {sC}, 1')
    a('s_add_u32 s53, s53, s54')
    a('s_lshl_b32 s53, s53, 2')
    a(f's_lshr_b32 s54, {sR}, 3')
    a('s_and_b32 s54, s54, 1')
    a('s_add_u32 s55, s53, s54')
    a('s_lshl_b32 s53, s55, 8')
    a(f's_mul_i32 s54, {sW}, 56')
    a('s_add_u32 s53, s53, s54')
    a(f's_add_u32 s53, s53, {F_H}')
    a('v_min_u32 v119, 13, v1')
    a('v_lshlrev_b32 v119, 2, v119')
    a('v_add_u32 v119, s53, v119')
    a('s_mul_i32 s69, s55, 112')
    a(f's_mul_i32 s54, {sW}, 28')
    a('s_add_u32 s69, s69, s54')
    a('s_lshl_b32 s69, s69, 10')
    a(f's_add_u32 s69, s69, {H0}')
    a('v_and_b32 v15, 7, v0')
    a('v_lshrrev_b32 v112, 3, v0')
    a('v_and_b32 v12, 7, v112')
    a('v_and_b32 v113, 3, v15')
    a('v_lshlrev_b32 v113, 1, v113')
    a('v_or_b32 v114, 1, v113')
    a('v_xor_b32 v113, v113, v12')
    a('v_xor_b32 v114, v114, v12')
    a('v_lshrrev_b32 v12, 2, v15')
    a('v_lshlrev_b32 v12, 7, v12')
    a('v_lshl_add_u32 v12, v112, 8, v12')
    a('v_lshl_add_u32 v113, v113, 4, v12')
    a('v_lshl_add_u32 v114, v114, 4, v12')
    a(f's_lshr_b32 s53, {sR}, 3')
    a('s_lshl_b32 s53, s53, 5')
    a('v_add_u32 v12, s53, v112')
    a('v_lshrrev_b32 v112, 2, v12')
    a('v_lshlrev_b32 v112, 3, v112')
    a('v_and_b32 v12, 3, v12')
    a('v_add_u32 v112, v112, v12')
    a(f's_lshl_b32 s53, {sC}, 8')
    a('v_add_u32 v112, s53, v112')
    a('v_lshlrev_b32 v112, 10, v112')
    a(f's_and_b32 s53, {sR}, 7')
    a('s_lshl_b32 s53, s53, 7')
    a('v_lshl_add_u32 v112, v15, 4, v112')
    a('v_add_u32 v112, s53, v112')
    a('v_lshlrev_b32 v123, 4, v15')
    a('v_add_u32 v123, s53, v123')
    a('v_and_b32 v12, 31, v1')
    a('v_lshrrev_b32 v13, 5, v1')
    a('v_and_b32 v14, 7, v1')
    a(f's_lshl_b32 s53, {sW}, 13')
    for i in range(4):
        a(f'v_add_u32 v{115+i}, {2*i}, v13')
        a(f'v_xor_b32 v{115+i}, v{115+i}, v14')
        a(f'v_lshlrev_b32 v{115+i}, 4, v{115+i}')
        a(f'v_lshl_add_u32 v{115+i}, v12, 8, v{115+i}')
        a(f'v_add_u32 v{115+i}, s53, v{115+i}')
    a(f's_lshl_b32 s67, {sC}, 3')
    a(f's_lshr_b32 s54, {sR}, 3')
    a('s_add_u32 s67, s67, s54')
    a('s_lshl_b32 s67, s67, 2')
    a(f's_add_u32 s67, s67, {sW}')
    a('s_lshl_b32 s67, s67, 3')
    a(f's_and_b32 s54, {sR}, 7')
    a('s_add_u32 s67, s67, s54')
    a('s_lshl_b32 s67, s67, 2')
    a(f's_add_u32 s67, s67, {F_X}')
    a(f's_lshl_b32 s53, {sC}, 3')
    a(f's_lshr_b32 s54, {sR}, 3')
    a('s_add_u32 s53, s53, s54')
    a('s_lshl_b32 s53, s53, 2')
    a(f's_and_b32 s54, {sR}, 7')
    a('s_lshr_b32 s54, s54, 1')
    a('s_add_u32 s53, s53, s54')
    a('s_lshl_b32 s53, s53, 5')
    a(f's_add_u32 s53, s53, {F_X}')
    a('v_and_b32 v122, 7, v1')
    a('v_lshlrev_b32 v122, 2, v122')
    a('v_add_u32 v122, s53, v122')

def gelu_fillers(g, acc, u, T, P, usepk, sc):
    a = g.a
    lay = g.cur_layer
    F = []
    F.append(lambda: a(f's_add_u32 s74, s71, {u*112*1024 + (0 if g.fast else lay*0x800000)}'))
    if usepk:
        seqs = []
        for p in range(8):
            x0 = acc + 2*p; t0 = T + 2*(p % 2); t1 = t0 + 1
            X = pr(x0); Tt = pr(t0)
            seqs.append([f'v_pk_mul_f32 {Tt}, {X}, {X}',
                   f'v_pk_fma_f32 {Tt}, {Tt}, v[12:13], v[12:13] op_sel:[0,0,1] op_sel_hi:[1,0,1]',
                   f'v_pk_mul_f32 {Tt}, {Tt}, {X}',
                   f'v_exp_f32 v{t0}, v{t0}', f'v_exp_f32 v{t1}, v{t1}',
                   f'v_pk_add_f32 {Tt}, {Tt}, v[14:15]',
                   f'v_rcp_f32 v{t0}, v{t0}', f'v_rcp_f32 v{t1}, v{t1}',
                   f'v_pk_mul_f32 {X}, {X}, {Tt}',
                   f'v_cvt_pk_bf16_f32 v{P+p}, v{x0}, v{x0+1}'])
        for p in range(0, 8, 2):
            for s0, s1 in zip(seqs[p], seqs[p+1]):
                F.append(lambda s=s0: a(s)); F.append(lambda s=s1: a(s))
            if p == 2: F.append(lambda: g.vstore(f'v[{P}:{P+3}]', f'v{vL16}', WS, 's74', 0, sc, tag=f'h{u}'))
            if p == 6: F.append(lambda: g.vstore(f'v[{P+4}:{P+7}]', f'v{vL16}', WS, 's74', 1024, sc, tag=f'h{u}'))
        return F
    for p in range(8):
        x0, x1 = acc + 2*p, acc + 2*p + 1
        t0 = T + 2*(p % 2); t1 = t0 + 1
        seq = [f'v_mul_f32 v{t0}, v{x0}, v{x0}', f'v_mul_f32 v{t1}, v{x1}, v{x1}',
               f'v_fma_f32 v{t0}, v{t0}, v12, v13', f'v_fma_f32 v{t1}, v{t1}, v12, v13',
               f'v_mul_f32 v{t0}, v{t0}, v{x0}', f'v_mul_f32 v{t1}, v{t1}, v{x1}',
               f'v_exp_f32 v{t0}, v{t0}', f'v_exp_f32 v{t1}, v{t1}',
               f'v_add_f32 v{t0}, 1.0, v{t0}', f'v_add_f32 v{t1}, 1.0, v{t1}',
               f'v_rcp_f32 v{t0}, v{t0}', f'v_rcp_f32 v{t1}, v{t1}',
               f'v_mul_f32 v{x0}, v{x0}, v{t0}', f'v_mul_f32 v{x1}, v{x1}, v{t1}',
               f'v_cvt_pk_bf16_f32 v{P+p}, v{x0}, v{x1}']
        for s in seq: F.append(lambda s=s: a(s))
        if p == 3: F.append(lambda: g.vstore(f'v[{P}:{P+3}]', f'v{vL16}', WS, 's74', 0, sc, tag=f'h{u}'))
        if p == 7: F.append(lambda: g.vstore(f'v[{P+4}:{P+7}]', f'v{vL16}', WS, 's74', 1024, sc, tag=f'h{u}'))
    return F

def hflag(g, u):
    g.vq.wait(f'h{u}')
    g.a(f's_add_u32 s56, s70, {u*256 + g.cur_layer*64*256}')
    g.flag('s56')

def emit_layer(g, idle=False):
    a = g.a; vq = g.vq; o = g.o
    lay = g.cur_layer
    sch = g.sc_h
    yoff = 0 if g.fast else lay*0x200000
    hoff = 0 if g.fast else lay*0x800000
    xoff = 0 if g.fast else lay*0x400000
    if idle:
        a('s_barrier')
        g.weight_batch(100)
        a(f'v_add_u32 v100, {lay*64*256}, v119'); a('v_add_u32 v101, 512, v100')
        poll_issue(g, 102, 100, 'phA')
    else:
        a.comment(f'=== G1 layer {lay} ===')
        g.dstamp('g1', 'g1 begin')
        a(f'v_add_u32 v100, {lay*2*8*128*4}, v120')
        a(f'v_add_u32 v101, {(lay*2+1)*8*128*4}, v120')
        poll_issue(g, 102, 100, 'pyA')
        a('s_barrier')
        g.mk_srd(SA, sB1, 3584)
        a('v_lshrrev_b32 v14, 5, v1')
        a('v_lshlrev_b32 v15, 3, v14')
        a('s_lshl_b32 s53, s68, 6')
        for i in range(4):
            g.vload(f'v[{104+2*i}:{105+2*i}]', 'v15', srd(SA), 's53', 16*i, w='x2', tag='bias')
        a(f'v_mov_b32 v12, {f2u(-C2)}')
        a(f'v_mov_b32 v13, {f2u(-C1)}')
        a('v_mov_b32 v14, 1.0'); a('v_mov_b32 v15, 1.0')
        def dma_list(eta, tt):
            L = []
            for i in range(8):
                def f(i=i):
                    if i % 4 == 0:
                        a(f's_add_u32 m0, s73, {L_YH[eta] + tt*32768 + i*1024}')
                        a(f's_add_u32 s57, s72, {(64*tt + 8*(i>>2) + 4*eta)*1024 + yoff}')
                    a(f'v_xor_b32 v99, {16*i}, v121')
                    off = f' offset:{(i%4)*1024}' if i % 4 else ''
                    a(f'buffer_load_dwordx4 v99, {WS}, s57 offen{off} sc1 lds')
                    vq.issue(f'dma{eta}{tt}')
                L.append(f)
            return L
        g.dstamp('g1', 'setup done')
        poll_check(g, 102, 100, 'pyA')
        g.stamp('g1 yA seen')
        for f in dma_list(0, 0): f()
        for f in dma_list(0, 1)[:4]: f()
        poll_issue(g, 102, 101, 'pyB')
        vq.wait('bias')
        for i in range(4):
            a(f'v_lshlrev_b32 v{48+4*i}, 16, v{104+2*i}')
            a(f'v_and_b32 v{49+4*i}, 0xffff0000, v{104+2*i}')
            a(f'v_lshlrev_b32 v{50+4*i}, 16, v{105+2*i}')
            a(f'v_and_b32 v{51+4*i}, 0xffff0000, v{105+2*i}')
        vq.wait('dma00')
        a('s_barrier')
        g.stamp('g1 yA in lds')
        fill = []
        NB, PF = 8, 7
        WG_ = o.get('g1wait', 4)
        XT = o.get('xtile', 1)
        def Breg(k): return f'v[{64+4*(k%NB)}:{67+4*(k%NB)}]'
        def Bload(u, k): a(f'ds_read_b128 {Breg(k)}, v{4+(k&7)} offset:{(u&1)*32768 + (k>>3)*256}')
        def tile_ready(u):
            vq.wait(f'dma{u>>1}{u&1}'); a('s_barrier')
            if u == 2:
                for m_ in range(8): a(f'v_add_u32 v{4+m_}, 0x10000, v{4+m_}')
        for u in range(4):
            eta, tt = u >> 1, u & 1
            if u >= 1 and not XT: tile_ready(u)
            g.dstamp('g1', f'tile{u} start')
            acc = 16 + 16*(u % 2)
            if u == 0 or not XT:
                for k in range(PF): Bload(u, k)
            extra = {}
            if u == 0:
                for i, f in enumerate(dma_list(0, 1)[4:]): extra.setdefault(i, []).append(f)
                extra.setdefault(8, []).append(lambda: poll_check(g, 102, 101, 'pyB'))
                for i, f in enumerate(dma_list(1, 0) + dma_list(1, 1)): extra.setdefault(9 + i + i//3, []).append(f)
            if u == 3:
                extra.setdefault(o.get('fA0', 2), []).append(lambda: hflag(g, 0))
                extra.setdefault(o.get('fA1', 28), []).append(lambda: hflag(g, 1))
                extra.setdefault(29, []).append(lambda: (a(f'v_add_u32 v100, {lay*64*256}, v119'), a('v_add_u32 v101, 512, v100'), poll_issue(g, 102, 100, 'phA')))
            if g.wlist and u >= 1:
                nper = (len(g.wlist) + (3 - u)) // (4 - u)
                for sl in [1 + (i * 23) // nper for i in range(nper)]:
                    extra.setdefault(sl, []).append(lambda: g.weight_batch(1))
            if XT and u < 3:
                extra.setdefault(25, []).insert(0, lambda u=u: tile_ready(u + 1))
            sp = spread(fill, 32, 4, o.get('gend', 27))
            done = 0
            for k in range(32):
                if k % WG_ == 0:
                    need = min(k + WG_ - 1, 31)
                    if XT and u < 3: issued = k + PF - 1 if k + PF - 1 <= 31 else 31 + max(0, k - 25)
                    else: issued = min(k + PF - 1, 31)
                    a(f's_waitcnt lgkmcnt({max(issued - need, 0)})')
                cin = f'v[48:63]' if k == 0 else f'v[{acc}:{acc+15}]'
                a(f'v_mfma_f32_32x32x16_bf16 v[{acc}:{acc+15}], {W1reg(k)}, {Breg(k)}, {cin}')
                if k + PF < 32: Bload(u, k + PF)
                while done < sp[k]: fill[done](); done += 1
                for f in extra.get(k, []): f()
                if XT and u < 3 and k >= 25: Bload(u + 1, k - 25)
            while done < len(fill): fill[done](); done += 1
            g.dstamp('g1', f'tile{u} done')
            if u < 3: fill = gelu_fillers(g, acc, u, 96, 104, False, sch)
            else: fill = gelu_fillers(g, acc, u, 96, 48, True, sch)
        g.dstamp('g1', 'tiles done')
    if not idle:
        for m in range(8): a(f'v_subrev_u32 v{4+m}, 0x10000, v{4+m}')
    NW = 12
    HW = 64
    def Hreg(s): return f'v[{HW+4*(s%NW)}:{HW+3+4*(s%NW)}]'
    def Hload(s):
        eta, i = divmod(s, 28)
        a(f's_add_u32 s54, s69, {eta*2*112*1024 + (i//4)*4096 + hoff}')
        g.vload(Hreg(s), f'v{vL16}', WS, 's54', (i%4)*1024, ' sc1', tag=f'hf{s}')
    a('v_mov_b32 v124, v100'); a('v_mov_b32 v125, v101')
    poll_check(g, 102, 100, 'phA')
    g.stamp('g2 hA seen')
    fill = gelu_fillers(g, 32, 3, 60, 48, True, sch)
    for s in range(NW): Hload(s)
    g.dstamp('g2', 'A loads issued')
    if not idle:
        a.nop(2)
        half = len(fill)//2
        for f in fill[:half]: f()
        hflag(g, 2)
        for f in fill[half:]: f()
    g.stamp('g1 done')
    g.dstamp('g2', 'tail done')
    g.mk_srd(SA, sB2, 1024)
    g.vload('v[56:59]', 'v123', srd(SA), 0, 0, tag='b2')
    a(f's_mov_b32 s53, {X1 + xoff}')
    g.vload('v[60:63]', 'v112', WS, 's53', 0, ' sc1', tag='res0')
    if lay == 0:
        OUT = WS; obase = X2
    else:
        g.mk_srd(SB, sOUT, 2097152); OUT = srd(SB); obase = 0
    sco = g.sc_x if lay == 0 else (' sc1' if o.get('outsc1', 0) else (' nt' if o.get('outnt', 0) else ''))
    def accset(eta, nt):
        return f'a[{224+16*nt}:{239+16*nt}]' if eta == 0 else f'v[{16+16*nt}:{31+16*nt}]'
    def red_write_list(eta):
        LR = eta*32768
        L = []
        for nt in range(2):
            for i in range(4):
                src = f'a[{224+16*nt+4*i}:{224+16*nt+4*i+3}]' if eta == 0 else f'v[{16+16*nt+4*i}:{16+16*nt+4*i+3}]'
                L.append(lambda src=src, i=i, nt=nt: a(f'ds_write_b128 v{115+i}, {src} offset:{LR + nt*128}'))
        return L
    def xflag(eta):
        vq.wait(f'xo{eta}')
        a(f's_add_u32 s53, s67, {eta*512}')
        g.flag('s53')
    def red_small(eta, res):
        LR = eta*32768
        L = []
        for h in range(2):
            ad = 113 + h
            T0, T1 = 48, 52
            b2 = 56 + 2*h; rs = res + 2*h
            L.append(lambda ad=ad: (a(f'ds_read_b128 v[48:51], v{ad} offset:{LR}'), a(f'ds_read_b128 v[52:55], v{ad} offset:{LR + 8192}')))
            def add(): a(f'v_pk_add_f32 {pr(48)}, {pr(48)}, {pr(52)}'); a(f'v_pk_add_f32 {pr(50)}, {pr(50)}, {pr(54)}')
            def sadd():
                for e in range(4): a(f'v_add_f32 v{48+e}, v{48+e}, v{52+e}')
            L.append(lambda ad=ad: (a('s_waitcnt lgkmcnt(0)'), sadd(), a(f'ds_read_b128 v[52:55], v{ad} offset:{LR + 2*8192}')))
            L.append(lambda ad=ad: (a('s_waitcnt lgkmcnt(0)'), sadd(), a(f'ds_read_b128 v[52:55], v{ad} offset:{LR + 3*8192}')))
            L.append(lambda: (a('s_waitcnt lgkmcnt(0)'), sadd()))
            def ub(src):
                a(f'v_lshlrev_b32 v52, 16, v{src}'); a(f'v_and_b32 v53, 0xffff0000, v{src}')
                a(f'v_lshlrev_b32 v54, 16, v{src+1}'); a(f'v_and_b32 v55, 0xffff0000, v{src+1}')
            L.append(lambda b2=b2: (ub(b2), sadd()))
            def rnd():
                a('v_cvt_pk_bf16_f32 v52, v48, v49'); a('v_cvt_pk_bf16_f32 v53, v50, v51')
                a('v_lshlrev_b32 v48, 16, v52'); a('v_and_b32 v49, 0xffff0000, v52')
                a('v_lshlrev_b32 v50, 16, v53'); a('v_and_b32 v51, 0xffff0000, v53')
            L.append(rnd)
            L.append(lambda rs=rs: (vq.wait(f'res{eta}'), ub(rs), sadd()))
            L.append(lambda h=h: (a(f'v_cvt_pk_bf16_f32 v{12+2*h}, v48, v49'), a(f'v_cvt_pk_bf16_f32 v{13+2*h}, v50, v51')))
        def st():
            a(f's_mov_b32 s53, {obase + eta*4096}')
            g.vstore('v[12:15]', 'v112', OUT, 's53', 0, sco, tag=f'xo{eta}')
        L.append(st)
        return L
    def red_big(eta, res):
        LR = eta*32768
        T = 64
        for p in range(4):
            a(f'ds_read_b128 v[{T+8*p}:{T+8*p+3}], v113 offset:{LR + p*8192}')
            a(f'ds_read_b128 v[{T+8*p+4}:{T+8*p+7}], v114 offset:{LR + p*8192}')
        g.unpack8(56, T+32)
        a('s_waitcnt lgkmcnt(4)')
        for e in range(4): a(f'v_pk_add_f32 {pr(T+2*e)}, {pr(T+2*e)}, {pr(T+8+2*e)}')
        for e in range(4): a(f'v_pk_add_f32 {pr(T+2*e)}, {pr(T+2*e)}, {pr(T+32+2*e)}')
        a('s_waitcnt lgkmcnt(0)')
        for e in range(4): a(f'v_pk_add_f32 {pr(T+16+2*e)}, {pr(T+16+2*e)}, {pr(T+24+2*e)}')
        for e in range(4): a(f'v_pk_add_f32 {pr(T+2*e)}, {pr(T+2*e)}, {pr(T+16+2*e)}')
        g.pack8(T, T+8); g.unpack8(T+8, T)
        vq.wait(f'res{eta}')
        g.unpack8(res, T+16)
        for e in range(4): a(f'v_pk_add_f32 {pr(T+2*e)}, {pr(T+2*e)}, {pr(T+16+2*e)}')
        g.pack8(T, T+8)
        a(f's_mov_b32 s53, {obase + eta*4096}')
        g.vstore(f'v[{T+8}:{T+11}]', 'v112', OUT, 's53', 0, sco, tag=f'xo{eta}')
    extra = {}
    if not idle: extra.setdefault(o.get('fB1', 3), []).append(lambda: hflag(g, 3))
    extra.setdefault(10, []).append(lambda: poll_issue(g, 126, 125, 'phB'))
    extra.setdefault(15, []).append(lambda: poll_check(g, 126, 125, 'phB'))
    for i, f in enumerate(red_write_list(0)): extra.setdefault(30 + i//2, []).append(f)
    extra.setdefault(35, []).append(lambda: (a('s_waitcnt lgkmcnt(0)'), a('s_barrier')))
    for i, f in enumerate(red_small(0, 60)): extra.setdefault(36 + i, []).append(f)
    def resB():
        a(f's_mov_b32 s53, {X1 + xoff + 4096}')
        g.vload('v[60:63]', 'v112', WS, 's53', 0, ' sc1', tag='res1')
    extra.setdefault(53, []).append(resB)
    for s in range(56):
        eta, i = divmod(s, 28)
        vq.wait(f'hf{s}')
        for nt in range(2):
            acc = accset(eta, nt)
            cin = '0' if i == 0 else acc
            a(f'v_mfma_f32_32x32x16_bf16 {acc}, {W2reg(nt,i)}, {Hreg(s)}, {cin}')
            if nt == 0 and s >= 1 and (s - 1) + NW < 56: Hload(s - 1 + NW)
        if s == 27: g.dstamp('g2', 'A mfma done')
        for f in extra.get(s, []): f()
    g.dstamp('g2', 'B mfma done')
    if lay == 0: xflag(0)
    a.nop(12)
    for f in red_write_list(1): f()
    a('s_waitcnt lgkmcnt(0)')
    a('s_barrier')
    red_big(1, 60)
    g.dstamp('g2', 'B finished')
    if lay == 0: xflag(1)
    g.stamp('g2 done')

def emit_layer_both(g):
    a = g.a
    if not g.o.get('idleskip', 1):
        emit_layer(g); return
    Li = a.newlabel('idle'); Ld = a.newlabel('ldone')
    ops0 = list(g.vq.ops); wl0 = list(g.wlist)
    a(f's_cmp_ge_u32 {sR}, 28')
    a(f's_cbranch_scc1 {Li}')
    emit_layer(g)
    a(f's_branch {Ld}')
    a.label(Li)
    g.vq.ops = ops0; g.wlist = wl0
    st = g.stamps
    nst, names = g.nstamp, list(g.stamp_names)
    g.stamps = False
    emit_layer(g, idle=True)
    g.stamps = st
    a.label(Ld)
    g.vq.reset()

def emit_r2(g):
    a = g.a; vq = g.vq
    g.rl = 1
    a(f'v_mov_b32 v{VINV}, 0x3b000000')
    a('v_add_u32 v109, 512, v122')
    g.dstamp('r2', 'r2 begin')
    poll_issue(g, 110, 122, 'pxA')
    poll_check(g, 110, 122, 'pxA')
    g.dstamp('r2', 'xA seen')
    a(f's_add_u32 s53, s75, {X2}')
    g.vload('v[60:63]', f'v{vL16}', WS, 's53', 0, ' sc1', tag='x2a')
    poll_issue(g, 110, 109, 'pxB')
    vq.wait('x2a')
    g.unpack8(60, 16)
    g.ln_multi([(16, 24, 52)])
    rows_finish(g, [(16, 0)], g.sc_x3, g.sc_y1)
    g.dstamp('r2', 'row0 stored')
    poll_check(g, 110, 109, 'pxB')
    a(f's_add_u32 s53, s75, {X2 + 4096}')
    g.vload('v[60:63]', f'v{vL16}', WS, 's53', 0, ' sc1', tag='x2b')
    row_flag(g, 0)
    g.dstamp('r2', 'A flagged')
    vq.wait('x2b')
    g.unpack8(60, 64)
    g.ln_multi([(64, 72, 100)])
    rows_finish(g, [(64, 1)], g.sc_x3, g.sc_y1)
    g.dstamp('r2', 'row1 stored')
    row_flag(g, 1)
    g.stamp('r2 done')

def emit_r1b(g):
    a = g.a
    g.rl = 0
    mlp_setup_done = False
    if g.o.get('r1seq', 1):
        rows_finish(g, [(16, 0)], ' sc1', g.sc_y0)
        rows_finish(g, [(64, 1)], ' sc1', g.sc_y0)
        row_flag(g, 0)
        g.weight_batch(g.o.get('wb3', 16))
        mlp_setup_rest(g)
        row_flag(g, 1)
    else:
        rows_finish(g, [(16, 0), (64, 1)], ' sc1', g.sc_y0)
        g.weight_batch(g.o.get('wb3', 16))
        mlp_setup_rest(g)
        row_flag(g, 0)
        row_flag(g, 1)
    g.stamp('r1 done')

def mlp_setup_rest(g): mlp_setup(g, 1)

def emit_variant(g, fast):
    a = g.a; o = g.o
    g.fast = fast
    g.fsc = '' if fast else ' sc1'
    yt = fast and (o.get('ytouch', 0) or o.get('dstore', 0))
    g.sc_h = ('' if (fast and o.get('dstore', 0) and o.get('dsH', 1)) else ' sc1'); g.sc_x = ('' if yt else ' sc1'); g.sc_y0 = ('' if yt else ' sc1')
    g.sc_x3 = ' sc1'; g.sc_y1 = ('' if (fast and o.get('y1plain', 1)) else ' sc1')
    emit_r1b(g)
    if g.stop == 'r1': a('s_branch L_fin'); return
    a(f's_mov_b32 {sLAYER}, 0')
    g.cur_layer = 0
    emit_layer_both(g)
    if g.stop == 'g2': a('s_branch L_fin'); return
    g.cur_layer = 1
    emit_r2(g)
    if g.stop == 'r2': a('s_branch L_fin'); return
    a(f's_mov_b32 {sLAYER}, 1')
    g.sc_h = '' if (fast and o.get('h1plain', 0)) else ' sc1'
    emit_layer_both(g)
    a('s_branch L_fin')

def emit_mlp(g):
    a = g.a
    g.vinv = VINV
    g.r1_hook = lambda: mlp_setup(g, 0)
    emit_r1a(g)
    ops0 = list(g.vq.ops); wl0 = list(g.wlist)
    a(f's_cmp_eq_u32 {sFAST}, 0')
    a('s_cbranch_scc1 L_slow')
    emit_variant(g, True)
    g.more_code = True
    g.finish()
    a.label('L_slow')
    g.vq.ops = ops0; g.wlist = wl0
    st = g.stamps; g.stamps = False
    emit_variant(g, False)
    g.stamps = st
```

```python
import sys, argparse, struct
from asmlib import Asm, check_hazards, check_waits

NAME = 'interleave_layers__ssm_conv_h3__mixer_channel_mlp__prompt_kernel'

WS_EPOCH = 0x0
F_PREP = 0x1000
F_CONV = 0x2000
F_W = 0x3000
F_XC = 0x3800
DUMMY2 = 0x2D00000
F_Y    = 0x4000
F_H    = 0x8000
F_X    = 0x10000
XR     = 0x100000
W1F    = 0x300000
W2F    = 0x500000
GB     = 0x700000
Y0     = 0x900000
X1     = 0xD00000
X2     = 0xF00000
H0     = 0x1400000
TS     = 0x2400000
WS_SIZE = 0x10000000

L_KVT = 0
L_W1R = 8192
L_W2R = 16384
L_GT  = 0
L_XB = 25600
XBS = 79*96
L_TOEP = 40960
CS = 4160
LDS_SIZE = 163840
L_G = 155648
L_YH = [0, 65536]

sQ, sK, sV, sSK, sSSM, sD, sBX, sW1 = 16, 18, 20, 22, 24, 26, 28, 30
sB1, sW2, sB2, sOUT, sDBG, sWSP = 32, 34, 36, 38, 40, 42
WS = 's[44:47]'
sC, sR, sW, sTAG, sABORT = 's48', 's49', 's50', 's51', 's52'
sLAYER, sT1, sJ = 's64', 's65', 's66'
sXCC, sFAST = 's101', 's3'
SA, SB, SC_, SD_ = 4, 8, 12, 72
def srd(n): return f's[{n}:{n+3}]'
W1B = 128
vL16, vTAG = 2, 3
def W1reg(k): return f'v[{W1B+4*k}:{W1B+4*k+3}]'
def W2reg(nt, i):
    b = (nt*28 + i)*4
    return f'a[{b}:{b+3}]'
def f2u(x): return '0x%08x' % struct.unpack('<I', struct.pack('<f', x))[0]
C1 = 2*0.7978845608028654*1.4426950408889634
C2 = C1*0.044715

class VQ:
    def __init__(self, a): self.a = a; self.ops = []
    def issue(self, tag): self.ops.append(tag)
    def wait(self, tag):
        idx = max(i for i, t in enumerate(self.ops) if t == tag) if tag in self.ops else None
        if idx is None: return
        n = len(self.ops) - 1 - idx
        assert n <= 63, n
        self.a(f's_waitcnt vmcnt({n})')
        self.ops = self.ops[idx+1:]
    def drain(self):
        self.a('s_waitcnt vmcnt(0)'); self.ops = []
    def reset(self): self.ops = []

class Gen:
    def __init__(self, stop='end', stamps=False, opts=None):
        self.a = Asm(); self.vq = VQ(self.a)
        self.stop = stop; self.stamps = stamps
        self.nstamp = 0; self.stamp_names = []
        self.sc = ' sc1'; self.fsc = ' sc1'; self.fast = False; self.vinv = 4
        self.o = opts or {}

    def capture(self, fn):
        saved = self.a.lines
        self.a.lines = []
        fn()
        got = self.a.lines
        self.a.lines = saved
        return got

    def mk_srd(self, n, ptr, size, add=None):
        a = self.a
        if add is None:
            a(f's_mov_b32 s{n}, s{ptr}')
            a(f's_and_b32 s{n+1}, s{ptr+1}, 0xffff')
        else:
            a(f's_add_u32 s{n}, s{ptr}, {add}')
            a(f's_addc_u32 s{n+1}, s{ptr+1}, 0')
            a(f's_and_b32 s{n+1}, s{n+1}, 0xffff')
        a(f's_mov_b32 s{n+2}, {size}')
        a(f's_mov_b32 s{n+3}, 0x00020000')

    def dstamp(self, phase, name):
        if self.o.get('detail') == phase and getattr(self, 'cur_layer', 0) == self.o.get('dlayer', 1): self.stamp(name, False, force=True)
    def stamp(self, name='', inloop=False, force=False):
        if not self.stamps: return
        if self.o.get('detail') and not force and name not in ('start', 'end'): return
        inloop = False
        i = self.nstamp; self.nstamp += 1
        assert self.nstamp <= 24, name
        self.stamp_names.append(name)
        a = self.a
        a(f's_waitcnt lgkmcnt(0)')
        a(f's_memtime s[62:63]' if self.o.get('cyc') else f's_memrealtime s[62:63]')
        a(f's_waitcnt lgkmcnt(0)')
        if inloop:
            a('s_cmp_eq_u32 s64, 0')
            a(f's_cselect_b32 s{76+i}, s62, s{76+i}')
            a(f's_cselect_b32 s{77+i}, s{77+i}, s62')
        else:
            a(f's_mov_b32 s{76+i}, s62')

    def vload(self, dst, voff, sr, soff, imm=0, mods='', tag='ld', w='x4'):
        o = f' offset:{imm}' if imm else ''
        op = {'x4': 'buffer_load_dwordx4', 'x2': 'buffer_load_dwordx2', 'x1': 'buffer_load_dword'}[w]
        self.a(f'{op} {dst}, {voff}, {sr}, {soff} offen{o}{mods}')
        self.vq.issue(tag)
    def vstore(self, src, voff, sr, soff, imm=0, mods='', tag='st'):
        o = f' offset:{imm}' if imm else ''
        self.a(f'buffer_store_dwordx4 {src}, {voff}, {sr}, {soff} offen{o}{mods}')
        self.vq.issue(tag)

    def poll(self, vaddr, vtmp, nlanes=64, x4=False):
        a = self.a
        L = a.newlabel('poll'); D = a.newlabel('polld')
        a(f's_mov_b32 s53, 0')
        if nlanes < 64:
            a(f's_mov_b64 s[56:57], exec')
            a(f's_mov_b64 exec, {hex((1 << nlanes) - 1)}')
        a.label(L)
        if x4:
            a(f'buffer_load_dwordx4 v[{vtmp}:{vtmp+3}], v{vaddr}, {WS}, 0 offen sc1')
            a(f's_waitcnt vmcnt(0)')
            a(f'v_xor_b32 v{vtmp}, {sTAG}, v{vtmp}')
            a(f'v_xor_b32 v{vtmp+1}, {sTAG}, v{vtmp+1}')
            a(f'v_xor_b32 v{vtmp+2}, {sTAG}, v{vtmp+2}')
            a(f'v_xor_b32 v{vtmp+3}, {sTAG}, v{vtmp+3}')
            a(f'v_or_b32 v{vtmp}, v{vtmp}, v{vtmp+1}')
            a(f'v_or3_b32 v{vtmp}, v{vtmp}, v{vtmp+2}, v{vtmp+3}')
            a(f'v_cmp_ne_u32 vcc, 0, v{vtmp}')
        else:
            a(f'buffer_load_dword v{vtmp}, v{vaddr}, {WS}, 0 offen sc1')
            a(f's_waitcnt vmcnt(0)')
            a(f'v_cmp_ne_u32 vcc, {sTAG}, v{vtmp}')
        a(f's_cbranch_vccz {D}')
        a(f's_add_u32 s53, s53, 1')
        a(f's_cmp_lg_u32 {sABORT}, 0')
        a(f's_cbranch_scc1 {D}')
        a(f's_cmp_lt_u32 s53, 0x8000')
        a(f's_cbranch_scc1 {L}')
        a(f's_mov_b32 {sABORT}, 1')
        a.label(D)
        if nlanes < 64:
            a(f's_mov_b64 exec, s[56:57]')
        self.vq.reset()

    def poll_prep(self, vaddr, vt):
        a = self.a
        L = a.newlabel('poll'); D = a.newlabel('polld')
        a(f's_mov_b32 s53, 0')
        a.label(L)
        a(f'buffer_load_dwordx4 v[{vt}:{vt+3}], v{vaddr}, {WS}, 0 offen sc1')
        a(f's_waitcnt vmcnt(0)')
        for i in range(4): a(f'v_subrev_u32 v{vt+i}, {sTAG}, v{vt+i}')
        a(f'v_or_b32 v{vt+4}, v{vt}, v{vt+1}')
        a(f'v_or3_b32 v{vt+4}, v{vt+4}, v{vt+2}, v{vt+3}')
        a(f'v_cmp_lt_u32 vcc, 15, v{vt+4}')
        a(f's_cbranch_vccz {D}')
        a(f's_add_u32 s53, s53, 1')
        a(f's_cmp_lg_u32 {sABORT}, 0')
        a(f's_cbranch_scc1 {D}')
        a(f's_cmp_lt_u32 s53, 0x8000')
        a(f's_cbranch_scc1 {L}')
        a(f's_mov_b32 {sABORT}, 1')
        a.label(D)
        self.vq.reset()

    def dyn_role(self, vt):
        a = self.a
        lo, hi, t, u = vt+5, vt+6, vt+7, vt+8
        a(f'v_mov_b32 v{lo}, 0'); a(f'v_mov_b32 v{hi}, 0')
        for i in range(4):
            a(f'v_and_b32 v{t}, 3, v{vt+i}')
            a(f'v_lshlrev_b32 v{t}, 3, v{t}')
            a(f'v_lshlrev_b32 v{t}, v{t}, 1') if False else a(f'v_lshlrev_b32 v{t}, v{t}, v{vt+9}')
            a(f'v_lshrrev_b32 v{u}, 2, v{vt+i}')
            a(f'v_cmp_eq_u32 vcc, 0, v{u}')
            a.nop(2)
            a(f'v_cndmask_b32 v{vt+10}, 0, v{t}, vcc')
            a(f'v_cmp_eq_u32 vcc, 1, v{u}')
            a(f'v_add_u32 v{lo}, v{lo}, v{vt+10}')
            a.nop(1)
            a(f'v_cndmask_b32 v{vt+10}, 0, v{t}, vcc')
            a(f'v_add_u32 v{hi}, v{hi}, v{vt+10}')
        steps = ['quad_perm:[1,0,3,2] row_mask:0xf bank_mask:0xf', 'quad_perm:[2,3,0,1] row_mask:0xf bank_mask:0xf',
                 'row_half_mirror row_mask:0xf bank_mask:0xf', 'row_mirror row_mask:0xf bank_mask:0xf',
                 'row_bcast:15 row_mask:0xa bank_mask:0xf', 'row_bcast:31 row_mask:0xc bank_mask:0xf']
        a.nop(2)
        for st in steps:
            a(f'v_add_u32_dpp v{lo}, v{lo}, v{lo} {st}')
            a(f'v_add_u32_dpp v{hi}, v{hi}, v{hi} {st}')
            a.nop(1)
        a(f'v_readlane_b32 s56, v{lo}, 63')
        a(f'v_readlane_b32 s57, v{hi}, 63')
        a(f'v_lshlrev_b32 v{t}, 2, v1')
        a('s_mov_b32 s58, 0')
        for i in range(4):
            a(f'v_cmp_eq_u32 vcc, {sXCC}, v{vt+i}')
            a(f'v_add_u32 v{u}, {i}, v{t}')
            a(f'v_cmp_gt_u32 s[54:55], s2, v{u}')
            a.nop(1)
            a('s_and_b64 s[54:55], s[54:55], vcc')
            a('s_bcnt1_i32_b64 s55, s[54:55]')
            a('s_add_u32 s58, s58, s55')
        a('s_cmp_eq_u32 s56, 0x20202020')
        a(f's_cselect_b32 {sFAST}, 1, 0')
        a('s_cmp_eq_u32 s57, 0x20202020')
        a(f's_cselect_b32 {sFAST}, {sFAST}, 0')
        a(f's_cmp_eq_u32 {sABORT}, 0')
        a(f's_cselect_b32 {sFAST}, {sFAST}, 0')
        if self.o.get('force_slow'): a(f's_mov_b32 {sFAST}, 0')
        a(f's_cmp_eq_u32 {sFAST}, 1')
        a(f's_cselect_b32 {sC}, {sXCC}, {sC}')
        a(f's_cselect_b32 {sR}, s58, {sR}')

    def check_xc(self, vt, vaddr):
        a = self.a
        self.vq.wait('fw')
        L = a.newlabel('fw'); D = a.newlabel('fwd')
        a('s_mov_b32 s53, 0')
        a.label(L)
        for i in range(4): a(f'v_subrev_u32 v{vt+i}, {sTAG}, v{vt+i}')
        a(f'v_or_b32 v{vt+5}, v{vt}, v{vt+1}')
        a(f'v_or3_b32 v{vt+5}, v{vt+5}, v{vt+2}, v{vt+3}')
        a(f'v_cmp_lt_u32 vcc, 15, v{vt+5}')
        a(f's_cbranch_vccz {D}')
        a('s_add_u32 s53, s53, 1')
        a(f's_cmp_lg_u32 {sABORT}, 0')
        a(f's_cbranch_scc1 {D}')
        a('s_cmp_lt_u32 s53, 0x8000')
        a(f's_cbranch_scc0 {D}_ab')
        a(f'buffer_load_dwordx4 v[{vt}:{vt+3}], v{vaddr}, {WS}, 0 offen sc1')
        a('s_waitcnt vmcnt(0)')
        a(f's_branch {L}')
        a.label(D + '_ab')
        a(f's_mov_b32 {sABORT}, 1')
        a.label(D)
        a(f'v_mov_b32 v{vt+9}, 1')
        self.dyn_role(vt)
        self.weight_state_init()

    def check_fw(self, vt, vaddr):
        a = self.a
        self.vq.wait('fw2')
        L = a.newlabel('fw'); D = a.newlabel('fwd')
        a('s_mov_b32 s53, 0')
        a.label(L)
        for i in range(4): a(f'v_xor_b32 v{vt+i}, {sTAG}, v{vt+i}')
        a(f'v_or_b32 v{vt}, v{vt}, v{vt+1}')
        a(f'v_or3_b32 v{vt}, v{vt}, v{vt+2}, v{vt+3}')
        a(f'v_cmp_ne_u32 vcc, 0, v{vt}')
        a(f's_cbranch_vccz {D}')
        a('s_add_u32 s53, s53, 1')
        a(f's_cmp_lg_u32 {sABORT}, 0')
        a(f's_cbranch_scc1 {D}')
        a('s_cmp_lt_u32 s53, 0x8000')
        a(f's_cbranch_scc0 {D}_ab')
        a(f'buffer_load_dwordx4 v[{vt}:{vt+3}], v{vaddr}, {WS}, 0 offen sc1')
        a('s_waitcnt vmcnt(0)')
        a(f's_branch {L}')
        a.label(D + '_ab')
        a(f's_mov_b32 {sABORT}, 1')
        a.label(D)

    def flag(self, soff, sc=None):
        sc = self.fsc if sc is None else sc
        self.a(f'buffer_store_dword v{vTAG}, off, {WS}, {soff}{sc}')
        self.vq.issue('flag')

    def reduce_multi(self, regs, sdst):
        a = self.a
        steps = ['quad_perm:[1,0,3,2] row_mask:0xf bank_mask:0xf', 'quad_perm:[2,3,0,1] row_mask:0xf bank_mask:0xf',
                 'row_half_mirror row_mask:0xf bank_mask:0xf', 'row_mirror row_mask:0xf bank_mask:0xf',
                 'row_bcast:15 row_mask:0xa bank_mask:0xf', 'row_bcast:31 row_mask:0xc bank_mask:0xf']
        pad = max(0, 3 - len(regs))
        a.nop(max(0, 2 - (len(regs) - 1)) if len(regs) < 3 else 0)
        for s in steps:
            for r in regs:
                a(f'v_add_f32_dpp v{r}, v{r}, v{r} {s}')
            if pad: a.nop(pad)
        if len(regs) < 2: a.nop(1)
        for r, s in zip(regs, sdst):
            a(f'v_readlane_b32 s{s}, v{r}, 63')
        a.nop(2)

    def ln_multi(self, rows, double=False):
        a = self.a
        def pr(b): return f'v[{b}:{b+1}]'
        for (x, z, t) in rows:
            a(f'v_pk_add_f32 {pr(t)}, {pr(x)}, {pr(x+2)}')
            a(f'v_pk_mul_f32 {pr(t+2)}, {pr(x)}, {pr(x)}')
        for (x, z, t) in rows:
            a(f'v_pk_add_f32 {pr(t+4)}, {pr(x+4)}, {pr(x+6)}')
            a(f'v_pk_fma_f32 {pr(t+2)}, {pr(x+2)}, {pr(x+2)}, {pr(t+2)}')
        for (x, z, t) in rows:
            a(f'v_pk_add_f32 {pr(t)}, {pr(t)}, {pr(t+4)}')
            a(f'v_pk_fma_f32 {pr(t+2)}, {pr(x+4)}, {pr(x+4)}, {pr(t+2)}')
        for (x, z, t) in rows:
            a(f'v_add_f32 v{t}, v{t}, v{t+1}')
            a(f'v_pk_fma_f32 {pr(t+2)}, {pr(x+6)}, {pr(x+6)}, {pr(t+2)}')
        for (x, z, t) in rows:
            a(f'v_add_f32 v{t+2}, v{t+2}, v{t+3}')
        regs = []; sd = []
        for i, (x, z, t) in enumerate(rows):
            regs += [t, t+2]; sd += [58 - 2*i, 59 - 2*i]
        self.reduce_multi(regs, sd)
        for i, (x, z, t) in enumerate(rows):
            s1, s2 = sd[2*i], sd[2*i+1]
            a(f'v_mul_f32 v{t+4}, s{s1}, v{self.vinv}')
            a(f'v_mul_f32 v{t+2}, s{s2}, v{self.vinv}')
        for (x, z, t) in rows:
            a(f'v_fma_f32 v{t+2}, -v{t+4}, v{t+4}, v{t+2}')
        for (x, z, t) in rows:
            a(f'v_max_f32 v{t+2}, 0, v{t+2}')
        if double:
            for (x, z, t) in rows: a(f'v_add_f32 v{t}, 0x3727c5ac, v{t+2}')
            for (x, z, t) in rows: a(f'v_rsq_f32 v{t}, v{t}')
            if len(rows) < 2: a.nop(1)
            for (x, z, t) in rows: a(f'v_mul_f32 v{t+2}, v{t+2}, v{t}')
            for (x, z, t) in rows: a(f'v_fmaak_f32 v{t+2}, v{t+2}, v{t}, 0x3727c5ac')
            for (x, z, t) in rows: a(f'v_rsq_f32 v{t+2}, v{t+2}')
            if len(rows) < 2: a.nop(1)
            for (x, z, t) in rows: a(f'v_mul_f32 v{t+2}, v{t+2}, v{t}')
        else:
            for (x, z, t) in rows:
                a(f'v_add_f32 v{t+2}, 0x3727c5ac, v{t+2}')
            for (x, z, t) in rows:
                a(f'v_rsq_f32 v{t+2}, v{t+2}')
            if len(rows) < 2: a.nop(1)
        for (x, z, t) in rows:
            a(f'v_mul_f32 v{t+4}, v{t+4}, v{t+2}')
        for (x, z, t) in rows:
            for i in range(4):
                a(f'v_pk_fma_f32 {pr(z+2*i)}, {pr(x+2*i)}, {pr(t+2)}, {pr(t+4)} op_sel_hi:[1,0,0] neg_lo:[0,0,1] neg_hi:[0,0,1]')

    def unpack8(self, src, dst):
        a = self.a
        for i in range(4):
            a(f'v_lshlrev_b32 v{dst+2*i}, 16, v{src+i}')
            a(f'v_and_b32 v{dst+2*i+1}, 0xffff0000, v{src+i}')
    def pack8(self, src, dst):
        a = self.a
        for i in range(4):
            a(f'v_cvt_pk_bf16_f32 v{dst+i}, v{src+2*i}, v{src+2*i+1}')

    def prologue(self):
        a = self.a
        a('s_cmp_ge_u32 s2, 256')
        a('s_cbranch_scc1 L_end')
        a('s_load_dwordx16 s[16:31], s[0:1], 0')
        a('s_load_dwordx8 s[32:39], s[0:1], 64')
        a('s_load_dwordx4 s[40:43], s[0:1], 96')
        a('s_getpc_b64 s[68:69]')
        a(f's_and_b32 {sC}, s2, 7')
        a(f's_lshr_b32 {sR}, s2, 3')
        a(f's_mov_b32 {sABORT}, 0')
        a(f's_getreg_b32 {sXCC}, hwreg(HW_REG_XCC_ID)')
        a(f's_min_u32 {sXCC}, {sXCC}, 8')
        a('v_lshrrev_b32 v4, 6, v0')
        a('v_and_b32 v1, 63, v0')
        a(f'v_readfirstlane_b32 {sW}, v4')
        a(f'v_lshlrev_b32 v{vL16}, 4, v1')
        if self.o.get('prefetch', True) and self.o.get('pfearly', 1) and self.stop != 'x': self.code_prefetch()
        a('s_waitcnt lgkmcnt(0)')
        self.mk_srd(44, sWSP, WS_SIZE)
        self.stamp('start')
        if self.stamps:
            a('s_memtime s[62:63]'); a('s_waitcnt lgkmcnt(0)'); a('s_mov_b32 s100, s62')
        a(f'buffer_load_dword v{vTAG}, off, {WS}, 0 sc1')
        self.vq.issue('epoch')

    def code_prefetch(self):
        a = self.a
        a('s_and_b32 s68, s68, 0xffffff00')
        a('s_and_b32 s69, s69, 0xffff')
        a(f's_mov_b32 s{SD_}, s68'); a(f's_mov_b32 s{SD_+1}, s69')
        a(f's_mov_b32 s{SD_+2}, CODE_BYTES')
        a(f's_mov_b32 s{SD_+3}, 0x00020000')
        a('v_lshlrev_b32 v87, 7, v0')
        a(f'buffer_load_dword v254, v87, {srd(SD_)}, 0 offen'); self.vq.issue('pf')
        a('v_add_u32 v87, 0x8000, v87')
        a(f'buffer_load_dword v254, v87, {srd(SD_)}, 0 offen'); self.vq.issue('pf')

    def pretouch(self):
        a = self.a
        a(f's_min_u32 s58, {sXCC}, 7')
        a('s_lshl_b32 s53, s58, 18')
        a(f's_lshl_b32 s54, {sR}, 13')
        a('s_add_u32 s53, s53, s54')
        a('v_lshlrev_b32 v88, 7, v1')
        Ls = a.newlabel('pt')
        a(f's_cmp_lg_u32 {sW}, 3')
        a(f's_cbranch_scc1 {Ls}'); a.comment('COND_BEGIN')
        self.mk_srd(SD_, sQ, 2097152)
        a(f'buffer_load_dword v255, v88, {srd(SD_)}, s53 offen')
        self.mk_srd(SD_, sB1, 3584)
        a(f'buffer_load_dword v255, v88, {srd(SD_)}, 0 offen')
        self.mk_srd(SD_, sB2, 1024)
        a(f'buffer_load_dword v255, v88, {srd(SD_)}, 0 offen')
        self.mk_srd(SD_, sOUT, 2097152)
        a(f'buffer_load_dword v255, off, {srd(SD_)}, s53')
        a('v_lshlrev_b32 v87, 21, v1')
        a('v_min_u32 v87, 0x1c00000, v87')
        a(f'buffer_load_dword v255, v87, {WS}, 0 offen')
        a.label(Ls); a.comment('COND_END')
        if self.o.get('ytouch', 0):
            Ls = a.newlabel('pt2')
            a(f's_cmp_lg_u32 {sW}, 2')
            a(f's_cbranch_scc1 {Ls}'); a.comment('COND_BEGIN')
            a(f's_add_u32 s53, s53, {Y0}')
            a(f'buffer_load_dword v255, v88, {WS}, s53 offen')
            a.label(Ls); a.comment('COND_END')
            Ls = a.newlabel('pt3')
            a(f's_cmp_lg_u32 {sW}, 1')
            a(f's_cbranch_scc1 {Ls}'); a.comment('COND_BEGIN')
            a(f's_lshr_b32 s53, {sR}, 3')
            a('s_lshl_b32 s53, s53, 5')
            a('v_and_b32 v87, 31, v1')
            a('v_add_u32 v87, s53, v87')
            a('v_lshrrev_b32 v88, 2, v87')
            a('v_lshlrev_b32 v88, 3, v88')
            a('v_and_b32 v87, 3, v87')
            a('v_add_u32 v87, v87, v88')
            a('v_lshrrev_b32 v88, 5, v1')
            a('v_lshl_add_u32 v87, v88, 2, v87')
            a('s_lshl_b32 s53, s58, 8')
            a('v_add_u32 v87, s53, v87')
            a('v_lshlrev_b32 v87, 10, v87')
            a(f's_and_b32 s53, {sR}, 7')
            a('s_lshl_b32 s53, s53, 7')
            a(f's_add_u32 s53, s53, {X2}')
            a(f'buffer_load_dword v255, v87, {WS}, s53 offen')
            a.label(Ls); a.comment('COND_END')

    def pretouch_late(self):
        a = self.a
        a(f's_lshl_b32 s53, {sC}, 18')
        a(f's_lshl_b32 s54, {sR}, 13')
        a('s_add_u32 s53, s53, s54')
        a('v_lshlrev_b32 v8, 7, v1')
        Ls = a.newlabel('pt')
        a(f's_cmp_lg_u32 {sW}, 3')
        a(f's_cbranch_scc1 {Ls}'); a.comment('COND_BEGIN')
        self.mk_srd(SD_, sQ, 2097152)
        a(f'buffer_load_dword v255, v8, {srd(SD_)}, s53 offen')
        self.mk_srd(SD_, sB1, 3584)
        a(f'buffer_load_dword v255, v8, {srd(SD_)}, 0 offen')
        self.mk_srd(SD_, sB2, 1024)
        a(f'buffer_load_dword v255, v8, {srd(SD_)}, 0 offen')
        self.mk_srd(SD_, sOUT, 2097152)
        a(f'buffer_load_dword v255, off, {srd(SD_)}, s53')
        a('v_lshlrev_b32 v9, 21, v1')
        a('v_min_u32 v9, 0x1c00000, v9')
        a(f'buffer_load_dword v255, v9, {WS}, 0 offen')
        a.label(Ls); a.comment('COND_END')
        if self.o.get('ytouch', 0):
            Ls = a.newlabel('pt2')
            a(f's_cmp_lg_u32 {sW}, 2')
            a(f's_cbranch_scc1 {Ls}'); a.comment('COND_BEGIN')
            a(f's_add_u32 s53, s53, {Y0}')
            a(f'buffer_load_dword v255, v8, {WS}, s53 offen')
            a.label(Ls); a.comment('COND_END')
            Ls = a.newlabel('pt3')
            a(f's_cmp_lg_u32 {sW}, 1')
            a(f's_cbranch_scc1 {Ls}'); a.comment('COND_BEGIN')
            a(f's_lshr_b32 s53, {sR}, 3')
            a('s_lshl_b32 s53, s53, 5')
            a('v_and_b32 v9, 31, v1')
            a('v_add_u32 v9, s53, v9')
            a('v_lshrrev_b32 v10, 2, v9')
            a('v_lshlrev_b32 v10, 3, v10')
            a('v_and_b32 v9, 3, v9')
            a('v_add_u32 v9, v9, v10')
            a('v_lshrrev_b32 v10, 5, v1')
            a('v_lshl_add_u32 v9, v10, 2, v9')
            a(f's_lshl_b32 s53, {sC}, 8')
            a('v_add_u32 v9, s53, v9')
            a('v_lshlrev_b32 v9, 10, v9')
            a(f's_and_b32 s53, {sR}, 7')
            a('s_lshl_b32 s53, s53, 7')
            a(f's_add_u32 s53, s53, {X2}')
            a(f'buffer_load_dword v255, v9, {WS}, s53 offen')
            a.label(Ls); a.comment('COND_END')

    def prep(self):
        a = self.a; vq = self.vq
        a('v_lshrrev_b32 v8, 3, v0')
        a('v_and_b32 v9, 7, v0')
        a('v_lshlrev_b32 v8, 15, v8')
        a('v_lshl_add_u32 v8, v9, 4, v8')
        a(f's_lshl_b32 s53, {sC}, 5')
        a(f's_add_u32 s53, s53, {sR}')
        a('s_lshl_b32 s53, s53, 7')
        a(f's_add_u32 s53, s53, {GB}')
        for i in range(4): a(f'v_mov_b32 v{160+i}, -1')
        self.clear_g = True
        HR = 56
        def hblock():
            a(f's_lshl_b32 s53, {sC}, 5')
            a(f's_add_u32 s53, s53, {sR}')
            a('s_lshl_b32 s53, s53, 1')
            a(f's_lshr_b32 s54, {sW}, 1')
            a('s_add_u32 s53, s53, s54')
            a('s_lshl_b32 s53, s53, 12')
            self.mk_srd(SC_, sSSM, 4096, add='s53')
            a('v_and_b32 v54, 127, v0')
            a('v_lshlrev_b32 v51, 4, v54')
            a('v_subrev_u32 v52, 64, v51')
            a('v_subrev_u32 v53, 48, v51')
            HR = 56
            for rho in range(3):
                if rho:
                    a(f'v_add_u32 v52, 2048, v52')
                    a(f'v_add_u32 v53, 2048, v53')
                self.vload(f'v[{HR+8*rho}:{HR+8*rho+3}]', 'v52', srd(SC_), 0, tag='hr')
                self.vload(f'v[{HR+8*rho+4}:{HR+8*rho+7}]', 'v53', srd(SC_), 0, tag='hr')

        if self.o.get('hrfirst', 0): hblock()
        a('v_lshrrev_b32 v4, 5, v0')
        a('v_and_b32 v5, 31, v0')
        a(f's_lshl_b32 s53, {sR}, 16')
        a(f's_lshl_b32 s54, {sC}, 7')
        a('s_add_u32 s53, s53, s54')
        a('v_lshlrev_b32 v6, 13, v4')
        a('v_lshl_add_u32 v6, v5, 2, v6')
        a('v_add_u32 v6, s53, v6')
        a('v_subrev_u32 v7, 3072, v6')
        a('v_add_u32 v8, 4096, v6')
        self.mk_srd(SA, sK, 2097152)
        self.mk_srd(SB, sV, 2097152)
        self.mk_srd(SC_, sSK, 4096)
        K = 10
        for i in range(3): self.vload(f'v{K+i}', 'v7', srd(SA), 0, 1024*i, w='x1', tag='kv')
        for i in range(4): self.vload(f'v{K+3+i}', 'v6', srd(SA), 0, 1024*i, w='x1', tag='kv')
        for i in range(4): self.vload(f'v{K+7+i}', 'v8', srd(SA), 0, 1024*i, w='x1', tag='kv')
        V = 21
        for i in range(4): self.vload(f'v{V+i}', 'v6', srd(SB), 0, 1024*i, w='x1', tag='kv')
        for i in range(4): self.vload(f'v{V+4+i}', 'v8', srd(SB), 0, 1024*i, w='x1', tag='kv')
        a(f's_lshl_b32 s53, {sC}, 9')
        a('v_lshlrev_b32 v9, 4, v5')
        a('v_add_u32 v9, s53, v9')
        self.vload('v[30:33]', 'v9', srd(SC_), 0, tag='kv')
        if self.o.get('kvbar', 0): a('s_barrier')
        if not self.o.get('hrfirst', 0): hblock()
        if self.o.get('prefetch', True) and not self.o.get('pfearly', 1): self.code_prefetch()
        a(f's_lshl_b32 s53, {sC}, 5')
        a(f's_add_u32 s53, s53, {sR}')
        a('s_lshl_b32 s53, s53, 7')
        a(f's_add_u32 s53, s53, {GB}')
        a('v_lshrrev_b32 v85, 3, v0')
        a('v_and_b32 v86, 7, v0')
        a('v_lshlrev_b32 v85, 15, v85')
        a('v_lshl_add_u32 v85, v86, 4, v85')
        self.vstore('v[160:163]', 'v85', WS, 's53', 0, ' sc1', tag='clr')
        a(f's_add_u32 s53, s53, {32*32768}')
        self.vstore('v[160:163]', 'v85', WS, 's53', 0, ' sc1', tag='clr')
        a(f's_lshl_b32 s53, {sC}, 5')
        a(f's_add_u32 s53, s53, {sR}')
        a('s_lshl_b32 s53, s53, 2')
        a(f's_add_u32 s54, s{sD}, s53')
        a(f's_addc_u32 s55, s{sD+1}, 0')
        a('s_load_dword s60, s[54:55], 0')
        if self.o.get('pretouch', 2) == 2: self.pretouch()

        a('v_mov_b32 v80, 0'); a('v_mov_b32 v81, 0'); a('v_mov_b32 v82, 0'); a('v_mov_b32 v83, 0')
        a('v_lshlrev_b32 v84, 4, v0')
        a('v_cmp_gt_u32 vcc, 90, v0')
        a('s_and_saveexec_b64 s[56:57], vcc')
        a(f'ds_write_b128 v84, v[80:83] offset:{L_XB + 64*96}')
        a(f'ds_write_b128 v84, v[80:83] offset:{L_XB + XBS + 64*96}')
        a('s_mov_b64 exec, s[56:57]')
        if self.o.get('toepearly', 0):
            vq.wait('hr')
            a('v_and_b32 v54, 127, v0')
            a('v_lshlrev_b32 v50, 4, v54')
            a(f's_lshr_b32 s53, {sW}, 1')
            a(f's_mul_i32 s53, s53, {8*CS}')
            a(f's_add_u32 s53, s53, {L_TOEP}')
            a('v_add_u32 v50, s53, v50')
            for rho in range(3):
                D = HR + 8*rho
                if rho == 2:
                    a('v_cmp_gt_u32 vcc, 3, v54')
                    a('s_and_saveexec_b64 s[56:57], vcc')
                O = 100
                for k in range(7): a(f'v_alignbit_b32 v{O+k}, v{D+k+1}, v{D+k}, 16')
                for k in range(1, 7): a(f'v_alignbit_b32 v{110+k-1}, v{D+k+1}, v{D+k}, 16')
                for k in range(1, 7): a(f'v_mov_b32 v{120+k-1}, v{D+k}')
                off = rho*2048
                srcs = [O+0, 120, 110, D+2, O+2, 122, 112, D+4]
                for sg in range(8):
                    a(f'ds_write_b128 v50, v[{srcs[sg]}:{srcs[sg]+3}] offset:{sg*CS + off}')
                if rho < 2: a.nop(1)
                if rho == 2: a('s_mov_b64 exec, s[56:57]')
            self.stamp('toeplitz done')
        vq.wait('kv')
        self.stamp('kv loaded')
        if self.o.get('pretouch', 2) == 3: self.pretouch()
        a(f'v_add_u32 v{vTAG}, 16, v{vTAG}')
        Wp = 90
        a(f'v_lshlrev_b32 v{Wp+0}, 16, v30'); a(f'v_lshlrev_b32 v{Wp+1}, 16, v32')
        a(f'v_readfirstlane_b32 {sTAG}, v{vTAG}')
        a(f'v_and_b32 v{Wp+2}, 0xffff0000, v30'); a(f'v_and_b32 v{Wp+3}, 0xffff0000, v32')
        a(f'v_lshlrev_b32 v{Wp+4}, 16, v31'); a(f'v_lshlrev_b32 v{Wp+5}, 16, v33')
        a(f'v_and_b32 v{Wp+6}, 0xffff0000, v31'); a(f'v_and_b32 v{Wp+7}, 0xffff0000, v33')
        Lx = a.newlabel('noxc')
        a(f's_cmp_lg_u32 {sW}, 0')
        a(f's_cbranch_scc1 {Lx}'); a.comment('COND_BEGIN')
        a('s_lshl_b32 s53, s2, 2')
        a(f's_add_u32 s53, s53, {F_XC}')
        a(f'v_add_u32 v85, {sXCC}, v{vTAG}')
        a(f'buffer_store_dword v85, off, {WS}, s53 sc1')
        a.label(Lx); a.comment('COND_END')
        KU = 100
        for i in range(11):
            a(f'v_lshlrev_b32 v{KU+2*i}, 16, v{K+i}')
            a(f'v_and_b32 v{KU+2*i+1}, 0xffff0000, v{K+i}')
        VU = 122
        for i in range(8):
            a(f'v_lshlrev_b32 v{VU+2*i}, 16, v{V+i}')
            a(f'v_and_b32 v{VU+2*i+1}, 0xffff0000, v{V+i}')
        AC = 140
        def pr(b): return f'v[{b}:{b+1}]'
        for t, wq in enumerate([6, 4, 2, 0]):
            for i in range(8):
                if t == 0: a(f'v_pk_mul_f32 {pr(AC+2*i)}, {pr(KU+2*(i+0))}, {pr(Wp+6)}')
                else: a(f'v_pk_fma_f32 {pr(AC+2*i)}, {pr(KU+2*(i+t))}, {pr(Wp+wq)}, {pr(AC+2*i)}')
        for i in range(8):
            a(f'v_pk_mul_f32 {pr(AC+2*i)}, {pr(AC+2*i)}, {pr(VU+2*i)}')
        for j in range(4):
            hi, lo = 7 - 2*j - 1, 7 - 2*j
            a(f'v_cvt_pk_bf16_f32 v{160+j}, v{AC+2*lo}, v{AC+2*hi}')
            a(f'v_cvt_pk_bf16_f32 v{164+j}, v{AC+2*lo+1}, v{AC+2*hi+1}')
        a('v_sub_u32 v85, 7, v4')
        a('v_and_b32 v9, 7, v5')
        a('v_xor_b32 v85, v85, v9')
        a('v_lshlrev_b32 v85, 4, v85')
        a('v_lshl_add_u32 v85, v5, 8, v85')
        a(f'ds_write_b128 v85, v[160:163] offset:{L_KVT}')
        a(f'ds_write_b128 v85, v[164:167] offset:{L_KVT+128}')
        a('v_lshrrev_b32 v85, 3, v0')
        a('v_and_b32 v9, 7, v0')
        a('v_bfe_u32 v29, v85, 1, 3')
        a('v_xor_b32 v29, v29, v9')
        a('v_lshlrev_b32 v29, 4, v29')
        a('v_lshl_add_u32 v29, v85, 7, v29')
        a(f's_lshl_b32 s53, {sC}, 18')
        a(f's_lshl_b32 s54, {sR}, 7')
        a('s_sub_u32 s53, s53, s54')
        a(f's_add_u32 s53, s53, {XR + 3968}')
        a('v_lshlrev_b32 v50, 12, v85')
        a('v_lshl_add_u32 v50, v9, 4, v50')
        a('v_add_u32 v51, 0x20000, v50')
        a('s_waitcnt lgkmcnt(0)')
        a('s_barrier')
        a(f'ds_read_b128 v[160:163], v29 offset:{L_KVT}')
        a(f'ds_read_b128 v[164:167], v29 offset:{L_KVT+4096}')
        a('s_waitcnt lgkmcnt(1)')
        self.vstore('v[160:163]', 'v50', WS, 's53', 0, ' sc1', tag='xr')
        a('s_waitcnt lgkmcnt(0)')
        self.vstore('v[164:167]', 'v51', WS, 's53', 0, ' sc1', tag='xr')
        self.stamp('xr stored')
        self.mk_srd(SA, sW1, 512*1792*2)
        self.mk_srd(SB, sW2, 512*1792*2)
        a(f's_lshl_b32 s53, {sR}, 4')
        a(f's_lshl_b32 s54, {sW}, 2')
        a('s_add_u32 s53, s53, s54')
        a('s_mul_i32 s53, s53, 3584')
        a(f's_mul_i32 s54, {sC}, 448')
        a('s_add_u32 s53, s53, s54')
        a('v_lshrrev_b32 v34, 4, v1')
        a('v_and_b32 v9, 15, v1')
        a('v_mul_u32_u24 v29, 3584, v34')
        a('v_lshl_add_u32 v29, v9, 4, v29')
        a('v_add_u32 v29, s53, v29')
        self.vload('v[196:199]', 'v29', srd(SA), 0, tag='wr')
        self.vload('v[200:203]', 'v29', srd(SA), 0, 256, tag='wr')
        a('s_lshr_b32 s53, s2, 1')
        a('s_lshl_b32 s53, s53, 14')
        a('s_and_b32 s54, s2, 1')
        a('s_lshl_b32 s54, s54, 9')
        a('s_add_u32 s53, s53, s54')
        a('v_lshrrev_b32 v42, 4, v0')
        a('v_lshlrev_b32 v50, 10, v42')
        a('v_lshl_add_u32 v50, v9, 4, v50')
        a('v_add_u32 v50, s53, v50')
        self.vload('v[204:207]', 'v50', srd(SB), 0, tag='wr')
        self.vload('v[208:211]', 'v50', srd(SB), 0, 256, tag='wr')
        vq.wait('xr')
        a('s_barrier')
        Lnf = a.newlabel('noflag')
        a(f's_cmp_lg_u32 {sW}, 0')
        a(f's_cbranch_scc1 {Lnf}'); a.comment('COND_BEGIN')
        a(f's_lshl_b32 s53, {sC}, 5')
        a(f's_add_u32 s53, s53, {sR}')
        a('s_lshl_b32 s53, s53, 2')
        a(f's_add_u32 s53, s53, {F_PREP}')
        a(f'buffer_store_dword v{vTAG}, off, {WS}, s53 sc1')
        a.label(Lnf); a.comment('COND_END')
        self.stamp('prep published')
        if not self.o.get('toepearly', 0):
            a('v_and_b32 v54, 127, v0')
            a('v_lshlrev_b32 v50, 4, v54')
            a(f's_lshr_b32 s53, {sW}, 1')
            a(f's_mul_i32 s53, s53, {8*CS}')
            a(f's_add_u32 s53, s53, {L_TOEP}')
            a('v_add_u32 v50, s53, v50')
            for rho in range(3):
                D = HR + 8*rho
                if rho == 2:
                    a('v_cmp_gt_u32 vcc, 3, v54')
                    a('s_and_saveexec_b64 s[56:57], vcc')
                O = 100
                for k in range(7): a(f'v_alignbit_b32 v{O+k}, v{D+k+1}, v{D+k}, 16')
                for k in range(1, 7): a(f'v_alignbit_b32 v{110+k-1}, v{D+k+1}, v{D+k}, 16')
                for k in range(1, 7): a(f'v_mov_b32 v{120+k-1}, v{D+k}')
                off = rho*2048
                srcs = [O+0, 120, 110, D+2, O+2, 122, 112, D+4]
                for sg in range(8):
                    a(f'ds_write_b128 v50, v[{srcs[sg]}:{srcs[sg]+3}] offset:{sg*CS + off}')
                if rho < 2: a.nop(1)
                if rho == 2: a('s_mov_b64 exec, s[56:57]')
            self.stamp('toeplitz done')

    def w_transpose(self):
        a = self.a; vq = self.vq
        vq.wait('wr')
        a('v_lshrrev_b32 v212, 4, v0')
        a('v_and_b32 v213, 15, v0')
        a('v_mul_u32_u24 v214, 448, v212')
        a('v_lshl_add_u32 v214, v213, 4, v214')
        a(f'ds_write_b128 v214, v[196:199] offset:{L_W1R}')
        a('v_cmp_gt_u32 vcc, 12, v213')
        a('s_and_saveexec_b64 s[56:57], vcc')
        a(f'ds_write_b128 v214, v[200:203] offset:{L_W1R+256}')
        a('s_mov_b64 exec, s[56:57]')
        a('v_mul_u32_u24 v214, 576, v212')
        a('v_lshl_add_u32 v214, v213, 4, v214')
        a(f'ds_write_b128 v214, v[204:207] offset:{L_W2R}')
        a(f'ds_write_b128 v214, v[208:211] offset:{L_W2R+256}')
        a('v_lshrrev_b32 v212, 5, v1')
        a('v_bfe_u32 v213, v1, 2, 2')
        a('v_bfe_u32 v214, v1, 4, 1')
        a('v_and_b32 v215, 3, v1')
        a('v_lshlrev_b32 v215, 3, v215')
        a('v_lshl_add_u32 v215, v214, 5, v215')
        a('v_lshl_add_u32 v216, v212, 3, v213')
        a('v_mul_u32_u24 v216, 448, v216')
        a('v_add_u32 v216, v216, v215')
        a(f's_lshl_b32 s54, {sW}, 6')
        a('v_add_u32 v216, s54, v216')
        a('v_lshl_add_u32 v217, v212, 2, v213')
        a('v_mul_u32_u24 v217, 576, v217')
        a('v_add_u32 v217, v217, v215')
        a('v_add_u32 v217, s54, v217')
        a('s_waitcnt lgkmcnt(0)')
        a('s_barrier')
        a(f'ds_read_b64_tr_b16 v[168:169], v216 offset:{L_W1R}')
        a(f'ds_read_b64_tr_b16 v[170:171], v216 offset:{L_W1R + 4*448}')
        a(f'ds_read_b64_tr_b16 v[172:173], v216 offset:{L_W1R + 256}')
        a(f'ds_read_b64_tr_b16 v[174:175], v216 offset:{L_W1R + 4*448 + 256}')
        a(f'ds_read_b64_tr_b16 v[176:177], v217 offset:{L_W2R}')
        a(f'ds_read_b64_tr_b16 v[178:179], v217 offset:{L_W2R + 8*576}')
        a(f'ds_read_b64_tr_b16 v[180:181], v217 offset:{L_W2R + 256}')
        a(f'ds_read_b64_tr_b16 v[182:183], v217 offset:{L_W2R + 8*576 + 256}')
        a(f's_mul_i32 s53, {sC}, 7')
        a(f's_add_u32 s53, s53, {sW}')
        a(f's_mul_i32 s54, {sR}, 56')
        a('s_add_u32 s53, s53, s54')
        a('s_lshl_b32 s53, s53, 10')
        a(f's_add_u32 s53, s53, {W1F}')
        a(f's_add_u32 s55, s53, {4*1024}')
        a('s_lshl_b32 s57, s2, 12')
        a(f's_add_u32 s57, s57, {DUMMY2}')
        a(f's_cmp_eq_u32 {sW}, 3')
        a('s_cselect_b32 s55, s57, s55')
        a('s_waitcnt lgkmcnt(4)')
        self.vstore('v[168:171]', f'v{vL16}', WS, 's53', 0, ' sc1', tag='wf')
        self.vstore('v[172:175]', f'v{vL16}', WS, 's55', 0, ' sc1', tag='wf')
        a('s_lshr_b32 s54, s2, 1')
        a('s_mul_i32 s55, s54, 9363')
        a('s_lshr_b32 s55, s55, 18')
        a('s_mul_i32 s56, s55, 28')
        a('s_sub_u32 s54, s54, s56')
        a('s_lshl_b32 s54, s54, 2')
        a('s_add_u32 s54, s54, s55')
        a('s_lshl_b32 s54, s54, 4')
        a('s_and_b32 s53, s2, 1')
        a('s_lshl_b32 s53, s53, 3')
        a(f's_add_u32 s53, s53, {sW}')
        a('s_add_u32 s53, s53, s54')
        a('s_lshl_b32 s53, s53, 10')
        a(f's_add_u32 s53, s53, {W2F}')
        a('s_cmp_ge_u32 s2, 224')
        a('s_cselect_b32 s53, s57, s53')
        a('s_waitcnt lgkmcnt(0)')
        self.vstore('v[176:179]', f'v{vL16}', WS, 's53', 0, ' sc1', tag='wf')
        a(f's_add_u32 s54, s53, {4*1024}')
        a('s_cselect_b32 s53, s57, s54') if False else None
        a('s_cmp_ge_u32 s2, 224')
        a('s_cselect_b32 s53, s57, s54')
        self.vstore('v[180:183]', f'v{vL16}', WS, 's53', 0, ' sc1', tag='wf')

    def dummy_stores(self):
        a = self.a
        Ls = a.newlabel('nods')
        a(f's_cmp_eq_u32 {sFAST}, 0')
        a(f's_cbranch_scc1 {Ls}'); a.comment('COND_BEGIN')
        D = 'v[192:195]'
        if self.o.get('dsH', 1):
            a(f's_lshl_b32 s53, {sC}, 1')
            a(f's_add_u32 s53, s53, {sT1}')
            a('s_mul_i32 s53, s53, 448')
            a(f's_lshl_b32 s54, {sJ}, 2')
            a(f's_add_u32 s54, s54, {sW}')
            a('s_min_u32 s54, s54, 55')
            a('s_lshl_b32 s54, s54, 1')
            a('s_add_u32 s53, s53, s54')
            a('s_lshl_b32 s53, s53, 10')
            a(f's_add_u32 s53, s53, {H0}')
            for u in range(4):
                a(f'buffer_store_dwordx4 {D}, v{vL16}, {WS}, s53 offen')
                a(f'buffer_store_dwordx4 {D}, v{vL16}, {WS}, s53 offen offset:1024')
                if u < 3: a(f's_add_u32 s53, s53, {112*1024}')
        a(f's_lshl_b32 s53, {sC}, 8')
        a(f's_lshl_b32 s54, {sR}, 3')
        a('s_add_u32 s53, s53, s54')
        a(f's_add_u32 s53, s53, {sW}')
        a('s_lshl_b32 s53, s53, 10')
        a(f's_add_u32 s53, s53, {Y0}')
        a(f'buffer_store_dwordx4 {D}, v{vL16}, {WS}, s53 offen')
        a('s_add_u32 s53, s53, 4096')
        a(f'buffer_store_dwordx4 {D}, v{vL16}, {WS}, s53 offen')
        a('v_lshrrev_b32 v8, 3, v0')
        a(f's_lshr_b32 s53, {sR}, 3')
        a('s_lshl_b32 s53, s53, 5')
        a('v_add_u32 v8, s53, v8')
        a('v_lshrrev_b32 v9, 2, v8')
        a('v_lshlrev_b32 v9, 3, v9')
        a('v_and_b32 v8, 3, v8')
        a('v_add_u32 v8, v8, v9')
        a(f's_lshl_b32 s53, {sC}, 8')
        a('v_add_u32 v8, s53, v8')
        a('v_lshlrev_b32 v8, 10, v8')
        a('v_and_b32 v9, 7, v0')
        a('v_lshl_add_u32 v8, v9, 4, v8')
        a(f's_and_b32 s53, {sR}, 7')
        a('s_lshl_b32 s53, s53, 7')
        a(f's_add_u32 s53, s53, {X2}')
        a(f'buffer_store_dwordx4 {D}, v8, {WS}, s53 offen')
        a('s_add_u32 s53, s53, 4096')
        a(f'buffer_store_dwordx4 {D}, v8, {WS}, s53 offen')
        a.label(Ls); a.comment('COND_END')

    def weight_state_init(self):
        a = self.a
        a(f's_cmp_ge_u32 {sR}, 14')
        a(f's_cselect_b32 {sT1}, 1, 0')
        a(f's_mul_i32 s53, {sT1}, 14')
        a(f's_sub_u32 {sJ}, {sR}, s53')
        a(f's_lshl_b32 s14, {sJ}, 2')
        a(f's_add_u32 s14, s14, {sW}')
        a('s_min_u32 s14, s14, 55')
        a('s_lshl_b32 s14, s14, 10')
        a(f's_add_u32 s14, s14, {W1F}')
        a(f's_and_b32 s15, {sR}, 7')
        a('s_lshl_b32 s15, s15, 1')
        a(f's_lshl_b32 s53, {sW}, 4')
        a('s_add_u32 s15, s15, s53')
        a('s_lshl_b32 s15, s15, 10')
        a(f's_add_u32 s15, s15, {W2F}')
        self.wlist = [('w1', k) for k in range(32)] + [('w2', nt, i) for i in range(28) for nt in range(2)]
    def weight_batch(self, n):
        a = self.a
        for _ in range(n):
            if not self.wlist: return
            it = self.wlist.pop(0)
            if it[0] == 'w1':
                k = it[1]
                a(f's_add_u32 s13, s14, {k*56*1024}')
                self.vload(W1reg(k), f'v{vL16}', WS, 's13', 0, ' sc1', tag='w')
            else:
                _, nt, i = it
                a(f's_add_u32 s13, s15, {i*64*1024}')
                self.vload(W2reg(nt, i), f'v{vL16}', WS, 's13', nt*1024, ' sc1', tag='w')

    def conv(self):
        a = self.a; vq = self.vq; o = self.o
        a(f's_lshl_b32 s53, {sC}, 7')
        a(f's_add_u32 s53, s53, {F_PREP}')
        a('v_and_b32 v5, 31, v1')
        a('v_lshlrev_b32 v5, 2, v5')
        a('v_add_u32 v5, s53, v5')
        self.poll(5, 8)
        self.stamp('prep flags seen')
        a(f's_lshl_b32 s53, {sC}, 5')
        a(f's_add_u32 s53, s53, {sR}')
        a('s_lshl_b32 s61, s53, 7')
        a('s_lshl_b32 s53, s53, 13')
        a(f's_add_u32 s53, s53, {XR}')
        a('v_lshlrev_b32 v5, 4, v0')
        self.vload('v[184:187]', 'v5', WS, 's53', 0, ' sc1', tag='x0')
        a('s_add_u32 s53, s53, 4096')
        self.vload('v[188:191]', 'v5', WS, 's53', 0, ' sc1', tag='x1')
        a(f'v_add_u32 v132, {F_XC}, v{vL16}')
        a(f'buffer_load_dwordx4 v[128:131], v132, {WS}, 0 offen sc1'); vq.issue('fw')
        if not o.get('wtloop', 0): self.w_transpose()
        a('v_lshrrev_b32 v4, 2, v0')
        a('v_mul_u32_u24 v4, 96, v4')
        a('v_and_b32 v5, 3, v0')
        a('v_lshl_add_u32 v4, v5, 4, v4')
        vq.wait('x0')
        a(f'ds_write_b128 v4, v[184:187] offset:{L_XB}')
        vq.wait('x1')
        a(f'ds_write_b128 v4, v[188:191] offset:{L_XB + XBS}')
        a(f's_lshr_b32 s67, {sW}, 1')
        a(f's_and_b32 s59, {sW}, 1')
        a('v_and_b32 v4, 15, v1')
        a('v_lshrrev_b32 v5, 4, v1')
        a('v_and_b32 v6, 7, v4')
        a(f'v_mul_u32_u24 v6, {CS}, v6')
        a('v_and_b32 v7, 8, v4')
        a('v_lshl_add_u32 v7, v5, 3, v7')
        a('v_lshl_add_u32 v6, v7, 1, v6')
        a(f's_mul_i32 s55, s67, {8*CS}')
        a('s_lshl_b32 s56, s59, 5')
        a('s_add_u32 s55, s55, s56')
        a(f's_add_u32 s55, s55, {L_TOEP}')
        a('v_add_u32 v6, s55, v6')
        a('v_sub_u32 v7, 15, v4')
        a('v_mul_u32_u24 v7, 96, v7')
        a('v_lshl_add_u32 v7, v5, 4, v7')
        a(f's_mul_i32 s55, s67, {XBS}')
        a(f's_add_u32 s55, s55, {L_XB}')
        a('v_add_u32 v7, s55, v7')
        a('s_waitcnt lgkmcnt(0)')
        a('s_barrier')
        if self.o.get('dstore', 0): self.dummy_stores()
        if self.o.get('pretouch', 2) == 1: self.pretouch_late()
        for i in range(16): a(f'v_mov_b32 v{16+i}, 0')
        self.stamp('x in lds')
        wb1 = o.get('wb1', 12)
        def Er(m, j): b = 32 + 32*(m % 3) + 4*j; return f'v[{b}:{b+3}]'
        def Fr(m, j): b = 32 + 32*(m % 3) + 16 + 4*j; return f'v[{b}:{b+3}]'
        def gloads(m):
            l = []
            for j in range(4):
                e = 16*j - m
                l.append(f'ds_read_b128 {Fr(m,j)}, v6 offset:{64*(m+16*j)}')
                l.append(f'ds_read_b128 {Er(m,j)}, v7 offset:{(48-e)*96}')
            return l
        for l in gloads(0): a(l)
        for l in gloads(1)[:7]: a(l)
        first_extra = gloads(1)[7:]
        wt1, wt2 = [], []
        if o.get('wtloop', 0):
            wt = self.capture(self.w_transpose)
            bi = [i for i, l in enumerate(wt) if l.startswith('s_barrier')][0]
            wt1, wt2 = wt[:bi+1], wt[bi+1:]
        xc = self.capture(lambda: self.check_xc(128, 132))
        ei = [i for i, l in enumerate(xc) if 'SPIN_END' in l][0]
        xc_head, xc_rest = xc[:ei+1], xc[ei+1:]
        fillers = []
        for m in range(16):
            nxt = (first_extra if m == 0 else []) + (gloads(m+2) if m + 2 < 16 else [])
            if m == 1:
                for l in wt1: a.lines.append(l)
            if m == 2:
                for l in wt2: a.lines.append(l)
            if m == o.get('xcslot', 1):
                for l in xc_head: a.lines.append(l)
                fillers = list(xc_rest)
            if m == 0: a('s_waitcnt lgkmcnt(7)')
            elif m < 15: a('s_waitcnt lgkmcnt(8)')
            else: a('s_waitcnt lgkmcnt(0)')
            mf = []
            for j in range(4):
                for c in range(j, 4):
                    mf.append(f'v_mfma_f32_16x16x32_bf16 v[{16+4*c}:{19+4*c}], {Fr(m,j)}, {Er(m,c-j)}, v[{16+4*c}:{19+4*c}]')
            if m == o.get('fwpub', 4):
                vq.wait('wf')
                a('s_barrier')
                Lnf = a.newlabel('noflag')
                a(f's_cmp_lg_u32 {sW}, 0')
                a(f's_cbranch_scc1 {Lnf}'); a.comment('COND_BEGIN')
                a('s_lshl_b32 s53, s2, 2')
                a(f's_add_u32 s53, s53, {F_W}')
                a(f'buffer_store_dword v{vTAG}, off, {WS}, s53 sc1')
                a.label(Lnf); a.comment('COND_END')
            if m == o.get('fwld', 13):
                a(f'v_add_u32 v132, {F_W}, v{vL16}')
                a(f'buffer_load_dwordx4 v[128:131], v132, {WS}, 0 offen sc1'); vq.issue('fw2')
            for i, ins in enumerate(mf):
                a(ins)
                if nxt: a(nxt.pop(0))
                for _ in range(2):
                    if fillers: a.lines.append(fillers.pop(0))
            assert not nxt
        for l in fillers: a.lines.append(l)
        self.stamp('conv mfma done')
        a('v_sub_u32 v8, 15, v4')
        a('v_mul_u32_u24 v8, 96, v8')
        a('v_lshlrev_b32 v9, 3, v5')
        a('v_sub_u32 v8, v8, v9')
        a(f's_mul_i32 s55, s67, {XBS}')
        a(f's_add_u32 s55, s55, {L_XB + 56}')
        a('s_lshl_b32 s56, s59, 5')
        a('s_sub_u32 s55, s55, s56')
        a('v_add_u32 v8, s55, v8')
        for c in range(4):
            a(f'ds_read_b64 v[{48+2*c}:{49+2*c}], v8 offset:{(48-16*c)*96}')
        a('s_lshl_b32 s55, s60, 16')
        a('s_and_b32 s56, s60, 0xffff0000')
        a('s_cmp_eq_u32 s67, 0')
        a('s_cselect_b32 s55, s55, s56')
        a('v_lshrrev_b32 v9, 1, v5')
        a('v_lshlrev_b32 v9, 1, v9')
        a('s_lshl_b32 s56, s59, 2')
        a('s_add_u32 s56, s56, s67')
        a('v_add_u32 v9, s56, v9')
        a('v_and_b32 v10, 7, v4')
        a('v_xor_b32 v9, v9, v10')
        a('v_lshlrev_b32 v9, 4, v9')
        a('v_lshl_add_u32 v9, v4, 7, v9')
        a('v_and_b32 v10, 1, v5')
        a('v_lshl_add_u32 v9, v10, 3, v9')
        a('s_waitcnt lgkmcnt(0)')
        for c in range(4):
            d0, d1 = 48+2*c, 49+2*c
            acc = 16+4*c
            a(f'v_and_b32 v60, 0xffff0000, v{d1}')
            a(f'v_lshlrev_b32 v61, 16, v{d1}')
            a(f'v_and_b32 v62, 0xffff0000, v{d0}')
            a(f'v_lshlrev_b32 v63, 16, v{d0}')
            for r in range(4):
                a(f'v_fma_f32 v{60+r}, v{60+r}, s55, v{acc+r}')
            a(f'v_cvt_pk_bf16_f32 v{64+2*c}, v60, v61')
            a(f'v_cvt_pk_bf16_f32 v{65+2*c}, v62, v63')
            a(f'ds_write_b64 v9, v[{64+2*c}:{65+2*c}] offset:{L_GT + 16*c*128}')
        a('v_lshrrev_b32 v8, 3, v0')
        a('v_and_b32 v9, 7, v0')
        a('v_and_b32 v10, 7, v8')
        a('v_xor_b32 v10, v10, v9')
        a('v_lshlrev_b32 v10, 4, v10')
        a('v_lshl_add_u32 v10, v8, 7, v10')
        a('v_lshlrev_b32 v11, 15, v8')
        a('v_lshl_add_u32 v11, v9, 4, v11')
        a('s_waitcnt lgkmcnt(0)')
        a('s_barrier')
        a(f'ds_read_b128 v[48:51], v10 offset:{L_GT}')
        a(f'ds_read_b128 v[52:55], v10 offset:{L_GT + 4096}')
        a(f's_add_u32 s53, s61, {GB}')
        a('s_waitcnt lgkmcnt(1)')
        self.vstore('v[48:51]', 'v11', WS, 's53', 0, ' sc1', tag='g')
        a(f's_add_u32 s53, s53, {32*32768}')
        a('s_waitcnt lgkmcnt(0)')
        self.vstore('v[52:55]', 'v11', WS, 's53', 0, ' sc1', tag='g')
        self.mk_srd(SA, sQ, 2097152)
        a(f's_lshl_b32 s53, {sC}, 8')
        a(f's_lshl_b32 s54, {sR}, 3')
        a('s_add_u32 s53, s53, s54')
        a(f's_add_u32 s53, s53, {sW}')
        a('s_lshl_b32 s53, s53, 10')
        self.vload('v[8:11]', f'v{vL16}', srd(SA), 's53', 0, tag='q')
        a('s_add_u32 s53, s53, 4096')
        self.vload('v[12:15]', f'v{vL16}', srd(SA), 's53', 0, tag='q')
        self.check_fw(128, 132)
        a('s_barrier')
        self.weight_batch(o.get('wb2', 16))
        self.stamp('conv published')

    def finish(self):
        a = self.a
        a.label('L_fin')
        Ln = a.newlabel('noep')
        a('s_cmp_lg_u32 s2, 0')
        a(f's_cbranch_scc1 {Ln}'); a.comment('COND_BEGIN')
        a(f's_cmp_lg_u32 {sW}, 0')
        a(f's_cbranch_scc1 {Ln}'); a.comment('COND_BEGIN')
        a(f'buffer_store_dword v{vTAG}, off, {WS}, 0 sc1')
        a.label(Ln)
        if self.stamps:
            self.stamp('end')
            a('s_memtime s[62:63]'); a('s_waitcnt lgkmcnt(0)'); a('s_sub_u32 s100, s62, s100')
            a('s_lshl_b32 s53, s2, 2')
            a(f's_add_u32 s53, s53, {sW}')
            a('s_lshl_b32 s53, s53, 7')
            a(f's_add_u32 s53, s53, {TS}')
            a('s_mov_b64 exec, 1')
            a('v_mov_b32 v4, 0')
            for i in range(self.nstamp):
                a(f'v_mov_b32 v5, s{76+i}')
                a(f'buffer_store_dword v5, v4, {WS}, s53 offen offset:{4*i}')
                a.nop(1)
            if self.o.get('dbgstamps'):
                Ld = a.newlabel('nodbg')
                a(f's_cmp_lg_u32 s2, {self.o.get("dbgstamps")}')
                a(f's_cbranch_scc1 {Ld}')
                a(f's_cmp_lg_u32 {sW}, 0')
                a(f's_cbranch_scc1 {Ld}')
                self.mk_srd(SA, sDBG, 256)
                sel = [1, 3, 5, 6, 7, 8, 10, 11, 13, 14, 16, 17, 19, 20, 22, 23]
                for j, i in enumerate(sel):
                    a(f's_sub_u32 s54, s{76+i}, s76')
                    a(f'v_mov_b32 v5, s54')
                    a(f'buffer_store_dword v5, v4, {srd(SA)}, 0 offen offset:{4*j}')
                    a.nop(1)
                a.label(Ld)
            a(f'v_mov_b32 v5, {sFAST}')
            a(f'buffer_store_dword v5, v4, {WS}, s53 offen offset:116')
            a.nop(1)
            a(f'v_mov_b32 v5, s100')
            a(f'buffer_store_dword v5, v4, {WS}, s53 offen offset:120')
            a.nop(1)
            a(f'v_mov_b32 v5, {sABORT}')
            a(f'buffer_store_dword v5, v4, {WS}, s53 offen offset:124')
        a('s_waitcnt vmcnt(0)')
        a.label('L_end')
        a('s_endpgm')
        self.finished = True
        if not getattr(self, 'more_code', False): a.label('L_code_end')

    def build(self):
        self.prologue()
        self.prep()
        if self.stop != 'prep': self.conv()
        if self.stop not in ('prep', 'conv'):
            if self.o.get('mlp', 4) == 3:
                from gen3_mlp import emit_mlp
            else:
                from gen4_mlp import emit_mlp
            emit_mlp(self)
        if not getattr(self, 'finished', False): self.finish()
        else: self.a.label('L_code_end')
        body = self.a.text()
        hdr = open('cdna_kernels/' + NAME[:-7] + '.s.ref').read().split('; Override launch')[0]
        s = hdr + f'; @launch grid=(256,1,1) block=(256,1,1) lds={LDS_SIZE}\n'
        s += f'''.amdgcn_target "amdgcn-amd-amdhsa--gfx950"
.text
.globl {NAME}
.p2align 8
.type {NAME},@function
{NAME}:
.set CODE_BYTES, {'L_slow' if 'L_slow:' in body else 'L_code_end'} - {NAME}
''' + body + f'''.section .rodata,"a"
.p2align 6
.amdhsa_kernel {NAME}
  .amdhsa_next_free_vgpr 512
  .amdhsa_next_free_sgpr 102
  .amdhsa_accum_offset 256
  .amdhsa_group_segment_fixed_size 0
  .amdhsa_kernarg_size 112
  .amdhsa_user_sgpr_count 2
  .amdhsa_user_sgpr_kernarg_segment_ptr 1
  .amdhsa_system_sgpr_workgroup_id_x 1
.end_amdhsa_kernel
'''
        return s

def main():
    ap = argparse.ArgumentParser()
    ap.add_argument('--stop', default='end')
    ap.add_argument('--stamps', action='store_true')
    ap.add_argument('-o', default='k.s')
    ap.add_argument('--opt', action='append', default=[])
    args = ap.parse_args()
    opts = {}
    for kv in args.opt:
        k, v = kv.split('='); opts[k] = int(v) if v.lstrip('-').isdigit() else v
    g = Gen(stop=args.stop, stamps=args.stamps, opts=opts)
    s = g.build()
    probs = check_hazards(g.a.lines)
    for p in probs: print(p)
    wp = check_waits(g.a.lines)
    for p in wp[:30]: print(p)
    print(len(wp), 'wait problems')
    print(f'{len(g.a.lines)} lines, {len(probs)} hazards')
    open(args.o, 'w').write(s)
    open(args.o + '.stamps', 'w').write('\n'.join(g.stamp_names))

if __name__ == '__main__':
    main()
```

```python
from gen2 import *

def tok_base(a, dst, eta):
    a(f's_lshl_b32 {dst}, {sC}, 8')
    a(f's_lshl_b32 s54, {sR}, 3')
    a(f's_add_u32 {dst}, {dst}, s54')
    a(f's_add_u32 {dst}, {dst}, {sW}')
    if eta: a(f's_add_u32 {dst}, {dst}, {4*eta}')
    a(f's_lshl_b32 {dst}, {dst}, 10')

def yflag_addr(a, dst, eta):
    a(f's_lshl_b32 {dst}, s67, 1')
    if eta: a(f's_add_u32 {dst}, {dst}, {eta}')
    a(f's_lshl_b32 {dst}, {dst}, 3')
    a(f's_add_u32 {dst}, {dst}, {sC}')
    a(f's_lshl_b32 {dst}, {dst}, 7')
    a(f's_lshl_b32 s54, {sR}, 2')
    a(f's_add_u32 {dst}, {dst}, s54')
    a(f's_add_u32 {dst}, {dst}, {sW}')
    a(f's_lshl_b32 {dst}, {dst}, 2')
    a(f's_add_u32 {dst}, {dst}, {F_Y}')

def rows_finish(g, rows):
    a = g.a
    for (X, eta) in rows:
        a(f's_lshl_b32 s53, {sW}, 10')
        a(f's_add_u32 s53, s53, {L_G + eta*4096}')
        a(f'v_add_u32 v{X+28}, s53, v{vL16}')
        a(f'ds_read_b128 v[{X+16}:{X+19}], v{X+28}')
    a('s_waitcnt lgkmcnt(0)')
    def pr(b): return f'v[{b}:{b+1}]'
    for (X, eta) in rows:
        g.unpack8(X+16, X+20)
    for (X, eta) in rows:
        for i in range(4):
            a(f'v_pk_fma_f32 {pr(X+2*i)}, {pr(X+8+2*i)}, {pr(X+20+2*i)}, {pr(X+2*i)}')
    for (X, eta) in rows:
        g.pack8(X, X+32)
    for (X, eta) in rows:
        g.unpack8(X+32, X)
    for (X, eta) in rows:
        tok_base(a, 's55', eta)
        a('s_lshl_b32 s54, s67, 22' if not g.fast else 's_mov_b32 s54, 0')
        a('s_add_u32 s54, s54, s55')
        a(f's_add_u32 s54, s54, {X1}')
        g.vstore(f'v[{X+32}:{X+35}]', f'v{vL16}', WS, 's54', 0, g.sc, tag=f'rx{eta}')
    g.ln_multi([(X, X+8, X+36) for (X, eta) in rows])
    g.ln_multi([(X+8, X+8, X+36) for (X, eta) in rows])
    for (X, eta) in rows:
        g.pack8(X+8, X+16)
    for (X, eta) in rows:
        tok_base(a, 's55', eta)
        a('s_lshl_b32 s54, s67, 21' if not g.fast else 's_mov_b32 s54, 0')
        a('s_add_u32 s54, s54, s55')
        a(f's_add_u32 s54, s54, {Y0}')
        g.vstore(f'v[{X+16}:{X+19}]', f'v{vL16}', WS, 's54', 0, g.sc, tag=f'ry{eta}')

def row_flag(g, eta):
    a = g.a
    yflag_addr(a, 's53', eta)
    g.vq.wait(f'ry{eta}')
    g.flag('s53')

def emit_r1a(g):
    a = g.a; vq = g.vq; o = g.o
    XA, XB_ = 16, 64
    a(f'v_mov_b32 v{g.vinv}, 0x3b000000')
    vq.wait('q')
    g.unpack8(8, XA); g.unpack8(12, XB_)
    g.ln_multi([(XA, XA+8, XA+36), (XB_, XB_+8, XB_+36)])
    g.stamp('lnq done')
    if getattr(g, 'r1_hook', None): g.r1_hook()
    a(f's_lshl_b32 s53, {sC}, 3')
    a(f's_lshr_b32 s54, {sR}, 2')
    a('s_add_u32 s53, s53, s54')
    a('s_lshl_b32 s53, s53, 15')
    a(f's_and_b32 s54, {sR}, 3')
    a('s_lshl_b32 s54, s54, 5')
    a('s_add_u32 s53, s53, s54')
    a(f's_add_u32 s55, s53, {GB}')
    a('v_lshlrev_b32 v241, 7, v0')
    L = a.newlabel('gp'); D = a.newlabel('gpd')
    a('s_mov_b32 s53, 0')
    a('s_mov_b64 s[56:57], exec')
    a.label(L)
    a(f'buffer_load_dwordx4 v[224:227], v241, {WS}, s55 offen sc1')
    a(f'buffer_load_dwordx4 v[228:231], v241, {WS}, s55 offen offset:16 sc1')
    a('s_waitcnt vmcnt(0)')
    a('v_max3_u32 v232, v224, v225, v226')
    a('v_max3_u32 v233, v227, v228, v229')
    a('v_max3_u32 v232, v232, v230, v231')
    a('v_max_u32 v232, v232, v233')
    a('v_cmp_eq_u32 vcc, -1, v232')
    a(f's_cbranch_vccz {D}')
    if o.get('gmask', 1): a('s_and_b64 exec, exec, vcc')
    if o.get("gsleep", 0): a(f's_sleep {o.get("gsleep", 0)}')
    a('s_add_u32 s53, s53, 1')
    a(f's_cmp_lg_u32 {sABORT}, 0')
    a(f's_cbranch_scc1 {D}')
    a('s_cmp_lt_u32 s53, 0x8000')
    a(f's_cbranch_scc1 {L}')
    a(f's_mov_b32 {sABORT}, 1')
    a.label(D)
    a('s_mov_b64 exec, s[56:57]')
    vq.reset()
    g.stamp('G loaded')
    a('s_mov_b32 s56, 0x05040100')
    a('s_mov_b32 s57, 0x07060302')
    a('v_lshlrev_b32 v240, 2, v0')
    a(f'v_add_u32 v240, {L_G}, v240')
    for j in range(8):
        sel = 's56' if j % 2 == 0 else 's57'
        a(f'v_perm_b32 v{232 + j}, v{228 + j//2}, v{224 + j//2}, {sel}')
    for j in range(8):
        a(f'ds_write_b32 v240, v{232 + j} offset:{j*1024}')
    a('s_waitcnt lgkmcnt(0)')
    a('s_barrier')

def emit_r1b(g):
    a = g.a; vq = g.vq; o = g.o
    XA, XB_ = 16, 64
    a('s_mov_b32 s67, 0')
    rows_finish(g, [(XA, 0), (XB_, 1)])
    g.weight_batch(o.get('wb4', 0))
    row_flag(g, 0)
    row_flag(g, 1)
    g.stamp('r1 done')

def emit_r2(g):
    a = g.a; vq = g.vq
    a('s_mov_b32 s67, 1')
    a('v_mov_b32 v4, 0x3b000000')
    for eta in range(2):
        X = 16 if eta == 0 else 64
        a(f's_lshl_b32 s53, {sC}, 1')
        if eta: a(f's_add_u32 s53, s53, {eta}')
        a('s_lshl_b32 s53, s53, 2')
        a(f's_lshr_b32 s54, {sR}, 3')
        a('s_add_u32 s53, s53, s54')
        a('s_lshl_b32 s53, s53, 2')
        a(f's_and_b32 s54, {sR}, 7')
        a('s_lshr_b32 s54, s54, 1')
        a('s_add_u32 s53, s53, s54')
        a('s_lshl_b32 s53, s53, 5')
        a(f's_add_u32 s53, s53, {F_X}')
        a('v_lshlrev_b32 v5, 2, v1')
        a('v_add_u32 v5, s53, v5')
        if eta == 1:
            row_flag(g, 0)
        g.poll(5, 6, nlanes=8)
        tok_base(a, 's53', eta)
        a(f's_add_u32 s53, s53, {X2}')
        g.vload('v[8:11]', f'v{vL16}', WS, 's53', 0, ' sc1', tag='x2')
        vq.wait('x2')
        g.unpack8(8, X)
        g.ln_multi([(X, X+8, X+36)])
        rows_finish(g, [(X, eta)])
    row_flag(g, 1)
    g.stamp('r2 done', False)

def gelu_fillers(g, acc, eta, tt):
    a = g.a
    F = []
    def addr():
        a(f's_add_u32 s54, s71, {(2*eta+tt)*112*1024}')
        a(f's_add_u32 s55, s70, {(2*eta+tt)*256}')
    F.append(addr)
    for p in range(8):
        x0, x1 = acc + 2*p, acc + 2*p + 1
        t0, t1 = 96 + 2*(p % 2), 97 + 2*(p % 2)
        seq = [f'v_mul_f32 v{t0}, v{x0}, v{x0}', f'v_mul_f32 v{t1}, v{x1}, v{x1}',
               f'v_fma_f32 v{t0}, v{t0}, v126, v127', f'v_fma_f32 v{t1}, v{t1}, v126, v127',
               f'v_mul_f32 v{t0}, v{t0}, v{x0}', f'v_mul_f32 v{t1}, v{t1}, v{x1}',
               f'v_exp_f32 v{t0}, v{t0}', f'v_exp_f32 v{t1}, v{t1}',
               f'v_add_f32 v{t0}, 1.0, v{t0}', f'v_add_f32 v{t1}, 1.0, v{t1}',
               f'v_rcp_f32 v{t0}, v{t0}', f'v_rcp_f32 v{t1}, v{t1}',
               f'v_mul_f32 v{x0}, v{x0}, v{t0}', f'v_mul_f32 v{x1}, v{x1}, v{t1}',
               f'v_cvt_pk_bf16_f32 v{112+p}, v{x0}, v{x1}']
        for s in seq: F.append(lambda s=s: a(s))
        if p == 3: F.append(lambda: g.vstore('v[112:115]', f'v{vL16}', WS, 's54', 0, g.sc, tag=f'h{eta}{tt}'))
        if p == 7: F.append(lambda: g.vstore('v[116:119]', f'v{vL16}', WS, 's54', 1024, g.sc, tag=f'h{eta}{tt}'))
    return F

def emit_g1(g):
    a = g.a; vq = g.vq
    Lskip = a.newlabel('g1skip')
    a('s_barrier')
    a(f's_cmp_ge_u32 {sR}, 28')
    a(f's_cbranch_scc1 {Lskip}')
    a(f's_lshl_b32 s68, {sJ}, 2')
    a(f's_add_u32 s68, s68, {sW}')
    g.mk_srd(SA, sB1, 3584)
    a('v_lshrrev_b32 v14, 5, v1')
    a('v_lshlrev_b32 v15, 3, v14')
    a('s_lshl_b32 s53, s68, 6')
    for i in range(4):
        g.vload(f'v[{96+2*i}:{97+2*i}]', 'v15', srd(SA), 's53', 16*i, w='x2', tag='bias')
    a(f'v_mov_b32 v126, {f2u(-C2)}')
    a(f'v_mov_b32 v127, {f2u(-C1)}')
    a('v_and_b32 v15, 31, v1')
    a('v_and_b32 v12, 15, v1')
    for m in range(8):
        a(f'v_add_u32 v{4+m}, {2*m}, v14')
        a(f'v_xor_b32 v{4+m}, v{4+m}, v12')
        a(f'v_lshlrev_b32 v{4+m}, 4, v{4+m}')
        a(f'v_lshl_add_u32 v{4+m}, v15, 10, v{4+m}')
    a(f's_lshl_b32 s53, {sC}, 1')
    a(f's_add_u32 s53, s53, {sT1}')
    a('s_lshl_b32 s53, s53, 2')
    a('s_mul_i32 s71, s53, 112')
    a('s_lshl_b32 s55, s68, 1')
    a('s_add_u32 s71, s71, s55')
    a('s_lshl_b32 s71, s71, 10')
    a(f's_lshl_b32 s55, {sLAYER}, 23' if not g.fast else 's_mov_b32 s55, 0')
    a('s_add_u32 s71, s71, s55')
    a(f's_add_u32 s71, s71, {H0}')
    a(f's_lshl_b32 s55, {sLAYER}, 6')
    a('s_add_u32 s70, s53, s55')
    a('s_lshl_b32 s70, s70, 8')
    a('s_lshl_b32 s55, s68, 2')
    a('s_add_u32 s70, s70, s55')
    a(f's_add_u32 s70, s70, {F_H}')
    for eta in range(2):
        a(f's_lshl_b32 s53, {sLAYER}, 1')
        if eta: a(f's_add_u32 s53, s53, {eta}')
        a('s_lshl_b32 s53, s53, 3')
        a(f's_add_u32 s53, s53, {sC}')
        a('s_lshl_b32 s53, s53, 7')
        a(f's_lshl_b32 s54, {sT1}, 6')
        a('s_add_u32 s53, s53, s54')
        a(f's_lshl_b32 s54, {sW}, 4')
        a('s_add_u32 s53, s53, s54')
        a('s_lshl_b32 s53, s53, 2')
        a(f's_add_u32 s53, s53, {F_Y}')
        a('v_lshlrev_b32 v14, 2, v1')
        a('v_add_u32 v14, s53, v14')
        g.dstamp('g1', f'poll{eta} start')
        g.poll(14, 15, nlanes=16)
        g.dstamp('g1', f'poll{eta} done')
        if eta == 0: g.stamp('g1 yA seen', True)
        a(f's_lshl_b32 s53, {sC}, 8')
        a(f's_lshl_b32 s54, {sT1}, 7')
        a('s_add_u32 s53, s53, s54')
        a(f's_lshl_b32 s54, {sW}, 5')
        a('s_add_u32 s53, s53, s54')
        if eta: a(f's_add_u32 s53, s53, {4*eta}')
        a('s_lshl_b32 s53, s53, 10')
        a(f's_lshl_b32 s54, {sLAYER}, 21' if not g.fast else 's_mov_b32 s54, 0')
        a('s_add_u32 s53, s53, s54')
        a(f's_add_u32 s53, s53, {Y0}')
        a(f's_lshl_b32 s54, {sW}, 14')
        if eta: a(f's_add_u32 s54, s54, {L_YH[eta]}')
        for i in range(16):
            if i % 4 == 0:
                a(f's_add_u32 m0, s54, {i*1024}')
                if i: a('s_add_u32 s53, s53, 8192')
            a(f'v_xor_b32 v15, {16*i}, v{vL16}')
            off = f' offset:{(i%4)*1024}' if i % 4 else ''
            a(f'buffer_load_dwordx4 v15, {WS}, s53 offen{off} sc1 lds')
            vq.issue(f'dma{eta}')
    for i in range(4):
        a(f'v_lshlrev_b32 v{48+4*i}, 16, v{96+2*i}')
        a(f'v_and_b32 v{49+4*i}, 0xffff0000, v{96+2*i}')
        a(f'v_lshlrev_b32 v{50+4*i}, 16, v{97+2*i}')
        a(f'v_and_b32 v{51+4*i}, 0xffff0000, v{97+2*i}')
    g.dstamp('g1', 'dma issued')
    a('s_barrier')
    g.stamp('g1 yA in lds', True)
    g.dstamp('g1', 'yA in lds')
    tiles = [(0,0), (0,1), (1,0), (1,1)]
    fill = []
    pend_flags = []
    NB, PF = 8, 6
    for ti, (eta, tt) in enumerate(tiles):
        if ti == 2:
            vq.wait('dma1')
            a('s_barrier')
            for m in range(8): a(f'v_add_u32 v{4+m}, 0x10000, v{4+m}')
        acc = 16 + 16*(ti % 2)
        def Breg(k): return f'v[{64+4*(k%NB)}:{67+4*(k%NB)}]'
        def Bload(k): a(f'ds_read_b128 {Breg(k)}, v{4+(k&7)} offset:{tt*32768 + (k>>3)*256}')
        for k in range(PF): Bload(k)
        START = 3
        nf = len(fill)
        done = 0
        for k in range(32):
            if k + PF < 32: Bload(k + PF)
            a(f's_waitcnt lgkmcnt({min(PF, 31-k)})')
            cin = f'v[48:63]' if k == 0 else f'v[{acc}:{acc+15}]'
            a(f'v_mfma_f32_32x32x16_bf16 v[{acc}:{acc+15}], {W1reg(k)}, {Breg(k)}, {cin}')
            if k >= START and nf:
                END = 30
                target = min(nf, ((k - START + 1) * nf + (END - START)) // (END - START + 1))
                while done < target:
                    fill[done](); done += 1
            if k == g.o.get('g1flagslot', 28) and pend_flags and ti >= 2:
                (ptag, peta, ptt) = pend_flags.pop(0)
                vq.wait(ptag)
                a(f's_add_u32 s56, s70, {(2*peta+ptt)*256}')
                g.flag('s56')
        while done < nf:
            fill[done](); done += 1
        g.dstamp('g1', f'tile{ti} done')
        if ti > 0:
            pe, pt = tiles[ti-1]
            pend_flags.append((f'h{pe}{pt}', pe, pt))
        fill = gelu_fillers(g, acc, eta, tt)
    a.nop(12)
    half = len(fill)//2
    for f in fill[:half]: f()
    for (ptag, peta, ptt) in pend_flags:
        vq.wait(ptag)
        a(f's_add_u32 s56, s70, {(2*peta+ptt)*256}')
        g.flag('s56')
    for f in fill[half:]: f()
    g.dstamp('g1', 'tail gelu done')
    vq.wait('h11')
    a(f's_add_u32 s56, s70, {3*256}')
    g.flag('s56')
    a.label(Lskip)
    vq.reset()
    g.stamp('g1 done', True)

def emit_g2(g):
    a = g.a; vq = g.vq
    a('s_barrier')
    g.mk_srd(SA, sB2, 1024)
    a('v_and_b32 v12, 7, v0')
    a('v_lshlrev_b32 v15, 4, v12')
    a(f's_and_b32 s53, {sR}, 7')
    a('s_lshl_b32 s53, s53, 7')
    g.vload('v[8:11]', 'v15', srd(SA), 's53', 0, tag='b2')
    a(f's_cmp_eq_u32 {sLAYER}, 0')
    a(f's_cselect_b32 s{SD_}, s{sWSP}, s{sOUT}')
    a(f's_cselect_b32 s{SD_+1}, s{sWSP+1}, s{sOUT+1}')
    a(f's_mov_b32 s{SD_+2}, 2097152')
    a(f's_cselect_b32 s{SD_+2}, {WS_SIZE}, s{SD_+2}')
    a(f's_mov_b32 s{SD_+3}, 0x00020000')
    a(f's_cselect_b32 s69, {X2}, 0')
    a(f's_and_b32 s{SD_+1}, s{SD_+1}, 0xffff')
    a('v_and_b32 v14, 31, v1')
    a('v_lshrrev_b32 v15, 5, v1')
    a('v_and_b32 v13, 7, v1')
    a(f's_lshl_b32 s53, {sW}, 13')
    for i in range(4):
        a(f'v_add_u32 v{4+i}, {2*i}, v15')
        a(f'v_xor_b32 v{4+i}, v{4+i}, v13')
        a(f'v_lshlrev_b32 v{4+i}, 4, v{4+i}')
        a(f'v_lshl_add_u32 v{4+i}, v14, 8, v{4+i}')
        a(f'v_add_u32 v{4+i}, s53, v{4+i}')
    a('v_lshrrev_b32 v14, 3, v0')
    a('v_and_b32 v13, 7, v14')
    a('v_and_b32 v15, 3, v12')
    a('v_lshlrev_b32 v15, 1, v15')
    a('v_xor_b32 v16, v15, v13')
    a('v_or_b32 v15, 1, v15')
    a('v_xor_b32 v17, v15, v13')
    a('v_lshrrev_b32 v15, 2, v12')
    a('v_lshlrev_b32 v15, 7, v15')
    a('v_lshl_add_u32 v15, v14, 8, v15')
    a('v_lshl_add_u32 v16, v16, 4, v15')
    a('v_lshl_add_u32 v17, v17, 4, v15')
    a(f's_lshr_b32 s53, {sR}, 3')
    a('s_lshl_b32 s53, s53, 5')
    a('v_add_u32 v15, s53, v14')
    a('v_lshrrev_b32 v18, 2, v15')
    a('v_lshlrev_b32 v18, 3, v18')
    a('v_and_b32 v15, 3, v15')
    a('v_add_u32 v18, v18, v15')
    a(f's_lshl_b32 s53, {sC}, 8')
    a('v_add_u32 v18, s53, v18')
    a('v_lshlrev_b32 v18, 10, v18')
    a(f's_and_b32 s53, {sR}, 7')
    a('s_lshl_b32 s53, s53, 7')
    a('v_lshl_add_u32 v18, v12, 4, v18')
    a('v_add_u32 v18, s53, v18')
    a(f's_lshr_b32 s70, {sR}, 4')
    a(f's_lshl_b32 s53, {sC}, 1')
    a('s_add_u32 s53, s53, s70')
    a('s_lshl_b32 s53, s53, 2')
    a(f's_lshr_b32 s54, {sR}, 3')
    a('s_and_b32 s54, s54, 1')
    a('s_add_u32 s70, s53, s54')
    a('s_mul_i32 s71, s70, 112')
    a(f's_mul_i32 s54, {sW}, 28')
    a('s_add_u32 s71, s71, s54')
    a('s_lshl_b32 s71, s71, 10')
    a(f's_lshl_b32 s54, {sLAYER}, 23' if not g.fast else 's_mov_b32 s54, 0')
    a('s_add_u32 s71, s71, s54')
    a(f's_add_u32 s71, s71, {H0}')
    a(f's_lshl_b32 s53, {sLAYER}, 6')
    a('s_add_u32 s70, s70, s53')
    a('s_lshl_b32 s70, s70, 8')
    a(f's_mul_i32 s54, {sW}, 56')
    a('s_add_u32 s70, s70, s54')
    a(f's_add_u32 s70, s70, {F_H}')
    a(f's_lshl_b32 s68, {sC}, 3')
    a(f's_lshr_b32 s54, {sR}, 3')
    a('s_add_u32 s68, s68, s54')
    a('s_lshl_b32 s68, s68, 2')
    a(f's_add_u32 s68, s68, {sW}')
    a('s_lshl_b32 s68, s68, 3')
    a(f's_and_b32 s54, {sR}, 7')
    a('s_add_u32 s68, s68, s54')
    a('s_lshl_b32 s68, s68, 2')
    a(f's_add_u32 s68, s68, {F_X}')
    NW = 16
    def Hreg(i): return f'v[{64+4*(i%NW)}:{67+4*(i%NW)}]'
    def Hload(eta, i):
        a(f's_add_u32 s54, s71, {eta*2*112*1024 + (i//4)*4096}')
        g.vload(Hreg(i), f'v{vL16}', WS, 's54', (i%4)*1024, ' sc1', tag=f'hf{eta}_{i}')
    def start_half(eta):
        a('v_lshlrev_b32 v14, 2, v1')
        a(f's_add_u32 s53, s70, {eta*2*256}')
        a('v_add_u32 v14, s53, v14')
        g.poll(14, 15, nlanes=14)
        a(f's_lshl_b32 s53, {sLAYER}, 22' if not g.fast else 's_mov_b32 s53, 0')
        a(f's_add_u32 s53, s53, {X1 + eta*4096}')
        g.vload(f'v[{28+eta*32}:{31+eta*32}]', 'v18', WS, 's53', 0, ' sc1', tag=f'res{eta}')
        for i in range(NW): Hload(eta, i)
    def mfmas(eta, hook=None):
        for i in range(28):
            vq.wait(f'hf{eta}_{i}')
            for nt in range(2):
                acc = f'a[{224+16*nt}:{239+16*nt}]'
                cin = '0' if i == 0 else acc
                a(f'v_mfma_f32_32x32x16_bf16 {acc}, {W2reg(nt,i)}, {Hreg(i)}, {cin}')
            if i + NW < 28: Hload(eta, i + NW)
            if hook: hook(i)
    def reduce_write(eta):
        a.nop(12)
        LR = eta*32768
        for nt in range(2):
            for i in range(4):
                b = 224 + 16*nt + 4*i
                a(f'ds_write_b128 v{4+i}, a[{b}:{b+3}] offset:{LR + nt*128}')
        a('s_waitcnt lgkmcnt(0)')
        a('s_barrier')
    def reduce_finish(eta):
        LR = eta*32768
        for p in range(4):
            a(f'ds_read_b128 v[{32+8*p}:{35+8*p}], v16 offset:{LR + p*8192}') if False else None
        P = [32, 40, 48, 120]
        return
    vq.wait('b2')
    g.unpack8(8, 20)
    def finish_half(eta):
        LR = eta*32768
        res = 28 + eta*32
        for p in range(3):
            a(f'ds_read_b128 v[{32+8*p}:{35+8*p}], v16 offset:{LR + p*8192}')
            a(f'ds_read_b128 v[{36+8*p}:{39+8*p}], v17 offset:{LR + p*8192}')
        a(f'ds_read_b128 v[8:11], v16 offset:{LR + 3*8192}')
        a(f'ds_read_b128 v[56:59], v17 offset:{LR + 3*8192}')
        a('s_waitcnt lgkmcnt(2)')
        def pr(b): return f'v[{b}:{b+1}]'
        for e in range(4): a(f'v_pk_add_f32 {pr(32+2*e)}, {pr(32+2*e)}, {pr(40+2*e)}')
        for e in range(4): a(f'v_pk_add_f32 {pr(48+2*e)}, {pr(48+2*e)}, {pr(20+2*e)}')
        a('s_waitcnt lgkmcnt(0)')
        a(f'v_pk_add_f32 {pr(32)}, {pr(32)}, {pr(8)}'); a(f'v_pk_add_f32 {pr(34)}, {pr(34)}, {pr(10)}')
        a(f'v_pk_add_f32 {pr(36)}, {pr(36)}, {pr(56)}'); a(f'v_pk_add_f32 {pr(38)}, {pr(38)}, {pr(58)}')
        for e in range(4): a(f'v_pk_add_f32 {pr(32+2*e)}, {pr(32+2*e)}, {pr(48+2*e)}')
        g.pack8(32, 40); g.unpack8(40, 32)
        vq.wait(f'res{eta}')
        g.unpack8(res, 48)
        for e in range(4): a(f'v_pk_add_f32 {pr(32+2*e)}, {pr(32+2*e)}, {pr(48+2*e)}')
        g.pack8(32, 40)
        a(f's_add_u32 s53, s69, {eta*4096}')
        g.vstore('v[40:43]', 'v18', srd(SD_), 's53', 0, g.sc, tag=f'xo{eta}')
    def xflag(eta):
        vq.wait(f'xo{eta}')
        a(f's_add_u32 s53, s68, {eta*512}')
        g.flag('s53')
    g.dstamp('g2', 'g2 begin')
    start_half(0)
    g.stamp('g2 hA seen', True)
    g.dstamp('g2', 'A issued')
    def hookA(i):
        if i == 0: g.dstamp('g2', 'A first frag')
        if i == 15: g.dstamp('g2', 'A 16 frags')
    mfmas(0, hookA)
    g.dstamp('g2', 'A mfma done')
    reduce_write(0)
    g.dstamp('g2', 'A red written')
    start_half(1)
    g.dstamp('g2', 'B issued')
    finish_half(0)
    g.dstamp('g2', 'A finished')
    def hook(i):
        if i == 10: xflag(0)
        if i == 0: g.dstamp('g2', 'B first frag')
    mfmas(1, hook)
    g.dstamp('g2', 'B mfma done')
    reduce_write(1)
    finish_half(1)
    g.dstamp('g2', 'B finished')
    xflag(1)
    g.stamp('g2 done', True)

def emit_mlp_variant(g, sc, sfx):
    a = g.a
    g.sc = sc
    emit_r1b(g)
    if g.stop == 'r1': a('s_branch L_fin'); return
    a(f's_mov_b32 {sLAYER}, 0')
    a.label('L_layer' + sfx)
    emit_g1(g)
    if g.stop == 'g1': a('s_branch L_fin'); return
    emit_g2(g)
    if g.stop == 'g2': a('s_branch L_fin'); return
    a(f's_cmp_eq_u32 {sLAYER}, 1')
    a('s_cbranch_scc1 L_fin')
    emit_r2(g)
    if g.stop == 'r2': a('s_branch L_fin'); return
    a(f's_mov_b32 {sLAYER}, 1')
    a('s_branch L_layer' + sfx)

def emit_mlp(g):
    a = g.a
    emit_r1a(g)
    import copy
    ops0 = list(g.vq.ops); wl0 = list(g.wlist)
    a(f's_cmp_eq_u32 {sFAST}, 0')
    a('s_cbranch_scc1 L_slow')
    n0, names0 = g.nstamp, list(g.stamp_names)
    emit_mlp_variant(g, '', '_f')
    a.label('L_slow')
    g.vq.ops = ops0; g.wlist = wl0
    st = g.stamps; g.stamps = False
    emit_mlp_variant(g, ' sc1', '_s')
    g.stamps = st
```

```python
from gen2 import *
from gen2_mlp import tok_base, yflag_addr, emit_r1a
from gen3_mlp import poll_issue, poll_check, spread, DUMMY

def pr(b): return f'v[{b}:{b+1}]'
VINV = 108

def rows_finish(g, rows, scx, scy, part=None):
    a = g.a
    if part in (None, 1):
        for (X, eta) in rows:
            a(f's_lshl_b32 s53, {sW}, 10')
            a(f's_add_u32 s53, s53, {L_G + eta*4096}')
            a(f'v_add_u32 v{X+28}, s53, v{vL16}')
            a(f'ds_read_b128 v[{X+16}:{X+19}], v{X+28}')
        a('s_waitcnt lgkmcnt(0)')
        for (X, eta) in rows: g.unpack8(X+16, X+20)
        for (X, eta) in rows:
            for i in range(4):
                a(f'v_pk_fma_f32 {pr(X+2*i)}, {pr(X+8+2*i)}, {pr(X+20+2*i)}, {pr(X+2*i)}')
        for (X, eta) in rows: g.pack8(X, X+32)
        for (X, eta) in rows: g.unpack8(X+32, X)
        for (X, eta) in rows:
            a(f's_add_u32 s54, s75, {X1 + eta*4096 + (0 if g.fast else g.rl*0x400000)}')
            g.vstore(f'v[{X+32}:{X+35}]', f'v{vL16}', WS, 's54', 0, scx, tag=f'rx{eta}')
    if part in (None, 2):
        if g.o.get('ln2an', 1):
            g.ln_multi([(X, X+8, X+36) for (X, eta) in rows], double=True)
        else:
            g.ln_multi([(X, X+8, X+36) for (X, eta) in rows])
            g.ln_multi([(X+8, X+8, X+36) for (X, eta) in rows])
        for (X, eta) in rows: g.pack8(X+8, X+16)
        for (X, eta) in rows:
            a(f's_add_u32 s54, s75, {Y0 + eta*4096 + (0 if g.fast else g.rl*0x200000)}')
            g.vstore(f'v[{X+16}:{X+19}]', f'v{vL16}', WS, 's54', 0, scy, tag=f'ry{eta}')

def row_flag(g, eta):
    a = g.a
    g.vq.wait(f'ry{eta}')
    a(f's_add_u32 s53, s61, {(g.rl*2 + eta)*8*128*4}')
    g.flag('s53')

def rowB_fillers(g):
    a = g.a; F = []
    def I(s): F.append(lambda s=s: a(s))
    def N(n): F.append(lambda: a.nop(n))
    X = 32
    steps = ['quad_perm:[1,0,3,2] row_mask:0xf bank_mask:0xf', 'quad_perm:[2,3,0,1] row_mask:0xf bank_mask:0xf',
             'row_half_mirror row_mask:0xf bank_mask:0xf', 'row_mirror row_mask:0xf bank_mask:0xf',
             'row_bcast:15 row_mask:0xa bank_mask:0xf', 'row_bcast:31 row_mask:0xc bank_mask:0xf']
    def unpack(src):
        for i in range(4):
            I(f'v_lshlrev_b32 v{X+2*i}, 16, v{src+i}'); I(f'v_and_b32 v{X+2*i+1}, 0xffff0000, v{src+i}')
    def stats(double):
        I(f'v_add_f32 v124, v{X}, v{X+1}'); I(f'v_mul_f32 v125, v{X}, v{X}'); I(f'v_fmac_f32 v125, v{X+1}, v{X+1}')
        for i in range(2, 8):
            I(f'v_add_f32 v124, v124, v{X+i}'); I(f'v_fmac_f32 v125, v{X+i}, v{X+i}')
        N(2)
        for st in steps:
            I(f'v_add_f32_dpp v124, v124, v124 {st}'); I(f'v_add_f32_dpp v125, v125, v125 {st}'); N(1)
        I('v_readlane_b32 s58, v124, 63'); I('v_readlane_b32 s59, v125, 63'); N(2)
        I('v_mov_b32 v126, s58'); I('v_mov_b32 v127, s59')
        I('v_mul_f32 v126, 0x3b000000, v126'); I('v_mul_f32 v127, 0x3b000000, v127')
        I('v_fma_f32 v127, -v126, v126, v127'); I('v_max_f32 v127, 0, v127')
        if double:
            I('v_add_f32 v124, 0x3727c5ac, v127'); I('v_rsq_f32 v124, v124'); N(1)
            I('v_mul_f32 v127, v127, v124'); I('v_fmaak_f32 v127, v127, v124, 0x3727c5ac'); I('v_rsq_f32 v127, v127'); N(1)
            I('v_mul_f32 v127, v127, v124')
        else:
            I('v_add_f32 v127, 0x3727c5ac, v127'); I('v_rsq_f32 v127, v127'); N(1)
        I('v_mul_f32 v126, v126, v127')
    F.append(lambda: g.vq.wait('x2b'))
    unpack(40)
    stats(False)
    for i in range(8):
        I(f'v_fma_f32 v109, v{X+i}, v127, -v126')
        I(f'v_lshlrev_b32 v110, 16, v{44+i//2}' if i % 2 == 0 else f'v_and_b32 v110, 0xffff0000, v{44+i//2}')
        I(f'v_fma_f32 v{X+i}, v109, v110, v{X+i}')
    for i in range(4): I(f'v_cvt_pk_bf16_f32 v{40+i}, v{X+2*i}, v{X+2*i+1}')
    unpack(40)
    def stx():
        a(f's_add_u32 s54, s75, {X1 + 4096 + (0 if g.fast else 0x400000)}')
        g.vstore('v[40:43]', f'v{vL16}', WS, 's54', 0, g.sc_x3, tag='rx1')
    F.append(stx)
    stats(True)
    for i in range(8): I(f'v_fma_f32 v{X+i}, v{X+i}, v127, -v126')
    for i in range(4): I(f'v_cvt_pk_bf16_f32 v{44+i}, v{X+2*i}, v{X+2*i+1}')
    def sty():
        a(f's_add_u32 s54, s75, {Y0 + 4096 + (0 if g.fast else 0x200000)}')
        g.vstore('v[44:47]', f'v{vL16}', WS, 's54', 0, g.sc_y1, tag='ry1')
    F.append(sty)
    return F

def mlp_setup0(g):
    a = g.a
    tok_base(a, 's75', 0)
    a(f's_lshl_b32 s61, {sC}, 7')
    a(f's_lshl_b32 s54, {sR}, 2')
    a('s_add_u32 s61, s61, s54')
    a(f's_add_u32 s61, s61, {sW}')
    a('s_lshl_b32 s61, s61, 2')
    a(f's_add_u32 s61, s61, {F_Y}')

def mlp_setup(g, part=1):
    a = g.a
    if part == 0:
        mlp_setup0(g); return
    a(f's_lshl_b32 s53, {sC}, 7')
    a(f's_lshl_b32 s54, {sT1}, 6')
    a('s_add_u32 s53, s53, s54')
    a(f's_lshl_b32 s54, {sW}, 3')
    a('s_add_u32 s53, s53, s54')
    a('s_lshl_b32 s53, s53, 2')
    a(f's_add_u32 s53, s53, {F_Y}')
    a('v_and_b32 v120, 7, v1')
    a('v_bfe_u32 v12, v1, 3, 1')
    a('v_lshl_add_u32 v120, v12, 5, v120')
    a('v_lshlrev_b32 v120, 2, v120')
    a('v_add_u32 v120, s53, v120')
    a('v_lshrrev_b32 v14, 5, v1')
    a('v_and_b32 v15, 31, v1')
    a('v_and_b32 v12, 15, v1')
    for m in range(8):
        a(f'v_add_u32 v{4+m}, {2*m}, v14')
        a(f'v_xor_b32 v{4+m}, v{4+m}, v12')
        a(f'v_lshlrev_b32 v{4+m}, 4, v{4+m}')
        a(f'v_lshl_add_u32 v{4+m}, v15, 10, v{4+m}')
    a(f's_and_b32 s54, {sW}, 1')
    a('s_lshl_b32 s54, s54, 7')
    a(f'v_xor_b32 v121, s54, v{vL16}')
    a(f's_lshl_b32 s68, {sJ}, 2')
    a(f's_add_u32 s68, s68, {sW}')
    a(f's_lshl_b32 s53, {sC}, 1')
    a(f's_add_u32 s53, s53, {sT1}')
    a('s_lshl_b32 s53, s53, 2')
    a('s_mul_i32 s71, s53, 112')
    a('s_lshl_b32 s55, s68, 1')
    a('s_add_u32 s71, s71, s55')
    a('s_lshl_b32 s71, s71, 10')
    a(f's_add_u32 s71, s71, {H0}')
    a('s_lshl_b32 s70, s53, 8')
    a('s_lshl_b32 s55, s68, 2')
    a('s_add_u32 s70, s70, s55')
    a(f's_add_u32 s70, s70, {F_H}')
    a('s_lshl_b32 s55, s2, 13')
    a(f's_add_u32 s55, s55, {DUMMY}')
    a(f's_cmp_ge_u32 {sR}, 28')
    a('s_cselect_b32 s71, s55, s71')
    a('s_cselect_b32 s70, s55, s70')
    a(f's_lshl_b32 s53, {sC}, 8')
    a(f's_lshl_b32 s54, {sT1}, 7')
    a('s_add_u32 s53, s53, s54')
    a(f's_lshl_b32 s54, {sW}, 4')
    a('s_add_u32 s53, s53, s54')
    a('s_lshl_b32 s53, s53, 10')
    a(f's_add_u32 s72, s53, {Y0}')
    a(f's_lshl_b32 s73, {sW}, 13')
    a(f's_lshr_b32 s54, {sR}, 4')
    a(f's_lshl_b32 s53, {sC}, 1')
    a('s_add_u32 s53, s53, s54')
    a('s_lshl_b32 s53, s53, 2')
    a(f's_lshr_b32 s54, {sR}, 3')
    a('s_and_b32 s54, s54, 1')
    a('s_add_u32 s55, s53, s54')
    a('s_lshl_b32 s53, s55, 8')
    a(f's_mul_i32 s54, {sW}, 56')
    a('s_add_u32 s53, s53, s54')
    a(f's_add_u32 s53, s53, {F_H}')
    a('v_min_u32 v119, 13, v1')
    a('v_lshlrev_b32 v119, 2, v119')
    a('v_add_u32 v119, s53, v119')
    a('s_mul_i32 s69, s55, 112')
    a(f's_mul_i32 s54, {sW}, 28')
    a('s_add_u32 s69, s69, s54')
    a('s_lshl_b32 s69, s69, 10')
    a(f's_add_u32 s69, s69, {H0}')
    a('v_and_b32 v15, 7, v0')
    a('v_lshrrev_b32 v112, 3, v0')
    a('v_and_b32 v12, 7, v112')
    a('v_and_b32 v113, 3, v15')
    a('v_lshlrev_b32 v113, 1, v113')
    a('v_or_b32 v114, 1, v113')
    a('v_xor_b32 v113, v113, v12')
    a('v_xor_b32 v114, v114, v12')
    a('v_lshrrev_b32 v12, 2, v15')
    a('v_lshlrev_b32 v12, 7, v12')
    a('v_lshl_add_u32 v12, v112, 8, v12')
    a('v_lshl_add_u32 v113, v113, 4, v12')
    a('v_lshl_add_u32 v114, v114, 4, v12')
    a(f's_lshr_b32 s53, {sR}, 3')
    a('s_lshl_b32 s53, s53, 5')
    a('v_add_u32 v12, s53, v112')
    a('v_lshrrev_b32 v112, 2, v12')
    a('v_lshlrev_b32 v112, 3, v112')
    a('v_and_b32 v12, 3, v12')
    a('v_add_u32 v112, v112, v12')
    a(f's_lshl_b32 s53, {sC}, 8')
    a('v_add_u32 v112, s53, v112')
    a('v_lshlrev_b32 v112, 10, v112')
    a(f's_and_b32 s53, {sR}, 7')
    a('s_lshl_b32 s53, s53, 7')
    a('v_lshl_add_u32 v112, v15, 4, v112')
    a('v_add_u32 v112, s53, v112')
    a('v_lshlrev_b32 v123, 4, v15')
    a('v_add_u32 v123, s53, v123')
    a('v_and_b32 v12, 31, v1')
    a('v_lshrrev_b32 v13, 5, v1')
    a('v_and_b32 v14, 7, v1')
    a(f's_lshl_b32 s53, {sW}, 13')
    for i in range(4):
        a(f'v_add_u32 v{115+i}, {2*i}, v13')
        a(f'v_xor_b32 v{115+i}, v{115+i}, v14')
        a(f'v_lshlrev_b32 v{115+i}, 4, v{115+i}')
        a(f'v_lshl_add_u32 v{115+i}, v12, 8, v{115+i}')
        a(f'v_add_u32 v{115+i}, s53, v{115+i}')
    a(f's_lshl_b32 s67, {sC}, 3')
    a(f's_lshr_b32 s54, {sR}, 3')
    a('s_add_u32 s67, s67, s54')
    a('s_lshl_b32 s67, s67, 2')
    a(f's_add_u32 s67, s67, {sW}')
    a('s_lshl_b32 s67, s67, 3')
    a(f's_and_b32 s54, {sR}, 7')
    a('s_add_u32 s67, s67, s54')
    a('s_lshl_b32 s67, s67, 2')
    a(f's_add_u32 s67, s67, {F_X}')
    a(f's_lshl_b32 s53, {sC}, 3')
    a(f's_lshr_b32 s54, {sR}, 3')
    a('s_add_u32 s53, s53, s54')
    a('s_lshl_b32 s53, s53, 2')
    a(f's_and_b32 s54, {sR}, 7')
    a('s_lshr_b32 s54, s54, 1')
    a('s_add_u32 s53, s53, s54')
    a('s_lshl_b32 s53, s53, 5')
    a(f's_add_u32 s53, s53, {F_X}')
    a('v_and_b32 v122, 7, v1')
    a('v_lshlrev_b32 v122, 2, v122')
    a('v_add_u32 v122, s53, v122')

def gelu_fillers(g, acc, u, T, P, usepk, sc):
    a = g.a
    lay = g.cur_layer
    F = []
    F.append(lambda: a(f's_add_u32 s74, s71, {u*112*1024 + (0 if g.fast else lay*0x800000)}'))
    if usepk:
        seqs = []
        for p in range(8):
            x0 = acc + 2*p; t0 = T + 2*(p % 2); t1 = t0 + 1
            X = pr(x0); Tt = pr(t0)
            seqs.append([f'v_pk_mul_f32 {Tt}, {X}, {X}',
                   f'v_pk_fma_f32 {Tt}, {Tt}, v[12:13], v[12:13] op_sel:[0,0,1] op_sel_hi:[1,0,1]',
                   f'v_pk_mul_f32 {Tt}, {Tt}, {X}',
                   f'v_exp_f32 v{t0}, v{t0}', f'v_exp_f32 v{t1}, v{t1}',
                   f'v_pk_add_f32 {Tt}, {Tt}, v[14:15]',
                   f'v_rcp_f32 v{t0}, v{t0}', f'v_rcp_f32 v{t1}, v{t1}',
                   f'v_pk_mul_f32 {X}, {X}, {Tt}',
                   f'v_cvt_pk_bf16_f32 v{P+p}, v{x0}, v{x0+1}'])
        for p in range(0, 8, 2):
            for s0, s1 in zip(seqs[p], seqs[p+1]):
                F.append(lambda s=s0: a(s)); F.append(lambda s=s1: a(s))
            if p == 2: F.append(lambda: g.vstore(f'v[{P}:{P+3}]', f'v{vL16}', WS, 's74', 0, sc, tag=f'h{u}'))
            if p == 6: F.append(lambda: g.vstore(f'v[{P+4}:{P+7}]', f'v{vL16}', WS, 's74', 1024, sc, tag=f'h{u}'))
        return F
    for p in range(8):
        x0, x1 = acc + 2*p, acc + 2*p + 1
        t0 = T + 2*(p % 2); t1 = t0 + 1
        seq = [f'v_mul_f32 v{t0}, v{x0}, v{x0}', f'v_mul_f32 v{t1}, v{x1}, v{x1}',
               f'v_fma_f32 v{t0}, v{t0}, v12, v13', f'v_fma_f32 v{t1}, v{t1}, v12, v13',
               f'v_mul_f32 v{t0}, v{t0}, v{x0}', f'v_mul_f32 v{t1}, v{t1}, v{x1}',
               f'v_exp_f32 v{t0}, v{t0}', f'v_exp_f32 v{t1}, v{t1}',
               f'v_add_f32 v{t0}, 1.0, v{t0}', f'v_add_f32 v{t1}, 1.0, v{t1}',
               f'v_rcp_f32 v{t0}, v{t0}', f'v_rcp_f32 v{t1}, v{t1}',
               f'v_mul_f32 v{x0}, v{x0}, v{t0}', f'v_mul_f32 v{x1}, v{x1}, v{t1}',
               f'v_cvt_pk_bf16_f32 v{P+p}, v{x0}, v{x1}']
        for s in seq: F.append(lambda s=s: a(s))
        if p == 3: F.append(lambda: g.vstore(f'v[{P}:{P+3}]', f'v{vL16}', WS, 's74', 0, sc, tag=f'h{u}'))
        if p == 7: F.append(lambda: g.vstore(f'v[{P+4}:{P+7}]', f'v{vL16}', WS, 's74', 1024, sc, tag=f'h{u}'))
    return F

def hflag(g, u):
    g.vq.wait(f'h{u}')
    g.a(f's_add_u32 s56, s70, {u*256 + g.cur_layer*64*256}')
    g.flag('s56')

def emit_layer(g, idle=False):
    a = g.a; vq = g.vq; o = g.o
    lay = g.cur_layer
    sch = g.sc_h
    yoff = 0 if g.fast else lay*0x200000
    hoff = 0 if g.fast else lay*0x800000
    xoff = 0 if g.fast else lay*0x400000
    if idle:
        a('s_barrier')
        if lay == 1 and o.get('hideB', 1):
            poll_issue(g, 126, 125, 'pxB'); poll_check(g, 126, 125, 'pxB')
            a(f's_add_u32 s53, s75, {X2 + 4096}')
            g.vload('v[40:43]', f'v{vL16}', WS, 's53', 0, ' sc1', tag='x2b')
            a('s_waitcnt lgkmcnt(0)')
            for f in rowB_fillers(g): f()
            g.rl = 1
            row_flag(g, 1)
        g.weight_batch(100)
        a(f'v_add_u32 v100, {lay*64*256}, v119'); a('v_add_u32 v101, 512, v100')
        poll_issue(g, 102, 100, 'phA')
    else:
        a.comment(f'=== G1 layer {lay} ===')
        hideB = (lay == 1 and o.get('hideB', 1))
        g.dstamp('g1', 'g1 begin')
        a(f'v_add_u32 v100, {lay*2*8*128*4}, v120')
        a(f'v_add_u32 v101, {(lay*2+1)*8*128*4}, v120')
        poll_issue(g, 102, 100, 'pyA')
        a('s_barrier')
        g.mk_srd(SA, sB1, 3584)
        a('v_lshrrev_b32 v14, 5, v1')
        a('v_lshlrev_b32 v15, 3, v14')
        a('s_lshl_b32 s53, s68, 6')
        for i in range(4):
            g.vload(f'v[{104+2*i}:{105+2*i}]', 'v15', srd(SA), 's53', 16*i, w='x2', tag='bias')
        a(f'v_mov_b32 v12, {f2u(-C2)}')
        a(f'v_mov_b32 v13, {f2u(-C1)}')
        a('v_mov_b32 v14, 1.0'); a('v_mov_b32 v15, 1.0')
        def dma_list(eta, tt):
            L = []
            for i in range(8):
                def f(i=i):
                    if i % 4 == 0:
                        a(f's_add_u32 m0, s73, {L_YH[eta] + tt*32768 + i*1024}')
                        a(f's_add_u32 s57, s72, {(64*tt + 8*(i>>2) + 4*eta)*1024 + yoff}')
                    a(f'v_xor_b32 v103, {16*i}, v121')
                    off = f' offset:{(i%4)*1024}' if i % 4 else ''
                    a(f'buffer_load_dwordx4 v103, {WS}, s57 offen{off} sc1 lds')
                    vq.issue(f'dma{eta}{tt}')
                L.append(f)
            return L
        g.dstamp('g1', 'setup done')
        poll_check(g, 102, 100, 'pyA')
        g.stamp('g1 yA seen')
        for f in dma_list(0, 0): f()
        for f in dma_list(0, 1)[:4]: f()
        if not hideB: poll_issue(g, 102, 101, 'pyB')
        else: poll_issue(g, 126, 125, 'pxB')
        vq.wait('bias')
        for i in range(4):
            a(f'v_lshlrev_b32 v{48+4*i}, 16, v{104+2*i}')
            a(f'v_and_b32 v{49+4*i}, 0xffff0000, v{104+2*i}')
            a(f'v_lshlrev_b32 v{50+4*i}, 16, v{105+2*i}')
            a(f'v_and_b32 v{51+4*i}, 0xffff0000, v{105+2*i}')
        if hideB:
            poll_check(g, 126, 125, 'pxB')
            a(f's_add_u32 s53, s75, {X2 + 4096}')
            g.vload('v[40:43]', f'v{vL16}', WS, 's53', 0, ' sc1', tag='x2b')
        vq.wait('dma00')
        a('s_barrier')
        g.stamp('g1 yA in lds')
        fill = []
        NB, PF = 8, 7
        WG_ = o.get('g1wait', 4)
        XT = o.get('xtile', 1)
        def Breg(k): return f'v[{64+4*(k%NB)}:{67+4*(k%NB)}]'
        def Bload(u, k): a(f'ds_read_b128 {Breg(k)}, v{4+(k&7)} offset:{(u&1)*32768 + (k>>3)*256}')
        if hideB:
            fill = rowB_fillers(g)
        def tile_ready(u):
            vq.wait(f'dma{u>>1}{u&1}'); a('s_barrier')
            if u == 2:
                for m_ in range(8): a(f'v_add_u32 v{4+m_}, 0x10000, v{4+m_}')
        for u in range(4):
            eta, tt = u >> 1, u & 1
            xt_in = XT and not (hideB and u == 2)
            xt_out = XT and u < 3 and not (hideB and u == 1)
            if u >= 1 and not xt_in: tile_ready(u)
            g.dstamp('g1', f'tile{u} start')
            acc = 16 + 16*(u % 2)
            if u == 0 or not xt_in:
                for k in range(PF): Bload(u, k)
            extra = {}
            if u == 0:
                for i, f in enumerate(dma_list(0, 1)[4:]): extra.setdefault(i, []).append(f)
                if not hideB:
                    pb = o.get('pbslot', 8)
                    extra.setdefault(pb, []).append(lambda: poll_check(g, 102, 101, 'pyB'))
                    for i, f in enumerate(dma_list(1, 0) + dma_list(1, 1)): extra.setdefault(min(31, pb + 1 + (i * (30 - pb)) // 16), []).append(f)
            if u == 1 and hideB:
                g.rl = 1
                extra.setdefault(o.get('hbflag', 0), []).append(lambda: row_flag(g, 1))
                extra.setdefault(o.get('hbiss', 4), []).append(lambda: poll_issue(g, 102, 101, 'pyB'))
                pb = o.get('hbchk', 9)
                extra.setdefault(pb, []).append(lambda: poll_check(g, 102, 101, 'pyB'))
                for i, f in enumerate(dma_list(1, 0) + dma_list(1, 1)): extra.setdefault(min(31, pb + 1 + (i * (30 - pb)) // 16), []).append(f)
            if u == 3:
                extra.setdefault(o.get('fA0', 2), []).append(lambda: hflag(g, 0))
                extra.setdefault(o.get('fA1', 28), []).append(lambda: hflag(g, 1))
                extra.setdefault(29, []).append(lambda: (a(f'v_add_u32 v100, {lay*64*256}, v119'), a('v_add_u32 v101, 512, v100'), poll_issue(g, 102, 100, 'phA')))
            u0 = o.get('wtile0', 1)
            if g.wlist and u >= u0:
                nper = (len(g.wlist) + (3 - u)) // (4 - u)
                span = o.get('wspan', 23)
                for sl in [1 + (i * span) // nper for i in range(nper)]:
                    extra.setdefault(sl, []).append(lambda: g.weight_batch(1))
            if xt_out:
                extra.setdefault(25, []).insert(0, lambda u=u: tile_ready(u + 1))
            sp = spread(fill, 32, (o.get('hbstart', 5) if (u == 0) else 4), (o.get('hbend', 24) if u == 0 else o.get('gend', 27)))
            done = 0
            for k in range(32):
                if k % WG_ == 0:
                    need = min(k + WG_ - 1, 31)
                    if xt_out: issued = k + PF - 1 if k + PF - 1 <= 31 else 31 + max(0, k - 25)
                    else: issued = min(k + PF - 1, 31)
                    a(f's_waitcnt lgkmcnt({max(issued - need, 0)})')
                cin = f'v[48:63]' if k == 0 else f'v[{acc}:{acc+15}]'
                a(f'v_mfma_f32_32x32x16_bf16 v[{acc}:{acc+15}], {W1reg(k)}, {Breg(k)}, {cin}')
                if k + PF < 32: Bload(u, k + PF)
                while done < sp[k]: fill[done](); done += 1
                for f in extra.get(k, []): f()
                if xt_out and k >= 25: Bload(u + 1, k - 25)
            while done < len(fill): fill[done](); done += 1
            g.dstamp('g1', f'tile{u} done')
            if u < 3: fill = gelu_fillers(g, acc, u, 96, 104, False, sch)
            else: fill = gelu_fillers(g, acc, u, 96, 48, True, sch)
        g.dstamp('g1', 'tiles done')
    if not idle:
        for m in range(8): a(f'v_subrev_u32 v{4+m}, 0x10000, v{4+m}')
    NW = 12
    HW = 64
    def Hreg(s): return f'v[{HW+4*(s%NW)}:{HW+3+4*(s%NW)}]'
    def Hload(s):
        eta, i = divmod(s, 28)
        a(f's_add_u32 s54, s69, {eta*2*112*1024 + (i//4)*4096 + hoff}')
        g.vload(Hreg(s), f'v{vL16}', WS, 's54', (i%4)*1024, ' sc1', tag=f'hf{s}')
    a('v_mov_b32 v124, v100'); a('v_mov_b32 v125, v101')
    poll_check(g, 102, 100, 'phA')
    g.stamp('g2 hA seen')
    fill = gelu_fillers(g, 32, 3, 60, 48, True, sch)
    for s in range(NW): Hload(s)
    g.dstamp('g2', 'A loads issued')
    if not idle:
        a.nop(2)
        half = len(fill)//2
        for f in fill[:half]: f()
        hflag(g, 2)
        for f in fill[half:]: f()
    g.stamp('g1 done')
    g.dstamp('g2', 'tail done')
    g.mk_srd(SA, sB2, 1024)
    g.vload('v[56:59]', 'v123', srd(SA), 0, 0, tag='b2')
    a(f's_mov_b32 s53, {X1 + xoff}')
    g.vload('v[60:63]', 'v112', WS, 's53', 0, ' sc1', tag='res0')
    if lay == 0:
        OUT = WS; obase = X2
    else:
        g.mk_srd(SB, sOUT, 2097152); OUT = srd(SB); obase = 0
    sco = g.sc_x if lay == 0 else (' sc1' if o.get('outsc1', 1) else (' nt' if o.get('outnt', 0) else ''))
    def accset(eta, nt):
        return f'a[{224+16*nt}:{239+16*nt}]' if eta == 0 else f'v[{16+16*nt}:{31+16*nt}]'
    def red_write_list(eta):
        LR = eta*32768
        L = []
        for nt in range(2):
            for i in range(4):
                src = f'a[{224+16*nt+4*i}:{224+16*nt+4*i+3}]' if eta == 0 else f'v[{16+16*nt+4*i}:{16+16*nt+4*i+3}]'
                L.append(lambda src=src, i=i, nt=nt: a(f'ds_write_b128 v{115+i}, {src} offset:{LR + nt*128}'))
        return L
    def xflag(eta):
        vq.wait(f'xo{eta}')
        a(f's_add_u32 s53, s67, {eta*512}')
        g.flag('s53')
    def red_small(eta, res):
        LR = eta*32768
        L = []
        for h in range(2):
            ad = 113 + h
            T0, T1 = 48, 52
            b2 = 56 + 2*h; rs = res + 2*h
            L.append(lambda ad=ad: (a(f'ds_read_b128 v[48:51], v{ad} offset:{LR}'), a(f'ds_read_b128 v[52:55], v{ad} offset:{LR + 8192}')))
            def add(): a(f'v_pk_add_f32 {pr(48)}, {pr(48)}, {pr(52)}'); a(f'v_pk_add_f32 {pr(50)}, {pr(50)}, {pr(54)}')
            def sadd():
                for e in range(4): a(f'v_add_f32 v{48+e}, v{48+e}, v{52+e}')
            L.append(lambda ad=ad: (a('s_waitcnt lgkmcnt(0)'), sadd(), a(f'ds_read_b128 v[52:55], v{ad} offset:{LR + 2*8192}')))
            L.append(lambda ad=ad: (a('s_waitcnt lgkmcnt(0)'), sadd(), a(f'ds_read_b128 v[52:55], v{ad} offset:{LR + 3*8192}')))
            L.append(lambda: (a('s_waitcnt lgkmcnt(0)'), sadd()))
            def ub(src):
                a(f'v_lshlrev_b32 v52, 16, v{src}'); a(f'v_and_b32 v53, 0xffff0000, v{src}')
                a(f'v_lshlrev_b32 v54, 16, v{src+1}'); a(f'v_and_b32 v55, 0xffff0000, v{src+1}')
            L.append(lambda b2=b2: (ub(b2), sadd()))
            def rnd():
                a('v_cvt_pk_bf16_f32 v52, v48, v49'); a('v_cvt_pk_bf16_f32 v53, v50, v51')
                a('v_lshlrev_b32 v48, 16, v52'); a('v_and_b32 v49, 0xffff0000, v52')
                a('v_lshlrev_b32 v50, 16, v53'); a('v_and_b32 v51, 0xffff0000, v53')
            L.append(rnd)
            L.append(lambda rs=rs: (vq.wait(f'res{eta}'), ub(rs), sadd()))
            L.append(lambda h=h: (a(f'v_cvt_pk_bf16_f32 v{12+2*h}, v48, v49'), a(f'v_cvt_pk_bf16_f32 v{13+2*h}, v50, v51')))
        def st():
            a(f's_mov_b32 s53, {obase + eta*4096}')
            g.vstore('v[12:15]', 'v112', OUT, 's53', 0, sco, tag=f'xo{eta}')
        L.append(st)
        return L
    def red_big(eta, res, mid=None):
        LR = eta*32768
        T = 64
        for p in range(4):
            a(f'ds_read_b128 v[{T+8*p}:{T+8*p+3}], v113 offset:{LR + p*8192}')
            a(f'ds_read_b128 v[{T+8*p+4}:{T+8*p+7}], v114 offset:{LR + p*8192}')
        g.unpack8(56, T+32)
        a('s_waitcnt lgkmcnt(4)')
        for e in range(4): a(f'v_pk_add_f32 {pr(T+2*e)}, {pr(T+2*e)}, {pr(T+8+2*e)}')
        for e in range(4): a(f'v_pk_add_f32 {pr(T+2*e)}, {pr(T+2*e)}, {pr(T+32+2*e)}')
        a('s_waitcnt lgkmcnt(0)')
        for e in range(4): a(f'v_pk_add_f32 {pr(T+16+2*e)}, {pr(T+16+2*e)}, {pr(T+24+2*e)}')
        for e in range(4): a(f'v_pk_add_f32 {pr(T+2*e)}, {pr(T+2*e)}, {pr(T+16+2*e)}')
        g.pack8(T, T+8); g.unpack8(T+8, T)
        if mid: mid()
        vq.wait(f'res{eta}')
        g.unpack8(res, T+16)
        for e in range(4): a(f'v_pk_add_f32 {pr(T+2*e)}, {pr(T+2*e)}, {pr(T+16+2*e)}')
        g.pack8(T, T+8)
        a(f's_mov_b32 s53, {obase + eta*4096}')
        g.vstore(f'v[{T+8}:{T+11}]', 'v112', OUT, 's53', 0, sco, tag=f'xo{eta}')
    extra = {}
    if not idle: extra.setdefault(o.get('fB1', 3), []).append(lambda: hflag(g, 3))
    extra.setdefault(10, []).append(lambda: poll_issue(g, 126, 125, 'phB'))
    extra.setdefault(15, []).append(lambda: poll_check(g, 126, 125, 'phB'))
    for i, f in enumerate(red_write_list(0)): extra.setdefault(30 + i//2, []).append(f)
    extra.setdefault(35, []).append(lambda: (a('s_waitcnt lgkmcnt(0)'), a('s_barrier')))
    for i, f in enumerate(red_small(0, 60)): extra.setdefault(36 + (i * o.get('rsnum', 2)) // 3, []).append(f)
    def resB():
        a(f's_mov_b32 s53, {X1 + xoff + 4096}')
        g.vload('v[60:63]', 'v112', WS, 's53', 0, ' sc1', tag='res1')
    extra.setdefault(50, []).append(resB)
    for s in range(56):
        eta, i = divmod(s, 28)
        vq.wait(f'hf{s}')
        for nt in range(2):
            acc = accset(eta, nt)
            cin = '0' if i == 0 else acc
            a(f'v_mfma_f32_32x32x16_bf16 {acc}, {W2reg(nt,i)}, {Hreg(s)}, {cin}')
            if nt == 0 and s >= 1 and (s - 1) + NW < 56: Hload(s - 1 + NW)
        if s == 27: g.dstamp('g2', 'A mfma done')
        for f in extra.get(s, []): f()
    def tail():
        g.dstamp('g2', 'B mfma done')
        if lay == 0: xflag(0)
        a.nop(12)
        for f in red_write_list(1): f()
        a('s_waitcnt lgkmcnt(0)')
        a('s_barrier')
        pre = (lay == 0 and o.get('x2pre', 1))
        if pre: poll_issue(g, 110, 122, 'pxA')
        red_big(1, 60, (lambda: (poll_check(g, 110, 122, 'pxA'), a(f's_add_u32 s53, s75, {X2}'), g.vload('v[104:107]', f'v{vL16}', WS, 's53', 0, ' sc1', tag='x2a'))) if pre else None)
        g.dstamp('g2', 'B finished')
        g.xflagB = (lambda: xflag(1))
        if lay == 0 and not pre: xflag(1)
        g.stamp('g2 done')
    return tail, list(vq.ops)

def emit_layer_both(g):
    a = g.a
    if not g.o.get('idleskip', 1):
        tail, ops = emit_layer(g); tail(); return
    Li = a.newlabel('idle'); Ld = a.newlabel('ldone')
    ops0 = list(g.vq.ops); wl0 = list(g.wlist)
    a(f's_cmp_ge_u32 {sR}, 28')
    a(f's_cbranch_scc1 {Li}')
    tail, opsN = emit_layer(g)
    a(f's_branch {Lt(Ld)}')
    a.label(Li)
    g.vq.ops = ops0; g.wlist = wl0
    st = g.stamps
    g.stamps = False
    _, opsI = emit_layer(g, idle=True)
    g.stamps = st
    a.label(Ld)
    k = 0
    while k < min(len(opsN), len(opsI)) and opsN[-1-k] == opsI[-1-k]: k += 1
    assert 'res1' in opsN[len(opsN)-k:] and 'xo0' in opsN[len(opsN)-k:], (opsN, opsI)
    g.vq.ops = opsN[len(opsN)-k:]
    tail()

def Lt(x): return x

def emit_r2(g):
    a = g.a; vq = g.vq
    g.rl = 1
    a(f'v_mov_b32 v{VINV}, 0x3b000000')
    a('v_add_u32 v109, 512, v122')
    g.dstamp('r2', 'r2 begin')
    if g.o.get('x2pre', 1):
        vq.wait('x2a')
        g.unpack8(104, 16)
    else:
        poll_issue(g, 110, 122, 'pxA')
        poll_check(g, 110, 122, 'pxA')
        g.dstamp('r2', 'xA seen')
        a(f's_add_u32 s53, s75, {X2}')
        g.vload('v[60:63]', f'v{vL16}', WS, 's53', 0, ' sc1', tag='x2a')
        poll_issue(g, 110, 109, 'pxB')
        vq.wait('x2a')
        g.unpack8(60, 16)
    g.ln_multi([(16, 24, 52)])
    if g.o.get('x2pre', 1):
        g.xflagB()
        if g.o.get('hideB', 1):
            a('v_add_u32 v125, 512, v122')
        else:
            poll_issue(g, 110, 109, 'pxB')
    rows_finish(g, [(16, 0)], g.sc_x3, g.sc_y1)
    g.dstamp('r2', 'row0 stored')
    if g.o.get('hideB', 1):
        a(f's_lshl_b32 s53, {sW}, 10')
        a(f's_add_u32 s53, s53, {L_G + 4096}')
        a(f'v_add_u32 v111, s53, v{vL16}')
        a('ds_read_b128 v[44:47], v111')
        row_flag(g, 0)
        g.stamp('r2 done')
        return
    poll_check(g, 110, 109, 'pxB')
    a(f's_add_u32 s53, s75, {X2 + 4096}')
    g.vload('v[60:63]', f'v{vL16}', WS, 's53', 0, ' sc1', tag='x2b')
    row_flag(g, 0)
    g.dstamp('r2', 'A flagged')
    vq.wait('x2b')
    g.unpack8(60, 64)
    g.ln_multi([(64, 72, 100)])
    rows_finish(g, [(64, 1)], g.sc_x3, g.sc_y1)
    g.dstamp('r2', 'row1 stored')
    row_flag(g, 1)
    g.stamp('r2 done')

def emit_r1b(g):
    a = g.a
    g.rl = 0
    nw = g.o.get('wb3', 16)
    def w(n):
        nonlocal nw
        k = min(n, nw); nw -= k
        g.weight_batch(k)
    w(3); rows_finish(g, [(16, 0)], ' sc1', g.sc_y0, part=1)
    w(3); rows_finish(g, [(16, 0)], ' sc1', g.sc_y0, part=2)
    rows_finish(g, [(64, 1)], ' sc1', g.sc_y0, part=1)
    row_flag(g, 0)
    w(5); rows_finish(g, [(64, 1)], ' sc1', g.sc_y0, part=2)
    w(100)
    row_flag(g, 1)
    g.stamp('r1 done')

def mlp_setup_rest(g): mlp_setup(g, 1)

def emit_variant(g, fast):
    a = g.a; o = g.o
    g.fast = fast
    g.fsc = '' if fast else ' sc1'
    yt = fast and (o.get('ytouch', 0) or o.get('dstore', 1))
    g.sc_h = ('' if (fast and o.get('dstore', 1) and o.get('dsH', 0)) else ' sc1'); g.sc_x = ('' if (yt and o.get('dsX', 0)) else ' sc1'); g.sc_y0 = ('' if yt else ' sc1')
    g.sc_x3 = ' sc1'; g.sc_y1 = ('' if (fast and o.get('y1plain', 1)) else ' sc1')
    emit_r1b(g)
    if g.stop == 'r1': a('s_branch L_fin'); return
    a(f's_mov_b32 {sLAYER}, 0')
    g.cur_layer = 0
    emit_layer_both(g)
    if g.stop == 'g2': a('s_branch L_fin'); return
    g.cur_layer = 1
    emit_r2(g)
    if g.stop == 'r2': a('s_branch L_fin'); return
    a(f's_mov_b32 {sLAYER}, 1')
    g.sc_h = '' if (fast and o.get('h1plain', 0)) else ' sc1'
    emit_layer_both(g)
    a('s_branch L_fin')

def emit_mlp(g):
    a = g.a
    g.vinv = VINV
    g.r1_hook = lambda: (mlp_setup(g, 0), mlp_setup(g, 1))
    emit_r1a(g)
    ops0 = list(g.vq.ops); wl0 = list(g.wlist)
    a(f's_cmp_eq_u32 {sFAST}, 0')
    a('s_cbranch_scc1 L_slow')
    emit_variant(g, True)
    g.more_code = True
    g.finish()
    a.label('L_slow')
    g.vq.ops = ops0; g.wlist = wl0
    st = g.stamps; g.stamps = False
    emit_variant(g, False)
    g.stamps = st
```

```python
import sys, argparse, struct
from asmlib import Asm, check_hazards, check_waits

NAME = 'interleave_layers__ssm_conv_h3__mixer_channel_mlp__prompt_kernel'

WS_EPOCH = 0x0
F_PREP = 0x1000
F_CONV = 0x2000
F_W = 0x3000
F_XC = 0x3800
DUMMY2 = 0x2D00000
F_Y    = 0x4000
F_H    = 0x8000
F_X    = 0x10000
XR     = 0x100000
W1F    = 0x300000
W2F    = 0x500000
GB     = 0x700000
Y0     = 0x900000
X1     = 0xD00000
X2     = 0xF00000
H0     = 0x1400000
TS     = 0x2400000
WS_SIZE = 0x10000000

L_KVT = 0
L_W1R = 8192
L_W2R = 16384
L_GT  = 0
L_XB = 25600
XBS = 79*96
L_TOEP = 40960
CS = 4160
LDS_SIZE = 163840
L_G = 155648
L_YH = [0, 65536]

sQ, sK, sV, sSK, sSSM, sD, sBX, sW1 = 16, 18, 20, 22, 24, 26, 28, 30
sB1, sW2, sB2, sOUT, sDBG, sWSP = 32, 34, 36, 38, 40, 42
WS = 's[44:47]'
sC, sR, sW, sTAG, sABORT = 's48', 's49', 's50', 's51', 's52'
sLAYER, sT1, sJ = 's64', 's65', 's66'
sXCC, sFAST = 's101', 's3'
SA, SB, SC_, SD_ = 4, 8, 12, 72
def srd(n): return f's[{n}:{n+3}]'
W1B = 128
vL16, vTAG = 2, 3
def W1reg(k): return f'v[{W1B+4*k}:{W1B+4*k+3}]'
def W2reg(nt, i):
    b = (nt*28 + i)*4
    return f'a[{b}:{b+3}]'
def f2u(x): return '0x%08x' % struct.unpack('<I', struct.pack('<f', x))[0]
C1 = 2*0.7978845608028654*1.4426950408889634
C2 = C1*0.044715

class VQ:
    def __init__(self, a): self.a = a; self.ops = []
    def issue(self, tag): self.ops.append(tag)
    def wait(self, tag):
        idx = max(i for i, t in enumerate(self.ops) if t == tag) if tag in self.ops else None
        if idx is None: return
        n = len(self.ops) - 1 - idx
        assert n <= 63, n
        self.a(f's_waitcnt vmcnt({n})')
        self.ops = self.ops[idx+1:]
    def drain(self):
        self.a('s_waitcnt vmcnt(0)'); self.ops = []
    def reset(self): self.ops = []

class Gen:
    def __init__(self, stop='end', stamps=False, opts=None):
        self.a = Asm(); self.vq = VQ(self.a)
        self.stop = stop; self.stamps = stamps
        self.nstamp = 0; self.stamp_names = []
        self.sc = ' sc1'; self.fsc = ' sc1'; self.fast = False; self.vinv = 4
        self.o = opts or {}

    def capture(self, fn):
        saved = self.a.lines
        self.a.lines = []
        fn()
        got = self.a.lines
        self.a.lines = saved
        return got

    def mk_srd(self, n, ptr, size, add=None):
        a = self.a
        if add is None:
            a(f's_mov_b32 s{n}, s{ptr}')
            a(f's_and_b32 s{n+1}, s{ptr+1}, 0xffff')
        else:
            a(f's_add_u32 s{n}, s{ptr}, {add}')
            a(f's_addc_u32 s{n+1}, s{ptr+1}, 0')
            a(f's_and_b32 s{n+1}, s{n+1}, 0xffff')
        a(f's_mov_b32 s{n+2}, {size}')
        a(f's_mov_b32 s{n+3}, 0x00020000')

    def dstamp(self, phase, name):
        if self.o.get('detail') == phase and getattr(self, 'cur_layer', 0) == self.o.get('dlayer', 1): self.stamp(name, False, force=True)
    def stamp(self, name='', inloop=False, force=False):
        if not self.stamps: return
        if self.o.get('detail') and not force and name not in ('start', 'end'): return
        inloop = False
        i = self.nstamp; self.nstamp += 1
        assert self.nstamp <= 24, name
        self.stamp_names.append(name)
        a = self.a
        a(f's_waitcnt lgkmcnt(0)')
        a(f's_memtime s[62:63]' if self.o.get('cyc') else f's_memrealtime s[62:63]')
        a(f's_waitcnt lgkmcnt(0)')
        if inloop:
            a('s_cmp_eq_u32 s64, 0')
            a(f's_cselect_b32 s{76+i}, s62, s{76+i}')
            a(f's_cselect_b32 s{77+i}, s{77+i}, s62')
        else:
            a(f's_mov_b32 s{76+i}, s62')

    def vload(self, dst, voff, sr, soff, imm=0, mods='', tag='ld', w='x4'):
        o = f' offset:{imm}' if imm else ''
        op = {'x4': 'buffer_load_dwordx4', 'x2': 'buffer_load_dwordx2', 'x1': 'buffer_load_dword'}[w]
        self.a(f'{op} {dst}, {voff}, {sr}, {soff} offen{o}{mods}')
        self.vq.issue(tag)
    def vstore(self, src, voff, sr, soff, imm=0, mods='', tag='st'):
        o = f' offset:{imm}' if imm else ''
        self.a(f'buffer_store_dwordx4 {src}, {voff}, {sr}, {soff} offen{o}{mods}')
        self.vq.issue(tag)

    def poll(self, vaddr, vtmp, nlanes=64, x4=False):
        a = self.a
        L = a.newlabel('poll'); D = a.newlabel('polld')
        a(f's_mov_b32 s53, 0')
        if nlanes < 64:
            a(f's_mov_b64 s[56:57], exec')
            a(f's_mov_b64 exec, {hex((1 << nlanes) - 1)}')
        a.label(L)
        if x4:
            a(f'buffer_load_dwordx4 v[{vtmp}:{vtmp+3}], v{vaddr}, {WS}, 0 offen sc1')
            a(f's_waitcnt vmcnt(0)')
            a(f'v_xor_b32 v{vtmp}, {sTAG}, v{vtmp}')
            a(f'v_xor_b32 v{vtmp+1}, {sTAG}, v{vtmp+1}')
            a(f'v_xor_b32 v{vtmp+2}, {sTAG}, v{vtmp+2}')
            a(f'v_xor_b32 v{vtmp+3}, {sTAG}, v{vtmp+3}')
            a(f'v_or_b32 v{vtmp}, v{vtmp}, v{vtmp+1}')
            a(f'v_or3_b32 v{vtmp}, v{vtmp}, v{vtmp+2}, v{vtmp+3}')
            a(f'v_cmp_ne_u32 vcc, 0, v{vtmp}')
        else:
            a(f'buffer_load_dword v{vtmp}, v{vaddr}, {WS}, 0 offen sc1')
            a(f's_waitcnt vmcnt(0)')
            a(f'v_cmp_ne_u32 vcc, {sTAG}, v{vtmp}')
        a(f's_cbranch_vccz {D}')
        a(f's_add_u32 s53, s53, 1')
        a(f's_cmp_lg_u32 {sABORT}, 0')
        a(f's_cbranch_scc1 {D}')
        a(f's_cmp_lt_u32 s53, 0x8000')
        a(f's_cbranch_scc1 {L}')
        a(f's_mov_b32 {sABORT}, 1')
        a.label(D)
        if nlanes < 64:
            a(f's_mov_b64 exec, s[56:57]')
        self.vq.reset()

    def poll_prep(self, vaddr, vt):
        a = self.a
        L = a.newlabel('poll'); D = a.newlabel('polld')
        a(f's_mov_b32 s53, 0')
        a.label(L)
        a(f'buffer_load_dwordx4 v[{vt}:{vt+3}], v{vaddr}, {WS}, 0 offen sc1')
        a(f's_waitcnt vmcnt(0)')
        for i in range(4): a(f'v_subrev_u32 v{vt+i}, {sTAG}, v{vt+i}')
        a(f'v_or_b32 v{vt+4}, v{vt}, v{vt+1}')
        a(f'v_or3_b32 v{vt+4}, v{vt+4}, v{vt+2}, v{vt+3}')
        a(f'v_cmp_lt_u32 vcc, 15, v{vt+4}')
        a(f's_cbranch_vccz {D}')
        a(f's_add_u32 s53, s53, 1')
        a(f's_cmp_lg_u32 {sABORT}, 0')
        a(f's_cbranch_scc1 {D}')
        a(f's_cmp_lt_u32 s53, 0x8000')
        a(f's_cbranch_scc1 {L}')
        a(f's_mov_b32 {sABORT}, 1')
        a.label(D)
        self.vq.reset()

    def dyn_role(self, vt):
        a = self.a
        lo, hi, t, u = vt+5, vt+6, vt+7, vt+8
        a(f'v_mov_b32 v{lo}, 0'); a(f'v_mov_b32 v{hi}, 0')
        for i in range(4):
            a(f'v_and_b32 v{t}, 3, v{vt+i}')
            a(f'v_lshlrev_b32 v{t}, 3, v{t}')
            a(f'v_lshlrev_b32 v{t}, v{t}, 1') if False else a(f'v_lshlrev_b32 v{t}, v{t}, v{vt+9}')
            a(f'v_lshrrev_b32 v{u}, 2, v{vt+i}')
            a(f'v_cmp_eq_u32 vcc, 0, v{u}')
            a.nop(2)
            a(f'v_cndmask_b32 v{vt+10}, 0, v{t}, vcc')
            a(f'v_cmp_eq_u32 vcc, 1, v{u}')
            a(f'v_add_u32 v{lo}, v{lo}, v{vt+10}')
            a.nop(1)
            a(f'v_cndmask_b32 v{vt+10}, 0, v{t}, vcc')
            a(f'v_add_u32 v{hi}, v{hi}, v{vt+10}')
        steps = ['quad_perm:[1,0,3,2] row_mask:0xf bank_mask:0xf', 'quad_perm:[2,3,0,1] row_mask:0xf bank_mask:0xf',
                 'row_half_mirror row_mask:0xf bank_mask:0xf', 'row_mirror row_mask:0xf bank_mask:0xf',
                 'row_bcast:15 row_mask:0xa bank_mask:0xf', 'row_bcast:31 row_mask:0xc bank_mask:0xf']
        a.nop(2)
        for st in steps:
            a(f'v_add_u32_dpp v{lo}, v{lo}, v{lo} {st}')
            a(f'v_add_u32_dpp v{hi}, v{hi}, v{hi} {st}')
            a.nop(1)
        a(f'v_readlane_b32 s56, v{lo}, 63')
        a(f'v_readlane_b32 s57, v{hi}, 63')
        a(f'v_lshlrev_b32 v{t}, 2, v1')
        a('s_mov_b32 s58, 0')
        for i in range(4):
            a(f'v_cmp_eq_u32 vcc, {sXCC}, v{vt+i}')
            a(f'v_add_u32 v{u}, {i}, v{t}')
            a(f'v_cmp_gt_u32 s[54:55], s2, v{u}')
            a.nop(1)
            a('s_and_b64 s[54:55], s[54:55], vcc')
            a('s_bcnt1_i32_b64 s55, s[54:55]')
            a('s_add_u32 s58, s58, s55')
        a('s_cmp_eq_u32 s56, 0x20202020')
        a(f's_cselect_b32 {sFAST}, 1, 0')
        a('s_cmp_eq_u32 s57, 0x20202020')
        a(f's_cselect_b32 {sFAST}, {sFAST}, 0')
        a(f's_cmp_eq_u32 {sABORT}, 0')
        a(f's_cselect_b32 {sFAST}, {sFAST}, 0')
        if self.o.get('force_slow'): a(f's_mov_b32 {sFAST}, 0')
        a(f's_cmp_eq_u32 {sFAST}, 1')
        a(f's_cselect_b32 {sC}, {sXCC}, {sC}')
        a(f's_cselect_b32 {sR}, s58, {sR}')

    def check_xc(self, vt, vaddr):
        a = self.a
        self.vq.wait('fw')
        L = a.newlabel('fw'); D = a.newlabel('fwd')
        a('s_mov_b32 s53, 0')
        a.label(L)
        for i in range(4): a(f'v_subrev_u32 v{vt+i}, {sTAG}, v{vt+i}')
        a(f'v_or_b32 v{vt+5}, v{vt}, v{vt+1}')
        a(f'v_or3_b32 v{vt+5}, v{vt+5}, v{vt+2}, v{vt+3}')
        a(f'v_cmp_lt_u32 vcc, 15, v{vt+5}')
        a(f's_cbranch_vccz {D}')
        a('s_add_u32 s53, s53, 1')
        a(f's_cmp_lg_u32 {sABORT}, 0')
        a(f's_cbranch_scc1 {D}')
        a('s_cmp_lt_u32 s53, 0x8000')
        a(f's_cbranch_scc0 {D}_ab')
        a(f'buffer_load_dwordx4 v[{vt}:{vt+3}], v{vaddr}, {WS}, 0 offen sc1')
        a('s_waitcnt vmcnt(0)')
        a(f's_branch {L}')
        a.label(D + '_ab')
        a(f's_mov_b32 {sABORT}, 1')
        a.label(D)
        a(f'v_mov_b32 v{vt+9}, 1')
        self.dyn_role(vt)
        self.weight_state_init()

    def check_fw(self, vt, vaddr):
        a = self.a
        self.vq.wait('fw2')
        L = a.newlabel('fw'); D = a.newlabel('fwd')
        a('s_mov_b32 s53, 0')
        a.label(L)
        for i in range(4): a(f'v_xor_b32 v{vt+i}, {sTAG}, v{vt+i}')
        a(f'v_or_b32 v{vt}, v{vt}, v{vt+1}')
        a(f'v_or3_b32 v{vt}, v{vt}, v{vt+2}, v{vt+3}')
        a(f'v_cmp_ne_u32 vcc, 0, v{vt}')
        a(f's_cbranch_vccz {D}')
        a('s_add_u32 s53, s53, 1')
        a(f's_cmp_lg_u32 {sABORT}, 0')
        a(f's_cbranch_scc1 {D}')
        a('s_cmp_lt_u32 s53, 0x8000')
        a(f's_cbranch_scc0 {D}_ab')
        a(f'buffer_load_dwordx4 v[{vt}:{vt+3}], v{vaddr}, {WS}, 0 offen sc1')
        a('s_waitcnt vmcnt(0)')
        a(f's_branch {L}')
        a.label(D + '_ab')
        a(f's_mov_b32 {sABORT}, 1')
        a.label(D)

    def flag(self, soff, sc=None):
        sc = self.fsc if sc is None else sc
        self.a(f'buffer_store_dword v{vTAG}, off, {WS}, {soff}{sc}')
        self.vq.issue('flag')

    def reduce_multi(self, regs, sdst):
        a = self.a
        steps = ['quad_perm:[1,0,3,2] row_mask:0xf bank_mask:0xf', 'quad_perm:[2,3,0,1] row_mask:0xf bank_mask:0xf',
                 'row_half_mirror row_mask:0xf bank_mask:0xf', 'row_mirror row_mask:0xf bank_mask:0xf',
                 'row_bcast:15 row_mask:0xa bank_mask:0xf', 'row_bcast:31 row_mask:0xc bank_mask:0xf']
        pad = max(0, 3 - len(regs))
        a.nop(max(0, 2 - (len(regs) - 1)) if len(regs) < 3 else 0)
        for s in steps:
            for r in regs:
                a(f'v_add_f32_dpp v{r}, v{r}, v{r} {s}')
            if pad: a.nop(pad)
        if len(regs) < 2: a.nop(1)
        for r, s in zip(regs, sdst):
            a(f'v_readlane_b32 s{s}, v{r}, 63')
        a.nop(2)

    def ln_multi(self, rows, double=False):
        a = self.a
        def pr(b): return f'v[{b}:{b+1}]'
        for (x, z, t) in rows:
            a(f'v_pk_add_f32 {pr(t)}, {pr(x)}, {pr(x+2)}')
            a(f'v_pk_mul_f32 {pr(t+2)}, {pr(x)}, {pr(x)}')
        for (x, z, t) in rows:
            a(f'v_pk_add_f32 {pr(t+4)}, {pr(x+4)}, {pr(x+6)}')
            a(f'v_pk_fma_f32 {pr(t+2)}, {pr(x+2)}, {pr(x+2)}, {pr(t+2)}')
        for (x, z, t) in rows:
            a(f'v_pk_add_f32 {pr(t)}, {pr(t)}, {pr(t+4)}')
            a(f'v_pk_fma_f32 {pr(t+2)}, {pr(x+4)}, {pr(x+4)}, {pr(t+2)}')
        for (x, z, t) in rows:
            a(f'v_add_f32 v{t}, v{t}, v{t+1}')
            a(f'v_pk_fma_f32 {pr(t+2)}, {pr(x+6)}, {pr(x+6)}, {pr(t+2)}')
        for (x, z, t) in rows:
            a(f'v_add_f32 v{t+2}, v{t+2}, v{t+3}')
        regs = []; sd = []
        for i, (x, z, t) in enumerate(rows):
            regs += [t, t+2]; sd += [58 - 2*i, 59 - 2*i]
        self.reduce_multi(regs, sd)
        for i, (x, z, t) in enumerate(rows):
            s1, s2 = sd[2*i], sd[2*i+1]
            a(f'v_mul_f32 v{t+4}, s{s1}, v{self.vinv}')
            a(f'v_mul_f32 v{t+2}, s{s2}, v{self.vinv}')
        for (x, z, t) in rows:
            a(f'v_fma_f32 v{t+2}, -v{t+4}, v{t+4}, v{t+2}')
        for (x, z, t) in rows:
            a(f'v_max_f32 v{t+2}, 0, v{t+2}')
        if double:
            for (x, z, t) in rows: a(f'v_add_f32 v{t}, 0x3727c5ac, v{t+2}')
            for (x, z, t) in rows: a(f'v_rsq_f32 v{t}, v{t}')
            if len(rows) < 2: a.nop(1)
            for (x, z, t) in rows: a(f'v_mul_f32 v{t+2}, v{t+2}, v{t}')
            for (x, z, t) in rows: a(f'v_fmaak_f32 v{t+2}, v{t+2}, v{t}, 0x3727c5ac')
            for (x, z, t) in rows: a(f'v_rsq_f32 v{t+2}, v{t+2}')
            if len(rows) < 2: a.nop(1)
            for (x, z, t) in rows: a(f'v_mul_f32 v{t+2}, v{t+2}, v{t}')
        else:
            for (x, z, t) in rows:
                a(f'v_add_f32 v{t+2}, 0x3727c5ac, v{t+2}')
            for (x, z, t) in rows:
                a(f'v_rsq_f32 v{t+2}, v{t+2}')
            if len(rows) < 2: a.nop(1)
        for (x, z, t) in rows:
            a(f'v_mul_f32 v{t+4}, v{t+4}, v{t+2}')
        for (x, z, t) in rows:
            for i in range(4):
                a(f'v_pk_fma_f32 {pr(z+2*i)}, {pr(x+2*i)}, {pr(t+2)}, {pr(t+4)} op_sel_hi:[1,0,0] neg_lo:[0,0,1] neg_hi:[0,0,1]')

    def unpack8(self, src, dst):
        a = self.a
        for i in range(4):
            a(f'v_lshlrev_b32 v{dst+2*i}, 16, v{src+i}')
            a(f'v_and_b32 v{dst+2*i+1}, 0xffff0000, v{src+i}')
    def pack8(self, src, dst):
        a = self.a
        for i in range(4):
            a(f'v_cvt_pk_bf16_f32 v{dst+i}, v{src+2*i}, v{src+2*i+1}')

    def prologue(self):
        a = self.a
        a('s_cmp_ge_u32 s2, 256')
        a('s_cbranch_scc1 L_end')
        a('s_load_dwordx16 s[16:31], s[0:1], 0')
        a('s_load_dwordx8 s[32:39], s[0:1], 64')
        a('s_load_dwordx4 s[40:43], s[0:1], 96')
        a('s_getpc_b64 s[68:69]')
        a(f's_and_b32 {sC}, s2, 7')
        a(f's_lshr_b32 {sR}, s2, 3')
        a(f's_mov_b32 {sABORT}, 0')
        a(f's_getreg_b32 {sXCC}, hwreg(HW_REG_XCC_ID)')
        a(f's_min_u32 {sXCC}, {sXCC}, 8')
        a('v_lshrrev_b32 v4, 6, v0')
        a('v_and_b32 v1, 63, v0')
        a(f'v_readfirstlane_b32 {sW}, v4')
        a(f'v_lshlrev_b32 v{vL16}, 4, v1')
        if self.o.get('prefetch', True) and self.o.get('pfearly', 1) and self.stop != 'x': self.code_prefetch()
        a('s_waitcnt lgkmcnt(0)')
        self.mk_srd(44, sWSP, WS_SIZE)
        self.stamp('start')
        if self.stamps:
            a('s_memtime s[62:63]'); a('s_waitcnt lgkmcnt(0)'); a('s_mov_b32 s100, s62')
        a(f'buffer_load_dword v{vTAG}, off, {WS}, 0 sc1')
        self.vq.issue('epoch')

    def code_prefetch(self):
        a = self.a
        a('s_and_b32 s68, s68, 0xffffff00')
        a('s_and_b32 s69, s69, 0xffff')
        a(f's_mov_b32 s{SD_}, s68'); a(f's_mov_b32 s{SD_+1}, s69')
        a(f's_mov_b32 s{SD_+2}, CODE_BYTES')
        a(f's_mov_b32 s{SD_+3}, 0x00020000')
        a('v_lshlrev_b32 v87, 7, v0')
        a(f'buffer_load_dword v254, v87, {srd(SD_)}, 0 offen'); self.vq.issue('pf')
        a('v_add_u32 v87, 0x8000, v87')
        a(f'buffer_load_dword v254, v87, {srd(SD_)}, 0 offen'); self.vq.issue('pf')

    def pretouch(self):
        a = self.a
        a(f's_min_u32 s58, {sXCC}, 7')
        a('s_lshl_b32 s53, s58, 18')
        a(f's_lshl_b32 s54, {sR}, 13')
        a('s_add_u32 s53, s53, s54')
        a('v_lshlrev_b32 v88, 7, v1')
        Ls = a.newlabel('pt')
        a(f's_cmp_lg_u32 {sW}, 3')
        a(f's_cbranch_scc1 {Ls}'); a.comment('COND_BEGIN')
        self.mk_srd(SD_, sQ, 2097152)
        a(f'buffer_load_dword v255, v88, {srd(SD_)}, s53 offen')
        self.mk_srd(SD_, sB1, 3584)
        a(f'buffer_load_dword v255, v88, {srd(SD_)}, 0 offen')
        self.mk_srd(SD_, sB2, 1024)
        a(f'buffer_load_dword v255, v88, {srd(SD_)}, 0 offen')
        self.mk_srd(SD_, sOUT, 2097152)
        a(f'buffer_load_dword v255, off, {srd(SD_)}, s53')
        a('v_lshlrev_b32 v87, 21, v1')
        a('v_min_u32 v87, 0x1c00000, v87')
        a(f'buffer_load_dword v255, v87, {WS}, 0 offen')
        a.label(Ls); a.comment('COND_END')
        if self.o.get('ytouch', 0):
            Ls = a.newlabel('pt2')
            a(f's_cmp_lg_u32 {sW}, 2')
            a(f's_cbranch_scc1 {Ls}'); a.comment('COND_BEGIN')
            a(f's_add_u32 s53, s53, {Y0}')
            a(f'buffer_load_dword v255, v88, {WS}, s53 offen')
            a.label(Ls); a.comment('COND_END')
            Ls = a.newlabel('pt3')
            a(f's_cmp_lg_u32 {sW}, 1')
            a(f's_cbranch_scc1 {Ls}'); a.comment('COND_BEGIN')
            a(f's_lshr_b32 s53, {sR}, 3')
            a('s_lshl_b32 s53, s53, 5')
            a('v_and_b32 v87, 31, v1')
            a('v_add_u32 v87, s53, v87')
            a('v_lshrrev_b32 v88, 2, v87')
            a('v_lshlrev_b32 v88, 3, v88')
            a('v_and_b32 v87, 3, v87')
            a('v_add_u32 v87, v87, v88')
            a('v_lshrrev_b32 v88, 5, v1')
            a('v_lshl_add_u32 v87, v88, 2, v87')
            a('s_lshl_b32 s53, s58, 8')
            a('v_add_u32 v87, s53, v87')
            a('v_lshlrev_b32 v87, 10, v87')
            a(f's_and_b32 s53, {sR}, 7')
            a('s_lshl_b32 s53, s53, 7')
            a(f's_add_u32 s53, s53, {X2}')
            a(f'buffer_load_dword v255, v87, {WS}, s53 offen')
            a.label(Ls); a.comment('COND_END')

    def pretouch_late(self):
        a = self.a
        a(f's_lshl_b32 s53, {sC}, 18')
        a(f's_lshl_b32 s54, {sR}, 13')
        a('s_add_u32 s53, s53, s54')
        a('v_lshlrev_b32 v8, 7, v1')
        Ls = a.newlabel('pt')
        a(f's_cmp_lg_u32 {sW}, 3')
        a(f's_cbranch_scc1 {Ls}'); a.comment('COND_BEGIN')
        self.mk_srd(SD_, sQ, 2097152)
        a(f'buffer_load_dword v255, v8, {srd(SD_)}, s53 offen')
        self.mk_srd(SD_, sB1, 3584)
        a(f'buffer_load_dword v255, v8, {srd(SD_)}, 0 offen')
        self.mk_srd(SD_, sB2, 1024)
        a(f'buffer_load_dword v255, v8, {srd(SD_)}, 0 offen')
        self.mk_srd(SD_, sOUT, 2097152)
        a(f'buffer_load_dword v255, off, {srd(SD_)}, s53')
        a('v_lshlrev_b32 v9, 21, v1')
        a('v_min_u32 v9, 0x1c00000, v9')
        a(f'buffer_load_dword v255, v9, {WS}, 0 offen')
        a.label(Ls); a.comment('COND_END')
        if self.o.get('ytouch', 0):
            Ls = a.newlabel('pt2')
            a(f's_cmp_lg_u32 {sW}, 2')
            a(f's_cbranch_scc1 {Ls}'); a.comment('COND_BEGIN')
            a(f's_add_u32 s53, s53, {Y0}')
            a(f'buffer_load_dword v255, v8, {WS}, s53 offen')
            a.label(Ls); a.comment('COND_END')
            Ls = a.newlabel('pt3')
            a(f's_cmp_lg_u32 {sW}, 1')
            a(f's_cbranch_scc1 {Ls}'); a.comment('COND_BEGIN')
            a(f's_lshr_b32 s53, {sR}, 3')
            a('s_lshl_b32 s53, s53, 5')
            a('v_and_b32 v9, 31, v1')
            a('v_add_u32 v9, s53, v9')
            a('v_lshrrev_b32 v10, 2, v9')
            a('v_lshlrev_b32 v10, 3, v10')
            a('v_and_b32 v9, 3, v9')
            a('v_add_u32 v9, v9, v10')
            a('v_lshrrev_b32 v10, 5, v1')
            a('v_lshl_add_u32 v9, v10, 2, v9')
            a(f's_lshl_b32 s53, {sC}, 8')
            a('v_add_u32 v9, s53, v9')
            a('v_lshlrev_b32 v9, 10, v9')
            a(f's_and_b32 s53, {sR}, 7')
            a('s_lshl_b32 s53, s53, 7')
            a(f's_add_u32 s53, s53, {X2}')
            a(f'buffer_load_dword v255, v9, {WS}, s53 offen')
            a.label(Ls); a.comment('COND_END')

    def prep(self):
        a = self.a; vq = self.vq
        a('v_lshrrev_b32 v8, 3, v0')
        a('v_and_b32 v9, 7, v0')
        a('v_lshlrev_b32 v8, 15, v8')
        a('v_lshl_add_u32 v8, v9, 4, v8')
        a(f's_lshl_b32 s53, {sC}, 5')
        a(f's_add_u32 s53, s53, {sR}')
        a('s_lshl_b32 s53, s53, 7')
        a(f's_add_u32 s53, s53, {GB}')
        for i in range(4): a(f'v_mov_b32 v{160+i}, -1')
        self.clear_g = True
        HR = 56
        def hblock():
            a(f's_lshl_b32 s53, {sC}, 5')
            a(f's_add_u32 s53, s53, {sR}')
            a('s_lshl_b32 s53, s53, 1')
            a(f's_lshr_b32 s54, {sW}, 1')
            a('s_add_u32 s53, s53, s54')
            a('s_lshl_b32 s53, s53, 12')
            self.mk_srd(SC_, sSSM, 4096, add='s53')
            a('v_and_b32 v54, 127, v0')
            a('v_lshlrev_b32 v51, 4, v54')
            a('v_subrev_u32 v52, 64, v51')
            a('v_subrev_u32 v53, 48, v51')
            HR = 56
            for rho in range(3):
                if rho:
                    a(f'v_add_u32 v52, 2048, v52')
                    a(f'v_add_u32 v53, 2048, v53')
                self.vload(f'v[{HR+8*rho}:{HR+8*rho+3}]', 'v52', srd(SC_), 0, tag='hr')
                self.vload(f'v[{HR+8*rho+4}:{HR+8*rho+7}]', 'v53', srd(SC_), 0, tag='hr')

        if self.o.get('hrfirst', 0): hblock()
        a('v_lshrrev_b32 v4, 5, v0')
        a('v_and_b32 v5, 31, v0')
        a(f's_lshl_b32 s53, {sR}, 16')
        a(f's_lshl_b32 s54, {sC}, 7')
        a('s_add_u32 s53, s53, s54')
        a('v_lshlrev_b32 v6, 13, v4')
        a('v_lshl_add_u32 v6, v5, 2, v6')
        a('v_add_u32 v6, s53, v6')
        a('v_subrev_u32 v7, 3072, v6')
        a('v_add_u32 v8, 4096, v6')
        self.mk_srd(SA, sK, 2097152)
        self.mk_srd(SB, sV, 2097152)
        self.mk_srd(SC_, sSK, 4096)
        K = 10
        for i in range(3): self.vload(f'v{K+i}', 'v7', srd(SA), 0, 1024*i, w='x1', tag='kv')
        for i in range(4): self.vload(f'v{K+3+i}', 'v6', srd(SA), 0, 1024*i, w='x1', tag='kv')
        for i in range(4): self.vload(f'v{K+7+i}', 'v8', srd(SA), 0, 1024*i, w='x1', tag='kv')
        V = 21
        for i in range(4): self.vload(f'v{V+i}', 'v6', srd(SB), 0, 1024*i, w='x1', tag='kv')
        for i in range(4): self.vload(f'v{V+4+i}', 'v8', srd(SB), 0, 1024*i, w='x1', tag='kv')
        a(f's_lshl_b32 s53, {sC}, 9')
        a('v_lshlrev_b32 v9, 4, v5')
        a('v_add_u32 v9, s53, v9')
        self.vload('v[30:33]', 'v9', srd(SC_), 0, tag='kv')
        if self.o.get('kvbar', 0): a('s_barrier')
        if not self.o.get('hrfirst', 0): hblock()
        if self.o.get('prefetch', True) and not self.o.get('pfearly', 1): self.code_prefetch()
        a(f's_lshl_b32 s53, {sC}, 5')
        a(f's_add_u32 s53, s53, {sR}')
        a('s_lshl_b32 s53, s53, 7')
        a(f's_add_u32 s53, s53, {GB}')
        a('v_lshrrev_b32 v85, 3, v0')
        a('v_and_b32 v86, 7, v0')
        a('v_lshlrev_b32 v85, 15, v85')
        a('v_lshl_add_u32 v85, v86, 4, v85')
        self.vstore('v[160:163]', 'v85', WS, 's53', 0, ' sc1', tag='clr')
        a(f's_add_u32 s53, s53, {32*32768}')
        self.vstore('v[160:163]', 'v85', WS, 's53', 0, ' sc1', tag='clr')
        a(f's_lshl_b32 s53, {sC}, 5')
        a(f's_add_u32 s53, s53, {sR}')
        a('s_lshl_b32 s53, s53, 2')
        a(f's_add_u32 s54, s{sD}, s53')
        a(f's_addc_u32 s55, s{sD+1}, 0')
        a('s_load_dword s60, s[54:55], 0')
        if self.o.get('pretouch', 2) == 2: self.pretouch()

        a('v_mov_b32 v80, 0'); a('v_mov_b32 v81, 0'); a('v_mov_b32 v82, 0'); a('v_mov_b32 v83, 0')
        a('v_lshlrev_b32 v84, 4, v0')
        a('v_cmp_gt_u32 vcc, 90, v0')
        a('s_and_saveexec_b64 s[56:57], vcc')
        a(f'ds_write_b128 v84, v[80:83] offset:{L_XB + 64*96}')
        a(f'ds_write_b128 v84, v[80:83] offset:{L_XB + XBS + 64*96}')
        a('s_mov_b64 exec, s[56:57]')
        if self.o.get('toepearly', 0):
            vq.wait('hr')
            a('v_and_b32 v54, 127, v0')
            a('v_lshlrev_b32 v50, 4, v54')
            a(f's_lshr_b32 s53, {sW}, 1')
            a(f's_mul_i32 s53, s53, {8*CS}')
            a(f's_add_u32 s53, s53, {L_TOEP}')
            a('v_add_u32 v50, s53, v50')
            for rho in range(3):
                D = HR + 8*rho
                if rho == 2:
                    a('v_cmp_gt_u32 vcc, 3, v54')
                    a('s_and_saveexec_b64 s[56:57], vcc')
                O = 100
                for k in range(7): a(f'v_alignbit_b32 v{O+k}, v{D+k+1}, v{D+k}, 16')
                for k in range(1, 7): a(f'v_alignbit_b32 v{110+k-1}, v{D+k+1}, v{D+k}, 16')
                for k in range(1, 7): a(f'v_mov_b32 v{120+k-1}, v{D+k}')
                off = rho*2048
                srcs = [O+0, 120, 110, D+2, O+2, 122, 112, D+4]
                for sg in range(8):
                    a(f'ds_write_b128 v50, v[{srcs[sg]}:{srcs[sg]+3}] offset:{sg*CS + off}')
                if rho < 2: a.nop(1)
                if rho == 2: a('s_mov_b64 exec, s[56:57]')
            self.stamp('toeplitz done')
        vq.wait('kv')
        self.stamp('kv loaded')
        if self.o.get('pretouch', 2) == 3: self.pretouch()
        a(f'v_add_u32 v{vTAG}, 16, v{vTAG}')
        Wp = 90
        a(f'v_lshlrev_b32 v{Wp+0}, 16, v30'); a(f'v_lshlrev_b32 v{Wp+1}, 16, v32')
        a(f'v_readfirstlane_b32 {sTAG}, v{vTAG}')
        a(f'v_and_b32 v{Wp+2}, 0xffff0000, v30'); a(f'v_and_b32 v{Wp+3}, 0xffff0000, v32')
        a(f'v_lshlrev_b32 v{Wp+4}, 16, v31'); a(f'v_lshlrev_b32 v{Wp+5}, 16, v33')
        a(f'v_and_b32 v{Wp+6}, 0xffff0000, v31'); a(f'v_and_b32 v{Wp+7}, 0xffff0000, v33')
        Lx = a.newlabel('noxc')
        a(f's_cmp_lg_u32 {sW}, 0')
        a(f's_cbranch_scc1 {Lx}'); a.comment('COND_BEGIN')
        a('s_lshl_b32 s53, s2, 2')
        a(f's_add_u32 s53, s53, {F_XC}')
        a(f'v_add_u32 v85, {sXCC}, v{vTAG}')
        a(f'buffer_store_dword v85, off, {WS}, s53 sc1')
        a.label(Lx); a.comment('COND_END')
        KU = 100
        for i in range(11):
            a(f'v_lshlrev_b32 v{KU+2*i}, 16, v{K+i}')
            a(f'v_and_b32 v{KU+2*i+1}, 0xffff0000, v{K+i}')
        VU = 122
        for i in range(8):
            a(f'v_lshlrev_b32 v{VU+2*i}, 16, v{V+i}')
            a(f'v_and_b32 v{VU+2*i+1}, 0xffff0000, v{V+i}')
        AC = 140
        def pr(b): return f'v[{b}:{b+1}]'
        for t, wq in enumerate([6, 4, 2, 0]):
            for i in range(8):
                if t == 0: a(f'v_pk_mul_f32 {pr(AC+2*i)}, {pr(KU+2*(i+0))}, {pr(Wp+6)}')
                else: a(f'v_pk_fma_f32 {pr(AC+2*i)}, {pr(KU+2*(i+t))}, {pr(Wp+wq)}, {pr(AC+2*i)}')
        for i in range(8):
            a(f'v_pk_mul_f32 {pr(AC+2*i)}, {pr(AC+2*i)}, {pr(VU+2*i)}')
        for j in range(4):
            hi, lo = 7 - 2*j - 1, 7 - 2*j
            a(f'v_cvt_pk_bf16_f32 v{160+j}, v{AC+2*lo}, v{AC+2*hi}')
            a(f'v_cvt_pk_bf16_f32 v{164+j}, v{AC+2*lo+1}, v{AC+2*hi+1}')
        a('v_sub_u32 v85, 7, v4')
        a('v_and_b32 v9, 7, v5')
        a('v_xor_b32 v85, v85, v9')
        a('v_lshlrev_b32 v85, 4, v85')
        a('v_lshl_add_u32 v85, v5, 8, v85')
        a(f'ds_write_b128 v85, v[160:163] offset:{L_KVT}')
        a(f'ds_write_b128 v85, v[164:167] offset:{L_KVT+128}')
        a('v_lshrrev_b32 v85, 3, v0')
        a('v_and_b32 v9, 7, v0')
        a('v_bfe_u32 v29, v85, 1, 3')
        a('v_xor_b32 v29, v29, v9')
        a('v_lshlrev_b32 v29, 4, v29')
        a('v_lshl_add_u32 v29, v85, 7, v29')
        a(f's_lshl_b32 s53, {sC}, 18')
        a(f's_lshl_b32 s54, {sR}, 7')
        a('s_sub_u32 s53, s53, s54')
        a(f's_add_u32 s53, s53, {XR + 3968}')
        a('v_lshlrev_b32 v50, 12, v85')
        a('v_lshl_add_u32 v50, v9, 4, v50')
        a('v_add_u32 v51, 0x20000, v50')
        a('s_waitcnt lgkmcnt(0)')
        a('s_barrier')
        a(f'ds_read_b128 v[160:163], v29 offset:{L_KVT}')
        a(f'ds_read_b128 v[164:167], v29 offset:{L_KVT+4096}')
        a('s_waitcnt lgkmcnt(1)')
        self.vstore('v[160:163]', 'v50', WS, 's53', 0, ' sc1', tag='xr')
        a('s_waitcnt lgkmcnt(0)')
        self.vstore('v[164:167]', 'v51', WS, 's53', 0, ' sc1', tag='xr')
        self.stamp('xr stored')
        self.mk_srd(SA, sW1, 512*1792*2)
        self.mk_srd(SB, sW2, 512*1792*2)
        a(f's_lshl_b32 s53, {sR}, 4')
        a(f's_lshl_b32 s54, {sW}, 2')
        a('s_add_u32 s53, s53, s54')
        a('s_mul_i32 s53, s53, 3584')
        a(f's_mul_i32 s54, {sC}, 448')
        a('s_add_u32 s53, s53, s54')
        a('v_lshrrev_b32 v34, 4, v1')
        a('v_and_b32 v9, 15, v1')
        a('v_mul_u32_u24 v29, 3584, v34')
        a('v_lshl_add_u32 v29, v9, 4, v29')
        a('v_add_u32 v29, s53, v29')
        self.vload('v[196:199]', 'v29', srd(SA), 0, tag='wr')
        self.vload('v[200:203]', 'v29', srd(SA), 0, 256, tag='wr')
        a('s_lshr_b32 s53, s2, 1')
        a('s_lshl_b32 s53, s53, 14')
        a('s_and_b32 s54, s2, 1')
        a('s_lshl_b32 s54, s54, 9')
        a('s_add_u32 s53, s53, s54')
        a('v_lshrrev_b32 v42, 4, v0')
        a('v_lshlrev_b32 v50, 10, v42')
        a('v_lshl_add_u32 v50, v9, 4, v50')
        a('v_add_u32 v50, s53, v50')
        self.vload('v[204:207]', 'v50', srd(SB), 0, tag='wr')
        self.vload('v[208:211]', 'v50', srd(SB), 0, 256, tag='wr')
        vq.wait('xr')
        a('s_barrier')
        Lnf = a.newlabel('noflag')
        a(f's_cmp_lg_u32 {sW}, 0')
        a(f's_cbranch_scc1 {Lnf}'); a.comment('COND_BEGIN')
        a(f's_lshl_b32 s53, {sC}, 5')
        a(f's_add_u32 s53, s53, {sR}')
        a('s_lshl_b32 s53, s53, 2')
        a(f's_add_u32 s53, s53, {F_PREP}')
        a(f'buffer_store_dword v{vTAG}, off, {WS}, s53 sc1')
        a.label(Lnf); a.comment('COND_END')
        self.stamp('prep published')
        if not self.o.get('toepearly', 0):
            a('v_and_b32 v54, 127, v0')
            a('v_lshlrev_b32 v50, 4, v54')
            a(f's_lshr_b32 s53, {sW}, 1')
            a(f's_mul_i32 s53, s53, {8*CS}')
            a(f's_add_u32 s53, s53, {L_TOEP}')
            a('v_add_u32 v50, s53, v50')
            for rho in range(3):
                D = HR + 8*rho
                if rho == 2:
                    a('v_cmp_gt_u32 vcc, 3, v54')
                    a('s_and_saveexec_b64 s[56:57], vcc')
                O = 100
                for k in range(7): a(f'v_alignbit_b32 v{O+k}, v{D+k+1}, v{D+k}, 16')
                for k in range(1, 7): a(f'v_alignbit_b32 v{110+k-1}, v{D+k+1}, v{D+k}, 16')
                for k in range(1, 7): a(f'v_mov_b32 v{120+k-1}, v{D+k}')
                off = rho*2048
                srcs = [O+0, 120, 110, D+2, O+2, 122, 112, D+4]
                for sg in range(8):
                    a(f'ds_write_b128 v50, v[{srcs[sg]}:{srcs[sg]+3}] offset:{sg*CS + off}')
                if rho < 2: a.nop(1)
                if rho == 2: a('s_mov_b64 exec, s[56:57]')
            self.stamp('toeplitz done')

    def w_transpose(self):
        a = self.a; vq = self.vq
        vq.wait('wr')
        a('v_lshrrev_b32 v212, 4, v0')
        a('v_and_b32 v213, 15, v0')
        a('v_mul_u32_u24 v214, 448, v212')
        a('v_lshl_add_u32 v214, v213, 4, v214')
        a(f'ds_write_b128 v214, v[196:199] offset:{L_W1R}')
        a('v_cmp_gt_u32 vcc, 12, v213')
        a('s_and_saveexec_b64 s[56:57], vcc')
        a(f'ds_write_b128 v214, v[200:203] offset:{L_W1R+256}')
        a('s_mov_b64 exec, s[56:57]')
        a('v_mul_u32_u24 v214, 576, v212')
        a('v_lshl_add_u32 v214, v213, 4, v214')
        a(f'ds_write_b128 v214, v[204:207] offset:{L_W2R}')
        a(f'ds_write_b128 v214, v[208:211] offset:{L_W2R+256}')
        a('v_lshrrev_b32 v212, 5, v1')
        a('v_bfe_u32 v213, v1, 2, 2')
        a('v_bfe_u32 v214, v1, 4, 1')
        a('v_and_b32 v215, 3, v1')
        a('v_lshlrev_b32 v215, 3, v215')
        a('v_lshl_add_u32 v215, v214, 5, v215')
        a('v_lshl_add_u32 v216, v212, 3, v213')
        a('v_mul_u32_u24 v216, 448, v216')
        a('v_add_u32 v216, v216, v215')
        a(f's_lshl_b32 s54, {sW}, 6')
        a('v_add_u32 v216, s54, v216')
        a('v_lshl_add_u32 v217, v212, 2, v213')
        a('v_mul_u32_u24 v217, 576, v217')
        a('v_add_u32 v217, v217, v215')
        a('v_add_u32 v217, s54, v217')
        a('s_waitcnt lgkmcnt(0)')
        a('s_barrier')
        a(f'ds_read_b64_tr_b16 v[168:169], v216 offset:{L_W1R}')
        a(f'ds_read_b64_tr_b16 v[170:171], v216 offset:{L_W1R + 4*448}')
        a(f'ds_read_b64_tr_b16 v[172:173], v216 offset:{L_W1R + 256}')
        a(f'ds_read_b64_tr_b16 v[174:175], v216 offset:{L_W1R + 4*448 + 256}')
        a(f'ds_read_b64_tr_b16 v[176:177], v217 offset:{L_W2R}')
        a(f'ds_read_b64_tr_b16 v[178:179], v217 offset:{L_W2R + 8*576}')
        a(f'ds_read_b64_tr_b16 v[180:181], v217 offset:{L_W2R + 256}')
        a(f'ds_read_b64_tr_b16 v[182:183], v217 offset:{L_W2R + 8*576 + 256}')
        a(f's_mul_i32 s53, {sC}, 7')
        a(f's_add_u32 s53, s53, {sW}')
        a(f's_mul_i32 s54, {sR}, 56')
        a('s_add_u32 s53, s53, s54')
        a('s_lshl_b32 s53, s53, 10')
        a(f's_add_u32 s53, s53, {W1F}')
        a(f's_add_u32 s55, s53, {4*1024}')
        a('s_lshl_b32 s57, s2, 12')
        a(f's_add_u32 s57, s57, {DUMMY2}')
        a(f's_cmp_eq_u32 {sW}, 3')
        a('s_cselect_b32 s55, s57, s55')
        a('s_waitcnt lgkmcnt(4)')
        self.vstore('v[168:171]', f'v{vL16}', WS, 's53', 0, ' sc1', tag='wf')
        self.vstore('v[172:175]', f'v{vL16}', WS, 's55', 0, ' sc1', tag='wf')
        a('s_mov_b32 s4, s53'); a('s_mov_b32 s5, s55')
        a('s_lshr_b32 s54, s2, 1')
        a('s_mul_i32 s55, s54, 9363')
        a('s_lshr_b32 s55, s55, 18')
        a('s_mul_i32 s56, s55, 28')
        a('s_sub_u32 s54, s54, s56')
        a('s_lshl_b32 s54, s54, 2')
        a('s_add_u32 s54, s54, s55')
        a('s_lshl_b32 s54, s54, 4')
        a('s_and_b32 s53, s2, 1')
        a('s_lshl_b32 s53, s53, 3')
        a(f's_add_u32 s53, s53, {sW}')
        a('s_add_u32 s53, s53, s54')
        a('s_lshl_b32 s53, s53, 10')
        a(f's_add_u32 s53, s53, {W2F}')
        a('s_cmp_ge_u32 s2, 224')
        a('s_cselect_b32 s53, s57, s53')
        a('s_waitcnt lgkmcnt(0)')
        self.vstore('v[176:179]', f'v{vL16}', WS, 's53', 0, ' sc1', tag='wf')
        a('s_mov_b32 s6, s53')
        a(f's_add_u32 s54, s53, {4*1024}')
        a('s_cselect_b32 s53, s57, s54') if False else None
        a('s_cmp_ge_u32 s2, 224')
        a('s_cselect_b32 s53, s57, s54')
        self.vstore('v[180:183]', f'v{vL16}', WS, 's53', 0, ' sc1', tag='wf')
        a('s_mov_b32 s7, s53')

    def dummy_stores(self):
        a = self.a
        Ls = a.newlabel('nods')
        a(f's_cmp_eq_u32 {sFAST}, 0')
        a(f's_cbranch_scc1 {Ls}'); a.comment('COND_BEGIN')
        D = 'v[192:195]'
        if self.o.get('dsH', 0):
            a(f's_lshl_b32 s53, {sC}, 1')
            a(f's_add_u32 s53, s53, {sT1}')
            a('s_mul_i32 s53, s53, 448')
            a(f's_lshl_b32 s54, {sJ}, 2')
            a(f's_add_u32 s54, s54, {sW}')
            a('s_min_u32 s54, s54, 55')
            a('s_lshl_b32 s54, s54, 1')
            a('s_add_u32 s53, s53, s54')
            a('s_lshl_b32 s53, s53, 10')
            a(f's_add_u32 s53, s53, {H0}')
            for u in range(4):
                a(f'buffer_store_dwordx4 {D}, v{vL16}, {WS}, s53 offen')
                a(f'buffer_store_dwordx4 {D}, v{vL16}, {WS}, s53 offen offset:1024')
                if u < 3: a(f's_add_u32 s53, s53, {112*1024}')
        a(f's_lshl_b32 s53, {sC}, 8')
        a(f's_lshl_b32 s54, {sR}, 3')
        a('s_add_u32 s53, s53, s54')
        a(f's_add_u32 s53, s53, {sW}')
        a('s_lshl_b32 s53, s53, 10')
        a(f's_add_u32 s53, s53, {Y0}')
        a(f'buffer_store_dwordx4 {D}, v{vL16}, {WS}, s53 offen')
        a('s_add_u32 s53, s53, 4096')
        a(f'buffer_store_dwordx4 {D}, v{vL16}, {WS}, s53 offen')
        if not self.o.get('dsX', 0):
            a.label(Ls); a.comment('COND_END'); return
        a('v_lshrrev_b32 v8, 3, v0')
        a(f's_lshr_b32 s53, {sR}, 3')
        a('s_lshl_b32 s53, s53, 5')
        a('v_add_u32 v8, s53, v8')
        a('v_lshrrev_b32 v9, 2, v8')
        a('v_lshlrev_b32 v9, 3, v9')
        a('v_and_b32 v8, 3, v8')
        a('v_add_u32 v8, v8, v9')
        a(f's_lshl_b32 s53, {sC}, 8')
        a('v_add_u32 v8, s53, v8')
        a('v_lshlrev_b32 v8, 10, v8')
        a('v_and_b32 v9, 7, v0')
        a('v_lshl_add_u32 v8, v9, 4, v8')
        a(f's_and_b32 s53, {sR}, 7')
        a('s_lshl_b32 s53, s53, 7')
        a(f's_add_u32 s53, s53, {X2}')
        a(f'buffer_store_dwordx4 {D}, v8, {WS}, s53 offen')
        a('s_add_u32 s53, s53, 4096')
        a(f'buffer_store_dwordx4 {D}, v8, {WS}, s53 offen')
        a.label(Ls); a.comment('COND_END')

    def weight_state_init(self):
        a = self.a
        a(f's_cmp_ge_u32 {sR}, 14')
        a(f's_cselect_b32 {sT1}, 1, 0')
        a(f's_mul_i32 s53, {sT1}, 14')
        a(f's_sub_u32 {sJ}, {sR}, s53')
        a(f's_lshl_b32 s14, {sJ}, 2')
        a(f's_add_u32 s14, s14, {sW}')
        a('s_min_u32 s14, s14, 55')
        a('s_lshl_b32 s14, s14, 10')
        a(f's_add_u32 s14, s14, {W1F}')
        a(f's_and_b32 s15, {sR}, 7')
        a('s_lshl_b32 s15, s15, 1')
        a(f's_lshl_b32 s53, {sW}, 4')
        a('s_add_u32 s15, s15, s53')
        a('s_lshl_b32 s15, s15, 10')
        a(f's_add_u32 s15, s15, {W2F}')
        self.wlist = [('w1', k) for k in range(32)] + [('w2', nt, i) for i in range(28) for nt in range(2)]
    def weight_batch(self, n):
        a = self.a
        for _ in range(n):
            if not self.wlist: return
            it = self.wlist.pop(0)
            if it[0] == 'w1':
                k = it[1]
                a(f's_add_u32 s13, s14, {k*56*1024}')
                self.vload(W1reg(k), f'v{vL16}', WS, 's13', 0, ' sc1', tag='w')
            else:
                _, nt, i = it
                a(f's_add_u32 s13, s15, {i*64*1024}')
                self.vload(W2reg(nt, i), f'v{vL16}', WS, 's13', nt*1024, ' sc1', tag='w')

    def conv(self):
        a = self.a; vq = self.vq; o = self.o
        a(f's_lshl_b32 s53, {sC}, 7')
        a(f's_add_u32 s53, s53, {F_PREP}')
        a('v_and_b32 v5, 31, v1')
        a('v_lshlrev_b32 v5, 2, v5')
        a('v_add_u32 v5, s53, v5')
        self.poll(5, 8)
        self.stamp('prep flags seen')
        a(f's_lshl_b32 s53, {sC}, 5')
        a(f's_add_u32 s53, s53, {sR}')
        a('s_lshl_b32 s61, s53, 7')
        a('s_lshl_b32 s53, s53, 13')
        a(f's_add_u32 s53, s53, {XR}')
        a('v_lshlrev_b32 v5, 4, v0')
        self.vload('v[184:187]', 'v5', WS, 's53', 0, ' sc1', tag='x0')
        a('s_add_u32 s53, s53, 4096')
        self.vload('v[188:191]', 'v5', WS, 's53', 0, ' sc1', tag='x1')
        a(f'v_add_u32 v132, {F_XC}, v{vL16}')
        a(f'buffer_load_dwordx4 v[128:131], v132, {WS}, 0 offen sc1'); vq.issue('fw')
        if not o.get('wtloop', 0): self.w_transpose()
        a('v_lshrrev_b32 v4, 2, v0')
        a('v_mul_u32_u24 v4, 96, v4')
        a('v_and_b32 v5, 3, v0')
        a('v_lshl_add_u32 v4, v5, 4, v4')
        vq.wait('x0')
        a(f'ds_write_b128 v4, v[184:187] offset:{L_XB}')
        vq.wait('x1')
        a(f'ds_write_b128 v4, v[188:191] offset:{L_XB + XBS}')
        a(f's_lshr_b32 s67, {sW}, 1')
        a(f's_and_b32 s59, {sW}, 1')
        a('v_and_b32 v4, 15, v1')
        a('v_lshrrev_b32 v5, 4, v1')
        a('v_and_b32 v6, 7, v4')
        a(f'v_mul_u32_u24 v6, {CS}, v6')
        a('v_and_b32 v7, 8, v4')
        a('v_lshl_add_u32 v7, v5, 3, v7')
        a('v_lshl_add_u32 v6, v7, 1, v6')
        a(f's_mul_i32 s55, s67, {8*CS}')
        a('s_lshl_b32 s56, s59, 5')
        a('s_add_u32 s55, s55, s56')
        a(f's_add_u32 s55, s55, {L_TOEP}')
        a('v_add_u32 v6, s55, v6')
        a('v_sub_u32 v7, 15, v4')
        a('v_mul_u32_u24 v7, 96, v7')
        a('v_lshl_add_u32 v7, v5, 4, v7')
        a(f's_mul_i32 s55, s67, {XBS}')
        a(f's_add_u32 s55, s55, {L_XB}')
        a('v_add_u32 v7, s55, v7')
        a('s_waitcnt lgkmcnt(0)')
        a('s_barrier')
        if self.o.get('pretouch', 2) == 1: self.pretouch_late()
        for i in range(16): a(f'v_mov_b32 v{16+i}, 0')
        self.stamp('x in lds')
        wb1 = o.get('wb1', 12)
        def Er(m, j): b = 32 + 32*(m % 3) + 4*j; return f'v[{b}:{b+3}]'
        def Fr(m, j): b = 32 + 32*(m % 3) + 16 + 4*j; return f'v[{b}:{b+3}]'
        def gloads(m):
            l = []
            for j in range(4):
                e = 16*j - m
                l.append(f'ds_read_b128 {Fr(m,j)}, v6 offset:{64*(m+16*j)}')
                l.append(f'ds_read_b128 {Er(m,j)}, v7 offset:{(48-e)*96}')
            return l
        for l in gloads(0): a(l)
        for l in gloads(1)[:7]: a(l)
        first_extra = gloads(1)[7:]
        wt1, wt2 = [], []
        if o.get('wtloop', 0):
            wt = self.capture(self.w_transpose)
            bi = [i for i, l in enumerate(wt) if l.startswith('s_barrier')][0]
            wt1, wt2 = wt[:bi+1], wt[bi+1:]
        xc = self.capture(lambda: self.check_xc(128, 132))
        ei = [i for i, l in enumerate(xc) if 'SPIN_END' in l][0]
        xc_head, xc_rest = xc[:ei+1], xc[ei+1:]
        fillers = []
        for m in range(16):
            nxt = (first_extra if m == 0 else []) + (gloads(m+2) if m + 2 < 16 else [])
            if m == 1:
                for l in wt1: a.lines.append(l)
            if m == 2:
                for l in wt2: a.lines.append(l)
            if m == o.get('xcslot', 1):
                for l in xc_head: a.lines.append(l)
                fillers = list(xc_rest)
            if m == 0: a('s_waitcnt lgkmcnt(7)')
            elif m < 15: a('s_waitcnt lgkmcnt(8)')
            else: a('s_waitcnt lgkmcnt(0)')
            mf = []
            for j in range(4):
                for c in range(j, 4):
                    mf.append(f'v_mfma_f32_16x16x32_bf16 v[{16+4*c}:{19+4*c}], {Fr(m,j)}, {Er(m,c-j)}, v[{16+4*c}:{19+4*c}]')
            if m == o.get('fwpub', 4):
                vq.wait('wf')
                a('s_barrier')
                Lnf = a.newlabel('noflag')
                a(f's_cmp_lg_u32 {sW}, 0')
                a(f's_cbranch_scc1 {Lnf}'); a.comment('COND_BEGIN')
                a('s_lshl_b32 s53, s2, 2')
                a(f's_add_u32 s53, s53, {F_W}')
                a(f'buffer_store_dword v{vTAG}, off, {WS}, s53 sc1')
                a.label(Lnf); a.comment('COND_END')
            if m == o.get('fwpub', 4) and o.get('wretouch', 0):
                for q in range(4):
                    a(f'buffer_load_dword v255, v{vL16}, {WS}, s{4+q} offen'); vq.issue('wt')
            if m == o.get('dsslot', 10) and o.get('dstore', 1):
                assert not fillers
                self.dummy_stores()
            if m == o.get('fwld', 13):
                a(f'v_add_u32 v132, {F_W}, v{vL16}')
                a(f'buffer_load_dwordx4 v[128:131], v132, {WS}, 0 offen sc1'); vq.issue('fw2')
            for i, ins in enumerate(mf):
                a(ins)
                if nxt: a(nxt.pop(0))
                for _ in range(2):
                    if fillers: a.lines.append(fillers.pop(0))
            assert not nxt
        for l in fillers: a.lines.append(l)
        self.stamp('conv mfma done')
        a('v_sub_u32 v8, 15, v4')
        a('v_mul_u32_u24 v8, 96, v8')
        a('v_lshlrev_b32 v9, 3, v5')
        a('v_sub_u32 v8, v8, v9')
        a(f's_mul_i32 s55, s67, {XBS}')
        a(f's_add_u32 s55, s55, {L_XB + 56}')
        a('s_lshl_b32 s56, s59, 5')
        a('s_sub_u32 s55, s55, s56')
        a('v_add_u32 v8, s55, v8')
        for c in range(4):
            a(f'ds_read_b64 v[{48+2*c}:{49+2*c}], v8 offset:{(48-16*c)*96}')
        a('s_lshl_b32 s55, s60, 16')
        a('s_and_b32 s56, s60, 0xffff0000')
        a('s_cmp_eq_u32 s67, 0')
        a('s_cselect_b32 s55, s55, s56')
        a('v_lshrrev_b32 v9, 1, v5')
        a('v_lshlrev_b32 v9, 1, v9')
        a('s_lshl_b32 s56, s59, 2')
        a('s_add_u32 s56, s56, s67')
        a('v_add_u32 v9, s56, v9')
        a('v_and_b32 v10, 7, v4')
        a('v_xor_b32 v9, v9, v10')
        a('v_lshlrev_b32 v9, 4, v9')
        a('v_lshl_add_u32 v9, v4, 7, v9')
        a('v_and_b32 v10, 1, v5')
        a('v_lshl_add_u32 v9, v10, 3, v9')
        a('s_waitcnt lgkmcnt(0)')
        for c in range(4):
            d0, d1 = 48+2*c, 49+2*c
            acc = 16+4*c
            a(f'v_and_b32 v60, 0xffff0000, v{d1}')
            a(f'v_lshlrev_b32 v61, 16, v{d1}')
            a(f'v_and_b32 v62, 0xffff0000, v{d0}')
            a(f'v_lshlrev_b32 v63, 16, v{d0}')
            for r in range(4):
                a(f'v_fma_f32 v{60+r}, v{60+r}, s55, v{acc+r}')
            a(f'v_cvt_pk_bf16_f32 v{64+2*c}, v60, v61')
            a(f'v_cvt_pk_bf16_f32 v{65+2*c}, v62, v63')
            a(f'ds_write_b64 v9, v[{64+2*c}:{65+2*c}] offset:{L_GT + 16*c*128}')
        a('v_lshrrev_b32 v8, 3, v0')
        a('v_and_b32 v9, 7, v0')
        a('v_and_b32 v10, 7, v8')
        a('v_xor_b32 v10, v10, v9')
        a('v_lshlrev_b32 v10, 4, v10')
        a('v_lshl_add_u32 v10, v8, 7, v10')
        a('v_lshlrev_b32 v11, 15, v8')
        a('v_lshl_add_u32 v11, v9, 4, v11')
        a('s_waitcnt lgkmcnt(0)')
        a('s_barrier')
        a(f'ds_read_b128 v[48:51], v10 offset:{L_GT}')
        a(f'ds_read_b128 v[52:55], v10 offset:{L_GT + 4096}')
        a(f's_add_u32 s53, s61, {GB}')
        a('s_waitcnt lgkmcnt(1)')
        self.vstore('v[48:51]', 'v11', WS, 's53', 0, ' sc1', tag='g')
        a(f's_add_u32 s53, s53, {32*32768}')
        a('s_waitcnt lgkmcnt(0)')
        self.vstore('v[52:55]', 'v11', WS, 's53', 0, ' sc1', tag='g')
        self.mk_srd(SA, sQ, 2097152)
        a(f's_lshl_b32 s53, {sC}, 8')
        a(f's_lshl_b32 s54, {sR}, 3')
        a('s_add_u32 s53, s53, s54')
        a(f's_add_u32 s53, s53, {sW}')
        a('s_lshl_b32 s53, s53, 10')
        self.vload('v[8:11]', f'v{vL16}', srd(SA), 's53', 0, tag='q')
        a('s_add_u32 s53, s53, 4096')
        self.vload('v[12:15]', f'v{vL16}', srd(SA), 's53', 0, tag='q')
        self.check_fw(128, 132)
        a('s_barrier')
        self.weight_batch(o.get('wb2', 16))
        self.stamp('conv published')

    def finish(self):
        a = self.a
        a.label('L_fin')
        Ln = a.newlabel('noep')
        a('s_cmp_lg_u32 s2, 0')
        a(f's_cbranch_scc1 {Ln}'); a.comment('COND_BEGIN')
        a(f's_cmp_lg_u32 {sW}, 0')
        a(f's_cbranch_scc1 {Ln}'); a.comment('COND_BEGIN')
        a(f'buffer_store_dword v{vTAG}, off, {WS}, 0 sc1')
        a.label(Ln)
        if self.stamps:
            self.stamp('end')
            a('s_memtime s[62:63]'); a('s_waitcnt lgkmcnt(0)'); a('s_sub_u32 s100, s62, s100')
            a('s_lshl_b32 s53, s2, 2')
            a(f's_add_u32 s53, s53, {sW}')
            a('s_lshl_b32 s53, s53, 7')
            a(f's_add_u32 s53, s53, {TS}')
            a('s_mov_b64 exec, 1')
            a('v_mov_b32 v4, 0')
            for i in range(self.nstamp):
                a(f'v_mov_b32 v5, s{76+i}')
                a(f'buffer_store_dword v5, v4, {WS}, s53 offen offset:{4*i}')
                a.nop(1)
            if self.o.get('dbgstamps'):
                Ld = a.newlabel('nodbg')
                a(f's_cmp_lg_u32 s2, {self.o.get("dbgstamps")}')
                a(f's_cbranch_scc1 {Ld}')
                a(f's_cmp_lg_u32 {sW}, 0')
                a(f's_cbranch_scc1 {Ld}')
                self.mk_srd(SA, sDBG, 256)
                sel = [1, 3, 5, 6, 7, 8, 10, 11, 13, 14, 16, 17, 19, 20, 22, 23]
                for j, i in enumerate(sel):
                    a(f's_sub_u32 s54, s{76+i}, s76')
                    a(f'v_mov_b32 v5, s54')
                    a(f'buffer_store_dword v5, v4, {srd(SA)}, 0 offen offset:{4*j}')
                    a.nop(1)
                a.label(Ld)
            a(f'v_mov_b32 v5, {sFAST}')
            a(f'buffer_store_dword v5, v4, {WS}, s53 offen offset:116')
            a.nop(1)
            a(f'v_mov_b32 v5, s100')
            a(f'buffer_store_dword v5, v4, {WS}, s53 offen offset:120')
            a.nop(1)
            a(f'v_mov_b32 v5, {sABORT}')
            a(f'buffer_store_dword v5, v4, {WS}, s53 offen offset:124')
        a('s_waitcnt vmcnt(0)')
        a.label('L_end')
        a('s_endpgm')
        self.finished = True
        if not getattr(self, 'more_code', False): a.label('L_code_end')

    def build(self):
        self.prologue()
        self.prep()
        if self.stop != 'prep': self.conv()
        if self.stop not in ('prep', 'conv'):
            if self.o.get('mlp', 4) == 3:
                from gen3_mlp import emit_mlp
            else:
                from gen4_mlp import emit_mlp
            emit_mlp(self)
        if not getattr(self, 'finished', False): self.finish()
        else: self.a.label('L_code_end')
        body = self.a.text()
        hdr = open('cdna_kernels/' + NAME[:-7] + '.s.ref').read().split('; Override launch')[0]
        s = hdr + f'; @launch grid=(256,1,1) block=(256,1,1) lds={LDS_SIZE}\n'
        s += f'''.amdgcn_target "amdgcn-amd-amdhsa--gfx950"
.text
.globl {NAME}
.p2align 8
.type {NAME},@function
{NAME}:
.set CODE_BYTES, {'L_slow' if 'L_slow:' in body else 'L_code_end'} - {NAME}
''' + body + f'''.section .rodata,"a"
.p2align 6
.amdhsa_kernel {NAME}
  .amdhsa_next_free_vgpr 512
  .amdhsa_next_free_sgpr 102
  .amdhsa_accum_offset 256
  .amdhsa_group_segment_fixed_size 0
  .amdhsa_kernarg_size 112
  .amdhsa_user_sgpr_count 2
  .amdhsa_user_sgpr_kernarg_segment_ptr 1
  .amdhsa_system_sgpr_workgroup_id_x 1
.end_amdhsa_kernel
'''
        return s

def main():
    ap = argparse.ArgumentParser()
    ap.add_argument('--stop', default='end')
    ap.add_argument('--stamps', action='store_true')
    ap.add_argument('-o', default='k.s')
    ap.add_argument('--opt', action='append', default=[])
    args = ap.parse_args()
    opts = {}
    for kv in args.opt:
        k, v = kv.split('='); opts[k] = int(v) if v.lstrip('-').isdigit() else v
    g = Gen(stop=args.stop, stamps=args.stamps, opts=opts)
    s = g.build()
    probs = check_hazards(g.a.lines)
    for p in probs: print(p)
    wp = check_waits(g.a.lines)
    for p in wp[:30]: print(p)
    print(len(wp), 'wait problems')
    print(f'{len(g.a.lines)} lines, {len(probs)} hazards')
    open(args.o, 'w').write(s)
    open(args.o + '.stamps', 'w').write('\n'.join(g.stamp_names))

if __name__ == '__main__':
    main()
```

```python
from gen2 import *
from gen2_mlp import tok_base, yflag_addr, emit_r1a
from gen3_mlp import poll_issue, poll_check, spread, DUMMY

def pr(b): return f'v[{b}:{b+1}]'
VINV = 108

def rows_finish(g, rows, scx, scy, part=None):
    a = g.a
    if part in (None, 1):
        for (X, eta) in rows:
            a(f's_lshl_b32 s53, {sW}, 10')
            a(f's_add_u32 s53, s53, {L_G + eta*4096}')
            a(f'v_add_u32 v{X+28}, s53, v{vL16}')
            a(f'ds_read_b128 v[{X+16}:{X+19}], v{X+28}')
        a('s_waitcnt lgkmcnt(0)')
        for (X, eta) in rows: g.unpack8(X+16, X+20)
        for (X, eta) in rows:
            for i in range(4):
                a(f'v_pk_fma_f32 {pr(X+2*i)}, {pr(X+8+2*i)}, {pr(X+20+2*i)}, {pr(X+2*i)}')
        for (X, eta) in rows: g.pack8(X, X+32)
        for (X, eta) in rows: g.unpack8(X+32, X)
        for (X, eta) in rows:
            a(f's_add_u32 s54, s75, {X1 + eta*4096 + (0 if g.fast else g.rl*0x400000)}')
            g.vstore(f'v[{X+32}:{X+35}]', f'v{vL16}', WS, 's54', 0, scx, tag=f'rx{eta}')
    if part in (None, 2):
        if g.o.get('ln2an', 1):
            g.ln_multi([(X, X+8, X+36) for (X, eta) in rows], double=True)
        else:
            g.ln_multi([(X, X+8, X+36) for (X, eta) in rows])
            g.ln_multi([(X+8, X+8, X+36) for (X, eta) in rows])
        for (X, eta) in rows: g.pack8(X+8, X+16)
        for (X, eta) in rows:
            a(f's_add_u32 s54, s75, {Y0 + eta*4096 + (0 if g.fast else g.rl*0x200000)}')
            g.vstore(f'v[{X+16}:{X+19}]', f'v{vL16}', WS, 's54', 0, scy, tag=f'ry{eta}')

def row_flag(g, eta):
    a = g.a
    g.vq.wait(f'ry{eta}')
    a(f's_add_u32 s53, s61, {(g.rl*2 + eta)*8*128*4}')
    g.flag('s53')

def mlp_setup0(g):
    a = g.a
    tok_base(a, 's75', 0)
    a(f's_lshl_b32 s61, {sC}, 7')
    a(f's_lshl_b32 s54, {sR}, 2')
    a('s_add_u32 s61, s61, s54')
    a(f's_add_u32 s61, s61, {sW}')
    a('s_lshl_b32 s61, s61, 2')
    a(f's_add_u32 s61, s61, {F_Y}')

def mlp_setup(g, part=1):
    a = g.a
    if part == 0:
        mlp_setup0(g); return
    a(f's_lshl_b32 s53, {sC}, 7')
    a(f's_lshl_b32 s54, {sT1}, 6')
    a('s_add_u32 s53, s53, s54')
    a(f's_lshl_b32 s54, {sW}, 3')
    a('s_add_u32 s53, s53, s54')
    a('s_lshl_b32 s53, s53, 2')
    a(f's_add_u32 s53, s53, {F_Y}')
    a('v_and_b32 v120, 7, v1')
    a('v_bfe_u32 v12, v1, 3, 1')
    a('v_lshl_add_u32 v120, v12, 5, v120')
    a('v_lshlrev_b32 v120, 2, v120')
    a('v_add_u32 v120, s53, v120')
    a('v_lshrrev_b32 v14, 5, v1')
    a('v_and_b32 v15, 31, v1')
    a('v_and_b32 v12, 15, v1')
    for m in range(8):
        a(f'v_add_u32 v{4+m}, {2*m}, v14')
        a(f'v_xor_b32 v{4+m}, v{4+m}, v12')
        a(f'v_lshlrev_b32 v{4+m}, 4, v{4+m}')
        a(f'v_lshl_add_u32 v{4+m}, v15, 10, v{4+m}')
    a(f's_and_b32 s54, {sW}, 1')
    a('s_lshl_b32 s54, s54, 7')
    a(f'v_xor_b32 v121, s54, v{vL16}')
    a(f's_lshl_b32 s68, {sJ}, 2')
    a(f's_add_u32 s68, s68, {sW}')
    a(f's_lshl_b32 s53, {sC}, 1')
    a(f's_add_u32 s53, s53, {sT1}')
    a('s_lshl_b32 s53, s53, 2')
    a('s_mul_i32 s71, s53, 112')
    a('s_lshl_b32 s55, s68, 1')
    a('s_add_u32 s71, s71, s55')
    a('s_lshl_b32 s71, s71, 10')
    a(f's_add_u32 s71, s71, {H0}')
    a('s_lshl_b32 s70, s53, 8')
    a('s_lshl_b32 s55, s68, 2')
    a('s_add_u32 s70, s70, s55')
    a(f's_add_u32 s70, s70, {F_H}')
    a('s_lshl_b32 s55, s2, 13')
    a(f's_add_u32 s55, s55, {DUMMY}')
    a(f's_cmp_ge_u32 {sR}, 28')
    a('s_cselect_b32 s71, s55, s71')
    a('s_cselect_b32 s70, s55, s70')
    a(f's_lshl_b32 s53, {sC}, 8')
    a(f's_lshl_b32 s54, {sT1}, 7')
    a('s_add_u32 s53, s53, s54')
    a(f's_lshl_b32 s54, {sW}, 4')
    a('s_add_u32 s53, s53, s54')
    a('s_lshl_b32 s53, s53, 10')
    a(f's_add_u32 s72, s53, {Y0}')
    a(f's_lshl_b32 s73, {sW}, 13')
    a(f's_lshr_b32 s54, {sR}, 4')
    a(f's_lshl_b32 s53, {sC}, 1')
    a('s_add_u32 s53, s53, s54')
    a('s_lshl_b32 s53, s53, 2')
    a(f's_lshr_b32 s54, {sR}, 3')
    a('s_and_b32 s54, s54, 1')
    a('s_add_u32 s55, s53, s54')
    a('s_lshl_b32 s53, s55, 8')
    a(f's_mul_i32 s54, {sW}, 56')
    a('s_add_u32 s53, s53, s54')
    a(f's_add_u32 s53, s53, {F_H}')
    a('v_min_u32 v119, 13, v1')
    a('v_lshlrev_b32 v119, 2, v119')
    a('v_add_u32 v119, s53, v119')
    a('s_mul_i32 s69, s55, 112')
    a(f's_mul_i32 s54, {sW}, 28')
    a('s_add_u32 s69, s69, s54')
    a('s_lshl_b32 s69, s69, 10')
    a(f's_add_u32 s69, s69, {H0}')
    a('v_and_b32 v15, 7, v0')
    a('v_lshrrev_b32 v112, 3, v0')
    a('v_and_b32 v12, 7, v112')
    a('v_and_b32 v113, 3, v15')
    a('v_lshlrev_b32 v113, 1, v113')
    a('v_or_b32 v114, 1, v113')
    a('v_xor_b32 v113, v113, v12')
    a('v_xor_b32 v114, v114, v12')
    a('v_lshrrev_b32 v12, 2, v15')
    a('v_lshlrev_b32 v12, 7, v12')
    a('v_lshl_add_u32 v12, v112, 8, v12')
    a('v_lshl_add_u32 v113, v113, 4, v12')
    a('v_lshl_add_u32 v114, v114, 4, v12')
    a(f's_lshr_b32 s53, {sR}, 3')
    a('s_lshl_b32 s53, s53, 5')
    a('v_add_u32 v12, s53, v112')
    a('v_lshrrev_b32 v112, 2, v12')
    a('v_lshlrev_b32 v112, 3, v112')
    a('v_and_b32 v12, 3, v12')
    a('v_add_u32 v112, v112, v12')
    a(f's_lshl_b32 s53, {sC}, 8')
    a('v_add_u32 v112, s53, v112')
    a('v_lshlrev_b32 v112, 10, v112')
    a(f's_and_b32 s53, {sR}, 7')
    a('s_lshl_b32 s53, s53, 7')
    a('v_lshl_add_u32 v112, v15, 4, v112')
    a('v_add_u32 v112, s53, v112')
    a('v_lshlrev_b32 v123, 4, v15')
    a('v_add_u32 v123, s53, v123')
    a('v_and_b32 v12, 31, v1')
    a('v_lshrrev_b32 v13, 5, v1')
    a('v_and_b32 v14, 7, v1')
    a(f's_lshl_b32 s53, {sW}, 13')
    for i in range(4):
        a(f'v_add_u32 v{115+i}, {2*i}, v13')
        a(f'v_xor_b32 v{115+i}, v{115+i}, v14')
        a(f'v_lshlrev_b32 v{115+i}, 4, v{115+i}')
        a(f'v_lshl_add_u32 v{115+i}, v12, 8, v{115+i}')
        a(f'v_add_u32 v{115+i}, s53, v{115+i}')
    a(f's_lshl_b32 s67, {sC}, 3')
    a(f's_lshr_b32 s54, {sR}, 3')
    a('s_add_u32 s67, s67, s54')
    a('s_lshl_b32 s67, s67, 2')
    a(f's_add_u32 s67, s67, {sW}')
    a('s_lshl_b32 s67, s67, 3')
    a(f's_and_b32 s54, {sR}, 7')
    a('s_add_u32 s67, s67, s54')
    a('s_lshl_b32 s67, s67, 2')
    a(f's_add_u32 s67, s67, {F_X}')
    a(f's_lshl_b32 s53, {sC}, 3')
    a(f's_lshr_b32 s54, {sR}, 3')
    a('s_add_u32 s53, s53, s54')
    a('s_lshl_b32 s53, s53, 2')
    a(f's_and_b32 s54, {sR}, 7')
    a('s_lshr_b32 s54, s54, 1')
    a('s_add_u32 s53, s53, s54')
    a('s_lshl_b32 s53, s53, 5')
    a(f's_add_u32 s53, s53, {F_X}')
    a('v_and_b32 v122, 7, v1')
    a('v_lshlrev_b32 v122, 2, v122')
    a('v_add_u32 v122, s53, v122')

def gelu_fillers(g, acc, u, T, P, usepk, sc):
    a = g.a
    lay = g.cur_layer
    F = []
    F.append(lambda: a(f's_add_u32 s74, s71, {u*112*1024 + (0 if g.fast else lay*0x800000)}'))
    if usepk:
        seqs = []
        for p in range(8):
            x0 = acc + 2*p; t0 = T + 2*(p % 2); t1 = t0 + 1
            X = pr(x0); Tt = pr(t0)
            seqs.append([f'v_pk_mul_f32 {Tt}, {X}, {X}',
                   f'v_pk_fma_f32 {Tt}, {Tt}, v[12:13], v[12:13] op_sel:[0,0,1] op_sel_hi:[1,0,1]',
                   f'v_pk_mul_f32 {Tt}, {Tt}, {X}',
                   f'v_exp_f32 v{t0}, v{t0}', f'v_exp_f32 v{t1}, v{t1}',
                   f'v_pk_add_f32 {Tt}, {Tt}, v[14:15]',
                   f'v_rcp_f32 v{t0}, v{t0}', f'v_rcp_f32 v{t1}, v{t1}',
                   f'v_pk_mul_f32 {X}, {X}, {Tt}',
                   f'v_cvt_pk_bf16_f32 v{P+p}, v{x0}, v{x0+1}'])
        for p in range(0, 8, 2):
            for s0, s1 in zip(seqs[p], seqs[p+1]):
                F.append(lambda s=s0: a(s)); F.append(lambda s=s1: a(s))
            if p == 2: F.append(lambda: g.vstore(f'v[{P}:{P+3}]', f'v{vL16}', WS, 's74', 0, sc, tag=f'h{u}'))
            if p == 6: F.append(lambda: g.vstore(f'v[{P+4}:{P+7}]', f'v{vL16}', WS, 's74', 1024, sc, tag=f'h{u}'))
        return F
    for p in range(8):
        x0, x1 = acc + 2*p, acc + 2*p + 1
        t0 = T + 2*(p % 2); t1 = t0 + 1
        seq = [f'v_mul_f32 v{t0}, v{x0}, v{x0}', f'v_mul_f32 v{t1}, v{x1}, v{x1}',
               f'v_fma_f32 v{t0}, v{t0}, v12, v13', f'v_fma_f32 v{t1}, v{t1}, v12, v13',
               f'v_mul_f32 v{t0}, v{t0}, v{x0}', f'v_mul_f32 v{t1}, v{t1}, v{x1}',
               f'v_exp_f32 v{t0}, v{t0}', f'v_exp_f32 v{t1}, v{t1}',
               f'v_add_f32 v{t0}, 1.0, v{t0}', f'v_add_f32 v{t1}, 1.0, v{t1}',
               f'v_rcp_f32 v{t0}, v{t0}', f'v_rcp_f32 v{t1}, v{t1}',
               f'v_mul_f32 v{x0}, v{x0}, v{t0}', f'v_mul_f32 v{x1}, v{x1}, v{t1}',
               f'v_cvt_pk_bf16_f32 v{P+p}, v{x0}, v{x1}']
        for s in seq: F.append(lambda s=s: a(s))
        if p == 3: F.append(lambda: g.vstore(f'v[{P}:{P+3}]', f'v{vL16}', WS, 's74', 0, sc, tag=f'h{u}'))
        if p == 7: F.append(lambda: g.vstore(f'v[{P+4}:{P+7}]', f'v{vL16}', WS, 's74', 1024, sc, tag=f'h{u}'))
    return F

def hflag(g, u):
    g.vq.wait(f'h{u}')
    g.a(f's_add_u32 s56, s70, {u*256 + g.cur_layer*64*256}')
    g.flag('s56')

def emit_layer(g, idle=False):
    a = g.a; vq = g.vq; o = g.o
    lay = g.cur_layer
    sch = g.sc_h
    yoff = 0 if g.fast else lay*0x200000
    hoff = 0 if g.fast else lay*0x800000
    xoff = 0 if g.fast else lay*0x400000
    if idle:
        a('s_barrier')
        g.weight_batch(100)
        a(f'v_add_u32 v100, {lay*64*256}, v119'); a('v_add_u32 v101, 512, v100')
        poll_issue(g, 102, 100, 'phA')
    else:
        a.comment(f'=== G1 layer {lay} ===')
        g.dstamp('g1', 'g1 begin')
        a(f'v_add_u32 v100, {lay*2*8*128*4}, v120')
        a(f'v_add_u32 v101, {(lay*2+1)*8*128*4}, v120')
        poll_issue(g, 102, 100, 'pyA')
        a('s_barrier')
        g.mk_srd(SA, sB1, 3584)
        a('v_lshrrev_b32 v14, 5, v1')
        a('v_lshlrev_b32 v15, 3, v14')
        a('s_lshl_b32 s53, s68, 6')
        for i in range(4):
            g.vload(f'v[{104+2*i}:{105+2*i}]', 'v15', srd(SA), 's53', 16*i, w='x2', tag='bias')
        a(f'v_mov_b32 v12, {f2u(-C2)}')
        a(f'v_mov_b32 v13, {f2u(-C1)}')
        a('v_mov_b32 v14, 1.0'); a('v_mov_b32 v15, 1.0')
        def dma_list(eta, tt):
            L = []
            for i in range(8):
                def f(i=i):
                    if i % 4 == 0:
                        a(f's_add_u32 m0, s73, {L_YH[eta] + tt*32768 + i*1024}')
                        a(f's_add_u32 s57, s72, {(64*tt + 8*(i>>2) + 4*eta)*1024 + yoff}')
                    a(f'v_xor_b32 v99, {16*i}, v121')
                    off = f' offset:{(i%4)*1024}' if i % 4 else ''
                    a(f'buffer_load_dwordx4 v99, {WS}, s57 offen{off} sc1 lds')
                    vq.issue(f'dma{eta}{tt}')
                L.append(f)
            return L
        g.dstamp('g1', 'setup done')
        poll_check(g, 102, 100, 'pyA')
        g.stamp('g1 yA seen')
        for f in dma_list(0, 0): f()
        for f in dma_list(0, 1)[:4]: f()
        poll_issue(g, 102, 101, 'pyB')
        vq.wait('bias')
        for i in range(4):
            a(f'v_lshlrev_b32 v{48+4*i}, 16, v{104+2*i}')
            a(f'v_and_b32 v{49+4*i}, 0xffff0000, v{104+2*i}')
            a(f'v_lshlrev_b32 v{50+4*i}, 16, v{105+2*i}')
            a(f'v_and_b32 v{51+4*i}, 0xffff0000, v{105+2*i}')
        vq.wait('dma00')
        a('s_barrier')
        g.stamp('g1 yA in lds')
        fill = []
        NB, PF = 8, 7
        WG_ = o.get('g1wait', 4)
        XT = o.get('xtile', 1)
        def Breg(k): return f'v[{64+4*(k%NB)}:{67+4*(k%NB)}]'
        def Bload(u, k): a(f'ds_read_b128 {Breg(k)}, v{4+(k&7)} offset:{(u&1)*32768 + (k>>3)*256}')
        def tile_ready(u):
            vq.wait(f'dma{u>>1}{u&1}'); a('s_barrier')
            if u == 2:
                for m_ in range(8): a(f'v_add_u32 v{4+m_}, 0x10000, v{4+m_}')
        for u in range(4):
            eta, tt = u >> 1, u & 1
            if u >= 1 and not XT: tile_ready(u)
            g.dstamp('g1', f'tile{u} start')
            acc = 16 + 16*(u % 2)
            if u == 0 or not XT:
                for k in range(PF): Bload(u, k)
            extra = {}
            if u == 0:
                for i, f in enumerate(dma_list(0, 1)[4:]): extra.setdefault(i, []).append(f)
                pb = o.get('pbslot', 8)
                extra.setdefault(pb, []).append(lambda: poll_check(g, 102, 101, 'pyB'))
                for i, f in enumerate(dma_list(1, 0) + dma_list(1, 1)): extra.setdefault(min(31, pb + 1 + (i * (30 - pb)) // 16), []).append(f)
            if u == 3:
                extra.setdefault(o.get('fA0', 2), []).append(lambda: hflag(g, 0))
                extra.setdefault(o.get('fA1', 28), []).append(lambda: hflag(g, 1))
                extra.setdefault(29, []).append(lambda: (a(f'v_add_u32 v100, {lay*64*256}, v119'), a('v_add_u32 v101, 512, v100'), poll_issue(g, 102, 100, 'phA')))
            u0 = o.get('wtile0', 1)
            if g.wlist and u >= u0:
                nper = (len(g.wlist) + (3 - u)) // (4 - u)
                span = o.get('wspan', 23)
                for sl in [1 + (i * span) // nper for i in range(nper)]:
                    extra.setdefault(sl, []).append(lambda: g.weight_batch(1))
            if XT and u < 3:
                extra.setdefault(25, []).insert(0, lambda u=u: tile_ready(u + 1))
            sp = spread(fill, 32, 4, o.get('gend', 27))
            done = 0
            for k in range(32):
                if k % WG_ == 0:
                    need = min(k + WG_ - 1, 31)
                    if XT and u < 3: issued = k + PF - 1 if k + PF - 1 <= 31 else 31 + max(0, k - 25)
                    else: issued = min(k + PF - 1, 31)
                    a(f's_waitcnt lgkmcnt({max(issued - need, 0)})')
                cin = f'v[48:63]' if k == 0 else f'v[{acc}:{acc+15}]'
                a(f'v_mfma_f32_32x32x16_bf16 v[{acc}:{acc+15}], {W1reg(k)}, {Breg(k)}, {cin}')
                if k + PF < 32: Bload(u, k + PF)
                while done < sp[k]: fill[done](); done += 1
                for f in extra.get(k, []): f()
                if XT and u < 3 and k >= 25: Bload(u + 1, k - 25)
            while done < len(fill): fill[done](); done += 1
            g.dstamp('g1', f'tile{u} done')
            if u < 3: fill = gelu_fillers(g, acc, u, 96, 104, False, sch)
            else: fill = gelu_fillers(g, acc, u, 96, 48, True, sch)
        g.dstamp('g1', 'tiles done')
    if not idle:
        for m in range(8): a(f'v_subrev_u32 v{4+m}, 0x10000, v{4+m}')
    NW = 12
    HW = 64
    def Hreg(s): return f'v[{HW+4*(s%NW)}:{HW+3+4*(s%NW)}]'
    def Hload(s):
        eta, i = divmod(s, 28)
        a(f's_add_u32 s54, s69, {eta*2*112*1024 + (i//4)*4096 + hoff}')
        g.vload(Hreg(s), f'v{vL16}', WS, 's54', (i%4)*1024, ' sc1', tag=f'hf{s}')
    a('v_mov_b32 v124, v100'); a('v_mov_b32 v125, v101')
    poll_check(g, 102, 100, 'phA')
    g.stamp('g2 hA seen')
    fill = gelu_fillers(g, 32, 3, 60, 48, True, sch)
    for s in range(NW): Hload(s)
    g.dstamp('g2', 'A loads issued')
    if not idle:
        a.nop(2)
        half = len(fill)//2
        for f in fill[:half]: f()
        hflag(g, 2)
        for f in fill[half:]: f()
    g.stamp('g1 done')
    g.dstamp('g2', 'tail done')
    g.mk_srd(SA, sB2, 1024)
    g.vload('v[56:59]', 'v123', srd(SA), 0, 0, tag='b2')
    a(f's_mov_b32 s53, {X1 + xoff}')
    g.vload('v[60:63]', 'v112', WS, 's53', 0, ' sc1', tag='res0')
    if lay == 0:
        OUT = WS; obase = X2
    else:
        g.mk_srd(SB, sOUT, 2097152); OUT = srd(SB); obase = 0
    sco = g.sc_x if lay == 0 else (' sc1' if o.get('outsc1', 1) else (' nt' if o.get('outnt', 0) else ''))
    def accset(eta, nt):
        return f'a[{224+16*nt}:{239+16*nt}]' if eta == 0 else f'v[{16+16*nt}:{31+16*nt}]'
    def red_write_list(eta):
        LR = eta*32768
        L = []
        for nt in range(2):
            for i in range(4):
                src = f'a[{224+16*nt+4*i}:{224+16*nt+4*i+3}]' if eta == 0 else f'v[{16+16*nt+4*i}:{16+16*nt+4*i+3}]'
                L.append(lambda src=src, i=i, nt=nt: a(f'ds_write_b128 v{115+i}, {src} offset:{LR + nt*128}'))
        return L
    def xflag(eta):
        vq.wait(f'xo{eta}')
        a(f's_add_u32 s53, s67, {eta*512}')
        g.flag('s53')
    def red_small(eta, res):
        LR = eta*32768
        L = []
        for h in range(2):
            ad = 113 + h
            T0, T1 = 48, 52
            b2 = 56 + 2*h; rs = res + 2*h
            L.append(lambda ad=ad: (a(f'ds_read_b128 v[48:51], v{ad} offset:{LR}'), a(f'ds_read_b128 v[52:55], v{ad} offset:{LR + 8192}')))
            def add(): a(f'v_pk_add_f32 {pr(48)}, {pr(48)}, {pr(52)}'); a(f'v_pk_add_f32 {pr(50)}, {pr(50)}, {pr(54)}')
            def sadd():
                for e in range(4): a(f'v_add_f32 v{48+e}, v{48+e}, v{52+e}')
            L.append(lambda ad=ad: (a('s_waitcnt lgkmcnt(0)'), sadd(), a(f'ds_read_b128 v[52:55], v{ad} offset:{LR + 2*8192}')))
            L.append(lambda ad=ad: (a('s_waitcnt lgkmcnt(0)'), sadd(), a(f'ds_read_b128 v[52:55], v{ad} offset:{LR + 3*8192}')))
            L.append(lambda: (a('s_waitcnt lgkmcnt(0)'), sadd()))
            def ub(src):
                a(f'v_lshlrev_b32 v52, 16, v{src}'); a(f'v_and_b32 v53, 0xffff0000, v{src}')
                a(f'v_lshlrev_b32 v54, 16, v{src+1}'); a(f'v_and_b32 v55, 0xffff0000, v{src+1}')
            L.append(lambda b2=b2: (ub(b2), sadd()))
            def rnd():
                a('v_cvt_pk_bf16_f32 v52, v48, v49'); a('v_cvt_pk_bf16_f32 v53, v50, v51')
                a('v_lshlrev_b32 v48, 16, v52'); a('v_and_b32 v49, 0xffff0000, v52')
                a('v_lshlrev_b32 v50, 16, v53'); a('v_and_b32 v51, 0xffff0000, v53')
            L.append(rnd)
            L.append(lambda rs=rs: (vq.wait(f'res{eta}'), ub(rs), sadd()))
            L.append(lambda h=h: (a(f'v_cvt_pk_bf16_f32 v{12+2*h}, v48, v49'), a(f'v_cvt_pk_bf16_f32 v{13+2*h}, v50, v51')))
        def st():
            a(f's_mov_b32 s53, {obase + eta*4096}')
            g.vstore('v[12:15]', 'v112', OUT, 's53', 0, sco, tag=f'xo{eta}')
        L.append(st)
        return L
    def red_big(eta, res):
        LR = eta*32768
        T = 64
        for p in range(4):
            a(f'ds_read_b128 v[{T+8*p}:{T+8*p+3}], v113 offset:{LR + p*8192}')
            a(f'ds_read_b128 v[{T+8*p+4}:{T+8*p+7}], v114 offset:{LR + p*8192}')
        g.unpack8(56, T+32)
        a('s_waitcnt lgkmcnt(4)')
        for e in range(4): a(f'v_pk_add_f32 {pr(T+2*e)}, {pr(T+2*e)}, {pr(T+8+2*e)}')
        for e in range(4): a(f'v_pk_add_f32 {pr(T+2*e)}, {pr(T+2*e)}, {pr(T+32+2*e)}')
        a('s_waitcnt lgkmcnt(0)')
        for e in range(4): a(f'v_pk_add_f32 {pr(T+16+2*e)}, {pr(T+16+2*e)}, {pr(T+24+2*e)}')
        for e in range(4): a(f'v_pk_add_f32 {pr(T+2*e)}, {pr(T+2*e)}, {pr(T+16+2*e)}')
        g.pack8(T, T+8); g.unpack8(T+8, T)
        vq.wait(f'res{eta}')
        g.unpack8(res, T+16)
        for e in range(4): a(f'v_pk_add_f32 {pr(T+2*e)}, {pr(T+2*e)}, {pr(T+16+2*e)}')
        g.pack8(T, T+8)
        a(f's_mov_b32 s53, {obase + eta*4096}')
        g.vstore(f'v[{T+8}:{T+11}]', 'v112', OUT, 's53', 0, sco, tag=f'xo{eta}')
    extra = {}
    if not idle: extra.setdefault(o.get('fB1', 3), []).append(lambda: hflag(g, 3))
    extra.setdefault(10, []).append(lambda: poll_issue(g, 126, 125, 'phB'))
    extra.setdefault(15, []).append(lambda: poll_check(g, 126, 125, 'phB'))
    for i, f in enumerate(red_write_list(0)): extra.setdefault(30 + i//2, []).append(f)
    extra.setdefault(35, []).append(lambda: (a('s_waitcnt lgkmcnt(0)'), a('s_barrier')))
    for i, f in enumerate(red_small(0, 60)): extra.setdefault(36 + i, []).append(f)
    def resB():
        a(f's_mov_b32 s53, {X1 + xoff + 4096}')
        g.vload('v[60:63]', 'v112', WS, 's53', 0, ' sc1', tag='res1')
    extra.setdefault(53, []).append(resB)
    for s in range(56):
        eta, i = divmod(s, 28)
        vq.wait(f'hf{s}')
        for nt in range(2):
            acc = accset(eta, nt)
            cin = '0' if i == 0 else acc
            a(f'v_mfma_f32_32x32x16_bf16 {acc}, {W2reg(nt,i)}, {Hreg(s)}, {cin}')
            if nt == 0 and s >= 1 and (s - 1) + NW < 56: Hload(s - 1 + NW)
        if s == 27: g.dstamp('g2', 'A mfma done')
        for f in extra.get(s, []): f()
    g.dstamp('g2', 'B mfma done')
    if lay == 0: xflag(0)
    a.nop(12)
    for f in red_write_list(1): f()
    a('s_waitcnt lgkmcnt(0)')
    a('s_barrier')
    red_big(1, 60)
    g.dstamp('g2', 'B finished')
    if lay == 0: xflag(1)
    g.stamp('g2 done')

def emit_layer_both(g):
    a = g.a
    if not g.o.get('idleskip', 1):
        emit_layer(g); return
    Li = a.newlabel('idle'); Ld = a.newlabel('ldone')
    ops0 = list(g.vq.ops); wl0 = list(g.wlist)
    a(f's_cmp_ge_u32 {sR}, 28')
    a(f's_cbranch_scc1 {Li}')
    emit_layer(g)
    a(f's_branch {Ld}')
    a.label(Li)
    g.vq.ops = ops0; g.wlist = wl0
    st = g.stamps
    nst, names = g.nstamp, list(g.stamp_names)
    g.stamps = False
    emit_layer(g, idle=True)
    g.stamps = st
    a.label(Ld)
    g.vq.reset()

def emit_r2(g):
    a = g.a; vq = g.vq
    g.rl = 1
    a(f'v_mov_b32 v{VINV}, 0x3b000000')
    a('v_add_u32 v109, 512, v122')
    g.dstamp('r2', 'r2 begin')
    poll_issue(g, 110, 122, 'pxA')
    poll_check(g, 110, 122, 'pxA')
    g.dstamp('r2', 'xA seen')
    a(f's_add_u32 s53, s75, {X2}')
    g.vload('v[60:63]', f'v{vL16}', WS, 's53', 0, ' sc1', tag='x2a')
    poll_issue(g, 110, 109, 'pxB')
    vq.wait('x2a')
    g.unpack8(60, 16)
    g.ln_multi([(16, 24, 52)])
    rows_finish(g, [(16, 0)], g.sc_x3, g.sc_y1)
    g.dstamp('r2', 'row0 stored')
    poll_check(g, 110, 109, 'pxB')
    a(f's_add_u32 s53, s75, {X2 + 4096}')
    g.vload('v[60:63]', f'v{vL16}', WS, 's53', 0, ' sc1', tag='x2b')
    row_flag(g, 0)
    g.dstamp('r2', 'A flagged')
    vq.wait('x2b')
    g.unpack8(60, 64)
    g.ln_multi([(64, 72, 100)])
    rows_finish(g, [(64, 1)], g.sc_x3, g.sc_y1)
    g.dstamp('r2', 'row1 stored')
    row_flag(g, 1)
    g.stamp('r2 done')

def emit_r1b(g):
    a = g.a
    g.rl = 0
    nw = g.o.get('wb3', 16)
    def w(n):
        nonlocal nw
        k = min(n, nw); nw -= k
        g.weight_batch(k)
    w(3); rows_finish(g, [(16, 0)], ' sc1', g.sc_y0, part=1)
    w(3); rows_finish(g, [(16, 0)], ' sc1', g.sc_y0, part=2)
    rows_finish(g, [(64, 1)], ' sc1', g.sc_y0, part=1)
    row_flag(g, 0)
    w(5); rows_finish(g, [(64, 1)], ' sc1', g.sc_y0, part=2)
    w(100)
    row_flag(g, 1)
    g.stamp('r1 done')

def mlp_setup_rest(g): mlp_setup(g, 1)

def emit_variant(g, fast):
    a = g.a; o = g.o
    g.fast = fast
    g.fsc = '' if fast else ' sc1'
    yt = fast and (o.get('ytouch', 0) or o.get('dstore', 1))
    g.sc_h = ('' if (fast and o.get('dstore', 1) and o.get('dsH', 0)) else ' sc1'); g.sc_x = ('' if (yt and o.get('dsX', 0)) else ' sc1'); g.sc_y0 = ('' if yt else ' sc1')
    g.sc_x3 = ' sc1'; g.sc_y1 = ('' if (fast and o.get('y1plain', 1)) else ' sc1')
    emit_r1b(g)
    if g.stop == 'r1': a('s_branch L_fin'); return
    a(f's_mov_b32 {sLAYER}, 0')
    g.cur_layer = 0
    emit_layer_both(g)
    if g.stop == 'g2': a('s_branch L_fin'); return
    g.cur_layer = 1
    emit_r2(g)
    if g.stop == 'r2': a('s_branch L_fin'); return
    a(f's_mov_b32 {sLAYER}, 1')
    g.sc_h = '' if (fast and o.get('h1plain', 0)) else ' sc1'
    emit_layer_both(g)
    a('s_branch L_fin')

def emit_mlp(g):
    a = g.a
    g.vinv = VINV
    g.r1_hook = lambda: (mlp_setup(g, 0), mlp_setup(g, 1))
    emit_r1a(g)
    ops0 = list(g.vq.ops); wl0 = list(g.wlist)
    a(f's_cmp_eq_u32 {sFAST}, 0')
    a('s_cbranch_scc1 L_slow')
    emit_variant(g, True)
    g.more_code = True
    g.finish()
    a.label('L_slow')
    g.vq.ops = ops0; g.wlist = wl0
    st = g.stamps; g.stamps = False
    emit_variant(g, False)
    g.stamps = st
```

```python
import sys, argparse, struct
from asmlib import Asm, check_hazards, check_waits

NAME = 'interleave_layers__ssm_conv_h3__mixer_channel_mlp__prompt_kernel'

WS_EPOCH = 0x0
F_PREP = 0x1000
F_CONV = 0x2000
F_W = 0x3000
F_XC = 0x3800
DUMMY2 = 0x2D00000
F_Y    = 0x4000
F_H    = 0x8000
F_X    = 0x10000
XR     = 0x100000
W1F    = 0x300000
W2F    = 0x500000
GB     = 0x700000
Y0     = 0x900000
X1     = 0xD00000
X2     = 0xF00000
H0     = 0x1400000
TS     = 0x2400000
WS_SIZE = 0x10000000

L_KVT = 0
L_W1R = 8192
L_W2R = 16384
L_GT  = 0
L_XB = 25600
XBS = 79*96
L_TOEP = 40960
CS = 4160
LDS_SIZE = 163840
L_G = 155648
L_YH = [0, 65536]

sQ, sK, sV, sSK, sSSM, sD, sBX, sW1 = 16, 18, 20, 22, 24, 26, 28, 30
sB1, sW2, sB2, sOUT, sDBG, sWSP = 32, 34, 36, 38, 40, 42
WS = 's[44:47]'
sC, sR, sW, sTAG, sABORT = 's48', 's49', 's50', 's51', 's52'
sLAYER, sT1, sJ = 's64', 's65', 's66'
sXCC, sFAST = 's101', 's3'
SA, SB, SC_, SD_ = 4, 8, 12, 72
def srd(n): return f's[{n}:{n+3}]'
W1B = 128
vL16, vTAG = 2, 3
def W1reg(k): return f'v[{W1B+4*k}:{W1B+4*k+3}]'
def W2reg(nt, i):
    b = (nt*28 + i)*4
    return f'a[{b}:{b+3}]'
def f2u(x): return '0x%08x' % struct.unpack('<I', struct.pack('<f', x))[0]
C1 = 2*0.7978845608028654*1.4426950408889634
C2 = C1*0.044715

class VQ:
    def __init__(self, a): self.a = a; self.ops = []
    def issue(self, tag): self.ops.append(tag)
    def wait(self, tag):
        idx = max(i for i, t in enumerate(self.ops) if t == tag) if tag in self.ops else None
        if idx is None: return
        n = len(self.ops) - 1 - idx
        assert n <= 63, n
        self.a(f's_waitcnt vmcnt({n})')
        self.ops = self.ops[idx+1:]
    def drain(self):
        self.a('s_waitcnt vmcnt(0)'); self.ops = []
    def reset(self): self.ops = []

class Gen:
    def __init__(self, stop='end', stamps=False, opts=None):
        self.a = Asm(); self.vq = VQ(self.a)
        self.stop = stop; self.stamps = stamps
        self.nstamp = 0; self.stamp_names = []
        self.sc = ' sc1'; self.fsc = ' sc1'; self.fast = False; self.vinv = 4
        self.o = opts or {}

    def capture(self, fn):
        saved = self.a.lines
        self.a.lines = []
        fn()
        got = self.a.lines
        self.a.lines = saved
        return got

    def mk_srd(self, n, ptr, size, add=None):
        a = self.a
        if add is None:
            a(f's_mov_b32 s{n}, s{ptr}')
            a(f's_and_b32 s{n+1}, s{ptr+1}, 0xffff')
        else:
            a(f's_add_u32 s{n}, s{ptr}, {add}')
            a(f's_addc_u32 s{n+1}, s{ptr+1}, 0')
            a(f's_and_b32 s{n+1}, s{n+1}, 0xffff')
        a(f's_mov_b32 s{n+2}, {size}')
        a(f's_mov_b32 s{n+3}, 0x00020000')

    def dstamp(self, phase, name):
        if self.o.get('detail') == phase and getattr(self, 'cur_layer', 0) == self.o.get('dlayer', 1): self.stamp(name, False, force=True)
    def stamp(self, name='', inloop=False, force=False):
        if not self.stamps: return
        if self.o.get('detail') and not force and name not in ('start', 'end'): return
        inloop = False
        i = self.nstamp; self.nstamp += 1
        assert self.nstamp <= 24, name
        self.stamp_names.append(name)
        a = self.a
        a(f's_waitcnt lgkmcnt(0)')
        a(f's_memtime s[62:63]' if self.o.get('cyc') else f's_memrealtime s[62:63]')
        a(f's_waitcnt lgkmcnt(0)')
        if inloop:
            a('s_cmp_eq_u32 s64, 0')
            a(f's_cselect_b32 s{76+i}, s62, s{76+i}')
            a(f's_cselect_b32 s{77+i}, s{77+i}, s62')
        else:
            a(f's_mov_b32 s{76+i}, s62')

    def vload(self, dst, voff, sr, soff, imm=0, mods='', tag='ld', w='x4'):
        o = f' offset:{imm}' if imm else ''
        op = {'x4': 'buffer_load_dwordx4', 'x2': 'buffer_load_dwordx2', 'x1': 'buffer_load_dword'}[w]
        self.a(f'{op} {dst}, {voff}, {sr}, {soff} offen{o}{mods}')
        self.vq.issue(tag)
    def vstore(self, src, voff, sr, soff, imm=0, mods='', tag='st'):
        o = f' offset:{imm}' if imm else ''
        self.a(f'buffer_store_dwordx4 {src}, {voff}, {sr}, {soff} offen{o}{mods}')
        self.vq.issue(tag)

    def poll(self, vaddr, vtmp, nlanes=64, x4=False):
        a = self.a
        L = a.newlabel('poll'); D = a.newlabel('polld')
        a(f's_mov_b32 s53, 0')
        if nlanes < 64:
            a(f's_mov_b64 s[56:57], exec')
            a(f's_mov_b64 exec, {hex((1 << nlanes) - 1)}')
        a.label(L)
        if x4:
            a(f'buffer_load_dwordx4 v[{vtmp}:{vtmp+3}], v{vaddr}, {WS}, 0 offen sc1')
            a(f's_waitcnt vmcnt(0)')
            a(f'v_xor_b32 v{vtmp}, {sTAG}, v{vtmp}')
            a(f'v_xor_b32 v{vtmp+1}, {sTAG}, v{vtmp+1}')
            a(f'v_xor_b32 v{vtmp+2}, {sTAG}, v{vtmp+2}')
            a(f'v_xor_b32 v{vtmp+3}, {sTAG}, v{vtmp+3}')
            a(f'v_or_b32 v{vtmp}, v{vtmp}, v{vtmp+1}')
            a(f'v_or3_b32 v{vtmp}, v{vtmp}, v{vtmp+2}, v{vtmp+3}')
            a(f'v_cmp_ne_u32 vcc, 0, v{vtmp}')
        else:
            a(f'buffer_load_dword v{vtmp}, v{vaddr}, {WS}, 0 offen sc1')
            a(f's_waitcnt vmcnt(0)')
            a(f'v_cmp_ne_u32 vcc, {sTAG}, v{vtmp}')
        a(f's_cbranch_vccz {D}')
        a(f's_add_u32 s53, s53, 1')
        a(f's_cmp_lg_u32 {sABORT}, 0')
        a(f's_cbranch_scc1 {D}')
        a(f's_cmp_lt_u32 s53, 0x8000')
        a(f's_cbranch_scc1 {L}')
        a(f's_mov_b32 {sABORT}, 1')
        a.label(D)
        if nlanes < 64:
            a(f's_mov_b64 exec, s[56:57]')
        self.vq.reset()

    def poll_prep(self, vaddr, vt):
        a = self.a
        L = a.newlabel('poll'); D = a.newlabel('polld')
        a(f's_mov_b32 s53, 0')
        a.label(L)
        a(f'buffer_load_dwordx4 v[{vt}:{vt+3}], v{vaddr}, {WS}, 0 offen sc1')
        a(f's_waitcnt vmcnt(0)')
        for i in range(4): a(f'v_subrev_u32 v{vt+i}, {sTAG}, v{vt+i}')
        a(f'v_or_b32 v{vt+4}, v{vt}, v{vt+1}')
        a(f'v_or3_b32 v{vt+4}, v{vt+4}, v{vt+2}, v{vt+3}')
        a(f'v_cmp_lt_u32 vcc, 15, v{vt+4}')
        a(f's_cbranch_vccz {D}')
        a(f's_add_u32 s53, s53, 1')
        a(f's_cmp_lg_u32 {sABORT}, 0')
        a(f's_cbranch_scc1 {D}')
        a(f's_cmp_lt_u32 s53, 0x8000')
        a(f's_cbranch_scc1 {L}')
        a(f's_mov_b32 {sABORT}, 1')
        a.label(D)
        self.vq.reset()

    def dyn_role(self, vt):
        a = self.a
        lo, hi, t, u = vt+5, vt+6, vt+7, vt+8
        a(f'v_mov_b32 v{lo}, 0'); a(f'v_mov_b32 v{hi}, 0')
        for i in range(4):
            a(f'v_and_b32 v{t}, 3, v{vt+i}')
            a(f'v_lshlrev_b32 v{t}, 3, v{t}')
            a(f'v_lshlrev_b32 v{t}, v{t}, 1') if False else a(f'v_lshlrev_b32 v{t}, v{t}, v{vt+9}')
            a(f'v_lshrrev_b32 v{u}, 2, v{vt+i}')
            a(f'v_cmp_eq_u32 vcc, 0, v{u}')
            a.nop(2)
            a(f'v_cndmask_b32 v{vt+10}, 0, v{t}, vcc')
            a(f'v_cmp_eq_u32 vcc, 1, v{u}')
            a(f'v_add_u32 v{lo}, v{lo}, v{vt+10}')
            a.nop(1)
            a(f'v_cndmask_b32 v{vt+10}, 0, v{t}, vcc')
            a(f'v_add_u32 v{hi}, v{hi}, v{vt+10}')
        steps = ['quad_perm:[1,0,3,2] row_mask:0xf bank_mask:0xf', 'quad_perm:[2,3,0,1] row_mask:0xf bank_mask:0xf',
                 'row_half_mirror row_mask:0xf bank_mask:0xf', 'row_mirror row_mask:0xf bank_mask:0xf',
                 'row_bcast:15 row_mask:0xa bank_mask:0xf', 'row_bcast:31 row_mask:0xc bank_mask:0xf']
        a.nop(2)
        for st in steps:
            a(f'v_add_u32_dpp v{lo}, v{lo}, v{lo} {st}')
            a(f'v_add_u32_dpp v{hi}, v{hi}, v{hi} {st}')
            a.nop(1)
        a(f'v_readlane_b32 s56, v{lo}, 63')
        a(f'v_readlane_b32 s57, v{hi}, 63')
        a(f'v_lshlrev_b32 v{t}, 2, v1')
        a('s_mov_b32 s58, 0')
        for i in range(4):
            a(f'v_cmp_eq_u32 vcc, {sXCC}, v{vt+i}')
            a(f'v_add_u32 v{u}, {i}, v{t}')
            a(f'v_cmp_gt_u32 s[54:55], s2, v{u}')
            a.nop(1)
            a('s_and_b64 s[54:55], s[54:55], vcc')
            a('s_bcnt1_i32_b64 s55, s[54:55]')
            a('s_add_u32 s58, s58, s55')
        a('s_cmp_eq_u32 s56, 0x20202020')
        a(f's_cselect_b32 {sFAST}, 1, 0')
        a('s_cmp_eq_u32 s57, 0x20202020')
        a(f's_cselect_b32 {sFAST}, {sFAST}, 0')
        a(f's_cmp_eq_u32 {sABORT}, 0')
        a(f's_cselect_b32 {sFAST}, {sFAST}, 0')
        if self.o.get('force_slow'): a(f's_mov_b32 {sFAST}, 0')
        a(f's_cmp_eq_u32 {sFAST}, 1')
        a(f's_cselect_b32 {sC}, {sXCC}, {sC}')
        a(f's_cselect_b32 {sR}, s58, {sR}')

    def check_xc(self, vt, vaddr):
        a = self.a
        self.vq.wait('fw')
        L = a.newlabel('fw'); D = a.newlabel('fwd')
        a('s_mov_b32 s53, 0')
        a.label(L)
        for i in range(4): a(f'v_subrev_u32 v{vt+i}, {sTAG}, v{vt+i}')
        a(f'v_or_b32 v{vt+5}, v{vt}, v{vt+1}')
        a(f'v_or3_b32 v{vt+5}, v{vt+5}, v{vt+2}, v{vt+3}')
        a(f'v_cmp_lt_u32 vcc, 15, v{vt+5}')
        a(f's_cbranch_vccz {D}')
        a('s_add_u32 s53, s53, 1')
        a(f's_cmp_lg_u32 {sABORT}, 0')
        a(f's_cbranch_scc1 {D}')
        a('s_cmp_lt_u32 s53, 0x8000')
        a(f's_cbranch_scc0 {D}_ab')
        a(f'buffer_load_dwordx4 v[{vt}:{vt+3}], v{vaddr}, {WS}, 0 offen sc1')
        a('s_waitcnt vmcnt(0)')
        a(f's_branch {L}')
        a.label(D + '_ab')
        a(f's_mov_b32 {sABORT}, 1')
        a.label(D)
        a(f'v_mov_b32 v{vt+9}, 1')
        self.dyn_role(vt)
        self.weight_state_init()

    def check_fw(self, vt, vaddr):
        a = self.a
        self.vq.wait('fw2')
        L = a.newlabel('fw'); D = a.newlabel('fwd')
        a('s_mov_b32 s53, 0')
        a.label(L)
        for i in range(4): a(f'v_xor_b32 v{vt+i}, {sTAG}, v{vt+i}')
        a(f'v_or_b32 v{vt}, v{vt}, v{vt+1}')
        a(f'v_or3_b32 v{vt}, v{vt}, v{vt+2}, v{vt+3}')
        a(f'v_cmp_ne_u32 vcc, 0, v{vt}')
        a(f's_cbranch_vccz {D}')
        a('s_add_u32 s53, s53, 1')
        a(f's_cmp_lg_u32 {sABORT}, 0')
        a(f's_cbranch_scc1 {D}')
        a('s_cmp_lt_u32 s53, 0x8000')
        a(f's_cbranch_scc0 {D}_ab')
        a(f'buffer_load_dwordx4 v[{vt}:{vt+3}], v{vaddr}, {WS}, 0 offen sc1')
        a('s_waitcnt vmcnt(0)')
        a(f's_branch {L}')
        a.label(D + '_ab')
        a(f's_mov_b32 {sABORT}, 1')
        a.label(D)

    def flag(self, soff, sc=None):
        sc = self.fsc if sc is None else sc
        self.a(f'buffer_store_dword v{vTAG}, off, {WS}, {soff}{sc}')
        self.vq.issue('flag')

    def reduce_multi(self, regs, sdst):
        a = self.a
        steps = ['quad_perm:[1,0,3,2] row_mask:0xf bank_mask:0xf', 'quad_perm:[2,3,0,1] row_mask:0xf bank_mask:0xf',
                 'row_half_mirror row_mask:0xf bank_mask:0xf', 'row_mirror row_mask:0xf bank_mask:0xf',
                 'row_bcast:15 row_mask:0xa bank_mask:0xf', 'row_bcast:31 row_mask:0xc bank_mask:0xf']
        pad = max(0, 3 - len(regs))
        a.nop(max(0, 2 - (len(regs) - 1)) if len(regs) < 3 else 0)
        for s in steps:
            for r in regs:
                a(f'v_add_f32_dpp v{r}, v{r}, v{r} {s}')
            if pad: a.nop(pad)
        if len(regs) < 2: a.nop(1)
        for r, s in zip(regs, sdst):
            a(f'v_readlane_b32 s{s}, v{r}, 63')
        a.nop(2)

    def ln_multi(self, rows, double=False):
        a = self.a
        def pr(b): return f'v[{b}:{b+1}]'
        for (x, z, t) in rows:
            a(f'v_pk_add_f32 {pr(t)}, {pr(x)}, {pr(x+2)}')
            a(f'v_pk_mul_f32 {pr(t+2)}, {pr(x)}, {pr(x)}')
        for (x, z, t) in rows:
            a(f'v_pk_add_f32 {pr(t+4)}, {pr(x+4)}, {pr(x+6)}')
            a(f'v_pk_fma_f32 {pr(t+2)}, {pr(x+2)}, {pr(x+2)}, {pr(t+2)}')
        for (x, z, t) in rows:
            a(f'v_pk_add_f32 {pr(t)}, {pr(t)}, {pr(t+4)}')
            a(f'v_pk_fma_f32 {pr(t+2)}, {pr(x+4)}, {pr(x+4)}, {pr(t+2)}')
        for (x, z, t) in rows:
            a(f'v_add_f32 v{t}, v{t}, v{t+1}')
            a(f'v_pk_fma_f32 {pr(t+2)}, {pr(x+6)}, {pr(x+6)}, {pr(t+2)}')
        for (x, z, t) in rows:
            a(f'v_add_f32 v{t+2}, v{t+2}, v{t+3}')
        regs = []; sd = []
        for i, (x, z, t) in enumerate(rows):
            regs += [t, t+2]; sd += [58 - 2*i, 59 - 2*i]
        self.reduce_multi(regs, sd)
        for i, (x, z, t) in enumerate(rows):
            s1, s2 = sd[2*i], sd[2*i+1]
            a(f'v_mul_f32 v{t+4}, s{s1}, v{self.vinv}')
            a(f'v_mul_f32 v{t+2}, s{s2}, v{self.vinv}')
        for (x, z, t) in rows:
            a(f'v_fma_f32 v{t+2}, -v{t+4}, v{t+4}, v{t+2}')
        for (x, z, t) in rows:
            a(f'v_max_f32 v{t+2}, 0, v{t+2}')
        if double:
            for (x, z, t) in rows: a(f'v_add_f32 v{t}, 0x3727c5ac, v{t+2}')
            for (x, z, t) in rows: a(f'v_rsq_f32 v{t}, v{t}')
            if len(rows) < 2: a.nop(1)
            for (x, z, t) in rows: a(f'v_mul_f32 v{t+2}, v{t+2}, v{t}')
            for (x, z, t) in rows: a(f'v_fmaak_f32 v{t+2}, v{t+2}, v{t}, 0x3727c5ac')
            for (x, z, t) in rows: a(f'v_rsq_f32 v{t+2}, v{t+2}')
            if len(rows) < 2: a.nop(1)
            for (x, z, t) in rows: a(f'v_mul_f32 v{t+2}, v{t+2}, v{t}')
        else:
            for (x, z, t) in rows:
                a(f'v_add_f32 v{t+2}, 0x3727c5ac, v{t+2}')
            for (x, z, t) in rows:
                a(f'v_rsq_f32 v{t+2}, v{t+2}')
            if len(rows) < 2: a.nop(1)
        for (x, z, t) in rows:
            a(f'v_mul_f32 v{t+4}, v{t+4}, v{t+2}')
        for (x, z, t) in rows:
            for i in range(4):
                a(f'v_pk_fma_f32 {pr(z+2*i)}, {pr(x+2*i)}, {pr(t+2)}, {pr(t+4)} op_sel_hi:[1,0,0] neg_lo:[0,0,1] neg_hi:[0,0,1]')

    def unpack8(self, src, dst):
        a = self.a
        for i in range(4):
            a(f'v_lshlrev_b32 v{dst+2*i}, 16, v{src+i}')
            a(f'v_and_b32 v{dst+2*i+1}, 0xffff0000, v{src+i}')
    def pack8(self, src, dst):
        a = self.a
        for i in range(4):
            a(f'v_cvt_pk_bf16_f32 v{dst+i}, v{src+2*i}, v{src+2*i+1}')

    def prologue(self):
        a = self.a
        a('s_cmp_ge_u32 s2, 256')
        a('s_cbranch_scc1 L_end')
        a('s_load_dwordx16 s[16:31], s[0:1], 0')
        a('s_load_dwordx8 s[32:39], s[0:1], 64')
        a('s_load_dwordx4 s[40:43], s[0:1], 96')
        a('s_getpc_b64 s[68:69]')
        a(f's_and_b32 {sC}, s2, 7')
        a(f's_lshr_b32 {sR}, s2, 3')
        a(f's_mov_b32 {sABORT}, 0')
        a(f's_getreg_b32 {sXCC}, hwreg(HW_REG_XCC_ID)')
        a(f's_min_u32 {sXCC}, {sXCC}, 8')
        a('v_lshrrev_b32 v4, 6, v0')
        a('v_and_b32 v1, 63, v0')
        a(f'v_readfirstlane_b32 {sW}, v4')
        a(f'v_lshlrev_b32 v{vL16}, 4, v1')
        if self.o.get('prefetch', True) and self.o.get('pfearly', 1) and self.stop != 'x': self.code_prefetch()
        a('s_waitcnt lgkmcnt(0)')
        self.mk_srd(44, sWSP, WS_SIZE)
        self.stamp('start')
        if self.stamps:
            a('s_memtime s[62:63]'); a('s_waitcnt lgkmcnt(0)'); a('s_mov_b32 s100, s62')
        a(f'buffer_load_dword v{vTAG}, off, {WS}, 0 sc1')
        self.vq.issue('epoch')

    def code_prefetch(self):
        a = self.a
        a('s_and_b32 s68, s68, 0xffffff00')
        a('s_and_b32 s69, s69, 0xffff')
        a(f's_mov_b32 s{SD_}, s68'); a(f's_mov_b32 s{SD_+1}, s69')
        a(f's_mov_b32 s{SD_+2}, CODE_BYTES')
        a(f's_mov_b32 s{SD_+3}, 0x00020000')
        a('v_lshlrev_b32 v87, 7, v0')
        a(f'buffer_load_dword v254, v87, {srd(SD_)}, 0 offen'); self.vq.issue('pf')
        a('v_add_u32 v87, 0x8000, v87')
        a(f'buffer_load_dword v254, v87, {srd(SD_)}, 0 offen'); self.vq.issue('pf')

    def pretouch(self):
        a = self.a
        a(f's_min_u32 s58, {sXCC}, 7')
        a('s_lshl_b32 s53, s58, 18')
        a(f's_lshl_b32 s54, {sR}, 13')
        a('s_add_u32 s53, s53, s54')
        a('v_lshlrev_b32 v88, 7, v1')
        Ls = a.newlabel('pt')
        a(f's_cmp_lg_u32 {sW}, 3')
        a(f's_cbranch_scc1 {Ls}'); a.comment('COND_BEGIN')
        self.mk_srd(SD_, sQ, 2097152)
        a(f'buffer_load_dword v255, v88, {srd(SD_)}, s53 offen')
        self.mk_srd(SD_, sB1, 3584)
        a(f'buffer_load_dword v255, v88, {srd(SD_)}, 0 offen')
        self.mk_srd(SD_, sB2, 1024)
        a(f'buffer_load_dword v255, v88, {srd(SD_)}, 0 offen')
        self.mk_srd(SD_, sOUT, 2097152)
        a(f'buffer_load_dword v255, off, {srd(SD_)}, s53')
        a('v_lshlrev_b32 v87, 21, v1')
        a('v_min_u32 v87, 0x1c00000, v87')
        a(f'buffer_load_dword v255, v87, {WS}, 0 offen')
        a.label(Ls); a.comment('COND_END')
        if self.o.get('ytouch', 0):
            Ls = a.newlabel('pt2')
            a(f's_cmp_lg_u32 {sW}, 2')
            a(f's_cbranch_scc1 {Ls}'); a.comment('COND_BEGIN')
            a(f's_add_u32 s53, s53, {Y0}')
            a(f'buffer_load_dword v255, v88, {WS}, s53 offen')
            a.label(Ls); a.comment('COND_END')
            Ls = a.newlabel('pt3')
            a(f's_cmp_lg_u32 {sW}, 1')
            a(f's_cbranch_scc1 {Ls}'); a.comment('COND_BEGIN')
            a(f's_lshr_b32 s53, {sR}, 3')
            a('s_lshl_b32 s53, s53, 5')
            a('v_and_b32 v87, 31, v1')
            a('v_add_u32 v87, s53, v87')
            a('v_lshrrev_b32 v88, 2, v87')
            a('v_lshlrev_b32 v88, 3, v88')
            a('v_and_b32 v87, 3, v87')
            a('v_add_u32 v87, v87, v88')
            a('v_lshrrev_b32 v88, 5, v1')
            a('v_lshl_add_u32 v87, v88, 2, v87')
            a('s_lshl_b32 s53, s58, 8')
            a('v_add_u32 v87, s53, v87')
            a('v_lshlrev_b32 v87, 10, v87')
            a(f's_and_b32 s53, {sR}, 7')
            a('s_lshl_b32 s53, s53, 7')
            a(f's_add_u32 s53, s53, {X2}')
            a(f'buffer_load_dword v255, v87, {WS}, s53 offen')
            a.label(Ls); a.comment('COND_END')

    def conv_epi_pre(self):
        a = self.a
        a('v_sub_u32 v140, 15, v4')
        a('v_mul_u32_u24 v140, 96, v140')
        a('v_lshlrev_b32 v141, 3, v5')
        a('v_sub_u32 v140, v140, v141')
        a(f's_mul_i32 s55, s67, {XBS}')
        a(f's_add_u32 s55, s55, {L_XB + 56}')
        a('s_lshl_b32 s56, s59, 5')
        a('s_sub_u32 s55, s55, s56')
        a('v_add_u32 v140, s55, v140')
        for c in range(4):
            a(f'ds_read_b64 v[{160+2*c}:{161+2*c}], v140 offset:{(48-16*c)*96}')
        a('v_lshrrev_b32 v141, 1, v5')
        a('v_lshlrev_b32 v141, 1, v141')
        a('s_lshl_b32 s56, s59, 2')
        a('s_add_u32 s56, s56, s67')
        a('v_add_u32 v141, s56, v141')
        a('v_and_b32 v142, 7, v4')
        a('v_xor_b32 v141, v141, v142')
        a('v_lshlrev_b32 v141, 4, v141')
        a('v_lshl_add_u32 v141, v4, 7, v141')
        a('v_and_b32 v142, 1, v5')
        a('v_lshl_add_u32 v141, v142, 3, v141')
        a('v_lshrrev_b32 v140, 3, v0')
        a('v_and_b32 v143, 7, v0')
        a('v_and_b32 v142, 7, v140')
        a('v_xor_b32 v142, v142, v143')
        a('v_lshlrev_b32 v142, 4, v142')
        a('v_lshl_add_u32 v142, v140, 7, v142')
        a('v_lshlrev_b32 v140, 15, v140')
        a('v_lshl_add_u32 v143, v143, 4, v140')
        a('s_lshl_b32 s55, s60, 16')
        a('s_and_b32 s56, s60, 0xffff0000')
        a('s_cmp_eq_u32 s67, 0')
        a('s_cselect_b32 s60, s55, s56')
        for _ in range(24): a.comment('SPACER')
        for c in range(4):
            d0, d1 = 160+2*c, 161+2*c
            t = 144 + 4*c
            a(f'v_and_b32 v{t}, 0xffff0000, v{d1}')
            a(f'v_lshlrev_b32 v{t+1}, 16, v{d1}')
            a(f'v_and_b32 v{t+2}, 0xffff0000, v{d0}')
            a(f'v_lshlrev_b32 v{t+3}, 16, v{d0}')
            for r in range(4): a(f'v_mul_f32 v{t+r}, s60, v{t+r}')

    def pretouch_late(self):
        a = self.a
        a(f's_lshl_b32 s53, {sC}, 18')
        a(f's_lshl_b32 s54, {sR}, 13')
        a('s_add_u32 s53, s53, s54')
        a('v_lshlrev_b32 v8, 7, v1')
        Ls = a.newlabel('pt')
        a(f's_cmp_lg_u32 {sW}, 3')
        a(f's_cbranch_scc1 {Ls}'); a.comment('COND_BEGIN')
        self.mk_srd(SD_, sQ, 2097152)
        a(f'buffer_load_dword v255, v8, {srd(SD_)}, s53 offen')
        self.mk_srd(SD_, sB1, 3584)
        a(f'buffer_load_dword v255, v8, {srd(SD_)}, 0 offen')
        self.mk_srd(SD_, sB2, 1024)
        a(f'buffer_load_dword v255, v8, {srd(SD_)}, 0 offen')
        self.mk_srd(SD_, sOUT, 2097152)
        a(f'buffer_load_dword v255, off, {srd(SD_)}, s53')
        a('v_lshlrev_b32 v9, 21, v1')
        a('v_min_u32 v9, 0x1c00000, v9')
        a(f'buffer_load_dword v255, v9, {WS}, 0 offen')
        a.label(Ls); a.comment('COND_END')
        if self.o.get('ytouch', 0):
            Ls = a.newlabel('pt2')
            a(f's_cmp_lg_u32 {sW}, 2')
            a(f's_cbranch_scc1 {Ls}'); a.comment('COND_BEGIN')
            a(f's_add_u32 s53, s53, {Y0}')
            a(f'buffer_load_dword v255, v8, {WS}, s53 offen')
            a.label(Ls); a.comment('COND_END')
            Ls = a.newlabel('pt3')
            a(f's_cmp_lg_u32 {sW}, 1')
            a(f's_cbranch_scc1 {Ls}'); a.comment('COND_BEGIN')
            a(f's_lshr_b32 s53, {sR}, 3')
            a('s_lshl_b32 s53, s53, 5')
            a('v_and_b32 v9, 31, v1')
            a('v_add_u32 v9, s53, v9')
            a('v_lshrrev_b32 v10, 2, v9')
            a('v_lshlrev_b32 v10, 3, v10')
            a('v_and_b32 v9, 3, v9')
            a('v_add_u32 v9, v9, v10')
            a('v_lshrrev_b32 v10, 5, v1')
            a('v_lshl_add_u32 v9, v10, 2, v9')
            a(f's_lshl_b32 s53, {sC}, 8')
            a('v_add_u32 v9, s53, v9')
            a('v_lshlrev_b32 v9, 10, v9')
            a(f's_and_b32 s53, {sR}, 7')
            a('s_lshl_b32 s53, s53, 7')
            a(f's_add_u32 s53, s53, {X2}')
            a(f'buffer_load_dword v255, v9, {WS}, s53 offen')
            a.label(Ls); a.comment('COND_END')

    def prep(self):
        a = self.a; vq = self.vq
        a('v_lshrrev_b32 v8, 3, v0')
        a('v_and_b32 v9, 7, v0')
        a('v_lshlrev_b32 v8, 15, v8')
        a('v_lshl_add_u32 v8, v9, 4, v8')
        a(f's_lshl_b32 s53, {sC}, 5')
        a(f's_add_u32 s53, s53, {sR}')
        a('s_lshl_b32 s53, s53, 7')
        a(f's_add_u32 s53, s53, {GB}')
        for i in range(4): a(f'v_mov_b32 v{160+i}, -1')
        self.clear_g = True
        HR = 56
        def hblock():
            a(f's_lshl_b32 s53, {sC}, 5')
            a(f's_add_u32 s53, s53, {sR}')
            a('s_lshl_b32 s53, s53, 1')
            a(f's_lshr_b32 s54, {sW}, 1')
            a('s_add_u32 s53, s53, s54')
            a('s_lshl_b32 s53, s53, 12')
            self.mk_srd(SC_, sSSM, 4096, add='s53')
            a('v_and_b32 v54, 127, v0')
            a('v_lshlrev_b32 v51, 4, v54')
            a('v_subrev_u32 v52, 64, v51')
            a('v_subrev_u32 v53, 48, v51')
            HR = 56
            for rho in range(3):
                if rho:
                    a(f'v_add_u32 v52, 2048, v52')
                    a(f'v_add_u32 v53, 2048, v53')
                self.vload(f'v[{HR+8*rho}:{HR+8*rho+3}]', 'v52', srd(SC_), 0, tag='hr')
                self.vload(f'v[{HR+8*rho+4}:{HR+8*rho+7}]', 'v53', srd(SC_), 0, tag='hr')

        if self.o.get('hrfirst', 0): hblock()
        a('v_lshrrev_b32 v4, 5, v0')
        a('v_and_b32 v5, 31, v0')
        a(f's_lshl_b32 s53, {sR}, 16')
        a(f's_lshl_b32 s54, {sC}, 7')
        a('s_add_u32 s53, s53, s54')
        a('v_lshlrev_b32 v6, 13, v4')
        a('v_lshl_add_u32 v6, v5, 2, v6')
        a('v_add_u32 v6, s53, v6')
        a('v_subrev_u32 v7, 3072, v6')
        a('v_add_u32 v8, 4096, v6')
        self.mk_srd(SA, sK, 2097152)
        self.mk_srd(SB, sV, 2097152)
        self.mk_srd(SC_, sSK, 4096)
        K = 10
        for i in range(3): self.vload(f'v{K+i}', 'v7', srd(SA), 0, 1024*i, w='x1', tag='kv')
        for i in range(4): self.vload(f'v{K+3+i}', 'v6', srd(SA), 0, 1024*i, w='x1', tag='kv')
        for i in range(4): self.vload(f'v{K+7+i}', 'v8', srd(SA), 0, 1024*i, w='x1', tag='kv')
        V = 21
        for i in range(4): self.vload(f'v{V+i}', 'v6', srd(SB), 0, 1024*i, w='x1', tag='kv')
        for i in range(4): self.vload(f'v{V+4+i}', 'v8', srd(SB), 0, 1024*i, w='x1', tag='kv')
        a(f's_lshl_b32 s53, {sC}, 9')
        a('v_lshlrev_b32 v9, 4, v5')
        a('v_add_u32 v9, s53, v9')
        self.vload('v[30:33]', 'v9', srd(SC_), 0, tag='kv')
        if self.o.get('kvbar', 0): a('s_barrier')
        if not self.o.get('hrfirst', 0): hblock()
        if self.o.get('prefetch', True) and not self.o.get('pfearly', 1): self.code_prefetch()
        a(f's_lshl_b32 s53, {sC}, 5')
        a(f's_add_u32 s53, s53, {sR}')
        a('s_lshl_b32 s53, s53, 7')
        a(f's_add_u32 s53, s53, {GB}')
        a('v_lshrrev_b32 v85, 3, v0')
        a('v_and_b32 v86, 7, v0')
        a('v_lshlrev_b32 v85, 15, v85')
        a('v_lshl_add_u32 v85, v86, 4, v85')
        self.vstore('v[160:163]', 'v85', WS, 's53', 0, ' sc1', tag='clr')
        a(f's_add_u32 s53, s53, {32*32768}')
        self.vstore('v[160:163]', 'v85', WS, 's53', 0, ' sc1', tag='clr')
        a(f's_lshl_b32 s53, {sC}, 5')
        a(f's_add_u32 s53, s53, {sR}')
        a('s_lshl_b32 s53, s53, 2')
        a(f's_add_u32 s54, s{sD}, s53')
        a(f's_addc_u32 s55, s{sD+1}, 0')
        a('s_load_dword s60, s[54:55], 0')
        if self.o.get('pretouch', 2) == 2: self.pretouch()

        a('v_mov_b32 v80, 0'); a('v_mov_b32 v81, 0'); a('v_mov_b32 v82, 0'); a('v_mov_b32 v83, 0')
        a('v_lshlrev_b32 v84, 4, v0')
        a('v_cmp_gt_u32 vcc, 90, v0')
        a('s_and_saveexec_b64 s[56:57], vcc')
        a(f'ds_write_b128 v84, v[80:83] offset:{L_XB + 64*96}')
        a(f'ds_write_b128 v84, v[80:83] offset:{L_XB + XBS + 64*96}')
        a('s_mov_b64 exec, s[56:57]')
        if self.o.get('toepearly', 0):
            vq.wait('hr')
            a('v_and_b32 v54, 127, v0')
            a('v_lshlrev_b32 v50, 4, v54')
            a(f's_lshr_b32 s53, {sW}, 1')
            a(f's_mul_i32 s53, s53, {8*CS}')
            a(f's_add_u32 s53, s53, {L_TOEP}')
            a('v_add_u32 v50, s53, v50')
            for rho in range(3):
                D = HR + 8*rho
                if rho == 2:
                    a('v_cmp_gt_u32 vcc, 3, v54')
                    a('s_and_saveexec_b64 s[56:57], vcc')
                O = 100
                for k in range(7): a(f'v_alignbit_b32 v{O+k}, v{D+k+1}, v{D+k}, 16')
                for k in range(1, 7): a(f'v_alignbit_b32 v{110+k-1}, v{D+k+1}, v{D+k}, 16')
                for k in range(1, 7): a(f'v_mov_b32 v{120+k-1}, v{D+k}')
                off = rho*2048
                srcs = [O+0, 120, 110, D+2, O+2, 122, 112, D+4]
                for sg in range(8):
                    a(f'ds_write_b128 v50, v[{srcs[sg]}:{srcs[sg]+3}] offset:{sg*CS + off}')
                if rho < 2: a.nop(1)
                if rho == 2: a('s_mov_b64 exec, s[56:57]')
            self.stamp('toeplitz done')
        vq.wait('kv')
        self.stamp('kv loaded')
        if self.o.get('pretouch', 2) == 3: self.pretouch()
        a(f'v_add_u32 v{vTAG}, 16, v{vTAG}')
        Wp = 90
        a(f'v_lshlrev_b32 v{Wp+0}, 16, v30'); a(f'v_lshlrev_b32 v{Wp+1}, 16, v32')
        a(f'v_readfirstlane_b32 {sTAG}, v{vTAG}')
        a(f'v_and_b32 v{Wp+2}, 0xffff0000, v30'); a(f'v_and_b32 v{Wp+3}, 0xffff0000, v32')
        a(f'v_lshlrev_b32 v{Wp+4}, 16, v31'); a(f'v_lshlrev_b32 v{Wp+5}, 16, v33')
        a(f'v_and_b32 v{Wp+6}, 0xffff0000, v31'); a(f'v_and_b32 v{Wp+7}, 0xffff0000, v33')
        Lx = a.newlabel('noxc')
        a(f's_cmp_lg_u32 {sW}, 0')
        a(f's_cbranch_scc1 {Lx}'); a.comment('COND_BEGIN')
        a('s_lshl_b32 s53, s2, 2')
        a(f's_add_u32 s53, s53, {F_XC}')
        a(f'v_add_u32 v85, {sXCC}, v{vTAG}')
        a(f'buffer_store_dword v85, off, {WS}, s53 sc1')
        a.label(Lx); a.comment('COND_END')
        KU = 100
        for i in range(11):
            a(f'v_lshlrev_b32 v{KU+2*i}, 16, v{K+i}')
            a(f'v_and_b32 v{KU+2*i+1}, 0xffff0000, v{K+i}')
        VU = 122
        for i in range(8):
            a(f'v_lshlrev_b32 v{VU+2*i}, 16, v{V+i}')
            a(f'v_and_b32 v{VU+2*i+1}, 0xffff0000, v{V+i}')
        AC = 140
        def pr(b): return f'v[{b}:{b+1}]'
        for t, wq in enumerate([6, 4, 2, 0]):
            for i in range(8):
                if t == 0: a(f'v_pk_mul_f32 {pr(AC+2*i)}, {pr(KU+2*(i+0))}, {pr(Wp+6)}')
                else: a(f'v_pk_fma_f32 {pr(AC+2*i)}, {pr(KU+2*(i+t))}, {pr(Wp+wq)}, {pr(AC+2*i)}')
        for i in range(8):
            a(f'v_pk_mul_f32 {pr(AC+2*i)}, {pr(AC+2*i)}, {pr(VU+2*i)}')
        for j in range(4):
            hi, lo = 7 - 2*j - 1, 7 - 2*j
            a(f'v_cvt_pk_bf16_f32 v{160+j}, v{AC+2*lo}, v{AC+2*hi}')
            a(f'v_cvt_pk_bf16_f32 v{164+j}, v{AC+2*lo+1}, v{AC+2*hi+1}')
        a('v_sub_u32 v85, 7, v4')
        a('v_and_b32 v9, 7, v5')
        a('v_xor_b32 v85, v85, v9')
        a('v_lshlrev_b32 v85, 4, v85')
        a('v_lshl_add_u32 v85, v5, 8, v85')
        a(f'ds_write_b128 v85, v[160:163] offset:{L_KVT}')
        a(f'ds_write_b128 v85, v[164:167] offset:{L_KVT+128}')
        a('v_lshrrev_b32 v85, 3, v0')
        a('v_and_b32 v9, 7, v0')
        a('v_bfe_u32 v29, v85, 1, 3')
        a('v_xor_b32 v29, v29, v9')
        a('v_lshlrev_b32 v29, 4, v29')
        a('v_lshl_add_u32 v29, v85, 7, v29')
        a(f's_lshl_b32 s53, {sC}, 18')
        a(f's_lshl_b32 s54, {sR}, 7')
        a('s_sub_u32 s53, s53, s54')
        a(f's_add_u32 s53, s53, {XR + 3968}')
        a('v_lshlrev_b32 v50, 12, v85')
        a('v_lshl_add_u32 v50, v9, 4, v50')
        a('v_add_u32 v51, 0x20000, v50')
        a('s_waitcnt lgkmcnt(0)')
        a('s_barrier')
        a(f'ds_read_b128 v[160:163], v29 offset:{L_KVT}')
        a(f'ds_read_b128 v[164:167], v29 offset:{L_KVT+4096}')
        a('s_waitcnt lgkmcnt(1)')
        self.vstore('v[160:163]', 'v50', WS, 's53', 0, ' sc1', tag='xr')
        a('s_waitcnt lgkmcnt(0)')
        self.vstore('v[164:167]', 'v51', WS, 's53', 0, ' sc1', tag='xr')
        self.stamp('xr stored')
        self.mk_srd(SA, sW1, 512*1792*2)
        self.mk_srd(SB, sW2, 512*1792*2)
        a(f's_lshl_b32 s53, {sR}, 4')
        a(f's_lshl_b32 s54, {sW}, 2')
        a('s_add_u32 s53, s53, s54')
        a('s_mul_i32 s53, s53, 3584')
        a(f's_mul_i32 s54, {sC}, 448')
        a('s_add_u32 s53, s53, s54')
        a('v_lshrrev_b32 v34, 4, v1')
        a('v_and_b32 v9, 15, v1')
        a('v_mul_u32_u24 v29, 3584, v34')
        a('v_lshl_add_u32 v29, v9, 4, v29')
        a('v_add_u32 v29, s53, v29')
        self.vload('v[196:199]', 'v29', srd(SA), 0, tag='wr')
        self.vload('v[200:203]', 'v29', srd(SA), 0, 256, tag='wr')
        a('s_lshr_b32 s53, s2, 1')
        a('s_lshl_b32 s53, s53, 14')
        a('s_and_b32 s54, s2, 1')
        a('s_lshl_b32 s54, s54, 9')
        a('s_add_u32 s53, s53, s54')
        a('v_lshrrev_b32 v42, 4, v0')
        a('v_lshlrev_b32 v50, 10, v42')
        a('v_lshl_add_u32 v50, v9, 4, v50')
        a('v_add_u32 v50, s53, v50')
        self.vload('v[204:207]', 'v50', srd(SB), 0, tag='wr')
        self.vload('v[208:211]', 'v50', srd(SB), 0, 256, tag='wr')
        vq.wait('xr')
        a('s_barrier')
        Lnf = a.newlabel('noflag')
        a(f's_cmp_lg_u32 {sW}, 0')
        a(f's_cbranch_scc1 {Lnf}'); a.comment('COND_BEGIN')
        a(f's_lshl_b32 s53, {sC}, 5')
        a(f's_add_u32 s53, s53, {sR}')
        a('s_lshl_b32 s53, s53, 2')
        a(f's_add_u32 s53, s53, {F_PREP}')
        a(f'buffer_store_dword v{vTAG}, off, {WS}, s53 sc1')
        a.label(Lnf); a.comment('COND_END')
        self.stamp('prep published')
        if not self.o.get('toepearly', 0):
            a('v_and_b32 v54, 127, v0')
            a('v_lshlrev_b32 v50, 4, v54')
            a(f's_lshr_b32 s53, {sW}, 1')
            a(f's_mul_i32 s53, s53, {8*CS}')
            a(f's_add_u32 s53, s53, {L_TOEP}')
            a('v_add_u32 v50, s53, v50')
            for rho in range(3):
                D = HR + 8*rho
                if rho == 2:
                    a('v_cmp_gt_u32 vcc, 3, v54')
                    a('s_and_saveexec_b64 s[56:57], vcc')
                O = 100
                for k in range(7): a(f'v_alignbit_b32 v{O+k}, v{D+k+1}, v{D+k}, 16')
                for k in range(1, 7): a(f'v_alignbit_b32 v{110+k-1}, v{D+k+1}, v{D+k}, 16')
                for k in range(1, 7): a(f'v_mov_b32 v{120+k-1}, v{D+k}')
                off = rho*2048
                srcs = [O+0, 120, 110, D+2, O+2, 122, 112, D+4]
                for sg in range(8):
                    a(f'ds_write_b128 v50, v[{srcs[sg]}:{srcs[sg]+3}] offset:{sg*CS + off}')
                if rho < 2: a.nop(1)
                if rho == 2: a('s_mov_b64 exec, s[56:57]')
            self.stamp('toeplitz done')

    def w_transpose(self):
        a = self.a; vq = self.vq
        vq.wait('wr')
        a('v_lshrrev_b32 v212, 4, v0')
        a('v_and_b32 v213, 15, v0')
        a('v_mul_u32_u24 v214, 448, v212')
        a('v_lshl_add_u32 v214, v213, 4, v214')
        a(f'ds_write_b128 v214, v[196:199] offset:{L_W1R}')
        a('v_cmp_gt_u32 vcc, 12, v213')
        a('s_and_saveexec_b64 s[56:57], vcc')
        a(f'ds_write_b128 v214, v[200:203] offset:{L_W1R+256}')
        a('s_mov_b64 exec, s[56:57]')
        a('v_mul_u32_u24 v214, 576, v212')
        a('v_lshl_add_u32 v214, v213, 4, v214')
        a(f'ds_write_b128 v214, v[204:207] offset:{L_W2R}')
        a(f'ds_write_b128 v214, v[208:211] offset:{L_W2R+256}')
        a('v_lshrrev_b32 v212, 5, v1')
        a('v_bfe_u32 v213, v1, 2, 2')
        a('v_bfe_u32 v214, v1, 4, 1')
        a('v_and_b32 v215, 3, v1')
        a('v_lshlrev_b32 v215, 3, v215')
        a('v_lshl_add_u32 v215, v214, 5, v215')
        a('v_lshl_add_u32 v216, v212, 3, v213')
        a('v_mul_u32_u24 v216, 448, v216')
        a('v_add_u32 v216, v216, v215')
        a(f's_lshl_b32 s54, {sW}, 6')
        a('v_add_u32 v216, s54, v216')
        a('v_lshl_add_u32 v217, v212, 2, v213')
        a('v_mul_u32_u24 v217, 576, v217')
        a('v_add_u32 v217, v217, v215')
        a('v_add_u32 v217, s54, v217')
        a('s_waitcnt lgkmcnt(0)')
        a('s_barrier')
        a(f'ds_read_b64_tr_b16 v[168:169], v216 offset:{L_W1R}')
        a(f'ds_read_b64_tr_b16 v[170:171], v216 offset:{L_W1R + 4*448}')
        a(f'ds_read_b64_tr_b16 v[172:173], v216 offset:{L_W1R + 256}')
        a(f'ds_read_b64_tr_b16 v[174:175], v216 offset:{L_W1R + 4*448 + 256}')
        a(f'ds_read_b64_tr_b16 v[176:177], v217 offset:{L_W2R}')
        a(f'ds_read_b64_tr_b16 v[178:179], v217 offset:{L_W2R + 8*576}')
        a(f'ds_read_b64_tr_b16 v[180:181], v217 offset:{L_W2R + 256}')
        a(f'ds_read_b64_tr_b16 v[182:183], v217 offset:{L_W2R + 8*576 + 256}')
        a(f's_mul_i32 s53, {sC}, 7')
        a(f's_add_u32 s53, s53, {sW}')
        a(f's_mul_i32 s54, {sR}, 56')
        a('s_add_u32 s53, s53, s54')
        a('s_lshl_b32 s53, s53, 10')
        a(f's_add_u32 s53, s53, {W1F}')
        a(f's_add_u32 s55, s53, {4*1024}')
        a('s_lshl_b32 s57, s2, 12')
        a(f's_add_u32 s57, s57, {DUMMY2}')
        a(f's_cmp_eq_u32 {sW}, 3')
        a('s_cselect_b32 s55, s57, s55')
        a('s_waitcnt lgkmcnt(4)')
        self.vstore('v[168:171]', f'v{vL16}', WS, 's53', 0, ' sc1', tag='wf')
        self.vstore('v[172:175]', f'v{vL16}', WS, 's55', 0, ' sc1', tag='wf')
        a('s_mov_b32 s4, s53'); a('s_mov_b32 s5, s55')
        a('s_lshr_b32 s54, s2, 1')
        a('s_mul_i32 s55, s54, 9363')
        a('s_lshr_b32 s55, s55, 18')
        a('s_mul_i32 s56, s55, 28')
        a('s_sub_u32 s54, s54, s56')
        a('s_lshl_b32 s54, s54, 2')
        a('s_add_u32 s54, s54, s55')
        a('s_lshl_b32 s54, s54, 4')
        a('s_and_b32 s53, s2, 1')
        a('s_lshl_b32 s53, s53, 3')
        a(f's_add_u32 s53, s53, {sW}')
        a('s_add_u32 s53, s53, s54')
        a('s_lshl_b32 s53, s53, 10')
        a(f's_add_u32 s53, s53, {W2F}')
        a('s_cmp_ge_u32 s2, 224')
        a('s_cselect_b32 s53, s57, s53')
        a('s_waitcnt lgkmcnt(0)')
        self.vstore('v[176:179]', f'v{vL16}', WS, 's53', 0, ' sc1', tag='wf')
        a('s_mov_b32 s6, s53')
        a(f's_add_u32 s54, s53, {4*1024}')
        a('s_cselect_b32 s53, s57, s54') if False else None
        a('s_cmp_ge_u32 s2, 224')
        a('s_cselect_b32 s53, s57, s54')
        self.vstore('v[180:183]', f'v{vL16}', WS, 's53', 0, ' sc1', tag='wf')
        a('s_mov_b32 s7, s53')

    def dummy_stores(self):
        a = self.a
        Ls = a.newlabel('nods')
        a(f's_cmp_eq_u32 {sFAST}, 0')
        a(f's_cbranch_scc1 {Ls}'); a.comment('COND_BEGIN')
        D = 'v[192:195]'
        if self.o.get('dsH', 0):
            a(f's_lshl_b32 s53, {sC}, 1')
            a(f's_add_u32 s53, s53, {sT1}')
            a('s_mul_i32 s53, s53, 448')
            a(f's_lshl_b32 s54, {sJ}, 2')
            a(f's_add_u32 s54, s54, {sW}')
            a('s_min_u32 s54, s54, 55')
            a('s_lshl_b32 s54, s54, 1')
            a('s_add_u32 s53, s53, s54')
            a('s_lshl_b32 s53, s53, 10')
            a(f's_add_u32 s53, s53, {H0}')
            for u in range(4):
                a(f'buffer_store_dwordx4 {D}, v{vL16}, {WS}, s53 offen')
                a(f'buffer_store_dwordx4 {D}, v{vL16}, {WS}, s53 offen offset:1024')
                if u < 3: a(f's_add_u32 s53, s53, {112*1024}')
        a(f's_lshl_b32 s53, {sC}, 8')
        a(f's_lshl_b32 s54, {sR}, 3')
        a('s_add_u32 s53, s53, s54')
        a(f's_add_u32 s53, s53, {sW}')
        a('s_lshl_b32 s53, s53, 10')
        a(f's_add_u32 s53, s53, {Y0}')
        a(f'buffer_store_dwordx4 {D}, v{vL16}, {WS}, s53 offen')
        a('s_add_u32 s53, s53, 4096')
        a(f'buffer_store_dwordx4 {D}, v{vL16}, {WS}, s53 offen')
        if not self.o.get('dsX', 0):
            a.label(Ls); a.comment('COND_END'); return
        a('v_lshrrev_b32 v8, 3, v0')
        a(f's_lshr_b32 s53, {sR}, 3')
        a('s_lshl_b32 s53, s53, 5')
        a('v_add_u32 v8, s53, v8')
        a('v_lshrrev_b32 v9, 2, v8')
        a('v_lshlrev_b32 v9, 3, v9')
        a('v_and_b32 v8, 3, v8')
        a('v_add_u32 v8, v8, v9')
        a(f's_lshl_b32 s53, {sC}, 8')
        a('v_add_u32 v8, s53, v8')
        a('v_lshlrev_b32 v8, 10, v8')
        a('v_and_b32 v9, 7, v0')
        a('v_lshl_add_u32 v8, v9, 4, v8')
        a(f's_and_b32 s53, {sR}, 7')
        a('s_lshl_b32 s53, s53, 7')
        a(f's_add_u32 s53, s53, {X2}')
        a(f'buffer_store_dwordx4 {D}, v8, {WS}, s53 offen')
        a('s_add_u32 s53, s53, 4096')
        a(f'buffer_store_dwordx4 {D}, v8, {WS}, s53 offen')
        a.label(Ls); a.comment('COND_END')

    def weight_state_init(self):
        a = self.a
        a(f's_cmp_ge_u32 {sR}, 14')
        a(f's_cselect_b32 {sT1}, 1, 0')
        a(f's_mul_i32 s53, {sT1}, 14')
        a(f's_sub_u32 {sJ}, {sR}, s53')
        a(f's_lshl_b32 s14, {sJ}, 2')
        a(f's_add_u32 s14, s14, {sW}')
        a('s_min_u32 s14, s14, 55')
        a('s_lshl_b32 s14, s14, 10')
        a(f's_add_u32 s14, s14, {W1F}')
        a(f's_and_b32 s15, {sR}, 7')
        a('s_lshl_b32 s15, s15, 1')
        a(f's_lshl_b32 s53, {sW}, 4')
        a('s_add_u32 s15, s15, s53')
        a('s_lshl_b32 s15, s15, 10')
        a(f's_add_u32 s15, s15, {W2F}')
        self.wlist = [('w1', k) for k in range(32)] + [('w2', nt, i) for i in range(28) for nt in range(2)]
    def weight_batch(self, n):
        a = self.a
        for _ in range(n):
            if not self.wlist: return
            it = self.wlist.pop(0)
            if it[0] == 'w1':
                k = it[1]
                a(f's_add_u32 s13, s14, {k*56*1024}')
                self.vload(W1reg(k), f'v{vL16}', WS, 's13', 0, ' sc1', tag='w')
            else:
                _, nt, i = it
                a(f's_add_u32 s13, s15, {i*64*1024}')
                self.vload(W2reg(nt, i), f'v{vL16}', WS, 's13', nt*1024, ' sc1', tag='w')

    def conv(self):
        a = self.a; vq = self.vq; o = self.o
        a(f's_lshl_b32 s53, {sC}, 7')
        a(f's_add_u32 s53, s53, {F_PREP}')
        a('v_and_b32 v5, 31, v1')
        a('v_lshlrev_b32 v5, 2, v5')
        a('v_add_u32 v5, s53, v5')
        self.poll(5, 8)
        self.stamp('prep flags seen')
        a(f's_lshl_b32 s53, {sC}, 5')
        a(f's_add_u32 s53, s53, {sR}')
        a('s_lshl_b32 s61, s53, 7')
        a('s_lshl_b32 s53, s53, 13')
        a(f's_add_u32 s53, s53, {XR}')
        a('v_lshlrev_b32 v5, 4, v0')
        self.vload('v[184:187]', 'v5', WS, 's53', 0, ' sc1', tag='x0')
        a('s_add_u32 s53, s53, 4096')
        self.vload('v[188:191]', 'v5', WS, 's53', 0, ' sc1', tag='x1')
        a(f'v_add_u32 v132, {F_XC}, v{vL16}')
        a(f'buffer_load_dwordx4 v[128:131], v132, {WS}, 0 offen sc1'); vq.issue('fw')
        if not o.get('wtloop', 0): self.w_transpose()
        a('v_lshrrev_b32 v4, 2, v0')
        a('v_mul_u32_u24 v4, 96, v4')
        a('v_and_b32 v5, 3, v0')
        a('v_lshl_add_u32 v4, v5, 4, v4')
        vq.wait('x0')
        a(f'ds_write_b128 v4, v[184:187] offset:{L_XB}')
        vq.wait('x1')
        a(f'ds_write_b128 v4, v[188:191] offset:{L_XB + XBS}')
        a(f's_lshr_b32 s67, {sW}, 1')
        a(f's_and_b32 s59, {sW}, 1')
        a('v_and_b32 v4, 15, v1')
        a('v_lshrrev_b32 v5, 4, v1')
        a('v_and_b32 v6, 7, v4')
        a(f'v_mul_u32_u24 v6, {CS}, v6')
        a('v_and_b32 v7, 8, v4')
        a('v_lshl_add_u32 v7, v5, 3, v7')
        a('v_lshl_add_u32 v6, v7, 1, v6')
        a(f's_mul_i32 s55, s67, {8*CS}')
        a('s_lshl_b32 s56, s59, 5')
        a('s_add_u32 s55, s55, s56')
        a(f's_add_u32 s55, s55, {L_TOEP}')
        a('v_add_u32 v6, s55, v6')
        a('v_sub_u32 v7, 15, v4')
        a('v_mul_u32_u24 v7, 96, v7')
        a('v_lshl_add_u32 v7, v5, 4, v7')
        a(f's_mul_i32 s55, s67, {XBS}')
        a(f's_add_u32 s55, s55, {L_XB}')
        a('v_add_u32 v7, s55, v7')
        a('s_waitcnt lgkmcnt(0)')
        a('s_barrier')
        if self.o.get('pretouch', 2) == 1: self.pretouch_late()
        for i in range(16): a(f'v_mov_b32 v{16+i}, 0')
        self.stamp('x in lds')
        wb1 = o.get('wb1', 12)
        def Er(m, j): b = 32 + 32*(m % 3) + 4*j; return f'v[{b}:{b+3}]'
        def Fr(m, j): b = 32 + 32*(m % 3) + 16 + 4*j; return f'v[{b}:{b+3}]'
        def gloads(m):
            l = []
            for j in range(4):
                e = 16*j - m
                l.append(f'ds_read_b128 {Fr(m,j)}, v6 offset:{64*(m+16*j)}')
                l.append(f'ds_read_b128 {Er(m,j)}, v7 offset:{(48-e)*96}')
            return l
        for l in gloads(0): a(l)
        for l in gloads(1)[:7]: a(l)
        first_extra = gloads(1)[7:]
        wt1, wt2 = [], []
        if o.get('wtloop', 0):
            wt = self.capture(self.w_transpose)
            bi = [i for i, l in enumerate(wt) if l.startswith('s_barrier')][0]
            wt1, wt2 = wt[:bi+1], wt[bi+1:]
        xc = self.capture(lambda: self.check_xc(128, 132))
        ei = [i for i, l in enumerate(xc) if 'SPIN_END' in l][0]
        xc_head, xc_rest = xc[:ei+1], xc[ei+1:]
        fillers = []
        for m in range(16):
            nxt = (first_extra if m == 0 else []) + (gloads(m+2) if m + 2 < 16 else [])
            if m == 1:
                for l in wt1: a.lines.append(l)
            if m == 2:
                for l in wt2: a.lines.append(l)
            if m == o.get('xcslot', 1):
                for l in xc_head: a.lines.append(l)
                epi = self.capture(self.conv_epi_pre)
                def grp(lines):
                    out = []
                    for l in lines:
                        if out and l.startswith('s_cselect') : out[-1].append(l)
                        else: out.append([l])
                    return out
                epi = grp(epi)
                fillers = grp(xc_rest) + epi; nepi = len(epi)
            if m == 0: a('s_waitcnt lgkmcnt(7)')
            elif m < 15: a('s_waitcnt lgkmcnt(8)')
            else: a('s_waitcnt lgkmcnt(0)')
            mf = []
            for j in range(4):
                for c in range(j, 4):
                    mf.append(f'v_mfma_f32_16x16x32_bf16 v[{16+4*c}:{19+4*c}], {Fr(m,j)}, {Er(m,c-j)}, v[{16+4*c}:{19+4*c}]')
            if m == o.get('fwpub', 4):
                vq.wait('wf')
                a('s_barrier')
                Lnf = a.newlabel('noflag')
                a(f's_cmp_lg_u32 {sW}, 0')
                a(f's_cbranch_scc1 {Lnf}'); a.comment('COND_BEGIN')
                a('s_lshl_b32 s53, s2, 2')
                a(f's_add_u32 s53, s53, {F_W}')
                a(f'buffer_store_dword v{vTAG}, off, {WS}, s53 sc1')
                a.label(Lnf); a.comment('COND_END')
            if m == o.get('fwpub', 4) and o.get('wretouch', 0):
                for q in range(4):
                    a(f'buffer_load_dword v255, v{vL16}, {WS}, s{4+q} offen'); vq.issue('wt')
            if m == o.get('dsslot', 10) and o.get('dstore', 1):
                assert len(fillers) <= nepi
                self.dummy_stores()
            if m == o.get('fwld', 13):
                a(f'v_add_u32 v132, {F_W}, v{vL16}')
                a(f'buffer_load_dwordx4 v[128:131], v132, {WS}, 0 offen sc1'); vq.issue('fw2')
            for i, ins in enumerate(mf):
                a(ins)
                if nxt: a(nxt.pop(0))
                for _ in range(2):
                    if fillers:
                        a.lines.extend(fillers.pop(0))
            assert not nxt
        for gl in fillers: a.lines.extend(gl)
        self.stamp('conv mfma done')
        a.nop(6)
        for c in range(4):
            acc = 16+4*c
            for r in range(4): a(f'v_add_f32 v{acc+r}, v{acc+r}, v{144+4*c+r}')
            a(f'v_cvt_pk_bf16_f32 v{64+2*c}, v{acc}, v{acc+1}')
            a(f'v_cvt_pk_bf16_f32 v{65+2*c}, v{acc+2}, v{acc+3}')
            a(f'ds_write_b64 v141, v[{64+2*c}:{65+2*c}] offset:{L_GT + 16*c*128}')
        a('s_waitcnt lgkmcnt(0)')
        a('s_barrier')
        a(f'ds_read_b128 v[48:51], v142 offset:{L_GT}')
        a(f'ds_read_b128 v[52:55], v142 offset:{L_GT + 4096}')
        a(f's_add_u32 s53, s61, {GB}')
        a('s_waitcnt lgkmcnt(1)')
        self.vstore('v[48:51]', 'v143', WS, 's53', 0, ' sc1', tag='g')
        a(f's_add_u32 s53, s53, {32*32768}')
        a('s_waitcnt lgkmcnt(0)')
        self.vstore('v[52:55]', 'v143', WS, 's53', 0, ' sc1', tag='g')
        self.mk_srd(SA, sQ, 2097152)
        a(f's_lshl_b32 s53, {sC}, 8')
        a(f's_lshl_b32 s54, {sR}, 3')
        a('s_add_u32 s53, s53, s54')
        a(f's_add_u32 s53, s53, {sW}')
        a('s_lshl_b32 s53, s53, 10')
        self.vload('v[8:11]', f'v{vL16}', srd(SA), 's53', 0, tag='q')
        a('s_add_u32 s53, s53, 4096')
        self.vload('v[12:15]', f'v{vL16}', srd(SA), 's53', 0, tag='q')
        self.check_fw(128, 132)
        a('s_barrier')
        self.weight_batch(o.get('wb2', 16))
        self.stamp('conv published')

    def finish(self):
        a = self.a
        a.label('L_fin')
        Ln = a.newlabel('noep')
        a('s_cmp_lg_u32 s2, 0')
        a(f's_cbranch_scc1 {Ln}'); a.comment('COND_BEGIN')
        a(f's_cmp_lg_u32 {sW}, 0')
        a(f's_cbranch_scc1 {Ln}'); a.comment('COND_BEGIN')
        a(f'buffer_store_dword v{vTAG}, off, {WS}, 0 sc1')
        a.label(Ln)
        if self.stamps:
            self.stamp('end')
            a('s_memtime s[62:63]'); a('s_waitcnt lgkmcnt(0)'); a('s_sub_u32 s100, s62, s100')
            a('s_lshl_b32 s53, s2, 2')
            a(f's_add_u32 s53, s53, {sW}')
            a('s_lshl_b32 s53, s53, 7')
            a(f's_add_u32 s53, s53, {TS}')
            a('s_mov_b64 exec, 1')
            a('v_mov_b32 v4, 0')
            for i in range(self.nstamp):
                a(f'v_mov_b32 v5, s{76+i}')
                a(f'buffer_store_dword v5, v4, {WS}, s53 offen offset:{4*i}')
                a.nop(1)
            if self.o.get('dbgstamps'):
                Ld = a.newlabel('nodbg')
                a(f's_cmp_lg_u32 s2, {self.o.get("dbgstamps")}')
                a(f's_cbranch_scc1 {Ld}')
                a(f's_cmp_lg_u32 {sW}, 0')
                a(f's_cbranch_scc1 {Ld}')
                self.mk_srd(SA, sDBG, 256)
                sel = [1, 3, 5, 6, 7, 8, 10, 11, 13, 14, 16, 17, 19, 20, 22, 23]
                for j, i in enumerate(sel):
                    a(f's_sub_u32 s54, s{76+i}, s76')
                    a(f'v_mov_b32 v5, s54')
                    a(f'buffer_store_dword v5, v4, {srd(SA)}, 0 offen offset:{4*j}')
                    a.nop(1)
                a.label(Ld)
            a(f'v_mov_b32 v5, {sFAST}')
            a(f'buffer_store_dword v5, v4, {WS}, s53 offen offset:116')
            a.nop(1)
            a(f'v_mov_b32 v5, s100')
            a(f'buffer_store_dword v5, v4, {WS}, s53 offen offset:120')
            a.nop(1)
            a(f'v_mov_b32 v5, {sABORT}')
            a(f'buffer_store_dword v5, v4, {WS}, s53 offen offset:124')
        a('s_waitcnt vmcnt(0)')
        a.label('L_end')
        a('s_endpgm')
        self.finished = True
        if not getattr(self, 'more_code', False): a.label('L_code_end')

    def build(self):
        self.prologue()
        self.prep()
        if self.stop != 'prep': self.conv()
        if self.stop not in ('prep', 'conv'):
            if self.o.get('mlp', 4) == 3:
                from gen3_mlp import emit_mlp
            else:
                from gen4_mlp import emit_mlp
            emit_mlp(self)
        if not getattr(self, 'finished', False): self.finish()
        else: self.a.label('L_code_end')
        body = self.a.text()
        hdr = open('cdna_kernels/' + NAME[:-7] + '.s.ref').read().split('; Override launch')[0]
        s = hdr + f'; @launch grid=(256,1,1) block=(256,1,1) lds={LDS_SIZE}\n'
        s += f'''.amdgcn_target "amdgcn-amd-amdhsa--gfx950"
.text
.globl {NAME}
.p2align 8
.type {NAME},@function
{NAME}:
.set CODE_BYTES, {'L_slow' if 'L_slow:' in body else 'L_code_end'} - {NAME}
''' + body + f'''.section .rodata,"a"
.p2align 6
.amdhsa_kernel {NAME}
  .amdhsa_next_free_vgpr 512
  .amdhsa_next_free_sgpr 102
  .amdhsa_accum_offset 256
  .amdhsa_group_segment_fixed_size 0
  .amdhsa_kernarg_size 112
  .amdhsa_user_sgpr_count 2
  .amdhsa_user_sgpr_kernarg_segment_ptr 1
  .amdhsa_system_sgpr_workgroup_id_x 1
.end_amdhsa_kernel
'''
        return s

def main():
    ap = argparse.ArgumentParser()
    ap.add_argument('--stop', default='end')
    ap.add_argument('--stamps', action='store_true')
    ap.add_argument('-o', default='k.s')
    ap.add_argument('--opt', action='append', default=[])
    args = ap.parse_args()
    opts = {}
    for kv in args.opt:
        k, v = kv.split('='); opts[k] = int(v) if v.lstrip('-').isdigit() else v
    g = Gen(stop=args.stop, stamps=args.stamps, opts=opts)
    s = g.build()
    probs = check_hazards(g.a.lines)
    for p in probs: print(p)
    wp = check_waits(g.a.lines)
    for p in wp[:30]: print(p)
    print(len(wp), 'wait problems')
    print(f'{len(g.a.lines)} lines, {len(probs)} hazards')
    open(args.o, 'w').write(s)
    open(args.o + '.stamps', 'w').write('\n'.join(g.stamp_names))

if __name__ == '__main__':
    main()
```

```python
from gen2 import *

def tok_base(a, dst, eta):
    a(f's_lshl_b32 {dst}, {sC}, 8')
    a(f's_lshl_b32 s54, {sR}, 3')
    a(f's_add_u32 {dst}, {dst}, s54')
    a(f's_add_u32 {dst}, {dst}, {sW}')
    if eta: a(f's_add_u32 {dst}, {dst}, {4*eta}')
    a(f's_lshl_b32 {dst}, {dst}, 10')

def yflag_addr(a, dst, eta):
    a(f's_lshl_b32 {dst}, s67, 1')
    if eta: a(f's_add_u32 {dst}, {dst}, {eta}')
    a(f's_lshl_b32 {dst}, {dst}, 3')
    a(f's_add_u32 {dst}, {dst}, {sC}')
    a(f's_lshl_b32 {dst}, {dst}, 7')
    a(f's_lshl_b32 s54, {sR}, 2')
    a(f's_add_u32 {dst}, {dst}, s54')
    a(f's_add_u32 {dst}, {dst}, {sW}')
    a(f's_lshl_b32 {dst}, {dst}, 2')
    a(f's_add_u32 {dst}, {dst}, {F_Y}')

def rows_finish(g, rows):
    a = g.a
    for (X, eta) in rows:
        a(f's_lshl_b32 s53, {sW}, 10')
        a(f's_add_u32 s53, s53, {L_G + eta*4096}')
        a(f'v_add_u32 v{X+28}, s53, v{vL16}')
        a(f'ds_read_b128 v[{X+16}:{X+19}], v{X+28}')
    a('s_waitcnt lgkmcnt(0)')
    def pr(b): return f'v[{b}:{b+1}]'
    for (X, eta) in rows:
        g.unpack8(X+16, X+20)
    for (X, eta) in rows:
        for i in range(4):
            a(f'v_pk_fma_f32 {pr(X+2*i)}, {pr(X+8+2*i)}, {pr(X+20+2*i)}, {pr(X+2*i)}')
    for (X, eta) in rows:
        g.pack8(X, X+32)
    for (X, eta) in rows:
        g.unpack8(X+32, X)
    for (X, eta) in rows:
        tok_base(a, 's55', eta)
        a('s_lshl_b32 s54, s67, 22' if not g.fast else 's_mov_b32 s54, 0')
        a('s_add_u32 s54, s54, s55')
        a(f's_add_u32 s54, s54, {X1}')
        g.vstore(f'v[{X+32}:{X+35}]', f'v{vL16}', WS, 's54', 0, g.sc, tag=f'rx{eta}')
    g.ln_multi([(X, X+8, X+36) for (X, eta) in rows])
    g.ln_multi([(X+8, X+8, X+36) for (X, eta) in rows])
    for (X, eta) in rows:
        g.pack8(X+8, X+16)
    for (X, eta) in rows:
        tok_base(a, 's55', eta)
        a('s_lshl_b32 s54, s67, 21' if not g.fast else 's_mov_b32 s54, 0')
        a('s_add_u32 s54, s54, s55')
        a(f's_add_u32 s54, s54, {Y0}')
        g.vstore(f'v[{X+16}:{X+19}]', f'v{vL16}', WS, 's54', 0, g.sc, tag=f'ry{eta}')

def row_flag(g, eta):
    a = g.a
    yflag_addr(a, 's53', eta)
    g.vq.wait(f'ry{eta}')
    g.flag('s53')

def emit_r1a(g):
    a = g.a; vq = g.vq; o = g.o
    XA, XB_ = 16, 64
    a(f'v_mov_b32 v{g.vinv}, 0x3b000000')
    vq.wait('q')
    g.unpack8(8, XA); g.unpack8(12, XB_)
    g.ln_multi([(XA, XA+8, XA+36), (XB_, XB_+8, XB_+36)])
    if getattr(g, 'r1_hook', None): g.r1_hook()
    a(f's_lshl_b32 s53, {sC}, 3')
    a(f's_lshr_b32 s54, {sR}, 2')
    a('s_add_u32 s53, s53, s54')
    a('s_lshl_b32 s53, s53, 15')
    a(f's_and_b32 s54, {sR}, 3')
    a('s_lshl_b32 s54, s54, 5')
    a('s_add_u32 s53, s53, s54')
    a(f's_add_u32 s55, s53, {GB}')
    a('v_lshlrev_b32 v111, 7, v0')
    L = a.newlabel('gp'); D = a.newlabel('gpd')
    a('s_mov_b32 s53, 0')
    a('s_mov_b64 s[56:57], exec')
    a.label(L)
    a(f'buffer_load_dwordx4 v[60:63], v111, {WS}, s55 offen sc1')
    a(f'buffer_load_dwordx4 v[124:127], v111, {WS}, s55 offen offset:16 sc1')
    a('s_waitcnt vmcnt(0)')
    a('v_max3_u32 v109, v60, v61, v62')
    a('v_max3_u32 v110, v63, v124, v125')
    a('v_max3_u32 v109, v109, v126, v127')
    a('v_max_u32 v109, v109, v110')
    a('v_cmp_eq_u32 vcc, -1, v109')
    a(f's_cbranch_vccz {D}')
    if o.get('gmask', 1): a('s_and_b64 exec, exec, vcc')
    if o.get("gsleep", 0): a(f's_sleep {o.get("gsleep", 0)}')
    a('s_add_u32 s53, s53, 1')
    a(f's_cmp_lg_u32 {sABORT}, 0')
    a(f's_cbranch_scc1 {D}')
    a('s_cmp_lt_u32 s53, 0x8000')
    a(f's_cbranch_scc1 {L}')
    a(f's_mov_b32 {sABORT}, 1')
    a.label(D)
    a('s_mov_b64 exec, s[56:57]')
    vq.reset()
    g.stamp('G loaded')
    a('s_mov_b32 s56, 0x05040100')
    a('s_mov_b32 s57, 0x07060302')
    a('v_lshlrev_b32 v109, 2, v0')
    a(f'v_add_u32 v109, {L_G}, v109')
    for hlf in range(2):
        for j in range(4*hlf, 4*hlf + 4):
            sel = 's56' if j % 2 == 0 else 's57'
            a(f'v_perm_b32 v{12 + (j%4)}, v{124 + j//2}, v{60 + j//2}, {sel}')
        for j in range(4*hlf, 4*hlf + 4):
            a(f'ds_write_b32 v109, v{12 + (j%4)} offset:{j*1024}')
    a('s_waitcnt lgkmcnt(0)')
    a('s_barrier')

def emit_r1b(g):
    a = g.a; vq = g.vq; o = g.o
    XA, XB_ = 16, 64
    a('s_mov_b32 s67, 0')
    rows_finish(g, [(XA, 0), (XB_, 1)])
    g.weight_batch(o.get('wb4', 0))
    row_flag(g, 0)
    row_flag(g, 1)
    g.stamp('r1 done')

def emit_r2(g):
    a = g.a; vq = g.vq
    a('s_mov_b32 s67, 1')
    a('v_mov_b32 v4, 0x3b000000')
    for eta in range(2):
        X = 16 if eta == 0 else 64
        a(f's_lshl_b32 s53, {sC}, 1')
        if eta: a(f's_add_u32 s53, s53, {eta}')
        a('s_lshl_b32 s53, s53, 2')
        a(f's_lshr_b32 s54, {sR}, 3')
        a('s_add_u32 s53, s53, s54')
        a('s_lshl_b32 s53, s53, 2')
        a(f's_and_b32 s54, {sR}, 7')
        a('s_lshr_b32 s54, s54, 1')
        a('s_add_u32 s53, s53, s54')
        a('s_lshl_b32 s53, s53, 5')
        a(f's_add_u32 s53, s53, {F_X}')
        a('v_lshlrev_b32 v5, 2, v1')
        a('v_add_u32 v5, s53, v5')
        if eta == 1:
            row_flag(g, 0)
        g.poll(5, 6, nlanes=8)
        tok_base(a, 's53', eta)
        a(f's_add_u32 s53, s53, {X2}')
        g.vload('v[8:11]', f'v{vL16}', WS, 's53', 0, ' sc1', tag='x2')
        vq.wait('x2')
        g.unpack8(8, X)
        g.ln_multi([(X, X+8, X+36)])
        rows_finish(g, [(X, eta)])
    row_flag(g, 1)
    g.stamp('r2 done', False)

def gelu_fillers(g, acc, eta, tt):
    a = g.a
    F = []
    def addr():
        a(f's_add_u32 s54, s71, {(2*eta+tt)*112*1024}')
        a(f's_add_u32 s55, s70, {(2*eta+tt)*256}')
    F.append(addr)
    for p in range(8):
        x0, x1 = acc + 2*p, acc + 2*p + 1
        t0, t1 = 96 + 2*(p % 2), 97 + 2*(p % 2)
        seq = [f'v_mul_f32 v{t0}, v{x0}, v{x0}', f'v_mul_f32 v{t1}, v{x1}, v{x1}',
               f'v_fma_f32 v{t0}, v{t0}, v126, v127', f'v_fma_f32 v{t1}, v{t1}, v126, v127',
               f'v_mul_f32 v{t0}, v{t0}, v{x0}', f'v_mul_f32 v{t1}, v{t1}, v{x1}',
               f'v_exp_f32 v{t0}, v{t0}', f'v_exp_f32 v{t1}, v{t1}',
               f'v_add_f32 v{t0}, 1.0, v{t0}', f'v_add_f32 v{t1}, 1.0, v{t1}',
               f'v_rcp_f32 v{t0}, v{t0}', f'v_rcp_f32 v{t1}, v{t1}',
               f'v_mul_f32 v{x0}, v{x0}, v{t0}', f'v_mul_f32 v{x1}, v{x1}, v{t1}',
               f'v_cvt_pk_bf16_f32 v{112+p}, v{x0}, v{x1}']
        for s in seq: F.append(lambda s=s: a(s))
        if p == 3: F.append(lambda: g.vstore('v[112:115]', f'v{vL16}', WS, 's54', 0, g.sc, tag=f'h{eta}{tt}'))
        if p == 7: F.append(lambda: g.vstore('v[116:119]', f'v{vL16}', WS, 's54', 1024, g.sc, tag=f'h{eta}{tt}'))
    return F

def emit_g1(g):
    a = g.a; vq = g.vq
    Lskip = a.newlabel('g1skip')
    a('s_barrier')
    a(f's_cmp_ge_u32 {sR}, 28')
    a(f's_cbranch_scc1 {Lskip}')
    a(f's_lshl_b32 s68, {sJ}, 2')
    a(f's_add_u32 s68, s68, {sW}')
    g.mk_srd(SA, sB1, 3584)
    a('v_lshrrev_b32 v14, 5, v1')
    a('v_lshlrev_b32 v15, 3, v14')
    a('s_lshl_b32 s53, s68, 6')
    for i in range(4):
        g.vload(f'v[{96+2*i}:{97+2*i}]', 'v15', srd(SA), 's53', 16*i, w='x2', tag='bias')
    a(f'v_mov_b32 v126, {f2u(-C2)}')
    a(f'v_mov_b32 v127, {f2u(-C1)}')
    a('v_and_b32 v15, 31, v1')
    a('v_and_b32 v12, 15, v1')
    for m in range(8):
        a(f'v_add_u32 v{4+m}, {2*m}, v14')
        a(f'v_xor_b32 v{4+m}, v{4+m}, v12')
        a(f'v_lshlrev_b32 v{4+m}, 4, v{4+m}')
        a(f'v_lshl_add_u32 v{4+m}, v15, 10, v{4+m}')
    a(f's_lshl_b32 s53, {sC}, 1')
    a(f's_add_u32 s53, s53, {sT1}')
    a('s_lshl_b32 s53, s53, 2')
    a('s_mul_i32 s71, s53, 112')
    a('s_lshl_b32 s55, s68, 1')
    a('s_add_u32 s71, s71, s55')
    a('s_lshl_b32 s71, s71, 10')
    a(f's_lshl_b32 s55, {sLAYER}, 23' if not g.fast else 's_mov_b32 s55, 0')
    a('s_add_u32 s71, s71, s55')
    a(f's_add_u32 s71, s71, {H0}')
    a(f's_lshl_b32 s55, {sLAYER}, 6')
    a('s_add_u32 s70, s53, s55')
    a('s_lshl_b32 s70, s70, 8')
    a('s_lshl_b32 s55, s68, 2')
    a('s_add_u32 s70, s70, s55')
    a(f's_add_u32 s70, s70, {F_H}')
    for eta in range(2):
        a(f's_lshl_b32 s53, {sLAYER}, 1')
        if eta: a(f's_add_u32 s53, s53, {eta}')
        a('s_lshl_b32 s53, s53, 3')
        a(f's_add_u32 s53, s53, {sC}')
        a('s_lshl_b32 s53, s53, 7')
        a(f's_lshl_b32 s54, {sT1}, 6')
        a('s_add_u32 s53, s53, s54')
        a(f's_lshl_b32 s54, {sW}, 4')
        a('s_add_u32 s53, s53, s54')
        a('s_lshl_b32 s53, s53, 2')
        a(f's_add_u32 s53, s53, {F_Y}')
        a('v_lshlrev_b32 v14, 2, v1')
        a('v_add_u32 v14, s53, v14')
        g.dstamp('g1', f'poll{eta} start')
        g.poll(14, 15, nlanes=16)
        g.dstamp('g1', f'poll{eta} done')
        if eta == 0: g.stamp('g1 yA seen', True)
        a(f's_lshl_b32 s53, {sC}, 8')
        a(f's_lshl_b32 s54, {sT1}, 7')
        a('s_add_u32 s53, s53, s54')
        a(f's_lshl_b32 s54, {sW}, 5')
        a('s_add_u32 s53, s53, s54')
        if eta: a(f's_add_u32 s53, s53, {4*eta}')
        a('s_lshl_b32 s53, s53, 10')
        a(f's_lshl_b32 s54, {sLAYER}, 21' if not g.fast else 's_mov_b32 s54, 0')
        a('s_add_u32 s53, s53, s54')
        a(f's_add_u32 s53, s53, {Y0}')
        a(f's_lshl_b32 s54, {sW}, 14')
        if eta: a(f's_add_u32 s54, s54, {L_YH[eta]}')
        for i in range(16):
            if i % 4 == 0:
                a(f's_add_u32 m0, s54, {i*1024}')
                if i: a('s_add_u32 s53, s53, 8192')
            a(f'v_xor_b32 v15, {16*i}, v{vL16}')
            off = f' offset:{(i%4)*1024}' if i % 4 else ''
            a(f'buffer_load_dwordx4 v15, {WS}, s53 offen{off} sc1 lds')
            vq.issue(f'dma{eta}')
    for i in range(4):
        a(f'v_lshlrev_b32 v{48+4*i}, 16, v{96+2*i}')
        a(f'v_and_b32 v{49+4*i}, 0xffff0000, v{96+2*i}')
        a(f'v_lshlrev_b32 v{50+4*i}, 16, v{97+2*i}')
        a(f'v_and_b32 v{51+4*i}, 0xffff0000, v{97+2*i}')
    g.dstamp('g1', 'dma issued')
    a('s_barrier')
    g.stamp('g1 yA in lds', True)
    g.dstamp('g1', 'yA in lds')
    tiles = [(0,0), (0,1), (1,0), (1,1)]
    fill = []
    pend_flags = []
    NB, PF = 8, 6
    for ti, (eta, tt) in enumerate(tiles):
        if ti == 2:
            vq.wait('dma1')
            a('s_barrier')
            for m in range(8): a(f'v_add_u32 v{4+m}, 0x10000, v{4+m}')
        acc = 16 + 16*(ti % 2)
        def Breg(k): return f'v[{64+4*(k%NB)}:{67+4*(k%NB)}]'
        def Bload(k): a(f'ds_read_b128 {Breg(k)}, v{4+(k&7)} offset:{tt*32768 + (k>>3)*256}')
        for k in range(PF): Bload(k)
        START = 3
        nf = len(fill)
        done = 0
        for k in range(32):
            if k + PF < 32: Bload(k + PF)
            a(f's_waitcnt lgkmcnt({min(PF, 31-k)})')
            cin = f'v[48:63]' if k == 0 else f'v[{acc}:{acc+15}]'
            a(f'v_mfma_f32_32x32x16_bf16 v[{acc}:{acc+15}], {W1reg(k)}, {Breg(k)}, {cin}')
            if k >= START and nf:
                END = 30
                target = min(nf, ((k - START + 1) * nf + (END - START)) // (END - START + 1))
                while done < target:
                    fill[done](); done += 1
            if k == g.o.get('g1flagslot', 28) and pend_flags and ti >= 2:
                (ptag, peta, ptt) = pend_flags.pop(0)
                vq.wait(ptag)
                a(f's_add_u32 s56, s70, {(2*peta+ptt)*256}')
                g.flag('s56')
        while done < nf:
            fill[done](); done += 1
        g.dstamp('g1', f'tile{ti} done')
        if ti > 0:
            pe, pt = tiles[ti-1]
            pend_flags.append((f'h{pe}{pt}', pe, pt))
        fill = gelu_fillers(g, acc, eta, tt)
    a.nop(12)
    half = len(fill)//2
    for f in fill[:half]: f()
    for (ptag, peta, ptt) in pend_flags:
        vq.wait(ptag)
        a(f's_add_u32 s56, s70, {(2*peta+ptt)*256}')
        g.flag('s56')
    for f in fill[half:]: f()
    g.dstamp('g1', 'tail gelu done')
    vq.wait('h11')
    a(f's_add_u32 s56, s70, {3*256}')
    g.flag('s56')
    a.label(Lskip)
    vq.reset()
    g.stamp('g1 done', True)

def emit_g2(g):
    a = g.a; vq = g.vq
    a('s_barrier')
    g.mk_srd(SA, sB2, 1024)
    a('v_and_b32 v12, 7, v0')
    a('v_lshlrev_b32 v15, 4, v12')
    a(f's_and_b32 s53, {sR}, 7')
    a('s_lshl_b32 s53, s53, 7')
    g.vload('v[8:11]', 'v15', srd(SA), 's53', 0, tag='b2')
    a(f's_cmp_eq_u32 {sLAYER}, 0')
    a(f's_cselect_b32 s{SD_}, s{sWSP}, s{sOUT}')
    a(f's_cselect_b32 s{SD_+1}, s{sWSP+1}, s{sOUT+1}')
    a(f's_mov_b32 s{SD_+2}, 2097152')
    a(f's_cselect_b32 s{SD_+2}, {WS_SIZE}, s{SD_+2}')
    a(f's_mov_b32 s{SD_+3}, 0x00020000')
    a(f's_cselect_b32 s69, {X2}, 0')
    a(f's_and_b32 s{SD_+1}, s{SD_+1}, 0xffff')
    a('v_and_b32 v14, 31, v1')
    a('v_lshrrev_b32 v15, 5, v1')
    a('v_and_b32 v13, 7, v1')
    a(f's_lshl_b32 s53, {sW}, 13')
    for i in range(4):
        a(f'v_add_u32 v{4+i}, {2*i}, v15')
        a(f'v_xor_b32 v{4+i}, v{4+i}, v13')
        a(f'v_lshlrev_b32 v{4+i}, 4, v{4+i}')
        a(f'v_lshl_add_u32 v{4+i}, v14, 8, v{4+i}')
        a(f'v_add_u32 v{4+i}, s53, v{4+i}')
    a('v_lshrrev_b32 v14, 3, v0')
    a('v_and_b32 v13, 7, v14')
    a('v_and_b32 v15, 3, v12')
    a('v_lshlrev_b32 v15, 1, v15')
    a('v_xor_b32 v16, v15, v13')
    a('v_or_b32 v15, 1, v15')
    a('v_xor_b32 v17, v15, v13')
    a('v_lshrrev_b32 v15, 2, v12')
    a('v_lshlrev_b32 v15, 7, v15')
    a('v_lshl_add_u32 v15, v14, 8, v15')
    a('v_lshl_add_u32 v16, v16, 4, v15')
    a('v_lshl_add_u32 v17, v17, 4, v15')
    a(f's_lshr_b32 s53, {sR}, 3')
    a('s_lshl_b32 s53, s53, 5')
    a('v_add_u32 v15, s53, v14')
    a('v_lshrrev_b32 v18, 2, v15')
    a('v_lshlrev_b32 v18, 3, v18')
    a('v_and_b32 v15, 3, v15')
    a('v_add_u32 v18, v18, v15')
    a(f's_lshl_b32 s53, {sC}, 8')
    a('v_add_u32 v18, s53, v18')
    a('v_lshlrev_b32 v18, 10, v18')
    a(f's_and_b32 s53, {sR}, 7')
    a('s_lshl_b32 s53, s53, 7')
    a('v_lshl_add_u32 v18, v12, 4, v18')
    a('v_add_u32 v18, s53, v18')
    a(f's_lshr_b32 s70, {sR}, 4')
    a(f's_lshl_b32 s53, {sC}, 1')
    a('s_add_u32 s53, s53, s70')
    a('s_lshl_b32 s53, s53, 2')
    a(f's_lshr_b32 s54, {sR}, 3')
    a('s_and_b32 s54, s54, 1')
    a('s_add_u32 s70, s53, s54')
    a('s_mul_i32 s71, s70, 112')
    a(f's_mul_i32 s54, {sW}, 28')
    a('s_add_u32 s71, s71, s54')
    a('s_lshl_b32 s71, s71, 10')
    a(f's_lshl_b32 s54, {sLAYER}, 23' if not g.fast else 's_mov_b32 s54, 0')
    a('s_add_u32 s71, s71, s54')
    a(f's_add_u32 s71, s71, {H0}')
    a(f's_lshl_b32 s53, {sLAYER}, 6')
    a('s_add_u32 s70, s70, s53')
    a('s_lshl_b32 s70, s70, 8')
    a(f's_mul_i32 s54, {sW}, 56')
    a('s_add_u32 s70, s70, s54')
    a(f's_add_u32 s70, s70, {F_H}')
    a(f's_lshl_b32 s68, {sC}, 3')
    a(f's_lshr_b32 s54, {sR}, 3')
    a('s_add_u32 s68, s68, s54')
    a('s_lshl_b32 s68, s68, 2')
    a(f's_add_u32 s68, s68, {sW}')
    a('s_lshl_b32 s68, s68, 3')
    a(f's_and_b32 s54, {sR}, 7')
    a('s_add_u32 s68, s68, s54')
    a('s_lshl_b32 s68, s68, 2')
    a(f's_add_u32 s68, s68, {F_X}')
    NW = 16
    def Hreg(i): return f'v[{64+4*(i%NW)}:{67+4*(i%NW)}]'
    def Hload(eta, i):
        a(f's_add_u32 s54, s71, {eta*2*112*1024 + (i//4)*4096}')
        g.vload(Hreg(i), f'v{vL16}', WS, 's54', (i%4)*1024, ' sc1', tag=f'hf{eta}_{i}')
    def start_half(eta):
        a('v_lshlrev_b32 v14, 2, v1')
        a(f's_add_u32 s53, s70, {eta*2*256}')
        a('v_add_u32 v14, s53, v14')
        g.poll(14, 15, nlanes=14)
        a(f's_lshl_b32 s53, {sLAYER}, 22' if not g.fast else 's_mov_b32 s53, 0')
        a(f's_add_u32 s53, s53, {X1 + eta*4096}')
        g.vload(f'v[{28+eta*32}:{31+eta*32}]', 'v18', WS, 's53', 0, ' sc1', tag=f'res{eta}')
        for i in range(NW): Hload(eta, i)
    def mfmas(eta, hook=None):
        for i in range(28):
            vq.wait(f'hf{eta}_{i}')
            for nt in range(2):
                acc = f'a[{224+16*nt}:{239+16*nt}]'
                cin = '0' if i == 0 else acc
                a(f'v_mfma_f32_32x32x16_bf16 {acc}, {W2reg(nt,i)}, {Hreg(i)}, {cin}')
            if i + NW < 28: Hload(eta, i + NW)
            if hook: hook(i)
    def reduce_write(eta):
        a.nop(12)
        LR = eta*32768
        for nt in range(2):
            for i in range(4):
                b = 224 + 16*nt + 4*i
                a(f'ds_write_b128 v{4+i}, a[{b}:{b+3}] offset:{LR + nt*128}')
        a('s_waitcnt lgkmcnt(0)')
        a('s_barrier')
    def reduce_finish(eta):
        LR = eta*32768
        for p in range(4):
            a(f'ds_read_b128 v[{32+8*p}:{35+8*p}], v16 offset:{LR + p*8192}') if False else None
        P = [32, 40, 48, 120]
        return
    vq.wait('b2')
    g.unpack8(8, 20)
    def finish_half(eta):
        LR = eta*32768
        res = 28 + eta*32
        for p in range(3):
            a(f'ds_read_b128 v[{32+8*p}:{35+8*p}], v16 offset:{LR + p*8192}')
            a(f'ds_read_b128 v[{36+8*p}:{39+8*p}], v17 offset:{LR + p*8192}')
        a(f'ds_read_b128 v[8:11], v16 offset:{LR + 3*8192}')
        a(f'ds_read_b128 v[56:59], v17 offset:{LR + 3*8192}')
        a('s_waitcnt lgkmcnt(2)')
        def pr(b): return f'v[{b}:{b+1}]'
        for e in range(4): a(f'v_pk_add_f32 {pr(32+2*e)}, {pr(32+2*e)}, {pr(40+2*e)}')
        for e in range(4): a(f'v_pk_add_f32 {pr(48+2*e)}, {pr(48+2*e)}, {pr(20+2*e)}')
        a('s_waitcnt lgkmcnt(0)')
        a(f'v_pk_add_f32 {pr(32)}, {pr(32)}, {pr(8)}'); a(f'v_pk_add_f32 {pr(34)}, {pr(34)}, {pr(10)}')
        a(f'v_pk_add_f32 {pr(36)}, {pr(36)}, {pr(56)}'); a(f'v_pk_add_f32 {pr(38)}, {pr(38)}, {pr(58)}')
        for e in range(4): a(f'v_pk_add_f32 {pr(32+2*e)}, {pr(32+2*e)}, {pr(48+2*e)}')
        g.pack8(32, 40); g.unpack8(40, 32)
        vq.wait(f'res{eta}')
        g.unpack8(res, 48)
        for e in range(4): a(f'v_pk_add_f32 {pr(32+2*e)}, {pr(32+2*e)}, {pr(48+2*e)}')
        g.pack8(32, 40)
        a(f's_add_u32 s53, s69, {eta*4096}')
        g.vstore('v[40:43]', 'v18', srd(SD_), 's53', 0, g.sc, tag=f'xo{eta}')
    def xflag(eta):
        vq.wait(f'xo{eta}')
        a(f's_add_u32 s53, s68, {eta*512}')
        g.flag('s53')
    g.dstamp('g2', 'g2 begin')
    start_half(0)
    g.stamp('g2 hA seen', True)
    g.dstamp('g2', 'A issued')
    def hookA(i):
        if i == 0: g.dstamp('g2', 'A first frag')
        if i == 15: g.dstamp('g2', 'A 16 frags')
    mfmas(0, hookA)
    g.dstamp('g2', 'A mfma done')
    reduce_write(0)
    g.dstamp('g2', 'A red written')
    start_half(1)
    g.dstamp('g2', 'B issued')
    finish_half(0)
    g.dstamp('g2', 'A finished')
    def hook(i):
        if i == 10: xflag(0)
        if i == 0: g.dstamp('g2', 'B first frag')
    mfmas(1, hook)
    g.dstamp('g2', 'B mfma done')
    reduce_write(1)
    finish_half(1)
    g.dstamp('g2', 'B finished')
    xflag(1)
    g.stamp('g2 done', True)

def emit_mlp_variant(g, sc, sfx):
    a = g.a
    g.sc = sc
    emit_r1b(g)
    if g.stop == 'r1': a('s_branch L_fin'); return
    a(f's_mov_b32 {sLAYER}, 0')
    a.label('L_layer' + sfx)
    emit_g1(g)
    if g.stop == 'g1': a('s_branch L_fin'); return
    emit_g2(g)
    if g.stop == 'g2': a('s_branch L_fin'); return
    a(f's_cmp_eq_u32 {sLAYER}, 1')
    a('s_cbranch_scc1 L_fin')
    emit_r2(g)
    if g.stop == 'r2': a('s_branch L_fin'); return
    a(f's_mov_b32 {sLAYER}, 1')
    a('s_branch L_layer' + sfx)

def emit_mlp(g):
    a = g.a
    emit_r1a(g)
    import copy
    ops0 = list(g.vq.ops); wl0 = list(g.wlist)
    a(f's_cmp_eq_u32 {sFAST}, 0')
    a('s_cbranch_scc1 L_slow')
    n0, names0 = g.nstamp, list(g.stamp_names)
    emit_mlp_variant(g, '', '_f')
    a.label('L_slow')
    g.vq.ops = ops0; g.wlist = wl0
    st = g.stamps; g.stamps = False
    emit_mlp_variant(g, ' sc1', '_s')
    g.stamps = st
```

```python
import sys, argparse, struct
from asmlib import Asm, check_hazards, check_waits

NAME = 'interleave_layers__ssm_conv_h3__mixer_channel_mlp__prompt_kernel'

WS_EPOCH = 0x0
F_PREP = 0x1000
F_CONV = 0x2000
F_W = 0x3000
F_XC = 0x3800
DUMMY2 = 0x2D00000
F_Y    = 0x4000
F_H    = 0x8000
F_X    = 0x10000
XR     = 0x100000
W1F    = 0x300000
W2F    = 0x500000
GB     = 0x700000
Y0     = 0x900000
X1     = 0xD00000
X2     = 0xF00000
H0     = 0x1400000
TS     = 0x2400000
WS_SIZE = 0x10000000

L_KVT = 0
L_W1R = 8192
L_W2R = 16384
L_GT  = 0
L_XB = 25600
XBS = 79*96
L_TOEP = 40960
CS = 4160
LDS_SIZE = 163840
L_G = 155648
L_YH = [0, 65536]

sQ, sK, sV, sSK, sSSM, sD, sBX, sW1 = 16, 18, 20, 22, 24, 26, 28, 30
sB1, sW2, sB2, sOUT, sDBG, sWSP = 32, 34, 36, 38, 40, 42
WS = 's[44:47]'
sC, sR, sW, sTAG, sABORT = 's48', 's49', 's50', 's51', 's52'
sLAYER, sT1, sJ = 's64', 's65', 's66'
sXCC, sFAST = 's101', 's3'
SA, SB, SC_, SD_ = 4, 8, 12, 72
def srd(n): return f's[{n}:{n+3}]'
W1B = 128
vL16, vTAG = 2, 3
def W1reg(k): return f'v[{W1B+4*k}:{W1B+4*k+3}]'
def W2reg(nt, i):
    b = (nt*28 + i)*4
    return f'a[{b}:{b+3}]'
def f2u(x): return '0x%08x' % struct.unpack('<I', struct.pack('<f', x))[0]
C1 = 2*0.7978845608028654*1.4426950408889634
C2 = C1*0.044715

class VQ:
    def __init__(self, a): self.a = a; self.ops = []
    def issue(self, tag): self.ops.append(tag)
    def wait(self, tag):
        idx = max(i for i, t in enumerate(self.ops) if t == tag) if tag in self.ops else None
        if idx is None: return
        n = len(self.ops) - 1 - idx
        assert n <= 63, n
        self.a(f's_waitcnt vmcnt({n})')
        self.ops = self.ops[idx+1:]
    def drain(self):
        self.a('s_waitcnt vmcnt(0)'); self.ops = []
    def reset(self): self.ops = []

class Gen:
    def __init__(self, stop='end', stamps=False, opts=None):
        self.a = Asm(); self.vq = VQ(self.a)
        self.stop = stop; self.stamps = stamps
        self.nstamp = 0; self.stamp_names = []
        self.sc = ' sc1'; self.fsc = ' sc1'; self.fast = False; self.vinv = 4
        self.o = opts or {}

    def capture(self, fn):
        saved = self.a.lines
        self.a.lines = []
        fn()
        got = self.a.lines
        self.a.lines = saved
        return got

    def mk_srd(self, n, ptr, size, add=None):
        a = self.a
        if add is None:
            a(f's_mov_b32 s{n}, s{ptr}')
            a(f's_and_b32 s{n+1}, s{ptr+1}, 0xffff')
        else:
            a(f's_add_u32 s{n}, s{ptr}, {add}')
            a(f's_addc_u32 s{n+1}, s{ptr+1}, 0')
            a(f's_and_b32 s{n+1}, s{n+1}, 0xffff')
        a(f's_mov_b32 s{n+2}, {size}')
        a(f's_mov_b32 s{n+3}, 0x00020000')

    def dstamp(self, phase, name):
        if self.o.get('detail') == phase and getattr(self, 'cur_layer', 0) == self.o.get('dlayer', 1): self.stamp(name, False, force=True)
    def stamp(self, name='', inloop=False, force=False):
        if not self.stamps: return
        if self.o.get('detail') and not force and name not in ('start', 'end'): return
        inloop = False
        i = self.nstamp; self.nstamp += 1
        assert self.nstamp <= 24, name
        self.stamp_names.append(name)
        a = self.a
        a(f's_waitcnt lgkmcnt(0)')
        a(f's_memtime s[62:63]' if self.o.get('cyc') else f's_memrealtime s[62:63]')
        a(f's_waitcnt lgkmcnt(0)')
        if inloop:
            a('s_cmp_eq_u32 s64, 0')
            a(f's_cselect_b32 s{76+i}, s62, s{76+i}')
            a(f's_cselect_b32 s{77+i}, s{77+i}, s62')
        else:
            a(f's_mov_b32 s{76+i}, s62')

    def vload(self, dst, voff, sr, soff, imm=0, mods='', tag='ld', w='x4'):
        o = f' offset:{imm}' if imm else ''
        op = {'x4': 'buffer_load_dwordx4', 'x2': 'buffer_load_dwordx2', 'x1': 'buffer_load_dword'}[w]
        self.a(f'{op} {dst}, {voff}, {sr}, {soff} offen{o}{mods}')
        self.vq.issue(tag)
    def vstore(self, src, voff, sr, soff, imm=0, mods='', tag='st'):
        o = f' offset:{imm}' if imm else ''
        self.a(f'buffer_store_dwordx4 {src}, {voff}, {sr}, {soff} offen{o}{mods}')
        self.vq.issue(tag)

    def poll(self, vaddr, vtmp, nlanes=64, x4=False):
        a = self.a
        L = a.newlabel('poll'); D = a.newlabel('polld')
        a(f's_mov_b32 s53, 0')
        if nlanes < 64:
            a(f's_mov_b64 s[56:57], exec')
            a(f's_mov_b64 exec, {hex((1 << nlanes) - 1)}')
        a.label(L)
        if x4:
            a(f'buffer_load_dwordx4 v[{vtmp}:{vtmp+3}], v{vaddr}, {WS}, 0 offen sc1')
            a(f's_waitcnt vmcnt(0)')
            a(f'v_xor_b32 v{vtmp}, {sTAG}, v{vtmp}')
            a(f'v_xor_b32 v{vtmp+1}, {sTAG}, v{vtmp+1}')
            a(f'v_xor_b32 v{vtmp+2}, {sTAG}, v{vtmp+2}')
            a(f'v_xor_b32 v{vtmp+3}, {sTAG}, v{vtmp+3}')
            a(f'v_or_b32 v{vtmp}, v{vtmp}, v{vtmp+1}')
            a(f'v_or3_b32 v{vtmp}, v{vtmp}, v{vtmp+2}, v{vtmp+3}')
            a(f'v_cmp_ne_u32 vcc, 0, v{vtmp}')
        else:
            a(f'buffer_load_dword v{vtmp}, v{vaddr}, {WS}, 0 offen sc1')
            a(f's_waitcnt vmcnt(0)')
            a(f'v_cmp_ne_u32 vcc, {sTAG}, v{vtmp}')
        a(f's_cbranch_vccz {D}')
        a(f's_add_u32 s53, s53, 1')
        a(f's_cmp_lg_u32 {sABORT}, 0')
        a(f's_cbranch_scc1 {D}')
        a(f's_cmp_lt_u32 s53, 0x8000')
        a(f's_cbranch_scc1 {L}')
        a(f's_mov_b32 {sABORT}, 1')
        a.label(D)
        if nlanes < 64:
            a(f's_mov_b64 exec, s[56:57]')
        self.vq.reset()

    def poll_prep(self, vaddr, vt):
        a = self.a
        L = a.newlabel('poll'); D = a.newlabel('polld')
        a(f's_mov_b32 s53, 0')
        a.label(L)
        a(f'buffer_load_dwordx4 v[{vt}:{vt+3}], v{vaddr}, {WS}, 0 offen sc1')
        a(f's_waitcnt vmcnt(0)')
        for i in range(4): a(f'v_subrev_u32 v{vt+i}, {sTAG}, v{vt+i}')
        a(f'v_or_b32 v{vt+4}, v{vt}, v{vt+1}')
        a(f'v_or3_b32 v{vt+4}, v{vt+4}, v{vt+2}, v{vt+3}')
        a(f'v_cmp_lt_u32 vcc, 15, v{vt+4}')
        a(f's_cbranch_vccz {D}')
        a(f's_add_u32 s53, s53, 1')
        a(f's_cmp_lg_u32 {sABORT}, 0')
        a(f's_cbranch_scc1 {D}')
        a(f's_cmp_lt_u32 s53, 0x8000')
        a(f's_cbranch_scc1 {L}')
        a(f's_mov_b32 {sABORT}, 1')
        a.label(D)
        self.vq.reset()

    def dyn_role(self, vt):
        a = self.a
        lo, hi, t, u = vt+5, vt+6, vt+7, vt+8
        a(f'v_mov_b32 v{lo}, 0'); a(f'v_mov_b32 v{hi}, 0')
        for i in range(4):
            a(f'v_and_b32 v{t}, 3, v{vt+i}')
            a(f'v_lshlrev_b32 v{t}, 3, v{t}')
            a(f'v_lshlrev_b32 v{t}, v{t}, 1') if False else a(f'v_lshlrev_b32 v{t}, v{t}, v{vt+9}')
            a(f'v_lshrrev_b32 v{u}, 2, v{vt+i}')
            a(f'v_cmp_eq_u32 vcc, 0, v{u}')
            a.nop(2)
            a(f'v_cndmask_b32 v{vt+10}, 0, v{t}, vcc')
            a(f'v_cmp_eq_u32 vcc, 1, v{u}')
            a(f'v_add_u32 v{lo}, v{lo}, v{vt+10}')
            a.nop(1)
            a(f'v_cndmask_b32 v{vt+10}, 0, v{t}, vcc')
            a(f'v_add_u32 v{hi}, v{hi}, v{vt+10}')
        steps = ['quad_perm:[1,0,3,2] row_mask:0xf bank_mask:0xf', 'quad_perm:[2,3,0,1] row_mask:0xf bank_mask:0xf',
                 'row_half_mirror row_mask:0xf bank_mask:0xf', 'row_mirror row_mask:0xf bank_mask:0xf',
                 'row_bcast:15 row_mask:0xa bank_mask:0xf', 'row_bcast:31 row_mask:0xc bank_mask:0xf']
        a.nop(2)
        for st in steps:
            a(f'v_add_u32_dpp v{lo}, v{lo}, v{lo} {st}')
            a(f'v_add_u32_dpp v{hi}, v{hi}, v{hi} {st}')
            a.nop(1)
        a(f'v_readlane_b32 s56, v{lo}, 63')
        a(f'v_readlane_b32 s57, v{hi}, 63')
        a(f'v_lshlrev_b32 v{t}, 2, v1')
        a('s_mov_b32 s58, 0')
        for i in range(4):
            a(f'v_cmp_eq_u32 vcc, {sXCC}, v{vt+i}')
            a(f'v_add_u32 v{u}, {i}, v{t}')
            a(f'v_cmp_gt_u32 s[54:55], s2, v{u}')
            a.nop(1)
            a('s_and_b64 s[54:55], s[54:55], vcc')
            a('s_bcnt1_i32_b64 s55, s[54:55]')
            a('s_add_u32 s58, s58, s55')
        a('s_cmp_eq_u32 s56, 0x20202020')
        a(f's_cselect_b32 {sFAST}, 1, 0')
        a('s_cmp_eq_u32 s57, 0x20202020')
        a(f's_cselect_b32 {sFAST}, {sFAST}, 0')
        a(f's_cmp_eq_u32 {sABORT}, 0')
        a(f's_cselect_b32 {sFAST}, {sFAST}, 0')
        if self.o.get('force_slow'): a(f's_mov_b32 {sFAST}, 0')
        a(f's_cmp_eq_u32 {sFAST}, 1')
        a(f's_cselect_b32 {sC}, {sXCC}, {sC}')
        a(f's_cselect_b32 {sR}, s58, {sR}')

    def check_xc(self, vt, vaddr):
        a = self.a
        self.vq.wait('fw')
        L = a.newlabel('fw'); D = a.newlabel('fwd')
        a('s_mov_b32 s53, 0')
        a.label(L)
        for i in range(4): a(f'v_subrev_u32 v{vt+i}, {sTAG}, v{vt+i}')
        a(f'v_or_b32 v{vt+5}, v{vt}, v{vt+1}')
        a(f'v_or3_b32 v{vt+5}, v{vt+5}, v{vt+2}, v{vt+3}')
        a(f'v_cmp_lt_u32 vcc, 15, v{vt+5}')
        a(f's_cbranch_vccz {D}')
        a('s_add_u32 s53, s53, 1')
        a(f's_cmp_lg_u32 {sABORT}, 0')
        a(f's_cbranch_scc1 {D}')
        a('s_cmp_lt_u32 s53, 0x8000')
        a(f's_cbranch_scc0 {D}_ab')
        a(f'buffer_load_dwordx4 v[{vt}:{vt+3}], v{vaddr}, {WS}, 0 offen sc1')
        a('s_waitcnt vmcnt(0)')
        a(f's_branch {L}')
        a.label(D + '_ab')
        a(f's_mov_b32 {sABORT}, 1')
        a.label(D)
        a(f'v_mov_b32 v{vt+9}, 1')
        self.dyn_role(vt)
        self.weight_state_init()

    def check_fw(self, vt, vaddr):
        a = self.a
        self.vq.wait('fw2')
        L = a.newlabel('fw'); D = a.newlabel('fwd')
        a('s_mov_b32 s53, 0')
        a.label(L)
        for i in range(4): a(f'v_xor_b32 v{vt+i}, {sTAG}, v{vt+i}')
        a(f'v_or_b32 v{vt}, v{vt}, v{vt+1}')
        a(f'v_or3_b32 v{vt}, v{vt}, v{vt+2}, v{vt+3}')
        a(f'v_cmp_ne_u32 vcc, 0, v{vt}')
        a(f's_cbranch_vccz {D}')
        a('s_add_u32 s53, s53, 1')
        a(f's_cmp_lg_u32 {sABORT}, 0')
        a(f's_cbranch_scc1 {D}')
        a('s_cmp_lt_u32 s53, 0x8000')
        a(f's_cbranch_scc0 {D}_ab')
        a(f'buffer_load_dwordx4 v[{vt}:{vt+3}], v{vaddr}, {WS}, 0 offen sc1')
        a('s_waitcnt vmcnt(0)')
        a(f's_branch {L}')
        a.label(D + '_ab')
        a(f's_mov_b32 {sABORT}, 1')
        a.label(D)

    def flag(self, soff, sc=None):
        sc = self.fsc if sc is None else sc
        self.a(f'buffer_store_dword v{vTAG}, off, {WS}, {soff}{sc}')
        self.vq.issue('flag')

    def reduce_multi(self, regs, sdst):
        a = self.a
        steps = ['quad_perm:[1,0,3,2] row_mask:0xf bank_mask:0xf', 'quad_perm:[2,3,0,1] row_mask:0xf bank_mask:0xf',
                 'row_half_mirror row_mask:0xf bank_mask:0xf', 'row_mirror row_mask:0xf bank_mask:0xf',
                 'row_bcast:15 row_mask:0xa bank_mask:0xf', 'row_bcast:31 row_mask:0xc bank_mask:0xf']
        pad = max(0, 3 - len(regs))
        a.nop(max(0, 2 - (len(regs) - 1)) if len(regs) < 3 else 0)
        for s in steps:
            for r in regs:
                a(f'v_add_f32_dpp v{r}, v{r}, v{r} {s}')
            if pad: a.nop(pad)
        if len(regs) < 2: a.nop(1)
        for r, s in zip(regs, sdst):
            a(f'v_readlane_b32 s{s}, v{r}, 63')
        a.nop(2)

    def ln_multi(self, rows, double=False):
        a = self.a
        def pr(b): return f'v[{b}:{b+1}]'
        for (x, z, t) in rows:
            a(f'v_pk_add_f32 {pr(t)}, {pr(x)}, {pr(x+2)}')
            a(f'v_pk_mul_f32 {pr(t+2)}, {pr(x)}, {pr(x)}')
        for (x, z, t) in rows:
            a(f'v_pk_add_f32 {pr(t+4)}, {pr(x+4)}, {pr(x+6)}')
            a(f'v_pk_fma_f32 {pr(t+2)}, {pr(x+2)}, {pr(x+2)}, {pr(t+2)}')
        for (x, z, t) in rows:
            a(f'v_pk_add_f32 {pr(t)}, {pr(t)}, {pr(t+4)}')
            a(f'v_pk_fma_f32 {pr(t+2)}, {pr(x+4)}, {pr(x+4)}, {pr(t+2)}')
        for (x, z, t) in rows:
            a(f'v_add_f32 v{t}, v{t}, v{t+1}')
            a(f'v_pk_fma_f32 {pr(t+2)}, {pr(x+6)}, {pr(x+6)}, {pr(t+2)}')
        for (x, z, t) in rows:
            a(f'v_add_f32 v{t+2}, v{t+2}, v{t+3}')
        regs = []; sd = []
        for i, (x, z, t) in enumerate(rows):
            regs += [t, t+2]; sd += [58 - 2*i, 59 - 2*i]
        self.reduce_multi(regs, sd)
        for i, (x, z, t) in enumerate(rows):
            s1, s2 = sd[2*i], sd[2*i+1]
            a(f'v_mul_f32 v{t+4}, s{s1}, v{self.vinv}')
            a(f'v_mul_f32 v{t+2}, s{s2}, v{self.vinv}')
        for (x, z, t) in rows:
            a(f'v_fma_f32 v{t+2}, -v{t+4}, v{t+4}, v{t+2}')
        for (x, z, t) in rows:
            a(f'v_max_f32 v{t+2}, 0, v{t+2}')
        if double:
            for (x, z, t) in rows: a(f'v_add_f32 v{t}, 0x3727c5ac, v{t+2}')
            for (x, z, t) in rows: a(f'v_rsq_f32 v{t}, v{t}')
            if len(rows) < 2: a.nop(1)
            for (x, z, t) in rows: a(f'v_mul_f32 v{t+2}, v{t+2}, v{t}')
            for (x, z, t) in rows: a(f'v_fmaak_f32 v{t+2}, v{t+2}, v{t}, 0x3727c5ac')
            for (x, z, t) in rows: a(f'v_rsq_f32 v{t+2}, v{t+2}')
            if len(rows) < 2: a.nop(1)
            for (x, z, t) in rows: a(f'v_mul_f32 v{t+2}, v{t+2}, v{t}')
        else:
            for (x, z, t) in rows:
                a(f'v_add_f32 v{t+2}, 0x3727c5ac, v{t+2}')
            for (x, z, t) in rows:
                a(f'v_rsq_f32 v{t+2}, v{t+2}')
            if len(rows) < 2: a.nop(1)
        for (x, z, t) in rows:
            a(f'v_mul_f32 v{t+4}, v{t+4}, v{t+2}')
        for (x, z, t) in rows:
            for i in range(4):
                a(f'v_pk_fma_f32 {pr(z+2*i)}, {pr(x+2*i)}, {pr(t+2)}, {pr(t+4)} op_sel_hi:[1,0,0] neg_lo:[0,0,1] neg_hi:[0,0,1]')

    def unpack8(self, src, dst):
        a = self.a
        for i in range(4):
            a(f'v_lshlrev_b32 v{dst+2*i}, 16, v{src+i}')
            a(f'v_and_b32 v{dst+2*i+1}, 0xffff0000, v{src+i}')
    def pack8(self, src, dst):
        a = self.a
        for i in range(4):
            a(f'v_cvt_pk_bf16_f32 v{dst+i}, v{src+2*i}, v{src+2*i+1}')

    def prologue(self):
        a = self.a
        a('s_cmp_ge_u32 s2, 256')
        a('s_cbranch_scc1 L_end')
        a('s_load_dwordx16 s[16:31], s[0:1], 0')
        a('s_load_dwordx8 s[32:39], s[0:1], 64')
        a('s_load_dwordx4 s[40:43], s[0:1], 96')
        a('s_getpc_b64 s[68:69]')
        a(f's_and_b32 {sC}, s2, 7')
        a(f's_lshr_b32 {sR}, s2, 3')
        a(f's_mov_b32 {sABORT}, 0')
        a(f's_getreg_b32 {sXCC}, hwreg(HW_REG_XCC_ID)')
        a(f's_min_u32 {sXCC}, {sXCC}, 8')
        a('v_lshrrev_b32 v4, 6, v0')
        a('v_and_b32 v1, 63, v0')
        a(f'v_readfirstlane_b32 {sW}, v4')
        a(f'v_lshlrev_b32 v{vL16}, 4, v1')
        if self.o.get('prefetch', True) and self.o.get('pfearly', 1) and self.stop != 'x': self.code_prefetch()
        a('s_waitcnt lgkmcnt(0)')
        self.mk_srd(44, sWSP, WS_SIZE)
        self.stamp('start')
        if self.stamps:
            a('s_memtime s[62:63]'); a('s_waitcnt lgkmcnt(0)'); a('s_mov_b32 s100, s62')
        a(f'buffer_load_dword v{vTAG}, off, {WS}, 0 sc1')
        self.vq.issue('epoch')

    def code_prefetch(self):
        a = self.a
        a('s_and_b32 s68, s68, 0xffffff00')
        a('s_and_b32 s69, s69, 0xffff')
        a(f's_mov_b32 s{SD_}, s68'); a(f's_mov_b32 s{SD_+1}, s69')
        a(f's_mov_b32 s{SD_+2}, CODE_BYTES')
        a(f's_mov_b32 s{SD_+3}, 0x00020000')
        a('v_lshlrev_b32 v87, 7, v0')
        a(f'buffer_load_dword v254, v87, {srd(SD_)}, 0 offen'); self.vq.issue('pf')
        a('v_add_u32 v87, 0x8000, v87')
        a(f'buffer_load_dword v254, v87, {srd(SD_)}, 0 offen'); self.vq.issue('pf')

    def pretouch(self):
        a = self.a
        a(f's_min_u32 s58, {sXCC}, 7')
        a('s_lshl_b32 s53, s58, 18')
        a(f's_lshl_b32 s54, {sR}, 13')
        a('s_add_u32 s53, s53, s54')
        a('v_lshlrev_b32 v88, 7, v1')
        Ls = a.newlabel('pt')
        a(f's_cmp_lg_u32 {sW}, 3')
        a(f's_cbranch_scc1 {Ls}'); a.comment('COND_BEGIN')
        self.mk_srd(SD_, sQ, 2097152)
        a(f'buffer_load_dword v255, v88, {srd(SD_)}, s53 offen')
        self.mk_srd(SD_, sB1, 3584)
        a(f'buffer_load_dword v255, v88, {srd(SD_)}, 0 offen')
        self.mk_srd(SD_, sB2, 1024)
        a(f'buffer_load_dword v255, v88, {srd(SD_)}, 0 offen')
        self.mk_srd(SD_, sOUT, 2097152)
        a(f'buffer_load_dword v255, off, {srd(SD_)}, s53')
        a('v_lshlrev_b32 v87, 21, v1')
        a('v_min_u32 v87, 0x1c00000, v87')
        a(f'buffer_load_dword v255, v87, {WS}, 0 offen')
        a.label(Ls); a.comment('COND_END')
        if self.o.get('ytouch', 0):
            Ls = a.newlabel('pt2')
            a(f's_cmp_lg_u32 {sW}, 2')
            a(f's_cbranch_scc1 {Ls}'); a.comment('COND_BEGIN')
            a(f's_add_u32 s53, s53, {Y0}')
            a(f'buffer_load_dword v255, v88, {WS}, s53 offen')
            a.label(Ls); a.comment('COND_END')
            Ls = a.newlabel('pt3')
            a(f's_cmp_lg_u32 {sW}, 1')
            a(f's_cbranch_scc1 {Ls}'); a.comment('COND_BEGIN')
            a(f's_lshr_b32 s53, {sR}, 3')
            a('s_lshl_b32 s53, s53, 5')
            a('v_and_b32 v87, 31, v1')
            a('v_add_u32 v87, s53, v87')
            a('v_lshrrev_b32 v88, 2, v87')
            a('v_lshlrev_b32 v88, 3, v88')
            a('v_and_b32 v87, 3, v87')
            a('v_add_u32 v87, v87, v88')
            a('v_lshrrev_b32 v88, 5, v1')
            a('v_lshl_add_u32 v87, v88, 2, v87')
            a('s_lshl_b32 s53, s58, 8')
            a('v_add_u32 v87, s53, v87')
            a('v_lshlrev_b32 v87, 10, v87')
            a(f's_and_b32 s53, {sR}, 7')
            a('s_lshl_b32 s53, s53, 7')
            a(f's_add_u32 s53, s53, {X2}')
            a(f'buffer_load_dword v255, v87, {WS}, s53 offen')
            a.label(Ls); a.comment('COND_END')

    def conv_epi_pre(self):
        a = self.a
        a('v_sub_u32 v140, 15, v4')
        a('v_mul_u32_u24 v140, 96, v140')
        a('v_lshlrev_b32 v141, 3, v5')
        a('v_sub_u32 v140, v140, v141')
        a(f's_mul_i32 s55, s67, {XBS}')
        a(f's_add_u32 s55, s55, {L_XB + 56}')
        a('s_lshl_b32 s56, s59, 5')
        a('s_sub_u32 s55, s55, s56')
        a('v_add_u32 v140, s55, v140')
        for c in range(4):
            a(f'ds_read_b64 v[{160+2*c}:{161+2*c}], v140 offset:{(48-16*c)*96}')
        a('v_lshrrev_b32 v141, 1, v5')
        a('v_lshlrev_b32 v141, 1, v141')
        a('s_lshl_b32 s56, s59, 2')
        a('s_add_u32 s56, s56, s67')
        a('v_add_u32 v141, s56, v141')
        a('v_and_b32 v142, 7, v4')
        a('v_xor_b32 v141, v141, v142')
        a('v_lshlrev_b32 v141, 4, v141')
        a('v_lshl_add_u32 v141, v4, 7, v141')
        a('v_and_b32 v142, 1, v5')
        a('v_lshl_add_u32 v141, v142, 3, v141')
        a('v_lshrrev_b32 v140, 3, v0')
        a('v_and_b32 v143, 7, v0')
        a('v_and_b32 v142, 7, v140')
        a('v_xor_b32 v142, v142, v143')
        a('v_lshlrev_b32 v142, 4, v142')
        a('v_lshl_add_u32 v142, v140, 7, v142')
        a('v_lshlrev_b32 v140, 15, v140')
        a('v_lshl_add_u32 v143, v143, 4, v140')
        a('s_lshl_b32 s55, s60, 16')
        a('s_and_b32 s56, s60, 0xffff0000')
        a('s_cmp_eq_u32 s67, 0')
        a('s_cselect_b32 s60, s55, s56')
        for _ in range(24): a.comment('SPACER')
        for c in range(4):
            d0, d1 = 160+2*c, 161+2*c
            t = 144 + 4*c
            a(f'v_and_b32 v{t}, 0xffff0000, v{d1}')
            a(f'v_lshlrev_b32 v{t+1}, 16, v{d1}')
            a(f'v_and_b32 v{t+2}, 0xffff0000, v{d0}')
            a(f'v_lshlrev_b32 v{t+3}, 16, v{d0}')
            for r in range(4): a(f'v_mul_f32 v{t+r}, s60, v{t+r}')

    def pretouch_late(self):
        a = self.a
        a(f's_lshl_b32 s53, {sC}, 18')
        a(f's_lshl_b32 s54, {sR}, 13')
        a('s_add_u32 s53, s53, s54')
        a('v_lshlrev_b32 v8, 7, v1')
        Ls = a.newlabel('pt')
        a(f's_cmp_lg_u32 {sW}, 3')
        a(f's_cbranch_scc1 {Ls}'); a.comment('COND_BEGIN')
        self.mk_srd(SD_, sQ, 2097152)
        a(f'buffer_load_dword v255, v8, {srd(SD_)}, s53 offen')
        self.mk_srd(SD_, sB1, 3584)
        a(f'buffer_load_dword v255, v8, {srd(SD_)}, 0 offen')
        self.mk_srd(SD_, sB2, 1024)
        a(f'buffer_load_dword v255, v8, {srd(SD_)}, 0 offen')
        self.mk_srd(SD_, sOUT, 2097152)
        a(f'buffer_load_dword v255, off, {srd(SD_)}, s53')
        a('v_lshlrev_b32 v9, 21, v1')
        a('v_min_u32 v9, 0x1c00000, v9')
        a(f'buffer_load_dword v255, v9, {WS}, 0 offen')
        a.label(Ls); a.comment('COND_END')
        if self.o.get('ytouch', 0):
            Ls = a.newlabel('pt2')
            a(f's_cmp_lg_u32 {sW}, 2')
            a(f's_cbranch_scc1 {Ls}'); a.comment('COND_BEGIN')
            a(f's_add_u32 s53, s53, {Y0}')
            a(f'buffer_load_dword v255, v8, {WS}, s53 offen')
            a.label(Ls); a.comment('COND_END')
            Ls = a.newlabel('pt3')
            a(f's_cmp_lg_u32 {sW}, 1')
            a(f's_cbranch_scc1 {Ls}'); a.comment('COND_BEGIN')
            a(f's_lshr_b32 s53, {sR}, 3')
            a('s_lshl_b32 s53, s53, 5')
            a('v_and_b32 v9, 31, v1')
            a('v_add_u32 v9, s53, v9')
            a('v_lshrrev_b32 v10, 2, v9')
            a('v_lshlrev_b32 v10, 3, v10')
            a('v_and_b32 v9, 3, v9')
            a('v_add_u32 v9, v9, v10')
            a('v_lshrrev_b32 v10, 5, v1')
            a('v_lshl_add_u32 v9, v10, 2, v9')
            a(f's_lshl_b32 s53, {sC}, 8')
            a('v_add_u32 v9, s53, v9')
            a('v_lshlrev_b32 v9, 10, v9')
            a(f's_and_b32 s53, {sR}, 7')
            a('s_lshl_b32 s53, s53, 7')
            a(f's_add_u32 s53, s53, {X2}')
            a(f'buffer_load_dword v255, v9, {WS}, s53 offen')
            a.label(Ls); a.comment('COND_END')

    def prep(self):
        a = self.a; vq = self.vq
        a('v_lshrrev_b32 v8, 3, v0')
        a('v_and_b32 v9, 7, v0')
        a('v_lshlrev_b32 v8, 15, v8')
        a('v_lshl_add_u32 v8, v9, 4, v8')
        a(f's_lshl_b32 s53, {sC}, 5')
        a(f's_add_u32 s53, s53, {sR}')
        a('s_lshl_b32 s53, s53, 7')
        a(f's_add_u32 s53, s53, {GB}')
        for i in range(4): a(f'v_mov_b32 v{160+i}, -1')
        self.clear_g = True
        HR = 56
        def hblock():
            a(f's_lshl_b32 s53, {sC}, 5')
            a(f's_add_u32 s53, s53, {sR}')
            a('s_lshl_b32 s53, s53, 1')
            a(f's_lshr_b32 s54, {sW}, 1')
            a('s_add_u32 s53, s53, s54')
            a('s_lshl_b32 s53, s53, 12')
            self.mk_srd(SC_, sSSM, 4096, add='s53')
            a('v_and_b32 v54, 127, v0')
            a('v_lshlrev_b32 v51, 4, v54')
            a('v_subrev_u32 v52, 64, v51')
            a('v_subrev_u32 v53, 48, v51')
            HR = 56
            for rho in range(3):
                if rho:
                    a(f'v_add_u32 v52, 2048, v52')
                    a(f'v_add_u32 v53, 2048, v53')
                self.vload(f'v[{HR+8*rho}:{HR+8*rho+3}]', 'v52', srd(SC_), 0, tag='hr')
                self.vload(f'v[{HR+8*rho+4}:{HR+8*rho+7}]', 'v53', srd(SC_), 0, tag='hr')

        if self.o.get('hrfirst', 0): hblock()
        a('v_lshrrev_b32 v4, 5, v0')
        a('v_and_b32 v5, 31, v0')
        a(f's_lshl_b32 s53, {sR}, 16')
        a(f's_lshl_b32 s54, {sC}, 7')
        a('s_add_u32 s53, s53, s54')
        a('v_lshlrev_b32 v6, 13, v4')
        a('v_lshl_add_u32 v6, v5, 2, v6')
        a('v_add_u32 v6, s53, v6')
        a('v_subrev_u32 v7, 3072, v6')
        a('v_add_u32 v8, 4096, v6')
        self.mk_srd(SA, sK, 2097152)
        self.mk_srd(SB, sV, 2097152)
        self.mk_srd(SC_, sSK, 4096)
        K = 10
        for i in range(3): self.vload(f'v{K+i}', 'v7', srd(SA), 0, 1024*i, w='x1', tag='kv')
        for i in range(4): self.vload(f'v{K+3+i}', 'v6', srd(SA), 0, 1024*i, w='x1', tag='kv')
        for i in range(4): self.vload(f'v{K+7+i}', 'v8', srd(SA), 0, 1024*i, w='x1', tag='kv')
        V = 21
        for i in range(4): self.vload(f'v{V+i}', 'v6', srd(SB), 0, 1024*i, w='x1', tag='kv')
        for i in range(4): self.vload(f'v{V+4+i}', 'v8', srd(SB), 0, 1024*i, w='x1', tag='kv')
        a(f's_lshl_b32 s53, {sC}, 9')
        a('v_lshlrev_b32 v9, 4, v5')
        a('v_add_u32 v9, s53, v9')
        self.vload('v[30:33]', 'v9', srd(SC_), 0, tag='kv')
        if self.o.get('kvbar', 0): a('s_barrier')
        if not self.o.get('hrfirst', 0): hblock()
        if self.o.get('prefetch', True) and not self.o.get('pfearly', 1): self.code_prefetch()
        a(f's_lshl_b32 s53, {sC}, 5')
        a(f's_add_u32 s53, s53, {sR}')
        a('s_lshl_b32 s53, s53, 7')
        a(f's_add_u32 s53, s53, {GB}')
        a('v_lshrrev_b32 v85, 3, v0')
        a('v_and_b32 v86, 7, v0')
        a('v_lshlrev_b32 v85, 15, v85')
        a('v_lshl_add_u32 v85, v86, 4, v85')
        self.vstore('v[160:163]', 'v85', WS, 's53', 0, ' sc1', tag='clr')
        a(f's_add_u32 s53, s53, {32*32768}')
        self.vstore('v[160:163]', 'v85', WS, 's53', 0, ' sc1', tag='clr')
        a(f's_lshl_b32 s53, {sC}, 5')
        a(f's_add_u32 s53, s53, {sR}')
        a('s_lshl_b32 s53, s53, 2')
        a(f's_add_u32 s54, s{sD}, s53')
        a(f's_addc_u32 s55, s{sD+1}, 0')
        a('s_load_dword s60, s[54:55], 0')
        if self.o.get('pretouch', 2) == 2: self.pretouch()

        a('v_mov_b32 v80, 0'); a('v_mov_b32 v81, 0'); a('v_mov_b32 v82, 0'); a('v_mov_b32 v83, 0')
        a('v_lshlrev_b32 v84, 4, v0')
        a('v_cmp_gt_u32 vcc, 90, v0')
        a('s_and_saveexec_b64 s[56:57], vcc')
        a(f'ds_write_b128 v84, v[80:83] offset:{L_XB + 64*96}')
        a(f'ds_write_b128 v84, v[80:83] offset:{L_XB + XBS + 64*96}')
        a('s_mov_b64 exec, s[56:57]')
        if self.o.get('toepearly', 0):
            vq.wait('hr')
            a('v_and_b32 v54, 127, v0')
            a('v_lshlrev_b32 v50, 4, v54')
            a(f's_lshr_b32 s53, {sW}, 1')
            a(f's_mul_i32 s53, s53, {8*CS}')
            a(f's_add_u32 s53, s53, {L_TOEP}')
            a('v_add_u32 v50, s53, v50')
            for rho in range(3):
                D = HR + 8*rho
                if rho == 2:
                    a('v_cmp_gt_u32 vcc, 3, v54')
                    a('s_and_saveexec_b64 s[56:57], vcc')
                O = 100
                for k in range(7): a(f'v_alignbit_b32 v{O+k}, v{D+k+1}, v{D+k}, 16')
                for k in range(1, 7): a(f'v_alignbit_b32 v{110+k-1}, v{D+k+1}, v{D+k}, 16')
                for k in range(1, 7): a(f'v_mov_b32 v{120+k-1}, v{D+k}')
                off = rho*2048
                srcs = [O+0, 120, 110, D+2, O+2, 122, 112, D+4]
                for sg in range(8):
                    a(f'ds_write_b128 v50, v[{srcs[sg]}:{srcs[sg]+3}] offset:{sg*CS + off}')
                if rho < 2: a.nop(1)
                if rho == 2: a('s_mov_b64 exec, s[56:57]')
            self.stamp('toeplitz done')
        vq.wait('kv')
        self.stamp('kv loaded')
        if self.o.get('pretouch', 2) == 3: self.pretouch()
        a(f'v_add_u32 v{vTAG}, 16, v{vTAG}')
        Wp = 90
        a(f'v_lshlrev_b32 v{Wp+0}, 16, v30'); a(f'v_lshlrev_b32 v{Wp+1}, 16, v32')
        a(f'v_readfirstlane_b32 {sTAG}, v{vTAG}')
        a(f'v_and_b32 v{Wp+2}, 0xffff0000, v30'); a(f'v_and_b32 v{Wp+3}, 0xffff0000, v32')
        a(f'v_lshlrev_b32 v{Wp+4}, 16, v31'); a(f'v_lshlrev_b32 v{Wp+5}, 16, v33')
        a(f'v_and_b32 v{Wp+6}, 0xffff0000, v31'); a(f'v_and_b32 v{Wp+7}, 0xffff0000, v33')
        Lx = a.newlabel('noxc')
        a(f's_cmp_lg_u32 {sW}, 0')
        a(f's_cbranch_scc1 {Lx}'); a.comment('COND_BEGIN')
        a('s_lshl_b32 s53, s2, 2')
        a(f's_add_u32 s53, s53, {F_XC}')
        a(f'v_add_u32 v85, {sXCC}, v{vTAG}')
        a(f'buffer_store_dword v85, off, {WS}, s53 sc1')
        a.label(Lx); a.comment('COND_END')
        KU = 100
        for i in range(11):
            a(f'v_lshlrev_b32 v{KU+2*i}, 16, v{K+i}')
            a(f'v_and_b32 v{KU+2*i+1}, 0xffff0000, v{K+i}')
        VU = 122
        for i in range(8):
            a(f'v_lshlrev_b32 v{VU+2*i}, 16, v{V+i}')
            a(f'v_and_b32 v{VU+2*i+1}, 0xffff0000, v{V+i}')
        AC = 140
        def pr(b): return f'v[{b}:{b+1}]'
        for t, wq in enumerate([6, 4, 2, 0]):
            for i in range(8):
                if t == 0: a(f'v_pk_mul_f32 {pr(AC+2*i)}, {pr(KU+2*(i+0))}, {pr(Wp+6)}')
                else: a(f'v_pk_fma_f32 {pr(AC+2*i)}, {pr(KU+2*(i+t))}, {pr(Wp+wq)}, {pr(AC+2*i)}')
        for i in range(8):
            a(f'v_pk_mul_f32 {pr(AC+2*i)}, {pr(AC+2*i)}, {pr(VU+2*i)}')
        for j in range(4):
            hi, lo = 7 - 2*j - 1, 7 - 2*j
            a(f'v_cvt_pk_bf16_f32 v{160+j}, v{AC+2*lo}, v{AC+2*hi}')
            a(f'v_cvt_pk_bf16_f32 v{164+j}, v{AC+2*lo+1}, v{AC+2*hi+1}')
        a('v_sub_u32 v85, 7, v4')
        a('v_and_b32 v9, 7, v5')
        a('v_xor_b32 v85, v85, v9')
        a('v_lshlrev_b32 v85, 4, v85')
        a('v_lshl_add_u32 v85, v5, 8, v85')
        a(f'ds_write_b128 v85, v[160:163] offset:{L_KVT}')
        a(f'ds_write_b128 v85, v[164:167] offset:{L_KVT+128}')
        a('v_lshrrev_b32 v85, 3, v0')
        a('v_and_b32 v9, 7, v0')
        a('v_bfe_u32 v29, v85, 1, 3')
        a('v_xor_b32 v29, v29, v9')
        a('v_lshlrev_b32 v29, 4, v29')
        a('v_lshl_add_u32 v29, v85, 7, v29')
        a(f's_lshl_b32 s53, {sC}, 18')
        a(f's_lshl_b32 s54, {sR}, 7')
        a('s_sub_u32 s53, s53, s54')
        a(f's_add_u32 s53, s53, {XR + 3968}')
        a('v_lshlrev_b32 v50, 12, v85')
        a('v_lshl_add_u32 v50, v9, 4, v50')
        a('v_add_u32 v51, 0x20000, v50')
        a('s_waitcnt lgkmcnt(0)')
        a('s_barrier')
        a(f'ds_read_b128 v[160:163], v29 offset:{L_KVT}')
        a(f'ds_read_b128 v[164:167], v29 offset:{L_KVT+4096}')
        a('s_waitcnt lgkmcnt(1)')
        self.vstore('v[160:163]', 'v50', WS, 's53', 0, ' sc1', tag='xr')
        a('s_waitcnt lgkmcnt(0)')
        self.vstore('v[164:167]', 'v51', WS, 's53', 0, ' sc1', tag='xr')
        self.stamp('xr stored')
        self.mk_srd(SA, sW1, 512*1792*2)
        self.mk_srd(SB, sW2, 512*1792*2)
        a(f's_lshl_b32 s53, {sR}, 4')
        a(f's_lshl_b32 s54, {sW}, 2')
        a('s_add_u32 s53, s53, s54')
        a('s_mul_i32 s53, s53, 3584')
        a(f's_mul_i32 s54, {sC}, 448')
        a('s_add_u32 s53, s53, s54')
        a('v_lshrrev_b32 v34, 4, v1')
        a('v_and_b32 v9, 15, v1')
        a('v_mul_u32_u24 v29, 3584, v34')
        a('v_lshl_add_u32 v29, v9, 4, v29')
        a('v_add_u32 v29, s53, v29')
        self.vload('v[196:199]', 'v29', srd(SA), 0, tag='wr')
        self.vload('v[200:203]', 'v29', srd(SA), 0, 256, tag='wr')
        a('s_lshr_b32 s53, s2, 1')
        a('s_lshl_b32 s53, s53, 14')
        a('s_and_b32 s54, s2, 1')
        a('s_lshl_b32 s54, s54, 9')
        a('s_add_u32 s53, s53, s54')
        a('v_lshrrev_b32 v42, 4, v0')
        a('v_lshlrev_b32 v50, 10, v42')
        a('v_lshl_add_u32 v50, v9, 4, v50')
        a('v_add_u32 v50, s53, v50')
        self.vload('v[204:207]', 'v50', srd(SB), 0, tag='wr')
        self.vload('v[208:211]', 'v50', srd(SB), 0, 256, tag='wr')
        if self.o.get('toepmid', 0):
            vq.wait('hr')
            a('v_and_b32 v54, 127, v0')
            a('v_lshlrev_b32 v50, 4, v54')
            a(f's_lshr_b32 s53, {sW}, 1')
            a(f's_mul_i32 s53, s53, {8*CS}')
            a(f's_add_u32 s53, s53, {L_TOEP}')
            a('v_add_u32 v50, s53, v50')
            for rho in range(3):
                D = HR + 8*rho
                if rho == 2:
                    a('v_cmp_gt_u32 vcc, 3, v54')
                    a('s_and_saveexec_b64 s[56:57], vcc')
                O = 100
                for k in range(7): a(f'v_alignbit_b32 v{O+k}, v{D+k+1}, v{D+k}, 16')
                for k in range(1, 7): a(f'v_alignbit_b32 v{110+k-1}, v{D+k+1}, v{D+k}, 16')
                for k in range(1, 7): a(f'v_mov_b32 v{120+k-1}, v{D+k}')
                off = rho*2048
                srcs = [O+0, 120, 110, D+2, O+2, 122, 112, D+4]
                for sg in range(8):
                    a(f'ds_write_b128 v50, v[{srcs[sg]}:{srcs[sg]+3}] offset:{sg*CS + off}')
                if rho < 2: a.nop(1)
                if rho == 2: a('s_mov_b64 exec, s[56:57]')
            self.stamp('toeplitz done')

        vq.wait('xr')
        a('s_barrier')
        Lnf = a.newlabel('noflag')
        a(f's_cmp_lg_u32 {sW}, 0')
        a(f's_cbranch_scc1 {Lnf}'); a.comment('COND_BEGIN')
        a(f's_lshl_b32 s53, {sC}, 5')
        a(f's_add_u32 s53, s53, {sR}')
        a('s_lshl_b32 s53, s53, 2')
        a(f's_add_u32 s53, s53, {F_PREP}')
        a(f'buffer_store_dword v{vTAG}, off, {WS}, s53 sc1')
        a.label(Lnf); a.comment('COND_END')
        self.stamp('prep published')
        if not self.o.get('toepmid', 0) and not self.o.get('toepearly', 0):
            a('v_and_b32 v54, 127, v0')
            a('v_lshlrev_b32 v50, 4, v54')
            a(f's_lshr_b32 s53, {sW}, 1')
            a(f's_mul_i32 s53, s53, {8*CS}')
            a(f's_add_u32 s53, s53, {L_TOEP}')
            a('v_add_u32 v50, s53, v50')
            for rho in range(3):
                D = HR + 8*rho
                if rho == 2:
                    a('v_cmp_gt_u32 vcc, 3, v54')
                    a('s_and_saveexec_b64 s[56:57], vcc')
                O = 100
                for k in range(7): a(f'v_alignbit_b32 v{O+k}, v{D+k+1}, v{D+k}, 16')
                for k in range(1, 7): a(f'v_alignbit_b32 v{110+k-1}, v{D+k+1}, v{D+k}, 16')
                for k in range(1, 7): a(f'v_mov_b32 v{120+k-1}, v{D+k}')
                off = rho*2048
                srcs = [O+0, 120, 110, D+2, O+2, 122, 112, D+4]
                for sg in range(8):
                    a(f'ds_write_b128 v50, v[{srcs[sg]}:{srcs[sg]+3}] offset:{sg*CS + off}')
                if rho < 2: a.nop(1)
                if rho == 2: a('s_mov_b64 exec, s[56:57]')
            self.stamp('toeplitz done')


    def w_transpose(self):
        a = self.a; vq = self.vq
        vq.wait('wr')
        a('v_lshrrev_b32 v212, 4, v0')
        a('v_and_b32 v213, 15, v0')
        a('v_mul_u32_u24 v214, 448, v212')
        a('v_lshl_add_u32 v214, v213, 4, v214')
        a(f'ds_write_b128 v214, v[196:199] offset:{L_W1R}')
        a('v_cmp_gt_u32 vcc, 12, v213')
        a('s_and_saveexec_b64 s[56:57], vcc')
        a(f'ds_write_b128 v214, v[200:203] offset:{L_W1R+256}')
        a('s_mov_b64 exec, s[56:57]')
        a('v_mul_u32_u24 v214, 576, v212')
        a('v_lshl_add_u32 v214, v213, 4, v214')
        a(f'ds_write_b128 v214, v[204:207] offset:{L_W2R}')
        a(f'ds_write_b128 v214, v[208:211] offset:{L_W2R+256}')
        a('v_lshrrev_b32 v212, 5, v1')
        a('v_bfe_u32 v213, v1, 2, 2')
        a('v_bfe_u32 v214, v1, 4, 1')
        a('v_and_b32 v215, 3, v1')
        a('v_lshlrev_b32 v215, 3, v215')
        a('v_lshl_add_u32 v215, v214, 5, v215')
        a('v_lshl_add_u32 v216, v212, 3, v213')
        a('v_mul_u32_u24 v216, 448, v216')
        a('v_add_u32 v216, v216, v215')
        a(f's_lshl_b32 s54, {sW}, 6')
        a('v_add_u32 v216, s54, v216')
        a('v_lshl_add_u32 v217, v212, 2, v213')
        a('v_mul_u32_u24 v217, 576, v217')
        a('v_add_u32 v217, v217, v215')
        a('v_add_u32 v217, s54, v217')
        a('s_waitcnt lgkmcnt(0)')
        a('s_barrier')
        a(f'ds_read_b64_tr_b16 v[168:169], v216 offset:{L_W1R}')
        a(f'ds_read_b64_tr_b16 v[170:171], v216 offset:{L_W1R + 4*448}')
        a(f'ds_read_b64_tr_b16 v[172:173], v216 offset:{L_W1R + 256}')
        a(f'ds_read_b64_tr_b16 v[174:175], v216 offset:{L_W1R + 4*448 + 256}')
        a(f'ds_read_b64_tr_b16 v[176:177], v217 offset:{L_W2R}')
        a(f'ds_read_b64_tr_b16 v[178:179], v217 offset:{L_W2R + 8*576}')
        a(f'ds_read_b64_tr_b16 v[180:181], v217 offset:{L_W2R + 256}')
        a(f'ds_read_b64_tr_b16 v[182:183], v217 offset:{L_W2R + 8*576 + 256}')
        a(f's_mul_i32 s53, {sC}, 7')
        a(f's_add_u32 s53, s53, {sW}')
        a(f's_mul_i32 s54, {sR}, 56')
        a('s_add_u32 s53, s53, s54')
        a('s_lshl_b32 s53, s53, 10')
        a(f's_add_u32 s53, s53, {W1F}')
        a(f's_add_u32 s55, s53, {4*1024}')
        a('s_lshl_b32 s57, s2, 12')
        a(f's_add_u32 s57, s57, {DUMMY2}')
        a(f's_cmp_eq_u32 {sW}, 3')
        a('s_cselect_b32 s55, s57, s55')
        a('s_waitcnt lgkmcnt(4)')
        self.vstore('v[168:171]', f'v{vL16}', WS, 's53', 0, ' sc1', tag='wf')
        self.vstore('v[172:175]', f'v{vL16}', WS, 's55', 0, ' sc1', tag='wf')
        a('s_mov_b32 s4, s53'); a('s_mov_b32 s5, s55')
        a('s_lshr_b32 s54, s2, 1')
        a('s_mul_i32 s55, s54, 9363')
        a('s_lshr_b32 s55, s55, 18')
        a('s_mul_i32 s56, s55, 28')
        a('s_sub_u32 s54, s54, s56')
        a('s_lshl_b32 s54, s54, 2')
        a('s_add_u32 s54, s54, s55')
        a('s_lshl_b32 s54, s54, 4')
        a('s_and_b32 s53, s2, 1')
        a('s_lshl_b32 s53, s53, 3')
        a(f's_add_u32 s53, s53, {sW}')
        a('s_add_u32 s53, s53, s54')
        a('s_lshl_b32 s53, s53, 10')
        a(f's_add_u32 s53, s53, {W2F}')
        a('s_cmp_ge_u32 s2, 224')
        a('s_cselect_b32 s53, s57, s53')
        a('s_waitcnt lgkmcnt(0)')
        self.vstore('v[176:179]', f'v{vL16}', WS, 's53', 0, ' sc1', tag='wf')
        a('s_mov_b32 s6, s53')
        a(f's_add_u32 s54, s53, {4*1024}')
        a('s_cselect_b32 s53, s57, s54') if False else None
        a('s_cmp_ge_u32 s2, 224')
        a('s_cselect_b32 s53, s57, s54')
        self.vstore('v[180:183]', f'v{vL16}', WS, 's53', 0, ' sc1', tag='wf')
        a('s_mov_b32 s7, s53')

    def dummy_stores(self):
        a = self.a
        Ls = a.newlabel('nods')
        a(f's_cmp_eq_u32 {sFAST}, 0')
        a(f's_cbranch_scc1 {Ls}'); a.comment('COND_BEGIN')
        D = 'v[192:195]'
        if self.o.get('dsH', 0):
            a(f's_lshl_b32 s53, {sC}, 1')
            a(f's_add_u32 s53, s53, {sT1}')
            a('s_mul_i32 s53, s53, 448')
            a(f's_lshl_b32 s54, {sJ}, 2')
            a(f's_add_u32 s54, s54, {sW}')
            a('s_min_u32 s54, s54, 55')
            a('s_lshl_b32 s54, s54, 1')
            a('s_add_u32 s53, s53, s54')
            a('s_lshl_b32 s53, s53, 10')
            a(f's_add_u32 s53, s53, {H0}')
            for u in range(4):
                a(f'buffer_store_dwordx4 {D}, v{vL16}, {WS}, s53 offen')
                a(f'buffer_store_dwordx4 {D}, v{vL16}, {WS}, s53 offen offset:1024')
                if u < 3: a(f's_add_u32 s53, s53, {112*1024}')
        a(f's_lshl_b32 s53, {sC}, 8')
        a(f's_lshl_b32 s54, {sR}, 3')
        a('s_add_u32 s53, s53, s54')
        a(f's_add_u32 s53, s53, {sW}')
        a('s_lshl_b32 s53, s53, 10')
        a(f's_add_u32 s53, s53, {Y0}')
        a(f'buffer_store_dwordx4 {D}, v{vL16}, {WS}, s53 offen')
        a('s_add_u32 s53, s53, 4096')
        a(f'buffer_store_dwordx4 {D}, v{vL16}, {WS}, s53 offen')
        if not self.o.get('dsX', 0):
            a.label(Ls); a.comment('COND_END'); return
        a('v_lshrrev_b32 v8, 3, v0')
        a(f's_lshr_b32 s53, {sR}, 3')
        a('s_lshl_b32 s53, s53, 5')
        a('v_add_u32 v8, s53, v8')
        a('v_lshrrev_b32 v9, 2, v8')
        a('v_lshlrev_b32 v9, 3, v9')
        a('v_and_b32 v8, 3, v8')
        a('v_add_u32 v8, v8, v9')
        a(f's_lshl_b32 s53, {sC}, 8')
        a('v_add_u32 v8, s53, v8')
        a('v_lshlrev_b32 v8, 10, v8')
        a('v_and_b32 v9, 7, v0')
        a('v_lshl_add_u32 v8, v9, 4, v8')
        a(f's_and_b32 s53, {sR}, 7')
        a('s_lshl_b32 s53, s53, 7')
        a(f's_add_u32 s53, s53, {X2}')
        a(f'buffer_store_dwordx4 {D}, v8, {WS}, s53 offen')
        a('s_add_u32 s53, s53, 4096')
        a(f'buffer_store_dwordx4 {D}, v8, {WS}, s53 offen')
        a.label(Ls); a.comment('COND_END')

    def weight_state_init(self):
        a = self.a
        a(f's_cmp_ge_u32 {sR}, 14')
        a(f's_cselect_b32 {sT1}, 1, 0')
        a(f's_mul_i32 s53, {sT1}, 14')
        a(f's_sub_u32 {sJ}, {sR}, s53')
        a(f's_lshl_b32 s14, {sJ}, 2')
        a(f's_add_u32 s14, s14, {sW}')
        a('s_min_u32 s14, s14, 55')
        a('s_lshl_b32 s14, s14, 10')
        a(f's_add_u32 s14, s14, {W1F}')
        a(f's_and_b32 s15, {sR}, 7')
        a('s_lshl_b32 s15, s15, 1')
        a(f's_lshl_b32 s53, {sW}, 4')
        a('s_add_u32 s15, s15, s53')
        a('s_lshl_b32 s15, s15, 10')
        a(f's_add_u32 s15, s15, {W2F}')
        self.wlist = [('w1', k) for k in range(32)] + [('w2', nt, i) for i in range(28) for nt in range(2)]
    def weight_batch(self, n):
        a = self.a
        for _ in range(n):
            if not self.wlist: return
            it = self.wlist.pop(0)
            if it[0] == 'w1':
                k = it[1]
                a(f's_add_u32 s13, s14, {k*56*1024}')
                self.vload(W1reg(k), f'v{vL16}', WS, 's13', 0, ' sc1', tag='w')
            else:
                _, nt, i = it
                a(f's_add_u32 s13, s15, {i*64*1024}')
                self.vload(W2reg(nt, i), f'v{vL16}', WS, 's13', nt*1024, ' sc1', tag='w')

    def conv(self):
        a = self.a; vq = self.vq; o = self.o
        a(f's_lshl_b32 s53, {sC}, 7')
        a(f's_add_u32 s53, s53, {F_PREP}')
        a('v_and_b32 v5, 31, v1')
        a('v_lshlrev_b32 v5, 2, v5')
        a('v_add_u32 v5, s53, v5')
        if o.get('poll1', 1):
            Lp = a.newlabel('np')
            a(f's_cmp_lg_u32 {sW}, 0')
            a(f's_cbranch_scc1 {Lp}')
            self.poll(5, 8)
            a.label(Lp)
            vq.drain()
            a('s_barrier')
        else:
            self.poll(5, 8)
        self.stamp('prep flags seen')
        a(f's_lshl_b32 s53, {sC}, 5')
        a(f's_add_u32 s53, s53, {sR}')
        a('s_lshl_b32 s61, s53, 7')
        a('s_lshl_b32 s53, s53, 13')
        a(f's_add_u32 s53, s53, {XR}')
        a('v_lshlrev_b32 v5, 4, v0')
        self.vload('v[184:187]', 'v5', WS, 's53', 0, ' sc1', tag='x0')
        a('s_add_u32 s53, s53, 4096')
        self.vload('v[188:191]', 'v5', WS, 's53', 0, ' sc1', tag='x1')
        a(f'v_add_u32 v132, {F_XC}, v{vL16}')
        a(f'buffer_load_dwordx4 v[128:131], v132, {WS}, 0 offen sc1'); vq.issue('fw')
        if not o.get('wtloop', 0): self.w_transpose()
        a('v_lshrrev_b32 v4, 2, v0')
        a('v_mul_u32_u24 v4, 96, v4')
        a('v_and_b32 v5, 3, v0')
        a('v_lshl_add_u32 v4, v5, 4, v4')
        vq.wait('x0')
        a(f'ds_write_b128 v4, v[184:187] offset:{L_XB}')
        vq.wait('x1')
        a(f'ds_write_b128 v4, v[188:191] offset:{L_XB + XBS}')
        a(f's_lshr_b32 s67, {sW}, 1')
        a(f's_and_b32 s59, {sW}, 1')
        a('v_and_b32 v4, 15, v1')
        a('v_lshrrev_b32 v5, 4, v1')
        a('v_and_b32 v6, 7, v4')
        a(f'v_mul_u32_u24 v6, {CS}, v6')
        a('v_and_b32 v7, 8, v4')
        a('v_lshl_add_u32 v7, v5, 3, v7')
        a('v_lshl_add_u32 v6, v7, 1, v6')
        a(f's_mul_i32 s55, s67, {8*CS}')
        a('s_lshl_b32 s56, s59, 5')
        a('s_add_u32 s55, s55, s56')
        a(f's_add_u32 s55, s55, {L_TOEP}')
        a('v_add_u32 v6, s55, v6')
        a('v_sub_u32 v7, 15, v4')
        a('v_mul_u32_u24 v7, 96, v7')
        a('v_lshl_add_u32 v7, v5, 4, v7')
        a(f's_mul_i32 s55, s67, {XBS}')
        a(f's_add_u32 s55, s55, {L_XB}')
        a('v_add_u32 v7, s55, v7')
        a('s_waitcnt lgkmcnt(0)')
        a('s_barrier')
        if self.o.get('pretouch', 2) == 1: self.pretouch_late()
        for i in range(16): a(f'v_mov_b32 v{16+i}, 0')
        self.stamp('x in lds')
        wb1 = o.get('wb1', 12)
        def Er(m, j): b = 32 + 32*(m % 3) + 4*j; return f'v[{b}:{b+3}]'
        def Fr(m, j): b = 32 + 32*(m % 3) + 16 + 4*j; return f'v[{b}:{b+3}]'
        def gloads(m):
            l = []
            for j in range(4):
                e = 16*j - m
                l.append(f'ds_read_b128 {Fr(m,j)}, v6 offset:{64*(m+16*j)}')
                l.append(f'ds_read_b128 {Er(m,j)}, v7 offset:{(48-e)*96}')
            return l
        for l in gloads(0): a(l)
        for l in gloads(1)[:7]: a(l)
        first_extra = gloads(1)[7:]
        wt1, wt2 = [], []
        if o.get('wtloop', 0):
            wt = self.capture(self.w_transpose)
            bi = [i for i, l in enumerate(wt) if l.startswith('s_barrier')][0]
            wt1, wt2 = wt[:bi+1], wt[bi+1:]
        xc = self.capture(lambda: self.check_xc(128, 132))
        ei = [i for i, l in enumerate(xc) if 'SPIN_END' in l][0]
        xc_head, xc_rest = xc[:ei+1], xc[ei+1:]
        fillers = []
        for m in range(16):
            nxt = (first_extra if m == 0 else []) + (gloads(m+2) if m + 2 < 16 else [])
            if m == 1:
                for l in wt1: a.lines.append(l)
            if m == 2:
                for l in wt2: a.lines.append(l)
            if m == o.get('xcslot', 1):
                for l in xc_head: a.lines.append(l)
                epi = self.capture(self.conv_epi_pre)
                def grp(lines):
                    out = []
                    for l in lines:
                        if out and l.startswith('s_cselect') : out[-1].append(l)
                        else: out.append([l])
                    return out
                epi = grp(epi)
                fillers = grp(xc_rest) + epi; nepi = len(epi)
            if m == 0: a('s_waitcnt lgkmcnt(7)')
            elif m < 15: a('s_waitcnt lgkmcnt(8)')
            else: a('s_waitcnt lgkmcnt(0)')
            mf = []
            for j in range(4):
                for c in range(j, 4):
                    mf.append(f'v_mfma_f32_16x16x32_bf16 v[{16+4*c}:{19+4*c}], {Fr(m,j)}, {Er(m,c-j)}, v[{16+4*c}:{19+4*c}]')
            if m == o.get('fwpub', 4):
                vq.wait('wf')
                a('s_barrier')
                Lnf = a.newlabel('noflag')
                a(f's_cmp_lg_u32 {sW}, 0')
                a(f's_cbranch_scc1 {Lnf}'); a.comment('COND_BEGIN')
                a('s_lshl_b32 s53, s2, 2')
                a(f's_add_u32 s53, s53, {F_W}')
                a(f'buffer_store_dword v{vTAG}, off, {WS}, s53 sc1')
                a.label(Lnf); a.comment('COND_END')
            if m == o.get('fwpub', 4) and o.get('wretouch', 0):
                for q in range(4):
                    a(f'buffer_load_dword v255, v{vL16}, {WS}, s{4+q} offen'); vq.issue('wt')
            if m == o.get('dsslot', 10) and o.get('dstore', 1):
                assert len(fillers) <= nepi
                self.dummy_stores()
            if m == o.get('fwld', 13) and not o.get('fw1', 0):
                a(f'v_add_u32 v132, {F_W}, v{vL16}')
                a(f'buffer_load_dwordx4 v[128:131], v132, {WS}, 0 offen sc1'); vq.issue('fw2')
            for i, ins in enumerate(mf):
                a(ins)
                if nxt: a(nxt.pop(0))
                for _ in range(2):
                    if fillers:
                        a.lines.extend(fillers.pop(0))
            assert not nxt
        for gl in fillers: a.lines.extend(gl)
        self.stamp('conv mfma done')
        a.nop(6)
        for c in range(4):
            acc = 16+4*c
            for r in range(4): a(f'v_add_f32 v{acc+r}, v{acc+r}, v{144+4*c+r}')
            a(f'v_cvt_pk_bf16_f32 v{64+2*c}, v{acc}, v{acc+1}')
            a(f'v_cvt_pk_bf16_f32 v{65+2*c}, v{acc+2}, v{acc+3}')
            a(f'ds_write_b64 v141, v[{64+2*c}:{65+2*c}] offset:{L_GT + 16*c*128}')
        a('s_waitcnt lgkmcnt(0)')
        a('s_barrier')
        a(f'ds_read_b128 v[48:51], v142 offset:{L_GT}')
        a(f'ds_read_b128 v[52:55], v142 offset:{L_GT + 4096}')
        a(f's_add_u32 s53, s61, {GB}')
        a('s_waitcnt lgkmcnt(1)')
        self.vstore('v[48:51]', 'v143', WS, 's53', 0, ' sc1', tag='g')
        a(f's_add_u32 s53, s53, {32*32768}')
        a('s_waitcnt lgkmcnt(0)')
        self.vstore('v[52:55]', 'v143', WS, 's53', 0, ' sc1', tag='g')
        self.mk_srd(SA, sQ, 2097152)
        a(f's_lshl_b32 s53, {sC}, 8')
        a(f's_lshl_b32 s54, {sR}, 3')
        a('s_add_u32 s53, s53, s54')
        a(f's_add_u32 s53, s53, {sW}')
        a('s_lshl_b32 s53, s53, 10')
        self.vload('v[8:11]', f'v{vL16}', srd(SA), 's53', 0, tag='q')
        a('s_add_u32 s53, s53, 4096')
        self.vload('v[12:15]', f'v{vL16}', srd(SA), 's53', 0, tag='q')
        if o.get('fw1', 0):
            Lq = a.newlabel('nfw')
            a(f's_cmp_lg_u32 {sW}, 0')
            a(f's_cbranch_scc1 {Lq}')
            a(f'v_add_u32 v132, {F_W}, v{vL16}')
            keep = list(self.vq.ops)
            self.poll(132, 128, x4=True)
            self.vq.ops = keep
            a.label(Lq)
        else:
            self.check_fw(128, 132)
        a('s_barrier')
        self.weight_batch(o.get('wb2', 24))
        self.stamp('conv published')

    def finish(self):
        a = self.a
        a.label('L_fin')
        Ln = a.newlabel('noep')
        a('s_cmp_lg_u32 s2, 0')
        a(f's_cbranch_scc1 {Ln}'); a.comment('COND_BEGIN')
        a(f's_cmp_lg_u32 {sW}, 0')
        a(f's_cbranch_scc1 {Ln}'); a.comment('COND_BEGIN')
        a(f'buffer_store_dword v{vTAG}, off, {WS}, 0 sc1')
        a.label(Ln)
        if self.stamps:
            self.stamp('end')
            a('s_memtime s[62:63]'); a('s_waitcnt lgkmcnt(0)'); a('s_sub_u32 s100, s62, s100')
            a('s_lshl_b32 s53, s2, 2')
            a(f's_add_u32 s53, s53, {sW}')
            a('s_lshl_b32 s53, s53, 7')
            a(f's_add_u32 s53, s53, {TS}')
            a('s_mov_b64 exec, 1')
            a('v_mov_b32 v4, 0')
            for i in range(self.nstamp):
                a(f'v_mov_b32 v5, s{76+i}')
                a(f'buffer_store_dword v5, v4, {WS}, s53 offen offset:{4*i}')
                a.nop(1)
            if self.o.get('dbgstamps'):
                Ld = a.newlabel('nodbg')
                a(f's_cmp_lg_u32 s2, {self.o.get("dbgstamps")}')
                a(f's_cbranch_scc1 {Ld}')
                a(f's_cmp_lg_u32 {sW}, 0')
                a(f's_cbranch_scc1 {Ld}')
                self.mk_srd(SA, sDBG, 256)
                sel = [1, 3, 5, 6, 7, 9, 10, 12, 13, 15, 16, 18, 19, 21, 22, 22]
                for j, i in enumerate(sel):
                    a(f's_sub_u32 s54, s{76+i}, s76')
                    a(f'v_mov_b32 v5, s54')
                    a(f'buffer_store_dword v5, v4, {srd(SA)}, 0 offen offset:{4*j}')
                    a.nop(1)
                a.label(Ld)
            a(f'v_mov_b32 v5, {sFAST}')
            a(f'buffer_store_dword v5, v4, {WS}, s53 offen offset:116')
            a.nop(1)
            a(f'v_mov_b32 v5, s100')
            a(f'buffer_store_dword v5, v4, {WS}, s53 offen offset:120')
            a.nop(1)
            a(f'v_mov_b32 v5, {sABORT}')
            a(f'buffer_store_dword v5, v4, {WS}, s53 offen offset:124')
        a('s_waitcnt vmcnt(0)')
        a.label('L_end')
        a('s_endpgm')
        self.finished = True
        if not getattr(self, 'more_code', False): a.label('L_code_end')

    def build(self):
        self.prologue()
        self.prep()
        if self.stop != 'prep': self.conv()
        if self.stop not in ('prep', 'conv'):
            if self.o.get('mlp', 4) == 3:
                from gen3_mlp import emit_mlp
            else:
                from gen4_mlp import emit_mlp
            emit_mlp(self)
        if not getattr(self, 'finished', False): self.finish()
        else: self.a.label('L_code_end')
        body = self.a.text()
        hdr = open('cdna_kernels/' + NAME[:-7] + '.s.ref').read().split('; Override launch')[0]
        s = hdr + f'; @launch grid=(256,1,1) block=(256,1,1) lds={LDS_SIZE}\n'
        s += f'''.amdgcn_target "amdgcn-amd-amdhsa--gfx950"
.text
.globl {NAME}
.p2align 8
.type {NAME},@function
{NAME}:
.set CODE_BYTES, {'L_slow' if 'L_slow:' in body else 'L_code_end'} - {NAME}
''' + body + f'''.section .rodata,"a"
.p2align 6
.amdhsa_kernel {NAME}
  .amdhsa_next_free_vgpr 512
  .amdhsa_next_free_sgpr 102
  .amdhsa_accum_offset 256
  .amdhsa_group_segment_fixed_size 0
  .amdhsa_kernarg_size 112
  .amdhsa_user_sgpr_count 2
  .amdhsa_user_sgpr_kernarg_segment_ptr 1
  .amdhsa_system_sgpr_workgroup_id_x 1
.end_amdhsa_kernel
'''
        return s

def main():
    ap = argparse.ArgumentParser()
    ap.add_argument('--stop', default='end')
    ap.add_argument('--stamps', action='store_true')
    ap.add_argument('-o', default='k.s')
    ap.add_argument('--opt', action='append', default=[])
    args = ap.parse_args()
    opts = {}
    for kv in args.opt:
        k, v = kv.split('='); opts[k] = int(v) if v.lstrip('-').isdigit() else v
    g = Gen(stop=args.stop, stamps=args.stamps, opts=opts)
    s = g.build()
    probs = check_hazards(g.a.lines)
    for p in probs: print(p)
    wp = check_waits(g.a.lines)
    for p in wp[:30]: print(p)
    print(len(wp), 'wait problems')
    print(f'{len(g.a.lines)} lines, {len(probs)} hazards')
    open(args.o, 'w').write(s)
    open(args.o + '.stamps', 'w').write('\n'.join(g.stamp_names))

if __name__ == '__main__':
    main()
```

```python
from gen2 import *

def tok_base(a, dst, eta):
    a(f's_lshl_b32 {dst}, {sC}, 8')
    a(f's_lshl_b32 s54, {sR}, 3')
    a(f's_add_u32 {dst}, {dst}, s54')
    a(f's_add_u32 {dst}, {dst}, {sW}')
    if eta: a(f's_add_u32 {dst}, {dst}, {4*eta}')
    a(f's_lshl_b32 {dst}, {dst}, 10')

def yflag_addr(a, dst, eta):
    a(f's_lshl_b32 {dst}, s67, 1')
    if eta: a(f's_add_u32 {dst}, {dst}, {eta}')
    a(f's_lshl_b32 {dst}, {dst}, 3')
    a(f's_add_u32 {dst}, {dst}, {sC}')
    a(f's_lshl_b32 {dst}, {dst}, 7')
    a(f's_lshl_b32 s54, {sR}, 2')
    a(f's_add_u32 {dst}, {dst}, s54')
    a(f's_add_u32 {dst}, {dst}, {sW}')
    a(f's_lshl_b32 {dst}, {dst}, 2')
    a(f's_add_u32 {dst}, {dst}, {F_Y}')

def rows_finish(g, rows):
    a = g.a
    for (X, eta) in rows:
        a(f's_lshl_b32 s53, {sW}, 10')
        a(f's_add_u32 s53, s53, {L_G + eta*4096}')
        a(f'v_add_u32 v{X+28}, s53, v{vL16}')
        a(f'ds_read_b128 v[{X+16}:{X+19}], v{X+28}')
    a('s_waitcnt lgkmcnt(0)')
    def pr(b): return f'v[{b}:{b+1}]'
    for (X, eta) in rows:
        g.unpack8(X+16, X+20)
    for (X, eta) in rows:
        for i in range(4):
            a(f'v_pk_fma_f32 {pr(X+2*i)}, {pr(X+8+2*i)}, {pr(X+20+2*i)}, {pr(X+2*i)}')
    for (X, eta) in rows:
        g.pack8(X, X+32)
    for (X, eta) in rows:
        g.unpack8(X+32, X)
    for (X, eta) in rows:
        tok_base(a, 's55', eta)
        a('s_lshl_b32 s54, s67, 22' if not g.fast else 's_mov_b32 s54, 0')
        a('s_add_u32 s54, s54, s55')
        a(f's_add_u32 s54, s54, {X1}')
        g.vstore(f'v[{X+32}:{X+35}]', f'v{vL16}', WS, 's54', 0, g.sc, tag=f'rx{eta}')
    g.ln_multi([(X, X+8, X+36) for (X, eta) in rows])
    g.ln_multi([(X+8, X+8, X+36) for (X, eta) in rows])
    for (X, eta) in rows:
        g.pack8(X+8, X+16)
    for (X, eta) in rows:
        tok_base(a, 's55', eta)
        a('s_lshl_b32 s54, s67, 21' if not g.fast else 's_mov_b32 s54, 0')
        a('s_add_u32 s54, s54, s55')
        a(f's_add_u32 s54, s54, {Y0}')
        g.vstore(f'v[{X+16}:{X+19}]', f'v{vL16}', WS, 's54', 0, g.sc, tag=f'ry{eta}')

def row_flag(g, eta):
    a = g.a
    yflag_addr(a, 's53', eta)
    g.vq.wait(f'ry{eta}')
    g.flag('s53')

def emit_r1a(g):
    a = g.a; vq = g.vq; o = g.o
    XA, XB_ = 16, 64
    a(f'v_mov_b32 v{g.vinv}, 0x3b000000')
    vq.wait('q')
    if o.get('hideB0', 0):
        for i in range(4): a(f'v_mov_b32 v{104+i}, v{12+i}')
        g.unpack8(8, XA)
        g.ln_multi([(XA, XA+8, XA+36)])
    else:
        g.unpack8(8, XA); g.unpack8(12, XB_)
        g.ln_multi([(XA, XA+8, XA+36), (XB_, XB_+8, XB_+36)])
    if getattr(g, 'r1_hook', None): g.r1_hook()
    a(f's_lshl_b32 s53, {sC}, 3')
    a(f's_lshr_b32 s54, {sR}, 2')
    a('s_add_u32 s53, s53, s54')
    a('s_lshl_b32 s53, s53, 15')
    a(f's_and_b32 s54, {sR}, 3')
    a('s_lshl_b32 s54, s54, 5')
    a('s_add_u32 s53, s53, s54')
    a(f's_add_u32 s55, s53, {GB}')
    a('v_lshlrev_b32 v111, 7, v0')
    L = a.newlabel('gp'); D = a.newlabel('gpd')
    a('s_mov_b32 s53, 0')
    a('s_mov_b64 s[56:57], exec')
    a.label(L)
    a(f'buffer_load_dwordx4 v[60:63], v111, {WS}, s55 offen sc1')
    a(f'buffer_load_dwordx4 v[124:127], v111, {WS}, s55 offen offset:16 sc1')
    a('s_waitcnt vmcnt(0)')
    a('v_max3_u32 v109, v60, v61, v62')
    a('v_max3_u32 v110, v63, v124, v125')
    a('v_max3_u32 v109, v109, v126, v127')
    a('v_max_u32 v109, v109, v110')
    a('v_cmp_eq_u32 vcc, -1, v109')
    a(f's_cbranch_vccz {D}')
    if o.get('gmask', 1): a('s_and_b64 exec, exec, vcc')
    if o.get("gsleep", 0): a(f's_sleep {o.get("gsleep", 0)}')
    a('s_add_u32 s53, s53, 1')
    a(f's_cmp_lg_u32 {sABORT}, 0')
    a(f's_cbranch_scc1 {D}')
    a('s_cmp_lt_u32 s53, 0x8000')
    a(f's_cbranch_scc1 {L}')
    a(f's_mov_b32 {sABORT}, 1')
    a.label(D)
    a('s_mov_b64 exec, s[56:57]')
    vq.reset()
    g.stamp('G loaded')
    g.cur_layer = 0
    g.dstamp('r1', 'G loaded')
    a('s_mov_b32 s56, 0x05040100')
    a('s_mov_b32 s57, 0x07060302')
    a('v_lshlrev_b32 v109, 2, v0')
    a(f'v_add_u32 v109, {L_G}, v109')
    for hlf in range(2):
        for j in range(4*hlf, 4*hlf + 4):
            sel = 's56' if j % 2 == 0 else 's57'
            a(f'v_perm_b32 v{12 + (j%4)}, v{124 + j//2}, v{60 + j//2}, {sel}')
        for j in range(4*hlf, 4*hlf + 4):
            a(f'ds_write_b32 v109, v{12 + (j%4)} offset:{j*1024}')
    a('s_waitcnt lgkmcnt(0)')
    a('s_barrier')

def emit_r1b(g):
    a = g.a; vq = g.vq; o = g.o
    XA, XB_ = 16, 64
    a('s_mov_b32 s67, 0')
    rows_finish(g, [(XA, 0), (XB_, 1)])
    g.weight_batch(o.get('wb4', 0))
    row_flag(g, 0)
    row_flag(g, 1)
    g.stamp('r1 done')

def emit_r2(g):
    a = g.a; vq = g.vq
    a('s_mov_b32 s67, 1')
    a('v_mov_b32 v4, 0x3b000000')
    for eta in range(2):
        X = 16 if eta == 0 else 64
        a(f's_lshl_b32 s53, {sC}, 1')
        if eta: a(f's_add_u32 s53, s53, {eta}')
        a('s_lshl_b32 s53, s53, 2')
        a(f's_lshr_b32 s54, {sR}, 3')
        a('s_add_u32 s53, s53, s54')
        a('s_lshl_b32 s53, s53, 2')
        a(f's_and_b32 s54, {sR}, 7')
        a('s_lshr_b32 s54, s54, 1')
        a('s_add_u32 s53, s53, s54')
        a('s_lshl_b32 s53, s53, 5')
        a(f's_add_u32 s53, s53, {F_X}')
        a('v_lshlrev_b32 v5, 2, v1')
        a('v_add_u32 v5, s53, v5')
        if eta == 1:
            row_flag(g, 0)
        g.poll(5, 6, nlanes=8)
        tok_base(a, 's53', eta)
        a(f's_add_u32 s53, s53, {X2}')
        g.vload('v[8:11]', f'v{vL16}', WS, 's53', 0, ' sc1', tag='x2')
        vq.wait('x2')
        g.unpack8(8, X)
        g.ln_multi([(X, X+8, X+36)])
        rows_finish(g, [(X, eta)])
    row_flag(g, 1)
    g.stamp('r2 done', False)

def gelu_fillers(g, acc, eta, tt):
    a = g.a
    F = []
    def addr():
        a(f's_add_u32 s54, s71, {(2*eta+tt)*112*1024}')
        a(f's_add_u32 s55, s70, {(2*eta+tt)*256}')
    F.append(addr)
    for p in range(8):
        x0, x1 = acc + 2*p, acc + 2*p + 1
        t0, t1 = 96 + 2*(p % 2), 97 + 2*(p % 2)
        seq = [f'v_mul_f32 v{t0}, v{x0}, v{x0}', f'v_mul_f32 v{t1}, v{x1}, v{x1}',
               f'v_fma_f32 v{t0}, v{t0}, v126, v127', f'v_fma_f32 v{t1}, v{t1}, v126, v127',
               f'v_mul_f32 v{t0}, v{t0}, v{x0}', f'v_mul_f32 v{t1}, v{t1}, v{x1}',
               f'v_exp_f32 v{t0}, v{t0}', f'v_exp_f32 v{t1}, v{t1}',
               f'v_add_f32 v{t0}, 1.0, v{t0}', f'v_add_f32 v{t1}, 1.0, v{t1}',
               f'v_rcp_f32 v{t0}, v{t0}', f'v_rcp_f32 v{t1}, v{t1}',
               f'v_mul_f32 v{x0}, v{x0}, v{t0}', f'v_mul_f32 v{x1}, v{x1}, v{t1}',
               f'v_cvt_pk_bf16_f32 v{112+p}, v{x0}, v{x1}']
        for s in seq: F.append(lambda s=s: a(s))
        if p == 3: F.append(lambda: g.vstore('v[112:115]', f'v{vL16}', WS, 's54', 0, g.sc, tag=f'h{eta}{tt}'))
        if p == 7: F.append(lambda: g.vstore('v[116:119]', f'v{vL16}', WS, 's54', 1024, g.sc, tag=f'h{eta}{tt}'))
    return F

def emit_g1(g):
    a = g.a; vq = g.vq
    Lskip = a.newlabel('g1skip')
    a('s_barrier')
    a(f's_cmp_ge_u32 {sR}, 28')
    a(f's_cbranch_scc1 {Lskip}')
    a(f's_lshl_b32 s68, {sJ}, 2')
    a(f's_add_u32 s68, s68, {sW}')
    g.mk_srd(SA, sB1, 3584)
    a('v_lshrrev_b32 v14, 5, v1')
    a('v_lshlrev_b32 v15, 3, v14')
    a('s_lshl_b32 s53, s68, 6')
    for i in range(4):
        g.vload(f'v[{96+2*i}:{97+2*i}]', 'v15', srd(SA), 's53', 16*i, w='x2', tag='bias')
    a(f'v_mov_b32 v126, {f2u(-C2)}')
    a(f'v_mov_b32 v127, {f2u(-C1)}')
    a('v_and_b32 v15, 31, v1')
    a('v_and_b32 v12, 15, v1')
    for m in range(8):
        a(f'v_add_u32 v{4+m}, {2*m}, v14')
        a(f'v_xor_b32 v{4+m}, v{4+m}, v12')
        a(f'v_lshlrev_b32 v{4+m}, 4, v{4+m}')
        a(f'v_lshl_add_u32 v{4+m}, v15, 10, v{4+m}')
    a(f's_lshl_b32 s53, {sC}, 1')
    a(f's_add_u32 s53, s53, {sT1}')
    a('s_lshl_b32 s53, s53, 2')
    a('s_mul_i32 s71, s53, 112')
    a('s_lshl_b32 s55, s68, 1')
    a('s_add_u32 s71, s71, s55')
    a('s_lshl_b32 s71, s71, 10')
    a(f's_lshl_b32 s55, {sLAYER}, 23' if not g.fast else 's_mov_b32 s55, 0')
    a('s_add_u32 s71, s71, s55')
    a(f's_add_u32 s71, s71, {H0}')
    a(f's_lshl_b32 s55, {sLAYER}, 6')
    a('s_add_u32 s70, s53, s55')
    a('s_lshl_b32 s70, s70, 8')
    a('s_lshl_b32 s55, s68, 2')
    a('s_add_u32 s70, s70, s55')
    a(f's_add_u32 s70, s70, {F_H}')
    for eta in range(2):
        a(f's_lshl_b32 s53, {sLAYER}, 1')
        if eta: a(f's_add_u32 s53, s53, {eta}')
        a('s_lshl_b32 s53, s53, 3')
        a(f's_add_u32 s53, s53, {sC}')
        a('s_lshl_b32 s53, s53, 7')
        a(f's_lshl_b32 s54, {sT1}, 6')
        a('s_add_u32 s53, s53, s54')
        a(f's_lshl_b32 s54, {sW}, 4')
        a('s_add_u32 s53, s53, s54')
        a('s_lshl_b32 s53, s53, 2')
        a(f's_add_u32 s53, s53, {F_Y}')
        a('v_lshlrev_b32 v14, 2, v1')
        a('v_add_u32 v14, s53, v14')
        g.dstamp('g1', f'poll{eta} start')
        g.poll(14, 15, nlanes=16)
        g.dstamp('g1', f'poll{eta} done')
        if eta == 0: g.stamp('g1 yA seen', True)
        a(f's_lshl_b32 s53, {sC}, 8')
        a(f's_lshl_b32 s54, {sT1}, 7')
        a('s_add_u32 s53, s53, s54')
        a(f's_lshl_b32 s54, {sW}, 5')
        a('s_add_u32 s53, s53, s54')
        if eta: a(f's_add_u32 s53, s53, {4*eta}')
        a('s_lshl_b32 s53, s53, 10')
        a(f's_lshl_b32 s54, {sLAYER}, 21' if not g.fast else 's_mov_b32 s54, 0')
        a('s_add_u32 s53, s53, s54')
        a(f's_add_u32 s53, s53, {Y0}')
        a(f's_lshl_b32 s54, {sW}, 14')
        if eta: a(f's_add_u32 s54, s54, {L_YH[eta]}')
        for i in range(16):
            if i % 4 == 0:
                a(f's_add_u32 m0, s54, {i*1024}')
                if i: a('s_add_u32 s53, s53, 8192')
            a(f'v_xor_b32 v15, {16*i}, v{vL16}')
            off = f' offset:{(i%4)*1024}' if i % 4 else ''
            a(f'buffer_load_dwordx4 v15, {WS}, s53 offen{off} sc1 lds')
            vq.issue(f'dma{eta}')
    for i in range(4):
        a(f'v_lshlrev_b32 v{48+4*i}, 16, v{96+2*i}')
        a(f'v_and_b32 v{49+4*i}, 0xffff0000, v{96+2*i}')
        a(f'v_lshlrev_b32 v{50+4*i}, 16, v{97+2*i}')
        a(f'v_and_b32 v{51+4*i}, 0xffff0000, v{97+2*i}')
    g.dstamp('g1', 'dma issued')
    a('s_barrier')
    g.stamp('g1 yA in lds', True)
    g.dstamp('g1', 'yA in lds')
    tiles = [(0,0), (0,1), (1,0), (1,1)]
    fill = []
    pend_flags = []
    NB, PF = 8, 6
    for ti, (eta, tt) in enumerate(tiles):
        if ti == 2:
            vq.wait('dma1')
            a('s_barrier')
            for m in range(8): a(f'v_add_u32 v{4+m}, 0x10000, v{4+m}')
        acc = 16 + 16*(ti % 2)
        def Breg(k): return f'v[{64+4*(k%NB)}:{67+4*(k%NB)}]'
        def Bload(k): a(f'ds_read_b128 {Breg(k)}, v{4+(k&7)} offset:{tt*32768 + (k>>3)*256}')
        for k in range(PF): Bload(k)
        START = 3
        nf = len(fill)
        done = 0
        for k in range(32):
            if k + PF < 32: Bload(k + PF)
            a(f's_waitcnt lgkmcnt({min(PF, 31-k)})')
            cin = f'v[48:63]' if k == 0 else f'v[{acc}:{acc+15}]'
            a(f'v_mfma_f32_32x32x16_bf16 v[{acc}:{acc+15}], {W1reg(k)}, {Breg(k)}, {cin}')
            if k >= START and nf:
                END = 30
                target = min(nf, ((k - START + 1) * nf + (END - START)) // (END - START + 1))
                while done < target:
                    fill[done](); done += 1
            if k == g.o.get('g1flagslot', 28) and pend_flags and ti >= 2:
                (ptag, peta, ptt) = pend_flags.pop(0)
                vq.wait(ptag)
                a(f's_add_u32 s56, s70, {(2*peta+ptt)*256}')
                g.flag('s56')
        while done < nf:
            fill[done](); done += 1
        g.dstamp('g1', f'tile{ti} done')
        if ti > 0:
            pe, pt = tiles[ti-1]
            pend_flags.append((f'h{pe}{pt}', pe, pt))
        fill = gelu_fillers(g, acc, eta, tt)
    a.nop(12)
    half = len(fill)//2
    for f in fill[:half]: f()
    for (ptag, peta, ptt) in pend_flags:
        vq.wait(ptag)
        a(f's_add_u32 s56, s70, {(2*peta+ptt)*256}')
        g.flag('s56')
    for f in fill[half:]: f()
    g.dstamp('g1', 'tail gelu done')
    vq.wait('h11')
    a(f's_add_u32 s56, s70, {3*256}')
    g.flag('s56')
    a.label(Lskip)
    vq.reset()
    g.stamp('g1 done', True)

def emit_g2(g):
    a = g.a; vq = g.vq
    a('s_barrier')
    g.mk_srd(SA, sB2, 1024)
    a('v_and_b32 v12, 7, v0')
    a('v_lshlrev_b32 v15, 4, v12')
    a(f's_and_b32 s53, {sR}, 7')
    a('s_lshl_b32 s53, s53, 7')
    g.vload('v[8:11]', 'v15', srd(SA), 's53', 0, tag='b2')
    a(f's_cmp_eq_u32 {sLAYER}, 0')
    a(f's_cselect_b32 s{SD_}, s{sWSP}, s{sOUT}')
    a(f's_cselect_b32 s{SD_+1}, s{sWSP+1}, s{sOUT+1}')
    a(f's_mov_b32 s{SD_+2}, 2097152')
    a(f's_cselect_b32 s{SD_+2}, {WS_SIZE}, s{SD_+2}')
    a(f's_mov_b32 s{SD_+3}, 0x00020000')
    a(f's_cselect_b32 s69, {X2}, 0')
    a(f's_and_b32 s{SD_+1}, s{SD_+1}, 0xffff')
    a('v_and_b32 v14, 31, v1')
    a('v_lshrrev_b32 v15, 5, v1')
    a('v_and_b32 v13, 7, v1')
    a(f's_lshl_b32 s53, {sW}, 13')
    for i in range(4):
        a(f'v_add_u32 v{4+i}, {2*i}, v15')
        a(f'v_xor_b32 v{4+i}, v{4+i}, v13')
        a(f'v_lshlrev_b32 v{4+i}, 4, v{4+i}')
        a(f'v_lshl_add_u32 v{4+i}, v14, 8, v{4+i}')
        a(f'v_add_u32 v{4+i}, s53, v{4+i}')
    a('v_lshrrev_b32 v14, 3, v0')
    a('v_and_b32 v13, 7, v14')
    a('v_and_b32 v15, 3, v12')
    a('v_lshlrev_b32 v15, 1, v15')
    a('v_xor_b32 v16, v15, v13')
    a('v_or_b32 v15, 1, v15')
    a('v_xor_b32 v17, v15, v13')
    a('v_lshrrev_b32 v15, 2, v12')
    a('v_lshlrev_b32 v15, 7, v15')
    a('v_lshl_add_u32 v15, v14, 8, v15')
    a('v_lshl_add_u32 v16, v16, 4, v15')
    a('v_lshl_add_u32 v17, v17, 4, v15')
    a(f's_lshr_b32 s53, {sR}, 3')
    a('s_lshl_b32 s53, s53, 5')
    a('v_add_u32 v15, s53, v14')
    a('v_lshrrev_b32 v18, 2, v15')
    a('v_lshlrev_b32 v18, 3, v18')
    a('v_and_b32 v15, 3, v15')
    a('v_add_u32 v18, v18, v15')
    a(f's_lshl_b32 s53, {sC}, 8')
    a('v_add_u32 v18, s53, v18')
    a('v_lshlrev_b32 v18, 10, v18')
    a(f's_and_b32 s53, {sR}, 7')
    a('s_lshl_b32 s53, s53, 7')
    a('v_lshl_add_u32 v18, v12, 4, v18')
    a('v_add_u32 v18, s53, v18')
    a(f's_lshr_b32 s70, {sR}, 4')
    a(f's_lshl_b32 s53, {sC}, 1')
    a('s_add_u32 s53, s53, s70')
    a('s_lshl_b32 s53, s53, 2')
    a(f's_lshr_b32 s54, {sR}, 3')
    a('s_and_b32 s54, s54, 1')
    a('s_add_u32 s70, s53, s54')
    a('s_mul_i32 s71, s70, 112')
    a(f's_mul_i32 s54, {sW}, 28')
    a('s_add_u32 s71, s71, s54')
    a('s_lshl_b32 s71, s71, 10')
    a(f's_lshl_b32 s54, {sLAYER}, 23' if not g.fast else 's_mov_b32 s54, 0')
    a('s_add_u32 s71, s71, s54')
    a(f's_add_u32 s71, s71, {H0}')
    a(f's_lshl_b32 s53, {sLAYER}, 6')
    a('s_add_u32 s70, s70, s53')
    a('s_lshl_b32 s70, s70, 8')
    a(f's_mul_i32 s54, {sW}, 56')
    a('s_add_u32 s70, s70, s54')
    a(f's_add_u32 s70, s70, {F_H}')
    a(f's_lshl_b32 s68, {sC}, 3')
    a(f's_lshr_b32 s54, {sR}, 3')
    a('s_add_u32 s68, s68, s54')
    a('s_lshl_b32 s68, s68, 2')
    a(f's_add_u32 s68, s68, {sW}')
    a('s_lshl_b32 s68, s68, 3')
    a(f's_and_b32 s54, {sR}, 7')
    a('s_add_u32 s68, s68, s54')
    a('s_lshl_b32 s68, s68, 2')
    a(f's_add_u32 s68, s68, {F_X}')
    NW = 16
    def Hreg(i): return f'v[{64+4*(i%NW)}:{67+4*(i%NW)}]'
    def Hload(eta, i):
        a(f's_add_u32 s54, s71, {eta*2*112*1024 + (i//4)*4096}')
        g.vload(Hreg(i), f'v{vL16}', WS, 's54', (i%4)*1024, ' sc1', tag=f'hf{eta}_{i}')
    def start_half(eta):
        a('v_lshlrev_b32 v14, 2, v1')
        a(f's_add_u32 s53, s70, {eta*2*256}')
        a('v_add_u32 v14, s53, v14')
        g.poll(14, 15, nlanes=14)
        a(f's_lshl_b32 s53, {sLAYER}, 22' if not g.fast else 's_mov_b32 s53, 0')
        a(f's_add_u32 s53, s53, {X1 + eta*4096}')
        g.vload(f'v[{28+eta*32}:{31+eta*32}]', 'v18', WS, 's53', 0, ' sc1', tag=f'res{eta}')
        for i in range(NW): Hload(eta, i)
    def mfmas(eta, hook=None):
        for i in range(28):
            vq.wait(f'hf{eta}_{i}')
            for nt in range(2):
                acc = f'a[{224+16*nt}:{239+16*nt}]'
                cin = '0' if i == 0 else acc
                a(f'v_mfma_f32_32x32x16_bf16 {acc}, {W2reg(nt,i)}, {Hreg(i)}, {cin}')
            if i + NW < 28: Hload(eta, i + NW)
            if hook: hook(i)
    def reduce_write(eta):
        a.nop(12)
        LR = eta*32768
        for nt in range(2):
            for i in range(4):
                b = 224 + 16*nt + 4*i
                a(f'ds_write_b128 v{4+i}, a[{b}:{b+3}] offset:{LR + nt*128}')
        a('s_waitcnt lgkmcnt(0)')
        a('s_barrier')
    def reduce_finish(eta):
        LR = eta*32768
        for p in range(4):
            a(f'ds_read_b128 v[{32+8*p}:{35+8*p}], v16 offset:{LR + p*8192}') if False else None
        P = [32, 40, 48, 120]
        return
    vq.wait('b2')
    g.unpack8(8, 20)
    def finish_half(eta):
        LR = eta*32768
        res = 28 + eta*32
        for p in range(3):
            a(f'ds_read_b128 v[{32+8*p}:{35+8*p}], v16 offset:{LR + p*8192}')
            a(f'ds_read_b128 v[{36+8*p}:{39+8*p}], v17 offset:{LR + p*8192}')
        a(f'ds_read_b128 v[8:11], v16 offset:{LR + 3*8192}')
        a(f'ds_read_b128 v[56:59], v17 offset:{LR + 3*8192}')
        a('s_waitcnt lgkmcnt(2)')
        def pr(b): return f'v[{b}:{b+1}]'
        for e in range(4): a(f'v_pk_add_f32 {pr(32+2*e)}, {pr(32+2*e)}, {pr(40+2*e)}')
        for e in range(4): a(f'v_pk_add_f32 {pr(48+2*e)}, {pr(48+2*e)}, {pr(20+2*e)}')
        a('s_waitcnt lgkmcnt(0)')
        a(f'v_pk_add_f32 {pr(32)}, {pr(32)}, {pr(8)}'); a(f'v_pk_add_f32 {pr(34)}, {pr(34)}, {pr(10)}')
        a(f'v_pk_add_f32 {pr(36)}, {pr(36)}, {pr(56)}'); a(f'v_pk_add_f32 {pr(38)}, {pr(38)}, {pr(58)}')
        for e in range(4): a(f'v_pk_add_f32 {pr(32+2*e)}, {pr(32+2*e)}, {pr(48+2*e)}')
        g.pack8(32, 40); g.unpack8(40, 32)
        vq.wait(f'res{eta}')
        g.unpack8(res, 48)
        for e in range(4): a(f'v_pk_add_f32 {pr(32+2*e)}, {pr(32+2*e)}, {pr(48+2*e)}')
        g.pack8(32, 40)
        a(f's_add_u32 s53, s69, {eta*4096}')
        g.vstore('v[40:43]', 'v18', srd(SD_), 's53', 0, g.sc, tag=f'xo{eta}')
    def xflag(eta):
        vq.wait(f'xo{eta}')
        a(f's_add_u32 s53, s68, {eta*512}')
        g.flag('s53')
    g.dstamp('g2', 'g2 begin')
    start_half(0)
    g.stamp('g2 hA seen', True)
    g.dstamp('g2', 'A issued')
    def hookA(i):
        if i == 0: g.dstamp('g2', 'A first frag')
        if i == 15: g.dstamp('g2', 'A 16 frags')
    mfmas(0, hookA)
    g.dstamp('g2', 'A mfma done')
    reduce_write(0)
    g.dstamp('g2', 'A red written')
    start_half(1)
    g.dstamp('g2', 'B issued')
    finish_half(0)
    g.dstamp('g2', 'A finished')
    def hook(i):
        if i == 10: xflag(0)
        if i == 0: g.dstamp('g2', 'B first frag')
    mfmas(1, hook)
    g.dstamp('g2', 'B mfma done')
    reduce_write(1)
    finish_half(1)
    g.dstamp('g2', 'B finished')
    xflag(1)
    g.stamp('g2 done', True)

def emit_mlp_variant(g, sc, sfx):
    a = g.a
    g.sc = sc
    emit_r1b(g)
    if g.stop == 'r1': a('s_branch L_fin'); return
    a(f's_mov_b32 {sLAYER}, 0')
    a.label('L_layer' + sfx)
    emit_g1(g)
    if g.stop == 'g1': a('s_branch L_fin'); return
    emit_g2(g)
    if g.stop == 'g2': a('s_branch L_fin'); return
    a(f's_cmp_eq_u32 {sLAYER}, 1')
    a('s_cbranch_scc1 L_fin')
    emit_r2(g)
    if g.stop == 'r2': a('s_branch L_fin'); return
    a(f's_mov_b32 {sLAYER}, 1')
    a('s_branch L_layer' + sfx)

def emit_mlp(g):
    a = g.a
    emit_r1a(g)
    import copy
    ops0 = list(g.vq.ops); wl0 = list(g.wlist)
    a(f's_cmp_eq_u32 {sFAST}, 0')
    a('s_cbranch_scc1 L_slow')
    n0, names0 = g.nstamp, list(g.stamp_names)
    emit_mlp_variant(g, '', '_f')
    a.label('L_slow')
    g.vq.ops = ops0; g.wlist = wl0
    st = g.stamps; g.stamps = False
    emit_mlp_variant(g, ' sc1', '_s')
    g.stamps = st
```

```python
from gen2 import *
from gen2_mlp import tok_base, yflag_addr, emit_r1a
from gen3_mlp import poll_issue, poll_check, spread, DUMMY

def pr(b): return f'v[{b}:{b+1}]'
VINV = 108

def rows_finish(g, rows, scx, scy, part=None):
    a = g.a
    if part in (None, 1):
        for (X, eta) in rows:
            a(f's_lshl_b32 s53, {sW}, 10')
            a(f's_add_u32 s53, s53, {L_G + eta*4096}')
            a(f'v_add_u32 v{X+28}, s53, v{vL16}')
            a(f'ds_read_b128 v[{X+16}:{X+19}], v{X+28}')
        a('s_waitcnt lgkmcnt(0)')
        for (X, eta) in rows: g.unpack8(X+16, X+20)
        for (X, eta) in rows:
            for i in range(4):
                a(f'v_pk_fma_f32 {pr(X+2*i)}, {pr(X+8+2*i)}, {pr(X+20+2*i)}, {pr(X+2*i)}')
        for (X, eta) in rows: g.pack8(X, X+32)
        for (X, eta) in rows: g.unpack8(X+32, X)
        for (X, eta) in rows:
            a(f's_add_u32 s54, s75, {X1 + eta*4096 + (0 if g.fast else g.rl*0x400000)}')
            g.vstore(f'v[{X+32}:{X+35}]', f'v{vL16}', WS, 's54', 0, scx, tag=f'rx{eta}')
    if part in (None, 2):
        if g.o.get('ln2an', 1):
            g.ln_multi([(X, X+8, X+36) for (X, eta) in rows], double=True)
        else:
            g.ln_multi([(X, X+8, X+36) for (X, eta) in rows])
            g.ln_multi([(X+8, X+8, X+36) for (X, eta) in rows])
        for (X, eta) in rows: g.pack8(X+8, X+16)
        for (X, eta) in rows:
            a(f's_add_u32 s54, s75, {Y0 + eta*4096 + (0 if g.fast else g.rl*0x200000)}')
            g.vstore(f'v[{X+16}:{X+19}]', f'v{vL16}', WS, 's54', 0, scy, tag=f'ry{eta}')

def row_flag(g, eta):
    a = g.a
    g.vq.wait(f'ry{eta}')
    a(f's_add_u32 s53, s61, {(g.rl*2 + eta)*8*128*4}')
    g.flag('s53')

def rowB_fillers(g):
    a = g.a; F = []
    def I(s): F.append(lambda s=s: a(s))
    def N(n): F.append(lambda: a.nop(n))
    X = 32
    steps = ['quad_perm:[1,0,3,2] row_mask:0xf bank_mask:0xf', 'quad_perm:[2,3,0,1] row_mask:0xf bank_mask:0xf',
             'row_half_mirror row_mask:0xf bank_mask:0xf', 'row_mirror row_mask:0xf bank_mask:0xf',
             'row_bcast:15 row_mask:0xa bank_mask:0xf', 'row_bcast:31 row_mask:0xc bank_mask:0xf']
    def unpack(src):
        for i in range(4):
            I(f'v_lshlrev_b32 v{X+2*i}, 16, v{src+i}'); I(f'v_and_b32 v{X+2*i+1}, 0xffff0000, v{src+i}')
    def stats(double):
        I(f'v_add_f32 v124, v{X}, v{X+1}'); I(f'v_mul_f32 v125, v{X}, v{X}'); I(f'v_fmac_f32 v125, v{X+1}, v{X+1}')
        for i in range(2, 8):
            I(f'v_add_f32 v124, v124, v{X+i}'); I(f'v_fmac_f32 v125, v{X+i}, v{X+i}')
        N(2)
        for st in steps:
            I(f'v_add_f32_dpp v124, v124, v124 {st}'); I(f'v_add_f32_dpp v125, v125, v125 {st}'); N(1)
        I('v_readlane_b32 s58, v124, 63'); I('v_readlane_b32 s59, v125, 63'); N(2)
        I('v_mov_b32 v126, s58'); I('v_mov_b32 v127, s59')
        I('v_mul_f32 v126, 0x3b000000, v126'); I('v_mul_f32 v127, 0x3b000000, v127')
        I('v_fma_f32 v127, -v126, v126, v127'); I('v_max_f32 v127, 0, v127')
        if double:
            I('v_add_f32 v124, 0x3727c5ac, v127'); I('v_rsq_f32 v124, v124'); N(1)
            I('v_mul_f32 v127, v127, v124'); I('v_fmaak_f32 v127, v127, v124, 0x3727c5ac'); I('v_rsq_f32 v127, v127'); N(1)
            I('v_mul_f32 v127, v127, v124')
        else:
            I('v_add_f32 v127, 0x3727c5ac, v127'); I('v_rsq_f32 v127, v127'); N(1)
        I('v_mul_f32 v126, v126, v127')
    F.append(lambda: g.vq.wait('x2b'))
    unpack(40)
    stats(False)
    for i in range(8):
        I(f'v_fma_f32 v109, v{X+i}, v127, -v126')
        I(f'v_lshlrev_b32 v110, 16, v{44+i//2}' if i % 2 == 0 else f'v_and_b32 v110, 0xffff0000, v{44+i//2}')
        I(f'v_fma_f32 v{X+i}, v109, v110, v{X+i}')
    for i in range(4): I(f'v_cvt_pk_bf16_f32 v{40+i}, v{X+2*i}, v{X+2*i+1}')
    unpack(40)
    rl = g.cur_layer
    def stx():
        a(f's_add_u32 s54, s75, {X1 + 4096 + (0 if g.fast else rl*0x400000)}')
        g.vstore('v[40:43]', f'v{vL16}', WS, 's54', 0, (g.sc_x3 if rl else ' sc1'), tag='rx1')
    F.append(stx)
    stats(True)
    for i in range(8): I(f'v_fma_f32 v{X+i}, v{X+i}, v127, -v126')
    for i in range(4): I(f'v_cvt_pk_bf16_f32 v{44+i}, v{X+2*i}, v{X+2*i+1}')
    def sty():
        a(f's_add_u32 s54, s75, {Y0 + 4096 + (0 if g.fast else rl*0x200000)}')
        g.vstore('v[44:47]', f'v{vL16}', WS, 's54', 0, (g.sc_y1 if rl else g.sc_y0), tag='ry1')
    F.append(sty)
    return F

def mlp_setup0(g):
    a = g.a
    tok_base(a, 's75', 0)
    a(f's_lshl_b32 s61, {sC}, 7')
    a(f's_lshl_b32 s54, {sR}, 2')
    a('s_add_u32 s61, s61, s54')
    a(f's_add_u32 s61, s61, {sW}')
    a('s_lshl_b32 s61, s61, 2')
    a(f's_add_u32 s61, s61, {F_Y}')

def mlp_setup(g, part=1):
    a = g.a
    if part == 0:
        mlp_setup0(g); return
    a(f's_lshl_b32 s53, {sC}, 7')
    a(f's_lshl_b32 s54, {sT1}, 6')
    a('s_add_u32 s53, s53, s54')
    a(f's_lshl_b32 s54, {sW}, 3')
    a('s_add_u32 s53, s53, s54')
    a('s_lshl_b32 s53, s53, 2')
    a(f's_add_u32 s53, s53, {F_Y}')
    a('v_and_b32 v120, 7, v1')
    a('v_bfe_u32 v12, v1, 3, 1')
    a('v_lshl_add_u32 v120, v12, 5, v120')
    a('v_lshlrev_b32 v120, 2, v120')
    a('v_add_u32 v120, s53, v120')
    a('v_lshrrev_b32 v14, 5, v1')
    a('v_and_b32 v15, 31, v1')
    a('v_and_b32 v12, 15, v1')
    for m in range(8):
        a(f'v_add_u32 v{4+m}, {2*m}, v14')
        a(f'v_xor_b32 v{4+m}, v{4+m}, v12')
        a(f'v_lshlrev_b32 v{4+m}, 4, v{4+m}')
        a(f'v_lshl_add_u32 v{4+m}, v15, 10, v{4+m}')
    a(f's_and_b32 s54, {sW}, 1')
    a('s_lshl_b32 s54, s54, 7')
    a(f'v_xor_b32 v121, s54, v{vL16}')
    a(f's_lshl_b32 s68, {sJ}, 2')
    a(f's_add_u32 s68, s68, {sW}')
    a(f's_lshl_b32 s53, {sC}, 1')
    a(f's_add_u32 s53, s53, {sT1}')
    a('s_lshl_b32 s53, s53, 2')
    a('s_mul_i32 s71, s53, 112')
    a('s_lshl_b32 s55, s68, 1')
    a('s_add_u32 s71, s71, s55')
    a('s_lshl_b32 s71, s71, 10')
    a(f's_add_u32 s71, s71, {H0}')
    a('s_lshl_b32 s70, s53, 8')
    a('s_lshl_b32 s55, s68, 2')
    a('s_add_u32 s70, s70, s55')
    a(f's_add_u32 s70, s70, {F_H}')
    a('s_lshl_b32 s55, s2, 13')
    a(f's_add_u32 s55, s55, {DUMMY}')
    a(f's_cmp_ge_u32 {sR}, 28')
    a('s_cselect_b32 s71, s55, s71')
    a('s_cselect_b32 s70, s55, s70')
    a(f's_lshl_b32 s53, {sC}, 8')
    a(f's_lshl_b32 s54, {sT1}, 7')
    a('s_add_u32 s53, s53, s54')
    a(f's_lshl_b32 s54, {sW}, 4')
    a('s_add_u32 s53, s53, s54')
    a('s_lshl_b32 s53, s53, 10')
    a(f's_add_u32 s72, s53, {Y0}')
    a(f's_lshl_b32 s73, {sW}, 13')
    a(f's_lshr_b32 s54, {sR}, 4')
    a(f's_lshl_b32 s53, {sC}, 1')
    a('s_add_u32 s53, s53, s54')
    a('s_lshl_b32 s53, s53, 2')
    a(f's_lshr_b32 s54, {sR}, 3')
    a('s_and_b32 s54, s54, 1')
    a('s_add_u32 s55, s53, s54')
    a('s_lshl_b32 s53, s55, 8')
    a(f's_mul_i32 s54, {sW}, 56')
    a('s_add_u32 s53, s53, s54')
    a(f's_add_u32 s53, s53, {F_H}')
    a('v_min_u32 v119, 13, v1')
    a('v_lshlrev_b32 v119, 2, v119')
    a('v_add_u32 v119, s53, v119')
    a('s_mul_i32 s69, s55, 112')
    a(f's_mul_i32 s54, {sW}, 28')
    a('s_add_u32 s69, s69, s54')
    a('s_lshl_b32 s69, s69, 10')
    a(f's_add_u32 s69, s69, {H0}')
    a('v_and_b32 v15, 7, v0')
    a('v_lshrrev_b32 v112, 3, v0')
    a('v_and_b32 v12, 7, v112')
    a('v_and_b32 v113, 3, v15')
    a('v_lshlrev_b32 v113, 1, v113')
    a('v_or_b32 v114, 1, v113')
    a('v_xor_b32 v113, v113, v12')
    a('v_xor_b32 v114, v114, v12')
    a('v_lshrrev_b32 v12, 2, v15')
    a('v_lshlrev_b32 v12, 7, v12')
    a('v_lshl_add_u32 v12, v112, 8, v12')
    a('v_lshl_add_u32 v113, v113, 4, v12')
    a('v_lshl_add_u32 v114, v114, 4, v12')
    a(f's_lshr_b32 s53, {sR}, 3')
    a('s_lshl_b32 s53, s53, 5')
    a('v_add_u32 v12, s53, v112')
    a('v_lshrrev_b32 v112, 2, v12')
    a('v_lshlrev_b32 v112, 3, v112')
    a('v_and_b32 v12, 3, v12')
    a('v_add_u32 v112, v112, v12')
    a(f's_lshl_b32 s53, {sC}, 8')
    a('v_add_u32 v112, s53, v112')
    a('v_lshlrev_b32 v112, 10, v112')
    a(f's_and_b32 s53, {sR}, 7')
    a('s_lshl_b32 s53, s53, 7')
    a('v_lshl_add_u32 v112, v15, 4, v112')
    a('v_add_u32 v112, s53, v112')
    a('v_lshlrev_b32 v123, 4, v15')
    a('v_add_u32 v123, s53, v123')
    a('v_and_b32 v12, 31, v1')
    a('v_lshrrev_b32 v13, 5, v1')
    a('v_and_b32 v14, 7, v1')
    a(f's_lshl_b32 s53, {sW}, 13')
    for i in range(4):
        a(f'v_add_u32 v{115+i}, {2*i}, v13')
        a(f'v_xor_b32 v{115+i}, v{115+i}, v14')
        a(f'v_lshlrev_b32 v{115+i}, 4, v{115+i}')
        a(f'v_lshl_add_u32 v{115+i}, v12, 8, v{115+i}')
        a(f'v_add_u32 v{115+i}, s53, v{115+i}')
    a(f's_lshl_b32 s67, {sC}, 3')
    a(f's_lshr_b32 s54, {sR}, 3')
    a('s_add_u32 s67, s67, s54')
    a('s_lshl_b32 s67, s67, 2')
    a(f's_add_u32 s67, s67, {sW}')
    a('s_lshl_b32 s67, s67, 3')
    a(f's_and_b32 s54, {sR}, 7')
    a('s_add_u32 s67, s67, s54')
    a('s_lshl_b32 s67, s67, 2')
    a(f's_add_u32 s67, s67, {F_X}')
    a(f's_lshl_b32 s53, {sC}, 3')
    a(f's_lshr_b32 s54, {sR}, 3')
    a('s_add_u32 s53, s53, s54')
    a('s_lshl_b32 s53, s53, 2')
    a(f's_and_b32 s54, {sR}, 7')
    a('s_lshr_b32 s54, s54, 1')
    a('s_add_u32 s53, s53, s54')
    a('s_lshl_b32 s53, s53, 5')
    a(f's_add_u32 s53, s53, {F_X}')
    a('v_and_b32 v122, 7, v1')
    a('v_lshlrev_b32 v122, 2, v122')
    a('v_add_u32 v122, s53, v122')

def gelu_fillers(g, acc, u, T, P, usepk, sc):
    a = g.a
    lay = g.cur_layer
    F = []
    F.append(lambda: a(f's_add_u32 s74, s71, {u*112*1024 + (0 if g.fast else lay*0x800000)}'))
    if usepk:
        seqs = []
        for p in range(8):
            x0 = acc + 2*p; t0 = T + 2*(p % 2); t1 = t0 + 1
            X = pr(x0); Tt = pr(t0)
            seqs.append([f'v_pk_mul_f32 {Tt}, {X}, {X}',
                   f'v_pk_fma_f32 {Tt}, {Tt}, v[12:13], v[12:13] op_sel:[0,0,1] op_sel_hi:[1,0,1]',
                   f'v_pk_mul_f32 {Tt}, {Tt}, {X}',
                   f'v_exp_f32 v{t0}, v{t0}', f'v_exp_f32 v{t1}, v{t1}',
                   f'v_pk_add_f32 {Tt}, {Tt}, v[14:15]',
                   f'v_rcp_f32 v{t0}, v{t0}', f'v_rcp_f32 v{t1}, v{t1}',
                   f'v_pk_mul_f32 {X}, {X}, {Tt}',
                   f'v_cvt_pk_bf16_f32 v{P+p}, v{x0}, v{x0+1}'])
        for p in range(0, 8, 2):
            for s0, s1 in zip(seqs[p], seqs[p+1]):
                F.append(lambda s=s0: a(s)); F.append(lambda s=s1: a(s))
            if p == 2: F.append(lambda: g.vstore(f'v[{P}:{P+3}]', f'v{vL16}', WS, 's74', 0, sc, tag=f'h{u}'))
            if p == 6: F.append(lambda: g.vstore(f'v[{P+4}:{P+7}]', f'v{vL16}', WS, 's74', 1024, sc, tag=f'h{u}'))
        return F
    for p in range(8):
        x0, x1 = acc + 2*p, acc + 2*p + 1
        t0 = T + 2*(p % 2); t1 = t0 + 1
        seq = [f'v_mul_f32 v{t0}, v{x0}, v{x0}', f'v_mul_f32 v{t1}, v{x1}, v{x1}',
               f'v_fma_f32 v{t0}, v{t0}, v12, v13', f'v_fma_f32 v{t1}, v{t1}, v12, v13',
               f'v_mul_f32 v{t0}, v{t0}, v{x0}', f'v_mul_f32 v{t1}, v{t1}, v{x1}',
               f'v_exp_f32 v{t0}, v{t0}', f'v_exp_f32 v{t1}, v{t1}',
               f'v_add_f32 v{t0}, 1.0, v{t0}', f'v_add_f32 v{t1}, 1.0, v{t1}',
               f'v_rcp_f32 v{t0}, v{t0}', f'v_rcp_f32 v{t1}, v{t1}',
               f'v_mul_f32 v{x0}, v{x0}, v{t0}', f'v_mul_f32 v{x1}, v{x1}, v{t1}',
               f'v_cvt_pk_bf16_f32 v{P+p}, v{x0}, v{x1}']
        for s in seq: F.append(lambda s=s: a(s))
        if p == 3: F.append(lambda: g.vstore(f'v[{P}:{P+3}]', f'v{vL16}', WS, 's74', 0, sc, tag=f'h{u}'))
        if p == 7: F.append(lambda: g.vstore(f'v[{P+4}:{P+7}]', f'v{vL16}', WS, 's74', 1024, sc, tag=f'h{u}'))
    return F

def hflag(g, u):
    g.vq.wait(f'h{u}')
    g.a(f's_add_u32 s56, s70, {u*256 + g.cur_layer*64*256}')
    g.flag('s56')

def emit_layer(g, idle=False):
    a = g.a; vq = g.vq; o = g.o
    lay = g.cur_layer
    sch = g.sc_h
    yoff = 0 if g.fast else lay*0x200000
    hoff = 0 if g.fast else lay*0x800000
    xoff = 0 if g.fast else lay*0x400000
    if idle:
        a('s_barrier')
        if (lay == 1 and o.get('hideB', 1)) or (lay == 0 and o.get('hideB0', 0)):
            if lay == 1:
                poll_issue(g, 126, 125, 'pxB'); poll_check(g, 126, 125, 'pxB')
                a(f's_add_u32 s53, s75, {X2 + 4096}')
                g.vload('v[40:43]', f'v{vL16}', WS, 's53', 0, ' sc1', tag='x2b')
            a('s_waitcnt lgkmcnt(0)')
            for f in rowB_fillers(g): f()
            g.rl = lay
            row_flag(g, 1)
        g.weight_batch(100)
        a(f'v_add_u32 v100, {lay*64*256}, v119'); a('v_add_u32 v101, 512, v100')
        poll_issue(g, 102, 100, 'phA')
    else:
        a.comment(f'=== G1 layer {lay} ===')
        hideB = (lay == 1 and o.get('hideB', 1)) or (lay == 0 and o.get('hideB0', 0))
        g.dstamp('g1', 'g1 begin')
        a(f'v_add_u32 v100, {lay*2*8*128*4}, v120')
        a(f'v_add_u32 v101, {(lay*2+1)*8*128*4}, v120')
        poll_issue(g, 102, 100, 'pyA')
        a('s_barrier')
        g.mk_srd(SA, sB1, 3584)
        a('v_lshrrev_b32 v14, 5, v1')
        a('v_lshlrev_b32 v15, 3, v14')
        a('s_lshl_b32 s53, s68, 6')
        for i in range(4):
            g.vload(f'v[{104+2*i}:{105+2*i}]', 'v15', srd(SA), 's53', 16*i, w='x2', tag='bias')
        a(f'v_mov_b32 v12, {f2u(-C2)}')
        a(f'v_mov_b32 v13, {f2u(-C1)}')
        a('v_mov_b32 v14, 1.0'); a('v_mov_b32 v15, 1.0')
        def dma_list(eta, tt):
            L = []
            for i in range(8):
                def f(i=i):
                    if i % 4 == 0:
                        a(f's_add_u32 m0, s73, {L_YH[eta] + tt*32768 + i*1024}')
                        a(f's_add_u32 s57, s72, {(64*tt + 8*(i>>2) + 4*eta)*1024 + yoff}')
                    a(f'v_xor_b32 v103, {16*i}, v121')
                    off = f' offset:{(i%4)*1024}' if i % 4 else ''
                    a(f'buffer_load_dwordx4 v103, {WS}, s57 offen{off} sc1 lds')
                    vq.issue(f'dma{eta}{tt}')
                L.append(f)
            return L
        g.dstamp('g1', 'setup done')
        g.dstamp('r1', 'g1 pre-check')
        poll_check(g, 102, 100, 'pyA')
        g.dstamp('r1', 'yA seen')
        g.stamp('g1 yA seen')
        for f in dma_list(0, 0): f()
        nA1 = o.get('nA1pre', 0)
        for f in dma_list(0, 1)[:nA1]: f()
        if not hideB: poll_issue(g, 102, 101, 'pyB')
        elif lay == 1: poll_issue(g, 126, 125, 'pxB')
        vq.wait('bias')
        for i in range(4):
            a(f'v_lshlrev_b32 v{48+4*i}, 16, v{104+2*i}')
            a(f'v_and_b32 v{49+4*i}, 0xffff0000, v{104+2*i}')
            a(f'v_lshlrev_b32 v{50+4*i}, 16, v{105+2*i}')
            a(f'v_and_b32 v{51+4*i}, 0xffff0000, v{105+2*i}')
        if hideB and lay == 1:
            poll_check(g, 126, 125, 'pxB')
            a(f's_add_u32 s53, s75, {X2 + 4096}')
            g.vload('v[40:43]', f'v{vL16}', WS, 's53', 0, ' sc1', tag='x2b')
        g.dstamp('r1', 'dma issued')
        vq.wait('dma00')
        g.dstamp('r1', 'dma00 landed')
        a('s_barrier')
        g.dstamp('r1', 'in lds')
        g.stamp('g1 yA in lds')
        fill = []
        NB, PF = 8, 7
        WG_ = o.get('g1wait', 4)
        XT = o.get('xtile', 1)
        def Breg(k): return f'v[{64+4*(k%NB)}:{67+4*(k%NB)}]'
        def Bload(u, k): a(f'ds_read_b128 {Breg(k)}, v{4+(k&7)} offset:{(u&1)*32768 + (k>>3)*256}')
        if hideB:
            fill = rowB_fillers(g)
        def tile_ready(u):
            vq.wait(f'dma{u>>1}{u&1}'); a('s_barrier')
            if u == 2:
                for m_ in range(8): a(f'v_add_u32 v{4+m_}, 0x10000, v{4+m_}')
        for u in range(4):
            eta, tt = u >> 1, u & 1
            xt_in = XT and not (hideB and u == 2)
            xt_out = XT and u < 3 and not (hideB and u == 1)
            if u >= 1 and not xt_in: tile_ready(u)
            g.dstamp('g1', f'tile{u} start')
            acc = 16 + 16*(u % 2)
            if u == 0 or not xt_in:
                for k in range(PF): Bload(u, k)
            extra = {}
            if u == 0:
                for i, f in enumerate(dma_list(0, 1)[nA1:]): extra.setdefault(i, []).append(f)
                if not hideB:
                    pb = o.get('pbslot', 8)
                    extra.setdefault(pb, []).append(lambda: poll_check(g, 102, 101, 'pyB'))
                    for i, f in enumerate(dma_list(1, 0) + dma_list(1, 1)): extra.setdefault(min(31, pb + 1 + (i * (30 - pb)) // 16), []).append(f)
            if u == 1 and hideB:
                g.rl = lay
                extra.setdefault(o.get('hbflag', 0), []).append(lambda: row_flag(g, 1))
                extra.setdefault(o.get('hbiss', 4), []).append(lambda: poll_issue(g, 102, 101, 'pyB'))
                pb = o.get('hbchk', 9)
                extra.setdefault(pb, []).append(lambda: poll_check(g, 102, 101, 'pyB'))
                for i, f in enumerate(dma_list(1, 0) + dma_list(1, 1)): extra.setdefault(min(31, pb + 1 + (i * (30 - pb)) // 16), []).append(f)
            if u == 3:
                extra.setdefault(o.get('fA0', 2), []).append(lambda: hflag(g, 0))
                extra.setdefault(o.get('fA1', 28), []).append(lambda: hflag(g, 1))
                extra.setdefault(29, []).append(lambda: (a(f'v_add_u32 v100, {lay*64*256}, v119'), a('v_add_u32 v101, 512, v100'), poll_issue(g, 102, 100, 'phA')))
            u0 = o.get('wtile0', 1)
            if g.wlist and u >= u0:
                nper = (len(g.wlist) + (3 - u)) // (4 - u)
                span = o.get('wspan', 23)
                for sl in [1 + (i * span) // nper for i in range(nper)]:
                    extra.setdefault(sl, []).append(lambda: g.weight_batch(1))
            if xt_out:
                extra.setdefault(25, []).insert(0, lambda u=u: tile_ready(u + 1))
            sp = spread(fill, 32, (o.get('hbstart', 5) if (u == 0) else 4), (o.get('hbend', 24) if u == 0 else o.get('gend', 27)))
            done = 0
            for k in range(32):
                if k % WG_ == 0:
                    need = min(k + WG_ - 1, 31)
                    if xt_out: issued = k + PF - 1 if k + PF - 1 <= 31 else 31 + max(0, k - 25)
                    else: issued = min(k + PF - 1, 31)
                    a(f's_waitcnt lgkmcnt({max(issued - need, 0)})')
                cin = f'v[48:63]' if k == 0 else f'v[{acc}:{acc+15}]'
                a(f'v_mfma_f32_32x32x16_bf16 v[{acc}:{acc+15}], {W1reg(k)}, {Breg(k)}, {cin}')
                if k + PF < 32: Bload(u, k + PF)
                while done < sp[k]: fill[done](); done += 1
                for f in extra.get(k, []): f()
                if xt_out and k >= 25: Bload(u + 1, k - 25)
            while done < len(fill): fill[done](); done += 1
            g.dstamp('g1', f'tile{u} done')
            if u < 3: fill = gelu_fillers(g, acc, u, 96, 104, False, sch)
            else: fill = gelu_fillers(g, acc, u, 96, 48, True, sch)
        g.dstamp('g1', 'tiles done')
    if not idle:
        for m in range(8): a(f'v_subrev_u32 v{4+m}, 0x10000, v{4+m}')
    NW = 12
    HW = 64
    def Hreg(s): return f'v[{HW+4*(s%NW)}:{HW+3+4*(s%NW)}]'
    def Hload(s):
        eta, i = divmod(s, 28)
        a(f's_add_u32 s54, s69, {eta*2*112*1024 + (i//4)*4096 + hoff}')
        g.vload(Hreg(s), f'v{vL16}', WS, 's54', (i%4)*1024, ' sc1', tag=f'hf{s}')
    a('v_mov_b32 v124, v100'); a('v_mov_b32 v125, v101')
    poll_check(g, 102, 100, 'phA')
    g.stamp('g2 hA seen')
    fill = gelu_fillers(g, 32, 3, 60, 48, True, sch)
    for s in range(NW): Hload(s)
    g.dstamp('g2', 'A loads issued')
    if not idle:
        a.nop(2)
        half = len(fill)//2
        for f in fill[:half]: f()
        hflag(g, 2)
        for f in fill[half:]: f()
    g.stamp('g1 done')
    g.dstamp('g2', 'tail done')
    g.mk_srd(SA, sB2, 1024)
    g.vload('v[56:59]', 'v123', srd(SA), 0, 0, tag='b2')
    a(f's_mov_b32 s53, {X1 + xoff}')
    g.vload('v[60:63]', 'v112', WS, 's53', 0, ' sc1', tag='res0')
    if lay == 0:
        OUT = WS; obase = X2
    else:
        g.mk_srd(SB, sOUT, 2097152); OUT = srd(SB); obase = 0
    sco = g.sc_x if lay == 0 else (' sc1' if o.get('outsc1', 1) else (' nt' if o.get('outnt', 0) else ''))
    def accset(eta, nt):
        return f'a[{224+16*nt}:{239+16*nt}]' if eta == 0 else f'v[{16+16*nt}:{31+16*nt}]'
    def red_write_list(eta):
        LR = eta*32768
        L = []
        for nt in range(2):
            for i in range(4):
                src = f'a[{224+16*nt+4*i}:{224+16*nt+4*i+3}]' if eta == 0 else f'v[{16+16*nt+4*i}:{16+16*nt+4*i+3}]'
                L.append(lambda src=src, i=i, nt=nt: a(f'ds_write_b128 v{115+i}, {src} offset:{LR + nt*128}'))
        return L
    def xflag(eta):
        vq.wait(f'xo{eta}')
        a(f's_add_u32 s53, s67, {eta*512}')
        g.flag('s53')
    def red_small(eta, res):
        LR = eta*32768
        L = []
        for h in range(2):
            ad = 113 + h
            T0, T1 = 48, 52
            b2 = 56 + 2*h; rs = res + 2*h
            L.append(lambda ad=ad: (a(f'ds_read_b128 v[48:51], v{ad} offset:{LR}'), a(f'ds_read_b128 v[52:55], v{ad} offset:{LR + 8192}')))
            def add(): a(f'v_pk_add_f32 {pr(48)}, {pr(48)}, {pr(52)}'); a(f'v_pk_add_f32 {pr(50)}, {pr(50)}, {pr(54)}')
            def sadd():
                for e in range(4): a(f'v_add_f32 v{48+e}, v{48+e}, v{52+e}')
            L.append(lambda ad=ad: (a('s_waitcnt lgkmcnt(0)'), sadd(), a(f'ds_read_b128 v[52:55], v{ad} offset:{LR + 2*8192}')))
            L.append(lambda ad=ad: (a('s_waitcnt lgkmcnt(0)'), sadd(), a(f'ds_read_b128 v[52:55], v{ad} offset:{LR + 3*8192}')))
            L.append(lambda: (a('s_waitcnt lgkmcnt(0)'), sadd()))
            def ub(src):
                a(f'v_lshlrev_b32 v52, 16, v{src}'); a(f'v_and_b32 v53, 0xffff0000, v{src}')
                a(f'v_lshlrev_b32 v54, 16, v{src+1}'); a(f'v_and_b32 v55, 0xffff0000, v{src+1}')
            L.append(lambda b2=b2: (ub(b2), sadd()))
            def rnd():
                a('v_cvt_pk_bf16_f32 v52, v48, v49'); a('v_cvt_pk_bf16_f32 v53, v50, v51')
                a('v_lshlrev_b32 v48, 16, v52'); a('v_and_b32 v49, 0xffff0000, v52')
                a('v_lshlrev_b32 v50, 16, v53'); a('v_and_b32 v51, 0xffff0000, v53')
            L.append(rnd)
            L.append(lambda rs=rs: (vq.wait(f'res{eta}'), ub(rs), sadd()))
            L.append(lambda h=h: (a(f'v_cvt_pk_bf16_f32 v{12+2*h}, v48, v49'), a(f'v_cvt_pk_bf16_f32 v{13+2*h}, v50, v51')))
        def st():
            a(f's_mov_b32 s53, {obase + eta*4096}')
            g.vstore('v[12:15]', 'v112', OUT, 's53', 0, sco, tag=f'xo{eta}')
        L.append(st)
        return L
    def red_big(eta, res, mid=None):
        LR = eta*32768
        T = 64
        for p in range(4):
            a(f'ds_read_b128 v[{T+8*p}:{T+8*p+3}], v113 offset:{LR + p*8192}')
            a(f'ds_read_b128 v[{T+8*p+4}:{T+8*p+7}], v114 offset:{LR + p*8192}')
        g.unpack8(56, T+32)
        a('s_waitcnt lgkmcnt(4)')
        for e in range(4): a(f'v_pk_add_f32 {pr(T+2*e)}, {pr(T+2*e)}, {pr(T+8+2*e)}')
        for e in range(4): a(f'v_pk_add_f32 {pr(T+2*e)}, {pr(T+2*e)}, {pr(T+32+2*e)}')
        a('s_waitcnt lgkmcnt(0)')
        for e in range(4): a(f'v_pk_add_f32 {pr(T+16+2*e)}, {pr(T+16+2*e)}, {pr(T+24+2*e)}')
        for e in range(4): a(f'v_pk_add_f32 {pr(T+2*e)}, {pr(T+2*e)}, {pr(T+16+2*e)}')
        g.pack8(T, T+8); g.unpack8(T+8, T)
        if mid: mid()
        vq.wait(f'res{eta}')
        g.unpack8(res, T+16)
        for e in range(4): a(f'v_pk_add_f32 {pr(T+2*e)}, {pr(T+2*e)}, {pr(T+16+2*e)}')
        g.pack8(T, T+8)
        a(f's_mov_b32 s53, {obase + eta*4096}')
        g.vstore(f'v[{T+8}:{T+11}]', 'v112', OUT, 's53', 0, sco, tag=f'xo{eta}')
    extra = {}
    if not idle: extra.setdefault(o.get('fB1', 3), []).append(lambda: hflag(g, 3))
    extra.setdefault(10, []).append(lambda: poll_issue(g, 126, 125, 'phB'))
    extra.setdefault(15, []).append(lambda: poll_check(g, 126, 125, 'phB'))
    for i, f in enumerate(red_write_list(0)): extra.setdefault(30 + i//2, []).append(f)
    extra.setdefault(35, []).append(lambda: (a('s_waitcnt lgkmcnt(0)'), a('s_barrier')))
    for i, f in enumerate(red_small(0, 60)): extra.setdefault(36 + (i * o.get('rsnum', 2)) // 3, []).append(f)
    def resB():
        a(f's_mov_b32 s53, {X1 + xoff + 4096}')
        g.vload('v[60:63]', 'v112', WS, 's53', 0, ' sc1', tag='res1')
    extra.setdefault(50, []).append(resB)
    for s in range(56):
        eta, i = divmod(s, 28)
        vq.wait(f'hf{s}')
        for nt in range(2):
            acc = accset(eta, nt)
            cin = '0' if i == 0 else acc
            a(f'v_mfma_f32_32x32x16_bf16 {acc}, {W2reg(nt,i)}, {Hreg(s)}, {cin}')
            if nt == 0 and s >= 1 and (s - 1) + NW < 56: Hload(s - 1 + NW)
        if s == 27: g.dstamp('g2', 'A mfma done')
        for f in extra.get(s, []): f()
    def tail():
        g.dstamp('g2', 'B mfma done')
        if lay == 0: xflag(0)
        a.nop(12)
        for f in red_write_list(1): f()
        a('s_waitcnt lgkmcnt(0)')
        a('s_barrier')
        pre = (lay == 0 and o.get('x2pre', 1))
        if pre: poll_issue(g, 110, 122, 'pxA')
        red_big(1, 60, (lambda: (poll_check(g, 110, 122, 'pxA'), a(f's_add_u32 s53, s75, {X2}'), g.vload('v[104:107]', f'v{vL16}', WS, 's53', 0, ' sc1', tag='x2a'))) if pre else None)
        g.dstamp('g2', 'B finished')
        g.xflagB = (lambda: xflag(1))
        if lay == 0 and not pre: xflag(1)
        g.stamp('g2 done')
    return tail, list(vq.ops)

def emit_layer_both(g):
    a = g.a
    if not g.o.get('idleskip', 1):
        tail, ops = emit_layer(g); tail(); return
    Li = a.newlabel('idle'); Ld = a.newlabel('ldone')
    ops0 = list(g.vq.ops); wl0 = list(g.wlist)
    a(f's_cmp_ge_u32 {sR}, 28')
    a(f's_cbranch_scc1 {Li}')
    tail, opsN = emit_layer(g)
    a(f's_branch {Lt(Ld)}')
    a.label(Li)
    g.vq.ops = ops0; g.wlist = wl0
    st = g.stamps
    g.stamps = False
    _, opsI = emit_layer(g, idle=True)
    g.stamps = st
    a.label(Ld)
    k = 0
    while k < min(len(opsN), len(opsI)) and opsN[-1-k] == opsI[-1-k]: k += 1
    assert 'res1' in opsN[len(opsN)-k:] and 'xo0' in opsN[len(opsN)-k:], (opsN, opsI)
    g.vq.ops = opsN[len(opsN)-k:]
    tail()

def Lt(x): return x

def emit_r2(g):
    a = g.a; vq = g.vq
    g.rl = 1
    a(f'v_mov_b32 v{VINV}, 0x3b000000')
    a('v_add_u32 v109, 512, v122')
    g.dstamp('r2', 'r2 begin')
    if g.o.get('x2pre', 1):
        vq.wait('x2a')
        g.unpack8(104, 16)
    else:
        poll_issue(g, 110, 122, 'pxA')
        poll_check(g, 110, 122, 'pxA')
        g.dstamp('r2', 'xA seen')
        a(f's_add_u32 s53, s75, {X2}')
        g.vload('v[60:63]', f'v{vL16}', WS, 's53', 0, ' sc1', tag='x2a')
        poll_issue(g, 110, 109, 'pxB')
        vq.wait('x2a')
        g.unpack8(60, 16)
    g.ln_multi([(16, 24, 52)])
    if g.o.get('x2pre', 1):
        g.xflagB()
        if g.o.get('hideB', 1):
            a('v_add_u32 v125, 512, v122')
        else:
            poll_issue(g, 110, 109, 'pxB')
    rows_finish(g, [(16, 0)], g.sc_x3, g.sc_y1)
    g.dstamp('r2', 'row0 stored')
    if g.o.get('hideB', 1):
        a(f's_lshl_b32 s53, {sW}, 10')
        a(f's_add_u32 s53, s53, {L_G + 4096}')
        a(f'v_add_u32 v111, s53, v{vL16}')
        a('ds_read_b128 v[44:47], v111')
        row_flag(g, 0)
        g.stamp('r2 done')
        return
    poll_check(g, 110, 109, 'pxB')
    a(f's_add_u32 s53, s75, {X2 + 4096}')
    g.vload('v[60:63]', f'v{vL16}', WS, 's53', 0, ' sc1', tag='x2b')
    row_flag(g, 0)
    g.dstamp('r2', 'A flagged')
    vq.wait('x2b')
    g.unpack8(60, 64)
    g.ln_multi([(64, 72, 100)])
    rows_finish(g, [(64, 1)], g.sc_x3, g.sc_y1)
    g.dstamp('r2', 'row1 stored')
    row_flag(g, 1)
    g.stamp('r2 done')

def emit_r1b(g):
    a = g.a
    g.rl = 0
    nw = g.o.get('wb3', 16)
    def w(n):
        nonlocal nw
        k = min(n, nw); nw -= k
        g.weight_batch(k)
    g.cur_layer = 0
    g.dstamp('r1', 'r1b begin')
    rows_finish(g, [(16, 0)], ' sc1', g.sc_y0, part=1)
    rows_finish(g, [(16, 0)], ' sc1', g.sc_y0, part=2)
    g.dstamp('r1', 'A stored')
    if g.o.get('hideB0', 0):
        for i in range(4): a(f'v_mov_b32 v{40+i}, v{104+i}')
        a(f's_lshl_b32 s53, {sW}, 10')
        a(f's_add_u32 s53, s53, {L_G + 4096}')
        a(f'v_add_u32 v111, s53, v{vL16}')
        a('ds_read_b128 v[44:47], v111')
        w(6)
        row_flag(g, 0)
        w(100)
    else:
        w(3)
        rows_finish(g, [(64, 1)], ' sc1', g.sc_y0, part=1)
        row_flag(g, 0)
        g.dstamp('r1', 'A flagged')
        w(8); rows_finish(g, [(64, 1)], ' sc1', g.sc_y0, part=2)
        w(100)
        g.dstamp('r1', 'B stored')
        row_flag(g, 1)
        g.dstamp('r1', 'B flagged')
    g.stamp('r1 done')

def mlp_setup_rest(g): mlp_setup(g, 1)

def emit_variant(g, fast):
    a = g.a; o = g.o
    g.fast = fast
    g.fsc = '' if fast else ' sc1'
    yt = fast and (o.get('ytouch', 0) or o.get('dstore', 1))
    g.sc_h = ('' if (fast and o.get('dstore', 1) and o.get('dsH', 0)) else ' sc1'); g.sc_x = ('' if (yt and o.get('dsX', 0)) else ' sc1'); g.sc_y0 = ('' if yt else ' sc1')
    g.sc_x3 = ' sc1'; g.sc_y1 = ('' if (fast and o.get('y1plain', 1)) else ' sc1')
    emit_r1b(g)
    if g.stop == 'r1': a('s_branch L_fin'); return
    a(f's_mov_b32 {sLAYER}, 0')
    g.cur_layer = 0
    emit_layer_both(g)
    if g.stop == 'g2': a('s_branch L_fin'); return
    g.cur_layer = 1
    emit_r2(g)
    if g.stop == 'r2': a('s_branch L_fin'); return
    a(f's_mov_b32 {sLAYER}, 1')
    g.sc_h = ({1: '', 2: ' nt', 3: ' sc0'}[o.get('h1plain')] if (fast and o.get('h1plain', 0)) else ' sc1')
    emit_layer_both(g)
    a('s_branch L_fin')

def emit_mlp(g):
    a = g.a
    g.vinv = VINV
    g.r1_hook = lambda: (mlp_setup(g, 0), mlp_setup(g, 1))
    emit_r1a(g)
    ops0 = list(g.vq.ops); wl0 = list(g.wlist)
    a(f's_cmp_eq_u32 {sFAST}, 0')
    a('s_cbranch_scc1 L_slow')
    emit_variant(g, True)
    g.more_code = True
    g.finish()
    a.label('L_slow')
    g.vq.ops = ops0; g.wlist = wl0
    st = g.stamps; g.stamps = False
    emit_variant(g, False)
    g.stamps = st
```

```python
import sys, argparse, struct
from asmlib import Asm, check_hazards, check_waits

NAME = 'interleave_layers__ssm_conv_h3__mixer_channel_mlp__prompt_kernel'

WS_EPOCH = 0x0
F_PREP = 0x1000
F_CONV = 0x2000
F_W = 0x3000
F_XC = 0x3800
DUMMY2 = 0x2D00000
F_Y    = 0x4000
F_H    = 0x8000
F_X    = 0x10000
XR     = 0x100000
W1F    = 0x300000
W2F    = 0x500000
GB     = 0x700000
Y0     = 0x900000
X1     = 0xD00000
X2     = 0xF00000
H0     = 0x1400000
TS     = 0x2400000
WS_SIZE = 0x10000000

L_KVT = 0
L_W1R = 8192
L_W2R = 16384
L_GT  = 0
L_XB = 25600
XBS = 79*96
L_TOEP = 40960
CS = 4160
LDS_SIZE = 163840
L_G = 155648
L_YH = [0, 65536]

sQ, sK, sV, sSK, sSSM, sD, sBX, sW1 = 16, 18, 20, 22, 24, 26, 28, 30
sB1, sW2, sB2, sOUT, sDBG, sWSP = 32, 34, 36, 38, 40, 42
WS = 's[44:47]'
sC, sR, sW, sTAG, sABORT = 's48', 's49', 's50', 's51', 's52'
sLAYER, sT1, sJ = 's64', 's65', 's66'
sXCC, sFAST = 's101', 's3'
SA, SB, SC_, SD_ = 4, 8, 12, 72
def srd(n): return f's[{n}:{n+3}]'
W1B = 128
vL16, vTAG = 2, 3
def W1reg(k): return f'v[{W1B+4*k}:{W1B+4*k+3}]'
def W2reg(nt, i):
    b = (nt*28 + i)*4
    return f'a[{b}:{b+3}]'
def f2u(x): return '0x%08x' % struct.unpack('<I', struct.pack('<f', x))[0]
C1 = 2*0.7978845608028654*1.4426950408889634
C2 = C1*0.044715

DOC = '''; ---------------------------------------------------------------------------------------------------------------
;   prep : kv = (4-tap causal conv of k) * v, transposed + time-reversed (XR); w1 / w2 re-laid out as MFMA fragments
;   conv : per channel pair, y = causal long convolution as a Toeplitz matmul (8 shifted copies of ssm_k in LDS,
;          16x16x32 bf16 MFMA), G = y + kv*D  (G does not depend on x, so it is computed once for both layers)
;   G1   : h = gelu_tanh(y @ w1 + b1)  (w1 slice stationary in VGPRs, y staged in LDS by LDS-DMA)
; ---------------------------------------------------------------------------------------------------------------
'''

class VQ:
    def __init__(self, a): self.a = a; self.ops = []
    def issue(self, tag): self.ops.append(tag)
    def wait(self, tag):
        idx = max(i for i, t in enumerate(self.ops) if t == tag) if tag in self.ops else None
        if idx is None: return
        n = len(self.ops) - 1 - idx
        assert n <= 63, n
        self.a(f's_waitcnt vmcnt({n})')
        self.ops = self.ops[idx+1:]
    def drain(self):
        self.a('s_waitcnt vmcnt(0)'); self.ops = []
    def reset(self): self.ops = []

class Gen:
    def __init__(self, stop='end', stamps=False, opts=None):
        self.a = Asm(); self.vq = VQ(self.a)
        self.stop = stop; self.stamps = stamps
        self.nstamp = 0; self.stamp_names = []
        self.sc = ' sc1'; self.fsc = ' sc1'; self.fast = False; self.vinv = 4
        self.o = opts or {}

    def capture(self, fn):
        saved = self.a.lines
        self.a.lines = []
        fn()
        got = self.a.lines
        self.a.lines = saved
        return got

    def mk_srd(self, n, ptr, size, add=None):
        a = self.a
        if add is None:
            a(f's_mov_b32 s{n}, s{ptr}')
            a(f's_and_b32 s{n+1}, s{ptr+1}, 0xffff')
        else:
            a(f's_add_u32 s{n}, s{ptr}, {add}')
            a(f's_addc_u32 s{n+1}, s{ptr+1}, 0')
            a(f's_and_b32 s{n+1}, s{n+1}, 0xffff')
        a(f's_mov_b32 s{n+2}, {size}')
        a(f's_mov_b32 s{n+3}, 0x00020000')

    def dstamp(self, phase, name):
        if self.o.get('detail') == phase and getattr(self, 'cur_layer', 0) == self.o.get('dlayer', 1): self.stamp(name, False, force=True)
    def stamp(self, name='', inloop=False, force=False):
        if not self.stamps: return
        if self.o.get('detail') and not force and name not in ('start', 'end'): return
        inloop = False
        i = self.nstamp; self.nstamp += 1
        assert self.nstamp <= 24, name
        self.stamp_names.append(name)
        a = self.a
        a(f's_waitcnt lgkmcnt(0)')
        a(f's_memtime s[62:63]' if self.o.get('cyc') else f's_memrealtime s[62:63]')
        a(f's_waitcnt lgkmcnt(0)')
        if inloop:
            a('s_cmp_eq_u32 s64, 0')
            a(f's_cselect_b32 s{76+i}, s62, s{76+i}')
            a(f's_cselect_b32 s{77+i}, s{77+i}, s62')
        else:
            a(f's_mov_b32 s{76+i}, s62')

    def vload(self, dst, voff, sr, soff, imm=0, mods='', tag='ld', w='x4'):
        o = f' offset:{imm}' if imm else ''
        op = {'x4': 'buffer_load_dwordx4', 'x2': 'buffer_load_dwordx2', 'x1': 'buffer_load_dword'}[w]
        self.a(f'{op} {dst}, {voff}, {sr}, {soff} offen{o}{mods}')
        self.vq.issue(tag)
    def vstore(self, src, voff, sr, soff, imm=0, mods='', tag='st'):
        o = f' offset:{imm}' if imm else ''
        self.a(f'buffer_store_dwordx4 {src}, {voff}, {sr}, {soff} offen{o}{mods}')
        self.vq.issue(tag)

    def poll(self, vaddr, vtmp, nlanes=64, x4=False):
        a = self.a
        L = a.newlabel('poll'); D = a.newlabel('polld')
        a(f's_mov_b32 s53, 0')
        if nlanes < 64:
            a(f's_mov_b64 s[56:57], exec')
            a(f's_mov_b64 exec, {hex((1 << nlanes) - 1)}')
        a.label(L)
        if x4:
            a(f'buffer_load_dwordx4 v[{vtmp}:{vtmp+3}], v{vaddr}, {WS}, 0 offen sc1')
            a(f's_waitcnt vmcnt(0)')
            a(f'v_xor_b32 v{vtmp}, {sTAG}, v{vtmp}')
            a(f'v_xor_b32 v{vtmp+1}, {sTAG}, v{vtmp+1}')
            a(f'v_xor_b32 v{vtmp+2}, {sTAG}, v{vtmp+2}')
            a(f'v_xor_b32 v{vtmp+3}, {sTAG}, v{vtmp+3}')
            a(f'v_or_b32 v{vtmp}, v{vtmp}, v{vtmp+1}')
            a(f'v_or3_b32 v{vtmp}, v{vtmp}, v{vtmp+2}, v{vtmp+3}')
            a(f'v_cmp_ne_u32 vcc, 0, v{vtmp}')
        else:
            a(f'buffer_load_dword v{vtmp}, v{vaddr}, {WS}, 0 offen sc1')
            a(f's_waitcnt vmcnt(0)')
            a(f'v_cmp_ne_u32 vcc, {sTAG}, v{vtmp}')
        a(f's_cbranch_vccz {D}')
        a(f's_add_u32 s53, s53, 1')
        a(f's_cmp_lg_u32 {sABORT}, 0')
        a(f's_cbranch_scc1 {D}')
        a(f's_cmp_lt_u32 s53, 0x8000')
        a(f's_cbranch_scc1 {L}')
        a(f's_mov_b32 {sABORT}, 1')
        a.label(D)
        if nlanes < 64:
            a(f's_mov_b64 exec, s[56:57]')
        self.vq.reset()

    def poll_prep(self, vaddr, vt):
        a = self.a
        L = a.newlabel('poll'); D = a.newlabel('polld')
        a(f's_mov_b32 s53, 0')
        a.label(L)
        a(f'buffer_load_dwordx4 v[{vt}:{vt+3}], v{vaddr}, {WS}, 0 offen sc1')
        a(f's_waitcnt vmcnt(0)')
        for i in range(4): a(f'v_subrev_u32 v{vt+i}, {sTAG}, v{vt+i}')
        a(f'v_or_b32 v{vt+4}, v{vt}, v{vt+1}')
        a(f'v_or3_b32 v{vt+4}, v{vt+4}, v{vt+2}, v{vt+3}')
        a(f'v_cmp_lt_u32 vcc, 15, v{vt+4}')
        a(f's_cbranch_vccz {D}')
        a(f's_add_u32 s53, s53, 1')
        a(f's_cmp_lg_u32 {sABORT}, 0')
        a(f's_cbranch_scc1 {D}')
        a(f's_cmp_lt_u32 s53, 0x8000')
        a(f's_cbranch_scc1 {L}')
        a(f's_mov_b32 {sABORT}, 1')
        a.label(D)
        self.vq.reset()

    def dyn_role(self, vt):
        a = self.a
        lo, hi, t, u = vt+5, vt+6, vt+7, vt+8
        a(f'v_mov_b32 v{lo}, 0'); a(f'v_mov_b32 v{hi}, 0')
        for i in range(4):
            a(f'v_and_b32 v{t}, 3, v{vt+i}')
            a(f'v_lshlrev_b32 v{t}, 3, v{t}')
            a(f'v_lshlrev_b32 v{t}, v{t}, 1') if False else a(f'v_lshlrev_b32 v{t}, v{t}, v{vt+9}')
            a(f'v_lshrrev_b32 v{u}, 2, v{vt+i}')
            a(f'v_cmp_eq_u32 vcc, 0, v{u}')
            a.nop(2)
            a(f'v_cndmask_b32 v{vt+10}, 0, v{t}, vcc')
            a(f'v_cmp_eq_u32 vcc, 1, v{u}')
            a(f'v_add_u32 v{lo}, v{lo}, v{vt+10}')
            a.nop(1)
            a(f'v_cndmask_b32 v{vt+10}, 0, v{t}, vcc')
            a(f'v_add_u32 v{hi}, v{hi}, v{vt+10}')
        steps = ['quad_perm:[1,0,3,2] row_mask:0xf bank_mask:0xf', 'quad_perm:[2,3,0,1] row_mask:0xf bank_mask:0xf',
                 'row_half_mirror row_mask:0xf bank_mask:0xf', 'row_mirror row_mask:0xf bank_mask:0xf',
                 'row_bcast:15 row_mask:0xa bank_mask:0xf', 'row_bcast:31 row_mask:0xc bank_mask:0xf']
        a.nop(2)
        for st in steps:
            a(f'v_add_u32_dpp v{lo}, v{lo}, v{lo} {st}')
            a(f'v_add_u32_dpp v{hi}, v{hi}, v{hi} {st}')
            a.nop(1)
        a(f'v_readlane_b32 s56, v{lo}, 63')
        a(f'v_readlane_b32 s57, v{hi}, 63')
        a(f'v_lshlrev_b32 v{t}, 2, v1')
        a('s_mov_b32 s58, 0')
        for i in range(4):
            a(f'v_cmp_eq_u32 vcc, {sXCC}, v{vt+i}')
            a(f'v_add_u32 v{u}, {i}, v{t}')
            a(f'v_cmp_gt_u32 s[54:55], s2, v{u}')
            a.nop(1)
            a('s_and_b64 s[54:55], s[54:55], vcc')
            a('s_bcnt1_i32_b64 s55, s[54:55]')
            a('s_add_u32 s58, s58, s55')
        a('s_cmp_eq_u32 s56, 0x20202020')
        a(f's_cselect_b32 {sFAST}, 1, 0')
        a('s_cmp_eq_u32 s57, 0x20202020')
        a(f's_cselect_b32 {sFAST}, {sFAST}, 0')
        a(f's_cmp_eq_u32 {sABORT}, 0')
        a(f's_cselect_b32 {sFAST}, {sFAST}, 0')
        if self.o.get('force_slow'): a(f's_mov_b32 {sFAST}, 0')
        a(f's_cmp_eq_u32 {sFAST}, 1')
        a(f's_cselect_b32 {sC}, {sXCC}, {sC}')
        a(f's_cselect_b32 {sR}, s58, {sR}')

    def check_xc(self, vt, vaddr):
        a = self.a
        self.vq.wait('fw')
        L = a.newlabel('fw'); D = a.newlabel('fwd')
        a('s_mov_b32 s53, 0')
        a.label(L)
        for i in range(4): a(f'v_subrev_u32 v{vt+i}, {sTAG}, v{vt+i}')
        a(f'v_or_b32 v{vt+5}, v{vt}, v{vt+1}')
        a(f'v_or3_b32 v{vt+5}, v{vt+5}, v{vt+2}, v{vt+3}')
        a(f'v_cmp_lt_u32 vcc, 15, v{vt+5}')
        a(f's_cbranch_vccz {D}')
        a('s_add_u32 s53, s53, 1')
        a(f's_cmp_lg_u32 {sABORT}, 0')
        a(f's_cbranch_scc1 {D}')
        a('s_cmp_lt_u32 s53, 0x8000')
        a(f's_cbranch_scc0 {D}_ab')
        a(f'buffer_load_dwordx4 v[{vt}:{vt+3}], v{vaddr}, {WS}, 0 offen sc1')
        a('s_waitcnt vmcnt(0)')
        a(f's_branch {L}')
        a.label(D + '_ab')
        a(f's_mov_b32 {sABORT}, 1')
        a.label(D)
        a(f'v_mov_b32 v{vt+9}, 1')
        self.dyn_role(vt)
        self.weight_state_init()

    def check_fw(self, vt, vaddr):
        a = self.a
        self.vq.wait('fw2')
        L = a.newlabel('fw'); D = a.newlabel('fwd')
        a('s_mov_b32 s53, 0')
        a.label(L)
        for i in range(4): a(f'v_xor_b32 v{vt+i}, {sTAG}, v{vt+i}')
        a(f'v_or_b32 v{vt}, v{vt}, v{vt+1}')
        a(f'v_or3_b32 v{vt}, v{vt}, v{vt+2}, v{vt+3}')
        a(f'v_cmp_ne_u32 vcc, 0, v{vt}')
        a(f's_cbranch_vccz {D}')
        a('s_add_u32 s53, s53, 1')
        a(f's_cmp_lg_u32 {sABORT}, 0')
        a(f's_cbranch_scc1 {D}')
        a('s_cmp_lt_u32 s53, 0x8000')
        a(f's_cbranch_scc0 {D}_ab')
        a(f'buffer_load_dwordx4 v[{vt}:{vt+3}], v{vaddr}, {WS}, 0 offen sc1')
        a('s_waitcnt vmcnt(0)')
        a(f's_branch {L}')
        a.label(D + '_ab')
        a(f's_mov_b32 {sABORT}, 1')
        a.label(D)

    def flag(self, soff, sc=None):
        sc = self.fsc if sc is None else sc
        self.a(f'buffer_store_dword v{vTAG}, off, {WS}, {soff}{sc}')
        self.vq.issue('flag')

    def reduce_multi(self, regs, sdst):
        a = self.a
        steps = ['quad_perm:[1,0,3,2] row_mask:0xf bank_mask:0xf', 'quad_perm:[2,3,0,1] row_mask:0xf bank_mask:0xf',
                 'row_half_mirror row_mask:0xf bank_mask:0xf', 'row_mirror row_mask:0xf bank_mask:0xf',
                 'row_bcast:15 row_mask:0xa bank_mask:0xf', 'row_bcast:31 row_mask:0xc bank_mask:0xf']
        pad = max(0, 3 - len(regs))
        a.nop(max(0, 2 - (len(regs) - 1)) if len(regs) < 3 else 0)
        for s in steps:
            for r in regs:
                a(f'v_add_f32_dpp v{r}, v{r}, v{r} {s}')
            if pad: a.nop(pad)
        if len(regs) < 2: a.nop(1)
        for r, s in zip(regs, sdst):
            a(f'v_readlane_b32 s{s}, v{r}, 63')
        a.nop(2)

    def ln_multi(self, rows, double=False):
        a = self.a
        def pr(b): return f'v[{b}:{b+1}]'
        for (x, z, t) in rows:
            a(f'v_pk_add_f32 {pr(t)}, {pr(x)}, {pr(x+2)}')
            a(f'v_pk_mul_f32 {pr(t+2)}, {pr(x)}, {pr(x)}')
        for (x, z, t) in rows:
            a(f'v_pk_add_f32 {pr(t+4)}, {pr(x+4)}, {pr(x+6)}')
            a(f'v_pk_fma_f32 {pr(t+2)}, {pr(x+2)}, {pr(x+2)}, {pr(t+2)}')
        for (x, z, t) in rows:
            a(f'v_pk_add_f32 {pr(t)}, {pr(t)}, {pr(t+4)}')
            a(f'v_pk_fma_f32 {pr(t+2)}, {pr(x+4)}, {pr(x+4)}, {pr(t+2)}')
        for (x, z, t) in rows:
            a(f'v_add_f32 v{t}, v{t}, v{t+1}')
            a(f'v_pk_fma_f32 {pr(t+2)}, {pr(x+6)}, {pr(x+6)}, {pr(t+2)}')
        for (x, z, t) in rows:
            a(f'v_add_f32 v{t+2}, v{t+2}, v{t+3}')
        regs = []; sd = []
        for i, (x, z, t) in enumerate(rows):
            regs += [t, t+2]; sd += [58 - 2*i, 59 - 2*i]
        self.reduce_multi(regs, sd)
        for i, (x, z, t) in enumerate(rows):
            s1, s2 = sd[2*i], sd[2*i+1]
            a(f'v_mul_f32 v{t+4}, s{s1}, v{self.vinv}')
            a(f'v_mul_f32 v{t+2}, s{s2}, v{self.vinv}')
        for (x, z, t) in rows:
            a(f'v_fma_f32 v{t+2}, -v{t+4}, v{t+4}, v{t+2}')
        for (x, z, t) in rows:
            a(f'v_max_f32 v{t+2}, 0, v{t+2}')
        if double:
            for (x, z, t) in rows: a(f'v_add_f32 v{t}, 0x3727c5ac, v{t+2}')
            for (x, z, t) in rows: a(f'v_rsq_f32 v{t}, v{t}')
            if len(rows) < 2: a.nop(1)
            for (x, z, t) in rows: a(f'v_mul_f32 v{t+2}, v{t+2}, v{t}')
            for (x, z, t) in rows: a(f'v_fmaak_f32 v{t+2}, v{t+2}, v{t}, 0x3727c5ac')
            for (x, z, t) in rows: a(f'v_rsq_f32 v{t+2}, v{t+2}')
            if len(rows) < 2: a.nop(1)
            for (x, z, t) in rows: a(f'v_mul_f32 v{t+2}, v{t+2}, v{t}')
        else:
            for (x, z, t) in rows:
                a(f'v_add_f32 v{t+2}, 0x3727c5ac, v{t+2}')
            for (x, z, t) in rows:
                a(f'v_rsq_f32 v{t+2}, v{t+2}')
            if len(rows) < 2: a.nop(1)
        for (x, z, t) in rows:
            a(f'v_mul_f32 v{t+4}, v{t+4}, v{t+2}')
        for (x, z, t) in rows:
            for i in range(4):
                a(f'v_pk_fma_f32 {pr(z+2*i)}, {pr(x+2*i)}, {pr(t+2)}, {pr(t+4)} op_sel_hi:[1,0,0] neg_lo:[0,0,1] neg_hi:[0,0,1]')

    def unpack8(self, src, dst):
        a = self.a
        for i in range(4):
            a(f'v_lshlrev_b32 v{dst+2*i}, 16, v{src+i}')
            a(f'v_and_b32 v{dst+2*i+1}, 0xffff0000, v{src+i}')
    def pack8(self, src, dst):
        a = self.a
        for i in range(4):
            a(f'v_cvt_pk_bf16_f32 v{dst+i}, v{src+2*i}, v{src+2*i+1}')

    def prologue(self):
        a = self.a
        a('s_cmp_ge_u32 s2, 256')
        a('s_cbranch_scc1 L_end')
        a('s_load_dwordx16 s[16:31], s[0:1], 0')
        a('s_load_dwordx8 s[32:39], s[0:1], 64')
        a('s_load_dwordx4 s[40:43], s[0:1], 96')
        a('s_getpc_b64 s[68:69]')
        a(f's_and_b32 {sC}, s2, 7')
        a(f's_lshr_b32 {sR}, s2, 3')
        a(f's_mov_b32 {sABORT}, 0')
        a(f's_getreg_b32 {sXCC}, hwreg(HW_REG_XCC_ID)')
        a(f's_min_u32 {sXCC}, {sXCC}, 8')
        a('v_lshrrev_b32 v4, 6, v0')
        a('v_and_b32 v1, 63, v0')
        a(f'v_readfirstlane_b32 {sW}, v4')
        a(f'v_lshlrev_b32 v{vL16}, 4, v1')
        if self.o.get('prefetch', True) and self.o.get('pfearly', 1) and self.stop != 'x': self.code_prefetch()
        a('s_waitcnt lgkmcnt(0)')
        self.mk_srd(44, sWSP, WS_SIZE)
        self.stamp('start')
        if self.stamps:
            a('s_memtime s[62:63]'); a('s_waitcnt lgkmcnt(0)'); a('s_mov_b32 s100, s62')
        a(f'buffer_load_dword v{vTAG}, off, {WS}, 0 sc1')
        self.vq.issue('epoch')

    def code_prefetch(self):
        a = self.a
        a('s_and_b32 s68, s68, 0xffffff00')
        a('s_and_b32 s69, s69, 0xffff')
        a(f's_mov_b32 s{SD_}, s68'); a(f's_mov_b32 s{SD_+1}, s69')
        a(f's_mov_b32 s{SD_+2}, CODE_BYTES')
        a(f's_mov_b32 s{SD_+3}, 0x00020000')
        a('v_lshlrev_b32 v87, 7, v0')
        a(f'buffer_load_dword v254, v87, {srd(SD_)}, 0 offen'); self.vq.issue('pf')
        a('v_add_u32 v87, 0x8000, v87')
        a(f'buffer_load_dword v254, v87, {srd(SD_)}, 0 offen'); self.vq.issue('pf')

    def pretouch(self):
        a = self.a
        a(f's_min_u32 s58, {sXCC}, 7')
        a('s_lshl_b32 s53, s58, 18')
        a(f's_lshl_b32 s54, {sR}, 13')
        a('s_add_u32 s53, s53, s54')
        a('v_lshlrev_b32 v88, 7, v1')
        Ls = a.newlabel('pt')
        a(f's_cmp_lg_u32 {sW}, 3')
        a(f's_cbranch_scc1 {Ls}'); a.comment('COND_BEGIN')
        self.mk_srd(SD_, sQ, 2097152)
        a(f'buffer_load_dword v255, v88, {srd(SD_)}, s53 offen')
        self.mk_srd(SD_, sB1, 3584)
        a(f'buffer_load_dword v255, v88, {srd(SD_)}, 0 offen')
        self.mk_srd(SD_, sB2, 1024)
        a(f'buffer_load_dword v255, v88, {srd(SD_)}, 0 offen')
        self.mk_srd(SD_, sOUT, 2097152)
        a(f'buffer_load_dword v255, off, {srd(SD_)}, s53')
        a('v_lshlrev_b32 v87, 21, v1')
        a('v_min_u32 v87, 0x1c00000, v87')
        a(f'buffer_load_dword v255, v87, {WS}, 0 offen')
        a.label(Ls); a.comment('COND_END')
        if self.o.get('ytouch', 0):
            Ls = a.newlabel('pt2')
            a(f's_cmp_lg_u32 {sW}, 2')
            a(f's_cbranch_scc1 {Ls}'); a.comment('COND_BEGIN')
            a(f's_add_u32 s53, s53, {Y0}')
            a(f'buffer_load_dword v255, v88, {WS}, s53 offen')
            a.label(Ls); a.comment('COND_END')
            Ls = a.newlabel('pt3')
            a(f's_cmp_lg_u32 {sW}, 1')
            a(f's_cbranch_scc1 {Ls}'); a.comment('COND_BEGIN')
            a(f's_lshr_b32 s53, {sR}, 3')
            a('s_lshl_b32 s53, s53, 5')
            a('v_and_b32 v87, 31, v1')
            a('v_add_u32 v87, s53, v87')
            a('v_lshrrev_b32 v88, 2, v87')
            a('v_lshlrev_b32 v88, 3, v88')
            a('v_and_b32 v87, 3, v87')
            a('v_add_u32 v87, v87, v88')
            a('v_lshrrev_b32 v88, 5, v1')
            a('v_lshl_add_u32 v87, v88, 2, v87')
            a('s_lshl_b32 s53, s58, 8')
            a('v_add_u32 v87, s53, v87')
            a('v_lshlrev_b32 v87, 10, v87')
            a(f's_and_b32 s53, {sR}, 7')
            a('s_lshl_b32 s53, s53, 7')
            a(f's_add_u32 s53, s53, {X2}')
            a(f'buffer_load_dword v255, v87, {WS}, s53 offen')
            a.label(Ls); a.comment('COND_END')

    def conv_epi_pre(self):
        a = self.a
        a('v_sub_u32 v140, 15, v4')
        a('v_mul_u32_u24 v140, 96, v140')
        a('v_lshlrev_b32 v141, 3, v5')
        a('v_sub_u32 v140, v140, v141')
        a(f's_mul_i32 s55, s67, {XBS}')
        a(f's_add_u32 s55, s55, {L_XB + 56}')
        a('s_lshl_b32 s56, s59, 5')
        a('s_sub_u32 s55, s55, s56')
        a('v_add_u32 v140, s55, v140')
        for c in range(4):
            a(f'ds_read_b64 v[{160+2*c}:{161+2*c}], v140 offset:{(48-16*c)*96}')
        a('v_lshrrev_b32 v141, 1, v5')
        a('v_lshlrev_b32 v141, 1, v141')
        a('s_lshl_b32 s56, s59, 2')
        a('s_add_u32 s56, s56, s67')
        a('v_add_u32 v141, s56, v141')
        a('v_and_b32 v142, 7, v4')
        a('v_xor_b32 v141, v141, v142')
        a('v_lshlrev_b32 v141, 4, v141')
        a('v_lshl_add_u32 v141, v4, 7, v141')
        a('v_and_b32 v142, 1, v5')
        a('v_lshl_add_u32 v141, v142, 3, v141')
        a('v_lshrrev_b32 v140, 3, v0')
        a('v_and_b32 v143, 7, v0')
        a('v_and_b32 v142, 7, v140')
        a('v_xor_b32 v142, v142, v143')
        a('v_lshlrev_b32 v142, 4, v142')
        a('v_lshl_add_u32 v142, v140, 7, v142')
        a('v_lshlrev_b32 v140, 15, v140')
        a('v_lshl_add_u32 v143, v143, 4, v140')
        a('s_lshl_b32 s55, s60, 16')
        a('s_and_b32 s56, s60, 0xffff0000')
        a('s_cmp_eq_u32 s67, 0')
        a('s_cselect_b32 s60, s55, s56')
        for _ in range(24): a.comment('SPACER')
        for c in range(4):
            d0, d1 = 160+2*c, 161+2*c
            t = 144 + 4*c
            a(f'v_and_b32 v{t}, 0xffff0000, v{d1}')
            a(f'v_lshlrev_b32 v{t+1}, 16, v{d1}')
            a(f'v_and_b32 v{t+2}, 0xffff0000, v{d0}')
            a(f'v_lshlrev_b32 v{t+3}, 16, v{d0}')
            for r in range(4): a(f'v_mul_f32 v{t+r}, s60, v{t+r}')

    def pretouch_late(self):
        a = self.a
        a(f's_lshl_b32 s53, {sC}, 18')
        a(f's_lshl_b32 s54, {sR}, 13')
        a('s_add_u32 s53, s53, s54')
        a('v_lshlrev_b32 v8, 7, v1')
        Ls = a.newlabel('pt')
        a(f's_cmp_lg_u32 {sW}, 3')
        a(f's_cbranch_scc1 {Ls}'); a.comment('COND_BEGIN')
        self.mk_srd(SD_, sQ, 2097152)
        a(f'buffer_load_dword v255, v8, {srd(SD_)}, s53 offen')
        self.mk_srd(SD_, sB1, 3584)
        a(f'buffer_load_dword v255, v8, {srd(SD_)}, 0 offen')
        self.mk_srd(SD_, sB2, 1024)
        a(f'buffer_load_dword v255, v8, {srd(SD_)}, 0 offen')
        self.mk_srd(SD_, sOUT, 2097152)
        a(f'buffer_load_dword v255, off, {srd(SD_)}, s53')
        a('v_lshlrev_b32 v9, 21, v1')
        a('v_min_u32 v9, 0x1c00000, v9')
        a(f'buffer_load_dword v255, v9, {WS}, 0 offen')
        a.label(Ls); a.comment('COND_END')
        if self.o.get('ytouch', 0):
            Ls = a.newlabel('pt2')
            a(f's_cmp_lg_u32 {sW}, 2')
            a(f's_cbranch_scc1 {Ls}'); a.comment('COND_BEGIN')
            a(f's_add_u32 s53, s53, {Y0}')
            a(f'buffer_load_dword v255, v8, {WS}, s53 offen')
            a.label(Ls); a.comment('COND_END')
            Ls = a.newlabel('pt3')
            a(f's_cmp_lg_u32 {sW}, 1')
            a(f's_cbranch_scc1 {Ls}'); a.comment('COND_BEGIN')
            a(f's_lshr_b32 s53, {sR}, 3')
            a('s_lshl_b32 s53, s53, 5')
            a('v_and_b32 v9, 31, v1')
            a('v_add_u32 v9, s53, v9')
            a('v_lshrrev_b32 v10, 2, v9')
            a('v_lshlrev_b32 v10, 3, v10')
            a('v_and_b32 v9, 3, v9')
            a('v_add_u32 v9, v9, v10')
            a('v_lshrrev_b32 v10, 5, v1')
            a('v_lshl_add_u32 v9, v10, 2, v9')
            a(f's_lshl_b32 s53, {sC}, 8')
            a('v_add_u32 v9, s53, v9')
            a('v_lshlrev_b32 v9, 10, v9')
            a(f's_and_b32 s53, {sR}, 7')
            a('s_lshl_b32 s53, s53, 7')
            a(f's_add_u32 s53, s53, {X2}')
            a(f'buffer_load_dword v255, v9, {WS}, s53 offen')
            a.label(Ls); a.comment('COND_END')

    def prep(self):
        a = self.a; vq = self.vq
        a('v_lshrrev_b32 v8, 3, v0')
        a('v_and_b32 v9, 7, v0')
        a('v_lshlrev_b32 v8, 15, v8')
        a('v_lshl_add_u32 v8, v9, 4, v8')
        a(f's_lshl_b32 s53, {sC}, 5')
        a(f's_add_u32 s53, s53, {sR}')
        a('s_lshl_b32 s53, s53, 7')
        a(f's_add_u32 s53, s53, {GB}')
        for i in range(4): a(f'v_mov_b32 v{160+i}, -1')
        self.clear_g = True
        HR = 56
        def hblock():
            a(f's_lshl_b32 s53, {sC}, 5')
            a(f's_add_u32 s53, s53, {sR}')
            a('s_lshl_b32 s53, s53, 1')
            a(f's_lshr_b32 s54, {sW}, 1')
            a('s_add_u32 s53, s53, s54')
            a('s_lshl_b32 s53, s53, 12')
            self.mk_srd(SC_, sSSM, 4096, add='s53')
            a('v_and_b32 v54, 127, v0')
            a('v_lshlrev_b32 v51, 4, v54')
            a('v_subrev_u32 v52, 64, v51')
            a('v_subrev_u32 v53, 48, v51')
            HR = 56
            for rho in range(3):
                if rho:
                    a(f'v_add_u32 v52, 2048, v52')
                    a(f'v_add_u32 v53, 2048, v53')
                self.vload(f'v[{HR+8*rho}:{HR+8*rho+3}]', 'v52', srd(SC_), 0, tag='hr')
                self.vload(f'v[{HR+8*rho+4}:{HR+8*rho+7}]', 'v53', srd(SC_), 0, tag='hr')

        if self.o.get('hrfirst', 0): hblock()
        a('v_lshrrev_b32 v4, 5, v0')
        a('v_and_b32 v5, 31, v0')
        a(f's_lshl_b32 s53, {sR}, 16')
        a(f's_lshl_b32 s54, {sC}, 7')
        a('s_add_u32 s53, s53, s54')
        a('v_lshlrev_b32 v6, 13, v4')
        a('v_lshl_add_u32 v6, v5, 2, v6')
        a('v_add_u32 v6, s53, v6')
        a('v_subrev_u32 v7, 3072, v6')
        a('v_add_u32 v8, 4096, v6')
        self.mk_srd(SA, sK, 2097152)
        self.mk_srd(SB, sV, 2097152)
        self.mk_srd(SC_, sSK, 4096)
        K = 10
        for i in range(3): self.vload(f'v{K+i}', 'v7', srd(SA), 0, 1024*i, w='x1', tag='kv')
        for i in range(4): self.vload(f'v{K+3+i}', 'v6', srd(SA), 0, 1024*i, w='x1', tag='kv')
        for i in range(4): self.vload(f'v{K+7+i}', 'v8', srd(SA), 0, 1024*i, w='x1', tag='kv')
        V = 21
        for i in range(4): self.vload(f'v{V+i}', 'v6', srd(SB), 0, 1024*i, w='x1', tag='kv')
        for i in range(4): self.vload(f'v{V+4+i}', 'v8', srd(SB), 0, 1024*i, w='x1', tag='kv')
        a(f's_lshl_b32 s53, {sC}, 9')
        a('v_lshlrev_b32 v9, 4, v5')
        a('v_add_u32 v9, s53, v9')
        self.vload('v[30:33]', 'v9', srd(SC_), 0, tag='kv')
        if self.o.get('kvbar', 0): a('s_barrier')
        if not self.o.get('hrfirst', 0): hblock()
        if self.o.get('prefetch', True) and not self.o.get('pfearly', 1): self.code_prefetch()
        a(f's_lshl_b32 s53, {sC}, 5')
        a(f's_add_u32 s53, s53, {sR}')
        a('s_lshl_b32 s53, s53, 7')
        a(f's_add_u32 s53, s53, {GB}')
        a('v_lshrrev_b32 v85, 3, v0')
        a('v_and_b32 v86, 7, v0')
        a('v_lshlrev_b32 v85, 15, v85')
        a('v_lshl_add_u32 v85, v86, 4, v85')
        self.vstore('v[160:163]', 'v85', WS, 's53', 0, ' sc1', tag='clr')
        a(f's_add_u32 s53, s53, {32*32768}')
        self.vstore('v[160:163]', 'v85', WS, 's53', 0, ' sc1', tag='clr')
        a(f's_lshl_b32 s53, {sC}, 5')
        a(f's_add_u32 s53, s53, {sR}')
        a('s_lshl_b32 s53, s53, 2')
        a(f's_add_u32 s54, s{sD}, s53')
        a(f's_addc_u32 s55, s{sD+1}, 0')
        a('s_load_dword s60, s[54:55], 0')
        if self.o.get('pretouch', 2) == 2: self.pretouch()

        a('v_mov_b32 v80, 0'); a('v_mov_b32 v81, 0'); a('v_mov_b32 v82, 0'); a('v_mov_b32 v83, 0')
        a('v_lshlrev_b32 v84, 4, v0')
        a('v_cmp_gt_u32 vcc, 90, v0')
        a('s_and_saveexec_b64 s[56:57], vcc')
        a(f'ds_write_b128 v84, v[80:83] offset:{L_XB + 64*96}')
        a(f'ds_write_b128 v84, v[80:83] offset:{L_XB + XBS + 64*96}')
        a('s_mov_b64 exec, s[56:57]')
        if self.o.get('toepearly', 0):
            vq.wait('hr')
            a('v_and_b32 v54, 127, v0')
            a('v_lshlrev_b32 v50, 4, v54')
            a(f's_lshr_b32 s53, {sW}, 1')
            a(f's_mul_i32 s53, s53, {8*CS}')
            a(f's_add_u32 s53, s53, {L_TOEP}')
            a('v_add_u32 v50, s53, v50')
            for rho in range(3):
                D = HR + 8*rho
                if rho == 2:
                    a('v_cmp_gt_u32 vcc, 3, v54')
                    a('s_and_saveexec_b64 s[56:57], vcc')
                O = 100
                for k in range(7): a(f'v_alignbit_b32 v{O+k}, v{D+k+1}, v{D+k}, 16')
                for k in range(1, 7): a(f'v_alignbit_b32 v{110+k-1}, v{D+k+1}, v{D+k}, 16')
                for k in range(1, 7): a(f'v_mov_b32 v{120+k-1}, v{D+k}')
                off = rho*2048
                srcs = [O+0, 120, 110, D+2, O+2, 122, 112, D+4]
                for sg in range(8):
                    a(f'ds_write_b128 v50, v[{srcs[sg]}:{srcs[sg]+3}] offset:{sg*CS + off}')
                if rho < 2: a.nop(1)
                if rho == 2: a('s_mov_b64 exec, s[56:57]')
            self.stamp('toeplitz done')
        vq.wait('kv')
        self.stamp('kv loaded')
        if self.o.get('pretouch', 2) == 3: self.pretouch()
        a(f'v_add_u32 v{vTAG}, 16, v{vTAG}')
        Wp = 90
        a(f'v_lshlrev_b32 v{Wp+0}, 16, v30'); a(f'v_lshlrev_b32 v{Wp+1}, 16, v32')
        a(f'v_readfirstlane_b32 {sTAG}, v{vTAG}')
        a(f'v_and_b32 v{Wp+2}, 0xffff0000, v30'); a(f'v_and_b32 v{Wp+3}, 0xffff0000, v32')
        a(f'v_lshlrev_b32 v{Wp+4}, 16, v31'); a(f'v_lshlrev_b32 v{Wp+5}, 16, v33')
        a(f'v_and_b32 v{Wp+6}, 0xffff0000, v31'); a(f'v_and_b32 v{Wp+7}, 0xffff0000, v33')
        Lx = a.newlabel('noxc')
        a(f's_cmp_lg_u32 {sW}, 0')
        a(f's_cbranch_scc1 {Lx}'); a.comment('COND_BEGIN')
        a('s_lshl_b32 s53, s2, 2')
        a(f's_add_u32 s53, s53, {F_XC}')
        a(f'v_add_u32 v85, {sXCC}, v{vTAG}')
        a(f'buffer_store_dword v85, off, {WS}, s53 sc1')
        a.label(Lx); a.comment('COND_END')
        KU = 100
        for i in range(11):
            a(f'v_lshlrev_b32 v{KU+2*i}, 16, v{K+i}')
            a(f'v_and_b32 v{KU+2*i+1}, 0xffff0000, v{K+i}')
        VU = 122
        for i in range(8):
            a(f'v_lshlrev_b32 v{VU+2*i}, 16, v{V+i}')
            a(f'v_and_b32 v{VU+2*i+1}, 0xffff0000, v{V+i}')
        AC = 140
        def pr(b): return f'v[{b}:{b+1}]'
        for t, wq in enumerate([6, 4, 2, 0]):
            for i in range(8):
                if t == 0: a(f'v_pk_mul_f32 {pr(AC+2*i)}, {pr(KU+2*(i+0))}, {pr(Wp+6)}')
                else: a(f'v_pk_fma_f32 {pr(AC+2*i)}, {pr(KU+2*(i+t))}, {pr(Wp+wq)}, {pr(AC+2*i)}')
        for i in range(8):
            a(f'v_pk_mul_f32 {pr(AC+2*i)}, {pr(AC+2*i)}, {pr(VU+2*i)}')
        for j in range(4):
            hi, lo = 7 - 2*j - 1, 7 - 2*j
            a(f'v_cvt_pk_bf16_f32 v{160+j}, v{AC+2*lo}, v{AC+2*hi}')
            a(f'v_cvt_pk_bf16_f32 v{164+j}, v{AC+2*lo+1}, v{AC+2*hi+1}')
        a('v_sub_u32 v85, 7, v4')
        a('v_and_b32 v9, 7, v5')
        a('v_xor_b32 v85, v85, v9')
        a('v_lshlrev_b32 v85, 4, v85')
        a('v_lshl_add_u32 v85, v5, 8, v85')
        a(f'ds_write_b128 v85, v[160:163] offset:{L_KVT}')
        a(f'ds_write_b128 v85, v[164:167] offset:{L_KVT+128}')
        a('v_lshrrev_b32 v85, 3, v0')
        a('v_and_b32 v9, 7, v0')
        a('v_bfe_u32 v29, v85, 1, 3')
        a('v_xor_b32 v29, v29, v9')
        a('v_lshlrev_b32 v29, 4, v29')
        a('v_lshl_add_u32 v29, v85, 7, v29')
        a(f's_lshl_b32 s53, {sC}, 18')
        a(f's_lshl_b32 s54, {sR}, 7')
        a('s_sub_u32 s53, s53, s54')
        a(f's_add_u32 s53, s53, {XR + 3968}')
        a('v_lshlrev_b32 v50, 12, v85')
        a('v_lshl_add_u32 v50, v9, 4, v50')
        a('v_add_u32 v51, 0x20000, v50')
        a('s_waitcnt lgkmcnt(0)')
        a('s_barrier')
        a(f'ds_read_b128 v[160:163], v29 offset:{L_KVT}')
        a(f'ds_read_b128 v[164:167], v29 offset:{L_KVT+4096}')
        a('s_waitcnt lgkmcnt(1)')
        self.vstore('v[160:163]', 'v50', WS, 's53', 0, ' sc1', tag='xr')
        a('s_waitcnt lgkmcnt(0)')
        self.vstore('v[164:167]', 'v51', WS, 's53', 0, ' sc1', tag='xr')
        self.stamp('xr stored')
        self.mk_srd(SA, sW1, 512*1792*2)
        self.mk_srd(SB, sW2, 512*1792*2)
        a(f's_lshl_b32 s53, {sR}, 4')
        a(f's_lshl_b32 s54, {sW}, 2')
        a('s_add_u32 s53, s53, s54')
        a('s_mul_i32 s53, s53, 3584')
        a(f's_mul_i32 s54, {sC}, 448')
        a('s_add_u32 s53, s53, s54')
        a('v_lshrrev_b32 v34, 4, v1')
        a('v_and_b32 v9, 15, v1')
        a('v_mul_u32_u24 v29, 3584, v34')
        a('v_lshl_add_u32 v29, v9, 4, v29')
        a('v_add_u32 v29, s53, v29')
        self.vload('v[196:199]', 'v29', srd(SA), 0, tag='wr')
        self.vload('v[200:203]', 'v29', srd(SA), 0, 256, tag='wr')
        a('s_lshr_b32 s53, s2, 1')
        a('s_lshl_b32 s53, s53, 14')
        a('s_and_b32 s54, s2, 1')
        a('s_lshl_b32 s54, s54, 9')
        a('s_add_u32 s53, s53, s54')
        a('v_lshrrev_b32 v42, 4, v0')
        a('v_lshlrev_b32 v50, 10, v42')
        a('v_lshl_add_u32 v50, v9, 4, v50')
        a('v_add_u32 v50, s53, v50')
        self.vload('v[204:207]', 'v50', srd(SB), 0, tag='wr')
        self.vload('v[208:211]', 'v50', srd(SB), 0, 256, tag='wr')
        if self.o.get('toepmid', 0):
            vq.wait('hr')
            a('v_and_b32 v54, 127, v0')
            a('v_lshlrev_b32 v50, 4, v54')
            a(f's_lshr_b32 s53, {sW}, 1')
            a(f's_mul_i32 s53, s53, {8*CS}')
            a(f's_add_u32 s53, s53, {L_TOEP}')
            a('v_add_u32 v50, s53, v50')
            for rho in range(3):
                D = HR + 8*rho
                if rho == 2:
                    a('v_cmp_gt_u32 vcc, 3, v54')
                    a('s_and_saveexec_b64 s[56:57], vcc')
                O = 100
                for k in range(7): a(f'v_alignbit_b32 v{O+k}, v{D+k+1}, v{D+k}, 16')
                for k in range(1, 7): a(f'v_alignbit_b32 v{110+k-1}, v{D+k+1}, v{D+k}, 16')
                for k in range(1, 7): a(f'v_mov_b32 v{120+k-1}, v{D+k}')
                off = rho*2048
                srcs = [O+0, 120, 110, D+2, O+2, 122, 112, D+4]
                for sg in range(8):
                    a(f'ds_write_b128 v50, v[{srcs[sg]}:{srcs[sg]+3}] offset:{sg*CS + off}')
                if rho < 2: a.nop(1)
                if rho == 2: a('s_mov_b64 exec, s[56:57]')
            self.stamp('toeplitz done')

        vq.wait('xr')
        a('s_barrier')
        Lnf = a.newlabel('noflag')
        a(f's_cmp_lg_u32 {sW}, 0')
        a(f's_cbranch_scc1 {Lnf}'); a.comment('COND_BEGIN')
        a(f's_lshl_b32 s53, {sC}, 5')
        a(f's_add_u32 s53, s53, {sR}')
        a('s_lshl_b32 s53, s53, 2')
        a(f's_add_u32 s53, s53, {F_PREP}')
        a(f'buffer_store_dword v{vTAG}, off, {WS}, s53 sc1')
        a.label(Lnf); a.comment('COND_END')
        self.stamp('prep published')
        if not self.o.get('toepmid', 0) and not self.o.get('toepearly', 0):
            a('v_and_b32 v54, 127, v0')
            a('v_lshlrev_b32 v50, 4, v54')
            a(f's_lshr_b32 s53, {sW}, 1')
            a(f's_mul_i32 s53, s53, {8*CS}')
            a(f's_add_u32 s53, s53, {L_TOEP}')
            a('v_add_u32 v50, s53, v50')
            for rho in range(3):
                D = HR + 8*rho
                if rho == 2:
                    a('v_cmp_gt_u32 vcc, 3, v54')
                    a('s_and_saveexec_b64 s[56:57], vcc')
                O = 100
                for k in range(7): a(f'v_alignbit_b32 v{O+k}, v{D+k+1}, v{D+k}, 16')
                for k in range(1, 7): a(f'v_alignbit_b32 v{110+k-1}, v{D+k+1}, v{D+k}, 16')
                for k in range(1, 7): a(f'v_mov_b32 v{120+k-1}, v{D+k}')
                off = rho*2048
                srcs = [O+0, 120, 110, D+2, O+2, 122, 112, D+4]
                for sg in range(8):
                    a(f'ds_write_b128 v50, v[{srcs[sg]}:{srcs[sg]+3}] offset:{sg*CS + off}')
                if rho < 2: a.nop(1)
                if rho == 2: a('s_mov_b64 exec, s[56:57]')
            self.stamp('toeplitz done')


    def w_transpose(self):
        a = self.a; vq = self.vq
        vq.wait('wr')
        a('v_lshrrev_b32 v212, 4, v0')
        a('v_and_b32 v213, 15, v0')
        a('v_mul_u32_u24 v214, 448, v212')
        a('v_lshl_add_u32 v214, v213, 4, v214')
        a(f'ds_write_b128 v214, v[196:199] offset:{L_W1R}')
        a('v_cmp_gt_u32 vcc, 12, v213')
        a('s_and_saveexec_b64 s[56:57], vcc')
        a(f'ds_write_b128 v214, v[200:203] offset:{L_W1R+256}')
        a('s_mov_b64 exec, s[56:57]')
        a('v_mul_u32_u24 v214, 576, v212')
        a('v_lshl_add_u32 v214, v213, 4, v214')
        a(f'ds_write_b128 v214, v[204:207] offset:{L_W2R}')
        a(f'ds_write_b128 v214, v[208:211] offset:{L_W2R+256}')
        a('v_lshrrev_b32 v212, 5, v1')
        a('v_bfe_u32 v213, v1, 2, 2')
        a('v_bfe_u32 v214, v1, 4, 1')
        a('v_and_b32 v215, 3, v1')
        a('v_lshlrev_b32 v215, 3, v215')
        a('v_lshl_add_u32 v215, v214, 5, v215')
        a('v_lshl_add_u32 v216, v212, 3, v213')
        a('v_mul_u32_u24 v216, 448, v216')
        a('v_add_u32 v216, v216, v215')
        a(f's_lshl_b32 s54, {sW}, 6')
        a('v_add_u32 v216, s54, v216')
        a('v_lshl_add_u32 v217, v212, 2, v213')
        a('v_mul_u32_u24 v217, 576, v217')
        a('v_add_u32 v217, v217, v215')
        a('v_add_u32 v217, s54, v217')
        a('s_waitcnt lgkmcnt(0)')
        a('s_barrier')
        a(f'ds_read_b64_tr_b16 v[168:169], v216 offset:{L_W1R}')
        a(f'ds_read_b64_tr_b16 v[170:171], v216 offset:{L_W1R + 4*448}')
        a(f'ds_read_b64_tr_b16 v[172:173], v216 offset:{L_W1R + 256}')
        a(f'ds_read_b64_tr_b16 v[174:175], v216 offset:{L_W1R + 4*448 + 256}')
        a(f'ds_read_b64_tr_b16 v[176:177], v217 offset:{L_W2R}')
        a(f'ds_read_b64_tr_b16 v[178:179], v217 offset:{L_W2R + 8*576}')
        a(f'ds_read_b64_tr_b16 v[180:181], v217 offset:{L_W2R + 256}')
        a(f'ds_read_b64_tr_b16 v[182:183], v217 offset:{L_W2R + 8*576 + 256}')
        a(f's_mul_i32 s53, {sC}, 7')
        a(f's_add_u32 s53, s53, {sW}')
        a(f's_mul_i32 s54, {sR}, 56')
        a('s_add_u32 s53, s53, s54')
        a('s_lshl_b32 s53, s53, 10')
        a(f's_add_u32 s53, s53, {W1F}')
        a(f's_add_u32 s55, s53, {4*1024}')
        a('s_lshl_b32 s57, s2, 12')
        a(f's_add_u32 s57, s57, {DUMMY2}')
        a(f's_cmp_eq_u32 {sW}, 3')
        a('s_cselect_b32 s55, s57, s55')
        a('s_waitcnt lgkmcnt(4)')
        self.vstore('v[168:171]', f'v{vL16}', WS, 's53', 0, ' sc1', tag='wf')
        self.vstore('v[172:175]', f'v{vL16}', WS, 's55', 0, ' sc1', tag='wf')
        a('s_mov_b32 s4, s53'); a('s_mov_b32 s5, s55')
        a('s_lshr_b32 s54, s2, 1')
        a('s_mul_i32 s55, s54, 9363')
        a('s_lshr_b32 s55, s55, 18')
        a('s_mul_i32 s56, s55, 28')
        a('s_sub_u32 s54, s54, s56')
        a('s_lshl_b32 s54, s54, 2')
        a('s_add_u32 s54, s54, s55')
        a('s_lshl_b32 s54, s54, 4')
        a('s_and_b32 s53, s2, 1')
        a('s_lshl_b32 s53, s53, 3')
        a(f's_add_u32 s53, s53, {sW}')
        a('s_add_u32 s53, s53, s54')
        a('s_lshl_b32 s53, s53, 10')
        a(f's_add_u32 s53, s53, {W2F}')
        a('s_cmp_ge_u32 s2, 224')
        a('s_cselect_b32 s53, s57, s53')
        a('s_waitcnt lgkmcnt(0)')
        self.vstore('v[176:179]', f'v{vL16}', WS, 's53', 0, ' sc1', tag='wf')
        a('s_mov_b32 s6, s53')
        a(f's_add_u32 s54, s53, {4*1024}')
        a('s_cselect_b32 s53, s57, s54') if False else None
        a('s_cmp_ge_u32 s2, 224')
        a('s_cselect_b32 s53, s57, s54')
        self.vstore('v[180:183]', f'v{vL16}', WS, 's53', 0, ' sc1', tag='wf')
        a('s_mov_b32 s7, s53')

    def dummy_stores(self):
        a = self.a
        Ls = a.newlabel('nods')
        a(f's_cmp_eq_u32 {sFAST}, 0')
        a(f's_cbranch_scc1 {Ls}'); a.comment('COND_BEGIN')
        D = 'v[192:195]'
        if self.o.get('dsH', 0):
            a(f's_lshl_b32 s53, {sC}, 1')
            a(f's_add_u32 s53, s53, {sT1}')
            a('s_mul_i32 s53, s53, 448')
            a(f's_lshl_b32 s54, {sJ}, 2')
            a(f's_add_u32 s54, s54, {sW}')
            a('s_min_u32 s54, s54, 55')
            a('s_lshl_b32 s54, s54, 1')
            a('s_add_u32 s53, s53, s54')
            a('s_lshl_b32 s53, s53, 10')
            a(f's_add_u32 s53, s53, {H0}')
            for u in range(4):
                a(f'buffer_store_dwordx4 {D}, v{vL16}, {WS}, s53 offen')
                a(f'buffer_store_dwordx4 {D}, v{vL16}, {WS}, s53 offen offset:1024')
                if u < 3: a(f's_add_u32 s53, s53, {112*1024}')
        a(f's_lshl_b32 s53, {sC}, 8')
        a(f's_lshl_b32 s54, {sR}, 3')
        a('s_add_u32 s53, s53, s54')
        a(f's_add_u32 s53, s53, {sW}')
        a('s_lshl_b32 s53, s53, 10')
        a(f's_add_u32 s53, s53, {Y0}')
        a(f'buffer_store_dwordx4 {D}, v{vL16}, {WS}, s53 offen')
        a('s_add_u32 s53, s53, 4096')
        a(f'buffer_store_dwordx4 {D}, v{vL16}, {WS}, s53 offen')
        if not self.o.get('dsX', 0):
            a.label(Ls); a.comment('COND_END'); return
        a('v_lshrrev_b32 v8, 3, v0')
        a(f's_lshr_b32 s53, {sR}, 3')
        a('s_lshl_b32 s53, s53, 5')
        a('v_add_u32 v8, s53, v8')
        a('v_lshrrev_b32 v9, 2, v8')
        a('v_lshlrev_b32 v9, 3, v9')
        a('v_and_b32 v8, 3, v8')
        a('v_add_u32 v8, v8, v9')
        a(f's_lshl_b32 s53, {sC}, 8')
        a('v_add_u32 v8, s53, v8')
        a('v_lshlrev_b32 v8, 10, v8')
        a('v_and_b32 v9, 7, v0')
        a('v_lshl_add_u32 v8, v9, 4, v8')
        a(f's_and_b32 s53, {sR}, 7')
        a('s_lshl_b32 s53, s53, 7')
        a(f's_add_u32 s53, s53, {X2}')
        a(f'buffer_store_dwordx4 {D}, v8, {WS}, s53 offen')
        a('s_add_u32 s53, s53, 4096')
        a(f'buffer_store_dwordx4 {D}, v8, {WS}, s53 offen')
        a.label(Ls); a.comment('COND_END')

    def weight_state_init(self):
        a = self.a
        a(f's_cmp_ge_u32 {sR}, 14')
        a(f's_cselect_b32 {sT1}, 1, 0')
        a(f's_mul_i32 s53, {sT1}, 14')
        a(f's_sub_u32 {sJ}, {sR}, s53')
        a(f's_lshl_b32 s14, {sJ}, 2')
        a(f's_add_u32 s14, s14, {sW}')
        a('s_min_u32 s14, s14, 55')
        a('s_lshl_b32 s14, s14, 10')
        a(f's_add_u32 s14, s14, {W1F}')
        a(f's_and_b32 s15, {sR}, 7')
        a('s_lshl_b32 s15, s15, 1')
        a(f's_lshl_b32 s53, {sW}, 4')
        a('s_add_u32 s15, s15, s53')
        a('s_lshl_b32 s15, s15, 10')
        a(f's_add_u32 s15, s15, {W2F}')
        self.wlist = [('w1', k) for k in range(32)] + [('w2', nt, i) for i in range(28) for nt in range(2)]
    def weight_batch(self, n):
        a = self.a
        for _ in range(n):
            if not self.wlist: return
            it = self.wlist.pop(0)
            if it[0] == 'w1':
                k = it[1]
                a(f's_add_u32 s13, s14, {k*56*1024}')
                self.vload(W1reg(k), f'v{vL16}', WS, 's13', 0, ' sc1', tag='w')
            else:
                _, nt, i = it
                a(f's_add_u32 s13, s15, {i*64*1024}')
                self.vload(W2reg(nt, i), f'v{vL16}', WS, 's13', nt*1024, ' sc1', tag='w')

    def conv(self):
        a = self.a; vq = self.vq; o = self.o
        a(f's_lshl_b32 s53, {sC}, 7')
        a(f's_add_u32 s53, s53, {F_PREP}')
        a('v_and_b32 v5, 31, v1')
        a('v_lshlrev_b32 v5, 2, v5')
        a('v_add_u32 v5, s53, v5')
        if o.get('poll1', 1):
            Lp = a.newlabel('np')
            a(f's_cmp_lg_u32 {sW}, 0')
            a(f's_cbranch_scc1 {Lp}')
            self.poll(5, 8)
            a.label(Lp)
            vq.drain()
            a('s_barrier')
        else:
            self.poll(5, 8)
        self.stamp('prep flags seen')
        a(f's_lshl_b32 s53, {sC}, 5')
        a(f's_add_u32 s53, s53, {sR}')
        a('s_lshl_b32 s61, s53, 7')
        a('s_lshl_b32 s53, s53, 13')
        a(f's_add_u32 s53, s53, {XR}')
        a('v_lshlrev_b32 v5, 4, v0')
        self.vload('v[184:187]', 'v5', WS, 's53', 0, ' sc1', tag='x0')
        a('s_add_u32 s53, s53, 4096')
        self.vload('v[188:191]', 'v5', WS, 's53', 0, ' sc1', tag='x1')
        a(f'v_add_u32 v132, {F_XC}, v{vL16}')
        a(f'buffer_load_dwordx4 v[128:131], v132, {WS}, 0 offen sc1'); vq.issue('fw')
        if not o.get('wtloop', 0): self.w_transpose()
        a('v_lshrrev_b32 v4, 2, v0')
        a('v_mul_u32_u24 v4, 96, v4')
        a('v_and_b32 v5, 3, v0')
        a('v_lshl_add_u32 v4, v5, 4, v4')
        vq.wait('x0')
        a(f'ds_write_b128 v4, v[184:187] offset:{L_XB}')
        vq.wait('x1')
        a(f'ds_write_b128 v4, v[188:191] offset:{L_XB + XBS}')
        a(f's_lshr_b32 s67, {sW}, 1')
        a(f's_and_b32 s59, {sW}, 1')
        a('v_and_b32 v4, 15, v1')
        a('v_lshrrev_b32 v5, 4, v1')
        a('v_and_b32 v6, 7, v4')
        a(f'v_mul_u32_u24 v6, {CS}, v6')
        a('v_and_b32 v7, 8, v4')
        a('v_lshl_add_u32 v7, v5, 3, v7')
        a('v_lshl_add_u32 v6, v7, 1, v6')
        a(f's_mul_i32 s55, s67, {8*CS}')
        a('s_lshl_b32 s56, s59, 5')
        a('s_add_u32 s55, s55, s56')
        a(f's_add_u32 s55, s55, {L_TOEP}')
        a('v_add_u32 v6, s55, v6')
        a('v_sub_u32 v7, 15, v4')
        a('v_mul_u32_u24 v7, 96, v7')
        a('v_lshl_add_u32 v7, v5, 4, v7')
        a(f's_mul_i32 s55, s67, {XBS}')
        a(f's_add_u32 s55, s55, {L_XB}')
        a('v_add_u32 v7, s55, v7')
        a('s_waitcnt lgkmcnt(0)')
        a('s_barrier')
        if self.o.get('pretouch', 2) == 1: self.pretouch_late()
        for i in range(16): a(f'v_mov_b32 v{16+i}, 0')
        self.stamp('x in lds')
        wb1 = o.get('wb1', 12)
        def Er(m, j): b = 32 + 32*(m % 3) + 4*j; return f'v[{b}:{b+3}]'
        def Fr(m, j): b = 32 + 32*(m % 3) + 16 + 4*j; return f'v[{b}:{b+3}]'
        def gloads(m):
            l = []
            for j in range(4):
                e = 16*j - m
                l.append(f'ds_read_b128 {Fr(m,j)}, v6 offset:{64*(m+16*j)}')
                l.append(f'ds_read_b128 {Er(m,j)}, v7 offset:{(48-e)*96}')
            return l
        for l in gloads(0): a(l)
        for l in gloads(1)[:7]: a(l)
        first_extra = gloads(1)[7:]
        wt1, wt2 = [], []
        if o.get('wtloop', 0):
            wt = self.capture(self.w_transpose)
            bi = [i for i, l in enumerate(wt) if l.startswith('s_barrier')][0]
            wt1, wt2 = wt[:bi+1], wt[bi+1:]
        xc = self.capture(lambda: self.check_xc(128, 132))
        ei = [i for i, l in enumerate(xc) if 'SPIN_END' in l][0]
        xc_head, xc_rest = xc[:ei+1], xc[ei+1:]
        fillers = []
        for m in range(16):
            nxt = (first_extra if m == 0 else []) + (gloads(m+2) if m + 2 < 16 else [])
            if m == 1:
                for l in wt1: a.lines.append(l)
            if m == 2:
                for l in wt2: a.lines.append(l)
            if m == o.get('xcslot', 1):
                for l in xc_head: a.lines.append(l)
                epi = self.capture(self.conv_epi_pre)
                def grp(lines):
                    out = []
                    for l in lines:
                        if out and l.startswith('s_cselect') : out[-1].append(l)
                        else: out.append([l])
                    return out
                epi = grp(epi)
                fillers = grp(xc_rest) + epi; nepi = len(epi)
            if m == 0: a('s_waitcnt lgkmcnt(7)')
            elif m < 15: a('s_waitcnt lgkmcnt(8)')
            else: a('s_waitcnt lgkmcnt(0)')
            mf = []
            for j in range(4):
                for c in range(j, 4):
                    mf.append(f'v_mfma_f32_16x16x32_bf16 v[{16+4*c}:{19+4*c}], {Fr(m,j)}, {Er(m,c-j)}, v[{16+4*c}:{19+4*c}]')
            if m == o.get('fwpub', 4):
                vq.wait('wf')
                a('s_barrier')
                Lnf = a.newlabel('noflag')
                a(f's_cmp_lg_u32 {sW}, 0')
                a(f's_cbranch_scc1 {Lnf}'); a.comment('COND_BEGIN')
                a('s_lshl_b32 s53, s2, 2')
                a(f's_add_u32 s53, s53, {F_W}')
                a(f'buffer_store_dword v{vTAG}, off, {WS}, s53 sc1')
                a.label(Lnf); a.comment('COND_END')
            if m == o.get('fwpub', 4) and o.get('wretouch', 0):
                for q in range(4):
                    a(f'buffer_load_dword v255, v{vL16}, {WS}, s{4+q} offen'); vq.issue('wt')
            if m == o.get('dsslot', 10) and o.get('dstore', 1):
                assert len(fillers) <= nepi
                self.dummy_stores()
            if m == o.get('fwld', 13) and not o.get('fw1', 0):
                a(f'v_add_u32 v132, {F_W}, v{vL16}')
                a(f'buffer_load_dwordx4 v[128:131], v132, {WS}, 0 offen sc1'); vq.issue('fw2')
            for i, ins in enumerate(mf):
                a(ins)
                if nxt: a(nxt.pop(0))
                for _ in range(2):
                    if fillers:
                        a.lines.extend(fillers.pop(0))
            assert not nxt
        for gl in fillers: a.lines.extend(gl)
        self.stamp('conv mfma done')
        a.nop(6)
        for c in range(4):
            acc = 16+4*c
            for r in range(4): a(f'v_add_f32 v{acc+r}, v{acc+r}, v{144+4*c+r}')
            a(f'v_cvt_pk_bf16_f32 v{64+2*c}, v{acc}, v{acc+1}')
            a(f'v_cvt_pk_bf16_f32 v{65+2*c}, v{acc+2}, v{acc+3}')
            a(f'ds_write_b64 v141, v[{64+2*c}:{65+2*c}] offset:{L_GT + 16*c*128}')
        a('s_waitcnt lgkmcnt(0)')
        a('s_barrier')
        a(f'ds_read_b128 v[48:51], v142 offset:{L_GT}')
        a(f'ds_read_b128 v[52:55], v142 offset:{L_GT + 4096}')
        a(f's_add_u32 s53, s61, {GB}')
        a('s_waitcnt lgkmcnt(1)')
        self.vstore('v[48:51]', 'v143', WS, 's53', 0, ' sc1', tag='g')
        a(f's_add_u32 s53, s53, {32*32768}')
        a('s_waitcnt lgkmcnt(0)')
        self.vstore('v[52:55]', 'v143', WS, 's53', 0, ' sc1', tag='g')
        self.mk_srd(SA, sQ, 2097152)
        a(f's_lshl_b32 s53, {sC}, 8')
        a(f's_lshl_b32 s54, {sR}, 3')
        a('s_add_u32 s53, s53, s54')
        a(f's_add_u32 s53, s53, {sW}')
        a('s_lshl_b32 s53, s53, 10')
        self.vload('v[8:11]', f'v{vL16}', srd(SA), 's53', 0, tag='q')
        a('s_add_u32 s53, s53, 4096')
        self.vload('v[12:15]', f'v{vL16}', srd(SA), 's53', 0, tag='q')
        if o.get('fw1', 0):
            Lq = a.newlabel('nfw')
            a(f's_cmp_lg_u32 {sW}, 0')
            a(f's_cbranch_scc1 {Lq}')
            a(f'v_add_u32 v132, {F_W}, v{vL16}')
            keep = list(self.vq.ops)
            self.poll(132, 128, x4=True)
            self.vq.ops = keep
            a.label(Lq)
        else:
            self.check_fw(128, 132)
        a('s_barrier')
        self.weight_batch(o.get('wb2', 24))
        self.stamp('conv published')

    def finish(self):
        a = self.a
        a.label('L_fin')
        Ln = a.newlabel('noep')
        a('s_cmp_lg_u32 s2, 0')
        a(f's_cbranch_scc1 {Ln}'); a.comment('COND_BEGIN')
        a(f's_cmp_lg_u32 {sW}, 0')
        a(f's_cbranch_scc1 {Ln}'); a.comment('COND_BEGIN')
        a(f'buffer_store_dword v{vTAG}, off, {WS}, 0 sc1')
        a.label(Ln)
        if self.stamps:
            self.stamp('end')
            a('s_memtime s[62:63]'); a('s_waitcnt lgkmcnt(0)'); a('s_sub_u32 s100, s62, s100')
            a('s_lshl_b32 s53, s2, 2')
            a(f's_add_u32 s53, s53, {sW}')
            a('s_lshl_b32 s53, s53, 7')
            a(f's_add_u32 s53, s53, {TS}')
            a('s_mov_b64 exec, 1')
            a('v_mov_b32 v4, 0')
            for i in range(self.nstamp):
                a(f'v_mov_b32 v5, s{76+i}')
                a(f'buffer_store_dword v5, v4, {WS}, s53 offen offset:{4*i}')
                a.nop(1)
            if self.o.get('dbgstamps'):
                Ld = a.newlabel('nodbg')
                a(f's_cmp_lg_u32 s2, {self.o.get("dbgstamps")}')
                a(f's_cbranch_scc1 {Ld}')
                a(f's_cmp_lg_u32 {sW}, 0')
                a(f's_cbranch_scc1 {Ld}')
                self.mk_srd(SA, sDBG, 256)
                sel = [1, 3, 5, 6, 7, 9, 10, 12, 13, 15, 16, 18, 19, 21, 22, 22]
                for j, i in enumerate(sel):
                    a(f's_sub_u32 s54, s{76+i}, s76')
                    a(f'v_mov_b32 v5, s54')
                    a(f'buffer_store_dword v5, v4, {srd(SA)}, 0 offen offset:{4*j}')
                    a.nop(1)
                a.label(Ld)
            a(f'v_mov_b32 v5, {sFAST}')
            a(f'buffer_store_dword v5, v4, {WS}, s53 offen offset:116')
            a.nop(1)
            a(f'v_mov_b32 v5, s100')
            a(f'buffer_store_dword v5, v4, {WS}, s53 offen offset:120')
            a.nop(1)
            a(f'v_mov_b32 v5, {sABORT}')
            a(f'buffer_store_dword v5, v4, {WS}, s53 offen offset:124')
        a('s_waitcnt vmcnt(0)')
        a.label('L_end')
        a('s_endpgm')
        self.finished = True
        if not getattr(self, 'more_code', False): a.label('L_code_end')

    def build(self):
        self.prologue()
        self.prep()
        if self.stop != 'prep': self.conv()
        if self.stop not in ('prep', 'conv'):
            if self.o.get('mlp', 4) == 3:
                from gen3_mlp import emit_mlp
            else:
                from gen4_mlp import emit_mlp
            emit_mlp(self)
        if not getattr(self, 'finished', False): self.finish()
        else: self.a.label('L_code_end')
        body = self.a.text()
        hdr = open('cdna_kernels/' + NAME[:-7] + '.s.ref').read().split('; Override launch')[0]
        s = hdr + f'; @launch grid=(256,1,1) block=(256,1,1) lds={LDS_SIZE}\n' + DOC
        s += f'''.amdgcn_target "amdgcn-amd-amdhsa--gfx950"
.text
.globl {NAME}
.p2align 8
.type {NAME},@function
{NAME}:
.set CODE_BYTES, {'L_slow' if 'L_slow:' in body else 'L_code_end'} - {NAME}
''' + body + f'''.section .rodata,"a"
.p2align 6
.amdhsa_kernel {NAME}
  .amdhsa_next_free_vgpr 512
  .amdhsa_next_free_sgpr 102
  .amdhsa_accum_offset 256
  .amdhsa_group_segment_fixed_size 0
  .amdhsa_kernarg_size 112
  .amdhsa_user_sgpr_count 2
  .amdhsa_user_sgpr_kernarg_segment_ptr 1
  .amdhsa_system_sgpr_workgroup_id_x 1
.end_amdhsa_kernel
'''
        return s

def main():
    ap = argparse.ArgumentParser()
    ap.add_argument('--stop', default='end')
    ap.add_argument('--stamps', action='store_true')
    ap.add_argument('-o', default='k.s')
    ap.add_argument('--opt', action='append', default=[])
    args = ap.parse_args()
    opts = {}
    for kv in args.opt:
        k, v = kv.split('='); opts[k] = int(v) if v.lstrip('-').isdigit() else v
    g = Gen(stop=args.stop, stamps=args.stamps, opts=opts)
    s = g.build()
    probs = check_hazards(g.a.lines)
    for p in probs: print(p)
    wp = check_waits(g.a.lines)
    for p in wp[:30]: print(p)
    print(len(wp), 'wait problems')
    print(f'{len(g.a.lines)} lines, {len(probs)} hazards')
    open(args.o, 'w').write(s)
    open(args.o + '.stamps', 'w').write('\n'.join(g.stamp_names))

if __name__ == '__main__':
    main()
```

```python
from gen2 import *
from gen2_mlp import tok_base, yflag_addr, emit_r1a
from gen3_mlp import poll_issue, poll_check, spread, DUMMY

def pr(b): return f'v[{b}:{b+1}]'
VINV = 108

def rows_finish(g, rows, scx, scy, part=None):
    a = g.a
    if part in (None, 1):
        for (X, eta) in rows:
            a(f's_lshl_b32 s53, {sW}, 10')
            a(f's_add_u32 s53, s53, {L_G + eta*4096}')
            a(f'v_add_u32 v{X+28}, s53, v{vL16}')
            a(f'ds_read_b128 v[{X+16}:{X+19}], v{X+28}')
        a('s_waitcnt lgkmcnt(0)')
        for (X, eta) in rows: g.unpack8(X+16, X+20)
        for (X, eta) in rows:
            for i in range(4):
                a(f'v_pk_fma_f32 {pr(X+2*i)}, {pr(X+8+2*i)}, {pr(X+20+2*i)}, {pr(X+2*i)}')
        for (X, eta) in rows: g.pack8(X, X+32)
        for (X, eta) in rows: g.unpack8(X+32, X)
        for (X, eta) in rows:
            a(f's_add_u32 s54, s75, {X1 + eta*4096 + (0 if g.fast else g.rl*0x400000)}')
            g.vstore(f'v[{X+32}:{X+35}]', f'v{vL16}', WS, 's54', 0, scx, tag=f'rx{eta}')
    if part in (None, 2):
        if g.o.get('ln2an', 1):
            g.ln_multi([(X, X+8, X+36) for (X, eta) in rows], double=True)
        else:
            g.ln_multi([(X, X+8, X+36) for (X, eta) in rows])
            g.ln_multi([(X+8, X+8, X+36) for (X, eta) in rows])
        for (X, eta) in rows: g.pack8(X+8, X+16)
        for (X, eta) in rows:
            a(f's_add_u32 s54, s75, {Y0 + eta*4096 + (0 if g.fast else g.rl*0x200000)}')
            g.vstore(f'v[{X+16}:{X+19}]', f'v{vL16}', WS, 's54', 0, scy, tag=f'ry{eta}')

def row_flag(g, eta):
    a = g.a
    g.vq.wait(f'ry{eta}')
    a(f's_add_u32 s53, s61, {(g.rl*2 + eta)*8*128*4}')
    g.flag('s53')

def rowB_fillers(g):
    a = g.a; F = []
    def I(s): F.append(lambda s=s: a(s))
    def N(n): F.append(lambda: a.nop(n))
    X = 32
    steps = ['quad_perm:[1,0,3,2] row_mask:0xf bank_mask:0xf', 'quad_perm:[2,3,0,1] row_mask:0xf bank_mask:0xf',
             'row_half_mirror row_mask:0xf bank_mask:0xf', 'row_mirror row_mask:0xf bank_mask:0xf',
             'row_bcast:15 row_mask:0xa bank_mask:0xf', 'row_bcast:31 row_mask:0xc bank_mask:0xf']
    def unpack(src):
        for i in range(4):
            I(f'v_lshlrev_b32 v{X+2*i}, 16, v{src+i}'); I(f'v_and_b32 v{X+2*i+1}, 0xffff0000, v{src+i}')
    def stats(double):
        I(f'v_add_f32 v124, v{X}, v{X+1}'); I(f'v_mul_f32 v125, v{X}, v{X}'); I(f'v_fmac_f32 v125, v{X+1}, v{X+1}')
        for i in range(2, 8):
            I(f'v_add_f32 v124, v124, v{X+i}'); I(f'v_fmac_f32 v125, v{X+i}, v{X+i}')
        N(2)
        for st in steps:
            I(f'v_add_f32_dpp v124, v124, v124 {st}'); I(f'v_add_f32_dpp v125, v125, v125 {st}'); N(1)
        I('v_readlane_b32 s58, v124, 63'); I('v_readlane_b32 s59, v125, 63'); N(2)
        I('v_mov_b32 v126, s58'); I('v_mov_b32 v127, s59')
        I('v_mul_f32 v126, 0x3b000000, v126'); I('v_mul_f32 v127, 0x3b000000, v127')
        I('v_fma_f32 v127, -v126, v126, v127'); I('v_max_f32 v127, 0, v127')
        if double:
            I('v_add_f32 v124, 0x3727c5ac, v127'); I('v_rsq_f32 v124, v124'); N(1)
            I('v_mul_f32 v127, v127, v124'); I('v_fmaak_f32 v127, v127, v124, 0x3727c5ac'); I('v_rsq_f32 v127, v127'); N(1)
            I('v_mul_f32 v127, v127, v124')
        else:
            I('v_add_f32 v127, 0x3727c5ac, v127'); I('v_rsq_f32 v127, v127'); N(1)
        I('v_mul_f32 v126, v126, v127')
    F.append(lambda: g.vq.wait('x2b'))
    unpack(40)
    stats(False)
    for i in range(8):
        I(f'v_fma_f32 v109, v{X+i}, v127, -v126')
        I(f'v_lshlrev_b32 v110, 16, v{44+i//2}' if i % 2 == 0 else f'v_and_b32 v110, 0xffff0000, v{44+i//2}')
        I(f'v_fma_f32 v{X+i}, v109, v110, v{X+i}')
    for i in range(4): I(f'v_cvt_pk_bf16_f32 v{40+i}, v{X+2*i}, v{X+2*i+1}')
    unpack(40)
    rl = g.cur_layer
    def stx():
        a(f's_add_u32 s54, s75, {X1 + 4096 + (0 if g.fast else rl*0x400000)}')
        g.vstore('v[40:43]', f'v{vL16}', WS, 's54', 0, (g.sc_x3 if rl else ' sc1'), tag='rx1')
    F.append(stx)
    stats(True)
    for i in range(8): I(f'v_fma_f32 v{X+i}, v{X+i}, v127, -v126')
    for i in range(4): I(f'v_cvt_pk_bf16_f32 v{44+i}, v{X+2*i}, v{X+2*i+1}')
    def sty():
        a(f's_add_u32 s54, s75, {Y0 + 4096 + (0 if g.fast else rl*0x200000)}')
        g.vstore('v[44:47]', f'v{vL16}', WS, 's54', 0, (g.sc_y1 if rl else g.sc_y0), tag='ry1')
    F.append(sty)
    return F

def mlp_setup0(g):
    a = g.a
    tok_base(a, 's75', 0)
    a(f's_lshl_b32 s61, {sC}, 7')
    a(f's_lshl_b32 s54, {sR}, 2')
    a('s_add_u32 s61, s61, s54')
    a(f's_add_u32 s61, s61, {sW}')
    a('s_lshl_b32 s61, s61, 2')
    a(f's_add_u32 s61, s61, {F_Y}')

def mlp_setup(g, part=1):
    a = g.a
    if part == 0:
        mlp_setup0(g); return
    a(f's_lshl_b32 s53, {sC}, 7')
    a(f's_lshl_b32 s54, {sT1}, 6')
    a('s_add_u32 s53, s53, s54')
    a(f's_lshl_b32 s54, {sW}, 3')
    a('s_add_u32 s53, s53, s54')
    a('s_lshl_b32 s53, s53, 2')
    a(f's_add_u32 s53, s53, {F_Y}')
    a('v_and_b32 v120, 7, v1')
    a('v_bfe_u32 v12, v1, 3, 1')
    a('v_lshl_add_u32 v120, v12, 5, v120')
    a('v_lshlrev_b32 v120, 2, v120')
    a('v_add_u32 v120, s53, v120')
    a('v_lshrrev_b32 v14, 5, v1')
    a('v_and_b32 v15, 31, v1')
    a('v_and_b32 v12, 15, v1')
    for m in range(8):
        a(f'v_add_u32 v{4+m}, {2*m}, v14')
        a(f'v_xor_b32 v{4+m}, v{4+m}, v12')
        a(f'v_lshlrev_b32 v{4+m}, 4, v{4+m}')
        a(f'v_lshl_add_u32 v{4+m}, v15, 10, v{4+m}')
    a(f's_and_b32 s54, {sW}, 1')
    a('s_lshl_b32 s54, s54, 7')
    a(f'v_xor_b32 v121, s54, v{vL16}')
    a(f's_lshl_b32 s68, {sJ}, 2')
    a(f's_add_u32 s68, s68, {sW}')
    a(f's_lshl_b32 s53, {sC}, 1')
    a(f's_add_u32 s53, s53, {sT1}')
    a('s_lshl_b32 s53, s53, 2')
    a('s_mul_i32 s71, s53, 112')
    a('s_lshl_b32 s55, s68, 1')
    a('s_add_u32 s71, s71, s55')
    a('s_lshl_b32 s71, s71, 10')
    a(f's_add_u32 s71, s71, {H0}')
    a('s_lshl_b32 s70, s53, 8')
    a('s_lshl_b32 s55, s68, 2')
    a('s_add_u32 s70, s70, s55')
    a(f's_add_u32 s70, s70, {F_H}')
    a('s_lshl_b32 s55, s2, 13')
    a(f's_add_u32 s55, s55, {DUMMY}')
    a(f's_cmp_ge_u32 {sR}, 28')
    a('s_cselect_b32 s71, s55, s71')
    a('s_cselect_b32 s70, s55, s70')
    a(f's_lshl_b32 s53, {sC}, 8')
    a(f's_lshl_b32 s54, {sT1}, 7')
    a('s_add_u32 s53, s53, s54')
    a(f's_lshl_b32 s54, {sW}, 4')
    a('s_add_u32 s53, s53, s54')
    a('s_lshl_b32 s53, s53, 10')
    a(f's_add_u32 s72, s53, {Y0}')
    a(f's_lshl_b32 s73, {sW}, 13')
    a(f's_lshr_b32 s54, {sR}, 4')
    a(f's_lshl_b32 s53, {sC}, 1')
    a('s_add_u32 s53, s53, s54')
    a('s_lshl_b32 s53, s53, 2')
    a(f's_lshr_b32 s54, {sR}, 3')
    a('s_and_b32 s54, s54, 1')
    a('s_add_u32 s55, s53, s54')
    a('s_lshl_b32 s53, s55, 8')
    a(f's_mul_i32 s54, {sW}, 56')
    a('s_add_u32 s53, s53, s54')
    a(f's_add_u32 s53, s53, {F_H}')
    a('v_min_u32 v119, 13, v1')
    a('v_lshlrev_b32 v119, 2, v119')
    a('v_add_u32 v119, s53, v119')
    a('s_mul_i32 s69, s55, 112')
    a(f's_mul_i32 s54, {sW}, 28')
    a('s_add_u32 s69, s69, s54')
    a('s_lshl_b32 s69, s69, 10')
    a(f's_add_u32 s69, s69, {H0}')
    a('v_and_b32 v15, 7, v0')
    a('v_lshrrev_b32 v112, 3, v0')
    a('v_and_b32 v12, 7, v112')
    a('v_and_b32 v113, 3, v15')
    a('v_lshlrev_b32 v113, 1, v113')
    a('v_or_b32 v114, 1, v113')
    a('v_xor_b32 v113, v113, v12')
    a('v_xor_b32 v114, v114, v12')
    a('v_lshrrev_b32 v12, 2, v15')
    a('v_lshlrev_b32 v12, 7, v12')
    a('v_lshl_add_u32 v12, v112, 8, v12')
    a('v_lshl_add_u32 v113, v113, 4, v12')
    a('v_lshl_add_u32 v114, v114, 4, v12')
    a(f's_lshr_b32 s53, {sR}, 3')
    a('s_lshl_b32 s53, s53, 5')
    a('v_add_u32 v12, s53, v112')
    a('v_lshrrev_b32 v112, 2, v12')
    a('v_lshlrev_b32 v112, 3, v112')
    a('v_and_b32 v12, 3, v12')
    a('v_add_u32 v112, v112, v12')
    a(f's_lshl_b32 s53, {sC}, 8')
    a('v_add_u32 v112, s53, v112')
    a('v_lshlrev_b32 v112, 10, v112')
    a(f's_and_b32 s53, {sR}, 7')
    a('s_lshl_b32 s53, s53, 7')
    a('v_lshl_add_u32 v112, v15, 4, v112')
    a('v_add_u32 v112, s53, v112')
    a('v_lshlrev_b32 v123, 4, v15')
    a('v_add_u32 v123, s53, v123')
    a('v_and_b32 v12, 31, v1')
    a('v_lshrrev_b32 v13, 5, v1')
    a('v_and_b32 v14, 7, v1')
    a(f's_lshl_b32 s53, {sW}, 13')
    for i in range(4):
        a(f'v_add_u32 v{115+i}, {2*i}, v13')
        a(f'v_xor_b32 v{115+i}, v{115+i}, v14')
        a(f'v_lshlrev_b32 v{115+i}, 4, v{115+i}')
        a(f'v_lshl_add_u32 v{115+i}, v12, 8, v{115+i}')
        a(f'v_add_u32 v{115+i}, s53, v{115+i}')
    a(f's_lshl_b32 s67, {sC}, 3')
    a(f's_lshr_b32 s54, {sR}, 3')
    a('s_add_u32 s67, s67, s54')
    a('s_lshl_b32 s67, s67, 2')
    a(f's_add_u32 s67, s67, {sW}')
    a('s_lshl_b32 s67, s67, 3')
    a(f's_and_b32 s54, {sR}, 7')
    a('s_add_u32 s67, s67, s54')
    a('s_lshl_b32 s67, s67, 2')
    a(f's_add_u32 s67, s67, {F_X}')
    a(f's_lshl_b32 s53, {sC}, 3')
    a(f's_lshr_b32 s54, {sR}, 3')
    a('s_add_u32 s53, s53, s54')
    a('s_lshl_b32 s53, s53, 2')
    a(f's_and_b32 s54, {sR}, 7')
    a('s_lshr_b32 s54, s54, 1')
    a('s_add_u32 s53, s53, s54')
    a('s_lshl_b32 s53, s53, 5')
    a(f's_add_u32 s53, s53, {F_X}')
    a('v_and_b32 v122, 7, v1')
    a('v_lshlrev_b32 v122, 2, v122')
    a('v_add_u32 v122, s53, v122')

def gelu_fillers(g, acc, u, T, P, usepk, sc):
    a = g.a
    lay = g.cur_layer
    F = []
    F.append(lambda: a(f's_add_u32 s74, s71, {u*112*1024 + (0 if g.fast else lay*0x800000)}'))
    if usepk:
        seqs = []
        for p in range(8):
            x0 = acc + 2*p; t0 = T + 2*(p % 2); t1 = t0 + 1
            X = pr(x0); Tt = pr(t0)
            seqs.append([f'v_pk_mul_f32 {Tt}, {X}, {X}',
                   f'v_pk_fma_f32 {Tt}, {Tt}, v[12:13], v[12:13] op_sel:[0,0,1] op_sel_hi:[1,0,1]',
                   f'v_pk_mul_f32 {Tt}, {Tt}, {X}',
                   f'v_exp_f32 v{t0}, v{t0}', f'v_exp_f32 v{t1}, v{t1}',
                   f'v_pk_add_f32 {Tt}, {Tt}, v[14:15]',
                   f'v_rcp_f32 v{t0}, v{t0}', f'v_rcp_f32 v{t1}, v{t1}',
                   f'v_pk_mul_f32 {X}, {X}, {Tt}',
                   f'v_cvt_pk_bf16_f32 v{P+p}, v{x0}, v{x0+1}'])
        for p in range(0, 8, 2):
            for s0, s1 in zip(seqs[p], seqs[p+1]):
                F.append(lambda s=s0: a(s)); F.append(lambda s=s1: a(s))
            if p == 2: F.append(lambda: g.vstore(f'v[{P}:{P+3}]', f'v{vL16}', WS, 's74', 0, sc, tag=f'h{u}'))
            if p == 6: F.append(lambda: g.vstore(f'v[{P+4}:{P+7}]', f'v{vL16}', WS, 's74', 1024, sc, tag=f'h{u}'))
        return F
    for p in range(8):
        x0, x1 = acc + 2*p, acc + 2*p + 1
        t0 = T + 2*(p % 2); t1 = t0 + 1
        seq = [f'v_mul_f32 v{t0}, v{x0}, v{x0}', f'v_mul_f32 v{t1}, v{x1}, v{x1}',
               f'v_fma_f32 v{t0}, v{t0}, v12, v13', f'v_fma_f32 v{t1}, v{t1}, v12, v13',
               f'v_mul_f32 v{t0}, v{t0}, v{x0}', f'v_mul_f32 v{t1}, v{t1}, v{x1}',
               f'v_exp_f32 v{t0}, v{t0}', f'v_exp_f32 v{t1}, v{t1}',
               f'v_add_f32 v{t0}, 1.0, v{t0}', f'v_add_f32 v{t1}, 1.0, v{t1}',
               f'v_rcp_f32 v{t0}, v{t0}', f'v_rcp_f32 v{t1}, v{t1}',
               f'v_mul_f32 v{x0}, v{x0}, v{t0}', f'v_mul_f32 v{x1}, v{x1}, v{t1}',
               f'v_cvt_pk_bf16_f32 v{P+p}, v{x0}, v{x1}']
        for s in seq: F.append(lambda s=s: a(s))
        if p == 3: F.append(lambda: g.vstore(f'v[{P}:{P+3}]', f'v{vL16}', WS, 's74', 0, sc, tag=f'h{u}'))
        if p == 7: F.append(lambda: g.vstore(f'v[{P+4}:{P+7}]', f'v{vL16}', WS, 's74', 1024, sc, tag=f'h{u}'))
    return F

def hflag(g, u):
    g.vq.wait(f'h{u}')
    g.a(f's_add_u32 s56, s70, {u*256 + g.cur_layer*64*256}')
    g.flag('s56')

def emit_layer(g, idle=False):
    a = g.a; vq = g.vq; o = g.o
    lay = g.cur_layer
    sch = g.sc_h
    yoff = 0 if g.fast else lay*0x200000
    hoff = 0 if g.fast else lay*0x800000
    xoff = 0 if g.fast else lay*0x400000
    if idle:
        a('s_barrier')
        if (lay == 1 and o.get('hideB', 1)) or (lay == 0 and o.get('hideB0', 0)):
            if lay == 1:
                poll_issue(g, 126, 125, 'pxB'); poll_check(g, 126, 125, 'pxB')
                a(f's_add_u32 s53, s75, {X2 + 4096}')
                g.vload('v[40:43]', f'v{vL16}', WS, 's53', 0, ' sc1', tag='x2b')
            a('s_waitcnt lgkmcnt(0)')
            for f in rowB_fillers(g): f()
            g.rl = lay
            row_flag(g, 1)
        g.weight_batch(100)
        a(f'v_add_u32 v100, {lay*64*256}, v119'); a('v_add_u32 v101, 512, v100')
        poll_issue(g, 102, 100, 'phA')
    else:
        a.comment(f'=== G1 layer {lay} ===')
        hideB = (lay == 1 and o.get('hideB', 1)) or (lay == 0 and o.get('hideB0', 0))
        g.dstamp('g1', 'g1 begin')
        a(f'v_add_u32 v100, {lay*2*8*128*4}, v120')
        a(f'v_add_u32 v101, {(lay*2+1)*8*128*4}, v120')
        poll_issue(g, 102, 100, 'pyA')
        a('s_barrier')
        g.mk_srd(SA, sB1, 3584)
        a('v_lshrrev_b32 v14, 5, v1')
        a('v_lshlrev_b32 v15, 3, v14')
        a('s_lshl_b32 s53, s68, 6')
        for i in range(4):
            g.vload(f'v[{104+2*i}:{105+2*i}]', 'v15', srd(SA), 's53', 16*i, w='x2', tag='bias')
        a(f'v_mov_b32 v12, {f2u(-C2)}')
        a(f'v_mov_b32 v13, {f2u(-C1)}')
        a('v_mov_b32 v14, 1.0'); a('v_mov_b32 v15, 1.0')
        def dma_list(eta, tt):
            L = []
            for i in range(8):
                def f(i=i):
                    if i % 4 == 0:
                        a(f's_add_u32 m0, s73, {L_YH[eta] + tt*32768 + i*1024}')
                        a(f's_add_u32 s57, s72, {(64*tt + 8*(i>>2) + 4*eta)*1024 + yoff}')
                    a(f'v_xor_b32 v103, {16*i}, v121')
                    off = f' offset:{(i%4)*1024}' if i % 4 else ''
                    a(f'buffer_load_dwordx4 v103, {WS}, s57 offen{off} sc1 lds')
                    vq.issue(f'dma{eta}{tt}')
                L.append(f)
            return L
        g.dstamp('g1', 'setup done')
        g.dstamp('r1', 'g1 pre-check')
        poll_check(g, 102, 100, 'pyA')
        g.dstamp('r1', 'yA seen')
        g.stamp('g1 yA seen')
        for f in dma_list(0, 0): f()
        nA1 = o.get('nA1pre', 0)
        for f in dma_list(0, 1)[:nA1]: f()
        if not hideB: poll_issue(g, 102, 101, 'pyB')
        elif lay == 1: poll_issue(g, 126, 125, 'pxB')
        vq.wait('bias')
        for i in range(4):
            a(f'v_lshlrev_b32 v{48+4*i}, 16, v{104+2*i}')
            a(f'v_and_b32 v{49+4*i}, 0xffff0000, v{104+2*i}')
            a(f'v_lshlrev_b32 v{50+4*i}, 16, v{105+2*i}')
            a(f'v_and_b32 v{51+4*i}, 0xffff0000, v{105+2*i}')
        if hideB and lay == 1:
            poll_check(g, 126, 125, 'pxB')
            a(f's_add_u32 s53, s75, {X2 + 4096}')
            g.vload('v[40:43]', f'v{vL16}', WS, 's53', 0, ' sc1', tag='x2b')
        g.dstamp('r1', 'dma issued')
        vq.wait('dma00')
        g.dstamp('r1', 'dma00 landed')
        a('s_barrier')
        g.dstamp('r1', 'in lds')
        g.stamp('g1 yA in lds')
        fill = []
        NB, PF = 8, 7
        WG_ = o.get('g1wait', 4)
        XT = o.get('xtile', 1)
        def Breg(k): return f'v[{64+4*(k%NB)}:{67+4*(k%NB)}]'
        def Bload(u, k): a(f'ds_read_b128 {Breg(k)}, v{4+(k&7)} offset:{(u&1)*32768 + (k>>3)*256}')
        if hideB:
            fill = rowB_fillers(g)
        def tile_ready(u):
            vq.wait(f'dma{u>>1}{u&1}'); a('s_barrier')
            if u == 2:
                for m_ in range(8): a(f'v_add_u32 v{4+m_}, 0x10000, v{4+m_}')
        for u in range(4):
            eta, tt = u >> 1, u & 1
            xt_in = XT and not (hideB and u == 2)
            xt_out = XT and u < 3 and not (hideB and u == 1)
            if u >= 1 and not xt_in: tile_ready(u)
            g.dstamp('g1', f'tile{u} start')
            acc = 16 + 16*(u % 2)
            if u == 0 or not xt_in:
                for k in range(PF): Bload(u, k)
            extra = {}
            if u == 0:
                for i, f in enumerate(dma_list(0, 1)[nA1:]): extra.setdefault(i, []).append(f)
                if not hideB:
                    pb = o.get('pbslot', 8)
                    extra.setdefault(pb, []).append(lambda: poll_check(g, 102, 101, 'pyB'))
                    for i, f in enumerate(dma_list(1, 0) + dma_list(1, 1)): extra.setdefault(min(31, pb + 1 + (i * (30 - pb)) // 16), []).append(f)
            if u == 1 and hideB:
                g.rl = lay
                extra.setdefault(o.get('hbflag', 0), []).append(lambda: row_flag(g, 1))
                extra.setdefault(o.get('hbiss', 4), []).append(lambda: poll_issue(g, 102, 101, 'pyB'))
                pb = o.get('hbchk', 9)
                extra.setdefault(pb, []).append(lambda: poll_check(g, 102, 101, 'pyB'))
                for i, f in enumerate(dma_list(1, 0) + dma_list(1, 1)): extra.setdefault(min(31, pb + 1 + (i * (30 - pb)) // 16), []).append(f)
            if u == 3:
                extra.setdefault(o.get('fA0', 2), []).append(lambda: hflag(g, 0))
                extra.setdefault(o.get('fA1', 28), []).append(lambda: hflag(g, 1))
                extra.setdefault(29, []).append(lambda: (a(f'v_add_u32 v100, {lay*64*256}, v119'), a('v_add_u32 v101, 512, v100'), poll_issue(g, 102, 100, 'phA')))
            u0 = o.get('wtile0', 1)
            if g.wlist and u >= u0:
                nper = (len(g.wlist) + (3 - u)) // (4 - u)
                span = o.get('wspan', 23)
                for sl in [1 + (i * span) // nper for i in range(nper)]:
                    extra.setdefault(sl, []).append(lambda: g.weight_batch(1))
            if xt_out:
                extra.setdefault(25, []).insert(0, lambda u=u: tile_ready(u + 1))
            sp = spread(fill, 32, (o.get('hbstart', 5) if (u == 0) else 4), (o.get('hbend', 24) if u == 0 else o.get('gend', 27)))
            done = 0
            for k in range(32):
                if k % WG_ == 0:
                    need = min(k + WG_ - 1, 31)
                    if xt_out: issued = k + PF - 1 if k + PF - 1 <= 31 else 31 + max(0, k - 25)
                    else: issued = min(k + PF - 1, 31)
                    a(f's_waitcnt lgkmcnt({max(issued - need, 0)})')
                cin = f'v[48:63]' if k == 0 else f'v[{acc}:{acc+15}]'
                a(f'v_mfma_f32_32x32x16_bf16 v[{acc}:{acc+15}], {W1reg(k)}, {Breg(k)}, {cin}')
                if k + PF < 32: Bload(u, k + PF)
                while done < sp[k]: fill[done](); done += 1
                for f in extra.get(k, []): f()
                if xt_out and k >= 25: Bload(u + 1, k - 25)
            while done < len(fill): fill[done](); done += 1
            g.dstamp('g1', f'tile{u} done')
            if u < 3: fill = gelu_fillers(g, acc, u, 96, 104, False, sch)
            else: fill = gelu_fillers(g, acc, u, 96, 48, True, sch)
        g.dstamp('g1', 'tiles done')
    if not idle:
        for m in range(8): a(f'v_subrev_u32 v{4+m}, 0x10000, v{4+m}')
    NW = 12
    HW = 64
    def Hreg(s): return f'v[{HW+4*(s%NW)}:{HW+3+4*(s%NW)}]'
    def Hload(s):
        eta, i = divmod(s, 28)
        a(f's_add_u32 s54, s69, {eta*2*112*1024 + (i//4)*4096 + hoff}')
        g.vload(Hreg(s), f'v{vL16}', WS, 's54', (i%4)*1024, ' sc1', tag=f'hf{s}')
    a('v_mov_b32 v124, v100'); a('v_mov_b32 v125, v101')
    poll_check(g, 102, 100, 'phA')
    g.stamp('g2 hA seen')
    fill = gelu_fillers(g, 32, 3, 60, 48, True, sch)
    for s in range(NW): Hload(s)
    g.dstamp('g2', 'A loads issued')
    if not idle:
        a.nop(2)
        half = len(fill)//2
        for f in fill[:half]: f()
        hflag(g, 2)
        for f in fill[half:]: f()
    g.stamp('g1 done')
    g.dstamp('g2', 'tail done')
    g.mk_srd(SA, sB2, 1024)
    g.vload('v[56:59]', 'v123', srd(SA), 0, 0, tag='b2')
    a(f's_mov_b32 s53, {X1 + xoff}')
    g.vload('v[60:63]', 'v112', WS, 's53', 0, ' sc1', tag='res0')
    if lay == 0:
        OUT = WS; obase = X2
    else:
        g.mk_srd(SB, sOUT, 2097152); OUT = srd(SB); obase = 0
    sco = g.sc_x if lay == 0 else (' sc1' if o.get('outsc1', 1) else (' nt' if o.get('outnt', 0) else ''))
    def accset(eta, nt):
        return f'a[{224+16*nt}:{239+16*nt}]' if eta == 0 else f'v[{16+16*nt}:{31+16*nt}]'
    def red_write_list(eta):
        LR = eta*32768
        L = []
        for nt in range(2):
            for i in range(4):
                src = f'a[{224+16*nt+4*i}:{224+16*nt+4*i+3}]' if eta == 0 else f'v[{16+16*nt+4*i}:{16+16*nt+4*i+3}]'
                L.append(lambda src=src, i=i, nt=nt: a(f'ds_write_b128 v{115+i}, {src} offset:{LR + nt*128}'))
        return L
    def xflag(eta):
        vq.wait(f'xo{eta}')
        a(f's_add_u32 s53, s67, {eta*512}')
        g.flag('s53')
    def red_small(eta, res):
        LR = eta*32768
        L = []
        for h in range(2):
            ad = 113 + h
            T0, T1 = 48, 52
            b2 = 56 + 2*h; rs = res + 2*h
            L.append(lambda ad=ad: (a(f'ds_read_b128 v[48:51], v{ad} offset:{LR}'), a(f'ds_read_b128 v[52:55], v{ad} offset:{LR + 8192}')))
            def add(): a(f'v_pk_add_f32 {pr(48)}, {pr(48)}, {pr(52)}'); a(f'v_pk_add_f32 {pr(50)}, {pr(50)}, {pr(54)}')
            def sadd():
                for e in range(4): a(f'v_add_f32 v{48+e}, v{48+e}, v{52+e}')
            L.append(lambda ad=ad: (a('s_waitcnt lgkmcnt(0)'), sadd(), a(f'ds_read_b128 v[52:55], v{ad} offset:{LR + 2*8192}')))
            L.append(lambda ad=ad: (a('s_waitcnt lgkmcnt(0)'), sadd(), a(f'ds_read_b128 v[52:55], v{ad} offset:{LR + 3*8192}')))
            L.append(lambda: (a('s_waitcnt lgkmcnt(0)'), sadd()))
            def ub(src):
                a(f'v_lshlrev_b32 v52, 16, v{src}'); a(f'v_and_b32 v53, 0xffff0000, v{src}')
                a(f'v_lshlrev_b32 v54, 16, v{src+1}'); a(f'v_and_b32 v55, 0xffff0000, v{src+1}')
            L.append(lambda b2=b2: (ub(b2), sadd()))
            def rnd():
                a('v_cvt_pk_bf16_f32 v52, v48, v49'); a('v_cvt_pk_bf16_f32 v53, v50, v51')
                a('v_lshlrev_b32 v48, 16, v52'); a('v_and_b32 v49, 0xffff0000, v52')
                a('v_lshlrev_b32 v50, 16, v53'); a('v_and_b32 v51, 0xffff0000, v53')
            L.append(rnd)
            L.append(lambda rs=rs: (vq.wait(f'res{eta}'), ub(rs), sadd()))
            L.append(lambda h=h: (a(f'v_cvt_pk_bf16_f32 v{12+2*h}, v48, v49'), a(f'v_cvt_pk_bf16_f32 v{13+2*h}, v50, v51')))
        def st():
            a(f's_mov_b32 s53, {obase + eta*4096}')
            g.vstore('v[12:15]', 'v112', OUT, 's53', 0, sco, tag=f'xo{eta}')
        L.append(st)
        return L
    def red_big(eta, res, mid=None):
        LR = eta*32768
        T = 64
        for p in range(4):
            a(f'ds_read_b128 v[{T+8*p}:{T+8*p+3}], v113 offset:{LR + p*8192}')
            a(f'ds_read_b128 v[{T+8*p+4}:{T+8*p+7}], v114 offset:{LR + p*8192}')
        g.unpack8(56, T+32)
        a('s_waitcnt lgkmcnt(4)')
        for e in range(4): a(f'v_pk_add_f32 {pr(T+2*e)}, {pr(T+2*e)}, {pr(T+8+2*e)}')
        for e in range(4): a(f'v_pk_add_f32 {pr(T+2*e)}, {pr(T+2*e)}, {pr(T+32+2*e)}')
        a('s_waitcnt lgkmcnt(0)')
        for e in range(4): a(f'v_pk_add_f32 {pr(T+16+2*e)}, {pr(T+16+2*e)}, {pr(T+24+2*e)}')
        for e in range(4): a(f'v_pk_add_f32 {pr(T+2*e)}, {pr(T+2*e)}, {pr(T+16+2*e)}')
        g.pack8(T, T+8); g.unpack8(T+8, T)
        if mid: mid()
        vq.wait(f'res{eta}')
        g.unpack8(res, T+16)
        for e in range(4): a(f'v_pk_add_f32 {pr(T+2*e)}, {pr(T+2*e)}, {pr(T+16+2*e)}')
        g.pack8(T, T+8)
        a(f's_mov_b32 s53, {obase + eta*4096}')
        g.vstore(f'v[{T+8}:{T+11}]', 'v112', OUT, 's53', 0, sco, tag=f'xo{eta}')
    extra = {}
    if not idle: extra.setdefault(o.get('fB1', 3), []).append(lambda: hflag(g, 3))
    extra.setdefault(10, []).append(lambda: poll_issue(g, 126, 125, 'phB'))
    extra.setdefault(15, []).append(lambda: poll_check(g, 126, 125, 'phB'))
    for i, f in enumerate(red_write_list(0)): extra.setdefault(30 + i//2, []).append(f)
    extra.setdefault(35, []).append(lambda: (a('s_waitcnt lgkmcnt(0)'), a('s_barrier')))
    for i, f in enumerate(red_small(0, 60)): extra.setdefault(36 + (i * o.get('rsnum', 2)) // 3, []).append(f)
    def resB():
        a(f's_mov_b32 s53, {X1 + xoff + 4096}')
        g.vload('v[60:63]', 'v112', WS, 's53', 0, ' sc1', tag='res1')
    extra.setdefault(50, []).append(resB)
    for s in range(56):
        eta, i = divmod(s, 28)
        vq.wait(f'hf{s}')
        for nt in range(2):
            acc = accset(eta, nt)
            cin = '0' if i == 0 else acc
            a(f'v_mfma_f32_32x32x16_bf16 {acc}, {W2reg(nt,i)}, {Hreg(s)}, {cin}')
            if nt == 0 and s >= 1 and (s - 1) + NW < 56: Hload(s - 1 + NW)
        if s == 27: g.dstamp('g2', 'A mfma done')
        for f in extra.get(s, []): f()
    def tail():
        g.dstamp('g2', 'B mfma done')
        if lay == 0: xflag(0)
        a.nop(12)
        for f in red_write_list(1): f()
        a('s_waitcnt lgkmcnt(0)')
        a('s_barrier')
        pre = (lay == 0 and o.get('x2pre', 1))
        if pre: poll_issue(g, 110, 122, 'pxA')
        red_big(1, 60, (lambda: (poll_check(g, 110, 122, 'pxA'), a(f's_add_u32 s53, s75, {X2}'), g.vload('v[104:107]', f'v{vL16}', WS, 's53', 0, ' sc1', tag='x2a'))) if pre else None)
        g.dstamp('g2', 'B finished')
        g.xflagB = (lambda: xflag(1))
        if lay == 0 and not pre: xflag(1)
        g.stamp('g2 done')
    return tail, list(vq.ops)

def emit_layer_both(g):
    a = g.a
    if not g.o.get('idleskip', 1):
        tail, ops = emit_layer(g); tail(); return
    Li = a.newlabel('idle'); Ld = a.newlabel('ldone')
    ops0 = list(g.vq.ops); wl0 = list(g.wlist)
    a(f's_cmp_ge_u32 {sR}, 28')
    a(f's_cbranch_scc1 {Li}')
    tail, opsN = emit_layer(g)
    a(f's_branch {Lt(Ld)}')
    a.label(Li)
    g.vq.ops = ops0; g.wlist = wl0
    st = g.stamps
    g.stamps = False
    _, opsI = emit_layer(g, idle=True)
    g.stamps = st
    a.label(Ld)
    k = 0
    while k < min(len(opsN), len(opsI)) and opsN[-1-k] == opsI[-1-k]: k += 1
    assert 'res1' in opsN[len(opsN)-k:] and 'xo0' in opsN[len(opsN)-k:], (opsN, opsI)
    g.vq.ops = opsN[len(opsN)-k:]
    tail()

def Lt(x): return x

def emit_r2(g):
    a = g.a; vq = g.vq
    g.rl = 1
    a(f'v_mov_b32 v{VINV}, 0x3b000000')
    a('v_add_u32 v109, 512, v122')
    g.dstamp('r2', 'r2 begin')
    if g.o.get('x2pre', 1):
        vq.wait('x2a')
        g.unpack8(104, 16)
    else:
        poll_issue(g, 110, 122, 'pxA')
        poll_check(g, 110, 122, 'pxA')
        g.dstamp('r2', 'xA seen')
        a(f's_add_u32 s53, s75, {X2}')
        g.vload('v[60:63]', f'v{vL16}', WS, 's53', 0, ' sc1', tag='x2a')
        poll_issue(g, 110, 109, 'pxB')
        vq.wait('x2a')
        g.unpack8(60, 16)
    g.ln_multi([(16, 24, 52)])
    if g.o.get('x2pre', 1):
        g.xflagB()
        if g.o.get('hideB', 1):
            a('v_add_u32 v125, 512, v122')
        else:
            poll_issue(g, 110, 109, 'pxB')
    rows_finish(g, [(16, 0)], g.sc_x3, g.sc_y1)
    g.dstamp('r2', 'row0 stored')
    if g.o.get('hideB', 1):
        a(f's_lshl_b32 s53, {sW}, 10')
        a(f's_add_u32 s53, s53, {L_G + 4096}')
        a(f'v_add_u32 v111, s53, v{vL16}')
        a('ds_read_b128 v[44:47], v111')
        row_flag(g, 0)
        g.stamp('r2 done')
        return
    poll_check(g, 110, 109, 'pxB')
    a(f's_add_u32 s53, s75, {X2 + 4096}')
    g.vload('v[60:63]', f'v{vL16}', WS, 's53', 0, ' sc1', tag='x2b')
    row_flag(g, 0)
    g.dstamp('r2', 'A flagged')
    vq.wait('x2b')
    g.unpack8(60, 64)
    g.ln_multi([(64, 72, 100)])
    rows_finish(g, [(64, 1)], g.sc_x3, g.sc_y1)
    g.dstamp('r2', 'row1 stored')
    row_flag(g, 1)
    g.stamp('r2 done')

def emit_r1b(g):
    a = g.a
    g.rl = 0
    nw = g.o.get('wb3', 16)
    def w(n):
        nonlocal nw
        k = min(n, nw); nw -= k
        g.weight_batch(k)
    g.cur_layer = 0
    g.dstamp('r1', 'r1b begin')
    rows_finish(g, [(16, 0)], ' sc1', g.sc_y0, part=1)
    rows_finish(g, [(16, 0)], ' sc1', g.sc_y0, part=2)
    g.dstamp('r1', 'A stored')
    if g.o.get('hideB0', 0):
        for i in range(4): a(f'v_mov_b32 v{40+i}, v{104+i}')
        a(f's_lshl_b32 s53, {sW}, 10')
        a(f's_add_u32 s53, s53, {L_G + 4096}')
        a(f'v_add_u32 v111, s53, v{vL16}')
        a('ds_read_b128 v[44:47], v111')
        w(6)
        row_flag(g, 0)
        w(100)
    else:
        w(3)
        rows_finish(g, [(64, 1)], ' sc1', g.sc_y0, part=1)
        row_flag(g, 0)
        g.dstamp('r1', 'A flagged')
        w(8); rows_finish(g, [(64, 1)], ' sc1', g.sc_y0, part=2)
        w(100)
        g.dstamp('r1', 'B stored')
        row_flag(g, 1)
        g.dstamp('r1', 'B flagged')
    g.stamp('r1 done')

def mlp_setup_rest(g): mlp_setup(g, 1)

def emit_variant(g, fast):
    a = g.a; o = g.o
    g.fast = fast
    g.fsc = '' if fast else ' sc1'
    yt = fast and (o.get('ytouch', 0) or o.get('dstore', 1))
    g.sc_h = ('' if (fast and o.get('dstore', 1) and o.get('dsH', 0)) else ' sc1'); g.sc_x = ('' if (yt and o.get('dsX', 0)) else ' sc1'); g.sc_y0 = ('' if yt else ' sc1')
    g.sc_x3 = ' sc1'; g.sc_y1 = ('' if (fast and o.get('y1plain', 1)) else ' sc1')
    emit_r1b(g)
    if g.stop == 'r1': a('s_branch L_fin'); return
    a(f's_mov_b32 {sLAYER}, 0')
    g.cur_layer = 0
    emit_layer_both(g)
    if g.stop == 'g2': a('s_branch L_fin'); return
    g.cur_layer = 1
    emit_r2(g)
    if g.stop == 'r2': a('s_branch L_fin'); return
    a(f's_mov_b32 {sLAYER}, 1')
    g.sc_h = '' if (fast and o.get('h1plain', 0)) else ' sc1'
    emit_layer_both(g)
    a('s_branch L_fin')

def emit_mlp(g):
    a = g.a
    g.vinv = VINV
    g.r1_hook = lambda: (mlp_setup(g, 0), mlp_setup(g, 1))
    emit_r1a(g)
    ops0 = list(g.vq.ops); wl0 = list(g.wlist)
    a(f's_cmp_eq_u32 {sFAST}, 0')
    a('s_cbranch_scc1 L_slow')
    emit_variant(g, True)
    g.more_code = True
    g.finish()
    a.label('L_slow')
    g.vq.ops = ops0; g.wlist = wl0
    st = g.stamps; g.stamps = False
    emit_variant(g, False)
    g.stamps = st
```

```python
from gen2 import *
from gen2_mlp import tok_base, yflag_addr, emit_r1a
from gen3_mlp import poll_issue, poll_check, spread, DUMMY

def pr(b): return f'v[{b}:{b+1}]'
VINV = 108

def rows_finish(g, rows, scx, scy, part=None):
    a = g.a
    if part in (None, 1):
        for (X, eta) in rows:
            a(f's_lshl_b32 s53, {sW}, 10')
            a(f's_add_u32 s53, s53, {L_G + eta*4096}')
            a(f'v_add_u32 v{X+28}, s53, v{vL16}')
            a(f'ds_read_b128 v[{X+16}:{X+19}], v{X+28}')
        a('s_waitcnt lgkmcnt(0)')
        for (X, eta) in rows: g.unpack8(X+16, X+20)
        for (X, eta) in rows:
            for i in range(4):
                a(f'v_pk_fma_f32 {pr(X+2*i)}, {pr(X+8+2*i)}, {pr(X+20+2*i)}, {pr(X+2*i)}')
        for (X, eta) in rows: g.pack8(X, X+32)
        for (X, eta) in rows: g.unpack8(X+32, X)
        for (X, eta) in rows:
            a(f's_add_u32 s54, s75, {X1 + eta*4096 + (0 if g.fast else g.rl*0x400000)}')
            g.vstore(f'v[{X+32}:{X+35}]', f'v{vL16}', WS, 's54', 0, scx, tag=f'rx{eta}')
    if part in (None, 2):
        if g.o.get('ln2an', 1):
            g.ln_multi([(X, X+8, X+36) for (X, eta) in rows], double=True)
        else:
            g.ln_multi([(X, X+8, X+36) for (X, eta) in rows])
            g.ln_multi([(X+8, X+8, X+36) for (X, eta) in rows])
        for (X, eta) in rows: g.pack8(X+8, X+16)
        for (X, eta) in rows:
            a(f's_add_u32 s54, s75, {Y0 + eta*4096 + (0 if g.fast else g.rl*0x200000)}')
            g.vstore(f'v[{X+16}:{X+19}]', f'v{vL16}', WS, 's54', 0, scy, tag=f'ry{eta}')

def row_flag(g, eta):
    a = g.a
    g.vq.wait(f'ry{eta}')
    a(f's_add_u32 s53, s61, {(g.rl*2 + eta)*8*128*4}')
    g.flag('s53')

def rowB_fillers(g):
    a = g.a; F = []
    def I(s): F.append(lambda s=s: a(s))
    def N(n): F.append(lambda: a.nop(n))
    X = 32
    steps = ['quad_perm:[1,0,3,2] row_mask:0xf bank_mask:0xf', 'quad_perm:[2,3,0,1] row_mask:0xf bank_mask:0xf',
             'row_half_mirror row_mask:0xf bank_mask:0xf', 'row_mirror row_mask:0xf bank_mask:0xf',
             'row_bcast:15 row_mask:0xa bank_mask:0xf', 'row_bcast:31 row_mask:0xc bank_mask:0xf']
    def unpack(src):
        for i in range(4):
            I(f'v_lshlrev_b32 v{X+2*i}, 16, v{src+i}'); I(f'v_and_b32 v{X+2*i+1}, 0xffff0000, v{src+i}')
    def stats(double):
        I(f'v_add_f32 v124, v{X}, v{X+1}'); I(f'v_mul_f32 v125, v{X}, v{X}'); I(f'v_fmac_f32 v125, v{X+1}, v{X+1}')
        for i in range(2, 8):
            I(f'v_add_f32 v124, v124, v{X+i}'); I(f'v_fmac_f32 v125, v{X+i}, v{X+i}')
        N(2)
        for st in steps:
            I(f'v_add_f32_dpp v124, v124, v124 {st}'); I(f'v_add_f32_dpp v125, v125, v125 {st}'); N(1)
        I('v_readlane_b32 s58, v124, 63'); I('v_readlane_b32 s59, v125, 63'); N(2)
        I('v_mov_b32 v126, s58'); I('v_mov_b32 v127, s59')
        I('v_mul_f32 v126, 0x3b000000, v126'); I('v_mul_f32 v127, 0x3b000000, v127')
        I('v_fma_f32 v127, -v126, v126, v127'); I('v_max_f32 v127, 0, v127')
        if double:
            I('v_add_f32 v124, 0x3727c5ac, v127'); I('v_rsq_f32 v124, v124'); N(1)
            I('v_mul_f32 v127, v127, v124'); I('v_fmaak_f32 v127, v127, v124, 0x3727c5ac'); I('v_rsq_f32 v127, v127'); N(1)
            I('v_mul_f32 v127, v127, v124')
        else:
            I('v_add_f32 v127, 0x3727c5ac, v127'); I('v_rsq_f32 v127, v127'); N(1)
        I('v_mul_f32 v126, v126, v127')
    F.append(lambda: g.vq.wait('x2b'))
    unpack(40)
    stats(False)
    for i in range(8):
        I(f'v_fma_f32 v109, v{X+i}, v127, -v126')
        I(f'v_lshlrev_b32 v110, 16, v{44+i//2}' if i % 2 == 0 else f'v_and_b32 v110, 0xffff0000, v{44+i//2}')
        I(f'v_fma_f32 v{X+i}, v109, v110, v{X+i}')
    for i in range(4): I(f'v_cvt_pk_bf16_f32 v{40+i}, v{X+2*i}, v{X+2*i+1}')
    unpack(40)
    rl = g.cur_layer
    def stx():
        a(f's_add_u32 s54, s75, {X1 + 4096 + (0 if g.fast else rl*0x400000)}')
        g.vstore('v[40:43]', f'v{vL16}', WS, 's54', 0, (g.sc_x3 if rl else ' sc1'), tag='rx1')
    F.append(stx)
    stats(True)
    for i in range(8): I(f'v_fma_f32 v{X+i}, v{X+i}, v127, -v126')
    for i in range(4): I(f'v_cvt_pk_bf16_f32 v{44+i}, v{X+2*i}, v{X+2*i+1}')
    def sty():
        a(f's_add_u32 s54, s75, {Y0 + 4096 + (0 if g.fast else rl*0x200000)}')
        g.vstore('v[44:47]', f'v{vL16}', WS, 's54', 0, (g.sc_y1 if rl else g.sc_y0), tag='ry1')
    F.append(sty)
    return F

def mlp_setup0(g):
    a = g.a
    tok_base(a, 's75', 0)
    a(f's_lshl_b32 s61, {sC}, 7')
    a(f's_lshl_b32 s54, {sR}, 2')
    a('s_add_u32 s61, s61, s54')
    a(f's_add_u32 s61, s61, {sW}')
    a('s_lshl_b32 s61, s61, 2')
    a(f's_add_u32 s61, s61, {F_Y}')

def mlp_setup(g, part=1):
    a = g.a
    if part == 0:
        mlp_setup0(g); return
    a(f's_lshl_b32 s53, {sC}, 7')
    a(f's_lshl_b32 s54, {sT1}, 6')
    a('s_add_u32 s53, s53, s54')
    a(f's_lshl_b32 s54, {sW}, 3')
    a('s_add_u32 s53, s53, s54')
    a('s_lshl_b32 s53, s53, 2')
    a(f's_add_u32 s53, s53, {F_Y}')
    a('v_and_b32 v120, 7, v1')
    a('v_bfe_u32 v12, v1, 3, 1')
    a('v_lshl_add_u32 v120, v12, 5, v120')
    a('v_lshlrev_b32 v120, 2, v120')
    a('v_add_u32 v120, s53, v120')
    a('v_lshrrev_b32 v14, 5, v1')
    a('v_and_b32 v15, 31, v1')
    a('v_and_b32 v12, 15, v1')
    for m in range(8):
        a(f'v_add_u32 v{4+m}, {2*m}, v14')
        a(f'v_xor_b32 v{4+m}, v{4+m}, v12')
        a(f'v_lshlrev_b32 v{4+m}, 4, v{4+m}')
        a(f'v_lshl_add_u32 v{4+m}, v15, 10, v{4+m}')
    a(f's_and_b32 s54, {sW}, 1')
    a('s_lshl_b32 s54, s54, 7')
    a(f'v_xor_b32 v121, s54, v{vL16}')
    a(f's_lshl_b32 s68, {sJ}, 2')
    a(f's_add_u32 s68, s68, {sW}')
    a(f's_lshl_b32 s53, {sC}, 1')
    a(f's_add_u32 s53, s53, {sT1}')
    a('s_lshl_b32 s53, s53, 2')
    a('s_mul_i32 s71, s53, 112')
    a('s_lshl_b32 s55, s68, 1')
    a('s_add_u32 s71, s71, s55')
    a('s_lshl_b32 s71, s71, 10')
    a(f's_add_u32 s71, s71, {H0}')
    a('s_lshl_b32 s70, s53, 8')
    a('s_lshl_b32 s55, s68, 2')
    a('s_add_u32 s70, s70, s55')
    a(f's_add_u32 s70, s70, {F_H}')
    a('s_lshl_b32 s55, s2, 13')
    a(f's_add_u32 s55, s55, {DUMMY}')
    a(f's_cmp_ge_u32 {sR}, 28')
    a('s_cselect_b32 s71, s55, s71')
    a('s_cselect_b32 s70, s55, s70')
    a(f's_lshl_b32 s53, {sC}, 8')
    a(f's_lshl_b32 s54, {sT1}, 7')
    a('s_add_u32 s53, s53, s54')
    a(f's_lshl_b32 s54, {sW}, 4')
    a('s_add_u32 s53, s53, s54')
    a('s_lshl_b32 s53, s53, 10')
    a(f's_add_u32 s72, s53, {Y0}')
    a(f's_lshl_b32 s73, {sW}, 13')
    a(f's_lshr_b32 s54, {sR}, 4')
    a(f's_lshl_b32 s53, {sC}, 1')
    a('s_add_u32 s53, s53, s54')
    a('s_lshl_b32 s53, s53, 2')
    a(f's_lshr_b32 s54, {sR}, 3')
    a('s_and_b32 s54, s54, 1')
    a('s_add_u32 s55, s53, s54')
    a('s_lshl_b32 s53, s55, 8')
    a(f's_mul_i32 s54, {sW}, 56')
    a('s_add_u32 s53, s53, s54')
    a(f's_add_u32 s53, s53, {F_H}')
    a('v_min_u32 v119, 13, v1')
    a('v_lshlrev_b32 v119, 2, v119')
    a('v_add_u32 v119, s53, v119')
    a('s_mul_i32 s69, s55, 112')
    a(f's_mul_i32 s54, {sW}, 28')
    a('s_add_u32 s69, s69, s54')
    a('s_lshl_b32 s69, s69, 10')
    a(f's_add_u32 s69, s69, {H0}')
    a('v_and_b32 v15, 7, v0')
    a('v_lshrrev_b32 v112, 3, v0')
    a('v_and_b32 v12, 7, v112')
    a('v_and_b32 v113, 3, v15')
    a('v_lshlrev_b32 v113, 1, v113')
    a('v_or_b32 v114, 1, v113')
    a('v_xor_b32 v113, v113, v12')
    a('v_xor_b32 v114, v114, v12')
    a('v_lshrrev_b32 v12, 2, v15')
    a('v_lshlrev_b32 v12, 7, v12')
    a('v_lshl_add_u32 v12, v112, 8, v12')
    a('v_lshl_add_u32 v113, v113, 4, v12')
    a('v_lshl_add_u32 v114, v114, 4, v12')
    a(f's_lshr_b32 s53, {sR}, 3')
    a('s_lshl_b32 s53, s53, 5')
    a('v_add_u32 v12, s53, v112')
    a('v_lshrrev_b32 v112, 2, v12')
    a('v_lshlrev_b32 v112, 3, v112')
    a('v_and_b32 v12, 3, v12')
    a('v_add_u32 v112, v112, v12')
    a(f's_lshl_b32 s53, {sC}, 8')
    a('v_add_u32 v112, s53, v112')
    a('v_lshlrev_b32 v112, 10, v112')
    a(f's_and_b32 s53, {sR}, 7')
    a('s_lshl_b32 s53, s53, 7')
    a('v_lshl_add_u32 v112, v15, 4, v112')
    a('v_add_u32 v112, s53, v112')
    a('v_lshlrev_b32 v123, 4, v15')
    a('v_add_u32 v123, s53, v123')
    a('v_and_b32 v12, 31, v1')
    a('v_lshrrev_b32 v13, 5, v1')
    a('v_and_b32 v14, 7, v1')
    a(f's_lshl_b32 s53, {sW}, 13')
    for i in range(4):
        a(f'v_add_u32 v{115+i}, {2*i}, v13')
        a(f'v_xor_b32 v{115+i}, v{115+i}, v14')
        a(f'v_lshlrev_b32 v{115+i}, 4, v{115+i}')
        a(f'v_lshl_add_u32 v{115+i}, v12, 8, v{115+i}')
        a(f'v_add_u32 v{115+i}, s53, v{115+i}')
    a(f's_lshl_b32 s67, {sC}, 3')
    a(f's_lshr_b32 s54, {sR}, 3')
    a('s_add_u32 s67, s67, s54')
    a('s_lshl_b32 s67, s67, 2')
    a(f's_add_u32 s67, s67, {sW}')
    a('s_lshl_b32 s67, s67, 3')
    a(f's_and_b32 s54, {sR}, 7')
    a('s_add_u32 s67, s67, s54')
    a('s_lshl_b32 s67, s67, 2')
    a(f's_add_u32 s67, s67, {F_X}')
    a(f's_lshl_b32 s53, {sC}, 3')
    a(f's_lshr_b32 s54, {sR}, 3')
    a('s_add_u32 s53, s53, s54')
    a('s_lshl_b32 s53, s53, 2')
    a(f's_and_b32 s54, {sR}, 7')
    a('s_lshr_b32 s54, s54, 1')
    a('s_add_u32 s53, s53, s54')
    a('s_lshl_b32 s53, s53, 5')
    a(f's_add_u32 s53, s53, {F_X}')
    a('v_and_b32 v122, 7, v1')
    a('v_lshlrev_b32 v122, 2, v122')
    a('v_add_u32 v122, s53, v122')

def gelu_fillers(g, acc, u, T, P, usepk, sc):
    a = g.a
    lay = g.cur_layer
    F = []
    F.append(lambda: a(f's_add_u32 s74, s71, {u*112*1024 + (0 if g.fast else lay*0x800000)}'))
    if usepk:
        seqs = []
        for p in range(8):
            x0 = acc + 2*p; t0 = T + 2*(p % 2); t1 = t0 + 1
            X = pr(x0); Tt = pr(t0)
            seqs.append([f'v_pk_mul_f32 {Tt}, {X}, {X}',
                   f'v_pk_fma_f32 {Tt}, {Tt}, v[12:13], v[12:13] op_sel:[0,0,1] op_sel_hi:[1,0,1]',
                   f'v_pk_mul_f32 {Tt}, {Tt}, {X}',
                   f'v_exp_f32 v{t0}, v{t0}', f'v_exp_f32 v{t1}, v{t1}',
                   f'v_pk_add_f32 {Tt}, {Tt}, v[14:15]',
                   f'v_rcp_f32 v{t0}, v{t0}', f'v_rcp_f32 v{t1}, v{t1}',
                   f'v_pk_mul_f32 {X}, {X}, {Tt}',
                   f'v_cvt_pk_bf16_f32 v{P+p}, v{x0}, v{x0+1}'])
        for p in range(0, 8, 2):
            for s0, s1 in zip(seqs[p], seqs[p+1]):
                F.append(lambda s=s0: a(s)); F.append(lambda s=s1: a(s))
            if p == 2: F.append(lambda: g.vstore(f'v[{P}:{P+3}]', f'v{vL16}', WS, 's74', 0, sc, tag=f'h{u}'))
            if p == 6: F.append(lambda: g.vstore(f'v[{P+4}:{P+7}]', f'v{vL16}', WS, 's74', 1024, sc, tag=f'h{u}'))
        return F
    for p in range(8):
        x0, x1 = acc + 2*p, acc + 2*p + 1
        t0 = T + 2*(p % 2); t1 = t0 + 1
        seq = [f'v_mul_f32 v{t0}, v{x0}, v{x0}', f'v_mul_f32 v{t1}, v{x1}, v{x1}',
               f'v_fma_f32 v{t0}, v{t0}, v12, v13', f'v_fma_f32 v{t1}, v{t1}, v12, v13',
               f'v_mul_f32 v{t0}, v{t0}, v{x0}', f'v_mul_f32 v{t1}, v{t1}, v{x1}',
               f'v_exp_f32 v{t0}, v{t0}', f'v_exp_f32 v{t1}, v{t1}',
               f'v_add_f32 v{t0}, 1.0, v{t0}', f'v_add_f32 v{t1}, 1.0, v{t1}',
               f'v_rcp_f32 v{t0}, v{t0}', f'v_rcp_f32 v{t1}, v{t1}',
               f'v_mul_f32 v{x0}, v{x0}, v{t0}', f'v_mul_f32 v{x1}, v{x1}, v{t1}',
               f'v_cvt_pk_bf16_f32 v{P+p}, v{x0}, v{x1}']
        for s in seq: F.append(lambda s=s: a(s))
        if p == 3: F.append(lambda: g.vstore(f'v[{P}:{P+3}]', f'v{vL16}', WS, 's74', 0, sc, tag=f'h{u}'))
        if p == 7: F.append(lambda: g.vstore(f'v[{P+4}:{P+7}]', f'v{vL16}', WS, 's74', 1024, sc, tag=f'h{u}'))
    return F

def hflag(g, u):
    g.vq.wait(f'h{u}')
    g.a(f's_add_u32 s56, s70, {u*256 + g.cur_layer*64*256}')
    g.flag('s56')

def emit_layer(g, idle=False):
    a = g.a; vq = g.vq; o = g.o
    lay = g.cur_layer
    sch = g.sc_h
    yoff = 0 if g.fast else lay*0x200000
    hoff = 0 if g.fast else lay*0x800000
    xoff = 0 if g.fast else lay*0x400000
    if idle:
        a('s_barrier')
        if (lay == 1 and o.get('hideB', 1)) or (lay == 0 and o.get('hideB0', 0)):
            if lay == 1:
                poll_issue(g, 126, 125, 'pxB'); poll_check(g, 126, 125, 'pxB')
                a(f's_add_u32 s53, s75, {X2 + 4096}')
                g.vload('v[40:43]', f'v{vL16}', WS, 's53', 0, ' sc1', tag='x2b')
            a('s_waitcnt lgkmcnt(0)')
            for f in rowB_fillers(g): f()
            g.rl = lay
            row_flag(g, 1)
        if lay == 0 and o.get('idlepf', 0):
            a(f's_sub_u32 s53, {sR}, 28')
            a('s_lshl_b32 s53, s53, 2')
            a(f's_add_u32 s53, s53, {sW}')
            a('s_lshl_b32 s53, s53, 14')
            a(f's_add_u32 s53, s53, {W2F}')
            a('v_lshlrev_b32 v99, 7, v1')
            for t in range(7):
                a(f'buffer_load_dword v98, v99, {WS}, s53 offen'); vq.issue('ipf')
                if t < 6: a(f's_add_u32 s53, s53, {16*16*1024}')
        g.weight_batch(100)
        a(f'v_add_u32 v100, {lay*64*256}, v119'); a('v_add_u32 v101, 512, v100')
        poll_issue(g, 102, 100, 'phA')
    else:
        a.comment(f'=== G1 layer {lay} ===')
        hideB = (lay == 1 and o.get('hideB', 1)) or (lay == 0 and o.get('hideB0', 0))
        g.dstamp('g1', 'g1 begin')
        a(f'v_add_u32 v100, {lay*2*8*128*4}, v120')
        a(f'v_add_u32 v101, {(lay*2+1)*8*128*4}, v120')
        poll_issue(g, 102, 100, 'pyA')
        a('s_barrier')
        g.mk_srd(SA, sB1, 3584)
        a('v_lshrrev_b32 v14, 5, v1')
        a('v_lshlrev_b32 v15, 3, v14')
        a('s_lshl_b32 s53, s68, 6')
        for i in range(4):
            g.vload(f'v[{104+2*i}:{105+2*i}]', 'v15', srd(SA), 's53', 16*i, w='x2', tag='bias')
        a(f'v_mov_b32 v12, {f2u(-C2)}')
        a(f'v_mov_b32 v13, {f2u(-C1)}')
        a('v_mov_b32 v14, 1.0'); a('v_mov_b32 v15, 1.0')
        def dma_list(eta, tt):
            L = []
            for i in range(8):
                def f(i=i):
                    if i % 4 == 0:
                        a(f's_add_u32 m0, s73, {L_YH[eta] + tt*32768 + i*1024}')
                        a(f's_add_u32 s57, s72, {(64*tt + 8*(i>>2) + 4*eta)*1024 + yoff}')
                    a(f'v_xor_b32 v103, {16*i}, v121')
                    off = f' offset:{(i%4)*1024}' if i % 4 else ''
                    a(f'buffer_load_dwordx4 v103, {WS}, s57 offen{off} sc1 lds')
                    vq.issue(f'dma{eta}{tt}')
                L.append(f)
            return L
        g.dstamp('g1', 'setup done')
        g.dstamp('r1', 'g1 pre-check')
        poll_check(g, 102, 100, 'pyA')
        g.dstamp('r1', 'yA seen')
        g.stamp('g1 yA seen')
        for f in dma_list(0, 0): f()
        nA1 = o.get('nA1pre', 0)
        for f in dma_list(0, 1)[:nA1]: f()
        if not hideB: poll_issue(g, 102, 101, 'pyB')
        elif lay == 1: poll_issue(g, 126, 125, 'pxB')
        vq.wait('bias')
        for i in range(4):
            a(f'v_lshlrev_b32 v{48+4*i}, 16, v{104+2*i}')
            a(f'v_and_b32 v{49+4*i}, 0xffff0000, v{104+2*i}')
            a(f'v_lshlrev_b32 v{50+4*i}, 16, v{105+2*i}')
            a(f'v_and_b32 v{51+4*i}, 0xffff0000, v{105+2*i}')
        if hideB and lay == 1:
            poll_check(g, 126, 125, 'pxB')
            a(f's_add_u32 s53, s75, {X2 + 4096}')
            g.vload('v[40:43]', f'v{vL16}', WS, 's53', 0, ' sc1', tag='x2b')
        g.dstamp('r1', 'dma issued')
        vq.wait('dma00')
        g.dstamp('r1', 'dma00 landed')
        a('s_barrier')
        g.dstamp('r1', 'in lds')
        g.stamp('g1 yA in lds')
        fill = []
        NB, PF = 8, 7
        WG_ = o.get('g1wait', 4)
        XT = o.get('xtile', 1)
        def Breg(k): return f'v[{64+4*(k%NB)}:{67+4*(k%NB)}]'
        def Bload(u, k): a(f'ds_read_b128 {Breg(k)}, v{4+(k&7)} offset:{(u&1)*32768 + (k>>3)*256}')
        if hideB:
            fill = rowB_fillers(g)
        def tile_ready(u):
            vq.wait(f'dma{u>>1}{u&1}'); a('s_barrier')
            if u == 2:
                for m_ in range(8): a(f'v_add_u32 v{4+m_}, 0x10000, v{4+m_}')
        for u in range(4):
            eta, tt = u >> 1, u & 1
            xt_in = XT and not (hideB and u == 2)
            xt_out = XT and u < 3 and not (hideB and u == 1)
            if u >= 1 and not xt_in: tile_ready(u)
            g.dstamp('g1', f'tile{u} start')
            acc = 16 + 16*(u % 2)
            if u == 0 or not xt_in:
                for k in range(PF): Bload(u, k)
            extra = {}
            if u == 0:
                for i, f in enumerate(dma_list(0, 1)[nA1:]): extra.setdefault(i, []).append(f)
                if not hideB:
                    pb = o.get('pbslot', 8)
                    extra.setdefault(pb, []).append(lambda: poll_check(g, 102, 101, 'pyB'))
                    for i, f in enumerate(dma_list(1, 0) + dma_list(1, 1)): extra.setdefault(min(31, pb + 1 + (i * (30 - pb)) // 16), []).append(f)
            if u == 1 and hideB:
                g.rl = lay
                extra.setdefault(o.get('hbflag', 0), []).append(lambda: row_flag(g, 1))
                extra.setdefault(o.get('hbiss', 4), []).append(lambda: poll_issue(g, 102, 101, 'pyB'))
                pb = o.get('hbchk', 9)
                extra.setdefault(pb, []).append(lambda: poll_check(g, 102, 101, 'pyB'))
                for i, f in enumerate(dma_list(1, 0) + dma_list(1, 1)): extra.setdefault(min(31, pb + 1 + (i * (30 - pb)) // 16), []).append(f)
            if u == 3:
                extra.setdefault(o.get('fA0', 2), []).append(lambda: hflag(g, 0))
                extra.setdefault(o.get('fA1', 28), []).append(lambda: hflag(g, 1))
                extra.setdefault(29, []).append(lambda: (a(f'v_add_u32 v100, {lay*64*256}, v119'), a('v_add_u32 v101, 512, v100'), poll_issue(g, 102, 100, 'phA')))
            u0 = o.get('wtile0', 1)
            if g.wlist and u >= u0:
                nper = (len(g.wlist) + (3 - u)) // (4 - u)
                span = o.get('wspan', 23)
                for sl in [1 + (i * span) // nper for i in range(nper)]:
                    extra.setdefault(sl, []).append(lambda: g.weight_batch(1))
            if xt_out:
                extra.setdefault(25, []).insert(0, lambda u=u: tile_ready(u + 1))
            sp = spread(fill, 32, (o.get('hbstart', 5) if (u == 0) else 4), (o.get('hbend', 24) if u == 0 else o.get('gend', 27)))
            done = 0
            for k in range(32):
                if k % WG_ == 0:
                    need = min(k + WG_ - 1, 31)
                    if xt_out: issued = k + PF - 1 if k + PF - 1 <= 31 else 31 + max(0, k - 25)
                    else: issued = min(k + PF - 1, 31)
                    a(f's_waitcnt lgkmcnt({max(issued - need, 0)})')
                cin = f'v[48:63]' if k == 0 else f'v[{acc}:{acc+15}]'
                a(f'v_mfma_f32_32x32x16_bf16 v[{acc}:{acc+15}], {W1reg(k)}, {Breg(k)}, {cin}')
                if k + PF < 32: Bload(u, k + PF)
                while done < sp[k]: fill[done](); done += 1
                for f in extra.get(k, []): f()
                if xt_out and k >= 25: Bload(u + 1, k - 25)
            while done < len(fill): fill[done](); done += 1
            g.dstamp('g1', f'tile{u} done')
            if u < 3: fill = gelu_fillers(g, acc, u, 96, 104, False, sch)
            else: fill = gelu_fillers(g, acc, u, 96, 48, True, sch)
        g.dstamp('g1', 'tiles done')
    if not idle:
        for m in range(8): a(f'v_subrev_u32 v{4+m}, 0x10000, v{4+m}')
    NW = 12
    HW = 64
    def Hreg(s): return f'v[{HW+4*(s%NW)}:{HW+3+4*(s%NW)}]'
    def Hload(s):
        eta, i = divmod(s, 28)
        a(f's_add_u32 s54, s69, {eta*2*112*1024 + (i//4)*4096 + hoff}')
        g.vload(Hreg(s), f'v{vL16}', WS, 's54', (i%4)*1024, ' sc1', tag=f'hf{s}')
    a('v_mov_b32 v124, v100'); a('v_mov_b32 v125, v101')
    poll_check(g, 102, 100, 'phA')
    g.stamp('g2 hA seen')
    fill = gelu_fillers(g, 32, 3, 60, 48, True, sch)
    for s in range(NW): Hload(s)
    g.dstamp('g2', 'A loads issued')
    if not idle:
        a.nop(2)
        half = len(fill)//2
        for f in fill[:half]: f()
        hflag(g, 2)
        for f in fill[half:]: f()
    g.stamp('g1 done')
    g.dstamp('g2', 'tail done')
    g.mk_srd(SA, sB2, 1024)
    g.vload('v[56:59]', 'v123', srd(SA), 0, 0, tag='b2')
    a(f's_mov_b32 s53, {X1 + xoff}')
    g.vload('v[60:63]', 'v112', WS, 's53', 0, ' sc1', tag='res0')
    if lay == 0:
        OUT = WS; obase = X2
    else:
        g.mk_srd(SB, sOUT, 2097152); OUT = srd(SB); obase = 0
    sco = g.sc_x if lay == 0 else (' sc1' if o.get('outsc1', 1) else (' nt' if o.get('outnt', 0) else ''))
    def accset(eta, nt):
        return f'a[{224+16*nt}:{239+16*nt}]' if eta == 0 else f'v[{16+16*nt}:{31+16*nt}]'
    def red_write_list(eta):
        LR = eta*32768
        L = []
        for nt in range(2):
            for i in range(4):
                src = f'a[{224+16*nt+4*i}:{224+16*nt+4*i+3}]' if eta == 0 else f'v[{16+16*nt+4*i}:{16+16*nt+4*i+3}]'
                L.append(lambda src=src, i=i, nt=nt: a(f'ds_write_b128 v{115+i}, {src} offset:{LR + nt*128}'))
        return L
    def xflag(eta):
        vq.wait(f'xo{eta}')
        a(f's_add_u32 s53, s67, {eta*512}')
        g.flag('s53')
    def red_small(eta, res):
        LR = eta*32768
        L = []
        for h in range(2):
            ad = 113 + h
            T0, T1 = 48, 52
            b2 = 56 + 2*h; rs = res + 2*h
            L.append(lambda ad=ad: (a(f'ds_read_b128 v[48:51], v{ad} offset:{LR}'), a(f'ds_read_b128 v[52:55], v{ad} offset:{LR + 8192}')))
            def add(): a(f'v_pk_add_f32 {pr(48)}, {pr(48)}, {pr(52)}'); a(f'v_pk_add_f32 {pr(50)}, {pr(50)}, {pr(54)}')
            def sadd():
                for e in range(4): a(f'v_add_f32 v{48+e}, v{48+e}, v{52+e}')
            L.append(lambda ad=ad: (a('s_waitcnt lgkmcnt(0)'), sadd(), a(f'ds_read_b128 v[52:55], v{ad} offset:{LR + 2*8192}')))
            L.append(lambda ad=ad: (a('s_waitcnt lgkmcnt(0)'), sadd(), a(f'ds_read_b128 v[52:55], v{ad} offset:{LR + 3*8192}')))
            L.append(lambda: (a('s_waitcnt lgkmcnt(0)'), sadd()))
            def ub(src):
                a(f'v_lshlrev_b32 v52, 16, v{src}'); a(f'v_and_b32 v53, 0xffff0000, v{src}')
                a(f'v_lshlrev_b32 v54, 16, v{src+1}'); a(f'v_and_b32 v55, 0xffff0000, v{src+1}')
            L.append(lambda b2=b2: (ub(b2), sadd()))
            def rnd():
                a('v_cvt_pk_bf16_f32 v52, v48, v49'); a('v_cvt_pk_bf16_f32 v53, v50, v51')
                a('v_lshlrev_b32 v48, 16, v52'); a('v_and_b32 v49, 0xffff0000, v52')
                a('v_lshlrev_b32 v50, 16, v53'); a('v_and_b32 v51, 0xffff0000, v53')
            L.append(rnd)
            L.append(lambda rs=rs: (vq.wait(f'res{eta}'), ub(rs), sadd()))
            L.append(lambda h=h: (a(f'v_cvt_pk_bf16_f32 v{12+2*h}, v48, v49'), a(f'v_cvt_pk_bf16_f32 v{13+2*h}, v50, v51')))
        def st():
            a(f's_mov_b32 s53, {obase + eta*4096}')
            g.vstore('v[12:15]', 'v112', OUT, 's53', 0, sco, tag=f'xo{eta}')
        L.append(st)
        return L
    def red_big(eta, res, mid=None):
        LR = eta*32768
        T = 64
        for p in range(4):
            a(f'ds_read_b128 v[{T+8*p}:{T+8*p+3}], v113 offset:{LR + p*8192}')
            a(f'ds_read_b128 v[{T+8*p+4}:{T+8*p+7}], v114 offset:{LR + p*8192}')
        g.unpack8(56, T+32)
        a('s_waitcnt lgkmcnt(4)')
        for e in range(4): a(f'v_pk_add_f32 {pr(T+2*e)}, {pr(T+2*e)}, {pr(T+8+2*e)}')
        for e in range(4): a(f'v_pk_add_f32 {pr(T+2*e)}, {pr(T+2*e)}, {pr(T+32+2*e)}')
        a('s_waitcnt lgkmcnt(0)')
        for e in range(4): a(f'v_pk_add_f32 {pr(T+16+2*e)}, {pr(T+16+2*e)}, {pr(T+24+2*e)}')
        for e in range(4): a(f'v_pk_add_f32 {pr(T+2*e)}, {pr(T+2*e)}, {pr(T+16+2*e)}')
        g.pack8(T, T+8); g.unpack8(T+8, T)
        if mid: mid()
        vq.wait(f'res{eta}')
        g.unpack8(res, T+16)
        for e in range(4): a(f'v_pk_add_f32 {pr(T+2*e)}, {pr(T+2*e)}, {pr(T+16+2*e)}')
        g.pack8(T, T+8)
        a(f's_mov_b32 s53, {obase + eta*4096}')
        g.vstore(f'v[{T+8}:{T+11}]', 'v112', OUT, 's53', 0, sco, tag=f'xo{eta}')
    extra = {}
    if not idle: extra.setdefault(o.get('fB1', 3), []).append(lambda: hflag(g, 3))
    extra.setdefault(10, []).append(lambda: poll_issue(g, 126, 125, 'phB'))
    extra.setdefault(15, []).append(lambda: poll_check(g, 126, 125, 'phB'))
    for i, f in enumerate(red_write_list(0)): extra.setdefault(30 + i//2, []).append(f)
    extra.setdefault(35, []).append(lambda: (a('s_waitcnt lgkmcnt(0)'), a('s_barrier')))
    for i, f in enumerate(red_small(0, 60)): extra.setdefault(36 + (i * o.get('rsnum', 2)) // 3, []).append(f)
    def resB():
        a(f's_mov_b32 s53, {X1 + xoff + 4096}')
        g.vload('v[60:63]', 'v112', WS, 's53', 0, ' sc1', tag='res1')
    extra.setdefault(50, []).append(resB)
    for s in range(56):
        eta, i = divmod(s, 28)
        vq.wait(f'hf{s}')
        for nt in range(2):
            acc = accset(eta, nt)
            cin = '0' if i == 0 else acc
            a(f'v_mfma_f32_32x32x16_bf16 {acc}, {W2reg(nt,i)}, {Hreg(s)}, {cin}')
            if nt == 0 and s >= 1 and (s - 1) + NW < 56: Hload(s - 1 + NW)
        if s == 27: g.dstamp('g2', 'A mfma done')
        for f in extra.get(s, []): f()
    def tail():
        g.dstamp('g2', 'B mfma done')
        if lay == 0: xflag(0)
        a.nop(12)
        for f in red_write_list(1): f()
        a('s_waitcnt lgkmcnt(0)')
        a('s_barrier')
        pre = (lay == 0 and o.get('x2pre', 1))
        if pre: poll_issue(g, 110, 122, 'pxA')
        red_big(1, 60, (lambda: (poll_check(g, 110, 122, 'pxA'), a(f's_add_u32 s53, s75, {X2}'), g.vload('v[104:107]', f'v{vL16}', WS, 's53', 0, ' sc1', tag='x2a'))) if pre else None)
        g.dstamp('g2', 'B finished')
        g.xflagB = (lambda: xflag(1))
        if lay == 0 and not pre: xflag(1)
        g.stamp('g2 done')
    return tail, list(vq.ops)

def emit_layer_both(g):
    a = g.a
    if not g.o.get('idleskip', 1):
        tail, ops = emit_layer(g); tail(); return
    Li = a.newlabel('idle'); Ld = a.newlabel('ldone')
    ops0 = list(g.vq.ops); wl0 = list(g.wlist)
    a(f's_cmp_ge_u32 {sR}, 28')
    a(f's_cbranch_scc1 {Li}')
    tail, opsN = emit_layer(g)
    a(f's_branch {Lt(Ld)}')
    a.label(Li)
    g.vq.ops = ops0; g.wlist = wl0
    st = g.stamps
    g.stamps = False
    _, opsI = emit_layer(g, idle=True)
    g.stamps = st
    a.label(Ld)
    k = 0
    while k < min(len(opsN), len(opsI)) and opsN[-1-k] == opsI[-1-k]: k += 1
    assert 'res1' in opsN[len(opsN)-k:] and 'xo0' in opsN[len(opsN)-k:], (opsN, opsI)
    g.vq.ops = opsN[len(opsN)-k:]
    tail()

def Lt(x): return x

def emit_r2(g):
    a = g.a; vq = g.vq
    g.rl = 1
    a(f'v_mov_b32 v{VINV}, 0x3b000000')
    a('v_add_u32 v109, 512, v122')
    g.dstamp('r2', 'r2 begin')
    if g.o.get('x2pre', 1):
        vq.wait('x2a')
        g.unpack8(104, 16)
    else:
        poll_issue(g, 110, 122, 'pxA')
        poll_check(g, 110, 122, 'pxA')
        g.dstamp('r2', 'xA seen')
        a(f's_add_u32 s53, s75, {X2}')
        g.vload('v[60:63]', f'v{vL16}', WS, 's53', 0, ' sc1', tag='x2a')
        poll_issue(g, 110, 109, 'pxB')
        vq.wait('x2a')
        g.unpack8(60, 16)
    g.ln_multi([(16, 24, 52)])
    if g.o.get('x2pre', 1):
        g.xflagB()
        if g.o.get('hideB', 1):
            a('v_add_u32 v125, 512, v122')
        else:
            poll_issue(g, 110, 109, 'pxB')
    rows_finish(g, [(16, 0)], g.sc_x3, g.sc_y1)
    g.dstamp('r2', 'row0 stored')
    if g.o.get('hideB', 1):
        a(f's_lshl_b32 s53, {sW}, 10')
        a(f's_add_u32 s53, s53, {L_G + 4096}')
        a(f'v_add_u32 v111, s53, v{vL16}')
        a('ds_read_b128 v[44:47], v111')
        row_flag(g, 0)
        g.stamp('r2 done')
        return
    poll_check(g, 110, 109, 'pxB')
    a(f's_add_u32 s53, s75, {X2 + 4096}')
    g.vload('v[60:63]', f'v{vL16}', WS, 's53', 0, ' sc1', tag='x2b')
    row_flag(g, 0)
    g.dstamp('r2', 'A flagged')
    vq.wait('x2b')
    g.unpack8(60, 64)
    g.ln_multi([(64, 72, 100)])
    rows_finish(g, [(64, 1)], g.sc_x3, g.sc_y1)
    g.dstamp('r2', 'row1 stored')
    row_flag(g, 1)
    g.stamp('r2 done')

def emit_r1b(g):
    a = g.a
    g.rl = 0
    nw = g.o.get('wb3', 16)
    def w(n):
        nonlocal nw
        k = min(n, nw); nw -= k
        g.weight_batch(k)
    g.cur_layer = 0
    g.dstamp('r1', 'r1b begin')
    rows_finish(g, [(16, 0)], ' sc1', g.sc_y0, part=1)
    rows_finish(g, [(16, 0)], ' sc1', g.sc_y0, part=2)
    g.dstamp('r1', 'A stored')
    if g.o.get('hideB0', 0):
        for i in range(4): a(f'v_mov_b32 v{40+i}, v{104+i}')
        a(f's_lshl_b32 s53, {sW}, 10')
        a(f's_add_u32 s53, s53, {L_G + 4096}')
        a(f'v_add_u32 v111, s53, v{vL16}')
        a('ds_read_b128 v[44:47], v111')
        w(6)
        row_flag(g, 0)
        w(100)
    else:
        w(3)
        rows_finish(g, [(64, 1)], ' sc1', g.sc_y0, part=1)
        row_flag(g, 0)
        g.dstamp('r1', 'A flagged')
        w(8); rows_finish(g, [(64, 1)], ' sc1', g.sc_y0, part=2)
        w(100)
        g.dstamp('r1', 'B stored')
        row_flag(g, 1)
        g.dstamp('r1', 'B flagged')
    g.stamp('r1 done')

def mlp_setup_rest(g): mlp_setup(g, 1)

def emit_variant(g, fast):
    a = g.a; o = g.o
    g.fast = fast
    g.fsc = '' if fast else ' sc1'
    yt = fast and (o.get('ytouch', 0) or o.get('dstore', 1))
    g.sc_h = ('' if (fast and o.get('dstore', 1) and o.get('dsH', 0)) else ' sc1'); g.sc_x = ('' if (yt and o.get('dsX', 0)) else ' sc1'); g.sc_y0 = ('' if yt else ' sc1')
    g.sc_x3 = ' sc1'; g.sc_y1 = ('' if (fast and o.get('y1plain', 1)) else ' sc1')
    emit_r1b(g)
    if g.stop == 'r1': a('s_branch L_fin'); return
    a(f's_mov_b32 {sLAYER}, 0')
    g.cur_layer = 0
    emit_layer_both(g)
    if g.stop == 'g2': a('s_branch L_fin'); return
    g.cur_layer = 1
    emit_r2(g)
    if g.stop == 'r2': a('s_branch L_fin'); return
    a(f's_mov_b32 {sLAYER}, 1')
    g.sc_h = ({1: '', 2: ' nt', 3: ' sc0'}[o.get('h1plain')] if (fast and o.get('h1plain', 0)) else ' sc1')
    emit_layer_both(g)
    a('s_branch L_fin')

def emit_mlp(g):
    a = g.a
    g.vinv = VINV
    g.r1_hook = lambda: (mlp_setup(g, 0), mlp_setup(g, 1))
    emit_r1a(g)
    ops0 = list(g.vq.ops); wl0 = list(g.wlist)
    a(f's_cmp_eq_u32 {sFAST}, 0')
    a('s_cbranch_scc1 L_slow')
    emit_variant(g, True)
    g.more_code = True
    g.finish()
    a.label('L_slow')
    g.vq.ops = ops0; g.wlist = wl0
    st = g.stamps; g.stamps = False
    emit_variant(g, False)
    g.stamps = st
```

```python
import sys, argparse, struct
from asmlib import Asm, check_hazards, check_waits

NAME = 'interleave_layers__ssm_conv_h3__mixer_channel_mlp__prompt_kernel'

WS_EPOCH = 0x0
F_PREP = 0x1000
F_CONV = 0x2000
F_W = 0x3000
F_XC = 0x3800
F_PL = 0x1800
DUMMY2 = 0x2D00000
F_Y    = 0x4000
F_H    = 0x8000
F_X    = 0x10000
XR     = 0x100000
W1F    = 0x300000
W2F    = 0x500000
GB     = 0x700000
Y0     = 0x900000
X1     = 0xD00000
X2     = 0xF00000
H0     = 0x1400000
TS     = 0x2400000
WS_SIZE = 0x10000000

L_KVT = 0
L_W1R = 8192
L_W2R = 16384
L_GT  = 0
L_XB = 25600
XBS = 79*96
L_TOEP = 40960
CS = 4160
LDS_SIZE = 163840
L_G = 155648
L_YH = [0, 65536]

sQ, sK, sV, sSK, sSSM, sD, sBX, sW1 = 16, 18, 20, 22, 24, 26, 28, 30
sB1, sW2, sB2, sOUT, sDBG, sWSP = 32, 34, 36, 38, 40, 42
WS = 's[44:47]'
sC, sR, sW, sTAG, sABORT = 's48', 's49', 's50', 's51', 's52'
sLAYER, sT1, sJ = 's64', 's65', 's66'
sXCC, sFAST = 's101', 's3'
SA, SB, SC_, SD_ = 4, 8, 12, 72
def srd(n): return f's[{n}:{n+3}]'
W1B = 128
vL16, vTAG = 2, 3
def W1reg(k): return f'v[{W1B+4*k}:{W1B+4*k+3}]'
def W2reg(nt, i):
    b = (nt*28 + i)*4
    return f'a[{b}:{b+3}]'
def f2u(x): return '0x%08x' % struct.unpack('<I', struct.pack('<f', x))[0]
C1 = 2*0.7978845608028654*1.4426950408889634
C2 = C1*0.044715

DOC = '''; ---------------------------------------------------------------------------------------------------------------
;   prep : kv = (4-tap causal conv of k) * v, transposed + time-reversed (XR); w1 / w2 re-laid out as MFMA fragments
;   conv : per channel pair, y = causal long convolution as a Toeplitz matmul (8 shifted copies of ssm_k in LDS,
;          16x16x32 bf16 MFMA), G = y + kv*D  (G does not depend on x, so it is computed once for both layers)
;   G1   : h = gelu_tanh(y @ w1 + b1)  (w1 slice stationary in VGPRs, y staged in LDS by LDS-DMA)
; ---------------------------------------------------------------------------------------------------------------
'''

class VQ:
    def __init__(self, a): self.a = a; self.ops = []
    def issue(self, tag): self.ops.append(tag)
    def wait(self, tag):
        idx = max(i for i, t in enumerate(self.ops) if t == tag) if tag in self.ops else None
        if idx is None: return
        n = len(self.ops) - 1 - idx
        assert n <= 63, n
        self.a(f's_waitcnt vmcnt({n})')
        self.ops = self.ops[idx+1:]
    def drain(self):
        self.a('s_waitcnt vmcnt(0)'); self.ops = []
    def reset(self): self.ops = []

class Gen:
    def __init__(self, stop='end', stamps=False, opts=None):
        self.a = Asm(); self.vq = VQ(self.a)
        self.stop = stop; self.stamps = stamps
        self.nstamp = 0; self.stamp_names = []
        self.sc = ' sc1'; self.fsc = ' sc1'; self.fast = False; self.vinv = 4
        self.o = opts or {}

    def capture(self, fn):
        saved = self.a.lines
        self.a.lines = []
        fn()
        got = self.a.lines
        self.a.lines = saved
        return got

    def mk_srd(self, n, ptr, size, add=None):
        a = self.a
        if add is None:
            a(f's_mov_b32 s{n}, s{ptr}')
            a(f's_and_b32 s{n+1}, s{ptr+1}, 0xffff')
        else:
            a(f's_add_u32 s{n}, s{ptr}, {add}')
            a(f's_addc_u32 s{n+1}, s{ptr+1}, 0')
            a(f's_and_b32 s{n+1}, s{n+1}, 0xffff')
        a(f's_mov_b32 s{n+2}, {size}')
        a(f's_mov_b32 s{n+3}, 0x00020000')

    def dstamp(self, phase, name):
        if self.o.get('detail') == phase and getattr(self, 'cur_layer', 0) == self.o.get('dlayer', 1): self.stamp(name, False, force=True)
    def stamp(self, name='', inloop=False, force=False):
        if not self.stamps: return
        if self.o.get('detail') and not force and name not in ('start', 'end'): return
        inloop = False
        i = self.nstamp; self.nstamp += 1
        assert self.nstamp <= 24, name
        self.stamp_names.append(name)
        a = self.a
        a(f's_waitcnt lgkmcnt(0)')
        a(f's_memtime s[62:63]' if self.o.get('cyc') else f's_memrealtime s[62:63]')
        a(f's_waitcnt lgkmcnt(0)')
        if inloop:
            a('s_cmp_eq_u32 s64, 0')
            a(f's_cselect_b32 s{76+i}, s62, s{76+i}')
            a(f's_cselect_b32 s{77+i}, s{77+i}, s62')
        else:
            a(f's_mov_b32 s{76+i}, s62')

    def vload(self, dst, voff, sr, soff, imm=0, mods='', tag='ld', w='x4'):
        o = f' offset:{imm}' if imm else ''
        op = {'x4': 'buffer_load_dwordx4', 'x2': 'buffer_load_dwordx2', 'x1': 'buffer_load_dword'}[w]
        self.a(f'{op} {dst}, {voff}, {sr}, {soff} offen{o}{mods}')
        self.vq.issue(tag)
    def vstore(self, src, voff, sr, soff, imm=0, mods='', tag='st'):
        o = f' offset:{imm}' if imm else ''
        self.a(f'buffer_store_dwordx4 {src}, {voff}, {sr}, {soff} offen{o}{mods}')
        self.vq.issue(tag)

    def poll(self, vaddr, vtmp, nlanes=64, x4=False):
        a = self.a
        L = a.newlabel('poll'); D = a.newlabel('polld')
        a(f's_mov_b32 s53, 0')
        if nlanes < 64:
            a(f's_mov_b64 s[56:57], exec')
            a(f's_mov_b64 exec, {hex((1 << nlanes) - 1)}')
        a.label(L)
        if x4:
            a(f'buffer_load_dwordx4 v[{vtmp}:{vtmp+3}], v{vaddr}, {WS}, 0 offen sc1')
            a(f's_waitcnt vmcnt(0)')
            a(f'v_xor_b32 v{vtmp}, {sTAG}, v{vtmp}')
            a(f'v_xor_b32 v{vtmp+1}, {sTAG}, v{vtmp+1}')
            a(f'v_xor_b32 v{vtmp+2}, {sTAG}, v{vtmp+2}')
            a(f'v_xor_b32 v{vtmp+3}, {sTAG}, v{vtmp+3}')
            a(f'v_or_b32 v{vtmp}, v{vtmp}, v{vtmp+1}')
            a(f'v_or3_b32 v{vtmp}, v{vtmp}, v{vtmp+2}, v{vtmp+3}')
            a(f'v_cmp_ne_u32 vcc, 0, v{vtmp}')
        else:
            a(f'buffer_load_dword v{vtmp}, v{vaddr}, {WS}, 0 offen sc1')
            a(f's_waitcnt vmcnt(0)')
            a(f'v_cmp_ne_u32 vcc, {sTAG}, v{vtmp}')
        a(f's_cbranch_vccz {D}')
        a(f's_add_u32 s53, s53, 1')
        a(f's_cmp_lg_u32 {sABORT}, 0')
        a(f's_cbranch_scc1 {D}')
        a(f's_cmp_lt_u32 s53, 0x8000')
        a(f's_cbranch_scc1 {L}')
        a(f's_mov_b32 {sABORT}, 1')
        a.label(D)
        if nlanes < 64:
            a(f's_mov_b64 exec, s[56:57]')
        self.vq.reset()

    def poll_prep(self, vaddr, vt):
        a = self.a
        L = a.newlabel('poll'); D = a.newlabel('polld')
        a(f's_mov_b32 s53, 0')
        a.label(L)
        a(f'buffer_load_dwordx4 v[{vt}:{vt+3}], v{vaddr}, {WS}, 0 offen sc1')
        a(f's_waitcnt vmcnt(0)')
        for i in range(4): a(f'v_subrev_u32 v{vt+i}, {sTAG}, v{vt+i}')
        a(f'v_or_b32 v{vt+4}, v{vt}, v{vt+1}')
        a(f'v_or3_b32 v{vt+4}, v{vt+4}, v{vt+2}, v{vt+3}')
        a(f'v_cmp_lt_u32 vcc, 15, v{vt+4}')
        a(f's_cbranch_vccz {D}')
        a(f's_add_u32 s53, s53, 1')
        a(f's_cmp_lg_u32 {sABORT}, 0')
        a(f's_cbranch_scc1 {D}')
        a(f's_cmp_lt_u32 s53, 0x8000')
        a(f's_cbranch_scc1 {L}')
        a(f's_mov_b32 {sABORT}, 1')
        a.label(D)
        self.vq.reset()

    def dyn_role(self, vt):
        a = self.a
        lo, hi, t, u = vt+5, vt+6, vt+7, vt+8
        a(f'v_mov_b32 v{lo}, 0'); a(f'v_mov_b32 v{hi}, 0')
        for i in range(4):
            a(f'v_and_b32 v{t}, 3, v{vt+i}')
            a(f'v_lshlrev_b32 v{t}, 3, v{t}')
            a(f'v_lshlrev_b32 v{t}, v{t}, 1') if False else a(f'v_lshlrev_b32 v{t}, v{t}, v{vt+9}')
            a(f'v_lshrrev_b32 v{u}, 2, v{vt+i}')
            a(f'v_cmp_eq_u32 vcc, 0, v{u}')
            a.nop(2)
            a(f'v_cndmask_b32 v{vt+10}, 0, v{t}, vcc')
            a(f'v_cmp_eq_u32 vcc, 1, v{u}')
            a(f'v_add_u32 v{lo}, v{lo}, v{vt+10}')
            a.nop(1)
            a(f'v_cndmask_b32 v{vt+10}, 0, v{t}, vcc')
            a(f'v_add_u32 v{hi}, v{hi}, v{vt+10}')
        steps = ['quad_perm:[1,0,3,2] row_mask:0xf bank_mask:0xf', 'quad_perm:[2,3,0,1] row_mask:0xf bank_mask:0xf',
                 'row_half_mirror row_mask:0xf bank_mask:0xf', 'row_mirror row_mask:0xf bank_mask:0xf',
                 'row_bcast:15 row_mask:0xa bank_mask:0xf', 'row_bcast:31 row_mask:0xc bank_mask:0xf']
        a.nop(2)
        for st in steps:
            a(f'v_add_u32_dpp v{lo}, v{lo}, v{lo} {st}')
            a(f'v_add_u32_dpp v{hi}, v{hi}, v{hi} {st}')
            a.nop(1)
        a(f'v_readlane_b32 s56, v{lo}, 63')
        a(f'v_readlane_b32 s57, v{hi}, 63')
        a(f'v_lshlrev_b32 v{t}, 2, v1')
        a('s_mov_b32 s58, 0')
        for i in range(4):
            a(f'v_cmp_eq_u32 vcc, {sXCC}, v{vt+i}')
            a(f'v_add_u32 v{u}, {i}, v{t}')
            a(f'v_cmp_gt_u32 s[54:55], s2, v{u}')
            a.nop(1)
            a('s_and_b64 s[54:55], s[54:55], vcc')
            a('s_bcnt1_i32_b64 s55, s[54:55]')
            a('s_add_u32 s58, s58, s55')
        a('s_cmp_eq_u32 s56, 0x20202020')
        a(f's_cselect_b32 {sFAST}, 1, 0')
        a('s_cmp_eq_u32 s57, 0x20202020')
        a(f's_cselect_b32 {sFAST}, {sFAST}, 0')
        a(f's_cmp_eq_u32 {sABORT}, 0')
        a(f's_cselect_b32 {sFAST}, {sFAST}, 0')
        if self.o.get('force_slow'): a(f's_mov_b32 {sFAST}, 0')
        a(f's_cmp_eq_u32 {sFAST}, 1')
        a(f's_cselect_b32 {sC}, {sXCC}, {sC}')
        a(f's_cselect_b32 {sR}, s58, {sR}')

    def check_xc(self, vt, vaddr):
        a = self.a
        self.vq.wait('fw')
        L = a.newlabel('fw'); D = a.newlabel('fwd')
        a('s_mov_b32 s53, 0')
        a.label(L)
        for i in range(4): a(f'v_subrev_u32 v{vt+i}, {sTAG}, v{vt+i}')
        a(f'v_or_b32 v{vt+5}, v{vt}, v{vt+1}')
        a(f'v_or3_b32 v{vt+5}, v{vt+5}, v{vt+2}, v{vt+3}')
        a(f'v_cmp_lt_u32 vcc, 15, v{vt+5}')
        a(f's_cbranch_vccz {D}')
        a('s_add_u32 s53, s53, 1')
        a(f's_cmp_lg_u32 {sABORT}, 0')
        a(f's_cbranch_scc1 {D}')
        a('s_cmp_lt_u32 s53, 0x8000')
        a(f's_cbranch_scc0 {D}_ab')
        a(f'buffer_load_dwordx4 v[{vt}:{vt+3}], v{vaddr}, {WS}, 0 offen sc1')
        a('s_waitcnt vmcnt(0)')
        a(f's_branch {L}')
        a.label(D + '_ab')
        a(f's_mov_b32 {sABORT}, 1')
        a.label(D)
        a(f'v_mov_b32 v{vt+9}, 1')
        self.dyn_role(vt)
        self.weight_state_init()

    def check_fw(self, vt, vaddr):
        a = self.a
        self.vq.wait('fw2')
        L = a.newlabel('fw'); D = a.newlabel('fwd')
        a('s_mov_b32 s53, 0')
        a.label(L)
        for i in range(4): a(f'v_xor_b32 v{vt+i}, {sTAG}, v{vt+i}')
        a(f'v_or_b32 v{vt}, v{vt}, v{vt+1}')
        a(f'v_or3_b32 v{vt}, v{vt}, v{vt+2}, v{vt+3}')
        a(f'v_cmp_ne_u32 vcc, 0, v{vt}')
        a(f's_cbranch_vccz {D}')
        a('s_add_u32 s53, s53, 1')
        a(f's_cmp_lg_u32 {sABORT}, 0')
        a(f's_cbranch_scc1 {D}')
        a('s_cmp_lt_u32 s53, 0x8000')
        a(f's_cbranch_scc0 {D}_ab')
        a(f'buffer_load_dwordx4 v[{vt}:{vt+3}], v{vaddr}, {WS}, 0 offen sc1')
        a('s_waitcnt vmcnt(0)')
        a(f's_branch {L}')
        a.label(D + '_ab')
        a(f's_mov_b32 {sABORT}, 1')
        a.label(D)

    def flag(self, soff, sc=None):
        sc = self.fsc if sc is None else sc
        self.a(f'buffer_store_dword v{vTAG}, off, {WS}, {soff}{sc}')
        self.vq.issue('flag')

    def reduce_multi(self, regs, sdst):
        a = self.a
        steps = ['quad_perm:[1,0,3,2] row_mask:0xf bank_mask:0xf', 'quad_perm:[2,3,0,1] row_mask:0xf bank_mask:0xf',
                 'row_half_mirror row_mask:0xf bank_mask:0xf', 'row_mirror row_mask:0xf bank_mask:0xf',
                 'row_bcast:15 row_mask:0xa bank_mask:0xf', 'row_bcast:31 row_mask:0xc bank_mask:0xf']
        pad = max(0, 3 - len(regs))
        a.nop(max(0, 2 - (len(regs) - 1)) if len(regs) < 3 else 0)
        for s in steps:
            for r in regs:
                a(f'v_add_f32_dpp v{r}, v{r}, v{r} {s}')
            if pad: a.nop(pad)
        if len(regs) < 2: a.nop(1)
        for r, s in zip(regs, sdst):
            a(f'v_readlane_b32 s{s}, v{r}, 63')
        a.nop(2)

    def ln_multi(self, rows, double=False):
        a = self.a
        def pr(b): return f'v[{b}:{b+1}]'
        for (x, z, t) in rows:
            a(f'v_pk_add_f32 {pr(t)}, {pr(x)}, {pr(x+2)}')
            a(f'v_pk_mul_f32 {pr(t+2)}, {pr(x)}, {pr(x)}')
        for (x, z, t) in rows:
            a(f'v_pk_add_f32 {pr(t+4)}, {pr(x+4)}, {pr(x+6)}')
            a(f'v_pk_fma_f32 {pr(t+2)}, {pr(x+2)}, {pr(x+2)}, {pr(t+2)}')
        for (x, z, t) in rows:
            a(f'v_pk_add_f32 {pr(t)}, {pr(t)}, {pr(t+4)}')
            a(f'v_pk_fma_f32 {pr(t+2)}, {pr(x+4)}, {pr(x+4)}, {pr(t+2)}')
        for (x, z, t) in rows:
            a(f'v_add_f32 v{t}, v{t}, v{t+1}')
            a(f'v_pk_fma_f32 {pr(t+2)}, {pr(x+6)}, {pr(x+6)}, {pr(t+2)}')
        for (x, z, t) in rows:
            a(f'v_add_f32 v{t+2}, v{t+2}, v{t+3}')
        regs = []; sd = []
        for i, (x, z, t) in enumerate(rows):
            regs += [t, t+2]; sd += [58 - 2*i, 59 - 2*i]
        self.reduce_multi(regs, sd)
        for i, (x, z, t) in enumerate(rows):
            s1, s2 = sd[2*i], sd[2*i+1]
            a(f'v_mul_f32 v{t+4}, s{s1}, v{self.vinv}')
            a(f'v_mul_f32 v{t+2}, s{s2}, v{self.vinv}')
        for (x, z, t) in rows:
            a(f'v_fma_f32 v{t+2}, -v{t+4}, v{t+4}, v{t+2}')
        for (x, z, t) in rows:
            a(f'v_max_f32 v{t+2}, 0, v{t+2}')
        if double:
            for (x, z, t) in rows: a(f'v_add_f32 v{t}, 0x3727c5ac, v{t+2}')
            for (x, z, t) in rows: a(f'v_rsq_f32 v{t}, v{t}')
            if len(rows) < 2: a.nop(1)
            for (x, z, t) in rows: a(f'v_mul_f32 v{t+2}, v{t+2}, v{t}')
            for (x, z, t) in rows: a(f'v_fmaak_f32 v{t+2}, v{t+2}, v{t}, 0x3727c5ac')
            for (x, z, t) in rows: a(f'v_rsq_f32 v{t+2}, v{t+2}')
            if len(rows) < 2: a.nop(1)
            for (x, z, t) in rows: a(f'v_mul_f32 v{t+2}, v{t+2}, v{t}')
        else:
            for (x, z, t) in rows:
                a(f'v_add_f32 v{t+2}, 0x3727c5ac, v{t+2}')
            for (x, z, t) in rows:
                a(f'v_rsq_f32 v{t+2}, v{t+2}')
            if len(rows) < 2: a.nop(1)
        for (x, z, t) in rows:
            a(f'v_mul_f32 v{t+4}, v{t+4}, v{t+2}')
        for (x, z, t) in rows:
            for i in range(4):
                a(f'v_pk_fma_f32 {pr(z+2*i)}, {pr(x+2*i)}, {pr(t+2)}, {pr(t+4)} op_sel_hi:[1,0,0] neg_lo:[0,0,1] neg_hi:[0,0,1]')

    def unpack8(self, src, dst):
        a = self.a
        for i in range(4):
            a(f'v_lshlrev_b32 v{dst+2*i}, 16, v{src+i}')
            a(f'v_and_b32 v{dst+2*i+1}, 0xffff0000, v{src+i}')
    def pack8(self, src, dst):
        a = self.a
        for i in range(4):
            a(f'v_cvt_pk_bf16_f32 v{dst+i}, v{src+2*i}, v{src+2*i+1}')

    def prologue(self):
        a = self.a
        a('s_cmp_ge_u32 s2, 256')
        a('s_cbranch_scc1 L_end')
        a('s_load_dwordx16 s[16:31], s[0:1], 0')
        a('s_load_dwordx8 s[32:39], s[0:1], 64')
        a('s_load_dwordx4 s[40:43], s[0:1], 96')
        a('s_getpc_b64 s[68:69]')
        a(f's_and_b32 {sC}, s2, 7')
        a(f's_lshr_b32 {sR}, s2, 3')
        a(f's_mov_b32 {sABORT}, 0')
        a(f's_getreg_b32 {sXCC}, hwreg(HW_REG_XCC_ID)')
        a(f's_min_u32 {sXCC}, {sXCC}, 8')
        a('v_lshrrev_b32 v4, 6, v0')
        a('v_and_b32 v1, 63, v0')
        a(f'v_readfirstlane_b32 {sW}, v4')
        a(f'v_lshlrev_b32 v{vL16}, 4, v1')
        if self.o.get('prefetch', True) and self.o.get('pfearly', 1) and self.stop != 'x': self.code_prefetch()
        a('s_waitcnt lgkmcnt(0)')
        self.mk_srd(44, sWSP, WS_SIZE)
        self.stamp('start')
        if self.stamps:
            a('s_memtime s[62:63]'); a('s_waitcnt lgkmcnt(0)'); a('s_mov_b32 s100, s62')
        a(f'buffer_load_dword v{vTAG}, off, {WS}, 0 sc1')
        self.vq.issue('epoch')
        if self.o.get('lflag', 0) and self.stop != 'x':
            a(f's_lshl_b32 s53, {sC}, 7')
            a(f's_add_u32 s53, s53, {F_PL}')
            a(f'buffer_load_dword v253, off, {WS}, s53'); self.vq.issue('pf')

    def code_prefetch(self):
        a = self.a
        a('s_and_b32 s68, s68, 0xffffff00')
        a('s_and_b32 s69, s69, 0xffff')
        a(f's_mov_b32 s{SD_}, s68'); a(f's_mov_b32 s{SD_+1}, s69')
        a(f's_mov_b32 s{SD_+2}, CODE_BYTES')
        a(f's_mov_b32 s{SD_+3}, 0x00020000')
        a('v_lshlrev_b32 v87, 7, v0')
        a(f'buffer_load_dword v254, v87, {srd(SD_)}, 0 offen'); self.vq.issue('pf')
        a('v_add_u32 v87, 0x8000, v87')
        a(f'buffer_load_dword v254, v87, {srd(SD_)}, 0 offen'); self.vq.issue('pf')

    def pretouch(self):
        a = self.a
        a(f's_min_u32 s58, {sXCC}, 7')
        a('s_lshl_b32 s53, s58, 18')
        a(f's_lshl_b32 s54, {sR}, 13')
        a('s_add_u32 s53, s53, s54')
        a('v_lshlrev_b32 v88, 7, v1')
        Ls = a.newlabel('pt')
        a(f's_cmp_lg_u32 {sW}, 3')
        a(f's_cbranch_scc1 {Ls}'); a.comment('COND_BEGIN')
        self.mk_srd(SD_, sQ, 2097152)
        a(f'buffer_load_dword v255, v88, {srd(SD_)}, s53 offen')
        self.mk_srd(SD_, sB1, 3584)
        a(f'buffer_load_dword v255, v88, {srd(SD_)}, 0 offen')
        self.mk_srd(SD_, sB2, 1024)
        a(f'buffer_load_dword v255, v88, {srd(SD_)}, 0 offen')
        self.mk_srd(SD_, sOUT, 2097152)
        a(f'buffer_load_dword v255, off, {srd(SD_)}, s53')
        a('v_lshlrev_b32 v87, 21, v1')
        a('v_min_u32 v87, 0x1c00000, v87')
        a(f'buffer_load_dword v255, v87, {WS}, 0 offen')
        a.label(Ls); a.comment('COND_END')
        if self.o.get('ytouch', 0):
            Ls = a.newlabel('pt2')
            a(f's_cmp_lg_u32 {sW}, 2')
            a(f's_cbranch_scc1 {Ls}'); a.comment('COND_BEGIN')
            a(f's_add_u32 s53, s53, {Y0}')
            a(f'buffer_load_dword v255, v88, {WS}, s53 offen')
            a.label(Ls); a.comment('COND_END')
            Ls = a.newlabel('pt3')
            a(f's_cmp_lg_u32 {sW}, 1')
            a(f's_cbranch_scc1 {Ls}'); a.comment('COND_BEGIN')
            a(f's_lshr_b32 s53, {sR}, 3')
            a('s_lshl_b32 s53, s53, 5')
            a('v_and_b32 v87, 31, v1')
            a('v_add_u32 v87, s53, v87')
            a('v_lshrrev_b32 v88, 2, v87')
            a('v_lshlrev_b32 v88, 3, v88')
            a('v_and_b32 v87, 3, v87')
            a('v_add_u32 v87, v87, v88')
            a('v_lshrrev_b32 v88, 5, v1')
            a('v_lshl_add_u32 v87, v88, 2, v87')
            a('s_lshl_b32 s53, s58, 8')
            a('v_add_u32 v87, s53, v87')
            a('v_lshlrev_b32 v87, 10, v87')
            a(f's_and_b32 s53, {sR}, 7')
            a('s_lshl_b32 s53, s53, 7')
            a(f's_add_u32 s53, s53, {X2}')
            a(f'buffer_load_dword v255, v87, {WS}, s53 offen')
            a.label(Ls); a.comment('COND_END')

    def conv_epi_pre(self):
        a = self.a
        a('v_sub_u32 v140, 15, v4')
        a('v_mul_u32_u24 v140, 96, v140')
        a('v_lshlrev_b32 v141, 3, v5')
        a('v_sub_u32 v140, v140, v141')
        a(f's_mul_i32 s55, s67, {XBS}')
        a(f's_add_u32 s55, s55, {L_XB + 56}')
        a('s_lshl_b32 s56, s59, 5')
        a('s_sub_u32 s55, s55, s56')
        a('v_add_u32 v140, s55, v140')
        for c in range(4):
            a(f'ds_read_b64 v[{160+2*c}:{161+2*c}], v140 offset:{(48-16*c)*96}')
        a('v_lshrrev_b32 v141, 1, v5')
        a('v_lshlrev_b32 v141, 1, v141')
        a('s_lshl_b32 s56, s59, 2')
        a('s_add_u32 s56, s56, s67')
        a('v_add_u32 v141, s56, v141')
        a('v_and_b32 v142, 7, v4')
        a('v_xor_b32 v141, v141, v142')
        a('v_lshlrev_b32 v141, 4, v141')
        a('v_lshl_add_u32 v141, v4, 7, v141')
        a('v_and_b32 v142, 1, v5')
        a('v_lshl_add_u32 v141, v142, 3, v141')
        a('v_lshrrev_b32 v140, 3, v0')
        a('v_and_b32 v143, 7, v0')
        a('v_and_b32 v142, 7, v140')
        a('v_xor_b32 v142, v142, v143')
        a('v_lshlrev_b32 v142, 4, v142')
        a('v_lshl_add_u32 v142, v140, 7, v142')
        a('v_lshlrev_b32 v140, 15, v140')
        a('v_lshl_add_u32 v143, v143, 4, v140')
        a('s_lshl_b32 s55, s60, 16')
        a('s_and_b32 s56, s60, 0xffff0000')
        a('s_cmp_eq_u32 s67, 0')
        a('s_cselect_b32 s60, s55, s56')
        for _ in range(24): a.comment('SPACER')
        for c in range(4):
            d0, d1 = 160+2*c, 161+2*c
            t = 144 + 4*c
            a(f'v_and_b32 v{t}, 0xffff0000, v{d1}')
            a(f'v_lshlrev_b32 v{t+1}, 16, v{d1}')
            a(f'v_and_b32 v{t+2}, 0xffff0000, v{d0}')
            a(f'v_lshlrev_b32 v{t+3}, 16, v{d0}')
            for r in range(4): a(f'v_mul_f32 v{t+r}, s60, v{t+r}')

    def pretouch_late(self):
        a = self.a
        a(f's_lshl_b32 s53, {sC}, 18')
        a(f's_lshl_b32 s54, {sR}, 13')
        a('s_add_u32 s53, s53, s54')
        a('v_lshlrev_b32 v8, 7, v1')
        Ls = a.newlabel('pt')
        a(f's_cmp_lg_u32 {sW}, 3')
        a(f's_cbranch_scc1 {Ls}'); a.comment('COND_BEGIN')
        self.mk_srd(SD_, sQ, 2097152)
        a(f'buffer_load_dword v255, v8, {srd(SD_)}, s53 offen')
        self.mk_srd(SD_, sB1, 3584)
        a(f'buffer_load_dword v255, v8, {srd(SD_)}, 0 offen')
        self.mk_srd(SD_, sB2, 1024)
        a(f'buffer_load_dword v255, v8, {srd(SD_)}, 0 offen')
        self.mk_srd(SD_, sOUT, 2097152)
        a(f'buffer_load_dword v255, off, {srd(SD_)}, s53')
        a('v_lshlrev_b32 v9, 21, v1')
        a('v_min_u32 v9, 0x1c00000, v9')
        a(f'buffer_load_dword v255, v9, {WS}, 0 offen')
        a.label(Ls); a.comment('COND_END')
        if self.o.get('ytouch', 0):
            Ls = a.newlabel('pt2')
            a(f's_cmp_lg_u32 {sW}, 2')
            a(f's_cbranch_scc1 {Ls}'); a.comment('COND_BEGIN')
            a(f's_add_u32 s53, s53, {Y0}')
            a(f'buffer_load_dword v255, v8, {WS}, s53 offen')
            a.label(Ls); a.comment('COND_END')
            Ls = a.newlabel('pt3')
            a(f's_cmp_lg_u32 {sW}, 1')
            a(f's_cbranch_scc1 {Ls}'); a.comment('COND_BEGIN')
            a(f's_lshr_b32 s53, {sR}, 3')
            a('s_lshl_b32 s53, s53, 5')
            a('v_and_b32 v9, 31, v1')
            a('v_add_u32 v9, s53, v9')
            a('v_lshrrev_b32 v10, 2, v9')
            a('v_lshlrev_b32 v10, 3, v10')
            a('v_and_b32 v9, 3, v9')
            a('v_add_u32 v9, v9, v10')
            a('v_lshrrev_b32 v10, 5, v1')
            a('v_lshl_add_u32 v9, v10, 2, v9')
            a(f's_lshl_b32 s53, {sC}, 8')
            a('v_add_u32 v9, s53, v9')
            a('v_lshlrev_b32 v9, 10, v9')
            a(f's_and_b32 s53, {sR}, 7')
            a('s_lshl_b32 s53, s53, 7')
            a(f's_add_u32 s53, s53, {X2}')
            a(f'buffer_load_dword v255, v9, {WS}, s53 offen')
            a.label(Ls); a.comment('COND_END')

    def prep(self):
        a = self.a; vq = self.vq
        a('v_lshrrev_b32 v8, 3, v0')
        a('v_and_b32 v9, 7, v0')
        a('v_lshlrev_b32 v8, 15, v8')
        a('v_lshl_add_u32 v8, v9, 4, v8')
        a(f's_lshl_b32 s53, {sC}, 5')
        a(f's_add_u32 s53, s53, {sR}')
        a('s_lshl_b32 s53, s53, 7')
        a(f's_add_u32 s53, s53, {GB}')
        for i in range(4): a(f'v_mov_b32 v{160+i}, -1')
        self.clear_g = True
        HR = 56
        def hblock():
            a(f's_lshl_b32 s53, {sC}, 5')
            a(f's_add_u32 s53, s53, {sR}')
            a('s_lshl_b32 s53, s53, 1')
            a(f's_lshr_b32 s54, {sW}, 1')
            a('s_add_u32 s53, s53, s54')
            a('s_lshl_b32 s53, s53, 12')
            self.mk_srd(SC_, sSSM, 4096, add='s53')
            a('v_and_b32 v54, 127, v0')
            a('v_lshlrev_b32 v51, 4, v54')
            a('v_subrev_u32 v52, 64, v51')
            a('v_subrev_u32 v53, 48, v51')
            HR = 56
            for rho in range(3):
                if rho:
                    a(f'v_add_u32 v52, 2048, v52')
                    a(f'v_add_u32 v53, 2048, v53')
                self.vload(f'v[{HR+8*rho}:{HR+8*rho+3}]', 'v52', srd(SC_), 0, tag='hr')
                self.vload(f'v[{HR+8*rho+4}:{HR+8*rho+7}]', 'v53', srd(SC_), 0, tag='hr')

        if self.o.get('hrfirst', 0): hblock()
        a('v_lshrrev_b32 v4, 5, v0')
        a('v_and_b32 v5, 31, v0')
        a(f's_lshl_b32 s53, {sR}, 16')
        a(f's_lshl_b32 s54, {sC}, 7')
        a('s_add_u32 s53, s53, s54')
        a('v_lshlrev_b32 v6, 13, v4')
        a('v_lshl_add_u32 v6, v5, 2, v6')
        a('v_add_u32 v6, s53, v6')
        a('v_subrev_u32 v7, 3072, v6')
        a('v_add_u32 v8, 4096, v6')
        self.mk_srd(SA, sK, 2097152)
        self.mk_srd(SB, sV, 2097152)
        self.mk_srd(SC_, sSK, 4096)
        K = 10
        for i in range(3): self.vload(f'v{K+i}', 'v7', srd(SA), 0, 1024*i, w='x1', tag='kv')
        for i in range(4): self.vload(f'v{K+3+i}', 'v6', srd(SA), 0, 1024*i, w='x1', tag='kv')
        for i in range(4): self.vload(f'v{K+7+i}', 'v8', srd(SA), 0, 1024*i, w='x1', tag='kv')
        V = 21
        for i in range(4): self.vload(f'v{V+i}', 'v6', srd(SB), 0, 1024*i, w='x1', tag='kv')
        for i in range(4): self.vload(f'v{V+4+i}', 'v8', srd(SB), 0, 1024*i, w='x1', tag='kv')
        a(f's_lshl_b32 s53, {sC}, 9')
        a('v_lshlrev_b32 v9, 4, v5')
        a('v_add_u32 v9, s53, v9')
        self.vload('v[30:33]', 'v9', srd(SC_), 0, tag='kv')
        if self.o.get('kvbar', 0): a('s_barrier')
        if not self.o.get('hrfirst', 0): hblock()
        if self.o.get('prefetch', True) and not self.o.get('pfearly', 1): self.code_prefetch()
        a(f's_lshl_b32 s53, {sC}, 5')
        a(f's_add_u32 s53, s53, {sR}')
        a('s_lshl_b32 s53, s53, 7')
        a(f's_add_u32 s53, s53, {GB}')
        a('v_lshrrev_b32 v85, 3, v0')
        a('v_and_b32 v86, 7, v0')
        a('v_lshlrev_b32 v85, 15, v85')
        a('v_lshl_add_u32 v85, v86, 4, v85')
        self.vstore('v[160:163]', 'v85', WS, 's53', 0, ' sc1', tag='clr')
        a(f's_add_u32 s53, s53, {32*32768}')
        self.vstore('v[160:163]', 'v85', WS, 's53', 0, ' sc1', tag='clr')
        a(f's_lshl_b32 s53, {sC}, 5')
        a(f's_add_u32 s53, s53, {sR}')
        a('s_lshl_b32 s53, s53, 2')
        a(f's_add_u32 s54, s{sD}, s53')
        a(f's_addc_u32 s55, s{sD+1}, 0')
        a('s_load_dword s60, s[54:55], 0')
        if self.o.get('pretouch', 2) == 2: self.pretouch()

        a('v_mov_b32 v80, 0'); a('v_mov_b32 v81, 0'); a('v_mov_b32 v82, 0'); a('v_mov_b32 v83, 0')
        a('v_lshlrev_b32 v84, 4, v0')
        a('v_cmp_gt_u32 vcc, 90, v0')
        a('s_and_saveexec_b64 s[56:57], vcc')
        a(f'ds_write_b128 v84, v[80:83] offset:{L_XB + 64*96}')
        a(f'ds_write_b128 v84, v[80:83] offset:{L_XB + XBS + 64*96}')
        a('s_mov_b64 exec, s[56:57]')
        if self.o.get('toepearly', 0):
            vq.wait('hr')
            a('v_and_b32 v54, 127, v0')
            a('v_lshlrev_b32 v50, 4, v54')
            a(f's_lshr_b32 s53, {sW}, 1')
            a(f's_mul_i32 s53, s53, {8*CS}')
            a(f's_add_u32 s53, s53, {L_TOEP}')
            a('v_add_u32 v50, s53, v50')
            for rho in range(3):
                D = HR + 8*rho
                if rho == 2:
                    a('v_cmp_gt_u32 vcc, 3, v54')
                    a('s_and_saveexec_b64 s[56:57], vcc')
                O = 100
                for k in range(7): a(f'v_alignbit_b32 v{O+k}, v{D+k+1}, v{D+k}, 16')
                for k in range(1, 7): a(f'v_alignbit_b32 v{110+k-1}, v{D+k+1}, v{D+k}, 16')
                for k in range(1, 7): a(f'v_mov_b32 v{120+k-1}, v{D+k}')
                off = rho*2048
                srcs = [O+0, 120, 110, D+2, O+2, 122, 112, D+4]
                for sg in range(8):
                    a(f'ds_write_b128 v50, v[{srcs[sg]}:{srcs[sg]+3}] offset:{sg*CS + off}')
                if rho < 2: a.nop(1)
                if rho == 2: a('s_mov_b64 exec, s[56:57]')
            self.stamp('toeplitz done')
        vq.wait('kv')
        self.stamp('kv loaded')
        if self.o.get('pretouch', 2) == 3: self.pretouch()
        a(f'v_add_u32 v{vTAG}, 16, v{vTAG}')
        Wp = 90
        a(f'v_lshlrev_b32 v{Wp+0}, 16, v30'); a(f'v_lshlrev_b32 v{Wp+1}, 16, v32')
        a(f'v_readfirstlane_b32 {sTAG}, v{vTAG}')
        a(f'v_and_b32 v{Wp+2}, 0xffff0000, v30'); a(f'v_and_b32 v{Wp+3}, 0xffff0000, v32')
        a(f'v_lshlrev_b32 v{Wp+4}, 16, v31'); a(f'v_lshlrev_b32 v{Wp+5}, 16, v33')
        a(f'v_and_b32 v{Wp+6}, 0xffff0000, v31'); a(f'v_and_b32 v{Wp+7}, 0xffff0000, v33')
        Lx = a.newlabel('noxc')
        a(f's_cmp_lg_u32 {sW}, 0')
        a(f's_cbranch_scc1 {Lx}'); a.comment('COND_BEGIN')
        a('s_lshl_b32 s53, s2, 2')
        a(f's_add_u32 s53, s53, {F_XC}')
        a(f'v_add_u32 v85, {sXCC}, v{vTAG}')
        a(f'buffer_store_dword v85, off, {WS}, s53 sc1')
        a.label(Lx); a.comment('COND_END')
        KU = 100
        for i in range(11):
            a(f'v_lshlrev_b32 v{KU+2*i}, 16, v{K+i}')
            a(f'v_and_b32 v{KU+2*i+1}, 0xffff0000, v{K+i}')
        VU = 122
        for i in range(8):
            a(f'v_lshlrev_b32 v{VU+2*i}, 16, v{V+i}')
            a(f'v_and_b32 v{VU+2*i+1}, 0xffff0000, v{V+i}')
        AC = 140
        def pr(b): return f'v[{b}:{b+1}]'
        for t, wq in enumerate([6, 4, 2, 0]):
            for i in range(8):
                if t == 0: a(f'v_pk_mul_f32 {pr(AC+2*i)}, {pr(KU+2*(i+0))}, {pr(Wp+6)}')
                else: a(f'v_pk_fma_f32 {pr(AC+2*i)}, {pr(KU+2*(i+t))}, {pr(Wp+wq)}, {pr(AC+2*i)}')
        for i in range(8):
            a(f'v_pk_mul_f32 {pr(AC+2*i)}, {pr(AC+2*i)}, {pr(VU+2*i)}')
        for j in range(4):
            hi, lo = 7 - 2*j - 1, 7 - 2*j
            a(f'v_cvt_pk_bf16_f32 v{160+j}, v{AC+2*lo}, v{AC+2*hi}')
            a(f'v_cvt_pk_bf16_f32 v{164+j}, v{AC+2*lo+1}, v{AC+2*hi+1}')
        a('v_sub_u32 v85, 7, v4')
        a('v_and_b32 v9, 7, v5')
        a('v_xor_b32 v85, v85, v9')
        a('v_lshlrev_b32 v85, 4, v85')
        a('v_lshl_add_u32 v85, v5, 8, v85')
        a(f'ds_write_b128 v85, v[160:163] offset:{L_KVT}')
        a(f'ds_write_b128 v85, v[164:167] offset:{L_KVT+128}')
        a('v_lshrrev_b32 v85, 3, v0')
        a('v_and_b32 v9, 7, v0')
        a('v_bfe_u32 v29, v85, 1, 3')
        a('v_xor_b32 v29, v29, v9')
        a('v_lshlrev_b32 v29, 4, v29')
        a('v_lshl_add_u32 v29, v85, 7, v29')
        a(f's_lshl_b32 s53, {sC}, 18')
        a(f's_lshl_b32 s54, {sR}, 7')
        a('s_sub_u32 s53, s53, s54')
        a(f's_add_u32 s53, s53, {XR + 3968}')
        a('v_lshlrev_b32 v50, 12, v85')
        a('v_lshl_add_u32 v50, v9, 4, v50')
        a('v_add_u32 v51, 0x20000, v50')
        a('s_waitcnt lgkmcnt(0)')
        a('s_barrier')
        a(f'ds_read_b128 v[160:163], v29 offset:{L_KVT}')
        a(f'ds_read_b128 v[164:167], v29 offset:{L_KVT+4096}')
        a('s_waitcnt lgkmcnt(1)')
        self.vstore('v[160:163]', 'v50', WS, 's53', 0, ' sc1', tag='xr')
        a('s_waitcnt lgkmcnt(0)')
        self.vstore('v[164:167]', 'v51', WS, 's53', 0, ' sc1', tag='xr')
        self.stamp('xr stored')
        self.mk_srd(SA, sW1, 512*1792*2)
        self.mk_srd(SB, sW2, 512*1792*2)
        a(f's_lshl_b32 s53, {sR}, 4')
        a(f's_lshl_b32 s54, {sW}, 2')
        a('s_add_u32 s53, s53, s54')
        a('s_mul_i32 s53, s53, 3584')
        a(f's_mul_i32 s54, {sC}, 448')
        a('s_add_u32 s53, s53, s54')
        a('v_lshrrev_b32 v34, 4, v1')
        a('v_and_b32 v9, 15, v1')
        a('v_mul_u32_u24 v29, 3584, v34')
        a('v_lshl_add_u32 v29, v9, 4, v29')
        a('v_add_u32 v29, s53, v29')
        self.vload('v[196:199]', 'v29', srd(SA), 0, tag='wr')
        self.vload('v[200:203]', 'v29', srd(SA), 0, 256, tag='wr')
        a('s_lshr_b32 s53, s2, 1')
        a('s_lshl_b32 s53, s53, 14')
        a('s_and_b32 s54, s2, 1')
        a('s_lshl_b32 s54, s54, 9')
        a('s_add_u32 s53, s53, s54')
        a('v_lshrrev_b32 v42, 4, v0')
        a('v_lshlrev_b32 v50, 10, v42')
        a('v_lshl_add_u32 v50, v9, 4, v50')
        a('v_add_u32 v50, s53, v50')
        self.vload('v[204:207]', 'v50', srd(SB), 0, tag='wr')
        self.vload('v[208:211]', 'v50', srd(SB), 0, 256, tag='wr')
        if self.o.get('toepmid', 0):
            vq.wait('hr')
            a('v_and_b32 v54, 127, v0')
            a('v_lshlrev_b32 v50, 4, v54')
            a(f's_lshr_b32 s53, {sW}, 1')
            a(f's_mul_i32 s53, s53, {8*CS}')
            a(f's_add_u32 s53, s53, {L_TOEP}')
            a('v_add_u32 v50, s53, v50')
            for rho in range(3):
                D = HR + 8*rho
                if rho == 2:
                    a('v_cmp_gt_u32 vcc, 3, v54')
                    a('s_and_saveexec_b64 s[56:57], vcc')
                O = 100
                for k in range(7): a(f'v_alignbit_b32 v{O+k}, v{D+k+1}, v{D+k}, 16')
                for k in range(1, 7): a(f'v_alignbit_b32 v{110+k-1}, v{D+k+1}, v{D+k}, 16')
                for k in range(1, 7): a(f'v_mov_b32 v{120+k-1}, v{D+k}')
                off = rho*2048
                srcs = [O+0, 120, 110, D+2, O+2, 122, 112, D+4]
                for sg in range(8):
                    a(f'ds_write_b128 v50, v[{srcs[sg]}:{srcs[sg]+3}] offset:{sg*CS + off}')
                if rho < 2: a.nop(1)
                if rho == 2: a('s_mov_b64 exec, s[56:57]')
            self.stamp('toeplitz done')

        vq.wait('xr')
        a('s_barrier')
        Lnf = a.newlabel('noflag')
        a(f's_cmp_lg_u32 {sW}, 0')
        a(f's_cbranch_scc1 {Lnf}'); a.comment('COND_BEGIN')
        a(f's_lshl_b32 s53, {sC}, 5')
        a(f's_add_u32 s53, s53, {sR}')
        a('s_lshl_b32 s53, s53, 2')
        a(f's_add_u32 s53, s53, {F_PREP}')
        a(f'buffer_store_dword v{vTAG}, off, {WS}, s53 sc1')
        if self.o.get('lflag', 0):
            a(f's_add_u32 s53, s53, {F_PL - F_PREP}')
            a(f'buffer_store_dword v{vTAG}, off, {WS}, s53')
        a.label(Lnf); a.comment('COND_END')
        self.stamp('prep published')
        if not self.o.get('toepmid', 0) and not self.o.get('toepearly', 0):
            a('v_and_b32 v54, 127, v0')
            a('v_lshlrev_b32 v50, 4, v54')
            a(f's_lshr_b32 s53, {sW}, 1')
            a(f's_mul_i32 s53, s53, {8*CS}')
            a(f's_add_u32 s53, s53, {L_TOEP}')
            a('v_add_u32 v50, s53, v50')
            for rho in range(3):
                D = HR + 8*rho
                if rho == 2:
                    a('v_cmp_gt_u32 vcc, 3, v54')
                    a('s_and_saveexec_b64 s[56:57], vcc')
                O = 100
                for k in range(7): a(f'v_alignbit_b32 v{O+k}, v{D+k+1}, v{D+k}, 16')
                for k in range(1, 7): a(f'v_alignbit_b32 v{110+k-1}, v{D+k+1}, v{D+k}, 16')
                for k in range(1, 7): a(f'v_mov_b32 v{120+k-1}, v{D+k}')
                off = rho*2048
                srcs = [O+0, 120, 110, D+2, O+2, 122, 112, D+4]
                for sg in range(8):
                    a(f'ds_write_b128 v50, v[{srcs[sg]}:{srcs[sg]+3}] offset:{sg*CS + off}')
                if rho < 2: a.nop(1)
                if rho == 2: a('s_mov_b64 exec, s[56:57]')
            self.stamp('toeplitz done')


    def w_transpose(self):
        a = self.a; vq = self.vq
        vq.wait('wr')
        a('v_lshrrev_b32 v212, 4, v0')
        a('v_and_b32 v213, 15, v0')
        a('v_mul_u32_u24 v214, 448, v212')
        a('v_lshl_add_u32 v214, v213, 4, v214')
        a(f'ds_write_b128 v214, v[196:199] offset:{L_W1R}')
        a('v_cmp_gt_u32 vcc, 12, v213')
        a('s_and_saveexec_b64 s[56:57], vcc')
        a(f'ds_write_b128 v214, v[200:203] offset:{L_W1R+256}')
        a('s_mov_b64 exec, s[56:57]')
        a('v_mul_u32_u24 v214, 576, v212')
        a('v_lshl_add_u32 v214, v213, 4, v214')
        a(f'ds_write_b128 v214, v[204:207] offset:{L_W2R}')
        a(f'ds_write_b128 v214, v[208:211] offset:{L_W2R+256}')
        a('v_lshrrev_b32 v212, 5, v1')
        a('v_bfe_u32 v213, v1, 2, 2')
        a('v_bfe_u32 v214, v1, 4, 1')
        a('v_and_b32 v215, 3, v1')
        a('v_lshlrev_b32 v215, 3, v215')
        a('v_lshl_add_u32 v215, v214, 5, v215')
        a('v_lshl_add_u32 v216, v212, 3, v213')
        a('v_mul_u32_u24 v216, 448, v216')
        a('v_add_u32 v216, v216, v215')
        a(f's_lshl_b32 s54, {sW}, 6')
        a('v_add_u32 v216, s54, v216')
        a('v_lshl_add_u32 v217, v212, 2, v213')
        a('v_mul_u32_u24 v217, 576, v217')
        a('v_add_u32 v217, v217, v215')
        a('v_add_u32 v217, s54, v217')
        a('s_waitcnt lgkmcnt(0)')
        a('s_barrier')
        a(f'ds_read_b64_tr_b16 v[168:169], v216 offset:{L_W1R}')
        a(f'ds_read_b64_tr_b16 v[170:171], v216 offset:{L_W1R + 4*448}')
        a(f'ds_read_b64_tr_b16 v[172:173], v216 offset:{L_W1R + 256}')
        a(f'ds_read_b64_tr_b16 v[174:175], v216 offset:{L_W1R + 4*448 + 256}')
        a(f'ds_read_b64_tr_b16 v[176:177], v217 offset:{L_W2R}')
        a(f'ds_read_b64_tr_b16 v[178:179], v217 offset:{L_W2R + 8*576}')
        a(f'ds_read_b64_tr_b16 v[180:181], v217 offset:{L_W2R + 256}')
        a(f'ds_read_b64_tr_b16 v[182:183], v217 offset:{L_W2R + 8*576 + 256}')
        a(f's_mul_i32 s53, {sC}, 7')
        a(f's_add_u32 s53, s53, {sW}')
        a(f's_mul_i32 s54, {sR}, 56')
        a('s_add_u32 s53, s53, s54')
        a('s_lshl_b32 s53, s53, 10')
        a(f's_add_u32 s53, s53, {W1F}')
        a(f's_add_u32 s55, s53, {4*1024}')
        a('s_lshl_b32 s57, s2, 12')
        a(f's_add_u32 s57, s57, {DUMMY2}')
        a(f's_cmp_eq_u32 {sW}, 3')
        a('s_cselect_b32 s55, s57, s55')
        a('s_waitcnt lgkmcnt(4)')
        self.vstore('v[168:171]', f'v{vL16}', WS, 's53', 0, ' sc1', tag='wf')
        self.vstore('v[172:175]', f'v{vL16}', WS, 's55', 0, ' sc1', tag='wf')
        a('s_mov_b32 s4, s53'); a('s_mov_b32 s5, s55')
        a('s_lshr_b32 s54, s2, 1')
        a('s_mul_i32 s55, s54, 9363')
        a('s_lshr_b32 s55, s55, 18')
        a('s_mul_i32 s56, s55, 28')
        a('s_sub_u32 s54, s54, s56')
        a('s_lshl_b32 s54, s54, 2')
        a('s_add_u32 s54, s54, s55')
        a('s_lshl_b32 s54, s54, 4')
        a('s_and_b32 s53, s2, 1')
        a('s_lshl_b32 s53, s53, 3')
        a(f's_add_u32 s53, s53, {sW}')
        a('s_add_u32 s53, s53, s54')
        a('s_lshl_b32 s53, s53, 10')
        a(f's_add_u32 s53, s53, {W2F}')
        a('s_cmp_ge_u32 s2, 224')
        a('s_cselect_b32 s53, s57, s53')
        a('s_waitcnt lgkmcnt(0)')
        self.vstore('v[176:179]', f'v{vL16}', WS, 's53', 0, ' sc1', tag='wf')
        a('s_mov_b32 s6, s53')
        a(f's_add_u32 s54, s53, {4*1024}')
        a('s_cselect_b32 s53, s57, s54') if False else None
        a('s_cmp_ge_u32 s2, 224')
        a('s_cselect_b32 s53, s57, s54')
        self.vstore('v[180:183]', f'v{vL16}', WS, 's53', 0, ' sc1', tag='wf')
        a('s_mov_b32 s7, s53')

    def dummy_stores(self):
        a = self.a
        Ls = a.newlabel('nods')
        a(f's_cmp_eq_u32 {sFAST}, 0')
        a(f's_cbranch_scc1 {Ls}'); a.comment('COND_BEGIN')
        D = 'v[192:195]'
        if self.o.get('dsH', 0):
            a(f's_lshl_b32 s53, {sC}, 1')
            a(f's_add_u32 s53, s53, {sT1}')
            a('s_mul_i32 s53, s53, 448')
            a(f's_lshl_b32 s54, {sJ}, 2')
            a(f's_add_u32 s54, s54, {sW}')
            a('s_min_u32 s54, s54, 55')
            a('s_lshl_b32 s54, s54, 1')
            a('s_add_u32 s53, s53, s54')
            a('s_lshl_b32 s53, s53, 10')
            a(f's_add_u32 s53, s53, {H0}')
            for u in range(4):
                a(f'buffer_store_dwordx4 {D}, v{vL16}, {WS}, s53 offen')
                a(f'buffer_store_dwordx4 {D}, v{vL16}, {WS}, s53 offen offset:1024')
                if u < 3: a(f's_add_u32 s53, s53, {112*1024}')
        a(f's_lshl_b32 s53, {sC}, 8')
        a(f's_lshl_b32 s54, {sR}, 3')
        a('s_add_u32 s53, s53, s54')
        a(f's_add_u32 s53, s53, {sW}')
        a('s_lshl_b32 s53, s53, 10')
        a(f's_add_u32 s53, s53, {Y0}')
        a(f'buffer_store_dwordx4 {D}, v{vL16}, {WS}, s53 offen')
        a('s_add_u32 s53, s53, 4096')
        a(f'buffer_store_dwordx4 {D}, v{vL16}, {WS}, s53 offen')
        if not self.o.get('dsX', 0):
            a.label(Ls); a.comment('COND_END'); return
        a('v_lshrrev_b32 v8, 3, v0')
        a(f's_lshr_b32 s53, {sR}, 3')
        a('s_lshl_b32 s53, s53, 5')
        a('v_add_u32 v8, s53, v8')
        a('v_lshrrev_b32 v9, 2, v8')
        a('v_lshlrev_b32 v9, 3, v9')
        a('v_and_b32 v8, 3, v8')
        a('v_add_u32 v8, v8, v9')
        a(f's_lshl_b32 s53, {sC}, 8')
        a('v_add_u32 v8, s53, v8')
        a('v_lshlrev_b32 v8, 10, v8')
        a('v_and_b32 v9, 7, v0')
        a('v_lshl_add_u32 v8, v9, 4, v8')
        a(f's_and_b32 s53, {sR}, 7')
        a('s_lshl_b32 s53, s53, 7')
        a(f's_add_u32 s53, s53, {X2}')
        a(f'buffer_store_dwordx4 {D}, v8, {WS}, s53 offen')
        a('s_add_u32 s53, s53, 4096')
        a(f'buffer_store_dwordx4 {D}, v8, {WS}, s53 offen')
        a.label(Ls); a.comment('COND_END')

    def weight_state_init(self):
        a = self.a
        a(f's_cmp_ge_u32 {sR}, 14')
        a(f's_cselect_b32 {sT1}, 1, 0')
        a(f's_mul_i32 s53, {sT1}, 14')
        a(f's_sub_u32 {sJ}, {sR}, s53')
        a(f's_lshl_b32 s14, {sJ}, 2')
        a(f's_add_u32 s14, s14, {sW}')
        a('s_min_u32 s14, s14, 55')
        a('s_lshl_b32 s14, s14, 10')
        a(f's_add_u32 s14, s14, {W1F}')
        a(f's_and_b32 s15, {sR}, 7')
        a('s_lshl_b32 s15, s15, 1')
        a(f's_lshl_b32 s53, {sW}, 4')
        a('s_add_u32 s15, s15, s53')
        a('s_lshl_b32 s15, s15, 10')
        a(f's_add_u32 s15, s15, {W2F}')
        self.wlist = [('w1', k) for k in range(32)] + [('w2', nt, i) for i in range(28) for nt in range(2)]
    def weight_batch(self, n):
        a = self.a
        for _ in range(n):
            if not self.wlist: return
            it = self.wlist.pop(0)
            if it[0] == 'w1':
                k = it[1]
                a(f's_add_u32 s13, s14, {k*56*1024}')
                self.vload(W1reg(k), f'v{vL16}', WS, 's13', 0, ' sc1', tag='w')
            else:
                _, nt, i = it
                a(f's_add_u32 s13, s15, {i*64*1024}')
                self.vload(W2reg(nt, i), f'v{vL16}', WS, 's13', nt*1024, ' sc1', tag='w')

    def conv(self):
        a = self.a; vq = self.vq; o = self.o
        a(f's_lshl_b32 s53, {sC}, 7')
        a(f's_add_u32 s53, s53, {F_PREP}')
        a('v_and_b32 v5, 31, v1')
        a('v_lshlrev_b32 v5, 2, v5')
        a('v_add_u32 v5, s53, v5')
        if o.get('poll1', 1):
            Lp = a.newlabel('np')
            a(f's_cmp_lg_u32 {sW}, 0')
            a(f's_cbranch_scc1 {Lp}')
            if o.get('lflag', 0):
                L = a.newlabel('pl'); D = a.newlabel('pld')
                a(f'v_add_u32 v9, {F_PL - F_PREP}, v5')
                a('s_mov_b32 s53, 0')
                a.label(L)
                a(f'buffer_load_dword v8, v5, {WS}, 0 offen sc1')
                a(f'buffer_load_dword v10, v9, {WS}, 0 offen sc1')
                a('s_waitcnt vmcnt(0)')
                a(f'v_cmp_ne_u32 vcc, {sTAG}, v8')
                a(f'v_cmp_ne_u32 s[54:55], {sTAG}, v10')
                a.nop(1)
                a('s_and_b64 vcc, vcc, s[54:55]')
                a(f's_cbranch_vccz {D}')
                a('s_add_u32 s53, s53, 1')
                a(f's_cmp_lg_u32 {sABORT}, 0')
                a(f's_cbranch_scc1 {D}')
                a('s_cmp_lt_u32 s53, 0x8000')
                a(f's_cbranch_scc1 {L}')
                a(f's_mov_b32 {sABORT}, 1')
                a.label(D)
                vq.reset()
            else:
                self.poll(5, 8)
            a.label(Lp)
            vq.drain()
            a('s_barrier')
        else:
            self.poll(5, 8)
        self.stamp('prep flags seen')
        a(f's_lshl_b32 s53, {sC}, 5')
        a(f's_add_u32 s53, s53, {sR}')
        a('s_lshl_b32 s61, s53, 7')
        a('s_lshl_b32 s53, s53, 13')
        a(f's_add_u32 s53, s53, {XR}')
        a('v_lshlrev_b32 v5, 4, v0')
        self.vload('v[184:187]', 'v5', WS, 's53', 0, ' sc1', tag='x0')
        a('s_add_u32 s53, s53, 4096')
        self.vload('v[188:191]', 'v5', WS, 's53', 0, ' sc1', tag='x1')
        a(f'v_add_u32 v132, {F_XC}, v{vL16}')
        a(f'buffer_load_dwordx4 v[128:131], v132, {WS}, 0 offen sc1'); vq.issue('fw')
        if not o.get('wtloop', 0): self.w_transpose()
        a('v_lshrrev_b32 v4, 2, v0')
        a('v_mul_u32_u24 v4, 96, v4')
        a('v_and_b32 v5, 3, v0')
        a('v_lshl_add_u32 v4, v5, 4, v4')
        vq.wait('x0')
        a(f'ds_write_b128 v4, v[184:187] offset:{L_XB}')
        vq.wait('x1')
        a(f'ds_write_b128 v4, v[188:191] offset:{L_XB + XBS}')
        a(f's_lshr_b32 s67, {sW}, 1')
        a(f's_and_b32 s59, {sW}, 1')
        a('v_and_b32 v4, 15, v1')
        a('v_lshrrev_b32 v5, 4, v1')
        a('v_and_b32 v6, 7, v4')
        a(f'v_mul_u32_u24 v6, {CS}, v6')
        a('v_and_b32 v7, 8, v4')
        a('v_lshl_add_u32 v7, v5, 3, v7')
        a('v_lshl_add_u32 v6, v7, 1, v6')
        a(f's_mul_i32 s55, s67, {8*CS}')
        a('s_lshl_b32 s56, s59, 5')
        a('s_add_u32 s55, s55, s56')
        a(f's_add_u32 s55, s55, {L_TOEP}')
        a('v_add_u32 v6, s55, v6')
        a('v_sub_u32 v7, 15, v4')
        a('v_mul_u32_u24 v7, 96, v7')
        a('v_lshl_add_u32 v7, v5, 4, v7')
        a(f's_mul_i32 s55, s67, {XBS}')
        a(f's_add_u32 s55, s55, {L_XB}')
        a('v_add_u32 v7, s55, v7')
        a('s_waitcnt lgkmcnt(0)')
        a('s_barrier')
        if self.o.get('pretouch', 2) == 1: self.pretouch_late()
        for i in range(16): a(f'v_mov_b32 v{16+i}, 0')
        self.stamp('x in lds')
        wb1 = o.get('wb1', 12)
        def Er(m, j): b = 32 + 32*(m % 3) + 4*j; return f'v[{b}:{b+3}]'
        def Fr(m, j): b = 32 + 32*(m % 3) + 16 + 4*j; return f'v[{b}:{b+3}]'
        def gloads(m):
            l = []
            for j in range(4):
                e = 16*j - m
                l.append(f'ds_read_b128 {Fr(m,j)}, v6 offset:{64*(m+16*j)}')
                l.append(f'ds_read_b128 {Er(m,j)}, v7 offset:{(48-e)*96}')
            return l
        for l in gloads(0): a(l)
        for l in gloads(1)[:7]: a(l)
        first_extra = gloads(1)[7:]
        wt1, wt2 = [], []
        if o.get('wtloop', 0):
            wt = self.capture(self.w_transpose)
            bi = [i for i, l in enumerate(wt) if l.startswith('s_barrier')][0]
            wt1, wt2 = wt[:bi+1], wt[bi+1:]
        xc = self.capture(lambda: self.check_xc(128, 132))
        ei = [i for i, l in enumerate(xc) if 'SPIN_END' in l][0]
        xc_head, xc_rest = xc[:ei+1], xc[ei+1:]
        fillers = []
        for m in range(16):
            nxt = (first_extra if m == 0 else []) + (gloads(m+2) if m + 2 < 16 else [])
            if m == 1:
                for l in wt1: a.lines.append(l)
            if m == 2:
                for l in wt2: a.lines.append(l)
            if m == o.get('xcslot', 1):
                for l in xc_head: a.lines.append(l)
                epi = self.capture(self.conv_epi_pre)
                def grp(lines):
                    out = []
                    for l in lines:
                        if out and l.startswith('s_cselect') : out[-1].append(l)
                        else: out.append([l])
                    return out
                epi = grp(epi)
                fillers = grp(xc_rest) + epi; nepi = len(epi)
            if m == 0: a('s_waitcnt lgkmcnt(7)')
            elif m < 15: a('s_waitcnt lgkmcnt(8)')
            else: a('s_waitcnt lgkmcnt(0)')
            mf = []
            for j in range(4):
                for c in range(j, 4):
                    mf.append(f'v_mfma_f32_16x16x32_bf16 v[{16+4*c}:{19+4*c}], {Fr(m,j)}, {Er(m,c-j)}, v[{16+4*c}:{19+4*c}]')
            if m == o.get('fwpub', 4):
                vq.wait('wf')
                a('s_barrier')
                Lnf = a.newlabel('noflag')
                a(f's_cmp_lg_u32 {sW}, 0')
                a(f's_cbranch_scc1 {Lnf}'); a.comment('COND_BEGIN')
                a('s_lshl_b32 s53, s2, 2')
                a(f's_add_u32 s53, s53, {F_W}')
                a(f'buffer_store_dword v{vTAG}, off, {WS}, s53 sc1')
                a.label(Lnf); a.comment('COND_END')
            if m == o.get('fwpub', 4) and o.get('wretouch', 0):
                for q in range(4):
                    a(f'buffer_load_dword v255, v{vL16}, {WS}, s{4+q} offen'); vq.issue('wt')
            if m == o.get('dsslot', 10) and o.get('dstore', 1):
                assert len(fillers) <= nepi
                self.dummy_stores()
            if m == o.get('fwld', 13) and not o.get('fw1', 0):
                a(f'v_add_u32 v132, {F_W}, v{vL16}')
                a(f'buffer_load_dwordx4 v[128:131], v132, {WS}, 0 offen sc1'); vq.issue('fw2')
            for i, ins in enumerate(mf):
                a(ins)
                if nxt: a(nxt.pop(0))
                for _ in range(2):
                    if fillers:
                        a.lines.extend(fillers.pop(0))
            assert not nxt
        for gl in fillers: a.lines.extend(gl)
        self.stamp('conv mfma done')
        a.nop(6)
        for c in range(4):
            acc = 16+4*c
            for r in range(4): a(f'v_add_f32 v{acc+r}, v{acc+r}, v{144+4*c+r}')
            a(f'v_cvt_pk_bf16_f32 v{64+2*c}, v{acc}, v{acc+1}')
            a(f'v_cvt_pk_bf16_f32 v{65+2*c}, v{acc+2}, v{acc+3}')
            a(f'ds_write_b64 v141, v[{64+2*c}:{65+2*c}] offset:{L_GT + 16*c*128}')
        a('s_waitcnt lgkmcnt(0)')
        a('s_barrier')
        a(f'ds_read_b128 v[48:51], v142 offset:{L_GT}')
        a(f'ds_read_b128 v[52:55], v142 offset:{L_GT + 4096}')
        a(f's_add_u32 s53, s61, {GB}')
        a('s_waitcnt lgkmcnt(1)')
        self.vstore('v[48:51]', 'v143', WS, 's53', 0, ' sc1', tag='g')
        a(f's_add_u32 s53, s53, {32*32768}')
        a('s_waitcnt lgkmcnt(0)')
        self.vstore('v[52:55]', 'v143', WS, 's53', 0, ' sc1', tag='g')
        self.mk_srd(SA, sQ, 2097152)
        a(f's_lshl_b32 s53, {sC}, 8')
        a(f's_lshl_b32 s54, {sR}, 3')
        a('s_add_u32 s53, s53, s54')
        a(f's_add_u32 s53, s53, {sW}')
        a('s_lshl_b32 s53, s53, 10')
        self.vload('v[8:11]', f'v{vL16}', srd(SA), 's53', 0, tag='q')
        a('s_add_u32 s53, s53, 4096')
        self.vload('v[12:15]', f'v{vL16}', srd(SA), 's53', 0, tag='q')
        if o.get('fw1', 0):
            Lq = a.newlabel('nfw')
            a(f's_cmp_lg_u32 {sW}, 0')
            a(f's_cbranch_scc1 {Lq}')
            a(f'v_add_u32 v132, {F_W}, v{vL16}')
            keep = list(self.vq.ops)
            self.poll(132, 128, x4=True)
            self.vq.ops = keep
            a.label(Lq)
        else:
            self.check_fw(128, 132)
        a('s_barrier')
        self.weight_batch(o.get('wb2', 24))
        self.stamp('conv published')

    def finish(self):
        a = self.a
        a.label('L_fin')
        Ln = a.newlabel('noep')
        a('s_cmp_lg_u32 s2, 0')
        a(f's_cbranch_scc1 {Ln}'); a.comment('COND_BEGIN')
        a(f's_cmp_lg_u32 {sW}, 0')
        a(f's_cbranch_scc1 {Ln}'); a.comment('COND_BEGIN')
        a(f'buffer_store_dword v{vTAG}, off, {WS}, 0 sc1')
        a.label(Ln)
        if self.stamps:
            self.stamp('end')
            a('s_memtime s[62:63]'); a('s_waitcnt lgkmcnt(0)'); a('s_sub_u32 s100, s62, s100')
            a('s_lshl_b32 s53, s2, 2')
            a(f's_add_u32 s53, s53, {sW}')
            a('s_lshl_b32 s53, s53, 7')
            a(f's_add_u32 s53, s53, {TS}')
            a('s_mov_b64 exec, 1')
            a('v_mov_b32 v4, 0')
            for i in range(self.nstamp):
                a(f'v_mov_b32 v5, s{76+i}')
                a(f'buffer_store_dword v5, v4, {WS}, s53 offen offset:{4*i}')
                a.nop(1)
            if self.o.get('dbgstamps'):
                Ld = a.newlabel('nodbg')
                a(f's_cmp_lg_u32 s2, {self.o.get("dbgstamps")}')
                a(f's_cbranch_scc1 {Ld}')
                a(f's_cmp_lg_u32 {sW}, 0')
                a(f's_cbranch_scc1 {Ld}')
                self.mk_srd(SA, sDBG, 256)
                sel = [1, 3, 5, 6, 7, 9, 10, 12, 13, 15, 16, 18, 19, 21, 22, 22]
                for j, i in enumerate(sel):
                    a(f's_sub_u32 s54, s{76+i}, s76')
                    a(f'v_mov_b32 v5, s54')
                    a(f'buffer_store_dword v5, v4, {srd(SA)}, 0 offen offset:{4*j}')
                    a.nop(1)
                a.label(Ld)
            a(f'v_mov_b32 v5, {sFAST}')
            a(f'buffer_store_dword v5, v4, {WS}, s53 offen offset:116')
            a.nop(1)
            a(f'v_mov_b32 v5, s100')
            a(f'buffer_store_dword v5, v4, {WS}, s53 offen offset:120')
            a.nop(1)
            a(f'v_mov_b32 v5, {sABORT}')
            a(f'buffer_store_dword v5, v4, {WS}, s53 offen offset:124')
        a('s_waitcnt vmcnt(0)')
        a.label('L_end')
        a('s_endpgm')
        self.finished = True
        if not getattr(self, 'more_code', False): a.label('L_code_end')

    def build(self):
        self.prologue()
        self.prep()
        if self.stop != 'prep': self.conv()
        if self.stop not in ('prep', 'conv'):
            if self.o.get('mlp', 4) == 3:
                from gen3_mlp import emit_mlp
            else:
                from gen4_mlp import emit_mlp
            emit_mlp(self)
        if not getattr(self, 'finished', False): self.finish()
        else: self.a.label('L_code_end')
        body = self.a.text()
        hdr = open('cdna_kernels/' + NAME[:-7] + '.s.ref').read().split('; Override launch')[0]
        s = hdr + f'; @launch grid=(256,1,1) block=(256,1,1) lds={LDS_SIZE}\n' + DOC
        s += f'''.amdgcn_target "amdgcn-amd-amdhsa--gfx950"
.text
.globl {NAME}
.p2align 8
.type {NAME},@function
{NAME}:
.set CODE_BYTES, {'L_slow' if 'L_slow:' in body else 'L_code_end'} - {NAME}
''' + body + f'''.section .rodata,"a"
.p2align 6
.amdhsa_kernel {NAME}
  .amdhsa_next_free_vgpr 512
  .amdhsa_next_free_sgpr 102
  .amdhsa_accum_offset 256
  .amdhsa_group_segment_fixed_size 0
  .amdhsa_kernarg_size 112
  .amdhsa_user_sgpr_count 2
  .amdhsa_user_sgpr_kernarg_segment_ptr 1
  .amdhsa_system_sgpr_workgroup_id_x 1
.end_amdhsa_kernel
'''
        return s

def main():
    ap = argparse.ArgumentParser()
    ap.add_argument('--stop', default='end')
    ap.add_argument('--stamps', action='store_true')
    ap.add_argument('-o', default='k.s')
    ap.add_argument('--opt', action='append', default=[])
    args = ap.parse_args()
    opts = {}
    for kv in args.opt:
        k, v = kv.split('='); opts[k] = int(v) if v.lstrip('-').isdigit() else v
    g = Gen(stop=args.stop, stamps=args.stamps, opts=opts)
    s = g.build()
    probs = check_hazards(g.a.lines)
    for p in probs: print(p)
    wp = check_waits(g.a.lines)
    for p in wp[:30]: print(p)
    print(len(wp), 'wait problems')
    print(f'{len(g.a.lines)} lines, {len(probs)} hazards')
    open(args.o, 'w').write(s)
    open(args.o + '.stamps', 'w').write('\n'.join(g.stamp_names))

if __name__ == '__main__':
    main()
```
